```python
import torch

def _softmax(x, axis=-1):
    return torch.softmax(x, dim=axis)
def _gelu(x):
    return torch.nn.functional.gelu(x, approximate="tanh")
def _silu(x):
    return torch.nn.functional.silu(x)
def _sigmoid(x):
    return torch.sigmoid(x)
def _layernorm(x, axis=-1, eps=1e-5):
    m = x.mean(dim=axis, keepdim=True)
    v = x.var(dim=axis, keepdim=True, unbiased=False)
    return (x - m) / torch.sqrt(v + eps)
def _scatter_add(tgt, idx, src, axis=0):
    return tgt.clone().index_add_(axis, idx, src)
def _segment_sum(src, seg, n):
    out = torch.zeros((n,) + src.shape[1:], dtype=src.dtype)
    return out.index_add_(0, seg, src)
def _pad(x, pw):
    flat = tuple(v for pair in reversed(pw) for v in pair)
    return torch.nn.functional.pad(x, flat)

kernel_name = 'recurrent_scan__sliding_block_cached__glu_gated_glu__prompt'

def setup_inputs():

    _w = (lambda a: (lambda t: t.to(torch.bfloat16) if t.is_floating_point() else t)(torch.as_tensor(a)))
    def _A_setup():
        B, Sq, D = 1, 2048, 1024
        Hq, Hkv, Sk, Dh = 32, 4, 2048, 128
        assert Hq % Hkv == 0, (Hq, Hkv)
        return {
            "x": _w((lambda *s: torch.randn(*s, dtype=torch.bfloat16) * 0.05)(B, Sq, D)),
            "k_cache": _w((lambda *s: torch.randn(*s, dtype=torch.bfloat16) * 0.8)(B, Hkv, Sk, Dh)),
            "v_cache": _w((lambda *s: torch.randn(*s, dtype=torch.bfloat16) * 0.2)(B, Hkv, Sk, Dh)),
            "wq": _w((lambda *s: torch.randn(*s, dtype=torch.bfloat16) * 0.8)(D, Hq * Dh) * (D ** -0.5)),
            "wo": _w((lambda *s: torch.randn(*s, dtype=torch.bfloat16) * 0.2)(Hq * Dh, D) * ((Hq * Dh) ** -0.5)),
        }
    _A_in = _A_setup()

    def _B_setup():
        B, S, D, F = 1, 2048, 1024, 3584
        return {
            "x": _w((lambda *s: torch.randn(*s, dtype=torch.bfloat16) * 0.05)(B, S, D)),
            "w_gate": _w((lambda *s: torch.randn(*s, dtype=torch.bfloat16) * 0.2)(D, F)),
            "w_up": _w((lambda *s: torch.randn(*s, dtype=torch.bfloat16) * 0.1)(D, F)),
            "w_down": _w((lambda *s: torch.randn(*s, dtype=torch.bfloat16) * 0.1)(F, D)),
        }
    _B_in = _B_setup()

    return {
        "A_x": _A_in["x"],
        "A_k_cache": _A_in["k_cache"],
        "A_v_cache": _A_in["v_cache"],
        "A_wq": _A_in["wq"],
        "A_wo": _A_in["wo"],
        "B_x": _B_in["x"],
        "B_w_gate": _B_in["w_gate"],
        "B_w_up": _B_in["w_up"],
        "B_w_down": _B_in["w_down"],
    }

def reference(A_x, A_k_cache, A_v_cache, A_wq, A_wo, B_x, B_w_gate, B_w_up, B_w_down):
    def _A_ref(x, k_cache, v_cache, wq, wo):
        B, Sq, D = x.shape
        Hq, Dh = 32, 128
        Hkv, Sk = k_cache.shape[1], k_cache.shape[2]
        W = min(4096, max(256, Sk // 4))
        rep = Hq // Hkv
        q = (lambda x, *d: x.permute(*d))((x @ wq).reshape(B, Sq, Hq, Dh), 0, 2, 1, 3)
        k = (lambda x, n, axis: torch.repeat_interleave(x, n, dim=axis))(k_cache[:, :, Sk - W:, :], rep, axis=1)
        v = (lambda x, n, axis: torch.repeat_interleave(x, n, dim=axis))(v_cache[:, :, Sk - W:, :], rep, axis=1)
        scores = torch.einsum("bhqd,bhkd->bhqk", q, k) * (Dh ** -0.5)
        p = _softmax(scores, axis=-1)
        o = torch.einsum("bhqk,bhkd->bhqd", p, v)
        return (lambda x, *d: x.permute(*d))(o, 0, 2, 1, 3).reshape(B, Sq, Hq * Dh) @ wo

    def _B_ref(x, w_gate, w_up, w_down):
        g = torch.einsum("bsd,df->bsf", x, w_gate)
        u = torch.einsum("bsd,df->bsf", x, w_up)
        h = _sigmoid(g) * u
        return torch.einsum("bsf,fd->bsd", h, w_down)

    x = A_x
    xn = _layernorm(x, axis=-1)
    s = _A_ref(xn, A_k_cache, A_v_cache, A_wq, A_wo)
    g = _silu(_B_ref(xn, B_w_gate, B_w_up, B_w_down))
    return x + s * g
```

```python
class Asm:
    def __init__(self):
        self.lines = []
        self.nlabel = 0
    def e(self, s):
        if isinstance(s, (list, tuple)):
            for x in s: self.e(x)
        else:
            self.lines.append(s if s.endswith(":") else "    " + s)
    def raw(self, s):
        self.lines.append(s)
    def label(self, name):
        self.lines.append(name + ":")
    def c(self, s):
        self.lines.append("    ; " + s)
    def text(self):
        return "\n".join(self.lines) + "\n"

def r(kind, lo, n=1):
    if n == 1: return f"{kind}{lo}"
    return f"{kind}[{lo}:{lo+n-1}]"
def v(lo, n=1): return r("v", lo, n)
def a(lo, n=1): return r("a", lo, n)
def s(lo, n=1): return r("s", lo, n)

class Reg:
    def __init__(self, kind, base, n=1):
        self.kind, self.base, self.n = kind, base, n
    def __call__(self, off=0, n=None):
        return r(self.kind, self.base + off, self.n if n is None else n)
    def sub(self, off, n):
        return Reg(self.kind, self.base + off, n)
    def __str__(self): return self()

def mfma32(d, A, B, c=None):
    c = d if c is None else c
    return f"v_mfma_f32_32x32x16_bf16 {d}, {A}, {B}, {c}"

def srd(A, sd, sptr, nbytes, bias=0):
    out = []
    if bias == 0:
        out += [f"s_mov_b32 s{sd}, s{sptr}", f"s_and_b32 s{sd+1}, s{sptr+1}, 0xffff"]
    elif bias > 0:
        out += [f"s_add_u32 s{sd}, s{sptr}, {bias:#x}", f"s_addc_u32 s{sd+1}, s{sptr+1}, 0", f"s_and_b32 s{sd+1}, s{sd+1}, 0xffff"]
    else:
        out += [f"s_sub_u32 s{sd}, s{sptr}, {-bias:#x}", f"s_subb_u32 s{sd+1}, s{sptr+1}, 0", f"s_and_b32 s{sd+1}, s{sd+1}, 0xffff"]
    out += [f"s_mov_b32 s{sd+2}, {nbytes:#x}", f"s_mov_b32 s{sd+3}, 0x20000"]
    A.e(out)

def kernel_desc(name, vgpr, accum, sgpr=102):
    return f""".section .rodata,"a"
.p2align 6
.amdhsa_kernel {name}
  .amdhsa_next_free_vgpr {vgpr}
  .amdhsa_next_free_sgpr {sgpr}
  .amdhsa_accum_offset {accum}
  .amdhsa_group_segment_fixed_size 0
  .amdhsa_kernarg_size 96
  .amdhsa_user_sgpr_count 2
  .amdhsa_user_sgpr_kernarg_segment_ptr 1
  .amdhsa_system_sgpr_workgroup_id_x 1
  .amdhsa_float_denorm_mode_32 3
.end_amdhsa_kernel
.text
"""

def kernel_head(name):
    return f""".globl {name}
.p2align 8
.type {name},@function
{name}:
"""
```

```python
from asmlib import *
import copy

WS_XF, WS_HF, WS_OF, WS_GF, WS_FLAG, WS_STAMP = 0, 0x400000, 0x1200000, 0x2200000, 0x2600000, 0x2700000
SZ_XF, SZ_HF, SZ_OF, SZ_GF, SZ_FLAG = 0x400000, 0xE00000, 0x1000000, 0x400000, 0x4800
P_X, P_K, P_V, P_WQ, P_WO, P_BX, P_WG, P_WU, P_WD, P_OUT, P_DBG, P_WS = 16, 18, 20, 22, 24, 26, 28, 30, 32, 34, 36, 38
LOADARGS = ["s_load_dwordx16 s[16:31], s[0:1], 0", "s_load_dwordx8 s[32:39], s[0:1], 64"]

class Q:
    def __init__(self, name, cap, slack=None):
        self.name, self.cap = name, cap
        self.slack = cap if slack is None else slack
        self.q = []
    def issue(self, tag): self.q.append(tag)
    def count_after(self, tag):
        if tag not in self.q: return None
        idx = max(i for i, t in enumerate(self.q) if t == tag)
        return len(self.q) - 1 - idx
    def need(self, tag, slack=None):
        n = self.count_after(tag)
        if n is None: return []
        n = min(n, self.slack if slack is None else slack, self.cap)
        self.q = self.q[len(self.q) - n:] if n else []
        return [f"s_waitcnt {self.name}({n})"]
    def drain(self):
        self.q = []
        return [f"s_waitcnt {self.name}(0)"]
    def rebase(self, d):
        self.q = [(t[0], t[1] - d) + tuple(t[2:]) for t in self.q]

def mfma16(d, A, B, c=None):
    c = d if c is None else c
    return f"v_mfma_f32_16x16x32_bf16 {d}, {A}, {B}, {c}"
```

```python
from common import *

def k0(A, name="k0_kernel"):
    A.raw(kernel_head(name))
    A.e(["s_cmp_ge_u32 s2, 256", f"s_cbranch_scc1 {name}_end",
         "s_load_dwordx2 s[16:17], s[0:1], 0", "s_load_dwordx2 s[38:39], s[0:1], 88",
         "v_and_b32 v1, 7, v0",
         "v_lshrrev_b32 v2, 3, v0",
         "v_and_b32 v3, 7, v2",
         "v_lshrrev_b32 v4, 6, v0",
         "v_lshl_add_u32 v5, v4, 4, v3",
         "s_lshl_b32 s3, s2, 14",
         "v_lshlrev_b32 v6, 11, v1",
         "v_lshl_add_u32 v6, v5, 4, v6",
         "s_waitcnt lgkmcnt(0)"])
    srd(A, 40, 16, 2048 * 1024 * 2)
    A.e(["buffer_load_dwordx4 v[8:11], v6, s[40:43], s3 offen",
         "buffer_load_dwordx4 v[12:15], v6, s[40:43], s3 offen offset:128"])
    srd(A, 44, 38, SZ_XF, WS_XF)
    srd(A, 48, 38, SZ_FLAG, WS_FLAG)
    A.e(["s_lshr_b32 s4, s2, 1", "s_lshl_b32 s4, s4, 15",
         "s_and_b32 s5, s2, 1", "s_lshl_b32 s5, s5, 7",
         "s_add_u32 s4, s4, s5",
         "v_lshlrev_b32 v7, 8, v5", "v_lshl_add_u32 v7, v1, 4, v7",
         "v_lshlrev_b32 v32, 5, v1", "v_lshl_add_u32 v33, v4, 2, v32",
         "s_lshl_b32 s6, s2, 7", "v_mov_b32 v34, 0", "v_lshlrev_b32 v35, 2, v0",
         "v_cmp_gt_u32 vcc, 32, v0", "s_and_saveexec_b64 s[8:9], vcc", f"s_cbranch_execz {name}_nf",
         "buffer_store_dword v34, v35, s[48:51], s6 offen"])
    A.label(f"{name}_nf")
    A.e(["s_mov_b64 exec, s[8:9]", "s_waitcnt vmcnt(1)" ])
    A.lines[-1] = "    s_waitcnt vmcnt(0)"
    for i in range(8):
        A.e([f"v_lshlrev_b32 v{16+2*i}, 16, v{8+i}", f"v_and_b32 v{17+2*i}, 0xffff0000, v{8+i}"])
    def reduce(src, ldsoff):
        A.e(["s_nop 1",
             f"v_add_f32_dpp v{src}, v{src}, v{src} row_ror:8 row_mask:0xf bank_mask:0xf",
             f"v_mov_b32 v35, v{src}", "s_nop 1", f"v_permlane16_swap_b32 v35, v{src}", f"v_add_f32 v{src}, v35, v{src}",
             f"v_mov_b32 v35, v{src}", "s_nop 1", f"v_permlane32_swap_b32 v35, v{src}", f"v_add_f32 v{src}, v35, v{src}",
             f"ds_write_b32 v33, v{src} offset:{ldsoff}",
             "s_waitcnt lgkmcnt(0)", "s_barrier",
             f"ds_read_b128 v[36:39], v32 offset:{ldsoff}", f"ds_read_b128 v[40:43], v32 offset:{ldsoff+16}",
             "s_waitcnt lgkmcnt(0)",
             "v_add_f32 v36, v36, v37", "v_add_f32 v38, v38, v39", "v_add_f32 v40, v40, v41", "v_add_f32 v42, v42, v43",
             "v_add_f32 v36, v36, v38", "v_add_f32 v40, v40, v42", f"v_add_f32 v{src}, v36, v40"])
    A.e(["v_add_f32 v44, v16, v17"] + [f"v_add_f32 v44, v44, v{i}" for i in range(18, 32)])
    reduce(44, 0)
    A.e(["v_mul_f32 v44, 0x3a800000, v44"])
    A.e(["v_sub_f32 v46, v16, v44", "v_mul_f32 v45, v46, v46"])
    for i in range(17, 32):
        A.e([f"v_sub_f32 v46, v{i}, v44", "v_fmac_f32 v45, v46, v46"])
    reduce(45, 256)
    A.e(["v_mul_f32 v45, 0x3a800000, v45",
         "v_cvt_pk_bf16_f32 v45, v45, v44",
         "v_and_b32 v44, 0xffff0000, v45",
         "v_lshlrev_b32 v45, 16, v45",
         "v_add_f32 v45, 0x3727c5ac, v45",
         "v_cvt_pk_bf16_f32 v45, v45, v45", "v_lshlrev_b32 v45, 16, v45",
         "v_sqrt_f32 v45, v45", "s_nop 0",
         "v_cvt_pk_bf16_f32 v45, v45, v45", "v_lshlrev_b32 v45, 16, v45",
         "v_rcp_f32 v45, v45"])
    for i in range(8):
        A.e([f"v_sub_f32 v{16+2*i}, v{16+2*i}, v44", f"v_sub_f32 v{17+2*i}, v{17+2*i}, v44",
             f"v_cvt_pk_bf16_f32 v{8+i}, v{16+2*i}, v{17+2*i}",
             f"v_lshlrev_b32 v{16+2*i}, 16, v{8+i}", f"v_and_b32 v{17+2*i}, 0xffff0000, v{8+i}",
             f"v_mul_f32 v{16+2*i}, v{16+2*i}, v45", f"v_mul_f32 v{17+2*i}, v{17+2*i}, v45",
             f"v_cvt_pk_bf16_f32 v{8+i}, v{16+2*i}, v{17+2*i}"])
    A.e(["buffer_store_dwordx4 v[8:11], v7, s[44:47], s4 offen",
         "buffer_store_dwordx4 v[12:15], v7, s[44:47], s4 offen offset:2048"])
    A.label(f"{name}_end")
    A.e("s_endpgm")
    return (name, 48, 48, "(256,1,1)", "(512,1,1)", 512)
```

```python
from common import *

QSCALE = 0x3e0293ee
import struct, math
QSCALE = struct.unpack("<I", struct.pack("<f", math.log2(math.e) / math.sqrt(128.0)))[0]
THR = 0x49800000

def k1(A, name="k1_kernel", stamps=0, rot=(1, 2), pfk2=1, thr=THR):
    L = lambda s: f"{name}_{s}"
    A.raw(kernel_head(name))
    A.e(["s_cmp_ge_u32 s2, 256", f"s_cbranch_scc1 {L('end')}"])
    if stamps: A.e(["s_memtime s[76:77]", "s_memrealtime s[84:85]"])
    A.e(LOADARGS)
    A.e(["v_lshrrev_b32 v1, 6, v0", "v_and_b32 v0, 63, v0", "s_nop 0", "v_readfirstlane_b32 s3, v1",
         "s_and_b32 s10, s2, 7", "s_lshr_b32 s11, s2, 3", "s_and_b32 s4, s11, 7", "s_lshr_b32 s11, s11, 3",
         "s_lshl_b32 s5, s10, 2", "s_add_u32 s5, s5, s11",
         f"s_mul_i32 s14, s4, {rot[0]}", f"s_mul_i32 s15, s11, {rot[1]}", "s_add_u32 s14, s14, s15",
         "v_lshrrev_b32 v30, 4, v0", "v_and_b32 v31, 15, v0",
         "s_lshr_b32 s12, s3, 1", "s_lshl_b32 s12, s12, 1",
         "v_lshlrev_b32 v1, 2, v30", "v_or_b32 v1, s12, v1", "v_xor_b32 v31, v31, v1",
         "s_lshl_b32 s12, s3, 2", "v_add_u32 v30, s12, v30",
         "v_lshlrev_b32 v2, 13, v30", "s_lshl_b32 s12, s5, 8", "v_lshl_add_u32 v2, v31, 4, v2", "v_add_u32 v2, s12, v2",
         "v_lshrrev_b32 v1, 1, v31", "v_min_u32 v1, 6, v1", "s_and_b32 s13, s5, 1", "v_add_u32 v1, s13, v1",
         "v_cmp_eq_u32 vcc, 7, v1", "v_and_b32 v31, 1, v31", "s_nop 0", "v_cndmask_b32 v1, v1, 0, vcc",
         "v_lshl_or_b32 v1, v1, 1, v31",
         "v_mul_u32_u24 v3, 7168, v30", "s_mul_i32 s12, s5, 224", "v_add_u32 v3, s12, v3", "v_lshl_add_u32 v3, v1, 4, v3",
         "s_lshl_b32 s12, s4, 4", "s_lshl_b32 s13, s3, 2", "s_add_u32 s15, s12, s13",
         "s_lshl_b32 s12, s15, 15", "v_lshlrev_b32 v4, 4, v0", "v_add_u32 v5, s12, v4",
         "v_add_u32 v6, 0x8000, v5", "v_add_u32 v7, 0x10000, v5", "v_add_u32 v8, 0x18000, v5",
         "s_mul_i32 s10, s3, 3072", "s_add_u32 s10, s10, 65536", "s_mov_b32 s11, 0",
         "s_waitcnt lgkmcnt(0)"])
    srd(A, 44, P_WQ, 1024 * 4096 * 2)
    srd(A, 48, P_WG, 1024 * 3584 * 2 + 1024, -1024)
    srd(A, 52, P_WU, 1024 * 3584 * 2 + 2048, -2048)
    srd(A, 40, P_WS, SZ_XF, WS_XF)

    vq = Q("vmcnt", 63); dq = Q("lgkmcnt", 15, 10)
    NB = 22
    def acc(blk, j):
        if blk < 14: return v(32 + (blk * 4 + j) * 4, 4)
        return a(((blk - 14) * 4 + j) * 4, 4)
    Afr = lambda blk, h=None: a(192 + (blk % 11) * 4, 4) if h is None else a(192 + (blk % 11) * 4 + 2 * h, 2)
    Bfr = lambda slot, j: a(128 + slot * 16 + j * 4, 4)
    NEXTK = ["s_add_u32 s12, s11, s14", "s_and_b32 s12, s12, 7", "s_and_b32 s13, s11, 0x18", "s_or_b32 s12, s12, s13",
             "s_add_u32 s11, s11, 1", "s_lshl_b32 s6, s12, 18", "s_mul_i32 s7, s12, 229376", "s_lshl_b32 s8, s12, 10"]
    def d_ops(p, h):
        base = (p % 4) * 24576 + h * 12288
        return [((NEXTK if h == 0 else []) + [f"s_add_u32 m0, s10, {base}"], "buffer_load_dwordx4 v2, s[44:47], s6 offen lds", ("D", p, h), ["s_add_u32 s6, s6, 131072"] if h == 0 else []),
                ([], "buffer_load_dwordx4 v3, s[48:51], s7 offen offset:1024 lds", ("D", p, h), []),
                ([], "buffer_load_dwordx4 v3, s[52:55], s7 offen offset:2048 lds", ("D", p, h), ["s_add_u32 s7, s7, 114688"] if h == 0 else [])]
    def x_ops(p):
        return [([], f"buffer_load_dwordx4 {Bfr(p % 4, j)}, v{5+j}, s[40:43], s8 offen", ("X", p), []) for j in range(4)]
    def rd_ops(t, blk):
        part, cb = (1 + (blk & 1), blk >> 1) if blk < 14 else (0, blk - 14)
        slot = t % 4
        reg = (9 if slot < 2 else 17) + cb
        off = (slot % 2) * 24576 + part * 1024
        return [(f"ds_read_b64_tr_b16 {Afr(blk,0)}, v{reg} offset:{off}", ("A", t, blk)),
                (f"ds_read_b64_tr_b16 {Afr(blk,1)}, v{reg} offset:{off+3072}", ("A", t, blk))]
    def emit_vm(op, E, nop=False):
        pre, ins, tag, post = op
        E(pre)
        if pre and nop: E("s_nop 0")
        E(ins); vq.issue(tag); E(post)
    for op in d_ops(0, 0) + d_ops(0, 1) + x_ops(0): emit_vm(op, A.e, True)
    A.e(["v_lshrrev_b32 v1, 4, v0", "v_mul_u32_u24 v30, 6144, v1", "v_and_b32 v1, 1, v1",
         "v_bfe_u32 v31, v0, 2, 2", "v_lshl_add_u32 v30, v31, 8, v30", "v_lshl_or_b32 v31, v31, 1, v1",
         "v_and_b32 v1, 3, v0", "v_lshl_add_u32 v30, v1, 3, v30", "v_add_u32 v30, 0x10000, v30"])
    for cb in range(8):
        A.e([f"v_xor_b32 v1, {cb}, v31", f"v_lshl_add_u32 v{9+cb}, v1, 5, v30", f"v_add_u32 v{17+cb}, 49152, v{9+cb}"])
    rest = d_ops(1, 0) + d_ops(1, 1) + x_ops(1) + d_ops(2, 0) + d_ops(2, 1) + x_ops(2) + d_ops(3, 0)
    zl = [f"v_accvgpr_write_b32 a{i}, 0" for i in range(128)] + [f"v_mov_b32 v{i}, 0" for i in range(32, 256)]
    for op in rest:
        emit_vm(op, A.e, True)
        A.e(zl[:12]); zl = zl[12:]
    A.e(zl)
    srd(A, 64, P_K, 4 * 2048 * 256)
    srd(A, 68, P_V, 4 * 2048 * 256)
    srd(A, 56, P_WS, SZ_HF, WS_HF)
    srd(A, 60, P_WS, SZ_OF, WS_OF)
    if stamps: srd(A, 72, P_WS, 0x100000, WS_STAMP)
    A.e(["v_lshrrev_b32 v30, 4, v0", "v_and_b32 v31, 15, v0", "v_xor_b32 v1, v31, v30"])
    for i in range(4):
        A.e([f"v_xor_b32 v{25+i}, {4*i}, v1", f"v_lshlrev_b32 v{25+i}, 4, v{25+i}", f"v_lshl_add_u32 v{25+i}, v30, 8, v{25+i}"])
    A.e(["v_lshlrev_b32 v1, 2, v30", "v_xor_b32 v1, v31, v1", "v_lshlrev_b32 v1, 4, v1", "v_lshl_add_u32 v29, v30, 8, v1",
         "s_lshr_b32 s12, s5, 3", "s_lshl_b32 s12, s12, 19", "s_lshl_b32 s92, s3, 12",
         "s_add_u32 s93, s12, s92", f"s_add_u32 s93, s93, {1536*256}",
         "s_mov_b32 s9, 7"])
    def kv_ops(kind, P):
        reg = 0 if kind == "K" else 65536
        sr = "s[64:67]" if kind == "K" else "s[68:71]"
        ops = []
        for i in range(4):
            ops.append(([f"s_add_u32 m0, s92, {reg + (P % 4) * 16384}", f"s_add_u32 s94, s93, {P * 16384}"] if i == 0 else [],
                        f"buffer_load_dwordx4 v{25+i if kind == 'K' else 29}, {sr}, s94 offen offset:{i*1024} lds", (kind, P), []))
        return ops
    A.e(vq.need(("D", 0, 1)))
    A.e("s_barrier")
    for blk in range(11):
        for ins, tag in rd_ops(0, blk): A.e(ins); dq.issue(tag)
    if stamps: A.e(["s_memtime s[78:79]", "s_memrealtime s[88:89]", "s_waitcnt lgkmcnt(0)"]); dq.drain()

    BARM = 47
    def step(t, E, first_ops=None, second_ops=None, last=False):
        v1 = d_ops(t + 3, 1) + x_ops(t + 3) if first_ops is None else first_ops
        v2_ = d_ops(t + 4, 0) if second_ops is None else second_ops
        def spread(n, lo, hi):
            c = [m for m in range(lo, hi) if m % 4 == 2]
            if n == 0: return []
            return [c[(i * len(c)) // n] for i in range(n)]
        sched = list(zip(spread(len(v1), 2, 44), v1)) + list(zip(spread(len(v2_), 54, 88), v2_))
        pend = []; post = []; pre = list(sched[0][1][0]) if sched else []; vi = 0
        for m in range(88):
            blk, j = m // 4, m % 4
            if m == 0: E(vq.need(("X", t)))
            if j == 0: E(dq.need(("A", t, blk)))
            E(mfma16(acc(blk, j), Afr(blk), Bfr(t % 4, j)))
            if m == BARM:
                E(vq.need(("D", t + 1, 1))); E(dq.drain()); E("s_barrier")
            if j == 3:
                if blk < 11: pend += rd_ops(t, blk + 11)
                elif not last: pend += rd_ops(t + 1, blk - 11)
            if vi < len(sched) and m == sched[vi][0]:
                assert not pre, (t, m, pre)
                op = sched[vi][1]
                E(op[1]); vq.issue(op[2]); post += op[3]; vi += 1
                if vi < len(sched): pre = list(sched[vi][1][0])
            else:
                used = 0
                if pend:
                    ins, tag = pend.pop(0); E(ins); dq.issue(tag); used += 1
                while post and used < 2: E(post.pop(0)); used += 1
                while pre and used < 2 and not post and not (sched[vi][0] > BARM and m < BARM - 8): E(pre.pop(0)); used += 1
        for ins, tag in pend: E(ins); dq.issue(tag)
        E(post)
    for t in range(4): step(t, lambda x: None)
    vq.rebase(4); dq.rebase(4)
    A.raw(".p2align 6")
    A.label(L("loop"))
    for t in range(4): step(t, A.e)
    A.e(["s_sub_u32 s9, s9, 1", "s_cmp_lg_u32 s9, 0", f"s_cbranch_scc1 {L('loop')}"])
    vq.rebase(4); dq.rebase(4)
    step(0, A.e, None, kv_ops("K", 0) + kv_ops("K", 1))
    step(1, A.e, kv_ops("K", 2) + kv_ops("K", 3), kv_ops("V", 0) + kv_ops("V", 1))
    step(2, A.e, kv_ops("V", 2), kv_ops("V", 3))
    step(3, A.e, [], [], last=True)
    if stamps: A.e(["s_memtime s[80:81]", "s_memrealtime s[86:87]"])

    A.e(["s_mul_i32 s6, s15, 114688", "s_mul_i32 s12, s5, 7", "s_add_u32 s12, s12, 1", "s_lshr_b32 s12, s12, 1", "s_lshl_b32 s12, s12, 10",
         "s_add_u32 s6, s6, s12",
         "s_and_b32 s13, s5, 1", "s_cmp_eq_u32 s13, 0", "s_mov_b32 s13, 0xfffffc08", "s_cselect_b32 s13, 0xc00, s13",
         "s_add_u32 s7, s6, s13"])
    def hblock(b, j, dst):
        g = 32 + ((2 * b) * 4 + j) * 4; u = g + 16
        out = []
        out += [f"v_mul_f32 v{g+r_}, 0xbfb8aa3b, v{g+r_}" for r_ in range(4)]
        out += [f"v_exp_f32 v{g+r_}, v{g+r_}" for r_ in range(4)]
        out += [f"v_add_f32 v{g+r_}, 1.0, v{g+r_}" for r_ in range(4)]
        out += [f"v_rcp_f32 v{g+r_}, v{g+r_}" for r_ in range(4)]
        out += [f"v_mul_f32 v{g+r_}, v{g+r_}, v{u+r_}" for r_ in range(4)]
        out += [f"v_cvt_pk_bf16_f32 v{dst}, v{g}, v{g+1}", f"v_cvt_pk_bf16_f32 v{dst+1}, v{g+2}, v{g+3}"]
        return out
    for j in range(4):
        for i in range(3):
            dst = 32 + ((4 * i + 1) * 4 + j) * 4
            A.e(hblock(2 * i, j, dst)); A.e(hblock(2 * i + 1, j, dst + 2))
            A.e(f"buffer_store_dwordx4 {v(dst,4)}, v4, s[56:59], s6 offen offset:{i*1024}"); vq.issue(("H", 0))
        dst = 32 + (13 * 4 + j) * 4
        A.e(hblock(6, j, dst))
        A.e(f"buffer_store_dwordx2 {v(dst,2)}, v4, s[56:59], s7 offen"); vq.issue(("H", 0))
        if j < 3: A.e(["s_add_u32 s6, s6, 114688", "s_add_u32 s7, s7, 114688"])
    if stamps: A.e(["s_memtime s[82:83]"])
    QF = lambda mu, t: 32 + (mu * 8 + t) * 4
    SB = lambda b, mu: 96 + (b * 2 + mu) * 16
    NM = lambda mu: 160 + mu * 16
    PB = lambda b, mu: 192 + (b * 2 + mu) * 8
    EB = 224; VL = 232; VTS = 234; VT = 236
    A.e([f"s_mov_b32 s12, {QSCALE:#x}", f"s_mov_b32 s13, {QSCALE:#x}", f"s_mov_b32 s95, {thr:#x}"])
    for t in range(8):
        for mu in range(2):
            tmp = 96 + ((t * 2 + mu) % 4) * 8
            for x in range(2):
                src = (t * 4 + 2 * mu + x) * 4
                A.e([f"v_accvgpr_read_b32 v{tmp+4*x+r_}, a{src+r_}" for r_ in range(4)])
            A.e([f"v_pk_mul_f32 v[{tmp+2*k}:{tmp+2*k+1}], v[{tmp+2*k}:{tmp+2*k+1}], s[12:13]" for k in range(4)])
            q = QF(mu, t)
            A.e([f"v_cvt_pk_bf16_f32 v{q+k}, v{tmp+2*k}, v{tmp+2*k+1}" for k in range(4)])
            if (t * 2 + mu) > 0:
                pq = QF(*prev)
                A.e([f"v_permlane16_swap_b32 v{pq}, v{pq+2}", f"v_permlane16_swap_b32 v{pq+1}, v{pq+3}"])
            prev = (mu, t)
    A.e(["v_and_b32 v30, 31, v0", "v_lshrrev_b32 v31, 5, v0", "v_and_b32 v1, 15, v0", "v_xor_b32 v1, v1, v31",
         "v_lshlrev_b32 v30, 8, v30"])
    pq = QF(*prev)
    A.e([f"v_permlane16_swap_b32 v{pq}, v{pq+2}", f"v_permlane16_swap_b32 v{pq+1}, v{pq+3}"])
    for t in range(8):
        A.e([f"v_xor_b32 v{9+t}, {2*t}, v1", f"v_lshl_add_u32 v{9+t}, v{9+t}, 4, v30"])
    A.e(["v_bfe_u32 v1, v0, 2, 2", "v_lshlrev_b32 v30, 10, v31", "v_lshl_add_u32 v30, v1, 8, v30",
         "v_bfe_u32 v22, v0, 4, 1", "v_lshl_add_u32 v30, v22, 5, v30", "v_and_b32 v23, 3, v0", "v_lshl_add_u32 v30, v23, 3, v30",
         "v_add_u32 v30, 0x10000, v30"])
    for i in range(4):
        A.e([f"v_xor_b32 v23, {i}, v1", f"v_lshl_add_u32 v{17+i}, v23, 6, v30"])
    A.e(["v_lshlrev_b32 v21, 17, v22", "v_lshl_add_u32 v21, v31, 8, v21", "v_and_b32 v1, 15, v0", "v_lshl_add_u32 v21, v1, 4, v21"])
    Kf = lambda t: a(128 + t * 4, 4)
    Vf = lambda i, tp, h=None: a(160 + (i * 2 + tp) * 4, 4) if h is None else a(160 + (i * 2 + tp) * 4 + 2 * h, 2)
    Oacc = lambda i, mu: a((i * 2 + mu) * 16, 16)
    def k_reads(T): return [(f"ds_read_b128 {Kf(t)}, v{9+t} offset:{(T % 8) * 8192}", ("K", T, t)) for t in range(8)]
    def v_reads(T):
        return [(f"ds_read_b64_tr_b16 {Vf(i,tp,h)}, v{17+i} offset:{(T % 8) * 8192 + tp * 4096 + h * 2048}", ("V", T, i, tp))
                for i in range(4) for tp in range(2) for h in range(2)]
    def qk(T, c0):
        return [(mfma32(v(SB(T & 1, mu), 16), Kf(t), v(QF(mu, t), 4), (c0(mu) if t == 0 else None)), ("K", T, t)) for t in range(8) for mu in range(2)]
    def pv(T):
        return [(mfma32(Oacc(i, mu), Vf(i, tp), v(PB(T & 1, mu) + 4 * tp, 4), ("0" if (T == 0 and tp == 0) else None)), ("V", T, i, tp))
                for i in range(4) for tp in range(2) for mu in range(2)]
    A.e(vq.need(("V", 3))); A.e("s_barrier")
    dq.slack = 15
    for ins, tag in k_reads(0): A.e(ins); dq.issue(tag)
    for ins, tag in qk(0, lambda mu: "0"):
        A.e(dq.need(tag)); A.e(ins)
    for ins, tag in k_reads(1): A.e(ins); dq.issue(tag)
    A.e(["v_mov_b32 v232, 0", "v_mov_b32 v233, 0", "s_nop 7"])
    def rowmax(S, dst, tmp):
        out = [f"v_max3_f32 v{dst}, v{S}, v{S+1}, v{S+2}"]
        for k in range(3, 15, 2): out.append(f"v_max3_f32 v{dst}, v{dst}, v{S+k}, v{S+k+1}")
        out += [f"v_max_f32 v{dst}, v{dst}, v{S+15}", f"v_mov_b32 v{tmp}, v{dst}", "s_nop 1",
                f"v_permlane32_swap_b32 v{tmp}, v{dst}", f"v_max_f32 v{dst}, v{dst}, v{tmp}"]
        return out
    for mu in range(2):
        A.e(rowmax(SB(0, mu), VT + mu, VT + 2))
        A.e([f"v_sub_f32 v{NM(mu)+k}, 0, v{VT+mu}" for k in range(16)])
        A.e([f"v_sub_f32 v{SB(0,mu)+k}, v{SB(0,mu)+k}, v{VT+mu}" for k in range(16)])
    def sm(T):
        b = T & 1
        gaps = [[] for _ in range(34)]
        for n in range(32):
            mu, r_ = n // 16, n % 16
            e = EB + n % 8
            gaps[n].insert(0, f"v_exp_f32 v{e}, v{SB(b,mu)+r_}")
            if r_ == 1: gaps[n + 1].append(f"v_add_f32 v{VTS+mu}, v{EB + (n-1) % 8}, v{e}")
            elif r_ > 1: gaps[n + 1].append(f"v_add_f32 v{VTS+mu}, v{VTS+mu}, v{e}")
            if r_ % 2 == 1: gaps[n + 1].append(f"v_cvt_pk_bf16_f32 v{PB(b,mu) + r_//2}, v{EB + (n-1) % 8}, v{e}")
        return gaps
    if stamps: A.e(["s_memtime s[96:97]"])
    rare_sites = []
    for T in range(17):
        mf = (qk(T + 1, lambda mu: v(NM(mu), 16)) if T + 1 <= 15 else []) + (pv(T - 1) if T >= 1 else [])
        nq = 16 if T + 1 <= 15 else 0
        gaps = sm(T) if T <= 15 else [[] for _ in range(34)]
        rdv = v_reads(T - 1) if T >= 1 else []
        rdk = k_reads(T + 2) if T + 2 <= 15 else []
        vm = []
        if T % 2 == 0 and T <= 14:
            w = []
            if T >= 6: w += vq.need(("K", (T + 2) // 2))
            if T >= 8: w += vq.need(("V", T // 2))
            A.e(w[-1:]);
            A.e(dq.drain()); A.e("s_barrier")
            if T <= 6: vm += kv_ops("K", T // 2 + 4)
            if 4 <= T <= 10: vm += kv_ops("V", T // 2 + 2)
        if T == 12 and pfk2:
            vm += [([f"s_mov_b32 s40, s{P_WO}", f"s_and_b32 s41, s{P_WO+1}, 0xffff", f"s_mov_b32 s42, {4096*2048:#x}",
                     "s_lshl_b32 s12, s2, 2", "s_add_u32 s12, s12, s3", "s_lshl_b32 s13, s12, 13", "v_lshlrev_b32 v22, 7, v0"],
                    "buffer_load_dword v23, v22, s[40:43], s13 offen", ("P", 0), []),
                   ([f"s_mov_b32 s44, s{P_WD}", f"s_and_b32 s45, s{P_WD+1}, 0xffff", f"s_mov_b32 s46, {3584*2048:#x}", "s_mul_i32 s13, s12, 7168"],
                    "buffer_load_dword v24, v22, s[44:47], s13 offen", ("P", 0), [])]
        if nq == 0:
            for ins, tag in rdv: A.e(ins); dq.issue(tag)
            rdv = []
        n = len(mf)
        gi = 0
        per = [2, 2] if n == 16 else [1]
        for m, (ins, tag) in enumerate(mf):
            A.e(dq.need(tag)); A.e(ins)
            for _ in range(2 if n == 16 else 1):
                A.e(gaps[gi]); gi += 1
            if m < nq and rdv:
                ri, rt = rdv.pop(0); A.e(ri); dq.issue(rt)
            elif m >= nq and rdk and m >= nq:
                ri, rt = rdk.pop(0); A.e(ri); dq.issue(rt)
            elif vm and m % 1 == 0:
                emit_vm(vm.pop(0), A.e, True)
        for ins, tag in rdk: A.e(ins); dq.issue(tag)
        for op in vm: emit_vm(op, A.e, True)
        for g in gaps[gi:]: A.e(g)
        if T <= 15:
            A.e([f"v_max_f32 v{VT}, v{VTS}, v{VTS+1}", f"v_cmp_nge_f32 vcc, s95, v{VT}", f"s_cbranch_vccnz {L('rs%d' % T)}"])
            A.label(L("rb%d" % T))
            A.e([f"v_add_f32 v{VL}, v{VL}, v{VTS}", f"v_add_f32 v{VL+1}, v{VL+1}, v{VTS+1}"])
            rare_sites.append(T)
    if stamps: A.e(["s_memtime s[98:99]"])
    A.e(["s_lshl_b32 s6, s15, 17", "s_lshl_b32 s12, s5, 12", "s_add_u32 s6, s6, s12", "s_add_u32 s7, s6, 0x40000"])
    for mu in range(2):
        A.e([f"v_mov_b32 v{VT}, v{VL+mu}", "s_nop 1", f"v_permlane32_swap_b32 v{VT}, v{VL+mu}", f"v_add_f32 v{VT}, v{VT}, v{VL+mu}",
             f"v_rcp_f32 v{VT+2+2*mu}, v{VT}", "s_nop 0", f"v_mov_b32 v{VT+3+2*mu}, v{VT+2+2*mu}"])
    A.e("s_nop 4")
    cnt = 0
    for i in range(4):
        for mu in range(2):
            tmp = 96 + (cnt % 4) * 16; dst = 32 + cnt * 8; cnt += 1
            src = (i * 2 + mu) * 16
            A.e([f"v_accvgpr_read_b32 v{tmp+k}, a{src+k}" for k in range(16)])
            A.e([f"v_pk_mul_f32 v[{tmp+2*k}:{tmp+2*k+1}], v[{tmp+2*k}:{tmp+2*k+1}], v[{VT+2+2*mu}:{VT+3+2*mu}]" for k in range(8)])
            for s_ in range(2):
                for jj, j in enumerate((s_, s_ + 2)):
                    A.e([f"v_cvt_pk_bf16_f32 v{dst+4*s_+2*jj}, v{tmp+4*j}, v{tmp+4*j+1}", f"v_cvt_pk_bf16_f32 v{dst+4*s_+2*jj+1}, v{tmp+4*j+2}, v{tmp+4*j+3}"])
                A.e(f"buffer_store_dwordx4 {v(dst+4*s_,4)}, v21, s[60:63], s{6+mu} offen offset:{i*1024+s_*512}")
    if stamps:
        A.e(["s_waitcnt vmcnt(0)", "s_memtime s[12:13]", "s_memrealtime s[90:91]", "s_waitcnt lgkmcnt(0)",
             "s_sub_u32 s78, s78, s76", "s_sub_u32 s80, s80, s76", "s_sub_u32 s86, s86, s84", "s_sub_u32 s87, s88, s84",
             "s_sub_u32 s82, s82, s76", "s_sub_u32 s90, s90, s84", "s_sub_u32 s96, s96, s76", "s_sub_u32 s98, s98, s76", "s_sub_u32 s12, s12, s76",
             "s_lshl_b32 s10, s2, 2", "s_add_u32 s10, s10, s3", "s_lshl_b32 s10, s10, 6",
             "v_mov_b32 v8, s78", "v_mov_b32 v9, s80", "v_mov_b32 v10, s86", "v_mov_b32 v11, s87", "v_mov_b32 v1, s10",
             "v_mov_b32 v12, s82", "v_mov_b32 v13, s96", "v_mov_b32 v14, s98", "v_mov_b32 v15, s12",
             "v_mov_b32 v16, s90", "v_mov_b32 v17, s84",
             "s_mov_b64 exec, 1", "v_add_u32 v1, 0x80000, v1",
             "buffer_store_dwordx4 v[8:11], v1, s[72:75], 0 offen", "buffer_store_dwordx4 v[12:15], v1, s[72:75], 0 offen offset:16",
             "buffer_store_dwordx2 v[16:17], v1, s[72:75], 0 offen offset:32"])
    A.label(L("end"))
    A.e("s_endpgm")
    for T in rare_sites:
        A.label(L("rs%d" % T))
        A.e([f"s_call_b64 s[6:7], {L('rare%d' % (T & 1))}", f"s_branch {L('rb%d' % T)}"])
    for b in range(2):
        A.label(L("rare%d" % b))
        A.e(["s_nop 15", "s_nop 15"])
        for mu in range(2):
            S = SB(b, mu); S2 = SB(b ^ 1, mu)
            A.e(rowmax(S, VT, VT + 2))
            A.e([f"v_max_f32 v{VT}, 0, v{VT}", f"v_exp_f32 v{VT+1}, -v{VT}"])
            A.e([f"v_sub_f32 v{NM(mu)+k}, v{NM(mu)+k}, v{VT}" for k in range(16)])
            A.e([f"v_sub_f32 v{S+k}, v{S+k}, v{VT}" for k in range(16)])
            A.e([f"v_sub_f32 v{S2+k}, v{S2+k}, v{VT}" for k in range(16)])
            A.e(f"v_mul_f32 v{VL+mu}, v{VL+mu}, v{VT+1}")
            for i in range(4):
                o = (i * 2 + mu) * 16
                for k in range(16):
                    A.e([f"v_accvgpr_read_b32 v{VT+2}, a{o+k}", f"v_mul_f32 v{VT+2}, v{VT+2}, v{VT+1}", f"v_accvgpr_write_b32 a{o+k}, v{VT+2}"])
            for k in range(0, 16, 2):
                A.e([f"v_exp_f32 v{EB}, v{S+k}", f"v_exp_f32 v{EB+1}, v{S+k+1}", "s_nop 0",
                     f"v_cvt_pk_bf16_f32 v{PB(b,mu)+k//2}, v{EB}, v{EB+1}", f"v_add_f32 v{EB}, v{EB}, v{EB+1}",
                     f"v_mov_b32 v{VTS+mu}, v{EB}" if k == 0 else f"v_add_f32 v{VTS+mu}, v{VTS+mu}, v{EB}"])
        A.e(["s_nop 3", "s_setpc_b64 s[6:7]"])
    return (name, 512, 256, "(256,1,1)", "(256,1,1)", 163840)
```

```python
from common import *

def k2(A, name="k2_kernel", stamps=0, vpos=(6, 10, 14, 18, 22, 26, 29, 30), barpos=3, half=0, same=0, nopoll=0, nodma=0, nold=0, dfl='', lfl='', mapn=1, pfw=0, pfa=0, pfd=2, rot=(2,1)):
    L = lambda s: f"{name}_{s}"
    A.raw(kernel_head(name))
    A.e(["s_cmp_ge_u32 s2, 256", f"s_cbranch_scc1 {L('end')}"])
    if half: A.e([f"s_cmp_ge_u32 s2, {half}", f"s_cbranch_scc1 {L('end')}"])
    if stamps: A.e(["s_memtime s[76:77]", "s_memrealtime s[84:85]"])
    A.e(LOADARGS)
    A.e(["v_lshrrev_b32 v1, 6, v0", "v_and_b32 v0, 63, v0", "s_nop 0", "v_readfirstlane_b32 s3, v1",
         "s_and_b32 s10, s2, 7", "s_lshr_b32 s11, s2, 3",
         "s_lshr_b32 s4, s10, 2",
         ] + (["s_bfe_u32 s12, s10, 0x10001", "s_lshl_b32 s12, s12, 3", "s_and_b32 s13, s11, 7", "s_add_u32 s5, s12, s13",
         "s_and_b32 s12, s10, 1", "s_lshl_b32 s12, s12, 2", "s_lshr_b32 s13, s11, 3", "s_add_u32 s6, s12, s13"] if mapn == 0 else
         ["s_and_b32 s12, s10, 3", "s_lshl_b32 s12, s12, 2", "s_lshr_b32 s13, s11, 3", "s_add_u32 s5, s12, s13", "s_and_b32 s6, s11, 7"]) + [
         "s_lshr_b32 s7, s3, 1", "s_and_b32 s8, s3, 1",
         "s_cmp_eq_u32 s4, 0",
         "s_lshl_b32 s12, s4, 4", "s_sub_u32 s9, 128, s12", "s_lshl_b32 s42, s9, 17", "s_lshl_b32 s46, s9, 16",
         f"s_mov_b32 s12, {WS_HF:#x}", "s_cmp_eq_u32 s4, 0",
         "s_cselect_b32 s14, 7, 6",
         f"s_cselect_b32 s12, {WS_OF:#x}, s12",
         "s_waitcnt lgkmcnt(0)",
         f"s_cselect_b32 s44, s{P_WO}, s{P_WD}", f"s_cselect_b32 s45, s{P_WO+1}, s{P_WD+1}",
         "s_and_b32 s45, s45, 0xffff", "s_mov_b32 s47, 0x20000",
         f"s_add_u32 s40, s{P_WS}, s12", f"s_addc_u32 s41, s{P_WS+1}, 0", "s_and_b32 s41, s41, 0xffff", "s_mov_b32 s43, 0x20000"])
    if same == 1: A.e(["s_mov_b32 s5, 0", "s_mov_b32 s6, 0"])
    if same >= 10: A.e(["s_mov_b32 s5, 0", f"s_mov_b32 s6, {same-10}"])
    if same == 3: A.e(["s_mov_b32 s5, 0"])
    if same == 2: A.e(["s_and_b32 s5, s5, 1", "s_and_b32 s6, s6, 1"])
    A.e(["v_lshrrev_b32 v30, 4, v0", "v_and_b32 v31, 15, v0",
         "v_lshlrev_b32 v1, 2, v30", "v_xor_b32 v31, v31, v1",
         "s_lshl_b32 s12, s8, 15", "s_lshl_b32 s13, s6, 8", "s_add_u32 s12, s12, s13",
         "v_lshlrev_b32 v30, 11, v30", "v_add_u32 v30, s12, v30",
         "v_lshl_add_u32 v2, v31, 4, v30",
         "v_xor_b32 v31, 2, v31", "v_lshl_add_u32 v3, v31, 4, v30", "v_add_u32 v3, 7168, v3",
         "v_add_u32 v4, 14336, v2", "v_add_u32 v5, 14336, v3",
         "s_mul_i32 s15, s7, s9", "s_lshl_b32 s11, s15, 9", "s_lshl_b32 s15, s15, 15",
         "s_lshl_b32 s10, s7, 16", "s_lshl_b32 s12, s8, 12", "s_add_u32 s10, s10, s12",
         "s_lshl_b32 s12, s5, 3", "s_lshl_b32 s13, s8, 2", "s_add_u32 s12, s12, s13", "s_lshl_b32 s13, s7, 1",
         "s_lshl_b32 s48, s9, 10", "v_lshlrev_b32 v1, 4, v0"])
    for jj in range(4):
        A.e([f"s_xor_b32 s49, s13, {jj}", "s_add_u32 s49, s49, s12", "s_mul_i32 s49, s49, s48", f"v_add_u32 v{6+jj}, s49, v1"])

    A.e(["s_lshr_b32 s49, s2, 3", "s_lshl_b32 s49, s49, 1", "s_add_u32 s49, s49, s8", "s_lshl_b32 s49, s49, 13",
         "v_lshrrev_b32 v30, 4, v0", "v_lshlrev_b32 v30, 11, v30", "v_and_b32 v31, 15, v0", "v_lshl_add_u32 v30, v31, 7, v30",
         "v_add_u32 v26, s49, v30",
         "s_lshl_b32 s49, s5, 3", "s_add_u32 s49, s49, s6", "s_mul_i32 s49, s49, s48", "s_lshl_b32 s12, s8, 12", "s_add_u32 s49, s49, s12",
         "v_lshlrev_b32 v30, 6, v0", "v_add_u32 v27, s49, v30",
         "s_add_u32 s68, s15, 0x80000", "s_add_u32 s69, s11, 0x2000"])
    def pf_ops():
        ops = []
        if pfw: ops.append(([], "buffer_load_dword v28, v26, s[44:47], s68 offen", ("P", 0), ["s_add_u32 s68, s68, 0x80000"]))
        if pfa: ops.append(([], "buffer_load_dword v29, v27, s[40:43], s69 offen", ("P", 0), ["s_add_u32 s69, s69, 0x2000"]))
        return ops
    A.e([f"s_mul_i32 s12, s5, {rot[0]}", f"s_mul_i32 s13, s6, {rot[1]}", "s_add_u32 s12, s12, s13",
         "s_mov_b32 s70, s15", "s_mov_b32 s71, s11"])
    for i in range(8):
        A.e([f"s_add_u32 s13, s12, {i}", "s_and_b32 s13, s13, 7", f"s_lshl_b32 s{92+i}, s13, 10"])
    vq = Q("vmcnt", 63); dq = Q("lgkmcnt", 15, 8)
    acc = lambda cb, jj: v(32 + (cb * 4 + jj) * 4, 4)
    Afr = lambda cb, h=None: a(128 + cb * 4, 4) if h is None else a(128 + cb * 4 + 2 * h, 2)
    Bfr = lambda slot, jj: a(slot * 16 + jj * 4, 4)
    def vm_ops(t):
        slot = t % 8
        ops = []
        for i in range(4):
            ops.append(([f"s_add_u32 m0, s10, {slot*8192}", f"s_lshl_b32 s15, s{92+slot}, 6", "s_add_u32 s15, s15, s70"] if i == 0 else [],
                        f"buffer_load_dwordx4 v{2+i}, s[44:47], s15 offen offset:{i*1024} {dfl} lds", ("D", t),
                        ["s_add_u32 s70, s70, 0x80000"] if (i == 3 and slot == 7) else []))
        for jj in range(4):
            ops.append(([f"s_add_u32 s11, s{92+slot}, s71"] if jj == 0 else [],
                        f"buffer_load_dwordx4 {Bfr(slot,jj)}, v{6+jj}, s[40:43], s11 offen {lfl}", ("X", t),
                        ["s_add_u32 s71, s71, 0x2000"] if (jj == 3 and slot == 7) else []))
        return ops
    def rd_ops(t, cb):
        off = (t % 8) * 8192
        return [(f"ds_read_b64_tr_b16 {Afr(cb,0)}, v{10+cb} offset:{off}", ("A", t, cb)),
                (f"ds_read_b64_tr_b16 {Afr(cb,1)}, v{10+cb} offset:{off+4096}", ("A", t, cb))]
    def emit_vm(op, E, nop=False):
        pre, ins, tag, post = op
        E(pre)
        if pre and nop: E("s_nop 0")
        E(ins); vq.issue(tag); E(post)
    for t in range(2):
        for op in vm_ops(t): emit_vm(op, A.e, True)
    A.e(["v_lshrrev_b32 v1, 4, v0", "v_lshlrev_b32 v30, 10, v1", "v_and_b32 v1, 1, v1",
         "v_bfe_u32 v31, v0, 2, 2", "v_lshl_add_u32 v30, v31, 8, v30", "v_lshl_or_b32 v31, v31, 1, v1",
         "v_and_b32 v1, 3, v0", "v_lshl_add_u32 v30, v1, 3, v30", "s_lshl_b32 s12, s7, 16", "v_add_u32 v30, s12, v30"])
    for cb in range(8):
        A.e([f"v_xor_b32 v1, {cb}, v31", f"v_lshl_add_u32 v{10+cb}, v1, 5, v30"])
    rest = [op for d in range(pfd - 1) for op in pf_ops()] + [op for t in range(2, 7) for op in vm_ops(t)]
    zi = 32
    for op in rest:
        emit_vm(op, A.e, True)
        for _ in range(3):
            if zi < 160: A.e(f"v_mov_b32 v{zi}, 0"); zi += 1
    while zi < 160: A.e(f"v_mov_b32 v{zi}, 0"); zi += 1
    srd(A, 52, P_WS, SZ_GF, WS_GF)
    srd(A, 56, P_WS, SZ_FLAG, WS_FLAG)
    srd(A, 60, P_X, 2048 * 2048)
    srd(A, 64, P_OUT, 2048 * 2048)
    if stamps: srd(A, 72, P_WS, 0x100000, WS_STAMP)
    A.e(["s_lshl_b32 s48, s5, 3", "s_add_u32 s48, s48, s6",
         "s_lshl_b32 s49, s48, 2", "s_add_u32 s49, s49, s3", "s_lshl_b32 s49, s49, 13",
         "s_lshl_b32 s50, s48, 7", "s_lshl_b32 s12, s3, 5", "s_add_u32 s50, s50, s12",
         "s_lshl_b32 s51, s5, 7", "s_lshl_b32 s12, s8, 6", "s_add_u32 s51, s51, s12", "s_lshl_b32 s12, s7, 5", "s_add_u32 s51, s51, s12",
         "s_lshl_b32 s51, s51, 11", "s_lshl_b32 s12, s6, 8", "s_add_u32 s51, s51, s12",
         "v_and_b32 v1, 15, v0", "v_lshlrev_b32 v1, 11, v1", "v_lshrrev_b32 v30, 4, v0",
         "v_lshl_add_u32 v18, v30, 3, v1", "v_add_u32 v19, 0x8000, v18",
         "v_lshl_add_u32 v20, v30, 4, v1", "v_add_u32 v21, 0x8000, v20",
         "v_lshlrev_b32 v22, 4, v0",
         "s_lshl_b32 s12, s3, 14", "v_add_u32 v23, s12, v22",
         "s_xor_b32 s12, s12, 0x8000", "v_add_u32 v24, s12, v22",
         "v_mov_b32 v25, 0"])
    A.e(vq.need(("D", 1)))
    A.e("s_barrier")
    for cb in range(8):
        for ins, tag in rd_ops(0, cb): A.e(ins); dq.issue(tag)
    if stamps: A.e(["s_memtime s[78:79]", "s_memrealtime s[88:89]", "s_waitcnt lgkmcnt(0)"]); dq.drain()

    def step(t, E, last=False, extra=None):
        vops = vm_ops(t + 7) if (not last or t % 8 == 0) else []
        if nodma: vops = [o for o in vops if o[2][0] != "D"]
        if nold: vops = [o for o in vops if o[2][0] != "X"]
        if extra: vops = vops + extra
        isbar = (t % 2 == 1)
        doread = not (last and t % 8 == 7)
        pend = []; vi = 0; post = []; pf = pf_ops(); pre = list(vops[0][0]) if vops else []
        for m in range(32):
            cb, jj = m // 4, m % 4
            if m == 0: E(vq.need(("X", t)))
            if jj == 0: E(dq.need(("A", t, cb)))
            E(mfma16(acc(cb, jj), Afr(cb), Bfr(t % 8, jj)))
            if isbar and m == barpos:
                E(vq.need(("D", t + 2))); E(dq.drain()); E("s_barrier")
            if jj == 3 and doread: pend += rd_ops(t + 1, cb)
            if pf and m in (1, 2) and not last and t % 8 == 0:
                op = pf.pop(0); E(op[1]); vq.issue(op[2]); post += op[3]
            place = vi < len(vops) and m == vpos[vi]
            nextplace = vi < len(vops) and m + 1 == vpos[vi]
            if place:
                assert not pre
                E(vops[vi][1]); vq.issue(vops[vi][2]); post += vops[vi][3]; vi += 1
                if vi < len(vops): pre = list(vops[vi][0])
            else:
                used = 0
                if not (isbar and m < barpos) and pend:
                    ins, tag = pend.pop(0); E(ins); dq.issue(tag); used += 1
                while pre and used < 2 and (vi < len(vops)): E(pre.pop(0)); used += 1
                if post and used < 2: E(post.pop(0))
        for ins, tag in pend: E(ins); dq.issue(tag)
        E(post)
    for t in range(8): step(t, lambda x: None)
    vq.rebase(8); dq.rebase(8)
    A.raw(".p2align 6")
    A.label(L("loop"))
    for t in range(8): step(t, A.e)
    A.e(["s_sub_u32 s14, s14, 1", "s_cmp_lg_u32 s14, 0", f"s_cbranch_scc1 {L('loop')}"])
    vq.rebase(8); dq.rebase(8)
    xr = lambda cb, jj: v(160 + (cb * 2 + jj) * 2, 2)
    xops = [([], f"buffer_load_dwordx2 {xr(cb,jj)}, v{18+jj}, s[60:63], s51 offen offset:{cb*32}", ("R", 0), []) for cb in range(8) for jj in range(2)]
    for t in range(8):
        step(t, A.e, last=True, extra=xops[:8] if t == 2 else xops[8:] if t == 3 else None)
    if stamps: A.e(["s_memtime s[80:81]", "s_memrealtime s[86:87]"])
    A.e("s_nop 7")
    for cb in range(8):
        for jj in (2, 3):
            A.e(f"ds_write_b128 v23, {acc(cb,jj)} offset:{(cb*2+jj-2)*1024}")
    A.e(["s_waitcnt lgkmcnt(0)", "s_barrier"])
    pr = lambda cb, jj: v(192 + (cb * 2 + jj) * 4, 4)
    for cb in range(8):
        for jj in range(2):
            A.e(f"ds_read_b128 {pr(cb,jj)}, v24 offset:{(cb*2+jj)*1024}")
    A.e(["s_cmp_eq_u32 s4, 0", f"s_cbranch_scc1 {L('sepi')}"])
    A.e("s_waitcnt vmcnt(0)")
    for jj in range(2):
        for i in range(4):
            dst = 160 + (jj * 4 + i) * 4
            for h in range(2):
                cb = 2 * i + h
                A.e(f"s_waitcnt lgkmcnt({15 - (cb*2+jj)})" if (cb * 2 + jj) < 15 else "s_waitcnt lgkmcnt(0)")
                b = 32 + (cb * 4 + jj) * 4; p = 192 + (cb * 2 + jj) * 4
                for r_ in range(4): A.e(f"v_add_f32 v{b+r_}, v{b+r_}, v{p+r_}")
                for r_ in range(4): A.e(f"v_mul_f32 v{p+r_}, 0xbfb8aa3b, v{b+r_}")
                for r_ in range(4): A.e(f"v_exp_f32 v{p+r_}, v{p+r_}")
                for r_ in range(4): A.e(f"v_add_f32 v{p+r_}, 1.0, v{p+r_}")
                for r_ in range(4): A.e(f"v_rcp_f32 v{p+r_}, v{p+r_}")
                for r_ in range(4): A.e(f"v_mul_f32 v{b+r_}, v{b+r_}, v{p+r_}")
                A.e([f"v_cvt_pk_bf16_f32 v{dst+2*h}, v{b}, v{b+1}", f"v_cvt_pk_bf16_f32 v{dst+2*h+1}, v{b+2}, v{b+3}"])
            A.e(f"buffer_store_dwordx4 {v(dst,4)}, v22, s[52:55], s49 offen offset:{((jj*4+i)%4)*1024} sc0 sc1")
            if i == 3: A.e("s_add_u32 s49, s49, 4096")
    A.e(["s_waitcnt vmcnt(0)", "v_mov_b32 v26, 1", "s_mov_b64 exec, 1",
         "buffer_store_dword v26, v25, s[56:59], s50 offen sc0 sc1", "s_mov_b64 exec, -1", f"s_branch {L('fin')}"])
    A.label(L("sepi"))
    A.label(L("poll"))
    A.e(["buffer_load_dword v26, v25, s[56:59], s50 offen sc0 sc1", "s_waitcnt vmcnt(0)",
         "v_readfirstlane_b32 s12, v26", "s_cmp_eq_u32 s12, 1", f"s_cbranch_scc1 {L('got')}"] + ([] if nopoll else ["s_sleep 2", f"s_branch {L('poll')}"]))
    A.label(L("got"))
    gr = lambda jj, i: 40 + ((2 * i) * 4) * 4 + jj * 4
    gb = lambda jj, i: 32 + ((jj * 4 + i) * 4 + 2) * 4
    for jj in range(2):
        for i in range(4):
            A.e(f"buffer_load_dwordx4 {v(gb(jj,i),4)}, v22, s[52:55], s49 offen offset:{i*1024} sc0 sc1")
        A.e("s_add_u32 s49, s49, 4096")
    A.e("s_waitcnt lgkmcnt(0)")
    for cb in range(8):
        for jj in range(2):
            b = 32 + (cb * 4 + jj) * 4; p = 192 + (cb * 2 + jj) * 4; x = 160 + (cb * 2 + jj) * 2
            for r_ in range(4): A.e(f"v_add_f32 v{b+r_}, v{b+r_}, v{p+r_}")
            A.e([f"v_lshlrev_b32 v{p}, 16, v{x}", f"v_and_b32 v{p+1}, 0xffff0000, v{x}",
                 f"v_lshlrev_b32 v{p+2}, 16, v{x+1}", f"v_and_b32 v{p+3}, 0xffff0000, v{x+1}"])
    for jj in range(2):
        for i in range(4):
            idx = jj * 4 + i
            A.e(f"s_waitcnt vmcnt({7 - idx + idx})" if False else f"s_waitcnt vmcnt(7)")
            g = gb(jj, i); o = g + 4
            for h in range(2):
                cb = 2 * i + h
                b = 32 + (cb * 4 + jj) * 4; p = 192 + (cb * 2 + jj) * 4
                A.e([f"v_lshlrev_b32 v26, 16, v{g+2*h}", f"v_and_b32 v27, 0xffff0000, v{g+2*h}",
                     f"v_lshlrev_b32 v28, 16, v{g+2*h+1}", f"v_and_b32 v29, 0xffff0000, v{g+2*h+1}"])
                for r_ in range(4): A.e(f"v_fmac_f32 v{p+r_}, v{b+r_}, v{26+r_}")
                A.e([f"v_cvt_pk_bf16_f32 v{o+2*h}, v{p}, v{p+1}", f"v_cvt_pk_bf16_f32 v{o+2*h+1}, v{p+2}, v{p+3}"])
            A.e(["s_nop 1", f"v_permlane32_swap_b32 v{o}, v{o+2}", f"v_permlane32_swap_b32 v{o+1}, v{o+3}", "s_nop 0",
                 f"v_permlane16_swap_b32 v{o}, v{o+2}", f"v_permlane16_swap_b32 v{o+1}, v{o+3}",
                 f"buffer_store_dwordx4 {v(o,4)}, v{20+jj}, s[64:67], s51 offen offset:{i*64}"])
    A.label(L("fin"))
    if stamps:
        A.e(["s_waitcnt vmcnt(0)", "s_memtime s[82:83]", "s_memrealtime s[90:91]", "s_waitcnt lgkmcnt(0)",
             "s_sub_u32 s78, s78, s76", "s_sub_u32 s80, s80, s76", "s_sub_u32 s86, s86, s84", "s_sub_u32 s87, s88, s84",
             "s_sub_u32 s82, s82, s76", "s_sub_u32 s90, s90, s84",
             "s_lshl_b32 s10, s2, 2", "s_add_u32 s10, s10, s3", "s_lshl_b32 s10, s10, 5",
             "v_mov_b32 v8, s78", "v_mov_b32 v9, s80", "v_mov_b32 v10, s86", "v_mov_b32 v11, s87", "v_mov_b32 v1, s10",
             "v_mov_b32 v12, s82", "v_mov_b32 v13, s90", "v_mov_b32 v14, s4", "v_mov_b32 v15, s84",
             "s_mov_b64 exec, 1",
             "buffer_store_dwordx4 v[8:11], v1, s[72:75], 0 offen", "buffer_store_dwordx4 v[12:15], v1, s[72:75], 0 offen offset:16"])
    A.label(L("end"))
    A.e("s_endpgm")
    return (name, 256 + 160, 256, "(256,1,1)", "(256,1,1)", 131072)
```

```python
import sys
from common import *
from k0 import k0
from k2 import k2
HDR = open("recurrent_scan__sliding_block_cached__glu_gated_glu__prompt.s.ref").read().split("; Override launch")[0]
def build(kernels):
    B = Asm(); infos = []
    for fn, kw in kernels: infos.append(fn(B, **kw))
    out = HDR
    for (name, vg, acc, grid, block, lds) in infos:
        out += f"; @launch kernel={name} grid={grid} block={block} lds={lds}\n"
    out += '.amdgcn_target "amdgcn-amd-amdhsa--gfx950"\n.text\n' + B.text()
    for (name, vg, acc, grid, block, lds) in infos:
        out += kernel_desc(name, vg, acc)
    return out
if __name__ == "__main__":
    which = sys.argv[2]
    kw = {}
    for x in sys.argv[3:]:
        k, val = x.split("="); kw[k] = eval(val)
    ks = []
    for c in which.split(","):
        if c == "0": ks.append((k0, {}))
        if c == "2": ks.append((k2, {k[3:]: v_ for k, v_ in kw.items() if k.startswith("k2_")}))
        if c == "1":
            from k1 import k1
            ks.append((k1, {k[3:]: v_ for k, v_ in kw.items() if k.startswith("k1_")}))
    open(sys.argv[1], "w").write(build(ks))
```

```python
import sys
from common import *
from k0 import k0
from k2 import k2
HDR = open("recurrent_scan__sliding_block_cached__glu_gated_glu__prompt.s.ref").read().split("; Override launch")[0]
def kempty(A, name):
    A.raw(kernel_head(name)); A.e("s_endpgm")
    return (name, 8, 8, "(256,1,1)", "(256,1,1)", 0)
def build(kernels):
    B = Asm(); infos = []
    for fn, kw in kernels: infos.append(fn(B, **kw))
    out = HDR
    for (name, vg, acc, grid, block, lds) in infos:
        out += f"; @launch kernel={name} grid={grid} block={block} lds={lds}\n"
    out += '.amdgcn_target "amdgcn-amd-amdhsa--gfx950"\n.text\n' + B.text()
    for (name, vg, acc, grid, block, lds) in infos:
        out += kernel_desc(name, vg, acc)
    return out
if __name__ == "__main__":
    which = sys.argv[2]
    kw = {}
    for x in sys.argv[3:]:
        k, val = x.split("="); kw[k] = eval(val)
    ks = []
    for c in which.split(","):
        if c == "0": ks.append((k0, {}))
        if c[0] == "e": ks.append((kempty, {"name": c + "_kernel"}))
        if c == "2": ks.append((k2, {k[3:]: v_ for k, v_ in kw.items() if k.startswith("k2_")}))
        if c == "1":
            from k1 import k1
            ks.append((k1, {k[3:]: v_ for k, v_ in kw.items() if k.startswith("k1_")}))
    open(sys.argv[1], "w").write(build(ks))
```

```python
from common import *

def k0(A, name="k0_kernel", cpf=None):
    A.raw(kernel_head(name))
    A.e(["s_cmp_ge_u32 s2, 256", f"s_cbranch_scc1 {name}_end",
         "s_load_dwordx2 s[16:17], s[0:1], 0", "s_load_dwordx2 s[38:39], s[0:1], 88",
         "v_and_b32 v1, 7, v0",
         "v_lshrrev_b32 v2, 3, v0",
         "v_and_b32 v3, 7, v2",
         "v_lshrrev_b32 v4, 6, v0",
         "v_lshl_add_u32 v5, v4, 4, v3",
         "s_lshl_b32 s3, s2, 14",
         "v_lshlrev_b32 v6, 11, v1",
         "v_lshl_add_u32 v6, v5, 4, v6",
         "s_waitcnt lgkmcnt(0)"])
    srd(A, 40, 16, 2048 * 1024 * 2)
    A.e(["buffer_load_dwordx4 v[8:11], v6, s[40:43], s3 offen",
         "buffer_load_dwordx4 v[12:15], v6, s[40:43], s3 offen offset:128"])
    if cpf:
        A.e(["s_getpc_b64 s[20:21]"]); A.label(f"{name}_pc")
        A.e([f"s_add_u32 s20, s20, {cpf}-{name}_pc", "s_addc_u32 s21, s21, 0",
             "s_lshr_b32 s7, s2, 3", "s_lshl_b32 s7, s7, 11", "v_and_b32 v36, 15, v0", "v_lshlrev_b32 v36, 7, v36", "v_add_u32 v36, s7, v36",
             f"v_cmp_gt_u32 vcc, {cpf}_codeend-{cpf}-4, v36", "v_cmp_gt_u32 s[22:23], 16, v0", "s_and_b64 vcc, vcc, s[22:23]",
             "s_and_saveexec_b64 s[8:9], vcc", f"s_cbranch_execz {name}_npf",
             "global_load_dword v37, v36, s[20:21]"])
        A.label(f"{name}_npf")
        A.e("s_mov_b64 exec, s[8:9]")
    srd(A, 44, 38, SZ_XF, WS_XF)
    srd(A, 48, 38, SZ_FLAG, WS_FLAG)
    A.e(["s_lshr_b32 s4, s2, 1", "s_lshl_b32 s4, s4, 15",
         "s_and_b32 s5, s2, 1", "s_lshl_b32 s5, s5, 7",
         "s_add_u32 s4, s4, s5",
         "v_lshlrev_b32 v7, 8, v5", "v_lshl_add_u32 v7, v1, 4, v7",
         "v_lshlrev_b32 v32, 5, v1", "v_lshl_add_u32 v33, v4, 2, v32",
         "s_lshl_b32 s6, s2, 7", "v_mov_b32 v34, 0", "v_lshlrev_b32 v35, 2, v0",
         "v_cmp_gt_u32 vcc, 32, v0", "s_and_saveexec_b64 s[8:9], vcc", f"s_cbranch_execz {name}_nf",
         "buffer_store_dword v34, v35, s[48:51], s6 offen"])
    A.label(f"{name}_nf")
    A.e(["s_mov_b64 exec, s[8:9]", "s_waitcnt vmcnt(1)" ])
    A.lines[-1] = "    s_waitcnt vmcnt(0)"
    for i in range(8):
        A.e([f"v_lshlrev_b32 v{16+2*i}, 16, v{8+i}", f"v_and_b32 v{17+2*i}, 0xffff0000, v{8+i}"])
    def reduce(src, ldsoff):
        A.e(["s_nop 1",
             f"v_add_f32_dpp v{src}, v{src}, v{src} row_ror:8 row_mask:0xf bank_mask:0xf",
             f"v_mov_b32 v35, v{src}", "s_nop 1", f"v_permlane16_swap_b32 v35, v{src}", f"v_add_f32 v{src}, v35, v{src}",
             f"v_mov_b32 v35, v{src}", "s_nop 1", f"v_permlane32_swap_b32 v35, v{src}", f"v_add_f32 v{src}, v35, v{src}",
             f"ds_write_b32 v33, v{src} offset:{ldsoff}",
             "s_waitcnt lgkmcnt(0)", "s_barrier",
             f"ds_read_b128 v[36:39], v32 offset:{ldsoff}", f"ds_read_b128 v[40:43], v32 offset:{ldsoff+16}",
             "s_waitcnt lgkmcnt(0)",
             "v_add_f32 v36, v36, v37", "v_add_f32 v38, v38, v39", "v_add_f32 v40, v40, v41", "v_add_f32 v42, v42, v43",
             "v_add_f32 v36, v36, v38", "v_add_f32 v40, v40, v42", f"v_add_f32 v{src}, v36, v40"])
    A.e(["v_add_f32 v44, v16, v17"] + [f"v_add_f32 v44, v44, v{i}" for i in range(18, 32)])
    reduce(44, 0)
    A.e(["v_mul_f32 v44, 0x3a800000, v44"])
    A.e(["v_sub_f32 v46, v16, v44", "v_mul_f32 v45, v46, v46"])
    for i in range(17, 32):
        A.e([f"v_sub_f32 v46, v{i}, v44", "v_fmac_f32 v45, v46, v46"])
    reduce(45, 256)
    A.e(["v_mul_f32 v45, 0x3a800000, v45",
         "v_cvt_pk_bf16_f32 v45, v45, v44",
         "v_and_b32 v44, 0xffff0000, v45",
         "v_lshlrev_b32 v45, 16, v45",
         "v_add_f32 v45, 0x3727c5ac, v45",
         "v_cvt_pk_bf16_f32 v45, v45, v45", "v_lshlrev_b32 v45, 16, v45",
         "v_sqrt_f32 v45, v45", "s_nop 0",
         "v_cvt_pk_bf16_f32 v45, v45, v45", "v_lshlrev_b32 v45, 16, v45",
         "v_rcp_f32 v45, v45"])
    for i in range(8):
        A.e([f"v_sub_f32 v{16+2*i}, v{16+2*i}, v44", f"v_sub_f32 v{17+2*i}, v{17+2*i}, v44",
             f"v_cvt_pk_bf16_f32 v{8+i}, v{16+2*i}, v{17+2*i}",
             f"v_lshlrev_b32 v{16+2*i}, 16, v{8+i}", f"v_and_b32 v{17+2*i}, 0xffff0000, v{8+i}",
             f"v_mul_f32 v{16+2*i}, v{16+2*i}, v45", f"v_mul_f32 v{17+2*i}, v{17+2*i}, v45",
             f"v_cvt_pk_bf16_f32 v{8+i}, v{16+2*i}, v{17+2*i}"])
    A.e(["buffer_store_dwordx4 v[8:11], v7, s[44:47], s4 offen",
         "buffer_store_dwordx4 v[12:15], v7, s[44:47], s4 offen offset:2048"])
    A.label(f"{name}_end")
    A.e("s_endpgm")
    return (name, 48, 48, "(256,1,1)", "(512,1,1)", 512)
```

```python
from common import *
import struct, math
QSCALE = struct.unpack("<I", struct.pack("<f", math.log2(math.e) / math.sqrt(128.0)))[0]
THR = 0x49800000
FL_H, FL_O, FL_SZ = 0x4000, 0x4400, 0x4800
WT = "sc0 sc1"

def kf(A, name="kf_kernel", stamps=0, thr=THR, vpos=(6, 10, 14, 18, 22, 26, 29, 30), barpos=3, apol=WT, pfT=0, pfG=1, cpf=1, hwb=0, cap=24, dsl=6):
    L = lambda s: f"{name}_{s}"
    vq = Q("vmcnt", 63); dq = Q("lgkmcnt", 15, 10)
    def stamp(i):
        if not stamps: return
        A.e(["s_memtime s[76:77]", "s_memrealtime s[78:79]", "s_waitcnt lgkmcnt(0)", "v_mov_b32 v30, s76", f"v_accvgpr_write_b32 a{240+2*i}, v30",
             "v_mov_b32 v30, s78", f"v_accvgpr_write_b32 a{241+2*i}, v30"]); dq.drain()
    A.raw(kernel_head(name))
    A.e(["s_cmp_ge_u32 s2, 256", f"s_cbranch_scc1 {L('end')}"])
    stamp(0)
    A.e(LOADARGS)
    A.e(["v_lshrrev_b32 v1, 6, v0", "v_and_b32 v0, 63, v0", "s_nop 0", "v_readfirstlane_b32 s3, v1",
         "s_and_b32 s10, s2, 7", "s_lshr_b32 s11, s2, 3", "s_and_b32 s4, s11, 7", "s_lshr_b32 s11, s11, 3",
         "s_lshl_b32 s5, s10, 2", "s_add_u32 s5, s5, s11",
         "s_lshl_b32 s14, s11, 1", "s_add_u32 s14, s14, s4",
         "v_lshrrev_b32 v30, 4, v0", "v_and_b32 v31, 15, v0",
         "s_lshr_b32 s12, s3, 1", "s_lshl_b32 s12, s12, 1",
         "v_lshlrev_b32 v1, 2, v30", "v_or_b32 v1, s12, v1", "v_xor_b32 v31, v31, v1",
         "s_lshl_b32 s12, s3, 2", "v_add_u32 v30, s12, v30",
         "v_lshlrev_b32 v2, 13, v30", "s_lshl_b32 s12, s5, 8", "v_lshl_add_u32 v2, v31, 4, v2", "v_add_u32 v2, s12, v2",
         "v_lshrrev_b32 v1, 1, v31", "v_min_u32 v1, 6, v1", "s_and_b32 s13, s5, 1", "v_add_u32 v1, s13, v1",
         "v_cmp_eq_u32 vcc, 7, v1", "v_and_b32 v31, 1, v31", "s_nop 0", "v_cndmask_b32 v1, v1, 0, vcc",
         "v_lshl_or_b32 v1, v1, 1, v31",
         "v_mul_u32_u24 v3, 7168, v30", "s_mul_i32 s12, s5, 224", "v_add_u32 v3, s12, v3", "v_lshl_add_u32 v3, v1, 4, v3",
         "s_lshl_b32 s12, s4, 4", "s_lshl_b32 s13, s3, 2", "s_add_u32 s15, s12, s13",
         "s_lshl_b32 s12, s15, 15", "v_lshlrev_b32 v4, 4, v0", "v_add_u32 v5, s12, v4",
         "v_add_u32 v6, 0x8000, v5", "v_add_u32 v7, 0x10000, v5", "v_add_u32 v8, 0x18000, v5",
         "s_mul_i32 s10, s3, 3072", "s_add_u32 s10, s10, 65536", "s_mov_b32 s11, 0",
         "s_waitcnt lgkmcnt(0)"])
    srd(A, 44, P_WQ, 1024 * 4096 * 2)
    srd(A, 48, P_WG, 1024 * 3584 * 2 + 1024, -1024)
    srd(A, 52, P_WU, 1024 * 3584 * 2 + 2048, -2048)
    srd(A, 40, P_WS, SZ_XF, WS_XF)

    def acc(blk, j):
        if blk < 14: return v(32 + (blk * 4 + j) * 4, 4)
        return a(((blk - 14) * 4 + j) * 4, 4)
    Afr = lambda blk, h=None: a(192 + (blk % 11) * 4, 4) if h is None else a(192 + (blk % 11) * 4 + 2 * h, 2)
    Bfr = lambda slot, j: a(128 + slot * 16 + j * 4, 4)
    NEXTK = ["s_add_u32 s12, s11, s14", "s_and_b32 s12, s12, 7", "s_and_b32 s13, s11, 0x18", "s_or_b32 s12, s12, s13",
             "s_add_u32 s11, s11, 1", "s_lshl_b32 s6, s12, 18", "s_mul_i32 s7, s12, 229376", "s_lshl_b32 s8, s12, 10"]
    def d_ops(p, h):
        base = (p % 4) * 24576 + h * 12288
        return [((NEXTK if h == 0 else []) + [f"s_add_u32 m0, s10, {base}"], "buffer_load_dwordx4 v2, s[44:47], s6 offen lds", ("D", p, h), ["s_add_u32 s6, s6, 131072"] if h == 0 else []),
                ([], "buffer_load_dwordx4 v3, s[48:51], s7 offen offset:1024 lds", ("D", p, h), []),
                ([], "buffer_load_dwordx4 v3, s[52:55], s7 offen offset:2048 lds", ("D", p, h), ["s_add_u32 s7, s7, 114688"] if h == 0 else [])]
    def x_ops(p):
        return [([], f"buffer_load_dwordx4 {Bfr(p % 4, j)}, v{5+j}, s[40:43], s8 offen", ("X", p), []) for j in range(4)]
    def rd_ops(t, blk):
        part, cb = (1 + (blk & 1), blk >> 1) if blk < 14 else (0, blk - 14)
        slot = t % 4
        reg = (9 if slot < 2 else 17) + cb
        off = (slot % 2) * 24576 + part * 1024
        return [(f"ds_read_b64_tr_b16 {Afr(blk,0)}, v{reg} offset:{off}", ("A", t, blk)),
                (f"ds_read_b64_tr_b16 {Afr(blk,1)}, v{reg} offset:{off+3072}", ("A", t, blk))]
    def emit_vm(op, E, nop=False):
        pre, ins, tag, post = op
        E(pre)
        if pre and nop: E("s_nop 0")
        E(ins); vq.issue(tag); E(post)
    for op in d_ops(0, 0) + d_ops(0, 1) + x_ops(0): emit_vm(op, A.e, True)
    A.e(["v_lshrrev_b32 v1, 4, v0", "v_mul_u32_u24 v30, 6144, v1", "v_and_b32 v1, 1, v1",
         "v_bfe_u32 v31, v0, 2, 2", "v_lshl_add_u32 v30, v31, 8, v30", "v_lshl_or_b32 v31, v31, 1, v1",
         "v_and_b32 v1, 3, v0", "v_lshl_add_u32 v30, v1, 3, v30", "v_add_u32 v30, 0x10000, v30"])
    for cb in range(8):
        A.e([f"v_xor_b32 v1, {cb}, v31", f"v_lshl_add_u32 v{9+cb}, v1, 5, v30", f"v_add_u32 v{17+cb}, 49152, v{9+cb}"])
    rest = d_ops(1, 0) + d_ops(1, 1) + x_ops(1) + d_ops(2, 0) + d_ops(2, 1) + x_ops(2) + d_ops(3, 0)
    zl = [f"v_accvgpr_write_b32 a{i}, 0" for i in range(128)] + [f"v_mov_b32 v{i}, 0" for i in range(32, 256)]
    for op in rest:
        emit_vm(op, A.e, True)
        A.e(zl[:12]); zl = zl[12:]
    A.e(zl)
    srd(A, 64, P_K, 4 * 2048 * 256)
    srd(A, 68, P_V, 4 * 2048 * 256)
    srd(A, 56, P_WS, SZ_HF, WS_HF)
    srd(A, 60, P_WS, SZ_OF, WS_OF)
    A.e(["v_lshrrev_b32 v30, 4, v0", "v_and_b32 v31, 15, v0", "v_xor_b32 v1, v31, v30"])
    for i in range(4):
        A.e([f"v_xor_b32 v{25+i}, {4*i}, v1", f"v_lshlrev_b32 v{25+i}, 4, v{25+i}", f"v_lshl_add_u32 v{25+i}, v30, 8, v{25+i}"])
    A.e(["v_lshlrev_b32 v1, 2, v30", "v_xor_b32 v1, v31, v1", "v_lshlrev_b32 v1, 4, v1", "v_lshl_add_u32 v29, v30, 8, v1",
         "s_lshr_b32 s12, s5, 3", "s_lshl_b32 s12, s12, 19", "s_lshl_b32 s92, s3, 12",
         "s_add_u32 s93, s12, s92", f"s_add_u32 s93, s93, {1536*256}",
         "s_mov_b32 s9, 7"])
    def kv_ops(kind, P):
        reg = 0 if kind == "K" else 65536
        sr = "s[64:67]" if kind == "K" else "s[68:71]"
        ops = []
        for i in range(4):
            ops.append(([f"s_add_u32 m0, s92, {reg + (P % 4) * 16384}", f"s_add_u32 s94, s93, {P * 16384}"] if i == 0 else [],
                        f"buffer_load_dwordx4 v{25+i if kind == 'K' else 29}, {sr}, s94 offen offset:{i*1024} lds", (kind, P), []))
        return ops
    if pfG:
        srd(A, 72, P_WO, 4096 * 2048); srd(A, 80, P_WD, 3584 * 2048)
        A.e(["s_lshl_b32 s12, s2, 2", "s_add_u32 s12, s12, s3", "s_lshl_b32 s96, s12, 13", "s_mul_i32 s97, s12, 7168",
             "v_and_b32 v31, 7, v0", "v_lshlrev_b32 v31, 7, v31"])
    if cpf:
        A.e(["s_getpc_b64 s[12:13]"]); A.label(L("pc"))
        A.e([f"s_sub_u32 s12, s12, {L('pc')}-{name}", "s_subb_u32 s13, s13, 0",
             "s_lshr_b32 s98, s2, 3", "s_lshl_b32 s98, s98, 2", "s_add_u32 s98, s98, s3", "s_lshl_b32 s98, s98, 9",
             "v_and_b32 v30, 3, v0", "v_lshlrev_b32 v30, 7, v30", "v_add_u32 v30, s98, v30",
             f"v_min_u32 v30, {name}_codeend-{name}-4, v30",
             "global_load_dword a238, v30, s[12:13]"])
    def pf_op(k):
        return [([], f"buffer_load_dword a239, v31, {'s[72:75], s96' if k == 0 else 's[80:83], s97'} offen", ("P", 0), [f"s_add_u32 s{96+k}, s{96+k}, 1024"])]
    A.e(vq.need(("D", 0, 1)))
    A.e("s_barrier")
    for blk in range(11):
        for ins, tag in rd_ops(0, blk): A.e(ins); dq.issue(tag)
    stamp(1)

    BARM = 47
    def step(t, E, first_ops=None, second_ops=None, last=False):
        v1 = d_ops(t + 3, 1) + x_ops(t + 3) if first_ops is None else first_ops
        v2_ = d_ops(t + 4, 0) if second_ops is None else second_ops
        if pfG and second_ops is None and t % 2 == 0: v2_ = v2_ + pf_op((t // 2) % 2)
        def spread(n, lo, hi):
            c = [m for m in range(lo, hi) if m % 4 == 2]
            if n == 0: return []
            return [c[(i * len(c)) // n] for i in range(n)]
        sched = list(zip(spread(len(v1), 2, 44), v1)) + list(zip(spread(len(v2_), 54, 88), v2_))
        pend = []; post = []; pre = list(sched[0][1][0]) if sched else []; vi = 0
        for m in range(88):
            blk, j = m // 4, m % 4
            if m == 0: E(vq.need(("X", t)))
            if j == 0: E(dq.need(("A", t, blk)))
            E(mfma16(acc(blk, j), Afr(blk), Bfr(t % 4, j)))
            if m == BARM:
                E(vq.need(("D", t + 1, 1))); E(dq.drain()); E("s_barrier")
            if j == 3:
                if blk < 11: pend += rd_ops(t, blk + 11)
                elif not last: pend += rd_ops(t + 1, blk - 11)
            if vi < len(sched) and m == sched[vi][0]:
                assert not pre, (t, m, pre)
                op = sched[vi][1]
                E(op[1]); vq.issue(op[2]); post += op[3]; vi += 1
                if vi < len(sched): pre = list(sched[vi][1][0])
            else:
                used = 0
                if pend:
                    ins, tag = pend.pop(0); E(ins); dq.issue(tag); used += 1
                while post and used < 2: E(post.pop(0)); used += 1
                while pre and used < 2 and not post and not (sched[vi][0] > BARM and m < BARM - 8): E(pre.pop(0)); used += 1
        for ins, tag in pend: E(ins); dq.issue(tag)
        E(post)
    for t in range(4): step(t, lambda x: None)
    vq.rebase(4); dq.rebase(4)
    A.raw(".p2align 6")
    A.label(L("loop"))
    for t in range(4): step(t, A.e)
    A.e(["s_sub_u32 s9, s9, 1", "s_cmp_lg_u32 s9, 0", f"s_cbranch_scc1 {L('loop')}"])
    vq.rebase(4); dq.rebase(4)
    step(0, A.e, None, kv_ops("K", 0) + kv_ops("K", 1))
    step(1, A.e, kv_ops("K", 2) + kv_ops("K", 3), kv_ops("V", 0) + kv_ops("V", 1))
    step(2, A.e, kv_ops("V", 2), kv_ops("V", 3) + (pf_op(0) if pfG else []))
    step(3, A.e, [], [], last=True)
    stamp(2)

    HP = "" if hwb else WT
    A.e(["s_mul_i32 s6, s15, 114688", "s_mul_i32 s12, s5, 7", "s_add_u32 s12, s12, 1", "s_lshr_b32 s12, s12, 1", "s_lshl_b32 s12, s12, 10",
         "s_add_u32 s6, s6, s12",
         "s_and_b32 s13, s5, 1", "s_cmp_eq_u32 s13, 0", "s_mov_b32 s13, 0xfffffc08", "s_cselect_b32 s13, 0xc00, s13",
         "s_add_u32 s7, s6, s13",
         "s_mov_b32 s8, 0xbfb8aa3b", "s_mov_b32 s9, 0xbfb8aa3b"])
    def hblock(b, j, dst):
        g = 32 + ((2 * b) * 4 + j) * 4; u = g + 16
        out = []
        out += [f"v_pk_mul_f32 v[{g+r_}:{g+r_+1}], v[{g+r_}:{g+r_+1}], s[8:9]" for r_ in (0, 2)]
        out += [f"v_exp_f32 v{g+r_}, v{g+r_}" for r_ in range(4)]
        out += [f"v_pk_add_f32 v[{g+r_}:{g+r_+1}], v[{g+r_}:{g+r_+1}], 1.0 op_sel_hi:[1,0]" for r_ in (0, 2)]
        out += [f"v_rcp_f32 v{g+r_}, v{g+r_}" for r_ in range(4)]
        out += [f"v_pk_mul_f32 v[{g+r_}:{g+r_+1}], v[{g+r_}:{g+r_+1}], v[{u+r_}:{u+r_+1}]" for r_ in (0, 2)]
        out += [f"v_cvt_pk_bf16_f32 v{dst}, v{g}, v{g+1}", f"v_cvt_pk_bf16_f32 v{dst+1}, v{g+2}, v{g+3}"]
        return out
    for j in range(4):
        for i in range(3):
            dst = 32 + ((4 * i + 1) * 4 + j) * 4
            A.e(hblock(2 * i, j, dst)); A.e(hblock(2 * i + 1, j, dst + 2))
            A.e(f"buffer_store_dwordx4 {v(dst,4)}, v4, s[56:59], s6 offen offset:{i*1024} {HP}"); vq.issue(("H", 0))
        dst = 32 + (13 * 4 + j) * 4
        A.e(hblock(6, j, dst))
        A.e(f"buffer_store_dwordx2 {v(dst,2)}, v4, s[56:59], s7 offen {HP}"); vq.issue(("H", 0))
        if j < 3: A.e(["s_add_u32 s6, s6, 114688", "s_add_u32 s7, s7, 114688"])
    QF = lambda mu, t: 32 + (mu * 8 + t) * 4
    SB = lambda b, mu: 96 + (b * 2 + mu) * 16
    NM = lambda mu: 160 + mu * 16
    PB = lambda b, mu: 192 + (b * 2 + mu) * 8
    EB = 224; VL = 232; VTS = 234; VT = 236
    A.e([f"s_mov_b32 s12, {QSCALE:#x}", f"s_mov_b32 s13, {QSCALE:#x}", f"s_mov_b32 s95, {thr:#x}"])
    for t in range(8):
        for mu in range(2):
            tmp = 96 + ((t * 2 + mu) % 4) * 8
            for x in range(2):
                src = (t * 4 + 2 * mu + x) * 4
                A.e([f"v_accvgpr_read_b32 v{tmp+4*x+r_}, a{src+r_}" for r_ in range(4)])
            A.e([f"v_pk_mul_f32 v[{tmp+2*k}:{tmp+2*k+1}], v[{tmp+2*k}:{tmp+2*k+1}], s[12:13]" for k in range(4)])
            q = QF(mu, t)
            A.e([f"v_cvt_pk_bf16_f32 v{q+k}, v{tmp+2*k}, v{tmp+2*k+1}" for k in range(4)])
            if (t * 2 + mu) > 0:
                pq = QF(*prev)
                A.e([f"v_permlane16_swap_b32 v{pq}, v{pq+2}", f"v_permlane16_swap_b32 v{pq+1}, v{pq+3}"])
            prev = (mu, t)
    A.e(["v_and_b32 v30, 31, v0", "v_lshrrev_b32 v31, 5, v0", "v_and_b32 v1, 15, v0", "v_xor_b32 v1, v1, v31",
         "v_lshlrev_b32 v30, 8, v30"])
    pq = QF(*prev)
    A.e([f"v_permlane16_swap_b32 v{pq}, v{pq+2}", f"v_permlane16_swap_b32 v{pq+1}, v{pq+3}"])
    for t in range(8):
        A.e([f"v_xor_b32 v{9+t}, {2*t}, v1", f"v_lshl_add_u32 v{9+t}, v{9+t}, 4, v30"])
    A.e(["v_bfe_u32 v1, v0, 2, 2", "v_lshlrev_b32 v30, 10, v31", "v_lshl_add_u32 v30, v1, 8, v30",
         "v_bfe_u32 v22, v0, 4, 1", "v_lshl_add_u32 v30, v22, 5, v30", "v_and_b32 v23, 3, v0", "v_lshl_add_u32 v30, v23, 3, v30",
         "v_add_u32 v30, 0x10000, v30"])
    for i in range(4):
        A.e([f"v_xor_b32 v23, {i}, v1", f"v_lshl_add_u32 v{17+i}, v23, 6, v30"])
    A.e(["v_lshlrev_b32 v21, 17, v22", "v_lshl_add_u32 v21, v31, 8, v21", "v_and_b32 v1, 15, v0", "v_lshl_add_u32 v21, v1, 4, v21"])
    A.e(["s_and_b32 s12, s2, 7", "s_lshr_b32 s72, s12, 2", "s_and_b32 s13, s12, 1", "s_lshl_b32 s73, s4, 1", "s_add_u32 s73, s73, s13",
         "s_bfe_u32 s13, s12, 0x10001", "s_lshl_b32 s13, s13, 2", "s_lshr_b32 s74, s2, 6", "s_add_u32 s74, s74, s13",
         "s_lshl_b32 s12, s72, 4", "s_sub_u32 s75, 128, s12", "s_lshl_b32 s46, s75, 16",
         "s_cmp_eq_u32 s72, 0",
         f"s_cselect_b32 s44, s{P_WO}, s{P_WD}", f"s_cselect_b32 s45, s{P_WO+1}, s{P_WD+1}", "s_and_b32 s45, s45, 0xffff",
         "s_lshr_b32 s12, s3, 1", "s_and_b32 s13, s3, 1",
         "s_mul_i32 s8, s12, s75", "s_lshl_b32 s9, s8, 9", "s_lshl_b32 s8, s8, 15",
         "s_lshl_b32 s13, s13, 12",
         "s_lshl_b32 s10, s12, 17", "s_add_u32 s10, s10, s13",
         "s_lshl_b32 s11, s12, 16", "s_add_u32 s11, s11, 0x8000", "s_add_u32 s11, s11, s13",
         "v_lshrrev_b32 v30, 4, v0", "v_and_b32 v31, 15, v0", "v_lshlrev_b32 v1, 2, v30", "v_xor_b32 v31, v31, v1",
         "s_lshl_b32 s13, s13, 3", "s_lshl_b32 s12, s74, 8", "s_add_u32 s12, s12, s13",
         "v_lshlrev_b32 v30, 11, v30", "v_add_u32 v30, s12, v30",
         "v_lshl_add_u32 v246, v31, 4, v30", "v_xor_b32 v31, 2, v31", "v_lshl_add_u32 v247, v31, 4, v30", "v_add_u32 v247, 7168, v247",
         "v_add_u32 v248, 14336, v246", "v_add_u32 v249, 14336, v247", "v_mov_b32 v250, 1", "v_mov_b32 v251, 0"])
    srd(A, 48, P_WS, FL_SZ, WS_FLAG)
    for i in range(8):
        A.e([f"s_add_u32 s13, s14, {i}", "s_and_b32 s13, s13, 7", f"s_lshl_b32 s{80+i}, s13, 10"])
    WV = 246
    def w_ops(t):
        slot = t % 8
        ops = []
        for i in range(4):
            ops.append(([f"s_add_u32 m0, s{10 if slot < 4 else 11}, {(slot%4)*8192}", f"s_lshl_b32 s12, s{80+slot}, 6", "s_add_u32 s12, s12, s8"] if i == 0 else [],
                        f"buffer_load_dwordx4 v{WV+i}, s[44:47], s12 offen offset:{i*1024} lds", ("W", t),
                        ["s_add_u32 s8, s8, 0x80000"] if (i == 3 and slot == 7) else []))
        return ops

    Kf = lambda t: a(128 + t * 4, 4)
    Vf = lambda i, tp, h=None: a(160 + (i * 2 + tp) * 4, 4) if h is None else a(160 + (i * 2 + tp) * 4 + 2 * h, 2)
    Oacc = lambda i, mu: a((i * 2 + mu) * 16, 16)
    def k_reads(T): return [(f"ds_read_b128 {Kf(t)}, v{9+t} offset:{(T % 8) * 8192}", ("K", T, t)) for t in range(8)]
    def v_reads(T):
        return [(f"ds_read_b64_tr_b16 {Vf(i,tp,h)}, v{17+i} offset:{(T % 8) * 8192 + tp * 4096 + h * 2048}", ("V", T, i, tp))
                for i in range(4) for tp in range(2) for h in range(2)]
    def qk(T, c0):
        return [(mfma32(v(SB(T & 1, mu), 16), Kf(t), v(QF(mu, t), 4), (c0(mu) if t == 0 else None)), ("K", T, t)) for t in range(8) for mu in range(2)]
    def pv(T):
        return [(mfma32(Oacc(i, mu), Vf(i, tp), v(PB(T & 1, mu) + 4 * tp, 4), ("0" if (T == 0 and tp == 0) else None)), ("V", T, i, tp))
                for i in range(4) for tp in range(2) for mu in range(2)]
    A.e(vq.need(("V", 3))); A.e("s_barrier")
    dq.slack = 15
    for ins, tag in k_reads(0): A.e(ins); dq.issue(tag)
    for ins, tag in qk(0, lambda mu: "0"):
        A.e(dq.need(tag)); A.e(ins)
    for ins, tag in k_reads(1): A.e(ins); dq.issue(tag)
    A.e(["v_mov_b32 v232, 0", "v_mov_b32 v233, 0", "s_nop 7"])
    def rowmax(S, dst, tmp):
        out = [f"v_max3_f32 v{dst}, v{S}, v{S+1}, v{S+2}"]
        for k in range(3, 15, 2): out.append(f"v_max3_f32 v{dst}, v{dst}, v{S+k}, v{S+k+1}")
        out += [f"v_max_f32 v{dst}, v{dst}, v{S+15}", f"v_mov_b32 v{tmp}, v{dst}", "s_nop 1",
                f"v_permlane32_swap_b32 v{tmp}, v{dst}", f"v_max_f32 v{dst}, v{dst}, v{tmp}"]
        return out
    for mu in range(2):
        A.e(rowmax(SB(0, mu), VT + mu, VT + 2))
        A.e([f"v_sub_f32 v{NM(mu)+k}, 0, v{VT+mu}" for k in range(16)])
        A.e([f"v_sub_f32 v{SB(0,mu)+k}, v{SB(0,mu)+k}, v{VT+mu}" for k in range(16)])
    def sm(T):
        b = T & 1
        out = []
        def ex(n): return (f"v_exp_f32 v{EB + n % 8}, v{SB(b, n // 16) + n % 16}", 8)
        def fin(n):
            mu, r_ = n // 16, n % 16; e = EB + n % 8; o = []
            if r_ == 1: o.append((f"v_add_f32 v{VTS+mu}, v{EB + (n-1) % 8}, v{e}", 4))
            elif r_ > 1: o.append((f"v_add_f32 v{VTS+mu}, v{VTS+mu}, v{e}", 4))
            if r_ % 2 == 1: o.append((f"v_cvt_pk_bf16_f32 v{PB(b,mu) + r_//2}, v{EB + (n-1) % 8}, v{e}", 5))
            return o
        out.append(ex(0)); out.append(ex(1))
        for n in range(2, 32):
            out.append(ex(n)); out += fin(n - 2)
        out += fin(30) + fin(31)
        out += [(f"v_max_f32 v{VT}, v{VTS}, v{VTS+1}", 4), (f"v_cmp_nge_f32 vcc, s95, v{VT}", 4)]
        return out
    stamp(3)
    def flag_store(off_sreg):
        lab = L("fl%d" % A.nlabel); A.nlabel += 1
        A.e(["s_cmp_lg_u32 s3, 0", f"s_cbranch_scc1 {lab}", "s_mov_b64 exec, 1",
             f"buffer_store_dword v250, v251, s[48:51], {off_sreg} offen {WT}", "s_mov_b64 exec, -1"])
        A.label(lab)
    rare_sites = []
    for T in range(17):
        mf = (qk(T + 1, lambda mu: v(NM(mu), 16)) if T + 1 <= 15 else []) + (pv(T - 1) if T >= 1 else [])
        nq = 16 if T + 1 <= 15 else 0
        va = ([(f"v_add_f32 v{VL}, v{VL}, v{VTS}", 4), (f"v_add_f32 v{VL+1}, v{VL+1}, v{VTS+1}", 4)] if T >= 1 else []) + (sm(T) if T <= 15 else [])
        rdv = v_reads(T - 1) if T >= 1 else []
        rdk = k_reads(T + 2) if T + 2 <= 15 else []
        vm = []
        if T % 2 == 0 and T <= 14:
            w = []
            if T == 2: w += vq.need(("H", 0))
            if T >= 6: w += vq.need(("K", (T + 2) // 2))
            if T >= 8: w += vq.need(("V", T // 2))
            A.e(w[-1:]); A.e(dq.drain()); A.e("s_barrier")
            if T == 2:
                A.e(["s_lshl_b32 s12, s4, 7", "s_lshl_b32 s13, s5, 2", "s_add_u32 s12, s12, s13", f"s_add_u32 s88, s12, {FL_H}", f"s_add_u32 s89, s12, {FL_O}"])
                if hwb:
                    lab = L("wb")
                    A.e(["s_cmp_lg_u32 s3, 0", f"s_cbranch_scc1 {lab}", "buffer_wbl2 sc1"]); A.label(lab)
                else: flag_store("s88")
            if T == 8 and hwb: flag_store("s88")
            if T <= 6: vm += kv_ops("K", T // 2 + 4)
            if 4 <= T <= 10: vm += kv_ops("V", T // 2 + 2)
            if T == 12: vm += w_ops(0) + w_ops(1)
        if T == 13: vm += w_ops(2) + w_ops(3)
        if pfT and T <= 14:
            pre = []
            if T == 0:
                pre = [f"s_mov_b32 s40, s{P_WO}", f"s_and_b32 s41, s{P_WO+1}, 0xffff", f"s_mov_b32 s42, {4096*2048:#x}",
                       f"s_mov_b32 s52, s{P_WD}", f"s_and_b32 s53, s{P_WD+1}, 0xffff", f"s_mov_b32 s54, {3584*2048:#x}",
                       "s_lshl_b32 s12, s2, 2", "s_add_u32 s12, s12, s3", "s_lshl_b32 s96, s12, 13", "s_mul_i32 s97, s12, 7168",
                       "v_and_b32 v22, 7, v0", "v_lshlrev_b32 v22, 7, v22", "v_add_u32 v24, 4096, v22"]
            k = T if T < 8 else T - 8
            vm += [(pre, f"buffer_load_dword v23, v{22 if k < 4 else 24}, {'s[40:43], s96' if T < 8 else 's[52:55], s97'} offen offset:{(k % 4) * 1024}", ("P", 0), [])]
        if nq == 0:
            for ins, tag in rdv: A.e(ins); dq.issue(tag)
            rdv = []
        n = len(mf)
        vml = []
        for op in vm:
            vml += [(x, 4, None) for x in op[0]] + ([("s_nop 0", 4, None)] if op[0] else []) + [(op[1], 8, op[2])] + [(x, 4, None) for x in op[3]]
        tot = sum(c for _, c in va) + 4 * (len(rdv) + len(rdk)) + sum(c for _, c, _ in vml)
        done = 0
        for m, (ins, tag) in enumerate(mf):
            w = dq.need(tag, dsl); A.e(w); A.e(ins)
            used = 4 * len(w)
            budget = max(cap, -(-(tot - done) // (n - m)) + 3) if m < n - 1 else 10 ** 6
            target = (tot * (m + 1)) // n + 6
            rd = rdv if (m < nq and rdv) else (rdk if (m >= nq and rdk) else None)
            if rd:
                ri, rt = rd.pop(0); A.e(ri); dq.issue(rt); used += 4; done += 4
                if rd is rdv and len(rd) > (nq - 3 - m):
                    ri, rt = rd.pop(0); A.e(ri); dq.issue(rt); used += 4; done += 4
            elif vml:
                x, c, tg = vml.pop(0); A.e(x); used += c; done += c
                if tg: vq.issue(tg)
                while vml and c == 4 and used < 12:
                    x, c, tg = vml.pop(0); A.e(x); used += c; done += c
                    if tg: vq.issue(tg)
            while va and used + va[0][1] <= budget and (done < target or m == n - 1):
                x, c = va.pop(0); A.e(x); used += c; done += c
        assert not rdv
        for ins, tag in rdk: A.e(ins); dq.issue(tag)
        for x, c, tg in vml:
            A.e(x)
            if tg: vq.issue(tg)
        for x, c in va: A.e(x)
        if T <= 15:
            A.e([f"s_cbranch_vccnz {L('rs%d' % T)}"])
            A.label(L("rb%d" % T))
            rare_sites.append(T)
    stamp(4)
    A.e(["s_lshl_b32 s6, s15, 17", "s_lshl_b32 s12, s5, 12", "s_add_u32 s6, s6, s12", "s_add_u32 s7, s6, 0x40000"])
    for mu in range(2):
        A.e([f"v_mov_b32 v{VT}, v{VL+mu}", "s_nop 1", f"v_permlane32_swap_b32 v{VT}, v{VL+mu}", f"v_add_f32 v{VT}, v{VT}, v{VL+mu}",
             f"v_rcp_f32 v{VT+2+2*mu}, v{VT}", "s_nop 0", f"v_mov_b32 v{VT+3+2*mu}, v{VT+2+2*mu}"])
    A.e("s_nop 4")
    cnt = 0
    for i in range(4):
        for mu in range(2):
            tmp = 96 + (cnt % 4) * 16; dst = 32 + cnt * 8; cnt += 1
            src = (i * 2 + mu) * 16
            A.e([f"v_accvgpr_read_b32 v{tmp+k}, a{src+k}" for k in range(16)])
            A.e([f"v_pk_mul_f32 v[{tmp+2*k}:{tmp+2*k+1}], v[{tmp+2*k}:{tmp+2*k+1}], v[{VT+2+2*mu}:{VT+3+2*mu}]" for k in range(8)])
            for s_ in range(2):
                for jj, j in enumerate((s_, s_ + 2)):
                    A.e([f"v_cvt_pk_bf16_f32 v{dst+4*s_+2*jj}, v{tmp+4*j}, v{tmp+4*j+1}", f"v_cvt_pk_bf16_f32 v{dst+4*s_+2*jj+1}, v{tmp+4*j+2}, v{tmp+4*j+3}"])
                A.e(f"buffer_store_dwordx4 {v(dst+4*s_,4)}, v21, s[60:63], s{6+mu} offen offset:{i*1024+s_*512} {WT}"); vq.issue(("O", 0))
    A.e(["s_lshl_b32 s42, s75, 17", f"s_mov_b32 s12, {WS_HF:#x}", "s_cmp_eq_u32 s72, 0", f"s_cselect_b32 s12, {WS_OF:#x}, s12",
         "s_cselect_b32 s90, 7, 6", f"s_cselect_b32 s91, {FL_O:#x}, {FL_H:#x}" if False else f"s_mov_b32 s91, {FL_H:#x}",
         f"s_cselect_b32 s91, {FL_O:#x}, s91",
         f"s_add_u32 s40, s{P_WS}, s12", f"s_addc_u32 s41, s{P_WS+1}, 0", "s_and_b32 s41, s41, 0xffff",
         "s_lshl_b32 s12, s4, 7", "s_add_u32 s91, s91, s12"])
    srd(A, 52, P_WS, SZ_GF, WS_GF)
    srd(A, 64, P_X, 2048 * 2048)
    srd(A, 68, P_OUT, 2048 * 2048)
    A.e(["s_lshr_b32 s6, s3, 1", "s_and_b32 s7, s3, 1",
         "s_lshl_b32 s12, s73, 3", "s_lshl_b32 s13, s7, 2", "s_add_u32 s12, s12, s13", "s_lshl_b32 s13, s6, 1", "s_lshl_b32 s94, s75, 10"])
    for jj in range(4):
        A.e([f"s_xor_b32 s93, s13, {jj}", "s_add_u32 s93, s93, s12", "s_mul_i32 s93, s93, s94", f"v_add_u32 v{5+jj}, s93, v4"])
    A.e(["v_lshrrev_b32 v1, 4, v0", "v_lshlrev_b32 v30, 10, v1", "v_and_b32 v1, 1, v1",
         "v_bfe_u32 v31, v0, 2, 2", "v_lshl_add_u32 v30, v31, 8, v30", "v_lshl_or_b32 v31, v31, 1, v1",
         "v_and_b32 v1, 3, v0", "v_lshl_add_u32 v30, v1, 3, v30",
         "s_lshl_b32 s12, s6, 17", "s_lshl_b32 s13, s6, 16", "s_add_u32 s13, s13, 0x8000"])
    for cb in range(8):
        A.e([f"v_xor_b32 v1, {cb}, v31", "v_lshl_add_u32 v1, v1, 5, v30", f"v_add_u32 v{9+cb}, s12, v1", f"v_add_u32 v{17+cb}, s13, v1"])
    A.e(["s_lshl_b32 s12, s73, 3", "s_add_u32 s12, s12, s74",
         "s_lshl_b32 s92, s12, 2", "s_add_u32 s92, s92, s3", "s_lshl_b32 s92, s92, 13",
         "s_lshl_b32 s93, s12, 7", "s_lshl_b32 s12, s3, 5", "s_add_u32 s93, s93, s12",
         "s_lshl_b32 s94, s73, 7", "s_lshl_b32 s12, s7, 6", "s_add_u32 s94, s94, s12", "s_lshl_b32 s12, s6, 5", "s_add_u32 s94, s94, s12",
         "s_lshl_b32 s94, s94, 11", "s_lshl_b32 s12, s74, 8", "s_add_u32 s94, s94, s12",
         "v_and_b32 v1, 15, v0", "v_lshlrev_b32 v1, 11, v1", "v_lshrrev_b32 v30, 4, v0",
         "v_lshl_add_u32 v25, v30, 3, v1", "v_add_u32 v26, 0x8000, v25",
         "v_lshl_add_u32 v27, v30, 4, v1", "v_add_u32 v28, 0x8000, v27",
         "s_lshl_b32 s12, s3, 14", "v_add_u32 v2, s12, v4", "s_xor_b32 s12, s12, 0x8000", "v_add_u32 v3, s12, v4",
         "v_lshlrev_b32 v29, 2, v0", "v_and_b32 v29, 0x7c, v29"])
    A.e(vq.need(("O", 0)))
    A.e("s_barrier")
    flag_store("s89")
    for t in range(4, 7):
        for op in w_ops(t): emit_vm(op, A.e, True)
    for i in range(32, 160): A.e(f"v_mov_b32 v{i}, 0")
    stamp(5)
    A.e(["s_cmp_lg_u32 s3, 0", f"s_cbranch_scc1 {L('gotA')}"])
    A.label(L("pollA"))
    A.e([f"buffer_load_dword v30, v29, s[48:51], s91 offen {WT}", "s_waitcnt vmcnt(0)",
         "v_cmp_ne_u32 vcc, 1, v30", f"s_cbranch_vccz {L('gotA')}", "s_sleep 2", f"s_branch {L('pollA')}"])
    A.label(L("gotA"))
    A.e(vq.drain()); A.e("s_barrier")
    facc = lambda cb, jj: v(32 + (cb * 4 + jj) * 4, 4)
    FA = lambda cb, h=None: a(128 + cb * 4, 4) if h is None else a(128 + cb * 4 + 2 * h, 2)
    FB = lambda slot, jj: a(slot * 16 + jj * 4, 4)
    def a_ops(t):
        slot = t % 8
        return [([f"s_add_u32 s13, s{80+slot}, s9"] if jj == 0 else [],
                 f"buffer_load_dwordx4 {FB(slot,jj)}, v{5+jj}, s[40:43], s13 offen {apol}", ("X", t),
                 ["s_add_u32 s9, s9, 0x2000"] if (jj == 3 and slot == 7) else []) for jj in range(4)]
    def frd(t, cb):
        slot = t % 8
        reg = (9 if slot < 4 else 17) + cb; off = (slot % 4) * 8192
        return [(f"ds_read_b64_tr_b16 {FA(cb,0)}, v{reg} offset:{off}", ("A", t, cb)),
                (f"ds_read_b64_tr_b16 {FA(cb,1)}, v{reg} offset:{off+4096}", ("A", t, cb))]
    for t in range(7):
        for op in a_ops(t): emit_vm(op, A.e)
    dq.slack = 8
    for cb in range(8):
        for ins, tag in frd(0, cb): A.e(ins); dq.issue(tag)
    stamp(6)
    def fstep(t, E, last=False, extra=None):
        vops = (w_ops(t + 7) + a_ops(t + 7)) if (not last or t % 8 == 0) else []
        if extra: vops = vops + extra
        isbar = (t % 2 == 1)
        doread = not (last and t % 8 == 7)
        pend = []; vi = 0; post = []; pre = list(vops[0][0]) if vops else []
        for m in range(32):
            cb, jj = m // 4, m % 4
            if m == 0: E(vq.need(("X", t)))
            if jj == 0: E(dq.need(("A", t, cb)))
            E(mfma16(facc(cb, jj), FA(cb), FB(t % 8, jj)))
            if isbar and m == barpos:
                E(vq.need(("W", t + 2))); E(dq.drain()); E("s_barrier")
            if jj == 3 and doread: pend += frd(t + 1, cb)
            if vi < len(vops) and m == vpos[vi]:
                assert not pre
                E(vops[vi][1]); vq.issue(vops[vi][2]); post += vops[vi][3]; vi += 1
                if vi < len(vops): pre = list(vops[vi][0])
            else:
                used = 0
                if not (isbar and m < barpos) and pend:
                    ins, tag = pend.pop(0); E(ins); dq.issue(tag); used += 1
                while pre and used < 2: E(pre.pop(0)); used += 1
                if post and used < 2: E(post.pop(0))
        for ins, tag in pend: E(ins); dq.issue(tag)
        E(post)
    entry = list(vq.q)
    for t in range(8): fstep(t, lambda x: None)
    vq.rebase(8); dq.rebase(8)
    steady = list(vq.q); sdq = list(dq.q)
    vq.q = entry; dq.q = [("A", 0, cb) for cb in range(8) for _ in range(2)] if not stamps else []
    for t in range(8): fstep(t, A.e)
    vq.rebase(8); dq.rebase(8)
    assert vq.q == steady, (vq.q, steady)
    A.e("s_sub_u32 s90, s90, 1")
    A.raw(".p2align 6")
    A.label(L("floop"))
    for t in range(8): fstep(t, A.e)
    A.e(["s_sub_u32 s90, s90, 1", "s_cmp_lg_u32 s90, 0", f"s_cbranch_scc1 {L('floop')}"])
    vq.rebase(8); dq.rebase(8)
    xr = lambda cb, jj: v(160 + (cb * 2 + jj) * 2, 2)
    xops = [([], f"buffer_load_dwordx2 {xr(cb,jj)}, v{25+jj}, s[64:67], s94 offen offset:{cb*32}", ("R", 0), []) for cb in range(8) for jj in range(2)]
    for t in range(8):
        fstep(t, A.e, last=True, extra=xops[:8] if t == 2 else xops[8:] if t == 3 else None)
    stamp(7)
    A.e(["v_mov_b32 v29, 0", "v_mov_b32 v24, 1", "s_nop 7"])
    for cb in range(8):
        for jj in (2, 3):
            A.e(f"ds_write_b128 v2, {facc(cb,jj)} offset:{(cb*2+jj-2)*1024}")
    A.e(["s_waitcnt lgkmcnt(0)", "s_barrier"])
    pr = lambda cb, jj: v(192 + (cb * 2 + jj) * 4, 4)
    for cb in range(8):
        for jj in range(2):
            A.e(f"ds_read_b128 {pr(cb,jj)}, v3 offset:{(cb*2+jj)*1024}")
    A.e(["s_cmp_eq_u32 s72, 0", f"s_cbranch_scc1 {L('sepi')}"])
    A.e(["s_waitcnt vmcnt(0)", "s_mov_b32 s8, 0xbfb8aa3b", "s_mov_b32 s9, 0xbfb8aa3b"])
    for jj in range(2):
        for i in range(4):
            dst = 160 + (jj * 4 + i) * 4
            for h in range(2):
                cb = 2 * i + h
                A.e(f"s_waitcnt lgkmcnt({15 - (cb*2+jj)})")
                b = 32 + (cb * 4 + jj) * 4; p = 192 + (cb * 2 + jj) * 4
                A.e([f"v_pk_add_f32 v[{b+r_}:{b+r_+1}], v[{b+r_}:{b+r_+1}], v[{p+r_}:{p+r_+1}]" for r_ in (0, 2)])
                A.e([f"v_pk_mul_f32 v[{p+r_}:{p+r_+1}], v[{b+r_}:{b+r_+1}], s[8:9]" for r_ in (0, 2)])
                A.e([f"v_exp_f32 v{p+r_}, v{p+r_}" for r_ in range(4)])
                A.e([f"v_pk_add_f32 v[{p+r_}:{p+r_+1}], v[{p+r_}:{p+r_+1}], 1.0 op_sel_hi:[1,0]" for r_ in (0, 2)])
                A.e([f"v_rcp_f32 v{p+r_}, v{p+r_}" for r_ in range(4)])
                A.e([f"v_pk_mul_f32 v[{b+r_}:{b+r_+1}], v[{b+r_}:{b+r_+1}], v[{p+r_}:{p+r_+1}]" for r_ in (0, 2)])
                A.e([f"v_cvt_pk_bf16_f32 v{dst+2*h}, v{b}, v{b+1}", f"v_cvt_pk_bf16_f32 v{dst+2*h+1}, v{b+2}, v{b+3}"])
            A.e(f"buffer_store_dwordx4 {v(dst,4)}, v4, s[52:55], s92 offen offset:{i*1024} {WT}")
            if i == 3: A.e("s_add_u32 s92, s92, 4096")
    A.e(["s_waitcnt vmcnt(0)", "s_mov_b64 exec, 1",
         f"buffer_store_dword v24, v29, s[48:51], s93 offen {WT}", "s_mov_b64 exec, -1", f"s_branch {L('fin')}"])
    A.label(L("sepi"))
    A.label(L("poll"))
    A.e([f"buffer_load_dword v30, v29, s[48:51], s93 offen {WT}", "s_waitcnt vmcnt(0)",
         "v_cmp_ne_u32 vcc, 1, v30", f"s_cbranch_vccz {L('got')}", "s_sleep 1", f"s_branch {L('poll')}"])
    A.label(L("got"))
    gb = lambda jj, i: 32 + ((jj * 4 + i) * 4 + 2) * 4
    for jj in range(2):
        for i in range(4):
            A.e(f"buffer_load_dwordx4 {v(gb(jj,i),4)}, v4, s[52:55], s92 offen offset:{i*1024} {WT}")
        A.e("s_add_u32 s92, s92, 4096")
    A.e("s_waitcnt lgkmcnt(0)")
    for cb in range(8):
        for jj in range(2):
            b = 32 + (cb * 4 + jj) * 4; p = 192 + (cb * 2 + jj) * 4; x = 160 + (cb * 2 + jj) * 2
            A.e([f"v_pk_add_f32 v[{b+r_}:{b+r_+1}], v[{b+r_}:{b+r_+1}], v[{p+r_}:{p+r_+1}]" for r_ in (0, 2)])
            A.e([f"v_lshlrev_b32 v{p}, 16, v{x}", f"v_and_b32 v{p+1}, 0xffff0000, v{x}",
                 f"v_lshlrev_b32 v{p+2}, 16, v{x+1}", f"v_and_b32 v{p+3}, 0xffff0000, v{x+1}"])
    for jj in range(2):
        for i in range(4):
            A.e("s_waitcnt vmcnt(7)")
            g = gb(jj, i); o = g + 4
            for h in range(2):
                cb = 2 * i + h
                b = 32 + (cb * 4 + jj) * 4; p = 192 + (cb * 2 + jj) * 4
                A.e([f"v_lshlrev_b32 v8, 16, v{g+2*h}", f"v_and_b32 v9, 0xffff0000, v{g+2*h}",
                     f"v_lshlrev_b32 v10, 16, v{g+2*h+1}", f"v_and_b32 v11, 0xffff0000, v{g+2*h+1}"])
                A.e([f"v_pk_fma_f32 v[{p+r_}:{p+r_+1}], v[{b+r_}:{b+r_+1}], v[{8+r_}:{9+r_}], v[{p+r_}:{p+r_+1}]" for r_ in (0, 2)])
                A.e([f"v_cvt_pk_bf16_f32 v{o+2*h}, v{p}, v{p+1}", f"v_cvt_pk_bf16_f32 v{o+2*h+1}, v{p+2}, v{p+3}"])
            A.e(["s_nop 1", f"v_permlane32_swap_b32 v{o}, v{o+2}", f"v_permlane32_swap_b32 v{o+1}, v{o+3}", "s_nop 0",
                 f"v_permlane16_swap_b32 v{o}, v{o+2}", f"v_permlane16_swap_b32 v{o+1}, v{o+3}",
                 f"buffer_store_dwordx4 {v(o,4)}, v{27+jj}, s[68:71], s94 offen offset:{i*64}"])
    A.label(L("fin"))
    if stamps:
        srd(A, 40, P_WS, 0x100000, WS_STAMP)
        A.e(["s_waitcnt vmcnt(0)", "s_memtime s[76:77]", "s_memrealtime s[78:79]", "s_waitcnt lgkmcnt(0)",
             "v_mov_b32 v8, s76", "v_mov_b32 v9, s78", "v_mov_b32 v10, s72", "v_mov_b32 v11, 0",
             "s_lshl_b32 s10, s2, 2", "s_add_u32 s10, s10, s3", "s_lshl_b32 s10, s10, 7", "v_mov_b32 v1, s10", "s_mov_b64 exec, 1"])
        for k in range(4): A.e(f"buffer_store_dwordx4 a[{240+4*k}:{243+4*k}], v1, s[40:43], 0 offen offset:{16*k}")
        A.e("buffer_store_dwordx4 v[8:11], v1, s[40:43], 0 offen offset:64")
    A.label(L("end"))
    A.e("s_endpgm")
    for T in rare_sites:
        A.label(L("rs%d" % T))
        A.e([f"s_call_b64 s[6:7], {L('rare%d' % (T & 1))}", f"s_branch {L('rb%d' % T)}"])
    for b in range(2):
        A.label(L("rare%d" % b))
        A.e(["s_nop 15", "s_nop 15"])
        for mu in range(2):
            S = SB(b, mu); S2 = SB(b ^ 1, mu)
            A.e(rowmax(S, VT, VT + 2))
            A.e([f"v_max_f32 v{VT}, 0, v{VT}", f"v_exp_f32 v{VT+1}, -v{VT}"])
            A.e([f"v_sub_f32 v{NM(mu)+k}, v{NM(mu)+k}, v{VT}" for k in range(16)])
            A.e([f"v_sub_f32 v{S+k}, v{S+k}, v{VT}" for k in range(16)])
            A.e([f"v_sub_f32 v{S2+k}, v{S2+k}, v{VT}" for k in range(16)])
            A.e(f"v_mul_f32 v{VL+mu}, v{VL+mu}, v{VT+1}")
            for i in range(4):
                o = (i * 2 + mu) * 16
                for k in range(16):
                    A.e([f"v_accvgpr_read_b32 v{VT+2}, a{o+k}", f"v_mul_f32 v{VT+2}, v{VT+2}, v{VT+1}", f"v_accvgpr_write_b32 a{o+k}, v{VT+2}"])
            for k in range(0, 16, 2):
                A.e([f"v_exp_f32 v{EB}, v{S+k}", f"v_exp_f32 v{EB+1}, v{S+k+1}", "s_nop 0",
                     f"v_cvt_pk_bf16_f32 v{PB(b,mu)+k//2}, v{EB}, v{EB+1}", f"v_add_f32 v{EB}, v{EB}, v{EB+1}",
                     f"v_mov_b32 v{VTS+mu}, v{EB}" if k == 0 else f"v_add_f32 v{VTS+mu}, v{VTS+mu}, v{EB}"])
        A.e(["s_nop 3", "s_setpc_b64 s[6:7]"])
    A.label(f"{name}_codeend")
    return (name, 512, 256, "(256,1,1)", "(256,1,1)", 163840)
```

```python
import sys
from common import *
from k0 import k0
from k2 import k2
HDR = open("recurrent_scan__sliding_block_cached__glu_gated_glu__prompt.s.ref").read().split("; Override launch")[0]
def kempty(A, name):
    A.raw(kernel_head(name)); A.e("s_endpgm")
    return (name, 8, 8, "(256,1,1)", "(256,1,1)", 0)
def build(kernels):
    B = Asm(); infos = []
    for fn, kw in kernels: infos.append(fn(B, **kw))
    out = HDR
    for (name, vg, acc, grid, block, lds) in infos:
        out += f"; @launch kernel={name} grid={grid} block={block} lds={lds}\n"
    out += '.amdgcn_target "amdgcn-amd-amdhsa--gfx950"\n.text\n' + B.text()
    for (name, vg, acc, grid, block, lds) in infos:
        out += kernel_desc(name, vg, acc)
    return out
if __name__ == "__main__":
    which = sys.argv[2]
    kw = {}
    for x in sys.argv[3:]:
        k, val = x.split("="); kw[k] = eval(val)
    ks = []
    for c in which.split(","):
        if c == "0": ks.append((k0, {k[3:]: v_ for k, v_ in kw.items() if k.startswith("k0_")}))
        if c[0] == "e": ks.append((kempty, {"name": c + "_kernel"}))
        if c == "2": ks.append((k2, {k[3:]: v_ for k, v_ in kw.items() if k.startswith("k2_")}))
        if c == "f":
            from kf import kf
            ks.append((kf, {k[3:]: v_ for k, v_ in kw.items() if k.startswith("kf_")}))
        if c == "1":
            from k1 import k1
            ks.append((k1, {k[3:]: v_ for k, v_ in kw.items() if k.startswith("k1_")}))
    open(sys.argv[1], "w").write(build(ks))
```

```python
from common import *
import struct, math
QSCALE = struct.unpack("<I", struct.pack("<f", math.log2(math.e) / math.sqrt(128.0)))[0]
THR = 0x49800000
FL_L, FL_H, FL_O, FL_SZ = 0x4000, 0x6000, 0x8000, 0xA000
WT = "sc0 sc1"

def kf(A, name="kf_kernel", stamps=0, thr=THR, vpos=(6, 10, 14, 18, 22, 26, 29, 30), barpos=3, apol=WT, pfT=0, pfG=1, cpf=1, ln=1, dbgst=0, pst=0, psleep=1, hwb=0, cap=24, dsl=6):
    L = lambda s: f"{name}_{s}"
    vq = Q("vmcnt", 63); dq = Q("lgkmcnt", 15, 10)
    def stamp(i, pro=False):
        if not stamps: return
        if pro and not pst: return
        if pst:
            if not pro and i not in (0,):
                if i != 1: return
                i = 7
        A.e(["s_memtime s[76:77]", "s_memrealtime s[78:79]", "s_waitcnt lgkmcnt(0)", "v_mov_b32 v30, s76", f"v_accvgpr_write_b32 a{240+2*i}, v30",
             "v_mov_b32 v30, s78", f"v_accvgpr_write_b32 a{241+2*i}, v30"]); dq.drain()
    A.raw(kernel_head(name))
    A.e(["s_cmp_ge_u32 s2, 256", f"s_cbranch_scc1 {L('end')}"])
    stamp(0)
    A.e(LOADARGS)
    A.e(["v_lshrrev_b32 v1, 6, v0", "v_and_b32 v0, 63, v0", "s_nop 0", "v_readfirstlane_b32 s3, v1",
         "s_and_b32 s10, s2, 7", "s_lshr_b32 s11, s2, 3", "s_and_b32 s4, s11, 7", "s_lshr_b32 s11, s11, 3",
         "s_lshl_b32 s5, s10, 2", "s_add_u32 s5, s5, s11",
         "s_lshl_b32 s14, s11, 1", "s_add_u32 s14, s14, s4"])
    if ln:
        A.e(["v_and_b32 v40, 7, v0", "v_lshrrev_b32 v41, 3, v0", "s_lshl_b32 s12, s3, 5", "v_add_u32 v41, s12, v41",
             "v_lshlrev_b32 v42, 11, v40", "v_lshl_add_u32 v42, v41, 4, v42",
             "s_lshl_b32 s12, s4, 5", "s_add_u32 s91, s12, s5", "s_lshl_b32 s12, s91, 14",
             "s_waitcnt lgkmcnt(0)"])
        srd(A, 64, P_X, 2048 * 2048)
        for i in range(4):
            A.e(f"buffer_load_dwordx4 v[{48+4*i}:{51+4*i}], v42, s[64:67], s12 offen offset:{128*i}"); vq.issue(("L", 0))
        srd(A, 60, P_DBG, 256)
        A.e(["v_mov_b32 v47, 0", "s_or_b32 s12, s2, s3", "s_cmp_lg_u32 s12, 0", f"s_cbranch_scc1 {L('nn')}",
             "s_memrealtime s[12:13]", "s_waitcnt lgkmcnt(0)", "s_or_b32 s12, s12, 1", "v_mov_b32 v38, s12", "v_mov_b32 v39, s13", "s_mov_b64 exec, 1",
             f"buffer_store_dwordx2 v[38:39], v47, s[60:63], 0 offen {WT}", "s_mov_b64 exec, -1"])
        A.label(L("nn"))
    A.e([
         "v_lshrrev_b32 v30, 4, v0", "v_and_b32 v31, 15, v0",
         "s_lshr_b32 s12, s3, 1", "s_lshl_b32 s12, s12, 1",
         "v_lshlrev_b32 v1, 2, v30", "v_or_b32 v1, s12, v1", "v_xor_b32 v31, v31, v1",
         "s_lshl_b32 s12, s3, 2", "v_add_u32 v30, s12, v30",
         "v_lshlrev_b32 v2, 13, v30", "s_lshl_b32 s12, s5, 8", "v_lshl_add_u32 v2, v31, 4, v2", "v_add_u32 v2, s12, v2",
         "v_lshrrev_b32 v1, 1, v31", "v_min_u32 v1, 6, v1", "s_and_b32 s13, s5, 1", "v_add_u32 v1, s13, v1",
         "v_cmp_eq_u32 vcc, 7, v1", "v_and_b32 v31, 1, v31", "s_nop 0", "v_cndmask_b32 v1, v1, 0, vcc",
         "v_lshl_or_b32 v1, v1, 1, v31",
         "v_mul_u32_u24 v3, 7168, v30", "s_mul_i32 s12, s5, 224", "v_add_u32 v3, s12, v3", "v_lshl_add_u32 v3, v1, 4, v3",
         "s_lshl_b32 s12, s4, 4", "s_lshl_b32 s13, s3, 2", "s_add_u32 s15, s12, s13",
         "s_lshl_b32 s12, s15, 15", "v_lshlrev_b32 v4, 4, v0", "v_add_u32 v5, s12, v4",
         "v_add_u32 v6, 0x8000, v5", "v_add_u32 v7, 0x10000, v5", "v_add_u32 v8, 0x18000, v5",
         "s_mul_i32 s10, s3, 3072", "s_add_u32 s10, s10, 65536", "s_mov_b32 s11, 0",
         "s_waitcnt lgkmcnt(0)"])
    srd(A, 44, P_WQ, 1024 * 4096 * 2)
    srd(A, 48, P_WG, 1024 * 3584 * 2 + 1024, -1024)
    srd(A, 52, P_WU, 1024 * 3584 * 2 + 2048, -2048)
    srd(A, 40, P_WS, SZ_XF, WS_XF)

    def acc(blk, j):
        if blk < 14: return v(32 + (blk * 4 + j) * 4, 4)
        return a(((blk - 14) * 4 + j) * 4, 4)
    Afr = lambda blk, h=None: a(192 + (blk % 11) * 4, 4) if h is None else a(192 + (blk % 11) * 4 + 2 * h, 2)
    Bfr = lambda slot, j: a(128 + slot * 16 + j * 4, 4)
    NEXTK = ["s_add_u32 s12, s11, s14", "s_and_b32 s12, s12, 7", "s_and_b32 s13, s11, 0x18", "s_or_b32 s12, s12, s13",
             "s_add_u32 s11, s11, 1", "s_lshl_b32 s6, s12, 18", "s_mul_i32 s7, s12, 229376", "s_lshl_b32 s8, s12, 10"]
    def d_ops(p, h):
        base = (p % 4) * 24576 + h * 12288
        return [((NEXTK if h == 0 else []) + [f"s_add_u32 m0, s10, {base}"], "buffer_load_dwordx4 v2, s[44:47], s6 offen lds", ("D", p, h), ["s_add_u32 s6, s6, 131072"] if h == 0 else []),
                ([], "buffer_load_dwordx4 v3, s[48:51], s7 offen offset:1024 lds", ("D", p, h), []),
                ([], "buffer_load_dwordx4 v3, s[52:55], s7 offen offset:2048 lds", ("D", p, h), ["s_add_u32 s7, s7, 114688"] if h == 0 else [])]
    def x_ops(p):
        return [([], f"buffer_load_dwordx4 {Bfr(p % 4, j)}, v{5+j}, s[40:43], s8 offen {apol if ln else ''}", ("X", p), []) for j in range(4)]
    def rd_ops(t, blk):
        part, cb = (1 + (blk & 1), blk >> 1) if blk < 14 else (0, blk - 14)
        slot = t % 4
        reg = (9 if slot < 2 else 17) + cb
        off = (slot % 2) * 24576 + part * 1024
        return [(f"ds_read_b64_tr_b16 {Afr(blk,0)}, v{reg} offset:{off}", ("A", t, blk)),
                (f"ds_read_b64_tr_b16 {Afr(blk,1)}, v{reg} offset:{off+3072}", ("A", t, blk))]
    def emit_vm(op, E, nop=False):
        pre, ins, tag, post = op
        E(pre)
        if pre and nop: E("s_nop 0")
        E(ins); vq.issue(tag); E(post)
    def kv_ops(kind, P):
        reg = 0 if kind == "K" else 65536
        sr = "s[64:67]" if kind == "K" else "s[68:71]"
        ops = []
        for i in range(4):
            ops.append(([f"s_add_u32 m0, s92, {reg + (P % 4) * 16384}", f"s_add_u32 s94, s93, {P * 16384}"] if i == 0 else [],
                        f"buffer_load_dwordx4 v{25+i if kind == 'K' else 29}, {sr}, s94 offen offset:{i*1024} lds", (kind, P), []))
        return ops
    def pf_op(k):
        return [([], f"buffer_load_dword a239, v31, {'s[72:75], s96' if k == 0 else 's[80:83], s97'} offen", ("P", 0), [f"s_add_u32 s{96+k}, s{96+k}, 1024"])]
    for op in d_ops(0, 0) + d_ops(0, 1): emit_vm(op, A.e, True)
    A.e("s_mov_b32 s88, s8")
    if cpf:
        A.e(["s_getpc_b64 s[12:13]"]); A.label(L("pc"))
        A.e([f"s_sub_u32 s12, s12, {L('pc')}-{name}", "s_subb_u32 s13, s13, 0",
             "s_lshr_b32 s9, s2, 3", "s_lshl_b32 s9, s9, 2", "s_add_u32 s9, s9, s3", "s_lshl_b32 s9, s9, 9",
             "v_and_b32 v30, 3, v0", "v_lshlrev_b32 v30, 7, v30", "v_add_u32 v30, s9, v30",
             "v_and_b32 v1, 4, v0", "v_lshl_add_u32 v30, v1, 14, v30",
             f"v_min_u32 v30, {name}_codeend-{name}-4, v30",
             "global_load_dword a238, v30, s[12:13]"])
    A.e(["v_lshrrev_b32 v1, 4, v0", "v_mul_u32_u24 v30, 6144, v1", "v_and_b32 v1, 1, v1",
         "v_bfe_u32 v31, v0, 2, 2", "v_lshl_add_u32 v30, v31, 8, v30", "v_lshl_or_b32 v31, v31, 1, v1",
         "v_and_b32 v1, 3, v0", "v_lshl_add_u32 v30, v1, 3, v30", "v_add_u32 v30, 0x10000, v30"])
    for cb in range(8):
        A.e([f"v_xor_b32 v1, {cb}, v31", f"v_lshl_add_u32 v{9+cb}, v1, 5, v30", f"v_add_u32 v{17+cb}, 49152, v{9+cb}"])
    srd(A, 84, P_WS, FL_SZ, WS_FLAG)
    srd(A, 64, P_K, 4 * 2048 * 256)
    srd(A, 68, P_V, 4 * 2048 * 256)
    srd(A, 56, P_WS, SZ_HF, WS_HF)
    A.e(["s_lshr_b32 s12, s91, 1", "s_lshl_b32 s12, s12, 15", "s_and_b32 s13, s91, 1", "s_lshl_b32 s13, s13, 7", "s_add_u32 s90, s12, s13",
         "v_lshlrev_b32 v43, 8, v41", "v_lshl_add_u32 v43, v40, 4, v43",
         "v_lshlrev_b32 v44, 4, v40", "s_lshl_b32 s12, s3, 2", "v_add_u32 v45, s12, v44"])
    A.e(["v_lshrrev_b32 v30, 4, v0", "v_and_b32 v31, 15, v0", "v_xor_b32 v1, v31, v30"])
    for i in range(4):
        A.e([f"v_xor_b32 v{25+i}, {4*i}, v1", f"v_lshlrev_b32 v{25+i}, 4, v{25+i}", f"v_lshl_add_u32 v{25+i}, v30, 8, v{25+i}"])
    A.e(["v_lshlrev_b32 v1, 2, v30", "v_xor_b32 v1, v31, v1", "v_lshlrev_b32 v1, 4, v1", "v_lshl_add_u32 v29, v30, 8, v1",
         "s_lshr_b32 s12, s5, 3", "s_lshl_b32 s12, s12, 19", "s_lshl_b32 s92, s3, 12",
         "s_add_u32 s93, s12, s92", f"s_add_u32 s93, s93, {1536*256}",
         "s_mov_b32 s9, 7"])
    if pfG:
        srd(A, 72, P_WO, 4096 * 2048); srd(A, 80, P_WD, 3584 * 2048)
        A.e(["s_lshl_b32 s12, s2, 2", "s_add_u32 s12, s12, s3", "s_lshl_b32 s96, s12, 13", "s_mul_i32 s97, s12, 7168",
             "v_and_b32 v31, 7, v0", "v_lshlrev_b32 v31, 7, v31"])
    A.e(["v_and_b32 v131, 31, v0", "v_lshlrev_b32 v131, 5, v131", "s_lshl_b32 s95, s4, 10", f"s_add_u32 s95, s95, {FL_L}",
         "s_lshl_b32 s91, s91, 5", f"s_add_u32 s91, s91, {FL_L}"])
    A.e([f"v_accvgpr_write_b32 a{i}, 0" for i in range(128)] + [f"v_mov_b32 v{i}, 0" for i in range(132, 256)])
    stamp(1, True)
    A.e(vq.need(("L", 0)))
    stamp(2, True)
    A.e(f"buffer_load_dwordx2 v[128:129], v47, s[60:63], 0 offen {WT}"); vq.issue(("N", 0))
    X0 = 64
    for i in range(16):
        A.e([f"v_lshlrev_b32 v{X0+2*i}, 16, v{48+i}", f"v_and_b32 v{X0+1+2*i}, 0xffff0000, v{48+i}"])
    def reduce(src, off):
        A.e(["s_nop 1", f"v_add_f32_dpp v{src}, v{src}, v{src} row_ror:8 row_mask:0xf bank_mask:0xf",
             f"v_mov_b32 v46, v{src}", "s_nop 1", f"v_permlane16_swap_b32 v46, v{src}", f"v_add_f32 v{src}, v46, v{src}",
             f"v_mov_b32 v46, v{src}", "s_nop 1", f"v_permlane32_swap_b32 v46, v{src}", f"v_add_f32 v{src}, v46, v{src}",
             f"ds_write_b32 v45, v{src} offset:{off}", "s_waitcnt lgkmcnt(0)", "s_barrier",
             f"ds_read_b128 v[36:39], v44 offset:{off}", "s_waitcnt lgkmcnt(0)",
             "v_add_f32 v36, v36, v37", "v_add_f32 v38, v38, v39", f"v_add_f32 v{src}, v36, v38"])
    A.e([f"v_pk_add_f32 v[32:33], v[{X0}:{X0+1}], v[{X0+2}:{X0+3}]"] + [f"v_pk_add_f32 v[32:33], v[32:33], v[{X0+2*i}:{X0+2*i+1}]" for i in range(2, 16)])
    A.e("v_add_f32 v32, v32, v33")
    reduce(32, 0)
    A.e(["v_mul_f32 v32, 0x3a800000, v32", "v_mov_b32 v33, v32"])
    for i in range(16):
        A.e(f"v_pk_add_f32 v[{96+2*i}:{97+2*i}], v[{X0+2*i}:{X0+2*i+1}], v[32:33] neg_lo:[0,1] neg_hi:[0,1]")
    A.e("v_pk_mul_f32 v[34:35], v[96:97], v[96:97]")
    for i in range(1, 16):
        A.e(f"v_pk_fma_f32 v[34:35], v[{96+2*i}:{97+2*i}], v[{96+2*i}:{97+2*i}], v[34:35]")
    A.e("v_add_f32 v34, v34, v35")
    reduce(34, 256)
    A.e(["v_mul_f32 v34, 0x3a800000, v34", "v_cvt_pk_bf16_f32 v34, v34, v32", "v_and_b32 v32, 0xffff0000, v34", "v_lshlrev_b32 v34, 16, v34",
         "v_add_f32 v34, 0x3727c5ac, v34", "v_cvt_pk_bf16_f32 v34, v34, v34", "v_lshlrev_b32 v34, 16, v34",
         "v_sqrt_f32 v34, v34", "v_mov_b32 v33, v32", "v_cvt_pk_bf16_f32 v34, v34, v34", "v_lshlrev_b32 v34, 16, v34",
         "v_rcp_f32 v34, v34", "s_nop 0", "v_mov_b32 v35, v34"])
    for q4 in range(4):
        for i in range(4 * q4, 4 * q4 + 4):
            x = X0 + 2 * i
            A.e([f"v_pk_add_f32 v[{x}:{x+1}], v[{x}:{x+1}], v[32:33] neg_lo:[0,1] neg_hi:[0,1]",
                 f"v_cvt_pk_bf16_f32 v{48+i}, v{x}, v{x+1}",
                 f"v_lshlrev_b32 v{x}, 16, v{48+i}", f"v_and_b32 v{x+1}, 0xffff0000, v{48+i}",
                 f"v_pk_mul_f32 v[{x}:{x+1}], v[{x}:{x+1}], v[34:35]",
                 f"v_cvt_pk_bf16_f32 v{48+i}, v{x}, v{x+1}"])
        A.e(f"buffer_store_dwordx4 v[{48+4*q4}:{51+4*q4}], v43, s[40:43], s90 offen offset:{2048*(q4%2)} {WT}"); vq.issue(("S", 0))
        if q4 == 1: A.e("s_add_u32 s90, s90, 4096")
    stamp(3, True)
    A.e(vq.need(("N", 0)))
    A.label(L("pollN"))
    A.e(["v_readfirstlane_b32 s98, v128", "v_readfirstlane_b32 s99, v129", "s_cmp_lg_u32 s98, 0", f"s_cbranch_scc1 {L('gotN')}",
         f"buffer_load_dwordx2 v[128:129], v47, s[60:63], 0 offen {WT}", "s_waitcnt vmcnt(0)", f"s_branch {L('pollN')}"])
    A.label(L("gotN"))
    A.e([f"v_mov_b32 v{i}, 0" for i in range(64, 128)])
    A.e(vq.drain()); A.e("s_barrier")
    stamp(4, True)
    A.e(["s_cmp_lg_u32 s3, 0", f"s_cbranch_scc1 {L('gotL')}", "s_mov_b64 exec, 1",
         f"buffer_store_dwordx2 v[128:129], v47, s[84:87], s91 offen {WT}", "s_mov_b64 exec, -1"])
    A.label(L("pollL"))
    A.e([f"buffer_load_dwordx2 v[128:129], v131, s[84:87], s95 offen {WT}", "s_waitcnt vmcnt(0)",
         "v_cmp_ne_u64 vcc, s[98:99], v[128:129]", f"s_cbranch_vccz {L('gotL')}", f"s_sleep {psleep}", f"s_branch {L('pollL')}"])
    A.label(L("gotL"))
    A.e(["s_cmp_eq_u32 s3, 0", f"s_cbranch_scc1 {L('w0')}"])
    sv = list(vq.q)
    A.e(["s_mov_b32 s76, s11"])
    for op in d_ops(1, 0) + d_ops(1, 1) + d_ops(2, 0) + d_ops(2, 1): emit_vm(op, A.e, True)
    A.e(["s_mov_b32 s11, s76", "s_barrier"])
    def xs(first):
        for p_ in (0, 1, 2):
            if p_: A.e(NEXTK)
            if p_ and first:
                for h in (0, 1):
                    for k, op in enumerate(d_ops(p_, h)):
                        emit_vm((op[0][-1:] if k == 0 else [], op[1], op[2], op[3]), A.e, True)
            for op in x_ops(p_): A.e(op[1].replace("s8 offen", "s88 offen") if p_ == 0 else op[1]); vq.issue(op[2])
    def tail(tag):
        for op in d_ops(3, 0): emit_vm(op, A.e, True)
        srd(A, 60, P_WS, SZ_OF, WS_OF)
        A.e([f"v_mov_b32 v{i}, 0" for i in list(range(32, 64)) + [128, 129, 130, 131]])
        dq.q = []
        for blk in range(11):
            for ins, tg in rd_ops(0, blk): A.e(ins); dq.issue(tg)
        A.e(vq.need(tag))
    xs(False); tail(("X", 2))
    A.e(f"s_branch {L('w1')}")
    A.label(L("w0"))
    A.e("s_barrier")
    vq.q = sv
    xs(True); tail(("X", 0))
    A.label(L("w1"))
    stamp(1)

    BARM = 47
    def step(t, E, first_ops=None, second_ops=None, last=False):
        v1 = d_ops(t + 3, 1) + x_ops(t + 3) if first_ops is None else first_ops
        v2_ = d_ops(t + 4, 0) if second_ops is None else second_ops
        if pfG and second_ops is None and t % 2 == 0: v2_ = v2_ + pf_op((t // 2) % 2)
        def spread(n, lo, hi):
            c = [m for m in range(lo, hi) if m % 4 == 2]
            if n == 0: return []
            return [c[(i * len(c)) // n] for i in range(n)]
        sched = list(zip(spread(len(v1), 2, 44), v1)) + list(zip(spread(len(v2_), 54, 88), v2_))
        pend = []; post = []; pre = list(sched[0][1][0]) if sched else []; vi = 0
        for m in range(88):
            blk, j = m // 4, m % 4
            if m == 0: E(vq.need(("X", t)))
            if j == 0: E(dq.need(("A", t, blk)))
            E(mfma16(acc(blk, j), Afr(blk), Bfr(t % 4, j)))
            if m == BARM:
                E(vq.need(("D", t + 1, 1))); E(dq.drain()); E("s_barrier")
            if j == 3:
                if blk < 11: pend += rd_ops(t, blk + 11)
                elif not last: pend += rd_ops(t + 1, blk - 11)
            if vi < len(sched) and m == sched[vi][0]:
                assert not pre, (t, m, pre)
                op = sched[vi][1]
                E(op[1]); vq.issue(op[2]); post += op[3]; vi += 1
                if vi < len(sched): pre = list(sched[vi][1][0])
            else:
                used = 0
                if pend:
                    ins, tag = pend.pop(0); E(ins); dq.issue(tag); used += 1
                while post and used < 2: E(post.pop(0)); used += 1
                while pre and used < 2 and not post and not (sched[vi][0] > BARM and m < BARM - 8): E(pre.pop(0)); used += 1
        for ins, tag in pend: E(ins); dq.issue(tag)
        E(post)
    for t in range(4): step(t, lambda x: None)
    vq.rebase(4); dq.rebase(4)
    A.raw(".p2align 6")
    A.label(L("loop"))
    for t in range(4): step(t, A.e)
    A.e(["s_sub_u32 s9, s9, 1", "s_cmp_lg_u32 s9, 0", f"s_cbranch_scc1 {L('loop')}"])
    vq.rebase(4); dq.rebase(4)
    step(0, A.e, None, kv_ops("K", 0) + kv_ops("K", 1))
    step(1, A.e, kv_ops("K", 2) + kv_ops("K", 3), kv_ops("V", 0) + kv_ops("V", 1))
    step(2, A.e, kv_ops("V", 2), kv_ops("V", 3) + (pf_op(0) if pfG else []))
    step(3, A.e, [], [], last=True)
    stamp(2)

    HP = "" if hwb else WT
    A.e(["s_mul_i32 s6, s15, 114688", "s_mul_i32 s12, s5, 7", "s_add_u32 s12, s12, 1", "s_lshr_b32 s12, s12, 1", "s_lshl_b32 s12, s12, 10",
         "s_add_u32 s6, s6, s12",
         "s_and_b32 s13, s5, 1", "s_cmp_eq_u32 s13, 0", "s_mov_b32 s13, 0xfffffc08", "s_cselect_b32 s13, 0xc00, s13",
         "s_add_u32 s7, s6, s13",
         "s_mov_b32 s8, 0xbfb8aa3b", "s_mov_b32 s9, 0xbfb8aa3b"])
    def hblock(b, j, dst):
        g = 32 + ((2 * b) * 4 + j) * 4; u = g + 16
        out = []
        out += [f"v_pk_mul_f32 v[{g+r_}:{g+r_+1}], v[{g+r_}:{g+r_+1}], s[8:9]" for r_ in (0, 2)]
        out += [f"v_exp_f32 v{g+r_}, v{g+r_}" for r_ in range(4)]
        out += [f"v_pk_add_f32 v[{g+r_}:{g+r_+1}], v[{g+r_}:{g+r_+1}], 1.0 op_sel_hi:[1,0]" for r_ in (0, 2)]
        out += [f"v_rcp_f32 v{g+r_}, v{g+r_}" for r_ in range(4)]
        out += [f"v_pk_mul_f32 v[{g+r_}:{g+r_+1}], v[{g+r_}:{g+r_+1}], v[{u+r_}:{u+r_+1}]" for r_ in (0, 2)]
        out += [f"v_cvt_pk_bf16_f32 v{dst}, v{g}, v{g+1}", f"v_cvt_pk_bf16_f32 v{dst+1}, v{g+2}, v{g+3}"]
        return out
    for j in range(4):
        for i in range(3):
            dst = 32 + ((4 * i + 1) * 4 + j) * 4
            A.e(hblock(2 * i, j, dst)); A.e(hblock(2 * i + 1, j, dst + 2))
            A.e(f"buffer_store_dwordx4 {v(dst,4)}, v4, s[56:59], s6 offen offset:{i*1024} {HP}"); vq.issue(("H", 0))
        dst = 32 + (13 * 4 + j) * 4
        A.e(hblock(6, j, dst))
        A.e(f"buffer_store_dwordx2 {v(dst,2)}, v4, s[56:59], s7 offen {HP}"); vq.issue(("H", 0))
        if j < 3: A.e(["s_add_u32 s6, s6, 114688", "s_add_u32 s7, s7, 114688"])
    QF = lambda mu, t: 32 + (mu * 8 + t) * 4
    SB = lambda b, mu: 96 + (b * 2 + mu) * 16
    NM = lambda mu: 160 + mu * 16
    PB = lambda b, mu: 192 + (b * 2 + mu) * 8
    EB = 224; VL = 232; VTS = 234; VT = 236
    A.e([f"s_mov_b32 s12, {QSCALE:#x}", f"s_mov_b32 s13, {QSCALE:#x}", f"s_mov_b32 s95, {thr:#x}"])
    for t in range(8):
        for mu in range(2):
            tmp = 96 + ((t * 2 + mu) % 4) * 8
            for x in range(2):
                src = (t * 4 + 2 * mu + x) * 4
                A.e([f"v_accvgpr_read_b32 v{tmp+4*x+r_}, a{src+r_}" for r_ in range(4)])
            A.e([f"v_pk_mul_f32 v[{tmp+2*k}:{tmp+2*k+1}], v[{tmp+2*k}:{tmp+2*k+1}], s[12:13]" for k in range(4)])
            q = QF(mu, t)
            A.e([f"v_cvt_pk_bf16_f32 v{q+k}, v{tmp+2*k}, v{tmp+2*k+1}" for k in range(4)])
            if (t * 2 + mu) > 0:
                pq = QF(*prev)
                A.e([f"v_permlane16_swap_b32 v{pq}, v{pq+2}", f"v_permlane16_swap_b32 v{pq+1}, v{pq+3}"])
            prev = (mu, t)
    A.e(["v_and_b32 v30, 31, v0", "v_lshrrev_b32 v31, 5, v0", "v_and_b32 v1, 15, v0", "v_xor_b32 v1, v1, v31",
         "v_lshlrev_b32 v30, 8, v30"])
    pq = QF(*prev)
    A.e([f"v_permlane16_swap_b32 v{pq}, v{pq+2}", f"v_permlane16_swap_b32 v{pq+1}, v{pq+3}"])
    for t in range(8):
        A.e([f"v_xor_b32 v{9+t}, {2*t}, v1", f"v_lshl_add_u32 v{9+t}, v{9+t}, 4, v30"])
    A.e(["v_bfe_u32 v1, v0, 2, 2", "v_lshlrev_b32 v30, 10, v31", "v_lshl_add_u32 v30, v1, 8, v30",
         "v_bfe_u32 v22, v0, 4, 1", "v_lshl_add_u32 v30, v22, 5, v30", "v_and_b32 v23, 3, v0", "v_lshl_add_u32 v30, v23, 3, v30",
         "v_add_u32 v30, 0x10000, v30"])
    for i in range(4):
        A.e([f"v_xor_b32 v23, {i}, v1", f"v_lshl_add_u32 v{17+i}, v23, 6, v30"])
    A.e(["v_lshlrev_b32 v21, 17, v22", "v_lshl_add_u32 v21, v31, 8, v21", "v_and_b32 v1, 15, v0", "v_lshl_add_u32 v21, v1, 4, v21"])
    A.e(["s_and_b32 s12, s2, 7", "s_lshr_b32 s72, s12, 2", "s_and_b32 s13, s12, 1", "s_lshl_b32 s73, s4, 1", "s_add_u32 s73, s73, s13",
         "s_bfe_u32 s13, s12, 0x10001", "s_lshl_b32 s13, s13, 2", "s_lshr_b32 s74, s2, 6", "s_add_u32 s74, s74, s13",
         "s_lshl_b32 s12, s72, 4", "s_sub_u32 s75, 128, s12", "s_lshl_b32 s46, s75, 16",
         "s_cmp_eq_u32 s72, 0",
         f"s_cselect_b32 s44, s{P_WO}, s{P_WD}", f"s_cselect_b32 s45, s{P_WO+1}, s{P_WD+1}", "s_and_b32 s45, s45, 0xffff",
         "s_lshr_b32 s12, s3, 1", "s_and_b32 s13, s3, 1",
         "s_mul_i32 s8, s12, s75", "s_lshl_b32 s9, s8, 9", "s_lshl_b32 s8, s8, 15",
         "s_lshl_b32 s13, s13, 12",
         "s_lshl_b32 s10, s12, 17", "s_add_u32 s10, s10, s13",
         "s_lshl_b32 s11, s12, 16", "s_add_u32 s11, s11, 0x8000", "s_add_u32 s11, s11, s13",
         "v_lshrrev_b32 v30, 4, v0", "v_and_b32 v31, 15, v0", "v_lshlrev_b32 v1, 2, v30", "v_xor_b32 v31, v31, v1",
         "s_lshl_b32 s13, s13, 3", "s_lshl_b32 s12, s74, 8", "s_add_u32 s12, s12, s13",
         "v_lshlrev_b32 v30, 11, v30", "v_add_u32 v30, s12, v30",
         "v_lshl_add_u32 v246, v31, 4, v30", "v_xor_b32 v31, 2, v31", "v_lshl_add_u32 v247, v31, 4, v30", "v_add_u32 v247, 7168, v247",
         "v_add_u32 v248, 14336, v246", "v_add_u32 v249, 14336, v247", "v_mov_b32 v250, s98", "v_mov_b32 v251, s99", "v_mov_b32 v252, 0"])
    srd(A, 48, P_WS, FL_SZ, WS_FLAG)
    for i in range(8):
        A.e([f"s_add_u32 s13, s14, {i}", "s_and_b32 s13, s13, 7", f"s_lshl_b32 s{80+i}, s13, 10"])
    WV = 246
    def w_ops(t):
        slot = t % 8
        ops = []
        for i in range(4):
            ops.append(([f"s_add_u32 m0, s{10 if slot < 4 else 11}, {(slot%4)*8192}", f"s_lshl_b32 s12, s{80+slot}, 6", "s_add_u32 s12, s12, s8"] if i == 0 else [],
                        f"buffer_load_dwordx4 v{WV+i}, s[44:47], s12 offen offset:{i*1024} lds", ("W", t),
                        ["s_add_u32 s8, s8, 0x80000"] if (i == 3 and slot == 7) else []))
        return ops

    Kf = lambda t: a(128 + t * 4, 4)
    Vf = lambda i, tp, h=None: a(160 + (i * 2 + tp) * 4, 4) if h is None else a(160 + (i * 2 + tp) * 4 + 2 * h, 2)
    Oacc = lambda i, mu: a((i * 2 + mu) * 16, 16)
    def k_reads(T): return [(f"ds_read_b128 {Kf(t)}, v{9+t} offset:{(T % 8) * 8192}", ("K", T, t)) for t in range(8)]
    def v_reads(T):
        return [(f"ds_read_b64_tr_b16 {Vf(i,tp,h)}, v{17+i} offset:{(T % 8) * 8192 + tp * 4096 + h * 2048}", ("V", T, i, tp))
                for i in range(4) for tp in range(2) for h in range(2)]
    def qk(T, c0):
        return [(mfma32(v(SB(T & 1, mu), 16), Kf(t), v(QF(mu, t), 4), (c0(mu) if t == 0 else None)), ("K", T, t)) for t in range(8) for mu in range(2)]
    def pv(T):
        return [(mfma32(Oacc(i, mu), Vf(i, tp), v(PB(T & 1, mu) + 4 * tp, 4), ("0" if (T == 0 and tp == 0) else None)), ("V", T, i, tp))
                for i in range(4) for tp in range(2) for mu in range(2)]
    A.e(vq.need(("V", 3))); A.e("s_barrier")
    dq.slack = 15
    for ins, tag in k_reads(0): A.e(ins); dq.issue(tag)
    for ins, tag in qk(0, lambda mu: "0"):
        A.e(dq.need(tag)); A.e(ins)
    for ins, tag in k_reads(1): A.e(ins); dq.issue(tag)
    A.e(["v_mov_b32 v232, 0", "v_mov_b32 v233, 0", "s_nop 7"])
    def rowmax(S, dst, tmp):
        out = [f"v_max3_f32 v{dst}, v{S}, v{S+1}, v{S+2}"]
        for k in range(3, 15, 2): out.append(f"v_max3_f32 v{dst}, v{dst}, v{S+k}, v{S+k+1}")
        out += [f"v_max_f32 v{dst}, v{dst}, v{S+15}", f"v_mov_b32 v{tmp}, v{dst}", "s_nop 1",
                f"v_permlane32_swap_b32 v{tmp}, v{dst}", f"v_max_f32 v{dst}, v{dst}, v{tmp}"]
        return out
    for mu in range(2):
        A.e(rowmax(SB(0, mu), VT + mu, VT + 2))
        A.e([f"v_sub_f32 v{NM(mu)+k}, 0, v{VT+mu}" for k in range(16)])
        A.e([f"v_sub_f32 v{SB(0,mu)+k}, v{SB(0,mu)+k}, v{VT+mu}" for k in range(16)])
    def sm(T):
        b = T & 1
        out = []
        def ex(n): return (f"v_exp_f32 v{EB + n % 8}, v{SB(b, n // 16) + n % 16}", 8)
        def fin(n):
            mu, r_ = n // 16, n % 16; e = EB + n % 8; o = []
            if r_ == 1: o.append((f"v_add_f32 v{VTS+mu}, v{EB + (n-1) % 8}, v{e}", 4))
            elif r_ > 1: o.append((f"v_add_f32 v{VTS+mu}, v{VTS+mu}, v{e}", 4))
            if r_ % 2 == 1: o.append((f"v_cvt_pk_bf16_f32 v{PB(b,mu) + r_//2}, v{EB + (n-1) % 8}, v{e}", 5))
            return o
        out.append(ex(0)); out.append(ex(1))
        for n in range(2, 32):
            out.append(ex(n)); out += fin(n - 2)
        out += fin(30) + fin(31)
        out += [(f"v_max_f32 v{VT}, v{VTS}, v{VTS+1}", 4), (f"v_cmp_nge_f32 vcc, s95, v{VT}", 4)]
        return out
    stamp(3)
    def flag_store(off_sreg):
        lab = L("fl%d" % A.nlabel); A.nlabel += 1
        A.e(["s_cmp_lg_u32 s3, 0", f"s_cbranch_scc1 {lab}", "s_mov_b64 exec, 1",
             f"buffer_store_dwordx2 v[250:251], v252, s[48:51], {off_sreg} offen {WT}", "s_mov_b64 exec, -1"])
        A.label(lab)
    rare_sites = []
    for T in range(17):
        mf = (qk(T + 1, lambda mu: v(NM(mu), 16)) if T + 1 <= 15 else []) + (pv(T - 1) if T >= 1 else [])
        nq = 16 if T + 1 <= 15 else 0
        va = ([(f"v_add_f32 v{VL}, v{VL}, v{VTS}", 4), (f"v_add_f32 v{VL+1}, v{VL+1}, v{VTS+1}", 4)] if T >= 1 else []) + (sm(T) if T <= 15 else [])
        rdv = v_reads(T - 1) if T >= 1 else []
        rdk = k_reads(T + 2) if T + 2 <= 15 else []
        vm = []
        if T % 2 == 0 and T <= 14:
            w = []
            if T == 2: w += vq.need(("H", 0))
            if T >= 6: w += vq.need(("K", (T + 2) // 2))
            if T >= 8: w += vq.need(("V", T // 2))
            A.e(w[-1:]); A.e(dq.drain()); A.e("s_barrier")
            if T == 2:
                A.e(["s_lshl_b32 s12, s4, 10", "s_lshl_b32 s13, s5, 5", "s_add_u32 s12, s12, s13", f"s_add_u32 s88, s12, {FL_H}", f"s_add_u32 s89, s12, {FL_O}"])
                if hwb:
                    lab = L("wb")
                    A.e(["s_cmp_lg_u32 s3, 0", f"s_cbranch_scc1 {lab}", "buffer_wbl2 sc1"]); A.label(lab)
                else: flag_store("s88")
            if T == 8 and hwb: flag_store("s88")
            if T <= 6: vm += kv_ops("K", T // 2 + 4)
            if 4 <= T <= 10: vm += kv_ops("V", T // 2 + 2)
            if T == 12: vm += w_ops(0) + w_ops(1)
        if T == 13: vm += w_ops(2) + w_ops(3)
        if pfT and T <= 14:
            pre = []
            if T == 0:
                pre = [f"s_mov_b32 s40, s{P_WO}", f"s_and_b32 s41, s{P_WO+1}, 0xffff", f"s_mov_b32 s42, {4096*2048:#x}",
                       f"s_mov_b32 s52, s{P_WD}", f"s_and_b32 s53, s{P_WD+1}, 0xffff", f"s_mov_b32 s54, {3584*2048:#x}",
                       "s_lshl_b32 s12, s2, 2", "s_add_u32 s12, s12, s3", "s_lshl_b32 s96, s12, 13", "s_mul_i32 s97, s12, 7168",
                       "v_and_b32 v22, 7, v0", "v_lshlrev_b32 v22, 7, v22", "v_add_u32 v24, 4096, v22"]
            k = T if T < 8 else T - 8
            vm += [(pre, f"buffer_load_dword v23, v{22 if k < 4 else 24}, {'s[40:43], s96' if T < 8 else 's[52:55], s97'} offen offset:{(k % 4) * 1024}", ("P", 0), [])]
        if nq == 0:
            for ins, tag in rdv: A.e(ins); dq.issue(tag)
            rdv = []
        n = len(mf)
        vml = []
        for op in vm:
            vml += [(x, 4, None) for x in op[0]] + ([("s_nop 0", 4, None)] if op[0] else []) + [(op[1], 8, op[2])] + [(x, 4, None) for x in op[3]]
        tot = sum(c for _, c in va) + 4 * (len(rdv) + len(rdk)) + sum(c for _, c, _ in vml)
        done = 0
        for m, (ins, tag) in enumerate(mf):
            w = dq.need(tag, dsl); A.e(w); A.e(ins)
            used = 4 * len(w)
            budget = max(cap, -(-(tot - done) // (n - m)) + 3) if m < n - 1 else 10 ** 6
            target = (tot * (m + 1)) // n + 6
            rd = rdv if (m < nq and rdv) else (rdk if (m >= nq and rdk) else None)
            if rd:
                ri, rt = rd.pop(0); A.e(ri); dq.issue(rt); used += 4; done += 4
                if rd is rdv and len(rd) > (nq - 3 - m):
                    ri, rt = rd.pop(0); A.e(ri); dq.issue(rt); used += 4; done += 4
            elif vml:
                x, c, tg = vml.pop(0); A.e(x); used += c; done += c
                if tg: vq.issue(tg)
                while vml and c == 4 and used < 12:
                    x, c, tg = vml.pop(0); A.e(x); used += c; done += c
                    if tg: vq.issue(tg)
            while va and used + va[0][1] <= budget and (done < target or m == n - 1):
                x, c = va.pop(0); A.e(x); used += c; done += c
        assert not rdv
        for ins, tag in rdk: A.e(ins); dq.issue(tag)
        for x, c, tg in vml:
            A.e(x)
            if tg: vq.issue(tg)
        for x, c in va: A.e(x)
        if T <= 15:
            A.e([f"s_cbranch_vccnz {L('rs%d' % T)}"])
            A.label(L("rb%d" % T))
            rare_sites.append(T)
    stamp(4)
    A.e(["s_lshl_b32 s6, s15, 17", "s_lshl_b32 s12, s5, 12", "s_add_u32 s6, s6, s12", "s_add_u32 s7, s6, 0x40000"])
    for mu in range(2):
        A.e([f"v_mov_b32 v{VT}, v{VL+mu}", "s_nop 1", f"v_permlane32_swap_b32 v{VT}, v{VL+mu}", f"v_add_f32 v{VT}, v{VT}, v{VL+mu}",
             f"v_rcp_f32 v{VT+2+2*mu}, v{VT}", "s_nop 0", f"v_mov_b32 v{VT+3+2*mu}, v{VT+2+2*mu}"])
    A.e("s_nop 4")
    cnt = 0
    for i in range(4):
        for mu in range(2):
            tmp = 96 + (cnt % 4) * 16; dst = 32 + cnt * 8; cnt += 1
            src = (i * 2 + mu) * 16
            A.e([f"v_accvgpr_read_b32 v{tmp+k}, a{src+k}" for k in range(16)])
            A.e([f"v_pk_mul_f32 v[{tmp+2*k}:{tmp+2*k+1}], v[{tmp+2*k}:{tmp+2*k+1}], v[{VT+2+2*mu}:{VT+3+2*mu}]" for k in range(8)])
            for s_ in range(2):
                for jj, j in enumerate((s_, s_ + 2)):
                    A.e([f"v_cvt_pk_bf16_f32 v{dst+4*s_+2*jj}, v{tmp+4*j}, v{tmp+4*j+1}", f"v_cvt_pk_bf16_f32 v{dst+4*s_+2*jj+1}, v{tmp+4*j+2}, v{tmp+4*j+3}"])
                A.e(f"buffer_store_dwordx4 {v(dst+4*s_,4)}, v21, s[60:63], s{6+mu} offen offset:{i*1024+s_*512} {WT}"); vq.issue(("O", 0))
    A.e(["s_lshl_b32 s42, s75, 17", f"s_mov_b32 s12, {WS_HF:#x}", "s_cmp_eq_u32 s72, 0", f"s_cselect_b32 s12, {WS_OF:#x}, s12",
         "s_cselect_b32 s90, 7, 6", f"s_cselect_b32 s91, {FL_O:#x}, {FL_H:#x}" if False else f"s_mov_b32 s91, {FL_H:#x}",
         f"s_cselect_b32 s91, {FL_O:#x}, s91",
         f"s_add_u32 s40, s{P_WS}, s12", f"s_addc_u32 s41, s{P_WS+1}, 0", "s_and_b32 s41, s41, 0xffff",
         "s_lshl_b32 s12, s4, 10", "s_add_u32 s91, s91, s12"])
    srd(A, 52, P_WS, SZ_GF, WS_GF)
    srd(A, 64, P_X, 2048 * 2048)
    srd(A, 68, P_OUT, 2048 * 2048)
    A.e(["s_lshr_b32 s6, s3, 1", "s_and_b32 s7, s3, 1",
         "s_lshl_b32 s12, s73, 3", "s_lshl_b32 s13, s7, 2", "s_add_u32 s12, s12, s13", "s_lshl_b32 s13, s6, 1", "s_lshl_b32 s94, s75, 10"])
    for jj in range(4):
        A.e([f"s_xor_b32 s93, s13, {jj}", "s_add_u32 s93, s93, s12", "s_mul_i32 s93, s93, s94", f"v_add_u32 v{5+jj}, s93, v4"])
    A.e(["v_lshrrev_b32 v1, 4, v0", "v_lshlrev_b32 v30, 10, v1", "v_and_b32 v1, 1, v1",
         "v_bfe_u32 v31, v0, 2, 2", "v_lshl_add_u32 v30, v31, 8, v30", "v_lshl_or_b32 v31, v31, 1, v1",
         "v_and_b32 v1, 3, v0", "v_lshl_add_u32 v30, v1, 3, v30",
         "s_lshl_b32 s12, s6, 17", "s_lshl_b32 s13, s6, 16", "s_add_u32 s13, s13, 0x8000"])
    for cb in range(8):
        A.e([f"v_xor_b32 v1, {cb}, v31", "v_lshl_add_u32 v1, v1, 5, v30", f"v_add_u32 v{9+cb}, s12, v1", f"v_add_u32 v{17+cb}, s13, v1"])
    A.e(["s_lshl_b32 s12, s73, 3", "s_add_u32 s12, s12, s74",
         "s_lshl_b32 s92, s12, 2", "s_add_u32 s92, s92, s3", "s_lshl_b32 s92, s92, 13",
         "s_lshl_b32 s93, s12, 7", "s_lshl_b32 s12, s3, 5", "s_add_u32 s93, s93, s12",
         "s_lshl_b32 s94, s73, 7", "s_lshl_b32 s12, s7, 6", "s_add_u32 s94, s94, s12", "s_lshl_b32 s12, s6, 5", "s_add_u32 s94, s94, s12",
         "s_lshl_b32 s94, s94, 11", "s_lshl_b32 s12, s74, 8", "s_add_u32 s94, s94, s12",
         "v_and_b32 v1, 15, v0", "v_lshlrev_b32 v1, 11, v1", "v_lshrrev_b32 v30, 4, v0",
         "v_lshl_add_u32 v25, v30, 3, v1", "v_add_u32 v26, 0x8000, v25",
         "v_lshl_add_u32 v27, v30, 4, v1", "v_add_u32 v28, 0x8000, v27",
         "s_lshl_b32 s12, s3, 14", "v_add_u32 v2, s12, v4", "s_xor_b32 s12, s12, 0x8000", "v_add_u32 v3, s12, v4",
         "v_lshlrev_b32 v29, 5, v0", "v_and_b32 v29, 0x3e0, v29"])
    A.e(vq.need(("O", 0)))
    A.e("s_barrier")
    flag_store("s89")
    for t in range(4, 7):
        for op in w_ops(t): emit_vm(op, A.e, True)
    for i in range(32, 160): A.e(f"v_mov_b32 v{i}, 0")
    stamp(5)
    A.e(["s_cmp_lg_u32 s3, 0", f"s_cbranch_scc1 {L('gotA')}"])
    A.label(L("pollA"))
    A.e([f"buffer_load_dwordx2 v[30:31], v29, s[48:51], s91 offen {WT}", "s_waitcnt vmcnt(0)",
         "v_cmp_ne_u64 vcc, s[98:99], v[30:31]", f"s_cbranch_vccz {L('gotA')}", "s_sleep 2", f"s_branch {L('pollA')}"])
    A.label(L("gotA"))
    A.e(vq.drain()); A.e("s_barrier")
    facc = lambda cb, jj: v(32 + (cb * 4 + jj) * 4, 4)
    FA = lambda cb, h=None: a(128 + cb * 4, 4) if h is None else a(128 + cb * 4 + 2 * h, 2)
    FB = lambda slot, jj: a(slot * 16 + jj * 4, 4)
    def a_ops(t):
        slot = t % 8
        return [([f"s_add_u32 s13, s{80+slot}, s9"] if jj == 0 else [],
                 f"buffer_load_dwordx4 {FB(slot,jj)}, v{5+jj}, s[40:43], s13 offen {apol}", ("X", t),
                 ["s_add_u32 s9, s9, 0x2000"] if (jj == 3 and slot == 7) else []) for jj in range(4)]
    def frd(t, cb):
        slot = t % 8
        reg = (9 if slot < 4 else 17) + cb; off = (slot % 4) * 8192
        return [(f"ds_read_b64_tr_b16 {FA(cb,0)}, v{reg} offset:{off}", ("A", t, cb)),
                (f"ds_read_b64_tr_b16 {FA(cb,1)}, v{reg} offset:{off+4096}", ("A", t, cb))]
    for t in range(7):
        for op in a_ops(t): emit_vm(op, A.e)
    dq.slack = 8
    for cb in range(8):
        for ins, tag in frd(0, cb): A.e(ins); dq.issue(tag)
    stamp(6)
    def fstep(t, E, last=False, extra=None):
        vops = (w_ops(t + 7) + a_ops(t + 7)) if (not last or t % 8 == 0) else []
        if extra: vops = vops + extra
        isbar = (t % 2 == 1)
        doread = not (last and t % 8 == 7)
        pend = []; vi = 0; post = []; pre = list(vops[0][0]) if vops else []
        for m in range(32):
            cb, jj = m // 4, m % 4
            if m == 0: E(vq.need(("X", t)))
            if jj == 0: E(dq.need(("A", t, cb)))
            E(mfma16(facc(cb, jj), FA(cb), FB(t % 8, jj)))
            if isbar and m == barpos:
                E(vq.need(("W", t + 2))); E(dq.drain()); E("s_barrier")
            if jj == 3 and doread: pend += frd(t + 1, cb)
            if vi < len(vops) and m == vpos[vi]:
                assert not pre
                E(vops[vi][1]); vq.issue(vops[vi][2]); post += vops[vi][3]; vi += 1
                if vi < len(vops): pre = list(vops[vi][0])
            else:
                used = 0
                if not (isbar and m < barpos) and pend:
                    ins, tag = pend.pop(0); E(ins); dq.issue(tag); used += 1
                while pre and used < 2: E(pre.pop(0)); used += 1
                if post and used < 2: E(post.pop(0))
        for ins, tag in pend: E(ins); dq.issue(tag)
        E(post)
    entry = list(vq.q)
    for t in range(8): fstep(t, lambda x: None)
    vq.rebase(8); dq.rebase(8)
    steady = list(vq.q); sdq = list(dq.q)
    vq.q = entry; dq.q = [("A", 0, cb) for cb in range(8) for _ in range(2)] if not stamps else []
    for t in range(8): fstep(t, A.e)
    vq.rebase(8); dq.rebase(8)
    assert vq.q == steady, (vq.q, steady)
    A.e("s_sub_u32 s90, s90, 1")
    A.raw(".p2align 6")
    A.label(L("floop"))
    for t in range(8): fstep(t, A.e)
    A.e(["s_sub_u32 s90, s90, 1", "s_cmp_lg_u32 s90, 0", f"s_cbranch_scc1 {L('floop')}"])
    vq.rebase(8); dq.rebase(8)
    xr = lambda cb, jj: v(160 + (cb * 2 + jj) * 2, 2)
    xops = [([], f"buffer_load_dwordx2 {xr(cb,jj)}, v{25+jj}, s[64:67], s94 offen offset:{cb*32}", ("R", 0), []) for cb in range(8) for jj in range(2)]
    for t in range(8):
        fstep(t, A.e, last=True, extra=xops[:8] if t == 2 else xops[8:] if t == 3 else None)
    stamp(7)
    A.e(["v_mov_b32 v29, 0", "v_mov_b32 v22, s98", "v_mov_b32 v23, s99", "s_nop 6"])
    for cb in range(8):
        for jj in (2, 3):
            A.e(f"ds_write_b128 v2, {facc(cb,jj)} offset:{(cb*2+jj-2)*1024}")
    A.e(["s_waitcnt lgkmcnt(0)", "s_barrier"])
    pr = lambda cb, jj: v(192 + (cb * 2 + jj) * 4, 4)
    for cb in range(8):
        for jj in range(2):
            A.e(f"ds_read_b128 {pr(cb,jj)}, v3 offset:{(cb*2+jj)*1024}")
    A.e(["s_cmp_eq_u32 s72, 0", f"s_cbranch_scc1 {L('sepi')}"])
    A.e(["s_waitcnt vmcnt(0)", "s_mov_b32 s8, 0xbfb8aa3b", "s_mov_b32 s9, 0xbfb8aa3b"])
    for jj in range(2):
        for i in range(4):
            dst = 160 + (jj * 4 + i) * 4
            for h in range(2):
                cb = 2 * i + h
                A.e(f"s_waitcnt lgkmcnt({15 - (cb*2+jj)})")
                b = 32 + (cb * 4 + jj) * 4; p = 192 + (cb * 2 + jj) * 4
                A.e([f"v_pk_add_f32 v[{b+r_}:{b+r_+1}], v[{b+r_}:{b+r_+1}], v[{p+r_}:{p+r_+1}]" for r_ in (0, 2)])
                A.e([f"v_pk_mul_f32 v[{p+r_}:{p+r_+1}], v[{b+r_}:{b+r_+1}], s[8:9]" for r_ in (0, 2)])
                A.e([f"v_exp_f32 v{p+r_}, v{p+r_}" for r_ in range(4)])
                A.e([f"v_pk_add_f32 v[{p+r_}:{p+r_+1}], v[{p+r_}:{p+r_+1}], 1.0 op_sel_hi:[1,0]" for r_ in (0, 2)])
                A.e([f"v_rcp_f32 v{p+r_}, v{p+r_}" for r_ in range(4)])
                A.e([f"v_pk_mul_f32 v[{b+r_}:{b+r_+1}], v[{b+r_}:{b+r_+1}], v[{p+r_}:{p+r_+1}]" for r_ in (0, 2)])
                A.e([f"v_cvt_pk_bf16_f32 v{dst+2*h}, v{b}, v{b+1}", f"v_cvt_pk_bf16_f32 v{dst+2*h+1}, v{b+2}, v{b+3}"])
            A.e(f"buffer_store_dwordx4 {v(dst,4)}, v4, s[52:55], s92 offen offset:{i*1024} {WT}")
            if i == 3: A.e("s_add_u32 s92, s92, 4096")
    A.e(["s_waitcnt vmcnt(0)", "s_mov_b64 exec, 1",
         f"buffer_store_dwordx2 v[22:23], v29, s[48:51], s93 offen {WT}", "s_mov_b64 exec, -1", f"s_branch {L('fin')}"])
    A.label(L("sepi"))
    A.label(L("poll"))
    A.e([f"buffer_load_dwordx2 v[30:31], v29, s[48:51], s93 offen {WT}", "s_waitcnt vmcnt(0)",
         "v_cmp_ne_u64 vcc, s[98:99], v[30:31]", f"s_cbranch_vccz {L('got')}", "s_sleep 1", f"s_branch {L('poll')}"])
    A.label(L("got"))
    gb = lambda jj, i: 32 + ((jj * 4 + i) * 4 + 2) * 4
    for jj in range(2):
        for i in range(4):
            A.e(f"buffer_load_dwordx4 {v(gb(jj,i),4)}, v4, s[52:55], s92 offen offset:{i*1024} {WT}")
        A.e("s_add_u32 s92, s92, 4096")
    A.e("s_waitcnt lgkmcnt(0)")
    for cb in range(8):
        for jj in range(2):
            b = 32 + (cb * 4 + jj) * 4; p = 192 + (cb * 2 + jj) * 4; x = 160 + (cb * 2 + jj) * 2
            A.e([f"v_pk_add_f32 v[{b+r_}:{b+r_+1}], v[{b+r_}:{b+r_+1}], v[{p+r_}:{p+r_+1}]" for r_ in (0, 2)])
            A.e([f"v_lshlrev_b32 v{p}, 16, v{x}", f"v_and_b32 v{p+1}, 0xffff0000, v{x}",
                 f"v_lshlrev_b32 v{p+2}, 16, v{x+1}", f"v_and_b32 v{p+3}, 0xffff0000, v{x+1}"])
    for jj in range(2):
        for i in range(4):
            A.e("s_waitcnt vmcnt(7)")
            g = gb(jj, i); o = g + 4
            for h in range(2):
                cb = 2 * i + h
                b = 32 + (cb * 4 + jj) * 4; p = 192 + (cb * 2 + jj) * 4
                A.e([f"v_lshlrev_b32 v8, 16, v{g+2*h}", f"v_and_b32 v9, 0xffff0000, v{g+2*h}",
                     f"v_lshlrev_b32 v10, 16, v{g+2*h+1}", f"v_and_b32 v11, 0xffff0000, v{g+2*h+1}"])
                A.e([f"v_pk_fma_f32 v[{p+r_}:{p+r_+1}], v[{b+r_}:{b+r_+1}], v[{8+r_}:{9+r_}], v[{p+r_}:{p+r_+1}]" for r_ in (0, 2)])
                A.e([f"v_cvt_pk_bf16_f32 v{o+2*h}, v{p}, v{p+1}", f"v_cvt_pk_bf16_f32 v{o+2*h+1}, v{p+2}, v{p+3}"])
            A.e(["s_nop 1", f"v_permlane32_swap_b32 v{o}, v{o+2}", f"v_permlane32_swap_b32 v{o+1}, v{o+3}", "s_nop 0",
                 f"v_permlane16_swap_b32 v{o}, v{o+2}", f"v_permlane16_swap_b32 v{o+1}, v{o+3}",
                 f"buffer_store_dwordx4 {v(o,4)}, v{27+jj}, s[68:71], s94 offen offset:{i*64}"])
    A.label(L("fin"))
    if stamps:
        srd(A, 40, P_WS, 0x100000, WS_STAMP)
        A.e(["s_waitcnt vmcnt(0)", "s_memtime s[76:77]", "s_memrealtime s[78:79]", "s_waitcnt lgkmcnt(0)",
             "v_mov_b32 v8, s76", "v_mov_b32 v9, s78", "v_mov_b32 v10, s72", "v_mov_b32 v11, 0",
             "s_lshl_b32 s10, s2, 2", "s_add_u32 s10, s10, s3", "s_lshl_b32 s10, s10, 7", "v_mov_b32 v1, s10", "s_mov_b64 exec, 1"])
        for k in range(4): A.e(f"buffer_store_dwordx4 a[{240+4*k}:{243+4*k}], v1, s[40:43], 0 offen offset:{16*k}")
        A.e("buffer_store_dwordx4 v[8:11], v1, s[40:43], 0 offen offset:64")
    if dbgst:
        srd(A, 40, P_DBG, 256)
        A.e(["s_and_b32 s10, s2, 0xfb", "s_or_b32 s10, s10, s3", "s_cmp_lg_u32 s10, 0", f"s_cbranch_scc1 {L('end')}", "s_mov_b64 exec, 1",
             "v_accvgpr_read_b32 v12, a241", "s_lshl_b32 s10, s2, 3", "v_mov_b32 v1, s10"])
        for k in range(1, 8): A.e([f"v_accvgpr_read_b32 v13, a{241+2*k}", f"v_sub_u32 v{15+k}, v13, v12"])
        A.e(["v_sub_u32 v23, v9, v12", "buffer_store_dwordx4 v[16:19], v1, s[40:43], 0 offen", "buffer_store_dwordx4 v[20:23], v1, s[40:43], 0 offen offset:16"])
    A.label(L("end"))
    A.e("s_endpgm")
    for T in rare_sites:
        A.label(L("rs%d" % T))
        A.e([f"s_call_b64 s[6:7], {L('rare%d' % (T & 1))}", f"s_branch {L('rb%d' % T)}"])
    for b in range(2):
        A.label(L("rare%d" % b))
        A.e(["s_nop 15", "s_nop 15"])
        for mu in range(2):
            S = SB(b, mu); S2 = SB(b ^ 1, mu)
            A.e(rowmax(S, VT, VT + 2))
            A.e([f"v_max_f32 v{VT}, 0, v{VT}", f"v_exp_f32 v{VT+1}, -v{VT}"])
            A.e([f"v_sub_f32 v{NM(mu)+k}, v{NM(mu)+k}, v{VT}" for k in range(16)])
            A.e([f"v_sub_f32 v{S+k}, v{S+k}, v{VT}" for k in range(16)])
            A.e([f"v_sub_f32 v{S2+k}, v{S2+k}, v{VT}" for k in range(16)])
            A.e(f"v_mul_f32 v{VL+mu}, v{VL+mu}, v{VT+1}")
            for i in range(4):
                o = (i * 2 + mu) * 16
                for k in range(16):
                    A.e([f"v_accvgpr_read_b32 v{VT+2}, a{o+k}", f"v_mul_f32 v{VT+2}, v{VT+2}, v{VT+1}", f"v_accvgpr_write_b32 a{o+k}, v{VT+2}"])
            for k in range(0, 16, 2):
                A.e([f"v_exp_f32 v{EB}, v{S+k}", f"v_exp_f32 v{EB+1}, v{S+k+1}", "s_nop 0",
                     f"v_cvt_pk_bf16_f32 v{PB(b,mu)+k//2}, v{EB}, v{EB+1}", f"v_add_f32 v{EB}, v{EB}, v{EB+1}",
                     f"v_mov_b32 v{VTS+mu}, v{EB}" if k == 0 else f"v_add_f32 v{VTS+mu}, v{VTS+mu}, v{EB}"])
        A.e(["s_nop 3", "s_setpc_b64 s[6:7]"])
    A.label(f"{name}_codeend")
    return (name, 512, 256, "(256,1,1)", "(256,1,1)", 163840)
```

```python
import sys
from common import *
from k0 import k0
from k2 import k2
HDR = open("recurrent_scan__sliding_block_cached__glu_gated_glu__prompt.s.ref").read().split("; Override launch")[0]
OFFICIAL = 'recurrent_scan__sliding_block_cached__glu_gated_glu__prompt_kernel'
DOC = """;
"""
def kempty(A, name):
    A.raw(kernel_head(name)); A.e("s_endpgm")
    return (name, 8, 8, "(256,1,1)", "(256,1,1)", 0)
def build(kernels):
    B = Asm(); infos = []
    for fn, kw in kernels: infos.append(fn(B, **kw))
    out = HDR
    if len(infos) == 1 and infos[0][0] == OFFICIAL:
        out += f"; @launch grid={infos[0][3]} block={infos[0][4]} lds={infos[0][5]}\n"
    else:
      for (name, vg, acc, grid, block, lds) in infos:
        out += f"; @launch kernel={name} grid={grid} block={block} lds={lds}\n"
    out += DOC
    out += '.amdgcn_target "amdgcn-amd-amdhsa--gfx950"\n.text\n' + B.text()
    for (name, vg, acc, grid, block, lds) in infos:
        out += kernel_desc(name, vg, acc)
    return out
if __name__ == "__main__":
    which = sys.argv[2]
    kw = {}
    for x in sys.argv[3:]:
        k, val = x.split("="); kw[k] = eval(val)
    ks = []
    for c in which.split(","):
        if c == "0": ks.append((k0, {k[3:]: v_ for k, v_ in kw.items() if k.startswith("k0_")}))
        if c[0] == "e": ks.append((kempty, {"name": c + "_kernel"}))
        if c == "2": ks.append((k2, {k[3:]: v_ for k, v_ in kw.items() if k.startswith("k2_")}))
        if c == "F":
            from kf import kf
            ks.append((kf, dict({k[3:]: v_ for k, v_ in kw.items() if k.startswith("kf_")}, name=OFFICIAL)))
        if c == "f":
            from kf import kf
            ks.append((kf, {k[3:]: v_ for k, v_ in kw.items() if k.startswith("kf_")}))
        if c == "1":
            from k1 import k1
            ks.append((k1, {k[3:]: v_ for k, v_ in kw.items() if k.startswith("k1_")}))
    open(sys.argv[1], "w").write(build(ks))
```

```python
from common import *
import struct, math
QSCALE = struct.unpack("<I", struct.pack("<f", math.log2(math.e) / math.sqrt(128.0)))[0]
THR = 0x49800000
FL_L, FL_H, FL_O, FL_P, FL_SZ = 0x4000, 0x6000, 0x8000, 0xA000, 0xE000
G_BASE, G_SF, G_PF, G_SZ = 0x2200000, 0x600000, 0xA00000, 0x1200000
SS = 28
N1S, N1Y = 4, 3
WT = "sc0 sc1"
SPINB = "s_mov_b32 s12, 0x40000"

def kf(A, name="kf_kernel", stamps=0, thr=THR, vpos=(6, 10, 14, 18, 22, 26, 29, 30), barpos=3, apol=WT, pfT=0, pfG=0, cpf=1, ln=1, dbgst=0, pst=0, psleep=1, hwb=0, cap=24, dsl=6, vcap=8, ost=(8, 8), oflt=3, rotm=(1, 2), xpol=None, gdbg=0, pfs=7, pfA=2, rot0=1, vat=5):
    L = lambda s: f"{name}_{s}"
    vq = Q("vmcnt", 63); dq = Q("lgkmcnt", 15, 10)
    def stamp(i, pro=0):
        if not stamps: return
        if pst == 1:
            if pro == 0 and i == 1: i = 7
            elif not (pro == 1 or i == 0): return
        elif pst == 2:
            if pro == 0 and i == 5: i = 1
            elif pro == 0 and i == 6: i = 2
            elif not (pro == 2 or (pro == 0 and i in (0, 7))): return
        elif pro: return
        A.e(["s_memtime s[76:77]", "s_memrealtime s[78:79]", "s_waitcnt lgkmcnt(0)", "v_mov_b32 v30, s76", f"v_accvgpr_write_b32 a{240+2*i}, v30",
             "v_mov_b32 v30, s78", f"v_accvgpr_write_b32 a{241+2*i}, v30"]); dq.drain()
    A.raw(kernel_head(name))
    A.e(["s_cmp_ge_u32 s2, 256", f"s_cbranch_scc1 {L('end')}"])
    stamp(0)
    A.e(LOADARGS)
    A.e(["v_lshrrev_b32 v1, 6, v0", "v_and_b32 v0, 63, v0", "s_nop 0", "v_readfirstlane_b32 s3, v1",
         "s_and_b32 s10, s2, 7", "s_lshr_b32 s11, s2, 3", "s_and_b32 s4, s11, 7", "s_lshr_b32 s11, s11, 3",
         "s_lshl_b32 s5, s10, 2", "s_add_u32 s5, s5, s11",
         f"s_mul_i32 s14, s11, {rotm[1]}", f"s_mul_i32 s12, s4, {rotm[0]}", "s_add_u32 s14, s14, s12"])
    if ln:
        A.e(["v_and_b32 v40, 7, v0", "v_lshrrev_b32 v41, 3, v0", "s_lshl_b32 s12, s3, 5", "v_add_u32 v41, s12, v41",
             "v_lshlrev_b32 v42, 11, v40", "v_lshl_add_u32 v42, v41, 4, v42",
             "s_lshl_b32 s12, s4, 5", "s_add_u32 s91, s12, s5", "s_lshl_b32 s12, s91, 14",
             "s_waitcnt lgkmcnt(0)"])
        srd(A, 64, P_X, 2048 * 2048)
        for i in range(4):
            A.e(f"buffer_load_dwordx4 v[{48+4*i}:{51+4*i}], v42, s[64:67], s12 offen offset:{128*i}"); vq.issue(("L", 0))
        srd(A, 60, P_DBG, 256)
        A.e(["v_mov_b32 v47, 0", "s_or_b32 s12, s2, s3", "s_cmp_lg_u32 s12, 0", f"s_cbranch_scc1 {L('nn')}",
             "s_memrealtime s[12:13]", "s_waitcnt lgkmcnt(0)", "s_or_b32 s12, s12, 1", "v_mov_b32 v38, s12", "v_mov_b32 v39, s13", "s_mov_b64 exec, 1",
             f"buffer_store_dwordx2 v[38:39], v47, s[60:63], 0 offen {WT}", "s_mov_b64 exec, -1"])
        A.label(L("nn"))
    A.e([
         "v_lshrrev_b32 v30, 4, v0", "v_and_b32 v31, 15, v0",
         "s_lshr_b32 s12, s3, 1", "s_lshl_b32 s12, s12, 1",
         "v_lshlrev_b32 v1, 2, v30", "v_or_b32 v1, s12, v1", "v_xor_b32 v31, v31, v1",
         "s_lshl_b32 s12, s3, 2", "v_add_u32 v30, s12, v30",
         "v_lshlrev_b32 v2, 13, v30", "s_lshl_b32 s12, s5, 8", "v_lshl_add_u32 v2, v31, 4, v2", "v_add_u32 v2, s12, v2",
         "v_lshrrev_b32 v1, 1, v31", "v_min_u32 v1, 6, v1", "s_and_b32 s13, s5, 1", "v_add_u32 v1, s13, v1",
         "v_cmp_eq_u32 vcc, 7, v1", "v_and_b32 v31, 1, v31", "s_nop 0", "v_cndmask_b32 v1, v1, 0, vcc",
         "v_lshl_or_b32 v1, v1, 1, v31",
         "v_mul_u32_u24 v3, 7168, v30", "s_mul_i32 s12, s5, 224", "v_add_u32 v3, s12, v3", "v_lshl_add_u32 v3, v1, 4, v3",
         "s_lshl_b32 s12, s4, 4", "s_lshl_b32 s13, s3, 2", "s_add_u32 s15, s12, s13",
         "s_lshl_b32 s12, s15, 15", "v_lshlrev_b32 v4, 4, v0", "v_add_u32 v5, s12, v4",
         "v_add_u32 v6, 0x8000, v5", "v_add_u32 v7, 0x10000, v5", "v_add_u32 v8, 0x18000, v5",
         "s_mul_i32 s10, s3, 3072", "s_add_u32 s10, s10, 65536", "s_mov_b32 s11, 0",
         "s_waitcnt lgkmcnt(0)"])
    srd(A, 44, P_WQ, 1024 * 4096 * 2)
    srd(A, 48, P_WG, 1024 * 3584 * 2 + 1024, -1024)
    srd(A, 52, P_WU, 1024 * 3584 * 2 + 2048, -2048)
    srd(A, 40, P_WS, SZ_XF, WS_XF)

    def acc(blk, j):
        if blk < 14: return v(32 + (blk * 4 + j) * 4, 4)
        return a(((blk - 14) * 4 + j) * 4, 4)
    Afr = lambda blk, h=None: a(192 + (blk % 11) * 4, 4) if h is None else a(192 + (blk % 11) * 4 + 2 * h, 2)
    Bfr = lambda slot, j: a(128 + slot * 16 + j * 4, 4)
    NEXTK = ([] if rot0 == 7 else ["s_cmp_lt_u32 s11, 8", f"s_cselect_b32 s13, {rot0}, 7", "s_and_b32 s13, s13, s14"]) + ["s_add_u32 s12, s11, s14" if rot0 == 7 else "s_add_u32 s12, s11, s13", "s_and_b32 s12, s12, 7", "s_and_b32 s13, s11, 0x18", "s_or_b32 s12, s12, s13",
             "s_add_u32 s11, s11, 1", "s_lshl_b32 s6, s12, 18", "s_mul_i32 s7, s12, 229376", "s_lshl_b32 s8, s12, 10"]
    def d_ops(p, h):
        base = (p % 4) * 24576 + h * 12288
        return [((NEXTK if h == 0 else []) + [f"s_add_u32 m0, s10, {base}"], "buffer_load_dwordx4 v2, s[44:47], s6 offen lds", ("D", p, h), ["s_add_u32 s6, s6, 131072"] if h == 0 else []),
                ([], "buffer_load_dwordx4 v3, s[48:51], s7 offen offset:1024 lds", ("D", p, h), []),
                ([], "buffer_load_dwordx4 v3, s[52:55], s7 offen offset:2048 lds", ("D", p, h), ["s_add_u32 s7, s7, 114688"] if h == 0 else [])]
    def x_ops(p):
        return [([], f"buffer_load_dwordx4 {Bfr(p % 4, j)}, v{5+j}, s[40:43], s8 offen {apol if xpol is None else xpol}", ("X", p), []) for j in range(4)]
    def rd_ops(t, blk):
        part, cb = (1 + (blk & 1), blk >> 1) if blk < 14 else (0, blk - 14)
        slot = t % 4
        reg = (9 if slot < 2 else 17) + cb
        off = (slot % 2) * 24576 + part * 1024
        return [(f"ds_read_b64_tr_b16 {Afr(blk,0)}, v{reg} offset:{off}", ("A", t, blk)),
                (f"ds_read_b64_tr_b16 {Afr(blk,1)}, v{reg} offset:{off+3072}", ("A", t, blk))]
    def emit_vm(op, E, nop=False):
        pre, ins, tag, post = op
        E(pre)
        if pre and nop: E("s_nop 0")
        E(ins); vq.issue(tag); E(post)
    def kv_ops(kind, P):
        reg = 0 if kind == "K" else 65536
        sr = "s[64:67]" if kind == "K" else "s[68:71]"
        ops = []
        for i in range(4):
            ops.append(([f"s_add_u32 m0, s92, {reg + (P % 4) * 16384}", f"s_add_u32 s94, s93, {P * 16384}"] if i == 0 else [],
                        f"buffer_load_dwordx4 v{25+i if kind == 'K' else 29}, {sr}, s94 offen offset:{i*1024} lds", (kind, P), []))
        return ops
    def pf_op(k):
        return [([], f"buffer_load_dword a239, v31, {'s[72:75], s96' if k == 0 else 's[80:83], s97'} offen", ("P", 0), [f"s_add_u32 s{96+k}, s{96+k}, 1024"])]
    for op in d_ops(0, 0) + d_ops(0, 1): emit_vm(op, A.e, True)
    A.e("s_mov_b32 s88, s8")
    if cpf:
        A.e(["s_getpc_b64 s[12:13]"]); A.label(L("pc"))
        A.e([f"s_sub_u32 s12, s12, {L('pc')}-{name}", "s_subb_u32 s13, s13, 0",
             "s_lshr_b32 s9, s2, 3", "s_lshl_b32 s9, s9, 2", "s_add_u32 s9, s9, s3", "s_lshl_b32 s9, s9, 9",
             "v_and_b32 v30, 3, v0", "v_lshlrev_b32 v30, 7, v30", "v_add_u32 v30, s9, v30",
             "v_and_b32 v1, 4, v0", "v_lshl_add_u32 v30, v1, 14, v30",
             f"v_min_u32 v30, {name}_codeend-{name}-4, v30",
             "global_load_dword a238, v30, s[12:13]"])
    A.e(["v_lshrrev_b32 v1, 4, v0", "v_mul_u32_u24 v30, 6144, v1", "v_and_b32 v1, 1, v1",
         "v_bfe_u32 v31, v0, 2, 2", "v_lshl_add_u32 v30, v31, 8, v30", "v_lshl_or_b32 v31, v31, 1, v1",
         "v_and_b32 v1, 3, v0", "v_lshl_add_u32 v30, v1, 3, v30", "v_add_u32 v30, 0x10000, v30"])
    for cb in range(8):
        A.e([f"v_xor_b32 v1, {cb}, v31", f"v_lshl_add_u32 v{9+cb}, v1, 5, v30", f"v_add_u32 v{17+cb}, 49152, v{9+cb}"])
    srd(A, 84, P_WS, FL_SZ, WS_FLAG)
    srd(A, 64, P_K, 4 * 2048 * 256)
    srd(A, 68, P_V, 4 * 2048 * 256)
    srd(A, 56, P_WS, SZ_HF, WS_HF)
    A.e(["s_lshr_b32 s12, s91, 1", "s_lshl_b32 s12, s12, 15", "s_and_b32 s13, s91, 1", "s_lshl_b32 s13, s13, 7", "s_add_u32 s90, s12, s13",
         "v_lshlrev_b32 v43, 8, v41", "v_lshl_add_u32 v43, v40, 4, v43",
         "v_lshlrev_b32 v44, 4, v40", "s_lshl_b32 s12, s3, 2", "v_add_u32 v45, s12, v44"])
    A.e(["v_lshrrev_b32 v30, 4, v0", "v_and_b32 v31, 15, v0", "v_xor_b32 v1, v31, v30"])
    for i in range(4):
        A.e([f"v_xor_b32 v{25+i}, {4*i}, v1", f"v_lshlrev_b32 v{25+i}, 4, v{25+i}", f"v_lshl_add_u32 v{25+i}, v30, 8, v{25+i}"])
    A.e(["v_lshlrev_b32 v1, 2, v30", "v_xor_b32 v1, v31, v1", "v_lshlrev_b32 v1, 4, v1", "v_lshl_add_u32 v29, v30, 8, v1",
         "s_lshr_b32 s12, s5, 3", "s_lshl_b32 s12, s12, 19", "s_lshl_b32 s92, s3, 12",
         "s_add_u32 s93, s12, s92", f"s_add_u32 s93, s93, {1536*256}",
         "s_mov_b32 s9, 7"])
    if pfG in (1, 2):
        srd(A, 72, P_WO, 4096 * 2048); srd(A, 80, P_WD, 3584 * 2048)
        A.e(["s_lshl_b32 s12, s2, 2", "s_add_u32 s12, s12, s3", "s_lshl_b32 s96, s12, 13", "s_mul_i32 s97, s12, 7168",
             f"v_and_b32 v31, {7 if pfs == 7 else 3}, v0", f"v_lshlrev_b32 v31, {pfs}, v31"])
    A.e(["v_and_b32 v131, 31, v0", "v_lshlrev_b32 v131, 5, v131", "s_lshl_b32 s95, s4, 10", f"s_add_u32 s95, s95, {FL_L}",
         "s_lshl_b32 s91, s91, 5", f"s_add_u32 s91, s91, {FL_L}"])
    A.e([f"v_accvgpr_write_b32 a{i}, 0" for i in range(128)] + [f"v_mov_b32 v{i}, 0" for i in range(132, 256)])
    stamp(1, 1)
    A.e(vq.need(("L", 0)))
    stamp(2, 1)
    A.e(f"buffer_load_dwordx2 v[128:129], v47, s[60:63], 0 offen {WT}"); vq.issue(("N", 0))
    X0 = 64
    for i in range(16):
        A.e([f"v_lshlrev_b32 v{X0+2*i}, 16, v{48+i}", f"v_and_b32 v{X0+1+2*i}, 0xffff0000, v{48+i}"])
    def reduce(src, off):
        A.e(["s_nop 1", f"v_add_f32_dpp v{src}, v{src}, v{src} row_ror:8 row_mask:0xf bank_mask:0xf",
             f"v_mov_b32 v46, v{src}", "s_nop 1", f"v_permlane16_swap_b32 v46, v{src}", f"v_add_f32 v{src}, v46, v{src}",
             f"v_mov_b32 v46, v{src}", "s_nop 1", f"v_permlane32_swap_b32 v46, v{src}", f"v_add_f32 v{src}, v46, v{src}",
             f"ds_write_b32 v45, v{src} offset:{off}", "s_waitcnt lgkmcnt(0)", "s_barrier",
             f"ds_read_b128 v[36:39], v44 offset:{off}", "s_waitcnt lgkmcnt(0)",
             "v_add_f32 v36, v36, v37", "v_add_f32 v38, v38, v39", f"v_add_f32 v{src}, v36, v38"])
    A.e([f"v_pk_add_f32 v[32:33], v[{X0}:{X0+1}], v[{X0+2}:{X0+3}]"] + [f"v_pk_add_f32 v[32:33], v[32:33], v[{X0+2*i}:{X0+2*i+1}]" for i in range(2, 16)])
    A.e("v_add_f32 v32, v32, v33")
    reduce(32, 0)
    A.e(["v_mul_f32 v32, 0x3a800000, v32", "v_mov_b32 v33, v32"])
    for i in range(16):
        A.e(f"v_pk_add_f32 v[{96+2*i}:{97+2*i}], v[{X0+2*i}:{X0+2*i+1}], v[32:33] neg_lo:[0,1] neg_hi:[0,1]")
    A.e("v_pk_mul_f32 v[34:35], v[96:97], v[96:97]")
    for i in range(1, 16):
        A.e(f"v_pk_fma_f32 v[34:35], v[{96+2*i}:{97+2*i}], v[{96+2*i}:{97+2*i}], v[34:35]")
    A.e("v_add_f32 v34, v34, v35")
    reduce(34, 256)
    A.e(["v_mul_f32 v34, 0x3a800000, v34", "v_cvt_pk_bf16_f32 v34, v34, v32", "v_and_b32 v32, 0xffff0000, v34", "v_lshlrev_b32 v34, 16, v34",
         "v_add_f32 v34, 0x3727c5ac, v34", "v_cvt_pk_bf16_f32 v34, v34, v34", "v_lshlrev_b32 v34, 16, v34",
         "v_sqrt_f32 v34, v34", "v_mov_b32 v33, v32", "v_cvt_pk_bf16_f32 v34, v34, v34", "v_lshlrev_b32 v34, 16, v34",
         "v_rcp_f32 v34, v34", "s_nop 0", "v_mov_b32 v35, v34"])
    for q4 in range(4):
        for i in range(4 * q4, 4 * q4 + 4):
            x = X0 + 2 * i
            A.e([f"v_pk_add_f32 v[{x}:{x+1}], v[{x}:{x+1}], v[32:33] neg_lo:[0,1] neg_hi:[0,1]",
                 f"v_cvt_pk_bf16_f32 v{48+i}, v{x}, v{x+1}",
                 f"v_lshlrev_b32 v{x}, 16, v{48+i}", f"v_and_b32 v{x+1}, 0xffff0000, v{48+i}",
                 f"v_pk_mul_f32 v[{x}:{x+1}], v[{x}:{x+1}], v[34:35]",
                 f"v_cvt_pk_bf16_f32 v{48+i}, v{x}, v{x+1}"])
        A.e(f"buffer_store_dwordx4 v[{48+4*q4}:{51+4*q4}], v43, s[40:43], s90 offen offset:{2048*(q4%2)} {WT}"); vq.issue(("S", 0))
        if q4 == 1: A.e("s_add_u32 s90, s90, 4096")
    stamp(3, 1)
    A.e(vq.need(("N", 0)))
    A.e(SPINB)
    A.label(L("pollN"))
    A.e(["v_readfirstlane_b32 s98, v128", "v_readfirstlane_b32 s99, v129", "s_cmp_lg_u32 s98, 0", f"s_cbranch_scc1 {L('gotN')}",
         "s_sub_u32 s12, s12, 1", f"s_cbranch_scc1 {L('gotN')}",
         f"buffer_load_dwordx2 v[128:129], v47, s[60:63], 0 offen {WT}", "s_waitcnt vmcnt(0)", f"s_branch {L('pollN')}"])
    A.label(L("gotN"))
    A.e([f"v_mov_b32 v{i}, 0" for i in range(64, 128)])
    A.e(vq.drain()); A.e("s_barrier")
    stamp(4, 1)
    A.e(["s_cmp_lg_u32 s3, 0", f"s_cbranch_scc1 {L('gotL')}", "s_mov_b64 exec, 1",
         f"buffer_store_dwordx2 v[128:129], v47, s[84:87], s91 offen {WT}", "s_mov_b64 exec, -1"])
    A.e(SPINB)
    A.label(L("pollL"))
    A.e([f"buffer_load_dwordx2 v[128:129], v131, s[84:87], s95 offen {WT}", "s_waitcnt vmcnt(0)",
         "s_sub_u32 s12, s12, 1", f"s_cbranch_scc1 {L('gotL')}",
         "v_cmp_ne_u64 vcc, s[98:99], v[128:129]", f"s_cbranch_vccz {L('gotL')}", f"s_sleep {psleep}", f"s_branch {L('pollL')}"])
    A.label(L("gotL"))
    A.e(["s_cmp_eq_u32 s3, 0", f"s_cbranch_scc1 {L('w0')}"])
    sv = list(vq.q)
    A.e(["s_mov_b32 s76, s11"])
    for op in d_ops(1, 0) + d_ops(1, 1) + d_ops(2, 0) + d_ops(2, 1): emit_vm(op, A.e, True)
    A.e(["s_mov_b32 s11, s76", "s_barrier"])
    def xs(first):
        for p_ in (0, 1, 2):
            if p_: A.e(NEXTK)
            if p_ and first:
                for h in (0, 1):
                    for k, op in enumerate(d_ops(p_, h)):
                        emit_vm((op[0][-1:] if k == 0 else [], op[1], op[2], op[3]), A.e, True)
            for op in x_ops(p_): A.e(op[1].replace("s8 offen", "s88 offen") if p_ == 0 else op[1]); vq.issue(op[2])
    def tail(tag):
        for op in d_ops(3, 0): emit_vm(op, A.e, True)
        srd(A, 60, P_WS, SZ_OF, WS_OF)
        A.e([f"v_mov_b32 v{i}, 0" for i in list(range(32, 64)) + [128, 129, 130, 131]])
        dq.q = []
        for blk in range(11):
            for ins, tg in rd_ops(0, blk): A.e(ins); dq.issue(tg)
        A.e(vq.need(tag))
    xs(False); tail(("X", 2))
    A.e(f"s_branch {L('w1')}")
    A.label(L("w0"))
    A.e("s_barrier")
    vq.q = sv
    xs(True); tail(("X", 0))
    A.label(L("w1"))
    stamp(1)

    BARM = 47
    def step(t, E, first_ops=None, second_ops=None, last=False):
        v1 = d_ops(t + 3, 1) + x_ops(t + 3) if first_ops is None else first_ops
        v2_ = d_ops(t + 4, 0) if second_ops is None else second_ops
        if pfG == 1 and second_ops is None and t % 2 == 0: v2_ = v2_ + pf_op((t // 2) % 2)
        if pfG == 2 and second_ops is None and t == 0: v2_ = v2_ + pf_op(0)
        if gdbg & 1: v1 = [o for o in v1 if o[2][0] != "X"]
        if gdbg & 2:
            v1 = [o for o in v1 if o[2][0] != "D"]; v2_ = [o for o in v2_ if o[2][0] != "D"]
        def spread(n, lo, hi):
            c = [m for m in range(lo, hi) if m % 4 == 2]
            if n == 0: return []
            return [c[(i * len(c)) // n] for i in range(n)]
        sched = list(zip(spread(len(v1), 2, 44), v1)) + list(zip(spread(len(v2_), 54, 88), v2_))
        pend = []; post = []; pre = list(sched[0][1][0]) if sched else []; vi = 0
        for m in range(88):
            blk, j = m // 4, m % 4
            if m == 0: E(vq.need(("X", t)))
            if j == 0: E(dq.need(("A", t, blk)))
            E(mfma16(acc(blk, j), Afr(blk), Bfr(t % 4, j)))
            if m == BARM:
                E(vq.need(("D", t + 1, 1))); E(dq.drain()); E("s_barrier")
            if j == 3:
                if blk < 11: pend += rd_ops(t, blk + 11)
                elif not last: pend += rd_ops(t + 1, blk - 11)
            if vi < len(sched) and m == sched[vi][0]:
                assert not pre, (t, m, pre)
                op = sched[vi][1]
                E(op[1]); vq.issue(op[2]); post += op[3]; vi += 1
                if vi < len(sched): pre = list(sched[vi][1][0])
            else:
                used = 0
                if pend:
                    ins, tag = pend.pop(0); E(ins); dq.issue(tag); used += 1
                while post and used < 2: E(post.pop(0)); used += 1
                while pre and used < 2 and not post and not (sched[vi][0] > BARM and m < BARM - 8): E(pre.pop(0)); used += 1
        for ins, tag in pend: E(ins); dq.issue(tag)
        E(post)
    for t in range(4): step(t, lambda x: None)
    vq.rebase(4); dq.rebase(4)
    A.raw(".p2align 6")
    A.label(L("loop"))
    for t in range(4): step(t, A.e)
    A.e(["s_sub_u32 s9, s9, 1", "s_cmp_lg_u32 s9, 0", f"s_cbranch_scc1 {L('loop')}"])
    vq.rebase(4); dq.rebase(4)
    step(0, A.e, None, kv_ops("K", 0) + kv_ops("K", 1))
    step(1, A.e, kv_ops("K", 2) + kv_ops("K", 3), kv_ops("V", 0) + kv_ops("V", 1))
    step(2, A.e, kv_ops("V", 2), kv_ops("V", 3) + (pf_op(0) if pfG in (1, 2) else []))
    step(3, A.e, [], [], last=True)
    stamp(2)

    HP = "" if hwb else WT
    A.e(["s_mul_i32 s6, s15, 114688", "s_mul_i32 s12, s5, 7", "s_add_u32 s12, s12, 1", "s_lshr_b32 s12, s12, 1", "s_lshl_b32 s12, s12, 10",
         "s_add_u32 s6, s6, s12",
         "s_and_b32 s13, s5, 1", "s_cmp_eq_u32 s13, 0", "s_mov_b32 s13, 0xfffffc08", "s_cselect_b32 s13, 0xc00, s13",
         "s_add_u32 s7, s6, s13",
         "s_mov_b32 s8, 0xbfb8aa3b", "s_mov_b32 s9, 0xbfb8aa3b"])
    def hblock(b, j, dst):
        g = 32 + ((2 * b) * 4 + j) * 4; u = g + 16
        out = []
        out += [f"v_pk_mul_f32 v[{g+r_}:{g+r_+1}], v[{g+r_}:{g+r_+1}], s[8:9]" for r_ in (0, 2)]
        out += [f"v_exp_f32 v{g+r_}, v{g+r_}" for r_ in range(4)]
        out += [f"v_pk_add_f32 v[{g+r_}:{g+r_+1}], v[{g+r_}:{g+r_+1}], 1.0 op_sel_hi:[1,0]" for r_ in (0, 2)]
        out += [f"v_rcp_f32 v{g+r_}, v{g+r_}" for r_ in range(4)]
        out += [f"v_pk_mul_f32 v[{g+r_}:{g+r_+1}], v[{g+r_}:{g+r_+1}], v[{u+r_}:{u+r_+1}]" for r_ in (0, 2)]
        out += [f"v_cvt_pk_bf16_f32 v{dst}, v{g}, v{g+1}", f"v_cvt_pk_bf16_f32 v{dst+1}, v{g+2}, v{g+3}"]
        return out
    for j in range(4):
        for i in range(3):
            dst = 32 + ((4 * i + 1) * 4 + j) * 4
            A.e(hblock(2 * i, j, dst)); A.e(hblock(2 * i + 1, j, dst + 2))
            A.e(f"buffer_store_dwordx4 {v(dst,4)}, v4, s[56:59], s6 offen offset:{i*1024} {HP}"); vq.issue(("H", 0))
        dst = 32 + (13 * 4 + j) * 4
        A.e(hblock(6, j, dst))
        A.e(f"buffer_store_dwordx2 {v(dst,2)}, v4, s[56:59], s7 offen {HP}"); vq.issue(("H", 0))
        if j < 3: A.e(["s_add_u32 s6, s6, 114688", "s_add_u32 s7, s7, 114688"])
    QF = lambda mu, t: 32 + (mu * 8 + t) * 4
    SB = lambda b, mu: 96 + (b * 2 + mu) * 16
    NM = lambda mu: 160 + mu * 16
    PB = lambda b, mu: 192 + (b * 2 + mu) * 8
    EB = 224; VL = 232; VTS = 234; VT = 236
    A.e([f"s_mov_b32 s12, {QSCALE:#x}", f"s_mov_b32 s13, {QSCALE:#x}", f"s_mov_b32 s95, {thr:#x}"])
    for t in range(8):
        for mu in range(2):
            tmp = 96 + ((t * 2 + mu) % 4) * 8
            for x in range(2):
                src = (t * 4 + 2 * mu + x) * 4
                A.e([f"v_accvgpr_read_b32 v{tmp+4*x+r_}, a{src+r_}" for r_ in range(4)])
            A.e([f"v_pk_mul_f32 v[{tmp+2*k}:{tmp+2*k+1}], v[{tmp+2*k}:{tmp+2*k+1}], s[12:13]" for k in range(4)])
            q = QF(mu, t)
            A.e([f"v_cvt_pk_bf16_f32 v{q+k}, v{tmp+2*k}, v{tmp+2*k+1}" for k in range(4)])
            if (t * 2 + mu) > 0:
                pq = QF(*prev)
                A.e([f"v_permlane16_swap_b32 v{pq}, v{pq+2}", f"v_permlane16_swap_b32 v{pq+1}, v{pq+3}"])
            prev = (mu, t)
    A.e(["v_and_b32 v30, 31, v0", "v_lshrrev_b32 v31, 5, v0", "v_and_b32 v1, 15, v0", "v_xor_b32 v1, v1, v31",
         "v_lshlrev_b32 v30, 8, v30"])
    pq = QF(*prev)
    A.e([f"v_permlane16_swap_b32 v{pq}, v{pq+2}", f"v_permlane16_swap_b32 v{pq+1}, v{pq+3}"])
    for t in range(8):
        A.e([f"v_xor_b32 v{9+t}, {2*t}, v1", f"v_lshl_add_u32 v{9+t}, v{9+t}, 4, v30"])
    A.e(["v_bfe_u32 v1, v0, 2, 2", "v_lshlrev_b32 v30, 10, v31", "v_lshl_add_u32 v30, v1, 8, v30",
         "v_bfe_u32 v22, v0, 4, 1", "v_lshl_add_u32 v30, v22, 5, v30", "v_and_b32 v23, 3, v0", "v_lshl_add_u32 v30, v23, 3, v30",
         "v_add_u32 v30, 0x10000, v30"])
    for i in range(4):
        A.e([f"v_xor_b32 v23, {i}, v1", f"v_lshl_add_u32 v{17+i}, v23, 6, v30"])
    A.e(["v_lshlrev_b32 v21, 17, v22", "v_lshl_add_u32 v21, v31, 8, v21", "v_and_b32 v1, 15, v0", "v_lshl_add_u32 v21, v1, 4, v21"])
    A.e(["s_and_b32 s12, s2, 7", "s_lshr_b32 s72, s12, 2", "s_and_b32 s13, s12, 1", "s_lshl_b32 s73, s4, 1", "s_add_u32 s73, s73, s13",
         "s_bfe_u32 s13, s12, 0x10001", "s_lshl_b32 s13, s13, 2", "s_lshr_b32 s74, s2, 6", "s_add_u32 s74, s74, s13",
         "s_lshr_b32 s12, s3, 1", "s_and_b32 s13, s3, 1",
         "s_cmp_eq_u32 s72, 0",
         f"s_cselect_b32 s8, {8*N1S}, {8*N1Y}", f"s_cselect_b32 s9, 0, {16*N1S}", "s_mul_i32 s8, s8, s12", "s_add_u32 s8, s8, s9",
         "s_cmp_eq_u32 s72, 0",
         f"s_cselect_b32 s75, {SS}, {64-SS}", f"s_cselect_b32 s96, 0, {2*SS}", "s_mul_i32 s75, s75, s12", "s_add_u32 s75, s75, s96",
         "s_lshl_b32 s9, s8, 10", "s_lshl_b32 s8, s8, 16",
         "s_lshl_b32 s96, s75, 10", "s_lshl_b32 s75, s75, 16",
         "s_lshl_b32 s13, s13, 12",
         "s_lshl_b32 s10, s12, 17", "s_add_u32 s10, s10, s13",
         "s_lshl_b32 s11, s12, 16", "s_add_u32 s11, s11, 0x8000", "s_add_u32 s11, s11, s13",
         "v_lshrrev_b32 v30, 4, v0", "v_and_b32 v31, 15, v0", "v_lshlrev_b32 v1, 2, v30", "v_xor_b32 v31, v31, v1",
         "s_lshl_b32 s13, s13, 3", "s_lshl_b32 s97, s74, 8", "s_add_u32 s97, s97, s13",
         "v_lshlrev_b32 v30, 11, v30", "v_add_u32 v30, s97, v30",
         "v_lshl_add_u32 v246, v31, 4, v30", "v_xor_b32 v31, 2, v31", "v_lshl_add_u32 v247, v31, 4, v30", "v_add_u32 v247, 7168, v247",
         "v_add_u32 v248, 14336, v246", "v_add_u32 v249, 14336, v247", "v_mov_b32 v250, s98", "v_mov_b32 v251, s99", "v_mov_b32 v252, 0",
         "s_lshl_b32 s97, s73, 3", "s_and_b32 s13, s3, 1", "s_lshl_b32 s13, s13, 2", "s_add_u32 s97, s97, s13", "s_lshl_b32 s12, s12, 1"])
    for jj in range(4):
        A.e([f"s_xor_b32 s13, s12, {jj}", "s_add_u32 s13, s13, s97", "s_mul_i32 s90, s13, 114688", f"v_add_u32 v{5+jj}, s90, v4",
             "s_lshl_b32 s90, s13, 17", f"v_add_u32 v{242+jj}, s90, v4"])
    A.e(["v_lshlrev_b32 v24, 5, v0", "v_and_b32 v24, 0x3e0, v24",
         "s_lshl_b32 s12, s4, 10", f"s_add_u32 s91, s12, {FL_H}", f"s_add_u32 s97, s12, {FL_O}",
         "s_lshl_b32 s13, s5, 5", "s_add_u32 s88, s91, s13", "s_add_u32 s89, s97, s13"])
    srd(A, 48, P_WS, FL_SZ, WS_FLAG)
    srd(A, 44, P_WD, 3584 * 2048)
    srd(A, 40, P_WS, SZ_HF, WS_HF)
    for i in range(8):
        A.e([f"s_add_u32 s13, s14, {i}", "s_and_b32 s13, s13, 7", f"s_lshl_b32 s{80+i}, s13, 10"])
    WV = 246
    def w_ops(t, half=False):
        slot = t % 8
        ops = []
        rot_ = [f"s_and_b32 s12, s{80+slot}, 0xc00", "s_lshl_b32 s12, s12, 6"] if half else [f"s_lshl_b32 s12, s{80+slot}, 6"]
        for i in range(4):
            ops.append(([f"s_add_u32 m0, s{10 if slot < 4 else 11}, {(slot%4)*8192}"] + rot_ + ["s_add_u32 s12, s12, s8"] if i == 0 else [],
                        f"buffer_load_dwordx4 v{WV+i}, s[44:47], s12 offen offset:{i*1024} lds", ("W", t),
                        ["s_add_u32 s8, s8, 0x80000"] if (i == 3 and slot == 7) else []))
        return ops
    BR = [192, 208, 224, 0, 16, 32, 48, 64]
    facc = lambda cb, jj: v(32 + (cb * 4 + jj) * 4, 4)
    FA = lambda cb, h=None: a(128 + cb * 4, 4) if h is None else a(128 + cb * 4 + 2 * h, 2)
    FB = lambda slot, jj: a(BR[slot] + jj * 4, 4)
    def a_ops(t, half=False):
        slot = t % 8
        return [(([f"s_and_b32 s13, s{80+slot}, 0xc00", "s_add_u32 s13, s13, s9"] if half else [f"s_add_u32 s13, s{80+slot}, s9"]) if jj == 0 else [],
                 f"buffer_load_dwordx4 {FB(slot,jj)}, v{5+jj}, s[40:43], s13 offen {apol}", ("X", t),
                 ["s_add_u32 s9, s9, 0x2000"] if (jj == 3 and slot == 7) else []) for jj in range(4)]
    spins = []
    def check_flags(tag, reg, addr, off):
        A.e([f"v_cmp_ne_u64 vcc, s[98:99], v[{reg}:{reg+1}]", f"s_cbranch_vccnz {L('spin' + tag)}"])
        A.label(L("ok" + tag))
        spins.append((tag, reg, addr, off))

    Kf = lambda t: a(128 + t * 4, 4)
    Vf = lambda i, tp, h=None: a(160 + (i * 2 + tp) * 4, 4) if h is None else a(160 + (i * 2 + tp) * 4 + 2 * h, 2)
    Oacc = lambda i, mu: a((i * 2 + mu) * 16, 16)
    def k_reads(T): return [(f"ds_read_b128 {Kf(t)}, v{9+t} offset:{(T % 8) * 8192}", ("K", T, t)) for t in range(8)]
    def v_reads(T):
        return [(f"ds_read_b64_tr_b16 {Vf(i,tp,h)}, v{17+i} offset:{(T % 8) * 8192 + tp * 4096 + h * 2048}", ("V", T, i, tp))
                for i in range(4) for tp in range(2) for h in range(2)]
    def qk(T, c0):
        return [(mfma32(v(SB(T & 1, mu), 16), Kf(t), v(QF(mu, t), 4), (c0(mu) if t == 0 else None)), ("K", T, t)) for t in range(8) for mu in range(2)]
    def pv(T):
        return [(mfma32(Oacc(i, mu), Vf(i, tp), v(PB(T & 1, mu) + 4 * tp, 4), ("0" if (T == 0 and tp == 0) else None)), ("V", T, i, tp))
                for i in range(4) for tp in range(2) for mu in range(2)]
    A.e(vq.need(("V", 3))); A.e("s_barrier")
    dq.slack = 15
    for ins, tag in k_reads(0): A.e(ins); dq.issue(tag)
    for ins, tag in qk(0, lambda mu: "0"):
        A.e(dq.need(tag)); A.e(ins)
    for ins, tag in k_reads(1): A.e(ins); dq.issue(tag)
    A.e(["v_mov_b32 v232, 0", "v_mov_b32 v233, 0", "s_nop 7"])
    def rowmax(S, dst, tmp):
        out = [f"v_max3_f32 v{dst}, v{S}, v{S+1}, v{S+2}"]
        for k in range(3, 15, 2): out.append(f"v_max3_f32 v{dst}, v{dst}, v{S+k}, v{S+k+1}")
        out += [f"v_max_f32 v{dst}, v{dst}, v{S+15}", f"v_mov_b32 v{tmp}, v{dst}", "s_nop 1",
                f"v_permlane32_swap_b32 v{tmp}, v{dst}", f"v_max_f32 v{dst}, v{dst}, v{tmp}"]
        return out
    for mu in range(2):
        A.e(rowmax(SB(0, mu), VT + mu, VT + 2))
        A.e([f"v_sub_f32 v{NM(mu)+k}, 0, v{VT+mu}" for k in range(16)])
        A.e([f"v_sub_f32 v{SB(0,mu)+k}, v{SB(0,mu)+k}, v{VT+mu}" for k in range(16)])
    def sm(T):
        b = T & 1
        out = []
        def ex(n): return (f"v_exp_f32 v{EB + n % 8}, v{SB(b, n // 16) + n % 16}", 8)
        def fin(n):
            mu, r_ = n // 16, n % 16; e = EB + n % 8; o = []
            if r_ == 1: o.append((f"v_add_f32 v{VTS+mu}, v{EB + (n-1) % 8}, v{e}", 4))
            elif r_ > 1: o.append((f"v_add_f32 v{VTS+mu}, v{VTS+mu}, v{e}", 4))
            if r_ % 2 == 1: o.append((f"v_cvt_pk_bf16_f32 v{PB(b,mu) + r_//2}, v{EB + (n-1) % 8}, v{e}", 5))
            return o
        out.append(ex(0)); out.append(ex(1))
        for n in range(2, 32):
            out.append(ex(n)); out += fin(n - 2)
        out += fin(30) + fin(31)
        out += [(f"v_max_f32 v{VT}, v{VTS}, v{VTS+1}", 4), (f"v_cmp_nge_f32 vcc, s95, v{VT}", 4)]
        return out
    stamp(3)
    def flag_store(off_sreg):
        lab = L("fl%d" % A.nlabel); A.nlabel += 1
        A.e(["s_cmp_lg_u32 s3, 0", f"s_cbranch_scc1 {lab}", "s_mov_b64 exec, 1",
             f"buffer_store_dwordx2 v[250:251], v252, s[48:51], {off_sreg} offen {WT}", "s_mov_b64 exec, -1"])
        A.label(lab)
    rare_sites = []
    for T in range(17):
        mf = (qk(T + 1, lambda mu: v(NM(mu), 16)) if T + 1 <= 15 else []) + (pv(T - 1) if T >= 1 else [])
        nq = 16 if T + 1 <= 15 else 0
        va = ([(f"v_add_f32 v{VL}, v{VL}, v{VTS}", 4), (f"v_add_f32 v{VL+1}, v{VL+1}, v{VTS+1}", 4)] if T >= 1 else []) + (sm(T) if T <= 15 else [])
        rdv = v_reads(T - 1) if T >= 1 else []
        rdk = k_reads(T + 2) if T + 2 <= 15 else []
        vm = []
        if T % 2 == 0 and T <= 14:
            w = []
            if T == 2: w += vq.need(("H", 0))
            if T >= 6: w += vq.need(("K", (T + 2) // 2))
            if T >= 8: w += vq.need(("V", T // 2))
            A.e(w[-1:]); A.e(dq.drain()); A.e("s_barrier")
            if T == 2:
                if hwb:
                    lab = L("wb")
                    A.e(["s_cmp_lg_u32 s3, 0", f"s_cbranch_scc1 {lab}", "buffer_wbl2 sc1"]); A.label(lab)
                else: flag_store("s88")
            if T == 8 and hwb: flag_store("s88")
            if T <= 6: vm += kv_ops("K", T // 2 + 4)
            if 4 <= T <= 10: vm += kv_ops("V", T // 2 + 2)
            if T == 12: vm += w_ops(0) + w_ops(1)
            if T == 14:
                A.e(vq.need(("F", 0))); check_flags("H", 22, 24, "s91")
                vm += a_ops(0) + a_ops(1)
        if pfA and 3 <= T <= 10:
            pre = []
            if T == 3:
                pre = [f"s_mov_b32 s52, s{P_WO}", f"s_and_b32 s53, s{P_WO+1}, 0xffff", f"s_mov_b32 s54, {4096*2048:#x}",
                       "s_lshl_b32 s12, s2, 2", "s_add_u32 s12, s12, s3", "s_lshl_b32 s100, s12, 13", "s_mul_i32 s101, s12, 7168",
                       "v_and_b32 v2, 7, v0", "v_lshlrev_b32 v2, 7, v2", "v_add_u32 v3, 4096, v2"]
            k = T - 3
            if k < 7: vm += [(pre, f"buffer_load_dword v30, v{2 if k < 4 else 3}, s[44:47], s101 offen offset:{(k % 4) * 1024}", ("P", 0), [])]
            if pfA == 2: vm += [([], f"buffer_load_dword v30, v{2 if k < 4 else 3}, s[52:55], s100 offen offset:{(k % 4) * 1024}", ("P", 0), [])]
        if T == 11: vm += [([], f"buffer_load_dwordx2 v[22:23], v24, s[48:51], s91 offen {WT}", ("F", 0), [])]
        if T == 13: vm += w_ops(2) + w_ops(3)
        if T == 15: vm += a_ops(2)
        if nq == 0:
            for ins, tag in rdv: A.e(ins); dq.issue(tag)
            rdv = []
        n = len(mf)
        vml = []
        for op in vm:
            vml += [(x, 4, None) for x in op[0]] + ([("s_nop 0", 4, None)] if op[0] else []) + [(op[1], 8, op[2])] + [(x, 4, None) for x in op[3]]
        tot = sum(c for _, c in va) + 4 * (len(rdv) + len(rdk)) + sum(c for _, c, _ in vml)
        done = 0
        for m, (ins, tag) in enumerate(mf):
            w = dq.need(tag, dsl); A.e(w); A.e(ins)
            used = 4 * len(w)
            budget = max(cap, -(-(tot - done) // (n - m)) + 3) if m < n - 1 else 10 ** 6
            target = (tot * (m + 1)) // n + 6
            rd = rdv if (m < nq and rdv) else (rdk if (m >= nq and rdk) else None)
            if rd:
                ri, rt = rd.pop(0); A.e(ri); dq.issue(rt); used += 4; done += 4
                if rd is rdv and len(rd) > (nq - 3 - m):
                    ri, rt = rd.pop(0); A.e(ri); dq.issue(rt); used += 4; done += 4
            elif vml:
                x, c, tg = vml.pop(0); A.e(x); used += c; done += c
                if tg: vq.issue(tg)
                while vml and c == 4 and used < 12:
                    x, c, tg = vml.pop(0); A.e(x); used += c; done += c
                    if tg: vq.issue(tg)
            while va and used + va[0][1] <= budget and (done < target or m == n - 1):
                x, c = va.pop(0); A.e(x); used += c; done += c
        assert not rdv
        for ins, tag in rdk: A.e(ins); dq.issue(tag)
        for x, c, tg in vml:
            A.e(x)
            if tg: vq.issue(tg)
        for x, c in va: A.e(x)
        if T <= 15:
            A.e([f"s_cbranch_vccnz {L('rs%d' % T)}"])
            A.label(L("rb%d" % T))
            rare_sites.append(T)
    stamp(4)
    A.e(["s_lshl_b32 s6, s15, 17", "s_lshl_b32 s12, s5, 12", "s_add_u32 s6, s6, s12", "s_add_u32 s7, s6, 0x40000"])
    for mu in range(2):
        A.e([f"v_mov_b32 v{VT}, v{VL+mu}", "s_nop 1", f"v_permlane32_swap_b32 v{VT}, v{VL+mu}", f"v_add_f32 v{VT}, v{VT}, v{VL+mu}",
             f"v_rcp_f32 v{VT+2+2*mu}, v{VT}", "s_nop 0", f"v_mov_b32 v{VT+3+2*mu}, v{VT+2+2*mu}"])
    A.e(["v_mov_b32 v29, v21", "s_barrier"])
    for t in range(4, 7):
        for op in w_ops(t): emit_vm(op, A.e, True)
    A.e(["v_mov_b32 v253, v24",
         "v_lshrrev_b32 v1, 4, v0", "v_lshlrev_b32 v30, 10, v1", "v_and_b32 v1, 1, v1",
         "v_bfe_u32 v31, v0, 2, 2", "v_lshl_add_u32 v30, v31, 8, v30", "v_lshl_or_b32 v31, v31, 1, v1",
         "v_and_b32 v1, 3, v0", "v_lshl_add_u32 v30, v1, 3, v30",
         "s_lshr_b32 s13, s3, 1", "s_lshl_b32 s12, s13, 17", "s_lshl_b32 s13, s13, 16", "s_add_u32 s13, s13, 0x8000"])
    for cb in range(8):
        A.e([f"v_xor_b32 v1, {cb}, v31", "v_lshl_add_u32 v1, v1, 5, v30", f"v_add_u32 v{9+cb}, s12, v1", f"v_add_u32 v{17+cb}, s13, v1"])
    def frd(t, cb):
        slot = t % 8
        reg = (9 if slot < 4 else 17) + cb; off = (slot % 4) * 8192
        return [(f"ds_read_b64_tr_b16 {FA(cb,0)}, v{reg} offset:{off}", ("A", t, cb)),
                (f"ds_read_b64_tr_b16 {FA(cb,1)}, v{reg} offset:{off+4096}", ("A", t, cb))]
    dq.slack = 8
    ostores = []
    cnt = 0
    for i in range(4):
        for mu in range(2):
            tmp = 96 + (cnt % 4) * 16; dst = 160 + cnt * 8; cnt += 1
            src = (i * 2 + mu) * 16
            A.e([f"v_accvgpr_read_b32 v{tmp+k}, a{src+k}" for k in range(16)])
            A.e([f"v_pk_mul_f32 v[{tmp+2*k}:{tmp+2*k+1}], v[{tmp+2*k}:{tmp+2*k+1}], v[{VT+2+2*mu}:{VT+3+2*mu}]" for k in range(8)])
            for s_ in range(2):
                for jj, j in enumerate((s_, s_ + 2)):
                    A.e([f"v_cvt_pk_bf16_f32 v{dst+4*s_+2*jj}, v{tmp+4*j}, v{tmp+4*j+1}", f"v_cvt_pk_bf16_f32 v{dst+4*s_+2*jj+1}, v{tmp+4*j+2}, v{tmp+4*j+3}"])
                ostores.append(([], f"buffer_store_dwordx4 {v(dst+4*s_,4)}, v29, s[60:63], s{6+mu} offen offset:{i*1024+s_*512} {WT}", ("O", 0), []))
            if cnt in (1, 2, 3, 4):
                for op in a_ops(2 + cnt): emit_vm(op, A.e)
            if cnt == 5:
                A.e(vq.need(("W", 3))); A.e("s_barrier")
                for cb in range(8):
                    for ins, tag in frd(0, cb): A.e(ins); dq.issue(tag)
    srd(A, 52, P_WS, G_SZ, G_BASE)
    srd(A, 64, P_X, 2048 * 2048)
    srd(A, 68, P_OUT, 2048 * 2048)
    A.e(["s_cmp_eq_u32 s72, 0",
         f"s_cselect_b32 s90, {N1S-1}, {N1Y-1}", f"s_cselect_b32 s95, {N1S-2}, {N1Y-2}", "s_mov_b32 s91, 0",
         "s_lshl_b32 s12, s73, 3", "s_add_u32 s12, s12, s74",
         "s_lshl_b32 s92, s12, 2", "s_add_u32 s92, s92, s3",
         "s_lshl_b32 s92, s92, 13",
         "s_lshl_b32 s93, s12, 7", f"s_add_u32 s101, s93, {FL_P}", "s_lshl_b32 s12, s3, 5", "s_add_u32 s93, s93, s12",
         "s_lshl_b32 s94, s73, 7", "s_and_b32 s12, s3, 1", "s_lshl_b32 s12, s12, 6", "s_add_u32 s94, s94, s12",
         "s_lshr_b32 s12, s3, 1", "s_lshl_b32 s12, s12, 5", "s_add_u32 s94, s94, s12",
         "s_lshl_b32 s94, s94, 11", "s_lshl_b32 s12, s74, 8", "s_add_u32 s94, s94, s12",
         "v_and_b32 v1, 15, v0", "v_lshlrev_b32 v1, 11, v1", "v_lshrrev_b32 v30, 4, v0",
         "v_lshl_add_u32 v25, v30, 3, v1", "v_add_u32 v26, 0x8000, v25",
         "v_lshl_add_u32 v27, v30, 4, v1", "v_add_u32 v28, 0x8000, v27",
         "s_lshl_b32 s12, s3, 14", "v_add_u32 v2, s12, v4", "s_xor_b32 s12, s12, 0x8000", "v_add_u32 v3, s12, v4",
         "s_lshl_b32 s12, s3, 13", "s_add_u32 s12, s12, 0x10000", "v_add_u32 v254, s12, v4", "s_xor_b32 s12, s12, 0x4000", "v_add_u32 v255, s12, v4"])
    stamp(5)
    XP = (2, 8, 12, 16, 20, 24, 28)
    def fstep(t, E, last=False, extra=(), czero=False, prev=None, afterbar=None, needbar=(), va=None, xp=None):
        if not last: vops = w_ops(t + 7) + a_ops(t + 7)
        else: vops = (w_ops(t + 7, t > 0) + a_ops(t + 7, t > 0)) if t + 7 < 12 else []
        xq = xp or (XP if vops else vpos)
        sched = sorted(list(zip(vpos, vops)) + list(zip(xq, extra)), key=lambda x: x[0])
        assert len(extra) <= len(xq)
        isbar = (t % 2 == 1)
        doread = not (last and t == 11)
        pend = []; vi = 0; post = []; pre = [x for _, op in sched for x in op[0]] if False else None
        pres = [list(op[0]) for _, op in sched]
        for m in range(32):
            cb, jj = m // 4, m % 4
            if m == 0: E(vq.need(("X", t)))
            if jj == 0: E(dq.need(("A", t, cb)))
            if prev: E(prev(cb, jj))
            E(mfma16(facc(cb, jj), FA(cb), FB(t % 8, jj), "0" if czero else None))
            if isbar and m == barpos:
                w = vq.need(("W", t + 2))
                for tg in needbar: w += vq.need(tg)
                E(w[-1:]); E(dq.drain()); E("s_barrier")
                if afterbar: afterbar()
            if jj == 3 and doread: pend += frd(t + 1, cb)
            if vi < len(sched) and m == sched[vi][0]:
                assert not pres[vi]
                op = sched[vi][1]
                E(op[1]); vq.issue(op[2]); post += op[3]; vi += 1
            else:
                used = 0
                if not (isbar and m < barpos) and pend:
                    ins, tag = pend.pop(0); E(ins); dq.issue(tag); used += 1
                k = next((k for k in range(vi, len(sched)) if pres[k]), None)
                while k is not None and pres[k] and used < 2: E(pres[k].pop(0)); used += 1
                if post and used < 2: E(post.pop(0)); used += 1
                cyc = 4 * used
                while va and cyc + va[0][1] <= vcap:
                    x, c = va.pop(0); E(x); cyc += c
        for ins, tag in pend: E(ins); dq.issue(tag)
        E(post)
    oflag = [([], f"buffer_load_dwordx2 v[30:31], v253, s[48:51], s97 offen {WT}", ("F", 0), [])]
    def loop_body(E, real):
        for t in range(8):
            fstep(t, E, extra=oflag if t == 2 else ())
            if t == 0 and real:
                A.e(["s_cmp_lg_u32 s95, 0", f"s_cbranch_scc1 {L('nosw')}"])
                check_flags("O", 30, 253, "s97")
                srd(A, 40, P_WS, SZ_OF, WS_OF); srd(A, 44, P_WO, 4096 * 2048)
                A.e(["s_mov_b32 s8, s75", "s_mov_b32 s9, s96", "s_mov_b32 s97, s101", "v_mov_b32 v253, 0"] + [f"v_mov_b32 v{5+jj}, v{242+jj}" for jj in range(4)])
                A.label(L("nosw"))
    XP8 = (1, 2, 4, 8, 12, 16, 20, 24)
    for t in range(8):
        k0 = sum(ost[:t]); ex = ostores[k0:k0 + ost[t]] if t < len(ost) else ()
        fstep(t, A.e, extra=ex, czero=(t == 0), xp=XP8 if t % 2 == 0 else (4, 5, 8, 12, 16, 20, 24, 28),
              needbar=[("O", 0)] if t == oflt else (), afterbar=(lambda: flag_store("s89")) if t == oflt else None)
    stamp(6)
    vq.rebase(8); dq.rebase(8)
    q_first = (list(vq.q), list(dq.q))
    loop_body(lambda x: None, False)
    vq.rebase(8); dq.rebase(8)
    q_steady = (list(vq.q), list(dq.q))
    assert not any(t[0] == "F" for t in q_steady[0]) and N1S >= 3 and N1Y >= 3
    def covers(entry, steady):
        def younger(q, tag): return len(q) - 1 - max(i for i, t in enumerate(q) if t == tag)
        for tag in set(entry):
            if tag[0] not in "WXA": continue
            if tag not in steady or younger(entry, tag) < younger(steady, tag): return False
        return True
    assert covers(q_first[0], q_steady[0]) and covers(q_first[1], q_steady[1]), (q_first, q_steady)
    A.raw(".p2align 6")
    A.label(L("floop"))
    loop_body(A.e, True)
    A.e(["s_sub_u32 s95, s95, 1", "s_sub_u32 s90, s90, 1", "s_cmp_lg_u32 s90, 0", f"s_cbranch_scc1 {L('floop')}",
         "s_cmp_lg_u32 s91, 0", f"s_cbranch_scc1 {L('flast')}"])
    stamp(3, 2)
    vq.rebase(8); dq.rebase(8)
    YS = lambda cb, jj: 160 + (cb * 2 + jj) * 4
    A.e("s_nop 2")
    for rnd in range(2):
        for cb in range(4 * rnd, 4 * rnd + 4):
            for jj in (2, 3): A.e(f"ds_write_b128 v254, {facc(cb,jj)} offset:{((cb%4)*2+jj-2)*1024}")
        if rnd == 1:
            for cb in range(4):
                for jj in range(2):
                    b = 32 + (cb * 4 + jj) * 4; y = YS(cb, jj)
                    A.e([f"v_pk_add_f32 v[{y+r_}:{y+r_+1}], v[{b+r_}:{b+r_+1}], v[{b+8+r_}:{b+9+r_}]" for r_ in (0, 2)])
        A.e(["s_waitcnt lgkmcnt(0)", "s_barrier"])
        for cb in range(4 * rnd, 4 * rnd + 4):
            for jj in (2, 3): A.e(f"ds_read_b128 {facc(cb,jj)}, v255 offset:{((cb%4)*2+jj-2)*1024}")
        if rnd == 0: A.e(["s_waitcnt lgkmcnt(0)", "s_barrier"])
    for cb in range(4, 8):
        for jj in range(2):
            b = 32 + (cb * 4 + jj) * 4; y = YS(cb, jj)
            A.e(f"s_waitcnt lgkmcnt({7 - ((cb-4)*2+jj)})")
            A.e([f"v_pk_add_f32 v[{y+r_}:{y+r_+1}], v[{b+r_}:{b+r_+1}], v[{b+8+r_}:{b+9+r_}]" for r_ in (0, 2)])
    A.e(["s_cmp_eq_u32 s72, 0", f"s_cbranch_scc1 {L('firstC')}", "s_add_u32 s6, s92, 4096"])
    for jj in range(2):
        for i in range(4):
            d = 224 + (i % 2) * 4 + jj * 8
            for h in range(2):
                y = YS(2 * i + h, jj)
                A.e([f"v_cvt_pk_bf16_f32 v{d+2*h}, v{y}, v{y+1}", f"v_cvt_pk_bf16_f32 v{d+2*h+1}, v{y+2}, v{y+3}"])
            A.e(f"buffer_store_dwordx4 {v(d,4)}, v4, s[52:55], {'s6' if jj else 's92'} offen offset:{i*1024} {WT}")
    A.label(L("firstC"))
    stamp(4, 2)
    vq.q, dq.q = list(q_steady[0]), list(q_steady[1])
    def pflag():
        lab = L("pf")
        A.e(["s_xor_b32 s15, s72, 1", "s_or_b32 s15, s15, s3", "s_cmp_lg_u32 s15, 0", f"s_cbranch_scc1 {lab}", "s_mov_b64 exec, 1",
             f"buffer_store_dwordx2 v[250:251], v252, s[48:51], s101 offen {WT}", "s_mov_b64 exec, -1"])
        A.label(lab)
    xpre = ["v_lshrrev_b32 v228, 4, v0", "v_and_b32 v229, 15, v0", "v_xor_b32 v229, v229, v228"]
    for i in range(4):
        xpre += [f"v_xor_b32 v{224+i}, {4*i}, v229", f"v_lshlrev_b32 v{224+i}, 4, v{224+i}", f"v_lshl_add_u32 v{224+i}, v228, 11, v{224+i}",
                 f"v_add_u32 v{224+i}, {7168*i}, v{224+i}"]
    xdma = [(([f"s_lshl_b32 s15, s3, 13", f"s_add_u32 m0, s15, {0x10000 + 4096*hh}", f"s_add_u32 s6, s94, {0x8000*hh}"] if i == 0 else []),
             f"buffer_load_dwordx4 v{224+i}, s[64:67], s6 offen offset:{i*1024} lds", ("R", 0), []) for hh in range(2) for i in range(4)]
    for t in range(8):
        fstep(t, A.e, czero=(t == 0), afterbar=pflag if t == 5 else None, extra=oflag if t == 2 else ())
    vq.rebase(8); dq.rebase(8)
    assert covers(vq.q, q_steady[0]) and covers(dq.q, q_steady[1]) and not any(t[0] == "F" for t in vq.q)
    stamp(5, 2)
    A.e(["s_mov_b32 s91, 1", f"s_mov_b32 s90, {(44-SS)//8}", "s_cmp_lg_u32 s72, 0", f"s_cbranch_scc1 {L('floop')}"])
    check_flags("P", 30, 252, "s101")
    YP = lambda jj, i: 224 + (jj * 4 + i) * 4
    YA = lambda i: 80 + i * 4
    A.e(xpre)
    for op in xdma: A.e(op[0] + (["s_nop 0"] if op[0] else []) + [op[1]])
    A.e("s_add_u32 s6, s92, 4096")
    for i in range(4):
        A.e([f"buffer_load_dwordx4 {v(YP(0,i),4)}, v4, s[52:55], s92 offen offset:{i*1024} {WT}",
             f"buffer_load_dwordx4 {a(YA(i),4)}, v4, s[52:55], s6 offen offset:{i*1024} {WT}"])
    A.e([f"s_mov_b32 s90, {(SS-20)//8}", f"s_branch {L('floop')}"])
    A.label(L("flast"))
    stamp(6, 2)
    A.e(["s_mov_b32 s6, 0xbfb8aa3b", "s_mov_b32 s7, 0xbfb8aa3b", "s_cmp_lg_u32 s72, 0", f"s_cbranch_scc1 {L('flast2')}"])
    for cb in range(8):
        y = YS(cb, 0); pc = YP(0, cb // 2) + 2 * (cb % 2); T0 = 240 if cb % 2 == 0 else 242
        T0 = 240
        A.e([f"v_lshlrev_b32 v{T0}, 16, v{pc}", f"v_and_b32 v{T0+1}, 0xffff0000, v{pc}",
             f"v_lshlrev_b32 v{T0+2}, 16, v{pc+1}", f"v_and_b32 v{T0+3}, 0xffff0000, v{pc+1}"])
        A.e([f"v_pk_add_f32 v[{y+r_}:{y+r_+1}], v[{y+r_}:{y+r_+1}], v[{T0+r_}:{T0+r_+1}]" for r_ in (0, 2)])
        A.e([f"v_pk_mul_f32 v[{T0+r_}:{T0+r_+1}], v[{y+r_}:{y+r_+1}], s[6:7]" for r_ in (0, 2)])
        A.e([f"v_exp_f32 v{T0+r_}, v{T0+r_}" for r_ in range(4)])
        A.e([f"v_pk_add_f32 v[{T0+r_}:{T0+r_+1}], v[{T0+r_}:{T0+r_+1}], 1.0 op_sel_hi:[1,0]" for r_ in (0, 2)])
        A.e([f"v_rcp_f32 v{T0+r_}, v{T0+r_}" for r_ in range(4)])
        A.e([f"v_pk_mul_f32 v[{y+r_}:{y+r_+1}], v[{y+r_}:{y+r_+1}], v[{T0+r_}:{T0+r_+1}]" for r_ in (0, 2)])
    A.label(L("flast2"))
    vq.q, dq.q = list(q_steady[0]), list(q_steady[1])
    va = []
    for cb in range(8):
        y = YS(cb, 1); pc = YA(cb // 2) + 2 * (cb % 2); T0 = 224 + 4 * (cb % 2)
        va += [(f"v_accvgpr_read_b32 v{T0+1}, a{pc}", 4), (f"v_accvgpr_read_b32 v{T0+3}, a{pc+1}", 4),
               (f"v_lshlrev_b32 v{T0}, 16, v{T0+1}", 4), (f"v_and_b32 v{T0+1}, 0xffff0000, v{T0+1}", 4),
               (f"v_lshlrev_b32 v{T0+2}, 16, v{T0+3}", 4), (f"v_and_b32 v{T0+3}, 0xffff0000, v{T0+3}", 4)]
        va += [(f"v_add_f32 v{y+r_}, v{y+r_}, v{T0+r_}", 4) for r_ in range(4)]
        va += [(f"v_mul_f32 v{T0+r_}, s7, v{y+r_}", 4) for r_ in range(4)]
        va += [(f"v_exp_f32 v{T0+r_}, v{T0+r_}", 8) for r_ in range(4)]
        va += [(f"v_add_f32 v{T0+r_}, 1.0, v{T0+r_}", 4) for r_ in range(4)]
        va += [(f"v_rcp_f32 v{T0+r_}, v{T0+r_}", 8) for r_ in range(4)]
        va += [(f"v_mul_f32 v{y+r_}, v{y+r_}, v{T0+r_}", 4) for r_ in range(4)]
    fin = [(["v_mov_b32 v29, 0"], f"buffer_load_dwordx2 v[30:31], v29, s[48:51], s93 offen {WT}", ("G", 0), [])]
    for t in range(12):
        fstep(t, A.e, last=True, extra={9: fin}.get(t, ()), va=va if t >= vat else None)
    A.c(f"left over fillers: {len(va)}")
    for x, c in va: A.e(x)
    stamp(7)
    A.e(["v_mov_b32 v22, s98", "v_mov_b32 v23, s99", f"s_add_u32 s6, s92, {G_SF}", f"s_add_u32 s7, s92, {G_SF+4096}",
         "s_cmp_lg_u32 s72, 0", f"s_cbranch_scc1 {L('xch')}"])
    A.e(vq.need(("G", 0))); check_flags("G", 30, 29, "s93")
    for jj in range(2):
        for i in range(4):
            A.e(f"buffer_load_dwordx4 {v(YP(jj,i),4)}, v4, s[52:55], s{6+jj} offen offset:{i*1024} {WT}")
    A.label(L("xch"))
    A.e("s_nop 2")
    for cb in range(8):
        for jj in (2, 3):
            A.e(f"ds_write_b128 v2, {facc(cb,jj)} offset:{(cb*2+jj-2)*1024}")
    A.e(["s_waitcnt lgkmcnt(0)", "s_barrier"])
    for jj in (2, 3):
        for cb in range(8):
            A.e(f"ds_read_b128 {facc(cb,jj)}, v3 offset:{(cb*2+jj-2)*1024}")
    A.e(["s_cmp_eq_u32 s72, 0", f"s_cbranch_scc1 {L('sepi')}"])
    for jj in range(2):
        for i in range(4):
            dst = 160 + (jj * 4 + i) * 4
            for h in range(2):
                cb = 2 * i + h
                A.e(f"s_waitcnt lgkmcnt({15 - (jj*8+cb)})")
                b = 32 + (cb * 4 + jj) * 4
                A.e([f"v_pk_add_f32 v[{b+r_}:{b+r_+1}], v[{b+r_}:{b+r_+1}], v[{b+8+r_}:{b+9+r_}]" for r_ in (0, 2)])
                A.e([f"v_cvt_pk_bf16_f32 v{dst+2*h}, v{b}, v{b+1}", f"v_cvt_pk_bf16_f32 v{dst+2*h+1}, v{b+2}, v{b+3}"])
            A.e(f"buffer_store_dwordx4 {v(dst,4)}, v4, s[52:55], s{6+jj} offen offset:{i*1024} {WT}")
    A.e(["s_waitcnt vmcnt(0)", "s_mov_b64 exec, 1",
         f"buffer_store_dwordx2 v[22:23], v29, s[48:51], s93 offen {WT}", "s_mov_b64 exec, -1", f"s_branch {L('fin')}"])
    A.label(L("sepi"))
    A.e(["v_and_b32 v1, 15, v0", "v_lshrrev_b32 v5, 5, v0", "v_xor_b32 v5, v5, v1", "v_bfe_u32 v6, v0, 4, 1", "v_lshlrev_b32 v6, 3, v6",
         "v_lshl_add_u32 v6, v1, 8, v6", "s_lshl_b32 s15, s3, 13", "s_add_u32 s15, s15, 0x10000", "v_add_u32 v6, s15, v6"])
    XR = lambda cb, jj: 96 + (cb * 2 + jj) * 2
    for cb in range(8):
        A.e([f"v_xor_b32 v7, {2*cb}, v5", "v_lshl_add_u32 v7, v7, 4, v6",
             f"ds_read_b64 {a(XR(cb,0),2)}, v7", f"ds_read_b64 {a(XR(cb,1),2)}, v7 offset:4096"])
    A.e("s_waitcnt lgkmcnt(0)")
    for jj in range(2):
        for i in range(4):
            o = YP(jj, i)
            for h in range(2):
                cb = 2 * i + h
                b = 32 + (cb * 4 + jj) * 4; y = YS(cb, jj); xa = XR(cb, jj); T0 = 8 + 8 * h
                A.e([f"v_accvgpr_read_b32 v{T0+1}, a{xa}", f"v_accvgpr_read_b32 v{T0+3}, a{xa+1}"])
                A.e([f"v_pk_add_f32 v[{b+r_}:{b+r_+1}], v[{b+r_}:{b+r_+1}], v[{b+8+r_}:{b+9+r_}]" for r_ in (0, 2)])
                A.e([f"v_lshlrev_b32 v{T0}, 16, v{T0+1}", f"v_and_b32 v{T0+1}, 0xffff0000, v{T0+1}",
                     f"v_lshlrev_b32 v{T0+2}, 16, v{T0+3}", f"v_and_b32 v{T0+3}, 0xffff0000, v{T0+3}"])
                if h == 0: A.e("s_waitcnt vmcnt(7)")
                A.e([f"v_lshlrev_b32 v{T0+4}, 16, v{o+2*h}", f"v_and_b32 v{T0+5}, 0xffff0000, v{o+2*h}",
                     f"v_lshlrev_b32 v{T0+6}, 16, v{o+2*h+1}", f"v_and_b32 v{T0+7}, 0xffff0000, v{o+2*h+1}"])
                A.e([f"v_pk_add_f32 v[{b+r_}:{b+r_+1}], v[{b+r_}:{b+r_+1}], v[{T0+4+r_}:{T0+5+r_}]" for r_ in (0, 2)])
                A.e([f"v_pk_fma_f32 v[{b+r_}:{b+r_+1}], v[{b+r_}:{b+r_+1}], v[{y+r_}:{y+r_+1}], v[{T0+r_}:{T0+r_+1}]" for r_ in (0, 2)])
                A.e([f"v_cvt_pk_bf16_f32 v{o+2*h}, v{b}, v{b+1}", f"v_cvt_pk_bf16_f32 v{o+2*h+1}, v{b+2}, v{b+3}"])
            A.e(["s_nop 1", f"v_permlane32_swap_b32 v{o}, v{o+2}", f"v_permlane32_swap_b32 v{o+1}, v{o+3}", "s_nop 0",
                 f"v_permlane16_swap_b32 v{o}, v{o+2}", f"v_permlane16_swap_b32 v{o+1}, v{o+3}",
                 f"buffer_store_dwordx4 {v(o,4)}, v{27+jj}, s[68:71], s94 offen offset:{i*64}"])
    A.label(L("fin"))
    if stamps:
        srd(A, 40, P_WS, 0x100000, WS_STAMP)
        A.e(["s_waitcnt vmcnt(0)", "s_memtime s[76:77]", "s_memrealtime s[78:79]", "s_waitcnt lgkmcnt(0)",
             "v_mov_b32 v8, s76", "v_mov_b32 v9, s78", "v_mov_b32 v10, s72", "v_mov_b32 v11, 0",
             "s_lshl_b32 s10, s2, 2", "s_add_u32 s10, s10, s3", "s_lshl_b32 s10, s10, 7", "v_mov_b32 v1, s10", "s_mov_b64 exec, 1"])
        for k in range(4): A.e(f"buffer_store_dwordx4 a[{240+4*k}:{243+4*k}], v1, s[40:43], 0 offen offset:{16*k}")
        A.e("buffer_store_dwordx4 v[8:11], v1, s[40:43], 0 offen offset:64")
    if dbgst:
        srd(A, 40, P_DBG, 256)
        A.e(["s_and_b32 s10, s2, 0xfb", "s_or_b32 s10, s10, s3", "s_cmp_lg_u32 s10, 0", f"s_cbranch_scc1 {L('end')}", "s_mov_b64 exec, 1",
             "v_accvgpr_read_b32 v12, a241", "s_lshl_b32 s10, s2, 3", "v_mov_b32 v1, s10"])
        for k in range(1, 8): A.e([f"v_accvgpr_read_b32 v13, a{241+2*k}", f"v_sub_u32 v{15+k}, v13, v12"])
        A.e(["v_sub_u32 v23, v9, v12", "buffer_store_dwordx4 v[16:19], v1, s[40:43], 0 offen", "buffer_store_dwordx4 v[20:23], v1, s[40:43], 0 offen offset:16"])
    A.label(L("end"))
    A.e("s_endpgm")
    for tag, reg, addr, off in spins:
        A.label(L("spin" + tag))
        A.e(SPINB)
        A.label(L("spinl" + tag))
        A.e(["s_sleep 2", f"buffer_load_dwordx2 v[{reg}:{reg+1}], v{addr}, s[48:51], {off} offen {WT}", "s_waitcnt vmcnt(0)",
             "s_sub_u32 s12, s12, 1", f"s_cbranch_scc1 {L('ok' + tag)}",
             f"v_cmp_ne_u64 vcc, s[98:99], v[{reg}:{reg+1}]", f"s_cbranch_vccnz {L('spinl' + tag)}", f"s_branch {L('ok' + tag)}"])
    for T in rare_sites:
        A.label(L("rs%d" % T))
        A.e([f"s_call_b64 s[6:7], {L('rare%d' % (T & 1))}", f"s_branch {L('rb%d' % T)}"])
    for b in range(2):
        A.label(L("rare%d" % b))
        A.e(["s_nop 15", "s_nop 15"])
        for mu in range(2):
            S = SB(b, mu); S2 = SB(b ^ 1, mu)
            A.e(rowmax(S, VT, VT + 2))
            A.e([f"v_max_f32 v{VT}, 0, v{VT}", f"v_exp_f32 v{VT+1}, -v{VT}"])
            A.e([f"v_sub_f32 v{NM(mu)+k}, v{NM(mu)+k}, v{VT}" for k in range(16)])
            A.e([f"v_sub_f32 v{S+k}, v{S+k}, v{VT}" for k in range(16)])
            A.e([f"v_sub_f32 v{S2+k}, v{S2+k}, v{VT}" for k in range(16)])
            A.e(f"v_mul_f32 v{VL+mu}, v{VL+mu}, v{VT+1}")
            for i in range(4):
                o = (i * 2 + mu) * 16
                for k in range(16):
                    A.e([f"v_accvgpr_read_b32 v{VT+2}, a{o+k}", f"v_mul_f32 v{VT+2}, v{VT+2}, v{VT+1}", f"v_accvgpr_write_b32 a{o+k}, v{VT+2}"])
            for k in range(0, 16, 2):
                A.e([f"v_exp_f32 v{EB}, v{S+k}", f"v_exp_f32 v{EB+1}, v{S+k+1}", "s_nop 0",
                     f"v_cvt_pk_bf16_f32 v{PB(b,mu)+k//2}, v{EB}, v{EB+1}", f"v_add_f32 v{EB}, v{EB}, v{EB+1}",
                     f"v_mov_b32 v{VTS+mu}, v{EB}" if k == 0 else f"v_add_f32 v{VTS+mu}, v{VTS+mu}, v{EB}"])
        A.e(["s_nop 3", "s_setpc_b64 s[6:7]"])
    A.label(f"{name}_codeend")
    return (name, 512, 256, "(256,1,1)", "(256,1,1)", 163840)
```

```python
from asmlib import *
import copy

WS_XF, WS_HF, WS_OF, WS_GF, WS_FLAG, WS_STAMP = 0, 0x400000, 0x1200000, 0x2200000, 0x2600000, 0x2700000
SZ_XF, SZ_HF, SZ_OF, SZ_GF, SZ_FLAG = 0x400000, 0xE00000, 0x1000000, 0x400000, 0x4800
P_X, P_K, P_V, P_WQ, P_WO, P_BX, P_WG, P_WU, P_WD, P_OUT, P_DBG, P_WS = 16, 18, 20, 22, 24, 26, 28, 30, 32, 34, 36, 38
LOADARGS = ["s_load_dwordx16 s[16:31], s[0:1], 0", "s_load_dwordx8 s[32:39], s[0:1], 64"]

class Q:
    def __init__(self, name, cap, slack=None):
        self.name, self.cap = name, cap
        self.slack = cap if slack is None else slack
        self.q = []; self.total = 0
    def issue(self, tag): self.q.append(tag); self.total += 1
    def count_after(self, tag):
        if tag not in self.q: return None
        idx = max(i for i, t in enumerate(self.q) if t == tag)
        return len(self.q) - 1 - idx
    def need(self, tag, slack=None):
        n = (self.total - tag[1]) if tag[0] == 'MARK' else self.count_after(tag)
        if n is None: return []
        n = min(n, self.slack if slack is None else slack, self.cap)
        self.q = self.q[max(0, len(self.q) - n):] if n else []
        return [f"s_waitcnt {self.name}({n})"]
    def drain(self):
        self.q = []
        return [f"s_waitcnt {self.name}(0)"]
    def rebase(self, d):
        self.q = [(t[0], t[1] - d) + tuple(t[2:]) for t in self.q]

def mfma16(d, A, B, c=None):
    c = d if c is None else c
    return f"v_mfma_f32_16x16x32_bf16 {d}, {A}, {B}, {c}"
```

```python
from common import *
import struct, math
QSCALE = struct.unpack("<I", struct.pack("<f", math.log2(math.e) / math.sqrt(128.0)))[0]
THR = 0x49800000
FL_L, FL_H, FL_O, FL_P, FL_SZ = 0x4000, 0x6000, 0x8000, 0xA000, 0xE000
G_BASE, G_SF, G_PF, G_SZ = 0x2200000, 0x600000, 0xA00000, 0x1200000
SS_UNUSED = 28
N1S, N1Y = 4, 3
WT = "sc0 sc1"
SPINB = "s_mov_b32 s12, 0x40000"

def kf(A, name="kf_kernel", stamps=0, thr=THR, vpos=(6, 10, 14, 18, 22, 26, 29, 30), barpos=3, apol=WT, pfT=0, pfG=0, cpf=1, ln=1, dbgst=0, pst=0, psleep=1, hwb=0, cap=24, dsl=6, vcap=8, ost=(8, 8), oflt=3, rotm=(1, 2), xpol=None, gdbg=0, pfs=7, pfA=2, rot0=1, vat=None, pft=3, tail=8, kmap=1, SS=None):
    L = lambda s: f"{name}_{s}"
    if SS is None: SS = 32 if tail == 8 else 28
    if vat is None: vat = tail - 7
    vq = Q("vmcnt", 63); dq = Q("lgkmcnt", 15, 10)
    def stamp(i, pro=0):
        if not stamps: return
        if pst == 1:
            if pro == 0 and i == 1: i = 7
            elif not (pro == 1 or i == 0): return
        elif pst == 2:
            if pro == 0 and i == 5: i = 1
            elif pro == 0 and i == 6: i = 2
            elif not (pro == 2 or (pro == 0 and i in (0, 7))): return
        elif pro: return
        A.e(["s_memtime s[76:77]", "s_memrealtime s[78:79]", "s_waitcnt lgkmcnt(0)", "v_mov_b32 v30, s76", f"v_accvgpr_write_b32 a{240+2*i}, v30",
             "v_mov_b32 v30, s78", f"v_accvgpr_write_b32 a{241+2*i}, v30"]); dq.drain()
    A.raw(kernel_head(name))
    A.e(["s_cmp_ge_u32 s2, 256", f"s_cbranch_scc1 {L('end')}"])
    stamp(0)
    A.e(LOADARGS)
    A.e(["v_lshrrev_b32 v1, 6, v0", "v_and_b32 v0, 63, v0", "s_nop 0", "v_readfirstlane_b32 s3, v1",
         "s_and_b32 s10, s2, 7", "s_lshr_b32 s11, s2, 3", "s_and_b32 s4, s11, 7", "s_lshr_b32 s11, s11, 3",
         "s_lshl_b32 s5, s10, 2", "s_add_u32 s5, s5, s11",
         f"s_mul_i32 s14, s11, {rotm[1]}", f"s_mul_i32 s12, s4, {rotm[0]}", "s_add_u32 s14, s14, s12"])
    if ln:
        A.e(["v_and_b32 v40, 7, v0", "v_lshrrev_b32 v41, 3, v0", "s_lshl_b32 s12, s3, 5", "v_add_u32 v41, s12, v41",
             "v_lshlrev_b32 v42, 11, v40", "v_lshl_add_u32 v42, v41, 4, v42",
             "s_lshl_b32 s12, s4, 5", "s_add_u32 s91, s12, s5", "s_lshl_b32 s12, s91, 14",
             "s_waitcnt lgkmcnt(0)"])
        srd(A, 64, P_X, 2048 * 2048)
        for i in range(4):
            A.e(f"buffer_load_dwordx4 v[{48+4*i}:{51+4*i}], v42, s[64:67], s12 offen offset:{128*i}"); vq.issue(("L", 0))
        srd(A, 60, P_DBG, 256)
        A.e(["v_mov_b32 v47, 0", "s_or_b32 s12, s2, s3", "s_cmp_lg_u32 s12, 0", f"s_cbranch_scc1 {L('nn')}",
             "s_memrealtime s[12:13]", "s_waitcnt lgkmcnt(0)", "s_or_b32 s12, s12, 1", "v_mov_b32 v38, s12", "v_mov_b32 v39, s13", "s_mov_b64 exec, 1",
             f"buffer_store_dwordx2 v[38:39], v47, s[60:63], 0 offen {WT}", "s_mov_b64 exec, -1"])
        A.label(L("nn"))
    A.e([
         "v_lshrrev_b32 v30, 4, v0", "v_and_b32 v31, 15, v0",
         "s_lshr_b32 s12, s3, 1", "s_lshl_b32 s12, s12, 1",
         "v_lshlrev_b32 v1, 2, v30", "v_or_b32 v1, s12, v1", "v_xor_b32 v31, v31, v1",
         "s_lshl_b32 s12, s3, 2", "v_add_u32 v30, s12, v30",
         "v_lshlrev_b32 v2, 13, v30", "s_lshl_b32 s12, s5, 8", "v_lshl_add_u32 v2, v31, 4, v2", "v_add_u32 v2, s12, v2",
         "v_lshrrev_b32 v1, 1, v31", "v_min_u32 v1, 6, v1", "s_and_b32 s13, s5, 1", "v_add_u32 v1, s13, v1",
         "v_cmp_eq_u32 vcc, 7, v1", "v_and_b32 v31, 1, v31", "s_nop 0", "v_cndmask_b32 v1, v1, 0, vcc",
         "v_lshl_or_b32 v1, v1, 1, v31",
         "v_mul_u32_u24 v3, 7168, v30", "s_mul_i32 s12, s5, 224", "v_add_u32 v3, s12, v3", "v_lshl_add_u32 v3, v1, 4, v3",
         "s_lshl_b32 s12, s4, 4", "s_lshl_b32 s13, s3, 2", "s_add_u32 s15, s12, s13",
         "s_lshl_b32 s12, s15, 15", "v_lshlrev_b32 v4, 4, v0", "v_add_u32 v5, s12, v4",
         "v_add_u32 v6, 0x8000, v5", "v_add_u32 v7, 0x10000, v5", "v_add_u32 v8, 0x18000, v5",
         "s_mul_i32 s10, s3, 3072", "s_add_u32 s10, s10, 65536", "s_mov_b32 s11, 0",
         "s_waitcnt lgkmcnt(0)"])
    srd(A, 44, P_WQ, 1024 * 4096 * 2)
    srd(A, 48, P_WG, 1024 * 3584 * 2 + 1024, -1024)
    srd(A, 52, P_WU, 1024 * 3584 * 2 + 2048, -2048)
    srd(A, 40, P_WS, SZ_XF, WS_XF)

    def acc(blk, j):
        if blk < 14: return v(32 + (blk * 4 + j) * 4, 4)
        return a(((blk - 14) * 4 + j) * 4, 4)
    Afr = lambda blk, h=None: a(192 + (blk % 11) * 4, 4) if h is None else a(192 + (blk % 11) * 4 + 2 * h, 2)
    Bfr = lambda slot, j: a(128 + slot * 16 + j * 4, 4)
    NEXTK = ([] if rot0 == 7 else ["s_cmp_lt_u32 s11, 8", f"s_cselect_b32 s13, {rot0}, 7", "s_and_b32 s13, s13, s14"]) + ["s_add_u32 s12, s11, s14" if rot0 == 7 else "s_add_u32 s12, s11, s13", "s_and_b32 s12, s12, 7", "s_and_b32 s13, s11, 0x18", "s_or_b32 s12, s12, s13",
             "s_add_u32 s11, s11, 1", "s_lshl_b32 s6, s12, 18", "s_mul_i32 s7, s12, 229376", "s_lshl_b32 s8, s12, 10"]
    def d_ops(p, h):
        base = (p % 4) * 24576 + h * 12288
        return [((NEXTK if h == 0 else []) + [f"s_add_u32 m0, s10, {base}"], "buffer_load_dwordx4 v2, s[44:47], s6 offen lds", ("D", p, h), ["s_add_u32 s6, s6, 131072"] if h == 0 else []),
                ([], "buffer_load_dwordx4 v3, s[48:51], s7 offen offset:1024 lds", ("D", p, h), []),
                ([], "buffer_load_dwordx4 v3, s[52:55], s7 offen offset:2048 lds", ("D", p, h), ["s_add_u32 s7, s7, 114688"] if h == 0 else [])]
    def x_ops(p):
        return [([], f"buffer_load_dwordx4 {Bfr(p % 4, j)}, v{5+j}, s[40:43], s8 offen {apol if xpol is None else xpol}", ("X", p), []) for j in range(4)]
    def rd_ops(t, blk):
        part, cb = (1 + (blk & 1), blk >> 1) if blk < 14 else (0, blk - 14)
        slot = t % 4
        reg = (9 if slot < 2 else 17) + cb
        off = (slot % 2) * 24576 + part * 1024
        return [(f"ds_read_b64_tr_b16 {Afr(blk,0)}, v{reg} offset:{off}", ("A", t, blk)),
                (f"ds_read_b64_tr_b16 {Afr(blk,1)}, v{reg} offset:{off+3072}", ("A", t, blk))]
    def emit_vm(op, E, nop=False):
        pre, ins, tag, post = op
        E(pre)
        if pre and nop: E("s_nop 0")
        E(ins); vq.issue(tag); E(post)
    def kv_ops(kind, P):
        reg = 0 if kind == "K" else 65536
        sr = "s[64:67]" if kind == "K" else "s[68:71]"
        ops = []
        for i in range(4):
            ops.append(([f"s_add_u32 m0, s92, {reg + (P % 4) * 16384}", f"s_add_u32 s94, s93, {P * 16384}"] if i == 0 else [],
                        f"buffer_load_dwordx4 v{25+i if kind == 'K' else 29}, {sr}, s94 offen offset:{i*1024} lds", (kind, P), []))
        return ops
    def pf_op(k):
        return [([], f"buffer_load_dword a239, v31, {'s[72:75], s96' if k == 0 else 's[80:83], s97'} offen", ("P", 0), [f"s_add_u32 s{96+k}, s{96+k}, 1024"])]
    for op in d_ops(0, 0) + d_ops(0, 1): emit_vm(op, A.e, True)
    A.e("s_mov_b32 s88, s8")
    cpn = [0]
    def code_touch(vr, dst):
        lab = L("pc%d" % cpn[0]); cpn[0] += 1
        pre = ["s_getpc_b64 s[76:77]", lab + ":", f"s_sub_u32 s76, s76, {lab}-{name}", "s_subb_u32 s77, s77, 0",
               "s_lshr_b32 s78, s2, 3", "s_lshl_b32 s78, s78, 2", "s_add_u32 s78, s78, s3", "s_lshl_b32 s78, s78, 9",
               f"v_and_b32 v{vr}, 7, v0", f"v_lshlrev_b32 v{vr}, 7, v{vr}", f"v_mul_u32_u24 v{vr}, 0x81, v{vr}", f"v_and_b32 v{vr}, 0x10180, v{vr}",
               f"v_add_u32 v{vr}, s78, v{vr}", f"v_min_u32 v{vr}, {name}_codeend-{name}-4, v{vr}"]
        return (pre, f"global_load_dword {dst}, v{vr}, s[76:77]", ("C", 0), [])
    if cpf:
        emit_vm(code_touch(30, "a238"), A.e)
    A.e(["v_lshrrev_b32 v1, 4, v0", "v_mul_u32_u24 v30, 6144, v1", "v_and_b32 v1, 1, v1",
         "v_bfe_u32 v31, v0, 2, 2", "v_lshl_add_u32 v30, v31, 8, v30", "v_lshl_or_b32 v31, v31, 1, v1",
         "v_and_b32 v1, 3, v0", "v_lshl_add_u32 v30, v1, 3, v30", "v_add_u32 v30, 0x10000, v30"])
    for cb in range(8):
        A.e([f"v_xor_b32 v1, {cb}, v31", f"v_lshl_add_u32 v{9+cb}, v1, 5, v30", f"v_add_u32 v{17+cb}, 49152, v{9+cb}"])
    srd(A, 84, P_WS, FL_SZ, WS_FLAG)
    srd(A, 64, P_K, 4 * 2048 * 256)
    srd(A, 68, P_V, 4 * 2048 * 256)
    srd(A, 56, P_WS, SZ_HF, WS_HF)
    A.e(["s_lshr_b32 s12, s91, 1", "s_lshl_b32 s12, s12, 15", "s_and_b32 s13, s91, 1", "s_lshl_b32 s13, s13, 7", "s_add_u32 s90, s12, s13",
         "v_lshlrev_b32 v43, 8, v41", "v_lshl_add_u32 v43, v40, 4, v43",
         "v_lshlrev_b32 v44, 4, v40", "s_lshl_b32 s12, s3, 2", "v_add_u32 v45, s12, v44"])
    A.e(["v_lshrrev_b32 v30, 4, v0", "v_and_b32 v31, 15, v0", "v_xor_b32 v1, v31, v30"])
    for i in range(4):
        A.e([f"v_xor_b32 v{25+i}, {4*i}, v1", f"v_lshlrev_b32 v{25+i}, 4, v{25+i}", f"v_lshl_add_u32 v{25+i}, v30, 8, v{25+i}"])
    A.e(["v_lshlrev_b32 v1, 2, v30", "v_xor_b32 v1, v31, v1", "v_lshlrev_b32 v1, 4, v1", "v_lshl_add_u32 v29, v30, 8, v1",
         "s_lshr_b32 s12, s5, 3", "s_lshl_b32 s12, s12, 19", "s_lshl_b32 s92, s3, 12",
         "s_add_u32 s93, s12, s92", f"s_add_u32 s93, s93, {1536*256}",
         "s_mov_b32 s9, 7"])
    if pfG in (1, 2):
        srd(A, 72, P_WO, 4096 * 2048); srd(A, 80, P_WD, 3584 * 2048)
        A.e(["s_lshl_b32 s12, s2, 2", "s_add_u32 s12, s12, s3", "s_lshl_b32 s96, s12, 13", "s_mul_i32 s97, s12, 7168",
             f"v_and_b32 v31, {7 if pfs == 7 else 3}, v0", f"v_lshlrev_b32 v31, {pfs}, v31"])
    A.e(["v_and_b32 v131, 31, v0", "v_lshlrev_b32 v131, 5, v131", "s_lshl_b32 s95, s4, 10", f"s_add_u32 s95, s95, {FL_L}",
         "s_lshl_b32 s91, s91, 5", f"s_add_u32 s91, s91, {FL_L}"])
    A.e([f"v_accvgpr_write_b32 a{i}, 0" for i in range(128)] + [f"v_mov_b32 v{i}, 0" for i in range(132, 256)])
    stamp(1, 1)
    A.e(vq.need(("L", 0)))
    stamp(2, 1)
    A.e(f"buffer_load_dwordx2 v[128:129], v47, s[60:63], 0 offen {WT}"); vq.issue(("N", 0))
    X0 = 64
    for i in range(16):
        A.e([f"v_lshlrev_b32 v{X0+2*i}, 16, v{48+i}", f"v_and_b32 v{X0+1+2*i}, 0xffff0000, v{48+i}"])
    def reduce(src, off):
        A.e(["s_nop 1", f"v_add_f32_dpp v{src}, v{src}, v{src} row_ror:8 row_mask:0xf bank_mask:0xf",
             f"v_mov_b32 v46, v{src}", "s_nop 1", f"v_permlane16_swap_b32 v46, v{src}", f"v_add_f32 v{src}, v46, v{src}",
             f"v_mov_b32 v46, v{src}", "s_nop 1", f"v_permlane32_swap_b32 v46, v{src}", f"v_add_f32 v{src}, v46, v{src}",
             f"ds_write_b32 v45, v{src} offset:{off}", "s_waitcnt lgkmcnt(0)", "s_barrier",
             f"ds_read_b128 v[36:39], v44 offset:{off}", "s_waitcnt lgkmcnt(0)",
             "v_add_f32 v36, v36, v37", "v_add_f32 v38, v38, v39", f"v_add_f32 v{src}, v36, v38"])
    A.e([f"v_pk_add_f32 v[32:33], v[{X0}:{X0+1}], v[{X0+2}:{X0+3}]"] + [f"v_pk_add_f32 v[32:33], v[32:33], v[{X0+2*i}:{X0+2*i+1}]" for i in range(2, 16)])
    A.e("v_add_f32 v32, v32, v33")
    reduce(32, 0)
    A.e(["v_mul_f32 v32, 0x3a800000, v32", "v_mov_b32 v33, v32"])
    for i in range(16):
        A.e(f"v_pk_add_f32 v[{96+2*i}:{97+2*i}], v[{X0+2*i}:{X0+2*i+1}], v[32:33] neg_lo:[0,1] neg_hi:[0,1]")
    A.e("v_pk_mul_f32 v[34:35], v[96:97], v[96:97]")
    for i in range(1, 16):
        A.e(f"v_pk_fma_f32 v[34:35], v[{96+2*i}:{97+2*i}], v[{96+2*i}:{97+2*i}], v[34:35]")
    A.e("v_add_f32 v34, v34, v35")
    reduce(34, 256)
    A.e(["v_mul_f32 v34, 0x3a800000, v34", "v_cvt_pk_bf16_f32 v34, v34, v32", "v_and_b32 v32, 0xffff0000, v34", "v_lshlrev_b32 v34, 16, v34",
         "v_add_f32 v34, 0x3727c5ac, v34", "v_cvt_pk_bf16_f32 v34, v34, v34", "v_lshlrev_b32 v34, 16, v34",
         "v_sqrt_f32 v34, v34", "v_mov_b32 v33, v32", "v_cvt_pk_bf16_f32 v34, v34, v34", "v_lshlrev_b32 v34, 16, v34",
         "v_rcp_f32 v34, v34", "s_nop 0", "v_mov_b32 v35, v34"])
    for q4 in range(4):
        for i in range(4 * q4, 4 * q4 + 4):
            x = X0 + 2 * i
            A.e([f"v_pk_add_f32 v[{x}:{x+1}], v[{x}:{x+1}], v[32:33] neg_lo:[0,1] neg_hi:[0,1]",
                 f"v_cvt_pk_bf16_f32 v{48+i}, v{x}, v{x+1}",
                 f"v_lshlrev_b32 v{x}, 16, v{48+i}", f"v_and_b32 v{x+1}, 0xffff0000, v{48+i}",
                 f"v_pk_mul_f32 v[{x}:{x+1}], v[{x}:{x+1}], v[34:35]",
                 f"v_cvt_pk_bf16_f32 v{48+i}, v{x}, v{x+1}"])
        A.e(f"buffer_store_dwordx4 v[{48+4*q4}:{51+4*q4}], v43, s[40:43], s90 offen offset:{2048*(q4%2)} {WT}"); vq.issue(("S", 0))
        if q4 == 1: A.e("s_add_u32 s90, s90, 4096")
    stamp(3, 1)
    A.e(vq.need(("N", 0)))
    A.e(SPINB)
    A.label(L("pollN"))
    A.e(["v_readfirstlane_b32 s98, v128", "v_readfirstlane_b32 s99, v129", "s_cmp_lg_u32 s98, 0", f"s_cbranch_scc1 {L('gotN')}",
         "s_sub_u32 s12, s12, 1", f"s_cbranch_scc1 {L('gotN')}",
         f"buffer_load_dwordx2 v[128:129], v47, s[60:63], 0 offen {WT}", "s_waitcnt vmcnt(0)", f"s_branch {L('pollN')}"])
    A.label(L("gotN"))
    A.e([f"v_mov_b32 v{i}, 0" for i in range(64, 128)])
    A.e(vq.drain()); A.e("s_barrier")
    stamp(4, 1)
    A.e(["s_cmp_lg_u32 s3, 0", f"s_cbranch_scc1 {L('gotL')}", "s_mov_b64 exec, 1",
         f"buffer_store_dwordx2 v[128:129], v47, s[84:87], s91 offen {WT}", "s_mov_b64 exec, -1"])
    A.e(SPINB)
    A.label(L("pollL"))
    A.e([f"buffer_load_dwordx2 v[128:129], v131, s[84:87], s95 offen {WT}", "s_waitcnt vmcnt(0)",
         "s_sub_u32 s12, s12, 1", f"s_cbranch_scc1 {L('gotL')}",
         "v_cmp_ne_u64 vcc, s[98:99], v[128:129]", f"s_cbranch_vccz {L('gotL')}", f"s_sleep {psleep}", f"s_branch {L('pollL')}"])
    A.label(L("gotL"))
    A.e(["s_cmp_eq_u32 s3, 0", f"s_cbranch_scc1 {L('w0')}"])
    sv = list(vq.q)
    A.e(["s_mov_b32 s76, s11"])
    for op in d_ops(1, 0) + d_ops(1, 1) + d_ops(2, 0) + d_ops(2, 1): emit_vm(op, A.e, True)
    A.e(["s_mov_b32 s11, s76", "s_barrier"])
    def xs(first):
        for p_ in (0, 1, 2):
            if p_: A.e(NEXTK)
            if p_ and first:
                for h in (0, 1):
                    for k, op in enumerate(d_ops(p_, h)):
                        emit_vm((op[0][-1:] if k == 0 else [], op[1], op[2], op[3]), A.e, True)
            for op in x_ops(p_): A.e(op[1].replace("s8 offen", "s88 offen") if p_ == 0 else op[1]); vq.issue(op[2])
    def ptail(tag):
        for op in d_ops(3, 0): emit_vm(op, A.e, True)
        srd(A, 60, P_WS, SZ_OF, WS_OF)
        A.e([f"v_mov_b32 v{i}, 0" for i in list(range(32, 64)) + [128, 129, 130, 131]])
        dq.q = []
        for blk in range(11):
            for ins, tg in rd_ops(0, blk): A.e(ins); dq.issue(tg)
        A.e(vq.need(tag))
    xs(False); ptail(("X", 2))
    A.e(f"s_branch {L('w1')}")
    A.label(L("w0"))
    A.e("s_barrier")
    vq.q = sv
    xs(True); ptail(("X", 0))
    A.label(L("w1"))
    stamp(1)

    BARM = 47
    def step(t, E, first_ops=None, second_ops=None, last=False):
        v1 = d_ops(t + 3, 1) + x_ops(t + 3) if first_ops is None else first_ops
        v2_ = d_ops(t + 4, 0) if second_ops is None else second_ops
        if pfG == 1 and second_ops is None and t % 2 == 0: v2_ = v2_ + pf_op((t // 2) % 2)
        if pfG == 2 and second_ops is None and t == 0: v2_ = v2_ + pf_op(0)
        if gdbg & 1: v1 = [o for o in v1 if o[2][0] != "X"]
        if gdbg & 2:
            v1 = [o for o in v1 if o[2][0] != "D"]; v2_ = [o for o in v2_ if o[2][0] != "D"]
        def spread(n, lo, hi):
            c = [m for m in range(lo, hi) if m % 4 == 2]
            if n == 0: return []
            return [c[(i * len(c)) // n] for i in range(n)]
        sched = list(zip(spread(len(v1), 2, 44), v1)) + list(zip(spread(len(v2_), 54, 88), v2_))
        pend = []; post = []; pre = list(sched[0][1][0]) if sched else []; vi = 0
        for m in range(88):
            blk, j = m // 4, m % 4
            if m == 0: E(vq.need(("X", t)))
            if j == 0: E(dq.need(("A", t, blk)))
            E(mfma16(acc(blk, j), Afr(blk), Bfr(t % 4, j)))
            if m == BARM:
                E(vq.need(("D", t + 1, 1))); E(dq.drain()); E("s_barrier")
            if j == 3:
                if blk < 11: pend += rd_ops(t, blk + 11)
                elif not last: pend += rd_ops(t + 1, blk - 11)
            if vi < len(sched) and m == sched[vi][0]:
                assert not pre, (t, m, pre)
                op = sched[vi][1]
                E(op[1]); vq.issue(op[2]); post += op[3]; vi += 1
                if vi < len(sched): pre = list(sched[vi][1][0])
            else:
                used = 0
                if pend:
                    ins, tag = pend.pop(0); E(ins); dq.issue(tag); used += 1
                while post and used < 2: E(post.pop(0)); used += 1
                while pre and used < 2 and not post and not (sched[vi][0] > BARM and m < BARM - 8): E(pre.pop(0)); used += 1
        for ins, tag in pend: E(ins); dq.issue(tag)
        E(post)
    for t in range(4): step(t, lambda x: None)
    vq.rebase(4); dq.rebase(4)
    A.raw(".p2align 6")
    A.label(L("loop"))
    for t in range(4): step(t, A.e)
    A.e(["s_sub_u32 s9, s9, 1", "s_cmp_lg_u32 s9, 0", f"s_cbranch_scc1 {L('loop')}"])
    vq.rebase(4); dq.rebase(4)
    if cpf >= 2: emit_vm(code_touch(30, "a238"), A.e)
    step(0, A.e, None, kv_ops("K", 0) + kv_ops("K", 1))
    step(1, A.e, kv_ops("K", 2) + kv_ops("K", 3), kv_ops("V", 0) + kv_ops("V", 1))
    step(2, A.e, kv_ops("V", 2), kv_ops("V", 3) + (pf_op(0) if pfG in (1, 2) else []))
    step(3, A.e, [], [], last=True)
    stamp(2)

    HP = "" if hwb else WT
    A.e(["s_mul_i32 s6, s15, 114688", "s_mul_i32 s12, s5, 7", "s_add_u32 s12, s12, 1", "s_lshr_b32 s12, s12, 1", "s_lshl_b32 s12, s12, 10",
         "s_add_u32 s6, s6, s12",
         "s_and_b32 s13, s5, 1", "s_cmp_eq_u32 s13, 0", "s_mov_b32 s13, 0xfffffc08", "s_cselect_b32 s13, 0xc00, s13",
         "s_add_u32 s7, s6, s13",
         "s_mov_b32 s8, 0xbfb8aa3b", "s_mov_b32 s9, 0xbfb8aa3b"])
    def hblock(b, j, dst):
        g = 32 + ((2 * b) * 4 + j) * 4; u = g + 16
        out = []
        out += [f"v_pk_mul_f32 v[{g+r_}:{g+r_+1}], v[{g+r_}:{g+r_+1}], s[8:9]" for r_ in (0, 2)]
        out += [f"v_exp_f32 v{g+r_}, v{g+r_}" for r_ in range(4)]
        out += [f"v_pk_add_f32 v[{g+r_}:{g+r_+1}], v[{g+r_}:{g+r_+1}], 1.0 op_sel_hi:[1,0]" for r_ in (0, 2)]
        out += [f"v_rcp_f32 v{g+r_}, v{g+r_}" for r_ in range(4)]
        out += [f"v_pk_mul_f32 v[{g+r_}:{g+r_+1}], v[{g+r_}:{g+r_+1}], v[{u+r_}:{u+r_+1}]" for r_ in (0, 2)]
        out += [f"v_cvt_pk_bf16_f32 v{dst}, v{g}, v{g+1}", f"v_cvt_pk_bf16_f32 v{dst+1}, v{g+2}, v{g+3}"]
        return out
    for j in range(4):
        for i in range(3):
            dst = 32 + ((4 * i + 1) * 4 + j) * 4
            A.e(hblock(2 * i, j, dst)); A.e(hblock(2 * i + 1, j, dst + 2))
            A.e(f"buffer_store_dwordx4 {v(dst,4)}, v4, s[56:59], s6 offen offset:{i*1024} {HP}"); vq.issue(("H", 0))
        dst = 32 + (13 * 4 + j) * 4
        A.e(hblock(6, j, dst))
        A.e(f"buffer_store_dwordx2 {v(dst,2)}, v4, s[56:59], s7 offen {HP}"); vq.issue(("H", 0))
        if j < 3: A.e(["s_add_u32 s6, s6, 114688", "s_add_u32 s7, s7, 114688"])
    QF = lambda mu, t: 32 + (mu * 8 + t) * 4
    SB = lambda b, mu: 96 + (b * 2 + mu) * 16
    NM = lambda mu: 160 + mu * 16
    PB = lambda b, mu: 192 + (b * 2 + mu) * 8
    EB = 224; VL = 232; VTS = 234; VT = 236
    A.e([f"s_mov_b32 s12, {QSCALE:#x}", f"s_mov_b32 s13, {QSCALE:#x}", f"s_mov_b32 s95, {thr:#x}"])
    for t in range(8):
        for mu in range(2):
            tmp = 96 + ((t * 2 + mu) % 4) * 8
            for x in range(2):
                src = (t * 4 + 2 * mu + x) * 4
                A.e([f"v_accvgpr_read_b32 v{tmp+4*x+r_}, a{src+r_}" for r_ in range(4)])
            A.e([f"v_pk_mul_f32 v[{tmp+2*k}:{tmp+2*k+1}], v[{tmp+2*k}:{tmp+2*k+1}], s[12:13]" for k in range(4)])
            q = QF(mu, t)
            A.e([f"v_cvt_pk_bf16_f32 v{q+k}, v{tmp+2*k}, v{tmp+2*k+1}" for k in range(4)])
            if (t * 2 + mu) > 0:
                pq = QF(*prev)
                A.e([f"v_permlane16_swap_b32 v{pq}, v{pq+2}", f"v_permlane16_swap_b32 v{pq+1}, v{pq+3}"])
            prev = (mu, t)
    A.e(["v_and_b32 v30, 31, v0", "v_lshrrev_b32 v31, 5, v0", "v_and_b32 v1, 15, v0", "v_xor_b32 v1, v1, v31",
         "v_lshlrev_b32 v30, 8, v30"])
    pq = QF(*prev)
    A.e([f"v_permlane16_swap_b32 v{pq}, v{pq+2}", f"v_permlane16_swap_b32 v{pq+1}, v{pq+3}"])
    for t in range(8):
        A.e([f"v_xor_b32 v{9+t}, {2*t}, v1", f"v_lshl_add_u32 v{9+t}, v{9+t}, 4, v30"])
    A.e(["v_bfe_u32 v1, v0, 2, 2", "v_lshlrev_b32 v30, 10, v31", "v_lshl_add_u32 v30, v1, 8, v30",
         "v_bfe_u32 v22, v0, 4, 1", "v_lshl_add_u32 v30, v22, 5, v30", "v_and_b32 v23, 3, v0", "v_lshl_add_u32 v30, v23, 3, v30",
         "v_add_u32 v30, 0x10000, v30"])
    for i in range(4):
        A.e([f"v_xor_b32 v23, {i}, v1", f"v_lshl_add_u32 v{17+i}, v23, 6, v30"])
    A.e(["v_lshlrev_b32 v21, 17, v22", "v_lshl_add_u32 v21, v31, 8, v21", "v_and_b32 v1, 15, v0", "v_lshl_add_u32 v21, v1, 4, v21"])
    A.e((["s_and_b32 s12, s2, 7", "s_lshr_b32 s72, s12, 2", "s_and_b32 s13, s12, 1", "s_lshl_b32 s73, s4, 1", "s_add_u32 s73, s73, s13",
         "s_bfe_u32 s13, s12, 0x10001"] if kmap == 0 else
        ["s_and_b32 s72, s2, 1", "s_bfe_u32 s13, s2, 0x10001", "s_lshl_b32 s73, s4, 1", "s_add_u32 s73, s73, s13",
         "s_bfe_u32 s13, s2, 0x10002"]) + ["s_lshl_b32 s13, s13, 2", "s_lshr_b32 s74, s2, 6", "s_add_u32 s74, s74, s13",
         "s_lshr_b32 s12, s3, 1", "s_and_b32 s13, s3, 1",
         "s_cmp_eq_u32 s72, 0",
         f"s_cselect_b32 s8, {8*N1S}, {8*N1Y}", f"s_cselect_b32 s9, 0, {16*N1S}", "s_mul_i32 s8, s8, s12", "s_add_u32 s8, s8, s9",
         "s_cmp_eq_u32 s72, 0",
         f"s_cselect_b32 s75, {SS}, {64-SS}", f"s_cselect_b32 s96, 0, {2*SS}", "s_mul_i32 s75, s75, s12", "s_add_u32 s75, s75, s96",
         "s_lshl_b32 s9, s8, 10", "s_lshl_b32 s8, s8, 16",
         "s_lshl_b32 s96, s75, 10", "s_lshl_b32 s75, s75, 16",
         "s_lshl_b32 s13, s13, 12",
         "s_lshl_b32 s10, s12, 17", "s_add_u32 s10, s10, s13",
         "s_lshl_b32 s11, s12, 16", "s_add_u32 s11, s11, 0x8000", "s_add_u32 s11, s11, s13",
         "v_lshrrev_b32 v30, 4, v0", "v_and_b32 v31, 15, v0", "v_lshlrev_b32 v1, 2, v30", "v_xor_b32 v31, v31, v1",
         "s_lshl_b32 s13, s13, 3", "s_lshl_b32 s97, s74, 8", "s_add_u32 s97, s97, s13",
         "v_lshlrev_b32 v30, 11, v30", "v_add_u32 v30, s97, v30",
         "v_lshl_add_u32 v246, v31, 4, v30", "v_xor_b32 v31, 2, v31", "v_lshl_add_u32 v247, v31, 4, v30", "v_add_u32 v247, 7168, v247",
         "v_add_u32 v248, 14336, v246", "v_add_u32 v249, 14336, v247", "v_mov_b32 v250, s98", "v_mov_b32 v251, s99", "v_mov_b32 v252, 0",
         "s_lshl_b32 s97, s73, 3", "s_and_b32 s13, s3, 1", "s_lshl_b32 s13, s13, 2", "s_add_u32 s97, s97, s13", "s_lshl_b32 s12, s12, 1"])
    for jj in range(4):
        A.e([f"s_xor_b32 s13, s12, {jj}", "s_add_u32 s13, s13, s97", "s_mul_i32 s90, s13, 114688", f"v_add_u32 v{5+jj}, s90, v4",
             "s_lshl_b32 s90, s13, 17", f"v_add_u32 v{242+jj}, s90, v4"])
    A.e(["v_lshlrev_b32 v24, 5, v0", "v_and_b32 v24, 0x3e0, v24",
         "s_lshl_b32 s12, s4, 10", f"s_add_u32 s91, s12, {FL_H}", f"s_add_u32 s97, s12, {FL_O}",
         "s_lshl_b32 s13, s5, 5", "s_add_u32 s88, s91, s13", "s_add_u32 s89, s97, s13"])
    srd(A, 48, P_WS, FL_SZ, WS_FLAG)
    srd(A, 44, P_WD, 3584 * 2048)
    srd(A, 40, P_WS, SZ_HF, WS_HF)
    for i in range(8):
        A.e([f"s_add_u32 s13, s14, {i}", "s_and_b32 s13, s13, 7", f"s_lshl_b32 s{80+i}, s13, 10"])
    WV = 246
    def w_ops(t, half=False):
        slot = t % 8
        ops = []
        rot_ = [f"s_and_b32 s12, s{80+slot}, 0xc00", "s_lshl_b32 s12, s12, 6"] if half else [f"s_lshl_b32 s12, s{80+slot}, 6"]
        for i in range(4):
            ops.append(([f"s_add_u32 m0, s{10 if slot < 4 else 11}, {(slot%4)*8192}"] + rot_ + ["s_add_u32 s12, s12, s8"] if i == 0 else [],
                        f"buffer_load_dwordx4 v{WV+i}, s[44:47], s12 offen offset:{i*1024} lds", ("W", t),
                        ["s_add_u32 s8, s8, 0x80000"] if (i == 3 and slot == 7) else []))
        return ops
    BR = [192, 208, 224, 0, 16, 32, 48, 64]
    facc = lambda cb, jj: v(32 + (cb * 4 + jj) * 4, 4)
    FA = lambda cb, h=None: a(128 + cb * 4, 4) if h is None else a(128 + cb * 4 + 2 * h, 2)
    FB = lambda slot, jj: a(BR[slot] + jj * 4, 4)
    def a_ops(t, half=False):
        slot = t % 8
        return [(([f"s_and_b32 s13, s{80+slot}, 0xc00", "s_add_u32 s13, s13, s9"] if half else [f"s_add_u32 s13, s{80+slot}, s9"]) if jj == 0 else [],
                 f"buffer_load_dwordx4 {FB(slot,jj)}, v{5+jj}, s[40:43], s13 offen {apol}", ("X", t),
                 ["s_add_u32 s9, s9, 0x2000"] if (jj == 3 and slot == 7) else []) for jj in range(4)]
    spins = []
    def check_flags(tag, reg, addr, off):
        A.e([f"v_cmp_ne_u64 vcc, s[98:99], v[{reg}:{reg+1}]", f"s_cbranch_vccnz {L('spin' + tag)}"])
        A.label(L("ok" + tag))
        spins.append((tag, reg, addr, off))

    Kf = lambda t: a(128 + t * 4, 4)
    Vf = lambda i, tp, h=None: a(160 + (i * 2 + tp) * 4, 4) if h is None else a(160 + (i * 2 + tp) * 4 + 2 * h, 2)
    Oacc = lambda i, mu: a((i * 2 + mu) * 16, 16)
    def k_reads(T): return [(f"ds_read_b128 {Kf(t)}, v{9+t} offset:{(T % 8) * 8192}", ("K", T, t)) for t in range(8)]
    def v_reads(T):
        return [(f"ds_read_b64_tr_b16 {Vf(i,tp,h)}, v{17+i} offset:{(T % 8) * 8192 + tp * 4096 + h * 2048}", ("V", T, i, tp))
                for i in range(4) for tp in range(2) for h in range(2)]
    def qk(T, c0):
        return [(mfma32(v(SB(T & 1, mu), 16), Kf(t), v(QF(mu, t), 4), (c0(mu) if t == 0 else None)), ("K", T, t)) for t in range(8) for mu in range(2)]
    def pv(T):
        return [(mfma32(Oacc(i, mu), Vf(i, tp), v(PB(T & 1, mu) + 4 * tp, 4), ("0" if (T == 0 and tp == 0) else None)), ("V", T, i, tp))
                for i in range(4) for tp in range(2) for mu in range(2)]
    A.e(vq.need(("V", 3))); A.e("s_barrier")
    dq.slack = 15
    for ins, tag in k_reads(0): A.e(ins); dq.issue(tag)
    for ins, tag in qk(0, lambda mu: "0"):
        A.e(dq.need(tag)); A.e(ins)
    for ins, tag in k_reads(1): A.e(ins); dq.issue(tag)
    A.e(["v_mov_b32 v232, 0", "v_mov_b32 v233, 0", "s_nop 7"])
    def rowmax(S, dst, tmp):
        out = [f"v_max3_f32 v{dst}, v{S}, v{S+1}, v{S+2}"]
        for k in range(3, 15, 2): out.append(f"v_max3_f32 v{dst}, v{dst}, v{S+k}, v{S+k+1}")
        out += [f"v_max_f32 v{dst}, v{dst}, v{S+15}", f"v_mov_b32 v{tmp}, v{dst}", "s_nop 1",
                f"v_permlane32_swap_b32 v{tmp}, v{dst}", f"v_max_f32 v{dst}, v{dst}, v{tmp}"]
        return out
    for mu in range(2):
        A.e(rowmax(SB(0, mu), VT + mu, VT + 2))
        A.e([f"v_sub_f32 v{NM(mu)+k}, 0, v{VT+mu}" for k in range(16)])
        A.e([f"v_sub_f32 v{SB(0,mu)+k}, v{SB(0,mu)+k}, v{VT+mu}" for k in range(16)])
    def sm(T):
        b = T & 1
        out = []
        def ex(n): return (f"v_exp_f32 v{EB + n % 8}, v{SB(b, n // 16) + n % 16}", 8)
        def fin(n):
            mu, r_ = n // 16, n % 16; e = EB + n % 8; o = []
            if r_ == 1: o.append((f"v_add_f32 v{VTS+mu}, v{EB + (n-1) % 8}, v{e}", 4))
            elif r_ > 1: o.append((f"v_add_f32 v{VTS+mu}, v{VTS+mu}, v{e}", 4))
            if r_ % 2 == 1: o.append((f"v_cvt_pk_bf16_f32 v{PB(b,mu) + r_//2}, v{EB + (n-1) % 8}, v{e}", 5))
            return o
        out.append(ex(0)); out.append(ex(1))
        for n in range(2, 32):
            out.append(ex(n)); out += fin(n - 2)
        out += fin(30) + fin(31)
        out += [(f"v_max_f32 v{VT}, v{VTS}, v{VTS+1}", 4), (f"v_cmp_nge_f32 vcc, s95, v{VT}", 4)]
        return out
    stamp(3)
    def flag_store(off_sreg):
        lab = L("fl%d" % A.nlabel); A.nlabel += 1
        A.e(["s_cmp_lg_u32 s3, 0", f"s_cbranch_scc1 {lab}", "s_mov_b64 exec, 1",
             f"buffer_store_dwordx2 v[250:251], v252, s[48:51], {off_sreg} offen {WT}", "s_mov_b64 exec, -1"])
        A.label(lab)
    rare_sites = []
    for T in range(17):
        mf = (qk(T + 1, lambda mu: v(NM(mu), 16)) if T + 1 <= 15 else []) + (pv(T - 1) if T >= 1 else [])
        nq = 16 if T + 1 <= 15 else 0
        va = ([(f"v_add_f32 v{VL}, v{VL}, v{VTS}", 4), (f"v_add_f32 v{VL+1}, v{VL+1}, v{VTS+1}", 4)] if T >= 1 else []) + (sm(T) if T <= 15 else [])
        rdv = v_reads(T - 1) if T >= 1 else []
        rdk = k_reads(T + 2) if T + 2 <= 15 else []
        vm = []
        if T % 2 == 0 and T <= 14:
            w = []
            if T == 2: w += vq.need(("H", 0))
            if T >= 6: w += vq.need(("K", (T + 2) // 2))
            if T >= 8: w += vq.need(("V", T // 2))
            A.e(w[-1:]); A.e(dq.drain()); A.e("s_barrier")
            if T == 2:
                if hwb:
                    lab = L("wb")
                    A.e(["s_cmp_lg_u32 s3, 0", f"s_cbranch_scc1 {lab}", "buffer_wbl2 sc1"]); A.label(lab)
                else: flag_store("s88")
            if T == 8 and hwb: flag_store("s88")
            if T <= 6: vm += kv_ops("K", T // 2 + 4)
            if 4 <= T <= 10: vm += kv_ops("V", T // 2 + 2)
            if T == 12: vm += w_ops(0) + w_ops(1)
            if T == 14:
                A.e(vq.need(("F", 0))); check_flags("H", 22, 24, "s91")
                vm += a_ops(0) + a_ops(1)
        if pfA and 3 <= T <= 10:
            pre = []
            if T == 3:
                pre = [f"s_mov_b32 s52, s{P_WO}", f"s_and_b32 s53, s{P_WO+1}, 0xffff", f"s_mov_b32 s54, {4096*2048:#x}",
                       "s_lshl_b32 s12, s2, 2", "s_add_u32 s12, s12, s3", "s_lshl_b32 s100, s12, 13", "s_mul_i32 s101, s12, 7168",
                       "v_and_b32 v2, 7, v0", "v_lshlrev_b32 v2, 7, v2", "v_add_u32 v3, 4096, v2"]
            k = T - 3
            if k < 7: vm += [(pre, f"buffer_load_dword v30, v{2 if k < 4 else 3}, s[44:47], s101 offen offset:{(k % 4) * 1024}", ("P", 0), [])]
            if pfA == 2: vm += [([], f"buffer_load_dword v30, v{2 if k < 4 else 3}, s[52:55], s100 offen offset:{(k % 4) * 1024}", ("P", 0), [])]
        if T == 9 and cpf >= 3: emit_vm(code_touch(31, "v31"), A.e)
        if T == 11: vm += [([], f"buffer_load_dwordx2 v[22:23], v24, s[48:51], s91 offen {WT}", ("F", 0), [])]
        if T == 13: vm += w_ops(2) + w_ops(3)
        if T == 15: vm += a_ops(2)
        if nq == 0:
            for ins, tag in rdv: A.e(ins); dq.issue(tag)
            rdv = []
        n = len(mf)
        vml = []
        for op in vm:
            vml += [(x, 4, None) for x in op[0]] + ([("s_nop 0", 4, None)] if op[0] else []) + [(op[1], 8, op[2])] + [(x, 4, None) for x in op[3]]
        tot = sum(c for _, c in va) + 4 * (len(rdv) + len(rdk)) + sum(c for _, c, _ in vml)
        done = 0
        for m, (ins, tag) in enumerate(mf):
            w = dq.need(tag, dsl); A.e(w); A.e(ins)
            used = 4 * len(w)
            budget = max(cap, -(-(tot - done) // (n - m)) + 3) if m < n - 1 else 10 ** 6
            target = (tot * (m + 1)) // n + 6
            rd = rdv if (m < nq and rdv) else (rdk if (m >= nq and rdk) else None)
            if rd:
                ri, rt = rd.pop(0); A.e(ri); dq.issue(rt); used += 4; done += 4
                if rd is rdv and len(rd) > (nq - 3 - m):
                    ri, rt = rd.pop(0); A.e(ri); dq.issue(rt); used += 4; done += 4
            elif vml:
                x, c, tg = vml.pop(0); A.e(x); used += c; done += c
                if tg: vq.issue(tg)
                while vml and c == 4 and used < 12:
                    x, c, tg = vml.pop(0); A.e(x); used += c; done += c
                    if tg: vq.issue(tg)
            while va and used + va[0][1] <= budget and (done < target or m == n - 1):
                x, c = va.pop(0); A.e(x); used += c; done += c
        assert not rdv
        for ins, tag in rdk: A.e(ins); dq.issue(tag)
        for x, c, tg in vml:
            A.e(x)
            if tg: vq.issue(tg)
        for x, c in va: A.e(x)
        if T <= 15:
            A.e([f"s_cbranch_vccnz {L('rs%d' % T)}"])
            A.label(L("rb%d" % T))
            rare_sites.append(T)
    stamp(4)
    A.e(["s_lshl_b32 s6, s15, 17", "s_lshl_b32 s12, s5, 12", "s_add_u32 s6, s6, s12", "s_add_u32 s7, s6, 0x40000"])
    for mu in range(2):
        A.e([f"v_mov_b32 v{VT}, v{VL+mu}", "s_nop 1", f"v_permlane32_swap_b32 v{VT}, v{VL+mu}", f"v_add_f32 v{VT}, v{VT}, v{VL+mu}",
             f"v_rcp_f32 v{VT+2+2*mu}, v{VT}", "s_nop 0", f"v_mov_b32 v{VT+3+2*mu}, v{VT+2+2*mu}"])
    A.e(["v_mov_b32 v29, v21", "s_barrier"])
    for t in range(4, 7):
        for op in w_ops(t): emit_vm(op, A.e, True)
    A.e(["v_mov_b32 v253, v24",
         "v_lshrrev_b32 v1, 4, v0", "v_lshlrev_b32 v30, 10, v1", "v_and_b32 v1, 1, v1",
         "v_bfe_u32 v31, v0, 2, 2", "v_lshl_add_u32 v30, v31, 8, v30", "v_lshl_or_b32 v31, v31, 1, v1",
         "v_and_b32 v1, 3, v0", "v_lshl_add_u32 v30, v1, 3, v30",
         "s_lshr_b32 s13, s3, 1", "s_lshl_b32 s12, s13, 17", "s_lshl_b32 s13, s13, 16", "s_add_u32 s13, s13, 0x8000"])
    for cb in range(8):
        A.e([f"v_xor_b32 v1, {cb}, v31", "v_lshl_add_u32 v1, v1, 5, v30", f"v_add_u32 v{9+cb}, s12, v1", f"v_add_u32 v{17+cb}, s13, v1"])
    def frd(t, cb):
        slot = t % 8
        reg = (9 if slot < 4 else 17) + cb; off = (slot % 4) * 8192
        return [(f"ds_read_b64_tr_b16 {FA(cb,0)}, v{reg} offset:{off}", ("A", t, cb)),
                (f"ds_read_b64_tr_b16 {FA(cb,1)}, v{reg} offset:{off+4096}", ("A", t, cb))]
    dq.slack = 8
    ostores = []
    cnt = 0
    for i in range(4):
        for mu in range(2):
            tmp = 96 + (cnt % 4) * 16; dst = 160 + cnt * 8; cnt += 1
            src = (i * 2 + mu) * 16
            A.e([f"v_accvgpr_read_b32 v{tmp+k}, a{src+k}" for k in range(16)])
            A.e([f"v_pk_mul_f32 v[{tmp+2*k}:{tmp+2*k+1}], v[{tmp+2*k}:{tmp+2*k+1}], v[{VT+2+2*mu}:{VT+3+2*mu}]" for k in range(8)])
            for s_ in range(2):
                for jj, j in enumerate((s_, s_ + 2)):
                    A.e([f"v_cvt_pk_bf16_f32 v{dst+4*s_+2*jj}, v{tmp+4*j}, v{tmp+4*j+1}", f"v_cvt_pk_bf16_f32 v{dst+4*s_+2*jj+1}, v{tmp+4*j+2}, v{tmp+4*j+3}"])
                ostores.append(([], f"buffer_store_dwordx4 {v(dst+4*s_,4)}, v29, s[60:63], s{6+mu} offen offset:{i*1024+s_*512} {WT}", ("O", 0), []))
            if cnt in (1, 2, 3, 4):
                for op in a_ops(2 + cnt): emit_vm(op, A.e)
            if cnt == 5:
                A.e(vq.need(("W", 3))); A.e("s_barrier")
                for cb in range(8):
                    for ins, tag in frd(0, cb): A.e(ins); dq.issue(tag)
    srd(A, 52, P_WS, G_SZ, G_BASE)
    srd(A, 64, P_X, 2048 * 2048)
    srd(A, 68, P_OUT, 2048 * 2048)
    A.e(["s_cmp_eq_u32 s72, 0",
         f"s_cselect_b32 s90, {N1S-1}, {N1Y-1}", f"s_cselect_b32 s95, {N1S-2}, {N1Y-2}", "s_mov_b32 s91, 0",
         "s_lshl_b32 s12, s73, 3", "s_add_u32 s12, s12, s74",
         "s_lshl_b32 s92, s12, 2", "s_add_u32 s92, s92, s3",
         "s_lshl_b32 s92, s92, 13",
         "s_lshl_b32 s93, s12, 7", f"s_add_u32 s101, s93, {FL_P}", "s_lshl_b32 s12, s3, 5", "s_add_u32 s93, s93, s12",
         "s_lshl_b32 s94, s73, 7", "s_and_b32 s12, s3, 1", "s_lshl_b32 s12, s12, 6", "s_add_u32 s94, s94, s12",
         "s_lshr_b32 s12, s3, 1", "s_lshl_b32 s12, s12, 5", "s_add_u32 s94, s94, s12",
         "s_lshl_b32 s94, s94, 11", "s_lshl_b32 s12, s74, 8", "s_add_u32 s94, s94, s12",
         "v_and_b32 v1, 15, v0", "v_lshlrev_b32 v1, 11, v1", "v_lshrrev_b32 v30, 4, v0",
         "v_lshl_add_u32 v25, v30, 3, v1", "v_add_u32 v26, 0x8000, v25",
         "v_lshl_add_u32 v27, v30, 4, v1", "v_add_u32 v28, 0x8000, v27",
         "s_lshl_b32 s12, s3, 14", "v_add_u32 v2, s12, v4", "s_xor_b32 s12, s12, 0x8000", "v_add_u32 v3, s12, v4",
         "s_lshl_b32 s12, s3, 13", "s_add_u32 s12, s12, 0x10000", "v_add_u32 v254, s12, v4", "s_xor_b32 s12, s12, 0x4000", "v_add_u32 v255, s12, v4"])
    stamp(5)
    XP = (2, 8, 12, 16, 20, 24, 28)
    def fstep(t, E, last=False, extra=(), czero=False, prev=None, afterbar=None, needbar=(), va=None, xp=None):
        if not last: vops = w_ops(t + 7) + a_ops(t + 7)
        else: vops = (w_ops(t + 7, t > 0) + a_ops(t + 7, t > 0)) if t + 7 < tail else []
        xq = xp or (XP if vops else vpos)
        sched = sorted(list(zip(vpos, vops)) + list(zip(xq, extra)), key=lambda x: x[0])
        assert len(extra) <= len(xq)
        isbar = (t % 2 == 1)
        doread = not (last and t == tail - 1)
        pend = []; vi = 0; post = []; pre = [x for _, op in sched for x in op[0]] if False else None
        pres = [list(op[0]) for _, op in sched]
        for m in range(32):
            cb, jj = m // 4, m % 4
            if m == 0: E(vq.need(("X", t)))
            if jj == 0: E(dq.need(("A", t, cb)))
            if prev: E(prev(cb, jj))
            E(mfma16(facc(cb, jj), FA(cb), FB(t % 8, jj), "0" if czero else None))
            if isbar and m == barpos:
                w = vq.need(("W", t + 2))
                for tg in needbar: w += vq.need(tg)
                E(w[-1:]); E(dq.drain()); E("s_barrier")
                if afterbar: afterbar()
            if jj == 3 and doread: pend += frd(t + 1, cb)
            if vi < len(sched) and m == sched[vi][0]:
                assert not pres[vi]
                op = sched[vi][1]
                E(op[1]); vq.issue(op[2]); post += op[3]; vi += 1
            else:
                used = 0
                if not (isbar and m < barpos) and pend:
                    ins, tag = pend.pop(0); E(ins); dq.issue(tag); used += 1
                k = next((k for k in range(vi, len(sched)) if pres[k]), None)
                if k is not None and any("m0" in x for x in pres[k]) and any(" lds" in sched[k2][1][1] for k2 in range(vi, k)): k = None
                while k is not None and pres[k] and used < 2: E(pres[k].pop(0)); used += 1
                if post and used < 2: E(post.pop(0)); used += 1
                cyc = 4 * used
                while va and cyc + va[0][1] <= vcap:
                    x, c = va.pop(0); E(x); cyc += c
        for ins, tag in pend: E(ins); dq.issue(tag)
        E(post)
    oflag = [([], f"buffer_load_dwordx2 v[30:31], v253, s[48:51], s97 offen {WT}", ("F", 0), [])]
    def loop_body(E, real):
        for t in range(8):
            fstep(t, E, extra=oflag if t == 2 else ())
            if t == 0 and real:
                A.e(["s_cmp_lg_u32 s95, 0", f"s_cbranch_scc1 {L('nosw')}"])
                check_flags("O", 30, 253, "s97")
                srd(A, 40, P_WS, SZ_OF, WS_OF); srd(A, 44, P_WO, 4096 * 2048)
                A.e(["s_mov_b32 s8, s75", "s_mov_b32 s9, s96", "s_mov_b32 s97, s101", "v_mov_b32 v253, 0"] + [f"v_mov_b32 v{5+jj}, v{242+jj}" for jj in range(4)])
                A.label(L("nosw"))
    XP8 = (1, 2, 4, 8, 12, 16, 20, 24)
    for t in range(8):
        k0 = sum(ost[:t]); ex = ostores[k0:k0 + ost[t]] if t < len(ost) else ()
        fstep(t, A.e, extra=ex, czero=(t == 0), xp=XP8 if t % 2 == 0 else (4, 5, 8, 12, 16, 20, 24, 28),
              needbar=[("O", 0)] if t == oflt else (), afterbar=(lambda: flag_store("s89")) if t == oflt else None)
    stamp(6)
    vq.rebase(8); dq.rebase(8)
    q_first = (list(vq.q), list(dq.q))
    loop_body(lambda x: None, False)
    vq.rebase(8); dq.rebase(8)
    q_steady = (list(vq.q), list(dq.q))
    assert not any(t[0] == "F" for t in q_steady[0]) and N1S >= 3 and N1Y >= 3
    def covers(entry, steady):
        def younger(q, tag): return len(q) - 1 - max(i for i, t in enumerate(q) if t == tag)
        for tag in set(entry):
            if tag[0] not in "WXA": continue
            if tag not in steady or younger(entry, tag) < younger(steady, tag): return False
        return True
    assert covers(q_first[0], q_steady[0]) and covers(q_first[1], q_steady[1]), (q_first, q_steady)
    A.raw(".p2align 6")
    A.label(L("floop"))
    loop_body(A.e, True)
    A.e(["s_sub_u32 s95, s95, 1", "s_sub_u32 s90, s90, 1", "s_cmp_lg_u32 s90, 0", f"s_cbranch_scc1 {L('floop')}",
         "s_cmp_lg_u32 s91, 0", f"s_cbranch_scc1 {L('flast')}"])
    stamp(3, 2)
    vq.rebase(8); dq.rebase(8)
    YS = lambda cb, jj: 160 + (cb * 2 + jj) * 4
    A.e("s_nop 2")
    for rnd in range(2):
        for cb in range(4 * rnd, 4 * rnd + 4):
            for jj in (2, 3): A.e(f"ds_write_b128 v254, {facc(cb,jj)} offset:{((cb%4)*2+jj-2)*1024}")
        if rnd == 1:
            for cb in range(4):
                for jj in range(2):
                    b = 32 + (cb * 4 + jj) * 4; y = YS(cb, jj)
                    A.e([f"v_pk_add_f32 v[{y+r_}:{y+r_+1}], v[{b+r_}:{b+r_+1}], v[{b+8+r_}:{b+9+r_}]" for r_ in (0, 2)])
        A.e(["s_waitcnt lgkmcnt(0)", "s_barrier"])
        for cb in range(4 * rnd, 4 * rnd + 4):
            for jj in (2, 3): A.e(f"ds_read_b128 {facc(cb,jj)}, v255 offset:{((cb%4)*2+jj-2)*1024}")
        if rnd == 0: A.e(["s_waitcnt lgkmcnt(0)", "s_barrier"])
    for cb in range(4, 8):
        for jj in range(2):
            b = 32 + (cb * 4 + jj) * 4; y = YS(cb, jj)
            A.e(f"s_waitcnt lgkmcnt({7 - ((cb-4)*2+jj)})")
            A.e([f"v_pk_add_f32 v[{y+r_}:{y+r_+1}], v[{b+r_}:{b+r_+1}], v[{b+8+r_}:{b+9+r_}]" for r_ in (0, 2)])
    A.e(["s_cmp_eq_u32 s72, 0", f"s_cbranch_scc1 {L('firstC')}", "s_add_u32 s6, s92, 4096"])
    for jj in range(2):
        for i in range(4):
            d = 224 + (i % 2) * 4 + jj * 8
            for h in range(2):
                y = YS(2 * i + h, jj)
                A.e([f"v_cvt_pk_bf16_f32 v{d+2*h}, v{y}, v{y+1}", f"v_cvt_pk_bf16_f32 v{d+2*h+1}, v{y+2}, v{y+3}"])
            A.e(f"buffer_store_dwordx4 {v(d,4)}, v4, s[52:55], {'s6' if jj else 's92'} offen offset:{i*1024} {WT}")
    A.label(L("firstC"))
    stamp(4, 2)
    vq.q, dq.q = list(q_steady[0]), list(q_steady[1])
    def pflag():
        lab = L("pf")
        A.e(["s_xor_b32 s6, s72, 1", "s_or_b32 s6, s6, s3", "s_cmp_lg_u32 s6, 0", f"s_cbranch_scc1 {lab}", "s_mov_b64 exec, 1",
             f"buffer_store_dwordx2 v[250:251], v252, s[48:51], s101 offen {WT}", "s_mov_b64 exec, -1"])
        A.label(lab)
    xpre = ["v_lshrrev_b32 v228, 4, v0", "v_and_b32 v229, 15, v0", "v_xor_b32 v229, v229, v228"]
    for i in range(4):
        xpre += [f"v_xor_b32 v{224+i}, {4*i}, v229", f"v_lshlrev_b32 v{224+i}, 4, v{224+i}", f"v_lshl_add_u32 v{224+i}, v228, 11, v{224+i}",
                 f"v_add_u32 v{224+i}, {7168*i}, v{224+i}"]
    xdma = [([f"s_add_u32 m0, s15, {4096*hh}"], f"buffer_load_dwordx4 v{224+i}, s[64:67], {'s100' if hh else 's94'} offen offset:{i*1024} lds", ("R", 0), [])
            for hh in range(2) for i in range(4)]
    A.e(xpre + ["s_lshl_b32 s15, s3, 13", "s_add_u32 s15, s15, 0x10000", "s_add_u32 s100, s94, 0x8000"])
    nopre = lambda op: ([],) + tuple(op[1:])
    mark = ("MARK", vq.total)
    for t in range(8):
        fstep(t, A.e, czero=(t == 0), afterbar=pflag if t == pft else None, needbar=[mark] if t == pft else (), extra={2: [xdma[0], nopre(xdma[1])], 3: [xdma[2]], 4: [xdma[3]], 5: [xdma[4]] + oflag, 6: [xdma[5], nopre(xdma[6])], 7: [xdma[7]]}.get(t, ()),
              xp=(1, 2) if t in (2, 6) else None)
    FW = vq.need(("F", 0))
    vq.rebase(8); dq.rebase(8)
    assert covers(vq.q, q_steady[0]) and covers(dq.q, q_steady[1])
    stamp(5, 2)
    A.e(["s_mov_b32 s91, 1", f"s_mov_b32 s90, {(64-SS-8-tail)//8}", "s_cmp_lg_u32 s72, 0", f"s_cbranch_scc1 {L('floop')}"])
    A.e(FW); check_flags("P", 30, 252, "s101")
    YP = lambda jj, i: 224 + (jj * 4 + i) * 4
    YA = lambda i: 80 + i * 4
    A.e("s_add_u32 s6, s92, 4096")
    for i in range(4):
        A.e([f"buffer_load_dwordx4 {v(YP(0,i),4)}, v4, s[52:55], s92 offen offset:{i*1024} {WT}",
             f"buffer_load_dwordx4 {a(YA(i),4)}, v4, s[52:55], s6 offen offset:{i*1024} {WT}"])
    A.e([f"s_mov_b32 s90, {(SS-8-tail)//8}", f"s_branch {L('floop')}"])
    A.label(L("flast"))
    stamp(6, 2)
    A.e(["s_mov_b32 s6, 0xbfb8aa3b", "s_mov_b32 s7, 0xbfb8aa3b", "s_cmp_lg_u32 s72, 0", f"s_cbranch_scc1 {L('flast2')}"])
    for cb in range(8):
        y = YS(cb, 0); pc = YP(0, cb // 2) + 2 * (cb % 2); T0 = 240 if cb % 2 == 0 else 242
        T0 = 240
        A.e([f"v_lshlrev_b32 v{T0}, 16, v{pc}", f"v_and_b32 v{T0+1}, 0xffff0000, v{pc}",
             f"v_lshlrev_b32 v{T0+2}, 16, v{pc+1}", f"v_and_b32 v{T0+3}, 0xffff0000, v{pc+1}"])
        A.e([f"v_pk_add_f32 v[{y+r_}:{y+r_+1}], v[{y+r_}:{y+r_+1}], v[{T0+r_}:{T0+r_+1}]" for r_ in (0, 2)])
        A.e([f"v_pk_mul_f32 v[{T0+r_}:{T0+r_+1}], v[{y+r_}:{y+r_+1}], s[6:7]" for r_ in (0, 2)])
        A.e([f"v_exp_f32 v{T0+r_}, v{T0+r_}" for r_ in range(4)])
        A.e([f"v_pk_add_f32 v[{T0+r_}:{T0+r_+1}], v[{T0+r_}:{T0+r_+1}], 1.0 op_sel_hi:[1,0]" for r_ in (0, 2)])
        A.e([f"v_rcp_f32 v{T0+r_}, v{T0+r_}" for r_ in range(4)])
        A.e([f"v_pk_mul_f32 v[{y+r_}:{y+r_+1}], v[{y+r_}:{y+r_+1}], v[{T0+r_}:{T0+r_+1}]" for r_ in (0, 2)])
    A.label(L("flast2"))
    vq.q, dq.q = list(q_steady[0]), list(q_steady[1])
    va = []
    for cb in range(8):
        y = YS(cb, 1); pc = YA(cb // 2) + 2 * (cb % 2); T0 = 224 + 4 * (cb % 2)
        va += [(f"v_accvgpr_read_b32 v{T0+1}, a{pc}", 4), (f"v_accvgpr_read_b32 v{T0+3}, a{pc+1}", 4),
               (f"v_lshlrev_b32 v{T0}, 16, v{T0+1}", 4), (f"v_and_b32 v{T0+1}, 0xffff0000, v{T0+1}", 4),
               (f"v_lshlrev_b32 v{T0+2}, 16, v{T0+3}", 4), (f"v_and_b32 v{T0+3}, 0xffff0000, v{T0+3}", 4)]
        va += [(f"v_add_f32 v{y+r_}, v{y+r_}, v{T0+r_}", 4) for r_ in range(4)]
        va += [(f"v_mul_f32 v{T0+r_}, s7, v{y+r_}", 4) for r_ in range(4)]
        va += [(f"v_exp_f32 v{T0+r_}, v{T0+r_}", 8) for r_ in range(4)]
        va += [(f"v_add_f32 v{T0+r_}, 1.0, v{T0+r_}", 4) for r_ in range(4)]
        va += [(f"v_rcp_f32 v{T0+r_}, v{T0+r_}", 8) for r_ in range(4)]
        va += [(f"v_mul_f32 v{y+r_}, v{y+r_}, v{T0+r_}", 4) for r_ in range(4)]
    fin = [(["v_mov_b32 v29, 0"], f"buffer_load_dwordx2 v[30:31], v29, s[48:51], s93 offen {WT}", ("G", 0), [])]
    for t in range(tail):
        fstep(t, A.e, last=True, extra={tail - 3: fin}.get(t, ()), va=va if t >= vat else None)
    A.c(f"left over fillers: {len(va)}")
    for x, c in va: A.e(x)
    stamp(7)
    A.e(["v_mov_b32 v22, s98", "v_mov_b32 v23, s99", f"s_add_u32 s6, s92, {G_SF}", f"s_add_u32 s7, s92, {G_SF+4096}",
         "s_cmp_lg_u32 s72, 0", f"s_cbranch_scc1 {L('xch')}"])
    s2loads = [f"buffer_load_dwordx4 {v(YP(jj,i),4)}, v4, s[52:55], s{6+jj} offen offset:{i*1024} {WT}" for jj in range(2) for i in range(4)]
    A.e(vq.need(("G", 0)))
    A.e(["v_cmp_ne_u64 vcc, s[98:99], v[30:31]", f"s_cbranch_vccnz {L('xch')}", "s_mov_b32 s91, 2"] + s2loads)
    A.label(L("xch"))
    A.e("s_nop 2")
    for cb in range(8):
        for jj in (2, 3):
            A.e(f"ds_write_b128 v2, {facc(cb,jj)} offset:{(cb*2+jj-2)*1024}")
    A.e(["s_waitcnt lgkmcnt(0)", "s_barrier"])
    for jj in (2, 3):
        for cb in range(8):
            A.e(f"ds_read_b128 {facc(cb,jj)}, v3 offset:{(cb*2+jj-2)*1024}")
    A.e(["s_cmp_eq_u32 s72, 0", f"s_cbranch_scc1 {L('sepi')}"])
    for jj in range(2):
        for i in range(4):
            dst = 160 + (jj * 4 + i) * 4
            for h in range(2):
                cb = 2 * i + h
                A.e(f"s_waitcnt lgkmcnt({15 - (jj*8+cb)})")
                b = 32 + (cb * 4 + jj) * 4
                A.e([f"v_pk_add_f32 v[{b+r_}:{b+r_+1}], v[{b+r_}:{b+r_+1}], v[{b+8+r_}:{b+9+r_}]" for r_ in (0, 2)])
                A.e([f"v_cvt_pk_bf16_f32 v{dst+2*h}, v{b}, v{b+1}", f"v_cvt_pk_bf16_f32 v{dst+2*h+1}, v{b+2}, v{b+3}"])
            A.e(f"buffer_store_dwordx4 {v(dst,4)}, v4, s[52:55], s{6+jj} offen offset:{i*1024} {WT}")
    A.e(["s_waitcnt vmcnt(0)", "s_mov_b64 exec, 1",
         f"buffer_store_dwordx2 v[22:23], v29, s[48:51], s93 offen {WT}", "s_mov_b64 exec, -1", f"s_branch {L('fin')}"])
    A.label(L("sepi"))
    A.e(["v_and_b32 v1, 15, v0", "v_lshrrev_b32 v5, 5, v0", "v_xor_b32 v5, v5, v1", "v_bfe_u32 v6, v0, 4, 1", "v_lshlrev_b32 v6, 3, v6",
         "v_lshl_add_u32 v6, v1, 8, v6", "s_lshl_b32 s15, s3, 13", "s_add_u32 s15, s15, 0x10000", "v_add_u32 v6, s15, v6"])
    XR = lambda cb, jj: 96 + (cb * 2 + jj) * 2
    for cb in range(8):
        A.e([f"v_xor_b32 v7, {2*cb}, v5", "v_lshl_add_u32 v7, v7, 4, v6",
             f"ds_read_b64 {a(XR(cb,0),2)}, v7", f"ds_read_b64 {a(XR(cb,1),2)}, v7 offset:4096"])
    for n in range(16):
        jj, cb = n // 8, n % 8
        b = 32 + (cb * 4 + jj) * 4; y = YS(cb, jj); xa = XR(cb, jj); T0 = 8 + 4 * (n % 2)
        if n == 0: A.e("s_waitcnt lgkmcnt(0)")
        A.e([f"v_accvgpr_read_b32 v{T0+1}, a{xa}", f"v_accvgpr_read_b32 v{T0+3}, a{xa+1}"])
        A.e([f"v_pk_add_f32 v[{b+r_}:{b+r_+1}], v[{b+r_}:{b+r_+1}], v[{b+8+r_}:{b+9+r_}]" for r_ in (0, 2)])
        A.e([f"v_lshlrev_b32 v{T0}, 16, v{T0+1}", f"v_and_b32 v{T0+1}, 0xffff0000, v{T0+1}",
             f"v_lshlrev_b32 v{T0+2}, 16, v{T0+3}", f"v_and_b32 v{T0+3}, 0xffff0000, v{T0+3}"])
        A.e([f"v_pk_fma_f32 v[{b+r_}:{b+r_+1}], v[{b+r_}:{b+r_+1}], v[{y+r_}:{y+r_+1}], v[{T0+r_}:{T0+r_+1}]" for r_ in (0, 2)])
    A.e(["s_cmp_eq_u32 s91, 2", f"s_cbranch_scc1 {L('have')}", SPINB])
    A.label(L("poll"))
    A.e([f"buffer_load_dwordx2 v[30:31], v29, s[48:51], s93 offen {WT}", "s_waitcnt vmcnt(0)",
         "s_sub_u32 s12, s12, 1", f"s_cbranch_scc1 {L('got')}",
         "v_cmp_ne_u64 vcc, s[98:99], v[30:31]", f"s_cbranch_vccz {L('got')}", "s_sleep 1", f"s_branch {L('poll')}"])
    A.label(L("got"))
    A.e(s2loads)
    A.label(L("have"))
    for jj in range(2):
        for i in range(4):
            o = YP(jj, i)
            A.e("s_waitcnt vmcnt(7)")
            for h in range(2):
                cb = 2 * i + h
                b = 32 + (cb * 4 + jj) * 4; y = YS(cb, jj); T0 = 8 + 4 * h
                A.e([f"v_lshlrev_b32 v{T0}, 16, v{o+2*h}", f"v_and_b32 v{T0+1}, 0xffff0000, v{o+2*h}",
                     f"v_lshlrev_b32 v{T0+2}, 16, v{o+2*h+1}", f"v_and_b32 v{T0+3}, 0xffff0000, v{o+2*h+1}"])
                A.e([f"v_pk_fma_f32 v[{b+r_}:{b+r_+1}], v[{T0+r_}:{T0+r_+1}], v[{y+r_}:{y+r_+1}], v[{b+r_}:{b+r_+1}]" for r_ in (0, 2)])
                A.e([f"v_cvt_pk_bf16_f32 v{o+2*h}, v{b}, v{b+1}", f"v_cvt_pk_bf16_f32 v{o+2*h+1}, v{b+2}, v{b+3}"])
            A.e(["s_nop 1", f"v_permlane32_swap_b32 v{o}, v{o+2}", f"v_permlane32_swap_b32 v{o+1}, v{o+3}", "s_nop 0",
                 f"v_permlane16_swap_b32 v{o}, v{o+2}", f"v_permlane16_swap_b32 v{o+1}, v{o+3}",
                 f"buffer_store_dwordx4 {v(o,4)}, v{27+jj}, s[68:71], s94 offen offset:{i*64}"])
    A.label(L("fin"))
    if stamps:
        srd(A, 40, P_WS, 0x100000, WS_STAMP)
        A.e(["s_waitcnt vmcnt(0)", "s_memtime s[76:77]", "s_memrealtime s[78:79]", "s_waitcnt lgkmcnt(0)",
             "v_mov_b32 v8, s76", "v_mov_b32 v9, s78", "v_mov_b32 v10, s72", "s_getreg_b32 s10, hwreg(HW_REG_XCC_ID)", "v_mov_b32 v11, s10",
             "s_lshl_b32 s10, s2, 2", "s_add_u32 s10, s10, s3", "s_lshl_b32 s10, s10, 7", "v_mov_b32 v1, s10", "s_mov_b64 exec, 1"])
        for k in range(4): A.e(f"buffer_store_dwordx4 a[{240+4*k}:{243+4*k}], v1, s[40:43], 0 offen offset:{16*k}")
        A.e("buffer_store_dwordx4 v[8:11], v1, s[40:43], 0 offen offset:64")
    if dbgst:
        srd(A, 40, P_DBG, 256)
        A.e(["s_and_b32 s10, s2, 0xfb", "s_or_b32 s10, s10, s3", "s_cmp_lg_u32 s10, 0", f"s_cbranch_scc1 {L('end')}", "s_mov_b64 exec, 1",
             "v_accvgpr_read_b32 v12, a241", "s_lshl_b32 s10, s2, 3", "v_mov_b32 v1, s10"])
        for k in range(1, 8): A.e([f"v_accvgpr_read_b32 v13, a{241+2*k}", f"v_sub_u32 v{15+k}, v13, v12"])
        A.e(["v_sub_u32 v23, v9, v12", "buffer_store_dwordx4 v[16:19], v1, s[40:43], 0 offen", "buffer_store_dwordx4 v[20:23], v1, s[40:43], 0 offen offset:16"])
    A.label(L("end"))
    A.e("s_endpgm")
    for tag, reg, addr, off in spins:
        A.label(L("spin" + tag))
        A.e(SPINB)
        A.label(L("spinl" + tag))
        A.e(["s_sleep 2", f"buffer_load_dwordx2 v[{reg}:{reg+1}], v{addr}, s[48:51], {off} offen {WT}", "s_waitcnt vmcnt(0)",
             "s_sub_u32 s12, s12, 1", f"s_cbranch_scc1 {L('ok' + tag)}",
             f"v_cmp_ne_u64 vcc, s[98:99], v[{reg}:{reg+1}]", f"s_cbranch_vccnz {L('spinl' + tag)}", f"s_branch {L('ok' + tag)}"])
    for T in rare_sites:
        A.label(L("rs%d" % T))
        A.e([f"s_call_b64 s[6:7], {L('rare%d' % (T & 1))}", f"s_branch {L('rb%d' % T)}"])
    for b in range(2):
        A.label(L("rare%d" % b))
        A.e(["s_nop 15", "s_nop 15"])
        for mu in range(2):
            S = SB(b, mu); S2 = SB(b ^ 1, mu)
            A.e(rowmax(S, VT, VT + 2))
            A.e([f"v_max_f32 v{VT}, 0, v{VT}", f"v_exp_f32 v{VT+1}, -v{VT}"])
            A.e([f"v_sub_f32 v{NM(mu)+k}, v{NM(mu)+k}, v{VT}" for k in range(16)])
            A.e([f"v_sub_f32 v{S+k}, v{S+k}, v{VT}" for k in range(16)])
            A.e([f"v_sub_f32 v{S2+k}, v{S2+k}, v{VT}" for k in range(16)])
            A.e(f"v_mul_f32 v{VL+mu}, v{VL+mu}, v{VT+1}")
            for i in range(4):
                o = (i * 2 + mu) * 16
                for k in range(16):
                    A.e([f"v_accvgpr_read_b32 v{VT+2}, a{o+k}", f"v_mul_f32 v{VT+2}, v{VT+2}, v{VT+1}", f"v_accvgpr_write_b32 a{o+k}, v{VT+2}"])
            for k in range(0, 16, 2):
                A.e([f"v_exp_f32 v{EB}, v{S+k}", f"v_exp_f32 v{EB+1}, v{S+k+1}", "s_nop 0",
                     f"v_cvt_pk_bf16_f32 v{PB(b,mu)+k//2}, v{EB}, v{EB+1}", f"v_add_f32 v{EB}, v{EB}, v{EB+1}",
                     f"v_mov_b32 v{VTS+mu}, v{EB}" if k == 0 else f"v_add_f32 v{VTS+mu}, v{VTS+mu}, v{EB}"])
        A.e(["s_nop 3", "s_setpc_b64 s[6:7]"])
    A.label(f"{name}_codeend")
    return (name, 512, 256, "(256,1,1)", "(256,1,1)", 163840)
```

```python
from common import *
import struct, math
QSCALE = struct.unpack("<I", struct.pack("<f", math.log2(math.e) / math.sqrt(128.0)))[0]
THR = 0x49800000
FL_L, FL_H, FL_O, FL_P, FL_SZ = 0x4000, 0x6000, 0x8000, 0xA000, 0xE000
G_BASE, G_SF, G_PF, G_SZ = 0x2200000, 0x600000, 0xA00000, 0x1200000
SS_UNUSED = 28
N1S, N1Y = 4, 3
WT = "sc0 sc1"
SPINB = "s_mov_b32 s12, 0x40000"

def kf(A, name="kf_kernel", stamps=0, thr=THR, vpos=(6, 10, 14, 18, 22, 26, 29, 30), barpos=3, apol=WT, pfT=0, pfG=0, cpf=3, ln=1, dbgst=0, pst=0, psleep=1, hwb=0, cap=24, dsl=6, vcap=8, ost=(8, 8), oflt=3, rotm=(1, 2), xpol=None, gdbg=0, pfs=7, pfA=2, rot0=1, vat=None, pft=3, tail=8, kmap=1, SS=None):
    L = lambda s: f"{name}_{s}"
    if SS is None: SS = 32 if tail == 8 else 28
    if vat is None: vat = tail - 7
    vq = Q("vmcnt", 63); dq = Q("lgkmcnt", 15, 10)
    def stamp(i, pro=0):
        if not stamps: return
        if pst == 1:
            if pro == 0 and i == 1: i = 7
            elif not (pro == 1 or i == 0): return
        elif pst == 2:
            if pro == 0 and i == 5: i = 1
            elif pro == 0 and i == 6: i = 2
            elif not (pro == 2 or (pro == 0 and i in (0, 7))): return
        elif pro: return
        A.e(["s_memtime s[76:77]", "s_memrealtime s[78:79]", "s_waitcnt lgkmcnt(0)", "v_mov_b32 v30, s76", f"v_accvgpr_write_b32 a{240+2*i}, v30",
             "v_mov_b32 v30, s78", f"v_accvgpr_write_b32 a{241+2*i}, v30"]); dq.drain()
    A.raw(kernel_head(name))
    A.e(["s_cmp_ge_u32 s2, 256", f"s_cbranch_scc1 {L('end')}"])
    cpn = [0]
    def code_touch(vr, dst, raw=False):
        lab = L("pc%d" % cpn[0]); cpn[0] += 1
        pre = ["s_getpc_b64 s[76:77]", lab + ":", f"s_sub_u32 s76, s76, {lab}-{name}", "s_subb_u32 s77, s77, 0",
               "s_lshr_b32 s78, s2, 3", "s_lshl_b32 s78, s78, 11"] + ([f"v_and_b32 v{vr}, 0xc0, v0", f"v_lshlrev_b32 v{vr+1}, 3, v{vr}"] if raw else ["s_lshl_b32 s79, s3, 9", "s_add_u32 s78, s78, s79"]) + [
               f"v_and_b32 v{vr}, 7, v0", f"v_mul_u32_u24 v{vr}, 0x4080, v{vr}", f"v_and_b32 v{vr}, 0x10180, v{vr}"] + ([f"v_add_u32 v{vr}, v{vr+1}, v{vr}"] if raw else []) + [
               f"v_add_u32 v{vr}, s78, v{vr}", f"v_min_u32 v{vr}, {name}_codeend-{name}-4, v{vr}"]
        return (pre, f"global_load_dword {dst}, v{vr}, s[76:77]", ("C", 0), [])
    stamp(0)
    A.e(LOADARGS)
    if cpf:
        op = code_touch(30, "a238", raw=True); A.e(op[0]); A.e(op[1])
    A.e(["v_lshrrev_b32 v1, 6, v0", "v_and_b32 v0, 63, v0", "s_nop 0", "v_readfirstlane_b32 s3, v1",
         "s_and_b32 s10, s2, 7", "s_lshr_b32 s11, s2, 3", "s_and_b32 s4, s11, 7", "s_lshr_b32 s11, s11, 3",
         "s_lshl_b32 s5, s10, 2", "s_add_u32 s5, s5, s11",
         f"s_mul_i32 s14, s11, {rotm[1]}", f"s_mul_i32 s12, s4, {rotm[0]}", "s_add_u32 s14, s14, s12"])
    if ln:
        A.e(["v_and_b32 v40, 7, v0", "v_lshrrev_b32 v41, 3, v0", "s_lshl_b32 s12, s3, 5", "v_add_u32 v41, s12, v41",
             "v_lshlrev_b32 v42, 11, v40", "v_lshl_add_u32 v42, v41, 4, v42",
             "s_lshl_b32 s12, s4, 5", "s_add_u32 s91, s12, s5", "s_lshl_b32 s12, s91, 14",
             "s_waitcnt lgkmcnt(0)"])
        srd(A, 64, P_X, 2048 * 2048)
        for i in range(4):
            A.e(f"buffer_load_dwordx4 v[{48+4*i}:{51+4*i}], v42, s[64:67], s12 offen offset:{128*i}"); vq.issue(("L", 0))
        srd(A, 60, P_DBG, 256)
        A.e(["v_mov_b32 v47, 0", "s_or_b32 s12, s2, s3", "s_cmp_lg_u32 s12, 0", f"s_cbranch_scc1 {L('nn')}",
             "s_memrealtime s[12:13]", "s_waitcnt lgkmcnt(0)", "s_or_b32 s12, s12, 1", "v_mov_b32 v38, s12", "v_mov_b32 v39, s13", "s_mov_b64 exec, 1",
             f"buffer_store_dwordx2 v[38:39], v47, s[60:63], 0 offen {WT}", "s_mov_b64 exec, -1"])
        A.label(L("nn"))
    A.e([
         "v_lshrrev_b32 v30, 4, v0", "v_and_b32 v31, 15, v0",
         "s_lshr_b32 s12, s3, 1", "s_lshl_b32 s12, s12, 1",
         "v_lshlrev_b32 v1, 2, v30", "v_or_b32 v1, s12, v1", "v_xor_b32 v31, v31, v1",
         "s_lshl_b32 s12, s3, 2", "v_add_u32 v30, s12, v30",
         "v_lshlrev_b32 v2, 13, v30", "s_lshl_b32 s12, s5, 8", "v_lshl_add_u32 v2, v31, 4, v2", "v_add_u32 v2, s12, v2",
         "v_lshrrev_b32 v1, 1, v31", "v_min_u32 v1, 6, v1", "s_and_b32 s13, s5, 1", "v_add_u32 v1, s13, v1",
         "v_cmp_eq_u32 vcc, 7, v1", "v_and_b32 v31, 1, v31", "s_nop 0", "v_cndmask_b32 v1, v1, 0, vcc",
         "v_lshl_or_b32 v1, v1, 1, v31",
         "v_mul_u32_u24 v3, 7168, v30", "s_mul_i32 s12, s5, 224", "v_add_u32 v3, s12, v3", "v_lshl_add_u32 v3, v1, 4, v3",
         "s_lshl_b32 s12, s4, 4", "s_lshl_b32 s13, s3, 2", "s_add_u32 s15, s12, s13",
         "s_lshl_b32 s12, s15, 15", "v_lshlrev_b32 v4, 4, v0", "v_add_u32 v5, s12, v4",
         "v_add_u32 v6, 0x8000, v5", "v_add_u32 v7, 0x10000, v5", "v_add_u32 v8, 0x18000, v5",
         "s_mul_i32 s10, s3, 3072", "s_add_u32 s10, s10, 65536", "s_mov_b32 s11, 0",
         "s_waitcnt lgkmcnt(0)"])
    srd(A, 44, P_WQ, 1024 * 4096 * 2)
    srd(A, 48, P_WG, 1024 * 3584 * 2 + 1024, -1024)
    srd(A, 52, P_WU, 1024 * 3584 * 2 + 2048, -2048)
    srd(A, 40, P_WS, SZ_XF, WS_XF)

    def acc(blk, j):
        if blk < 14: return v(32 + (blk * 4 + j) * 4, 4)
        return a(((blk - 14) * 4 + j) * 4, 4)
    Afr = lambda blk, h=None: a(192 + (blk % 11) * 4, 4) if h is None else a(192 + (blk % 11) * 4 + 2 * h, 2)
    Bfr = lambda slot, j: a(128 + slot * 16 + j * 4, 4)
    NEXTK = ([] if rot0 == 7 else ["s_cmp_lt_u32 s11, 8", f"s_cselect_b32 s13, {rot0}, 7", "s_and_b32 s13, s13, s14"]) + ["s_add_u32 s12, s11, s14" if rot0 == 7 else "s_add_u32 s12, s11, s13", "s_and_b32 s12, s12, 7", "s_and_b32 s13, s11, 0x18", "s_or_b32 s12, s12, s13",
             "s_add_u32 s11, s11, 1", "s_lshl_b32 s6, s12, 18", "s_mul_i32 s7, s12, 229376", "s_lshl_b32 s8, s12, 10"]
    def d_ops(p, h):
        base = (p % 4) * 24576 + h * 12288
        return [((NEXTK if h == 0 else []) + [f"s_add_u32 m0, s10, {base}"], "buffer_load_dwordx4 v2, s[44:47], s6 offen lds", ("D", p, h), ["s_add_u32 s6, s6, 131072"] if h == 0 else []),
                ([], "buffer_load_dwordx4 v3, s[48:51], s7 offen offset:1024 lds", ("D", p, h), []),
                ([], "buffer_load_dwordx4 v3, s[52:55], s7 offen offset:2048 lds", ("D", p, h), ["s_add_u32 s7, s7, 114688"] if h == 0 else [])]
    def x_ops(p):
        return [([], f"buffer_load_dwordx4 {Bfr(p % 4, j)}, v{5+j}, s[40:43], s8 offen {apol if xpol is None else xpol}", ("X", p), []) for j in range(4)]
    def rd_ops(t, blk):
        part, cb = (1 + (blk & 1), blk >> 1) if blk < 14 else (0, blk - 14)
        slot = t % 4
        reg = (9 if slot < 2 else 17) + cb
        off = (slot % 2) * 24576 + part * 1024
        return [(f"ds_read_b64_tr_b16 {Afr(blk,0)}, v{reg} offset:{off}", ("A", t, blk)),
                (f"ds_read_b64_tr_b16 {Afr(blk,1)}, v{reg} offset:{off+3072}", ("A", t, blk))]
    def emit_vm(op, E, nop=False):
        pre, ins, tag, post = op
        E(pre)
        if pre and nop: E("s_nop 0")
        E(ins); vq.issue(tag); E(post)
    def kv_ops(kind, P):
        reg = 0 if kind == "K" else 65536
        sr = "s[64:67]" if kind == "K" else "s[68:71]"
        ops = []
        for i in range(4):
            ops.append(([f"s_add_u32 m0, s92, {reg + (P % 4) * 16384}", f"s_add_u32 s94, s93, {P * 16384}"] if i == 0 else [],
                        f"buffer_load_dwordx4 v{25+i if kind == 'K' else 29}, {sr}, s94 offen offset:{i*1024} lds", (kind, P), []))
        return ops
    def pf_op(k):
        return [([], f"buffer_load_dword a239, v31, {'s[72:75], s96' if k == 0 else 's[80:83], s97'} offen", ("P", 0), [f"s_add_u32 s{96+k}, s{96+k}, 1024"])]
    for op in d_ops(0, 0) + d_ops(0, 1): emit_vm(op, A.e, True)
    A.e("s_mov_b32 s88, s8")
    A.e(["v_lshrrev_b32 v1, 4, v0", "v_mul_u32_u24 v30, 6144, v1", "v_and_b32 v1, 1, v1",
         "v_bfe_u32 v31, v0, 2, 2", "v_lshl_add_u32 v30, v31, 8, v30", "v_lshl_or_b32 v31, v31, 1, v1",
         "v_and_b32 v1, 3, v0", "v_lshl_add_u32 v30, v1, 3, v30", "v_add_u32 v30, 0x10000, v30"])
    for cb in range(8):
        A.e([f"v_xor_b32 v1, {cb}, v31", f"v_lshl_add_u32 v{9+cb}, v1, 5, v30", f"v_add_u32 v{17+cb}, 49152, v{9+cb}"])
    srd(A, 84, P_WS, FL_SZ, WS_FLAG)
    srd(A, 64, P_K, 4 * 2048 * 256)
    srd(A, 68, P_V, 4 * 2048 * 256)
    srd(A, 56, P_WS, SZ_HF, WS_HF)
    A.e(["s_lshr_b32 s12, s91, 1", "s_lshl_b32 s12, s12, 15", "s_and_b32 s13, s91, 1", "s_lshl_b32 s13, s13, 7", "s_add_u32 s90, s12, s13",
         "v_lshlrev_b32 v43, 8, v41", "v_lshl_add_u32 v43, v40, 4, v43",
         "v_lshlrev_b32 v44, 4, v40", "s_lshl_b32 s12, s3, 2", "v_add_u32 v45, s12, v44"])
    A.e(["v_lshrrev_b32 v30, 4, v0", "v_and_b32 v31, 15, v0", "v_xor_b32 v1, v31, v30"])
    for i in range(4):
        A.e([f"v_xor_b32 v{25+i}, {4*i}, v1", f"v_lshlrev_b32 v{25+i}, 4, v{25+i}", f"v_lshl_add_u32 v{25+i}, v30, 8, v{25+i}"])
    A.e(["v_lshlrev_b32 v1, 2, v30", "v_xor_b32 v1, v31, v1", "v_lshlrev_b32 v1, 4, v1", "v_lshl_add_u32 v29, v30, 8, v1",
         "s_lshr_b32 s12, s5, 3", "s_lshl_b32 s12, s12, 19", "s_lshl_b32 s92, s3, 12",
         "s_add_u32 s93, s12, s92", f"s_add_u32 s93, s93, {1536*256}",
         "s_mov_b32 s9, 7"])
    if pfG in (1, 2):
        srd(A, 72, P_WO, 4096 * 2048); srd(A, 80, P_WD, 3584 * 2048)
        A.e(["s_lshl_b32 s12, s2, 2", "s_add_u32 s12, s12, s3", "s_lshl_b32 s96, s12, 13", "s_mul_i32 s97, s12, 7168",
             f"v_and_b32 v31, {7 if pfs == 7 else 3}, v0", f"v_lshlrev_b32 v31, {pfs}, v31"])
    A.e(["v_and_b32 v131, 31, v0", "v_lshlrev_b32 v131, 5, v131", "s_lshl_b32 s95, s4, 10", f"s_add_u32 s95, s95, {FL_L}",
         "s_lshl_b32 s91, s91, 5", f"s_add_u32 s91, s91, {FL_L}"])
    A.e([f"v_mov_b32 v{i}, 0" for i in range(132, 144)] + ["s_nop 1"])
    A.e([mfma32(a(i, 16), v(132, 4), v(132, 4), "0") for i in range(0, 128, 16)] + [mfma32(v(i, 16), v(132, 4), v(132, 4), "0") for i in range(144, 256, 16)])
    stamp(1, 1)
    A.e(vq.need(("L", 0)))
    stamp(2, 1)
    A.e(f"buffer_load_dwordx2 v[128:129], v47, s[60:63], 0 offen {WT}"); vq.issue(("N", 0))
    X0 = 64
    for i in range(16):
        A.e([f"v_lshlrev_b32 v{X0+2*i}, 16, v{48+i}", f"v_and_b32 v{X0+1+2*i}, 0xffff0000, v{48+i}"])
    def reduce(src, off):
        A.e(["s_nop 1", f"v_add_f32_dpp v{src}, v{src}, v{src} row_ror:8 row_mask:0xf bank_mask:0xf",
             f"v_mov_b32 v46, v{src}", "s_nop 1", f"v_permlane16_swap_b32 v46, v{src}", f"v_add_f32 v{src}, v46, v{src}",
             f"v_mov_b32 v46, v{src}", "s_nop 1", f"v_permlane32_swap_b32 v46, v{src}", f"v_add_f32 v{src}, v46, v{src}",
             f"ds_write_b32 v45, v{src} offset:{off}", "s_waitcnt lgkmcnt(0)", "s_barrier",
             f"ds_read_b128 v[36:39], v44 offset:{off}", "s_waitcnt lgkmcnt(0)",
             "v_add_f32 v36, v36, v37", "v_add_f32 v38, v38, v39", f"v_add_f32 v{src}, v36, v38"])
    A.e([f"v_pk_add_f32 v[32:33], v[{X0}:{X0+1}], v[{X0+2}:{X0+3}]"] + [f"v_pk_add_f32 v[32:33], v[32:33], v[{X0+2*i}:{X0+2*i+1}]" for i in range(2, 16)])
    A.e("v_add_f32 v32, v32, v33")
    reduce(32, 0)
    A.e(["v_mul_f32 v32, 0x3a800000, v32", "v_mov_b32 v33, v32"])
    for i in range(16):
        A.e(f"v_pk_add_f32 v[{96+2*i}:{97+2*i}], v[{X0+2*i}:{X0+2*i+1}], v[32:33] neg_lo:[0,1] neg_hi:[0,1]")
    A.e("v_pk_mul_f32 v[34:35], v[96:97], v[96:97]")
    for i in range(1, 16):
        A.e(f"v_pk_fma_f32 v[34:35], v[{96+2*i}:{97+2*i}], v[{96+2*i}:{97+2*i}], v[34:35]")
    A.e("v_add_f32 v34, v34, v35")
    reduce(34, 256)
    A.e(["v_mul_f32 v34, 0x3a800000, v34", "v_cvt_pk_bf16_f32 v34, v34, v32", "v_and_b32 v32, 0xffff0000, v34", "v_lshlrev_b32 v34, 16, v34",
         "v_add_f32 v34, 0x3727c5ac, v34", "v_cvt_pk_bf16_f32 v34, v34, v34", "v_lshlrev_b32 v34, 16, v34",
         "v_sqrt_f32 v34, v34", "v_mov_b32 v33, v32", "v_cvt_pk_bf16_f32 v34, v34, v34", "v_lshlrev_b32 v34, 16, v34",
         "v_rcp_f32 v34, v34", "s_nop 0", "v_mov_b32 v35, v34"])
    for q4 in range(4):
        for i in range(4 * q4, 4 * q4 + 4):
            x = X0 + 2 * i
            A.e([f"v_pk_add_f32 v[{x}:{x+1}], v[{x}:{x+1}], v[32:33] neg_lo:[0,1] neg_hi:[0,1]",
                 f"v_cvt_pk_bf16_f32 v{48+i}, v{x}, v{x+1}",
                 f"v_lshlrev_b32 v{x}, 16, v{48+i}", f"v_and_b32 v{x+1}, 0xffff0000, v{48+i}",
                 f"v_pk_mul_f32 v[{x}:{x+1}], v[{x}:{x+1}], v[34:35]",
                 f"v_cvt_pk_bf16_f32 v{48+i}, v{x}, v{x+1}"])
        A.e(f"buffer_store_dwordx4 v[{48+4*q4}:{51+4*q4}], v43, s[40:43], s90 offen offset:{2048*(q4%2)} {WT}"); vq.issue(("S", 0))
        if q4 == 1: A.e("s_add_u32 s90, s90, 4096")
    stamp(3, 1)
    A.e(vq.need(("N", 0)))
    A.e(SPINB)
    A.label(L("pollN"))
    A.e(["v_readfirstlane_b32 s98, v128", "v_readfirstlane_b32 s99, v129", "s_cmp_lg_u32 s98, 0", f"s_cbranch_scc1 {L('gotN')}",
         "s_sub_u32 s12, s12, 1", f"s_cbranch_scc1 {L('gotN')}",
         f"buffer_load_dwordx2 v[128:129], v47, s[60:63], 0 offen {WT}", "s_waitcnt vmcnt(0)", f"s_branch {L('pollN')}"])
    A.label(L("gotN"))
    A.e([mfma32(v(i, 16), v(132, 4), v(132, 4), "0") for i in range(64, 128, 16)])
    A.e(vq.drain()); A.e("s_barrier")
    stamp(4, 1)
    A.e(["s_cmp_lg_u32 s3, 0", f"s_cbranch_scc1 {L('gotL')}", "s_mov_b64 exec, 1",
         f"buffer_store_dwordx2 v[128:129], v47, s[84:87], s91 offen {WT}", "s_mov_b64 exec, -1"])
    A.e(SPINB)
    A.label(L("pollL"))
    A.e([f"buffer_load_dwordx2 v[128:129], v131, s[84:87], s95 offen {WT}", "s_waitcnt vmcnt(0)",
         "s_sub_u32 s12, s12, 1", f"s_cbranch_scc1 {L('gotL')}",
         "v_cmp_ne_u64 vcc, s[98:99], v[128:129]", f"s_cbranch_vccz {L('gotL')}", f"s_sleep {psleep}", f"s_branch {L('pollL')}"])
    A.label(L("gotL"))
    A.e(["s_cmp_eq_u32 s3, 0", f"s_cbranch_scc1 {L('w0')}"])
    sv = list(vq.q)
    A.e(["s_mov_b32 s76, s11"])
    for op in d_ops(1, 0) + d_ops(1, 1) + d_ops(2, 0) + d_ops(2, 1): emit_vm(op, A.e, True)
    A.e(["s_mov_b32 s11, s76", "s_barrier"])
    def xs(first):
        for p_ in (0, 1, 2):
            if p_: A.e(NEXTK)
            if p_ and first:
                for h in (0, 1):
                    for k, op in enumerate(d_ops(p_, h)):
                        emit_vm((op[0][-1:] if k == 0 else [], op[1], op[2], op[3]), A.e, True)
            for op in x_ops(p_): A.e(op[1].replace("s8 offen", "s88 offen") if p_ == 0 else op[1]); vq.issue(op[2])
    def ptail(tag):
        for op in d_ops(3, 0): emit_vm(op, A.e, True)
        srd(A, 60, P_WS, SZ_OF, WS_OF)
        A.e([mfma32(v(i, 16), v(132, 4), v(132, 4), "0") for i in (32, 48)] + [f"v_mov_b32 v{i}, 0" for i in (128, 129, 130, 131)])
        dq.q = []
        for blk in range(11):
            for ins, tg in rd_ops(0, blk): A.e(ins); dq.issue(tg)
        A.e(vq.need(tag))
    xs(False); ptail(("X", 2))
    A.e(f"s_branch {L('w1')}")
    A.label(L("w0"))
    A.e("s_barrier")
    vq.q = sv
    xs(True); ptail(("X", 0))
    A.label(L("w1"))
    stamp(1)

    BARM = 47
    def step(t, E, first_ops=None, second_ops=None, last=False):
        v1 = d_ops(t + 3, 1) + x_ops(t + 3) if first_ops is None else first_ops
        v2_ = d_ops(t + 4, 0) if second_ops is None else second_ops
        if pfG == 1 and second_ops is None and t % 2 == 0: v2_ = v2_ + pf_op((t // 2) % 2)
        if pfG == 2 and second_ops is None and t == 0: v2_ = v2_ + pf_op(0)
        if gdbg & 1: v1 = [o for o in v1 if o[2][0] != "X"]
        if gdbg & 2:
            v1 = [o for o in v1 if o[2][0] != "D"]; v2_ = [o for o in v2_ if o[2][0] != "D"]
        def spread(n, lo, hi):
            c = [m for m in range(lo, hi) if m % 4 == 2]
            if n == 0: return []
            return [c[(i * len(c)) // n] for i in range(n)]
        sched = list(zip(spread(len(v1), 2, 44), v1)) + list(zip(spread(len(v2_), 54, 88), v2_))
        pend = []; post = []; pre = list(sched[0][1][0]) if sched else []; vi = 0
        for m in range(88):
            blk, j = m // 4, m % 4
            if m == 0: E(vq.need(("X", t)))
            if j == 0: E(dq.need(("A", t, blk)))
            E(mfma16(acc(blk, j), Afr(blk), Bfr(t % 4, j)))
            if m == BARM:
                E(vq.need(("D", t + 1, 1))); E(dq.drain()); E("s_barrier")
            if j == 3:
                if blk < 11: pend += rd_ops(t, blk + 11)
                elif not last: pend += rd_ops(t + 1, blk - 11)
            if vi < len(sched) and m == sched[vi][0]:
                assert not pre, (t, m, pre)
                op = sched[vi][1]
                E(op[1]); vq.issue(op[2]); post += op[3]; vi += 1
                if vi < len(sched): pre = list(sched[vi][1][0])
            else:
                used = 0
                if pend:
                    ins, tag = pend.pop(0); E(ins); dq.issue(tag); used += 1
                while post and used < 2: E(post.pop(0)); used += 1
                while pre and used < 2 and not post and not (sched[vi][0] > BARM and m < BARM - 8): E(pre.pop(0)); used += 1
        for ins, tag in pend: E(ins); dq.issue(tag)
        E(post)
    for t in range(4): step(t, lambda x: None)
    vq.rebase(4); dq.rebase(4)
    A.raw(".p2align 6")
    A.label(L("loop"))
    for t in range(4): step(t, A.e)
    A.e(["s_sub_u32 s9, s9, 1", "s_cmp_lg_u32 s9, 0", f"s_cbranch_scc1 {L('loop')}"])
    vq.rebase(4); dq.rebase(4)
    if cpf >= 2: emit_vm(code_touch(30, "a238"), A.e)
    step(0, A.e, None, kv_ops("K", 0) + kv_ops("K", 1))
    step(1, A.e, kv_ops("K", 2) + kv_ops("K", 3), kv_ops("V", 0) + kv_ops("V", 1))
    step(2, A.e, kv_ops("V", 2), kv_ops("V", 3) + (pf_op(0) if pfG in (1, 2) else []))
    step(3, A.e, [], [], last=True)
    stamp(2)

    HP = "" if hwb else WT
    A.e(["s_mul_i32 s6, s15, 114688", "s_mul_i32 s12, s5, 7", "s_add_u32 s12, s12, 1", "s_lshr_b32 s12, s12, 1", "s_lshl_b32 s12, s12, 10",
         "s_add_u32 s6, s6, s12",
         "s_and_b32 s13, s5, 1", "s_cmp_eq_u32 s13, 0", "s_mov_b32 s13, 0xfffffc08", "s_cselect_b32 s13, 0xc00, s13",
         "s_add_u32 s7, s6, s13",
         "s_mov_b32 s8, 0xbfb8aa3b", "s_mov_b32 s9, 0xbfb8aa3b"])
    def hblock(b, j, dst):
        g = 32 + ((2 * b) * 4 + j) * 4; u = g + 16
        out = []
        out += [f"v_pk_mul_f32 v[{g+r_}:{g+r_+1}], v[{g+r_}:{g+r_+1}], s[8:9]" for r_ in (0, 2)]
        out += [f"v_exp_f32 v{g+r_}, v{g+r_}" for r_ in range(4)]
        out += [f"v_pk_add_f32 v[{g+r_}:{g+r_+1}], v[{g+r_}:{g+r_+1}], 1.0 op_sel_hi:[1,0]" for r_ in (0, 2)]
        out += [f"v_rcp_f32 v{g+r_}, v{g+r_}" for r_ in range(4)]
        out += [f"v_pk_mul_f32 v[{g+r_}:{g+r_+1}], v[{g+r_}:{g+r_+1}], v[{u+r_}:{u+r_+1}]" for r_ in (0, 2)]
        out += [f"v_cvt_pk_bf16_f32 v{dst}, v{g}, v{g+1}", f"v_cvt_pk_bf16_f32 v{dst+1}, v{g+2}, v{g+3}"]
        return out
    for j in range(4):
        for i in range(3):
            dst = 32 + ((4 * i + 1) * 4 + j) * 4
            A.e(hblock(2 * i, j, dst)); A.e(hblock(2 * i + 1, j, dst + 2))
            A.e(f"buffer_store_dwordx4 {v(dst,4)}, v4, s[56:59], s6 offen offset:{i*1024} {HP}"); vq.issue(("H", 0))
        dst = 32 + (13 * 4 + j) * 4
        A.e(hblock(6, j, dst))
        A.e(f"buffer_store_dwordx2 {v(dst,2)}, v4, s[56:59], s7 offen {HP}"); vq.issue(("H", 0))
        if j < 3: A.e(["s_add_u32 s6, s6, 114688", "s_add_u32 s7, s7, 114688"])
    QF = lambda mu, t: 32 + (mu * 8 + t) * 4
    SB = lambda b, mu: 96 + (b * 2 + mu) * 16
    NM = lambda mu: 160 + mu * 16
    PB = lambda b, mu: 192 + (b * 2 + mu) * 8
    EB = 224; VL = 232; VTS = 234; VT = 236
    A.e([f"s_mov_b32 s12, {QSCALE:#x}", f"s_mov_b32 s13, {QSCALE:#x}", f"s_mov_b32 s95, {thr:#x}"])
    for t in range(8):
        for mu in range(2):
            tmp = 96 + ((t * 2 + mu) % 4) * 8
            for x in range(2):
                src = (t * 4 + 2 * mu + x) * 4
                A.e([f"v_accvgpr_read_b32 v{tmp+4*x+r_}, a{src+r_}" for r_ in range(4)])
            A.e([f"v_pk_mul_f32 v[{tmp+2*k}:{tmp+2*k+1}], v[{tmp+2*k}:{tmp+2*k+1}], s[12:13]" for k in range(4)])
            q = QF(mu, t)
            A.e([f"v_cvt_pk_bf16_f32 v{q+k}, v{tmp+2*k}, v{tmp+2*k+1}" for k in range(4)])
            if (t * 2 + mu) > 0:
                pq = QF(*prev)
                A.e([f"v_permlane16_swap_b32 v{pq}, v{pq+2}", f"v_permlane16_swap_b32 v{pq+1}, v{pq+3}"])
            prev = (mu, t)
    A.e(["v_and_b32 v30, 31, v0", "v_lshrrev_b32 v31, 5, v0", "v_and_b32 v1, 15, v0", "v_xor_b32 v1, v1, v31",
         "v_lshlrev_b32 v30, 8, v30"])
    pq = QF(*prev)
    A.e([f"v_permlane16_swap_b32 v{pq}, v{pq+2}", f"v_permlane16_swap_b32 v{pq+1}, v{pq+3}"])
    for t in range(8):
        A.e([f"v_xor_b32 v{9+t}, {2*t}, v1", f"v_lshl_add_u32 v{9+t}, v{9+t}, 4, v30"])
    A.e(["v_bfe_u32 v1, v0, 2, 2", "v_lshlrev_b32 v30, 10, v31", "v_lshl_add_u32 v30, v1, 8, v30",
         "v_bfe_u32 v22, v0, 4, 1", "v_lshl_add_u32 v30, v22, 5, v30", "v_and_b32 v23, 3, v0", "v_lshl_add_u32 v30, v23, 3, v30",
         "v_add_u32 v30, 0x10000, v30"])
    for i in range(4):
        A.e([f"v_xor_b32 v23, {i}, v1", f"v_lshl_add_u32 v{17+i}, v23, 6, v30"])
    A.e(["v_lshlrev_b32 v21, 17, v22", "v_lshl_add_u32 v21, v31, 8, v21", "v_and_b32 v1, 15, v0", "v_lshl_add_u32 v21, v1, 4, v21"])
    A.e((["s_and_b32 s12, s2, 7", "s_lshr_b32 s72, s12, 2", "s_and_b32 s13, s12, 1", "s_lshl_b32 s73, s4, 1", "s_add_u32 s73, s73, s13",
         "s_bfe_u32 s13, s12, 0x10001"] if kmap == 0 else
        ["s_and_b32 s72, s2, 1", "s_bfe_u32 s13, s2, 0x10001", "s_lshl_b32 s73, s4, 1", "s_add_u32 s73, s73, s13",
         "s_bfe_u32 s13, s2, 0x10002"]) + ["s_lshl_b32 s13, s13, 2", "s_lshr_b32 s74, s2, 6", "s_add_u32 s74, s74, s13",
         "s_lshr_b32 s12, s3, 1", "s_and_b32 s13, s3, 1",
         "s_cmp_eq_u32 s72, 0",
         f"s_cselect_b32 s8, {8*N1S}, {8*N1Y}", f"s_cselect_b32 s9, 0, {16*N1S}", "s_mul_i32 s8, s8, s12", "s_add_u32 s8, s8, s9",
         "s_cmp_eq_u32 s72, 0",
         f"s_cselect_b32 s75, {SS}, {64-SS}", f"s_cselect_b32 s96, 0, {2*SS}", "s_mul_i32 s75, s75, s12", "s_add_u32 s75, s75, s96",
         "s_lshl_b32 s9, s8, 10", "s_lshl_b32 s8, s8, 16",
         "s_lshl_b32 s96, s75, 10", "s_lshl_b32 s75, s75, 16",
         "s_lshl_b32 s13, s13, 12",
         "s_lshl_b32 s10, s12, 17", "s_add_u32 s10, s10, s13",
         "s_lshl_b32 s11, s12, 16", "s_add_u32 s11, s11, 0x8000", "s_add_u32 s11, s11, s13",
         "v_lshrrev_b32 v30, 4, v0", "v_and_b32 v31, 15, v0", "v_lshlrev_b32 v1, 2, v30", "v_xor_b32 v31, v31, v1",
         "s_lshl_b32 s13, s13, 3", "s_lshl_b32 s97, s74, 8", "s_add_u32 s97, s97, s13",
         "v_lshlrev_b32 v30, 11, v30", "v_add_u32 v30, s97, v30",
         "v_lshl_add_u32 v246, v31, 4, v30", "v_xor_b32 v31, 2, v31", "v_lshl_add_u32 v247, v31, 4, v30", "v_add_u32 v247, 7168, v247",
         "v_add_u32 v248, 14336, v246", "v_add_u32 v249, 14336, v247", "v_mov_b32 v250, s98", "v_mov_b32 v251, s99", "v_mov_b32 v252, 0",
         "s_lshl_b32 s97, s73, 3", "s_and_b32 s13, s3, 1", "s_lshl_b32 s13, s13, 2", "s_add_u32 s97, s97, s13", "s_lshl_b32 s12, s12, 1"])
    for jj in range(4):
        A.e([f"s_xor_b32 s13, s12, {jj}", "s_add_u32 s13, s13, s97", "s_mul_i32 s90, s13, 114688", f"v_add_u32 v{5+jj}, s90, v4",
             "s_lshl_b32 s90, s13, 17", f"v_add_u32 v{242+jj}, s90, v4"])
    A.e(["v_lshlrev_b32 v24, 5, v0", "v_and_b32 v24, 0x3e0, v24",
         "s_lshl_b32 s12, s4, 10", f"s_add_u32 s91, s12, {FL_H}", f"s_add_u32 s97, s12, {FL_O}",
         "s_lshl_b32 s13, s5, 5", "s_add_u32 s88, s91, s13", "s_add_u32 s89, s97, s13"])
    srd(A, 48, P_WS, FL_SZ, WS_FLAG)
    srd(A, 44, P_WD, 3584 * 2048)
    srd(A, 40, P_WS, SZ_HF, WS_HF)
    for i in range(8):
        A.e([f"s_add_u32 s13, s14, {i}", "s_and_b32 s13, s13, 7", f"s_lshl_b32 s{80+i}, s13, 10"])
    WV = 246
    def w_ops(t, half=False):
        slot = t % 8
        ops = []
        rot_ = [f"s_and_b32 s12, s{80+slot}, 0xc00", "s_lshl_b32 s12, s12, 6"] if half else [f"s_lshl_b32 s12, s{80+slot}, 6"]
        for i in range(4):
            ops.append(([f"s_add_u32 m0, s{10 if slot < 4 else 11}, {(slot%4)*8192}"] + rot_ + ["s_add_u32 s12, s12, s8"] if i == 0 else [],
                        f"buffer_load_dwordx4 v{WV+i}, s[44:47], s12 offen offset:{i*1024} lds", ("W", t),
                        ["s_add_u32 s8, s8, 0x80000"] if (i == 3 and slot == 7) else []))
        return ops
    BR = [192, 208, 224, 0, 16, 32, 48, 64]
    facc = lambda cb, jj: v(32 + (cb * 4 + jj) * 4, 4)
    FA = lambda cb, h=None: a(128 + cb * 4, 4) if h is None else a(128 + cb * 4 + 2 * h, 2)
    FB = lambda slot, jj: a(BR[slot] + jj * 4, 4)
    def a_ops(t, half=False):
        slot = t % 8
        return [(([f"s_and_b32 s13, s{80+slot}, 0xc00", "s_add_u32 s13, s13, s9"] if half else [f"s_add_u32 s13, s{80+slot}, s9"]) if jj == 0 else [],
                 f"buffer_load_dwordx4 {FB(slot,jj)}, v{5+jj}, s[40:43], s13 offen {apol}", ("X", t),
                 ["s_add_u32 s9, s9, 0x2000"] if (jj == 3 and slot == 7) else []) for jj in range(4)]
    spins = []
    def check_flags(tag, reg, addr, off):
        A.e([f"v_cmp_ne_u64 vcc, s[98:99], v[{reg}:{reg+1}]", f"s_cbranch_vccnz {L('spin' + tag)}"])
        A.label(L("ok" + tag))
        spins.append((tag, reg, addr, off))

    Kf = lambda t: a(128 + t * 4, 4)
    Vf = lambda i, tp, h=None: a(160 + (i * 2 + tp) * 4, 4) if h is None else a(160 + (i * 2 + tp) * 4 + 2 * h, 2)
    Oacc = lambda i, mu: a((i * 2 + mu) * 16, 16)
    def k_reads(T): return [(f"ds_read_b128 {Kf(t)}, v{9+t} offset:{(T % 8) * 8192}", ("K", T, t)) for t in range(8)]
    def v_reads(T):
        return [(f"ds_read_b64_tr_b16 {Vf(i,tp,h)}, v{17+i} offset:{(T % 8) * 8192 + tp * 4096 + h * 2048}", ("V", T, i, tp))
                for i in range(4) for tp in range(2) for h in range(2)]
    def qk(T, c0):
        return [(mfma32(v(SB(T & 1, mu), 16), Kf(t), v(QF(mu, t), 4), (c0(mu) if t == 0 else None)), ("K", T, t)) for t in range(8) for mu in range(2)]
    def pv(T):
        return [(mfma32(Oacc(i, mu), Vf(i, tp), v(PB(T & 1, mu) + 4 * tp, 4), ("0" if (T == 0 and tp == 0) else None)), ("V", T, i, tp))
                for i in range(4) for tp in range(2) for mu in range(2)]
    A.e(vq.need(("V", 3))); A.e("s_barrier")
    dq.slack = 15
    for ins, tag in k_reads(0): A.e(ins); dq.issue(tag)
    for ins, tag in qk(0, lambda mu: "0"):
        A.e(dq.need(tag)); A.e(ins)
    for ins, tag in k_reads(1): A.e(ins); dq.issue(tag)
    A.e(["v_mov_b32 v232, 0", "v_mov_b32 v233, 0", "s_nop 7"])
    def rowmax(S, dst, tmp):
        out = [f"v_max3_f32 v{dst}, v{S}, v{S+1}, v{S+2}"]
        for k in range(3, 15, 2): out.append(f"v_max3_f32 v{dst}, v{dst}, v{S+k}, v{S+k+1}")
        out += [f"v_max_f32 v{dst}, v{dst}, v{S+15}", f"v_mov_b32 v{tmp}, v{dst}", "s_nop 1",
                f"v_permlane32_swap_b32 v{tmp}, v{dst}", f"v_max_f32 v{dst}, v{dst}, v{tmp}"]
        return out
    for mu in range(2):
        A.e(rowmax(SB(0, mu), VT + mu, VT + 2))
        A.e([f"v_sub_f32 v{NM(mu)+k}, 0, v{VT+mu}" for k in range(16)])
        A.e([f"v_sub_f32 v{SB(0,mu)+k}, v{SB(0,mu)+k}, v{VT+mu}" for k in range(16)])
    def sm(T):
        b = T & 1
        out = []
        def ex(n): return (f"v_exp_f32 v{EB + n % 8}, v{SB(b, n // 16) + n % 16}", 8)
        def fin(n):
            mu, r_ = n // 16, n % 16; e = EB + n % 8; o = []
            if r_ == 1: o.append((f"v_add_f32 v{VTS+mu}, v{EB + (n-1) % 8}, v{e}", 4))
            elif r_ > 1: o.append((f"v_add_f32 v{VTS+mu}, v{VTS+mu}, v{e}", 4))
            if r_ % 2 == 1: o.append((f"v_cvt_pk_bf16_f32 v{PB(b,mu) + r_//2}, v{EB + (n-1) % 8}, v{e}", 5))
            return o
        out.append(ex(0)); out.append(ex(1))
        for n in range(2, 32):
            out.append(ex(n)); out += fin(n - 2)
        out += fin(30) + fin(31)
        out += [(f"v_max_f32 v{VT}, v{VTS}, v{VTS+1}", 4), (f"v_cmp_nge_f32 vcc, s95, v{VT}", 4)]
        return out
    stamp(3)
    def flag_store(off_sreg):
        lab = L("fl%d" % A.nlabel); A.nlabel += 1
        A.e(["s_cmp_lg_u32 s3, 0", f"s_cbranch_scc1 {lab}", "s_mov_b64 exec, 1",
             f"buffer_store_dwordx2 v[250:251], v252, s[48:51], {off_sreg} offen {WT}", "s_mov_b64 exec, -1"])
        A.label(lab)
    rare_sites = []
    for T in range(17):
        mf = (qk(T + 1, lambda mu: v(NM(mu), 16)) if T + 1 <= 15 else []) + (pv(T - 1) if T >= 1 else [])
        nq = 16 if T + 1 <= 15 else 0
        va = ([(f"v_add_f32 v{VL}, v{VL}, v{VTS}", 4), (f"v_add_f32 v{VL+1}, v{VL+1}, v{VTS+1}", 4)] if T >= 1 else []) + (sm(T) if T <= 15 else [])
        rdv = v_reads(T - 1) if T >= 1 else []
        rdk = k_reads(T + 2) if T + 2 <= 15 else []
        vm = []
        if T % 2 == 0 and T <= 14:
            w = []
            if T == 2: w += vq.need(("H", 0))
            if T >= 6: w += vq.need(("K", (T + 2) // 2))
            if T >= 8: w += vq.need(("V", T // 2))
            A.e(w[-1:]); A.e(dq.drain()); A.e("s_barrier")
            if T == 2:
                if hwb:
                    lab = L("wb")
                    A.e(["s_cmp_lg_u32 s3, 0", f"s_cbranch_scc1 {lab}", "buffer_wbl2 sc1"]); A.label(lab)
                else: flag_store("s88")
            if T == 8 and hwb: flag_store("s88")
            if T <= 6: vm += kv_ops("K", T // 2 + 4)
            if 4 <= T <= 10: vm += kv_ops("V", T // 2 + 2)
            if T == 12: vm += w_ops(0) + w_ops(1)
            if T == 14:
                A.e(vq.need(("F", 0))); check_flags("H", 22, 24, "s91")
                vm += a_ops(0) + a_ops(1)
        if pfA and 3 <= T <= 10:
            pre = []
            if T == 3:
                pre = [f"s_mov_b32 s52, s{P_WO}", f"s_and_b32 s53, s{P_WO+1}, 0xffff", f"s_mov_b32 s54, {4096*2048:#x}",
                       "s_lshl_b32 s12, s2, 2", "s_add_u32 s12, s12, s3", "s_lshl_b32 s100, s12, 13", "s_mul_i32 s101, s12, 7168",
                       "v_and_b32 v2, 7, v0", "v_lshlrev_b32 v2, 7, v2", "v_add_u32 v3, 4096, v2"]
            k = T - 3
            if k < 7: vm += [(pre, f"buffer_load_dword v30, v{2 if k < 4 else 3}, s[44:47], s101 offen offset:{(k % 4) * 1024}", ("P", 0), [])]
            if pfA == 2: vm += [([], f"buffer_load_dword v30, v{2 if k < 4 else 3}, s[52:55], s100 offen offset:{(k % 4) * 1024}", ("P", 0), [])]
        if T == 9 and cpf >= 3: emit_vm(code_touch(31, "v31"), A.e)
        if T == 11: vm += [([], f"buffer_load_dwordx2 v[22:23], v24, s[48:51], s91 offen {WT}", ("F", 0), [])]
        if T == 13: vm += w_ops(2) + w_ops(3)
        if T == 15: vm += a_ops(2)
        if nq == 0:
            for ins, tag in rdv: A.e(ins); dq.issue(tag)
            rdv = []
        n = len(mf)
        vml = []
        for op in vm:
            vml += [(x, 4, None) for x in op[0]] + ([("s_nop 0", 4, None)] if op[0] else []) + [(op[1], 8, op[2])] + [(x, 4, None) for x in op[3]]
        tot = sum(c for _, c in va) + 4 * (len(rdv) + len(rdk)) + sum(c for _, c, _ in vml)
        done = 0
        for m, (ins, tag) in enumerate(mf):
            w = dq.need(tag, dsl); A.e(w); A.e(ins)
            used = 4 * len(w)
            budget = max(cap, -(-(tot - done) // (n - m)) + 3) if m < n - 1 else 10 ** 6
            target = (tot * (m + 1)) // n + 6
            rd = rdv if (m < nq and rdv) else (rdk if (m >= nq and rdk) else None)
            if rd:
                ri, rt = rd.pop(0); A.e(ri); dq.issue(rt); used += 4; done += 4
                if rd is rdv and len(rd) > (nq - 3 - m):
                    ri, rt = rd.pop(0); A.e(ri); dq.issue(rt); used += 4; done += 4
            elif vml:
                x, c, tg = vml.pop(0); A.e(x); used += c; done += c
                if tg: vq.issue(tg)
                while vml and c == 4 and used < 12:
                    x, c, tg = vml.pop(0); A.e(x); used += c; done += c
                    if tg: vq.issue(tg)
            while va and used + va[0][1] <= budget and (done < target or m == n - 1):
                x, c = va.pop(0); A.e(x); used += c; done += c
        assert not rdv
        for ins, tag in rdk: A.e(ins); dq.issue(tag)
        for x, c, tg in vml:
            A.e(x)
            if tg: vq.issue(tg)
        for x, c in va: A.e(x)
        if T <= 15:
            A.e([f"s_cbranch_vccnz {L('rs%d' % T)}"])
            A.label(L("rb%d" % T))
            rare_sites.append(T)
    stamp(4)
    A.e(["s_lshl_b32 s6, s15, 17", "s_lshl_b32 s12, s5, 12", "s_add_u32 s6, s6, s12", "s_add_u32 s7, s6, 0x40000"])
    for mu in range(2):
        A.e([f"v_mov_b32 v{VT}, v{VL+mu}", "s_nop 1", f"v_permlane32_swap_b32 v{VT}, v{VL+mu}", f"v_add_f32 v{VT}, v{VT}, v{VL+mu}",
             f"v_rcp_f32 v{VT+2+2*mu}, v{VT}", "s_nop 0", f"v_mov_b32 v{VT+3+2*mu}, v{VT+2+2*mu}"])
    A.e(["v_mov_b32 v29, v21", "s_barrier"])
    for t in range(4, 7):
        for op in w_ops(t): emit_vm(op, A.e, True)
    A.e(["v_mov_b32 v253, v24",
         "v_lshrrev_b32 v1, 4, v0", "v_lshlrev_b32 v30, 10, v1", "v_and_b32 v1, 1, v1",
         "v_bfe_u32 v31, v0, 2, 2", "v_lshl_add_u32 v30, v31, 8, v30", "v_lshl_or_b32 v31, v31, 1, v1",
         "v_and_b32 v1, 3, v0", "v_lshl_add_u32 v30, v1, 3, v30",
         "s_lshr_b32 s13, s3, 1", "s_lshl_b32 s12, s13, 17", "s_lshl_b32 s13, s13, 16", "s_add_u32 s13, s13, 0x8000"])
    for cb in range(8):
        A.e([f"v_xor_b32 v1, {cb}, v31", "v_lshl_add_u32 v1, v1, 5, v30", f"v_add_u32 v{9+cb}, s12, v1", f"v_add_u32 v{17+cb}, s13, v1"])
    def frd(t, cb):
        slot = t % 8
        reg = (9 if slot < 4 else 17) + cb; off = (slot % 4) * 8192
        return [(f"ds_read_b64_tr_b16 {FA(cb,0)}, v{reg} offset:{off}", ("A", t, cb)),
                (f"ds_read_b64_tr_b16 {FA(cb,1)}, v{reg} offset:{off+4096}", ("A", t, cb))]
    dq.slack = 8
    ostores = []
    cnt = 0
    for i in range(4):
        for mu in range(2):
            tmp = 96 + (cnt % 4) * 16; dst = 160 + cnt * 8; cnt += 1
            src = (i * 2 + mu) * 16
            A.e([f"v_accvgpr_read_b32 v{tmp+k}, a{src+k}" for k in range(16)])
            A.e([f"v_pk_mul_f32 v[{tmp+2*k}:{tmp+2*k+1}], v[{tmp+2*k}:{tmp+2*k+1}], v[{VT+2+2*mu}:{VT+3+2*mu}]" for k in range(8)])
            for s_ in range(2):
                for jj, j in enumerate((s_, s_ + 2)):
                    A.e([f"v_cvt_pk_bf16_f32 v{dst+4*s_+2*jj}, v{tmp+4*j}, v{tmp+4*j+1}", f"v_cvt_pk_bf16_f32 v{dst+4*s_+2*jj+1}, v{tmp+4*j+2}, v{tmp+4*j+3}"])
                ostores.append(([], f"buffer_store_dwordx4 {v(dst+4*s_,4)}, v29, s[60:63], s{6+mu} offen offset:{i*1024+s_*512} {WT}", ("O", 0), []))
            if cnt in (1, 2, 3, 4):
                for op in a_ops(2 + cnt): emit_vm(op, A.e)
            if cnt == 5:
                A.e(vq.need(("W", 3))); A.e("s_barrier")
                for cb in range(8):
                    for ins, tag in frd(0, cb): A.e(ins); dq.issue(tag)
    srd(A, 52, P_WS, G_SZ, G_BASE)
    srd(A, 64, P_X, 2048 * 2048)
    srd(A, 68, P_OUT, 2048 * 2048)
    A.e(["s_cmp_eq_u32 s72, 0",
         f"s_cselect_b32 s90, {N1S-1}, {N1Y-1}", f"s_cselect_b32 s95, {N1S-2}, {N1Y-2}", "s_mov_b32 s91, 0",
         "s_lshl_b32 s12, s73, 3", "s_add_u32 s12, s12, s74",
         "s_lshl_b32 s92, s12, 2", "s_add_u32 s92, s92, s3",
         "s_lshl_b32 s92, s92, 13",
         "s_lshl_b32 s93, s12, 7", f"s_add_u32 s101, s93, {FL_P}", "s_lshl_b32 s12, s3, 5", "s_add_u32 s93, s93, s12",
         "s_lshl_b32 s94, s73, 7", "s_and_b32 s12, s3, 1", "s_lshl_b32 s12, s12, 6", "s_add_u32 s94, s94, s12",
         "s_lshr_b32 s12, s3, 1", "s_lshl_b32 s12, s12, 5", "s_add_u32 s94, s94, s12",
         "s_lshl_b32 s94, s94, 11", "s_lshl_b32 s12, s74, 8", "s_add_u32 s94, s94, s12",
         "v_and_b32 v1, 15, v0", "v_lshlrev_b32 v1, 11, v1", "v_lshrrev_b32 v30, 4, v0",
         "v_lshl_add_u32 v25, v30, 3, v1", "v_add_u32 v26, 0x8000, v25",
         "v_lshl_add_u32 v27, v30, 4, v1", "v_add_u32 v28, 0x8000, v27",
         "s_lshl_b32 s12, s3, 14", "v_add_u32 v2, s12, v4", "s_xor_b32 s12, s12, 0x8000", "v_add_u32 v3, s12, v4",
         "s_lshl_b32 s12, s3, 13", "s_add_u32 s12, s12, 0x10000", "v_add_u32 v254, s12, v4", "s_xor_b32 s12, s12, 0x4000", "v_add_u32 v255, s12, v4"])
    stamp(5)
    XP = (2, 8, 12, 16, 20, 24, 28)
    def fstep(t, E, last=False, extra=(), czero=False, prev=None, afterbar=None, needbar=(), va=None, xp=None):
        if not last: vops = w_ops(t + 7) + a_ops(t + 7)
        else: vops = (w_ops(t + 7, t > 0) + a_ops(t + 7, t > 0)) if t + 7 < tail else []
        xq = xp or (XP if vops else vpos)
        sched = sorted(list(zip(vpos, vops)) + list(zip(xq, extra)), key=lambda x: x[0])
        assert len(extra) <= len(xq)
        isbar = (t % 2 == 1)
        doread = not (last and t == tail - 1)
        pend = []; vi = 0; post = []; pre = [x for _, op in sched for x in op[0]] if False else None
        pres = [list(op[0]) for _, op in sched]
        for m in range(32):
            cb, jj = m // 4, m % 4
            if m == 0: E(vq.need(("X", t)))
            if jj == 0: E(dq.need(("A", t, cb)))
            if prev: E(prev(cb, jj))
            E(mfma16(facc(cb, jj), FA(cb), FB(t % 8, jj), "0" if czero else None))
            if isbar and m == barpos:
                w = vq.need(("W", t + 2))
                for tg in needbar: w += vq.need(tg)
                E(w[-1:]); E(dq.drain()); E("s_barrier")
                if afterbar: afterbar()
            if jj == 3 and doread: pend += frd(t + 1, cb)
            if vi < len(sched) and m == sched[vi][0]:
                assert not pres[vi]
                op = sched[vi][1]
                E(op[1]); vq.issue(op[2]); post += op[3]; vi += 1
            else:
                used = 0
                if not (isbar and m < barpos) and pend:
                    ins, tag = pend.pop(0); E(ins); dq.issue(tag); used += 1
                k = next((k for k in range(vi, len(sched)) if pres[k]), None)
                if k is not None and any("m0" in x for x in pres[k]) and any(" lds" in sched[k2][1][1] for k2 in range(vi, k)): k = None
                while k is not None and pres[k] and used < 2: E(pres[k].pop(0)); used += 1
                if post and used < 2: E(post.pop(0)); used += 1
                cyc = 4 * used
                while va and cyc + va[0][1] <= vcap:
                    x, c = va.pop(0); E(x); cyc += c
        for ins, tag in pend: E(ins); dq.issue(tag)
        E(post)
    oflag = [([], f"buffer_load_dwordx2 v[30:31], v253, s[48:51], s97 offen {WT}", ("F", 0), [])]
    def loop_body(E, real):
        for t in range(8):
            fstep(t, E, extra=oflag if t == 2 else ())
            if t == 0 and real:
                A.e(["s_cmp_lg_u32 s95, 0", f"s_cbranch_scc1 {L('nosw')}"])
                check_flags("O", 30, 253, "s97")
                srd(A, 40, P_WS, SZ_OF, WS_OF); srd(A, 44, P_WO, 4096 * 2048)
                A.e(["s_mov_b32 s8, s75", "s_mov_b32 s9, s96", "s_mov_b32 s97, s101", "v_mov_b32 v253, 0"] + [f"v_mov_b32 v{5+jj}, v{242+jj}" for jj in range(4)])
                A.label(L("nosw"))
    XP8 = (1, 2, 4, 8, 12, 16, 20, 24)
    for t in range(8):
        k0 = sum(ost[:t]); ex = ostores[k0:k0 + ost[t]] if t < len(ost) else ()
        fstep(t, A.e, extra=ex, czero=(t == 0), xp=XP8 if t % 2 == 0 else (4, 5, 8, 12, 16, 20, 24, 28),
              needbar=[("O", 0)] if t == oflt else (), afterbar=(lambda: flag_store("s89")) if t == oflt else None)
    stamp(6)
    vq.rebase(8); dq.rebase(8)
    q_first = (list(vq.q), list(dq.q))
    loop_body(lambda x: None, False)
    vq.rebase(8); dq.rebase(8)
    q_steady = (list(vq.q), list(dq.q))
    assert not any(t[0] == "F" for t in q_steady[0]) and N1S >= 3 and N1Y >= 3
    def covers(entry, steady):
        def younger(q, tag): return len(q) - 1 - max(i for i, t in enumerate(q) if t == tag)
        for tag in set(entry):
            if tag[0] not in "WXA": continue
            if tag not in steady or younger(entry, tag) < younger(steady, tag): return False
        return True
    assert covers(q_first[0], q_steady[0]) and covers(q_first[1], q_steady[1]), (q_first, q_steady)
    A.raw(".p2align 6")
    A.label(L("floop"))
    loop_body(A.e, True)
    A.e(["s_sub_u32 s95, s95, 1", "s_sub_u32 s90, s90, 1", "s_cmp_lg_u32 s90, 0", f"s_cbranch_scc1 {L('floop')}",
         "s_cmp_lg_u32 s91, 0", f"s_cbranch_scc1 {L('flast')}"])
    stamp(3, 2)
    vq.rebase(8); dq.rebase(8)
    YS = lambda cb, jj: 160 + (cb * 2 + jj) * 4
    A.e("s_nop 2")
    for rnd in range(2):
        for cb in range(4 * rnd, 4 * rnd + 4):
            for jj in (2, 3): A.e(f"ds_write_b128 v254, {facc(cb,jj)} offset:{((cb%4)*2+jj-2)*1024}")
        if rnd == 1:
            for cb in range(4):
                for jj in range(2):
                    b = 32 + (cb * 4 + jj) * 4; y = YS(cb, jj)
                    A.e([f"v_pk_add_f32 v[{y+r_}:{y+r_+1}], v[{b+r_}:{b+r_+1}], v[{b+8+r_}:{b+9+r_}]" for r_ in (0, 2)])
        A.e(["s_waitcnt lgkmcnt(0)", "s_barrier"])
        for cb in range(4 * rnd, 4 * rnd + 4):
            for jj in (2, 3): A.e(f"ds_read_b128 {facc(cb,jj)}, v255 offset:{((cb%4)*2+jj-2)*1024}")
        if rnd == 0: A.e(["s_waitcnt lgkmcnt(0)", "s_barrier"])
    for cb in range(4, 8):
        for jj in range(2):
            b = 32 + (cb * 4 + jj) * 4; y = YS(cb, jj)
            A.e(f"s_waitcnt lgkmcnt({7 - ((cb-4)*2+jj)})")
            A.e([f"v_pk_add_f32 v[{y+r_}:{y+r_+1}], v[{b+r_}:{b+r_+1}], v[{b+8+r_}:{b+9+r_}]" for r_ in (0, 2)])
    A.e(["s_cmp_eq_u32 s72, 0", f"s_cbranch_scc1 {L('firstC')}", "s_add_u32 s6, s92, 4096"])
    for jj in range(2):
        for i in range(4):
            d = 224 + (i % 2) * 4 + jj * 8
            for h in range(2):
                y = YS(2 * i + h, jj)
                A.e([f"v_cvt_pk_bf16_f32 v{d+2*h}, v{y}, v{y+1}", f"v_cvt_pk_bf16_f32 v{d+2*h+1}, v{y+2}, v{y+3}"])
            A.e(f"buffer_store_dwordx4 {v(d,4)}, v4, s[52:55], {'s6' if jj else 's92'} offen offset:{i*1024} {WT}")
    A.label(L("firstC"))
    stamp(4, 2)
    vq.q, dq.q = list(q_steady[0]), list(q_steady[1])
    def pflag():
        lab = L("pf")
        A.e(["s_xor_b32 s6, s72, 1", "s_or_b32 s6, s6, s3", "s_cmp_lg_u32 s6, 0", f"s_cbranch_scc1 {lab}", "s_mov_b64 exec, 1",
             f"buffer_store_dwordx2 v[250:251], v252, s[48:51], s101 offen {WT}", "s_mov_b64 exec, -1"])
        A.label(lab)
    xpre = ["v_lshrrev_b32 v228, 4, v0", "v_and_b32 v229, 15, v0", "v_xor_b32 v229, v229, v228"]
    for i in range(4):
        xpre += [f"v_xor_b32 v{224+i}, {4*i}, v229", f"v_lshlrev_b32 v{224+i}, 4, v{224+i}", f"v_lshl_add_u32 v{224+i}, v228, 11, v{224+i}",
                 f"v_add_u32 v{224+i}, {7168*i}, v{224+i}"]
    xdma = [([f"s_add_u32 m0, s15, {4096*hh}"], f"buffer_load_dwordx4 v{224+i}, s[64:67], {'s100' if hh else 's94'} offen offset:{i*1024} lds", ("R", 0), [])
            for hh in range(2) for i in range(4)]
    A.e(xpre + ["s_lshl_b32 s15, s3, 13", "s_add_u32 s15, s15, 0x10000", "s_add_u32 s100, s94, 0x8000"])
    nopre = lambda op: ([],) + tuple(op[1:])
    mark = ("MARK", vq.total)
    for t in range(8):
        fstep(t, A.e, czero=(t == 0), afterbar=pflag if t == pft else None, needbar=[mark] if t == pft else (), extra={2: [xdma[0], nopre(xdma[1])], 3: [xdma[2]], 4: [xdma[3]], 5: [xdma[4]] + oflag, 6: [xdma[5], nopre(xdma[6])], 7: [xdma[7]]}.get(t, ()),
              xp=(1, 2) if t in (2, 6) else None)
    FW = vq.need(("F", 0))
    vq.rebase(8); dq.rebase(8)
    assert covers(vq.q, q_steady[0]) and covers(dq.q, q_steady[1])
    stamp(5, 2)
    A.e(["s_mov_b32 s91, 1", f"s_mov_b32 s90, {(64-SS-8-tail)//8}", "s_cmp_lg_u32 s72, 0", f"s_cbranch_scc1 {L('floop')}"])
    A.e(FW); check_flags("P", 30, 252, "s101")
    YP = lambda jj, i: 224 + (jj * 4 + i) * 4
    YA = lambda i: 80 + i * 4
    A.e("s_add_u32 s6, s92, 4096")
    for i in range(4):
        A.e([f"buffer_load_dwordx4 {v(YP(0,i),4)}, v4, s[52:55], s92 offen offset:{i*1024} {WT}",
             f"buffer_load_dwordx4 {a(YA(i),4)}, v4, s[52:55], s6 offen offset:{i*1024} {WT}"])
    A.e([f"s_mov_b32 s90, {(SS-8-tail)//8}", f"s_branch {L('floop')}"])
    A.label(L("flast"))
    stamp(6, 2)
    A.e(["s_mov_b32 s6, 0xbfb8aa3b", "s_mov_b32 s7, 0xbfb8aa3b", "s_cmp_lg_u32 s72, 0", f"s_cbranch_scc1 {L('flast2')}"])
    for cb in range(8):
        y = YS(cb, 0); pc = YP(0, cb // 2) + 2 * (cb % 2); T0 = 240 if cb % 2 == 0 else 242
        T0 = 240
        A.e([f"v_lshlrev_b32 v{T0}, 16, v{pc}", f"v_and_b32 v{T0+1}, 0xffff0000, v{pc}",
             f"v_lshlrev_b32 v{T0+2}, 16, v{pc+1}", f"v_and_b32 v{T0+3}, 0xffff0000, v{pc+1}"])
        A.e([f"v_pk_add_f32 v[{y+r_}:{y+r_+1}], v[{y+r_}:{y+r_+1}], v[{T0+r_}:{T0+r_+1}]" for r_ in (0, 2)])
        A.e([f"v_pk_mul_f32 v[{T0+r_}:{T0+r_+1}], v[{y+r_}:{y+r_+1}], s[6:7]" for r_ in (0, 2)])
        A.e([f"v_exp_f32 v{T0+r_}, v{T0+r_}" for r_ in range(4)])
        A.e([f"v_pk_add_f32 v[{T0+r_}:{T0+r_+1}], v[{T0+r_}:{T0+r_+1}], 1.0 op_sel_hi:[1,0]" for r_ in (0, 2)])
        A.e([f"v_rcp_f32 v{T0+r_}, v{T0+r_}" for r_ in range(4)])
        A.e([f"v_pk_mul_f32 v[{y+r_}:{y+r_+1}], v[{y+r_}:{y+r_+1}], v[{T0+r_}:{T0+r_+1}]" for r_ in (0, 2)])
    A.label(L("flast2"))
    vq.q, dq.q = list(q_steady[0]), list(q_steady[1])
    va = []
    for cb in range(8):
        y = YS(cb, 1); pc = YA(cb // 2) + 2 * (cb % 2); T0 = 224 + 4 * (cb % 2)
        va += [(f"v_accvgpr_read_b32 v{T0+1}, a{pc}", 4), (f"v_accvgpr_read_b32 v{T0+3}, a{pc+1}", 4),
               (f"v_lshlrev_b32 v{T0}, 16, v{T0+1}", 4), (f"v_and_b32 v{T0+1}, 0xffff0000, v{T0+1}", 4),
               (f"v_lshlrev_b32 v{T0+2}, 16, v{T0+3}", 4), (f"v_and_b32 v{T0+3}, 0xffff0000, v{T0+3}", 4)]
        va += [(f"v_add_f32 v{y+r_}, v{y+r_}, v{T0+r_}", 4) for r_ in range(4)]
        va += [(f"v_mul_f32 v{T0+r_}, s7, v{y+r_}", 4) for r_ in range(4)]
        va += [(f"v_exp_f32 v{T0+r_}, v{T0+r_}", 8) for r_ in range(4)]
        va += [(f"v_add_f32 v{T0+r_}, 1.0, v{T0+r_}", 4) for r_ in range(4)]
        va += [(f"v_rcp_f32 v{T0+r_}, v{T0+r_}", 8) for r_ in range(4)]
        va += [(f"v_mul_f32 v{y+r_}, v{y+r_}, v{T0+r_}", 4) for r_ in range(4)]
    fin = [(["v_mov_b32 v29, 0"], f"buffer_load_dwordx2 v[30:31], v29, s[48:51], s93 offen {WT}", ("G", 0), [])]
    for t in range(tail):
        fstep(t, A.e, last=True, extra={tail - 3: fin}.get(t, ()), va=va if t >= vat else None)
    A.c(f"left over fillers: {len(va)}")
    for x, c in va: A.e(x)
    stamp(7)
    A.e(["v_mov_b32 v22, s98", "v_mov_b32 v23, s99", f"s_add_u32 s6, s92, {G_SF}", f"s_add_u32 s7, s92, {G_SF+4096}",
         "s_cmp_lg_u32 s72, 0", f"s_cbranch_scc1 {L('xch')}"])
    s2loads = [f"buffer_load_dwordx4 {v(YP(jj,i),4)}, v4, s[52:55], s{6+jj} offen offset:{i*1024} {WT}" for jj in range(2) for i in range(4)]
    A.e(vq.need(("G", 0)))
    A.e(["v_cmp_ne_u64 vcc, s[98:99], v[30:31]", f"s_cbranch_vccnz {L('xch')}", "s_mov_b32 s91, 2"] + s2loads)
    A.label(L("xch"))
    A.e("s_nop 2")
    for cb in range(8):
        for jj in (2, 3):
            A.e(f"ds_write_b128 v2, {facc(cb,jj)} offset:{(cb*2+jj-2)*1024}")
    A.e(["s_waitcnt lgkmcnt(0)", "s_barrier"])
    for jj in (2, 3):
        for cb in range(8):
            A.e(f"ds_read_b128 {facc(cb,jj)}, v3 offset:{(cb*2+jj-2)*1024}")
    A.e(["s_cmp_eq_u32 s72, 0", f"s_cbranch_scc1 {L('sepi')}"])
    for jj in range(2):
        for i in range(4):
            dst = 160 + (jj * 4 + i) * 4
            for h in range(2):
                cb = 2 * i + h
                A.e(f"s_waitcnt lgkmcnt({15 - (jj*8+cb)})")
                b = 32 + (cb * 4 + jj) * 4
                A.e([f"v_pk_add_f32 v[{b+r_}:{b+r_+1}], v[{b+r_}:{b+r_+1}], v[{b+8+r_}:{b+9+r_}]" for r_ in (0, 2)])
                A.e([f"v_cvt_pk_bf16_f32 v{dst+2*h}, v{b}, v{b+1}", f"v_cvt_pk_bf16_f32 v{dst+2*h+1}, v{b+2}, v{b+3}"])
            A.e(f"buffer_store_dwordx4 {v(dst,4)}, v4, s[52:55], s{6+jj} offen offset:{i*1024} {WT}")
    A.e(["s_waitcnt vmcnt(0)", "s_mov_b64 exec, 1",
         f"buffer_store_dwordx2 v[22:23], v29, s[48:51], s93 offen {WT}", "s_mov_b64 exec, -1", f"s_branch {L('fin')}"])
    A.label(L("sepi"))
    A.e(["v_and_b32 v1, 15, v0", "v_lshrrev_b32 v5, 5, v0", "v_xor_b32 v5, v5, v1", "v_bfe_u32 v6, v0, 4, 1", "v_lshlrev_b32 v6, 3, v6",
         "v_lshl_add_u32 v6, v1, 8, v6", "s_lshl_b32 s15, s3, 13", "s_add_u32 s15, s15, 0x10000", "v_add_u32 v6, s15, v6"])
    XR = lambda cb, jj: 96 + (cb * 2 + jj) * 2
    for cb in range(8):
        A.e([f"v_xor_b32 v7, {2*cb}, v5", "v_lshl_add_u32 v7, v7, 4, v6",
             f"ds_read_b64 {a(XR(cb,0),2)}, v7", f"ds_read_b64 {a(XR(cb,1),2)}, v7 offset:4096"])
    for n in range(16):
        jj, cb = n // 8, n % 8
        b = 32 + (cb * 4 + jj) * 4; y = YS(cb, jj); xa = XR(cb, jj); T0 = 8 + 4 * (n % 2)
        if n == 0: A.e("s_waitcnt lgkmcnt(0)")
        A.e([f"v_accvgpr_read_b32 v{T0+1}, a{xa}", f"v_accvgpr_read_b32 v{T0+3}, a{xa+1}"])
        A.e([f"v_pk_add_f32 v[{b+r_}:{b+r_+1}], v[{b+r_}:{b+r_+1}], v[{b+8+r_}:{b+9+r_}]" for r_ in (0, 2)])
        A.e([f"v_lshlrev_b32 v{T0}, 16, v{T0+1}", f"v_and_b32 v{T0+1}, 0xffff0000, v{T0+1}",
             f"v_lshlrev_b32 v{T0+2}, 16, v{T0+3}", f"v_and_b32 v{T0+3}, 0xffff0000, v{T0+3}"])
        A.e([f"v_pk_fma_f32 v[{b+r_}:{b+r_+1}], v[{b+r_}:{b+r_+1}], v[{y+r_}:{y+r_+1}], v[{T0+r_}:{T0+r_+1}]" for r_ in (0, 2)])
    A.e(["s_cmp_eq_u32 s91, 2", f"s_cbranch_scc1 {L('have')}", SPINB])
    A.label(L("poll"))
    A.e([f"buffer_load_dwordx2 v[30:31], v29, s[48:51], s93 offen {WT}", "s_waitcnt vmcnt(0)",
         "s_sub_u32 s12, s12, 1", f"s_cbranch_scc1 {L('got')}",
         "v_cmp_ne_u64 vcc, s[98:99], v[30:31]", f"s_cbranch_vccz {L('got')}", "s_sleep 1", f"s_branch {L('poll')}"])
    A.label(L("got"))
    A.e(s2loads)
    A.label(L("have"))
    for jj in range(2):
        for i in range(4):
            o = YP(jj, i)
            A.e("s_waitcnt vmcnt(7)")
            for h in range(2):
                cb = 2 * i + h
                b = 32 + (cb * 4 + jj) * 4; y = YS(cb, jj); T0 = 8 + 4 * h
                A.e([f"v_lshlrev_b32 v{T0}, 16, v{o+2*h}", f"v_and_b32 v{T0+1}, 0xffff0000, v{o+2*h}",
                     f"v_lshlrev_b32 v{T0+2}, 16, v{o+2*h+1}", f"v_and_b32 v{T0+3}, 0xffff0000, v{o+2*h+1}"])
                A.e([f"v_pk_fma_f32 v[{b+r_}:{b+r_+1}], v[{T0+r_}:{T0+r_+1}], v[{y+r_}:{y+r_+1}], v[{b+r_}:{b+r_+1}]" for r_ in (0, 2)])
                A.e([f"v_cvt_pk_bf16_f32 v{o+2*h}, v{b}, v{b+1}", f"v_cvt_pk_bf16_f32 v{o+2*h+1}, v{b+2}, v{b+3}"])
            A.e(["s_nop 1", f"v_permlane32_swap_b32 v{o}, v{o+2}", f"v_permlane32_swap_b32 v{o+1}, v{o+3}", "s_nop 0",
                 f"v_permlane16_swap_b32 v{o}, v{o+2}", f"v_permlane16_swap_b32 v{o+1}, v{o+3}",
                 f"buffer_store_dwordx4 {v(o,4)}, v{27+jj}, s[68:71], s94 offen offset:{i*64}"])
    A.label(L("fin"))
    if stamps:
        srd(A, 40, P_WS, 0x100000, WS_STAMP)
        A.e(["s_waitcnt vmcnt(0)", "s_memtime s[76:77]", "s_memrealtime s[78:79]", "s_waitcnt lgkmcnt(0)",
             "v_mov_b32 v8, s76", "v_mov_b32 v9, s78", "v_mov_b32 v10, s72", "s_getreg_b32 s10, hwreg(HW_REG_XCC_ID)", "v_mov_b32 v11, s10",
             "s_lshl_b32 s10, s2, 2", "s_add_u32 s10, s10, s3", "s_lshl_b32 s10, s10, 7", "v_mov_b32 v1, s10", "s_mov_b64 exec, 1"])
        for k in range(4): A.e(f"buffer_store_dwordx4 a[{240+4*k}:{243+4*k}], v1, s[40:43], 0 offen offset:{16*k}")
        A.e("buffer_store_dwordx4 v[8:11], v1, s[40:43], 0 offen offset:64")
    if dbgst:
        srd(A, 40, P_DBG, 256)
        A.e(["s_and_b32 s10, s2, 0xfb", "s_or_b32 s10, s10, s3", "s_cmp_lg_u32 s10, 0", f"s_cbranch_scc1 {L('end')}", "s_mov_b64 exec, 1",
             "v_accvgpr_read_b32 v12, a241", "s_lshl_b32 s10, s2, 3", "v_mov_b32 v1, s10"])
        for k in range(1, 8): A.e([f"v_accvgpr_read_b32 v13, a{241+2*k}", f"v_sub_u32 v{15+k}, v13, v12"])
        A.e(["v_sub_u32 v23, v9, v12", "buffer_store_dwordx4 v[16:19], v1, s[40:43], 0 offen", "buffer_store_dwordx4 v[20:23], v1, s[40:43], 0 offen offset:16"])
    A.label(L("end"))
    A.e("s_endpgm")
    for tag, reg, addr, off in spins:
        A.label(L("spin" + tag))
        A.e(SPINB)
        A.label(L("spinl" + tag))
        A.e(["s_sleep 2", f"buffer_load_dwordx2 v[{reg}:{reg+1}], v{addr}, s[48:51], {off} offen {WT}", "s_waitcnt vmcnt(0)",
             "s_sub_u32 s12, s12, 1", f"s_cbranch_scc1 {L('ok' + tag)}",
             f"v_cmp_ne_u64 vcc, s[98:99], v[{reg}:{reg+1}]", f"s_cbranch_vccnz {L('spinl' + tag)}", f"s_branch {L('ok' + tag)}"])
    for T in rare_sites:
        A.label(L("rs%d" % T))
        A.e([f"s_call_b64 s[6:7], {L('rare%d' % (T & 1))}", f"s_branch {L('rb%d' % T)}"])
    for b in range(2):
        A.label(L("rare%d" % b))
        A.e(["s_nop 15", "s_nop 15"])
        for mu in range(2):
            S = SB(b, mu); S2 = SB(b ^ 1, mu)
            A.e(rowmax(S, VT, VT + 2))
            A.e([f"v_max_f32 v{VT}, 0, v{VT}", f"v_exp_f32 v{VT+1}, -v{VT}"])
            A.e([f"v_sub_f32 v{NM(mu)+k}, v{NM(mu)+k}, v{VT}" for k in range(16)])
            A.e([f"v_sub_f32 v{S+k}, v{S+k}, v{VT}" for k in range(16)])
            A.e([f"v_sub_f32 v{S2+k}, v{S2+k}, v{VT}" for k in range(16)])
            A.e(f"v_mul_f32 v{VL+mu}, v{VL+mu}, v{VT+1}")
            for i in range(4):
                o = (i * 2 + mu) * 16
                for k in range(16):
                    A.e([f"v_accvgpr_read_b32 v{VT+2}, a{o+k}", f"v_mul_f32 v{VT+2}, v{VT+2}, v{VT+1}", f"v_accvgpr_write_b32 a{o+k}, v{VT+2}"])
            for k in range(0, 16, 2):
                A.e([f"v_exp_f32 v{EB}, v{S+k}", f"v_exp_f32 v{EB+1}, v{S+k+1}", "s_nop 0",
                     f"v_cvt_pk_bf16_f32 v{PB(b,mu)+k//2}, v{EB}, v{EB+1}", f"v_add_f32 v{EB}, v{EB}, v{EB+1}",
                     f"v_mov_b32 v{VTS+mu}, v{EB}" if k == 0 else f"v_add_f32 v{VTS+mu}, v{VTS+mu}, v{EB}"])
        A.e(["s_nop 3", "s_setpc_b64 s[6:7]"])
    A.label(f"{name}_codeend")
    return (name, 512, 256, "(256,1,1)", "(256,1,1)", 163840)
```

```python
from common import *
import struct, math
QSCALE = struct.unpack("<I", struct.pack("<f", math.log2(math.e) / math.sqrt(128.0)))[0]
THR = 0x49800000
FL_L, FL_H, FL_O, FL_P, FL_SZ = 0x4000, 0x6000, 0x8000, 0xA000, 0xE000
G_BASE, G_SF, G_PF, G_SZ = 0x2200000, 0x600000, 0xA00000, 0x1200000
SS_UNUSED = 28
N1S, N1Y = 4, 3
WT = "sc0 sc1"
SPINB = "s_mov_b32 s12, 0x40000"

def kf(A, name="kf_kernel", stamps=0, thr=THR, vpos=(6, 10, 14, 18, 22, 26, 29, 30), barpos=3, apol=WT, pfT=0, pfG=0, cpf=3, ln=1, dbgst=0, pst=0, psleep=1, hwb=0, cap=24, dsl=6, vcap=8, ost=(8, 8), oflt=3, rotm=(1, 2), xpol=None, gdbg=0, pfs=7, pfA=2, rot0=1, vat=None, pft=3, tail=8, kmap=1, SS=None):
    L = lambda s: f"{name}_{s}"
    if SS is None: SS = 32 if tail == 8 else 28
    if vat is None: vat = tail - 7
    vq = Q("vmcnt", 63); dq = Q("lgkmcnt", 15, 10)
    def stamp(i, pro=0):
        if not stamps: return
        if pst == 1:
            if pro == 0 and i == 1: i = 7
            elif not (pro == 1 or i == 0): return
        elif pst == 2:
            if pro == 0 and i == 5: i = 1
            elif pro == 0 and i == 6: i = 2
            elif not (pro == 2 or (pro == 0 and i in (0, 7))): return
        elif pro: return
        A.e(["s_memtime s[76:77]", "s_memrealtime s[78:79]", "s_waitcnt lgkmcnt(0)", "v_mov_b32 v30, s76", f"v_accvgpr_write_b32 a{240+2*i}, v30",
             "v_mov_b32 v30, s78", f"v_accvgpr_write_b32 a{241+2*i}, v30"]); dq.drain()
    A.raw(kernel_head(name))
    A.e(["s_cmp_ge_u32 s2, 256", f"s_cbranch_scc1 {L('end')}"])
    cpn = [0]
    def code_touch(vr, dst, raw=False):
        lab = L("pc%d" % cpn[0]); cpn[0] += 1
        pre = ["s_getpc_b64 s[76:77]", lab + ":", f"s_sub_u32 s76, s76, {lab}-{name}", "s_subb_u32 s77, s77, 0",
               "s_lshr_b32 s78, s2, 3", "s_lshl_b32 s78, s78, 11"] + ([f"v_and_b32 v{vr}, 0xc0, v0", f"v_lshlrev_b32 v{vr+1}, 3, v{vr}"] if raw else ["s_lshl_b32 s79, s3, 9", "s_add_u32 s78, s78, s79"]) + [
               f"v_and_b32 v{vr}, 7, v0", f"v_mul_u32_u24 v{vr}, 0x4080, v{vr}", f"v_and_b32 v{vr}, 0x10180, v{vr}"] + ([f"v_add_u32 v{vr}, v{vr+1}, v{vr}"] if raw else []) + [
               f"v_add_u32 v{vr}, s78, v{vr}", f"v_min_u32 v{vr}, {name}_codeend-{name}-4, v{vr}"]
        return (pre, f"global_load_dword {dst}, v{vr}, s[76:77]", ("C", 0), [])
    stamp(0)
    A.e(LOADARGS)
    if cpf:
        op = code_touch(30, "a238", raw=True); A.e(op[0]); A.e(op[1])
    A.e(["v_lshrrev_b32 v1, 6, v0", "v_and_b32 v0, 63, v0", "s_nop 0", "v_readfirstlane_b32 s3, v1",
         "s_and_b32 s10, s2, 7", "s_lshr_b32 s11, s2, 3", "s_and_b32 s4, s11, 7", "s_lshr_b32 s11, s11, 3",
         "s_lshl_b32 s5, s10, 2", "s_add_u32 s5, s5, s11",
         f"s_mul_i32 s14, s11, {rotm[1]}", f"s_mul_i32 s12, s4, {rotm[0]}", "s_add_u32 s14, s14, s12"])
    if ln:
        A.e(["v_and_b32 v40, 7, v0", "v_lshrrev_b32 v41, 3, v0", "s_lshl_b32 s12, s3, 5", "v_add_u32 v41, s12, v41",
             "v_lshlrev_b32 v42, 11, v40", "v_lshl_add_u32 v42, v41, 4, v42",
             "s_lshl_b32 s12, s4, 5", "s_add_u32 s91, s12, s5", "s_lshl_b32 s12, s91, 14",
             "s_waitcnt lgkmcnt(0)"])
        srd(A, 64, P_X, 2048 * 2048)
        for i in range(4):
            A.e(f"buffer_load_dwordx4 v[{48+4*i}:{51+4*i}], v42, s[64:67], s12 offen offset:{128*i}"); vq.issue(("L", 0))
        srd(A, 60, P_DBG, 256)
        A.e(["v_mov_b32 v47, 0", "s_or_b32 s12, s2, s3", "s_cmp_lg_u32 s12, 0", f"s_cbranch_scc1 {L('nn')}",
             "s_memrealtime s[12:13]", "s_waitcnt lgkmcnt(0)", "s_or_b32 s12, s12, 1", "v_mov_b32 v38, s12", "v_mov_b32 v39, s13", "s_mov_b64 exec, 1",
             f"buffer_store_dwordx2 v[38:39], v47, s[60:63], 0 offen {WT}", "s_mov_b64 exec, -1"])
        A.label(L("nn"))
    A.e([
         "v_lshrrev_b32 v30, 4, v0", "v_and_b32 v31, 15, v0",
         "s_lshr_b32 s12, s3, 1", "s_lshl_b32 s12, s12, 1",
         "v_lshlrev_b32 v1, 2, v30", "v_or_b32 v1, s12, v1", "v_xor_b32 v31, v31, v1",
         "s_lshl_b32 s12, s3, 2", "v_add_u32 v30, s12, v30",
         "v_lshlrev_b32 v2, 13, v30", "s_lshl_b32 s12, s5, 8", "v_lshl_add_u32 v2, v31, 4, v2", "v_add_u32 v2, s12, v2",
         "v_lshrrev_b32 v1, 1, v31", "v_min_u32 v1, 6, v1", "s_and_b32 s13, s5, 1", "v_add_u32 v1, s13, v1",
         "v_cmp_eq_u32 vcc, 7, v1", "v_and_b32 v31, 1, v31", "s_nop 0", "v_cndmask_b32 v1, v1, 0, vcc",
         "v_lshl_or_b32 v1, v1, 1, v31",
         "v_mul_u32_u24 v3, 7168, v30", "s_mul_i32 s12, s5, 224", "v_add_u32 v3, s12, v3", "v_lshl_add_u32 v3, v1, 4, v3",
         "s_lshl_b32 s12, s4, 4", "s_lshl_b32 s13, s3, 2", "s_add_u32 s15, s12, s13",
         "s_lshl_b32 s12, s15, 15", "v_lshlrev_b32 v4, 4, v0", "v_add_u32 v5, s12, v4",
         "v_add_u32 v6, 0x8000, v5", "v_add_u32 v7, 0x10000, v5", "v_add_u32 v8, 0x18000, v5",
         "s_mul_i32 s10, s3, 3072", "s_add_u32 s10, s10, 65536", "s_mov_b32 s11, 0",
         "s_waitcnt lgkmcnt(0)"])
    srd(A, 44, P_WQ, 1024 * 4096 * 2)
    srd(A, 48, P_WG, 1024 * 3584 * 2 + 1024, -1024)
    srd(A, 52, P_WU, 1024 * 3584 * 2 + 2048, -2048)
    srd(A, 40, P_WS, SZ_XF, WS_XF)

    def acc(blk, j):
        if blk < 14: return v(32 + (blk * 4 + j) * 4, 4)
        return a(((blk - 14) * 4 + j) * 4, 4)
    Afr = lambda blk, h=None: a(192 + (blk % 11) * 4, 4) if h is None else a(192 + (blk % 11) * 4 + 2 * h, 2)
    Bfr = lambda slot, j: a(128 + slot * 16 + j * 4, 4)
    NEXTK = ([] if rot0 == 7 else ["s_cmp_lt_u32 s11, 8", f"s_cselect_b32 s13, {rot0}, 7", "s_and_b32 s13, s13, s14"]) + ["s_add_u32 s12, s11, s14" if rot0 == 7 else "s_add_u32 s12, s11, s13", "s_and_b32 s12, s12, 7", "s_and_b32 s13, s11, 0x18", "s_or_b32 s12, s12, s13",
             "s_add_u32 s11, s11, 1", "s_lshl_b32 s6, s12, 18", "s_mul_i32 s7, s12, 229376", "s_lshl_b32 s8, s12, 10"]
    def d_ops(p, h):
        base = (p % 4) * 24576 + h * 12288
        return [((NEXTK if h == 0 else []) + [f"s_add_u32 m0, s10, {base}"], "buffer_load_dwordx4 v2, s[44:47], s6 offen lds", ("D", p, h), ["s_add_u32 s6, s6, 131072"] if h == 0 else []),
                ([], "buffer_load_dwordx4 v3, s[48:51], s7 offen offset:1024 lds", ("D", p, h), []),
                ([], "buffer_load_dwordx4 v3, s[52:55], s7 offen offset:2048 lds", ("D", p, h), ["s_add_u32 s7, s7, 114688"] if h == 0 else [])]
    def x_ops(p):
        return [([], f"buffer_load_dwordx4 {Bfr(p % 4, j)}, v{5+j}, s[40:43], s8 offen {apol if xpol is None else xpol}", ("X", p), []) for j in range(4)]
    def rd_ops(t, blk):
        part, cb = (1 + (blk & 1), blk >> 1) if blk < 14 else (0, blk - 14)
        slot = t % 4
        reg = (9 if slot < 2 else 17) + cb
        off = (slot % 2) * 24576 + part * 1024
        return [(f"ds_read_b64_tr_b16 {Afr(blk,0)}, v{reg} offset:{off}", ("A", t, blk)),
                (f"ds_read_b64_tr_b16 {Afr(blk,1)}, v{reg} offset:{off+3072}", ("A", t, blk))]
    def emit_vm(op, E, nop=False):
        pre, ins, tag, post = op
        E(pre)
        if pre and nop: E("s_nop 0")
        E(ins); vq.issue(tag); E(post)
    def kv_ops(kind, P):
        reg = 0 if kind == "K" else 65536
        sr = "s[64:67]" if kind == "K" else "s[68:71]"
        ops = []
        for i in range(4):
            ops.append(([f"s_add_u32 m0, s92, {reg + (P % 4) * 16384}", f"s_add_u32 s94, s93, {P * 16384}"] if i == 0 else [],
                        f"buffer_load_dwordx4 v{25+i if kind == 'K' else 29}, {sr}, s94 offen offset:{i*1024} lds", (kind, P), []))
        return ops
    def pf_op(k):
        return [([], f"buffer_load_dword a239, v31, {'s[72:75], s96' if k == 0 else 's[80:83], s97'} offen", ("P", 0), [f"s_add_u32 s{96+k}, s{96+k}, 1024"])]
    for op in d_ops(0, 0) + d_ops(0, 1): emit_vm(op, A.e, True)
    A.e("s_mov_b32 s88, s8")
    srd(A, 84, P_WS, FL_SZ, WS_FLAG)
    A.e(["s_lshr_b32 s12, s91, 1", "s_lshl_b32 s12, s12, 15", "s_and_b32 s13, s91, 1", "s_lshl_b32 s13, s13, 7", "s_add_u32 s90, s12, s13",
         "v_lshlrev_b32 v43, 8, v41", "v_lshl_add_u32 v43, v40, 4, v43",
         "v_lshlrev_b32 v44, 5, v40", "s_lshl_b32 s12, s3, 3", "v_add_u32 v45, s12, v44",
         "s_lshl_b32 s91, s91, 5", f"s_add_u32 s91, s91, {FL_L}"])
    A.e([f"v_mov_b32 v{i}, 0" for i in range(132, 144)])
    A.e(f"buffer_load_dwordx2 v[128:129], v47, s[60:63], 0 offen {WT}"); vq.issue(("N", 0))
    A.e([mfma32(a(i, 16), v(132, 4), v(132, 4), "0") for i in range(0, 128, 16)] + [mfma32(v(i, 16), v(132, 4), v(132, 4), "0") for i in range(144, 256, 16)])
    stamp(1, 1)
    A.e(vq.need(("L", 0)))
    stamp(2, 1)
    X0 = 64
    for i in range(16):
        A.e([f"v_lshlrev_b32 v{X0+2*i}, 16, v{48+i}", f"v_and_b32 v{X0+1+2*i}, 0xffff0000, v{48+i}"])
    def lanesum(src):
        A.e(["s_nop 1", f"v_add_f32_dpp v{src}, v{src}, v{src} row_ror:8 row_mask:0xf bank_mask:0xf",
             f"v_mov_b32 v46, v{src}", "s_nop 1", f"v_permlane16_swap_b32 v46, v{src}", f"v_add_f32 v{src}, v46, v{src}",
             f"v_mov_b32 v46, v{src}", "s_nop 1", f"v_permlane32_swap_b32 v46, v{src}", f"v_add_f32 v{src}, v46, v{src}"])
    A.e([f"v_pk_add_f32 v[32:33], v[{X0}:{X0+1}], v[{X0+2}:{X0+3}]", f"v_pk_add_f32 v[34:35], v[{X0+4}:{X0+5}], v[{X0+6}:{X0+7}]"])
    A.e([f"v_pk_add_f32 v[{32+2*(i%2)}:{33+2*(i%2)}], v[{32+2*(i%2)}:{33+2*(i%2)}], v[{X0+2*i}:{X0+2*i+1}]" for i in range(4, 16)])
    A.e(["v_pk_add_f32 v[32:33], v[32:33], v[34:35]", "v_add_f32 v32, v32, v33"])
    lanesum(32)
    A.e(["v_mul_f32 v32, 0x3b800000, v32", "v_mov_b32 v34, v32", "v_mov_b32 v35, v32"])
    for i in range(16):
        A.e(f"v_pk_add_f32 v[{96+2*i}:{97+2*i}], v[{X0+2*i}:{X0+2*i+1}], v[34:35] neg_lo:[0,1] neg_hi:[0,1]")
    A.e(["v_pk_mul_f32 v[34:35], v[96:97], v[96:97]", "v_pk_mul_f32 v[36:37], v[98:99], v[98:99]"])
    for i in range(2, 16):
        r_ = 34 + 2 * (i % 2)
        A.e(f"v_pk_fma_f32 v[{r_}:{r_+1}], v[{96+2*i}:{97+2*i}], v[{96+2*i}:{97+2*i}], v[{r_}:{r_+1}]")
    A.e(["v_pk_add_f32 v[34:35], v[34:35], v[36:37]", "v_add_f32 v33, v34, v35"])
    lanesum(33)
    A.e(["ds_write_b64 v45, v[32:33]", "s_waitcnt lgkmcnt(0)", "s_barrier",
         "ds_read_b128 v[96:99], v44", "ds_read_b128 v[100:103], v44 offset:16", "s_waitcnt lgkmcnt(0)",
         "v_add_f32 v32, v96, v98", "v_add_f32 v33, v100, v102", "v_add_f32 v34, v97, v99", "v_add_f32 v35, v101, v103",
         "v_add_f32 v32, v32, v33", "v_add_f32 v34, v34, v35", "v_mul_f32 v32, 0.25, v32" if False else "v_mul_f32 v32, 0x3e800000, v32",
         "v_sub_f32 v96, v96, v32", "v_sub_f32 v98, v98, v32", "v_sub_f32 v100, v100, v32", "v_sub_f32 v102, v102, v32",
         "v_mul_f32 v35, v96, v96", "v_fmac_f32 v35, v98, v98", "v_fmac_f32 v35, v100, v100", "v_fmac_f32 v35, v102, v102",
         "v_mul_f32 v34, 0x3a800000, v34", "v_fmac_f32 v34, 0x3e800000, v35"])
    A.e(["v_cvt_pk_bf16_f32 v34, v34, v32", "v_and_b32 v32, 0xffff0000, v34", "v_lshlrev_b32 v34, 16, v34",
         "v_add_f32 v34, 0x3727c5ac, v34", "v_cvt_pk_bf16_f32 v34, v34, v34", "v_lshlrev_b32 v34, 16, v34",
         "v_sqrt_f32 v34, v34", "v_mov_b32 v33, v32", "v_cvt_pk_bf16_f32 v34, v34, v34", "v_lshlrev_b32 v34, 16, v34",
         "v_rcp_f32 v34, v34", "s_nop 0", "v_mov_b32 v35, v34"])
    for q4 in range(4):
        for i in range(4 * q4, 4 * q4 + 4):
            x = X0 + 2 * i
            A.e([f"v_pk_add_f32 v[{x}:{x+1}], v[{x}:{x+1}], v[32:33] neg_lo:[0,1] neg_hi:[0,1]",
                 f"v_cvt_pk_bf16_f32 v{48+i}, v{x}, v{x+1}",
                 f"v_lshlrev_b32 v{x}, 16, v{48+i}", f"v_and_b32 v{x+1}, 0xffff0000, v{48+i}",
                 f"v_pk_mul_f32 v[{x}:{x+1}], v[{x}:{x+1}], v[34:35]",
                 f"v_cvt_pk_bf16_f32 v{48+i}, v{x}, v{x+1}"])
        A.e(f"buffer_store_dwordx4 v[{48+4*q4}:{51+4*q4}], v43, s[40:43], s90 offen offset:{2048*(q4%2)} {WT}"); vq.issue(("S", 0))
        if q4 == 1: A.e("s_add_u32 s90, s90, 4096")
    stamp(3, 1)
    A.e(vq.need(("N", 0)))
    A.e(SPINB)
    A.label(L("pollN"))
    A.e(["v_readfirstlane_b32 s98, v128", "v_readfirstlane_b32 s99, v129", "s_cmp_lg_u32 s98, 0", f"s_cbranch_scc1 {L('gotN')}",
         "s_sub_u32 s12, s12, 1", f"s_cbranch_scc1 {L('gotN')}",
         f"buffer_load_dwordx2 v[128:129], v47, s[60:63], 0 offen {WT}", "s_waitcnt vmcnt(0)", f"s_branch {L('pollN')}"])
    A.label(L("gotN"))
    A.e([mfma32(v(i, 16), v(132, 4), v(132, 4), "0") for i in range(64, 128, 16)])
    A.e(vq.drain()); A.e("s_barrier")
    stamp(4, 1)
    A.e(["s_cmp_lg_u32 s3, 0", f"s_cbranch_scc1 {L('nf')}", "s_mov_b64 exec, 1",
         f"buffer_store_dwordx2 v[128:129], v47, s[84:87], s91 offen {WT}", "s_mov_b64 exec, -1"])
    A.label(L("nf"))
    for op in d_ops(1, 0) + d_ops(1, 1): emit_vm(op, A.e, True)
    A.e("s_mov_b32 s89, s8")
    for op in d_ops(2, 0) + d_ops(2, 1): emit_vm(op, A.e, True)
    A.e("s_mov_b32 s90, s8")
    A.e([mfma32(v(i, 16), v(132, 4), v(132, 4), "0") for i in (32, 48)])
    A.e(["v_lshrrev_b32 v1, 4, v0", "v_mul_u32_u24 v30, 6144, v1", "v_and_b32 v1, 1, v1",
         "v_bfe_u32 v31, v0, 2, 2", "v_lshl_add_u32 v30, v31, 8, v30", "v_lshl_or_b32 v31, v31, 1, v1",
         "v_and_b32 v1, 3, v0", "v_lshl_add_u32 v30, v1, 3, v30", "v_add_u32 v30, 0x10000, v30"])
    for cb in range(8):
        A.e([f"v_xor_b32 v1, {cb}, v31", f"v_lshl_add_u32 v{9+cb}, v1, 5, v30", f"v_add_u32 v{17+cb}, 49152, v{9+cb}"])
    for blk in range(11):
        for ins, tg in rd_ops(0, blk): A.e(ins); dq.issue(tg)
    srd(A, 64, P_K, 4 * 2048 * 256)
    srd(A, 68, P_V, 4 * 2048 * 256)
    srd(A, 56, P_WS, SZ_HF, WS_HF)
    srd(A, 60, P_WS, SZ_OF, WS_OF)
    A.e(["v_lshrrev_b32 v30, 4, v0", "v_and_b32 v31, 15, v0", "v_xor_b32 v1, v31, v30"])
    for i in range(4):
        A.e([f"v_xor_b32 v{25+i}, {4*i}, v1", f"v_lshlrev_b32 v{25+i}, 4, v{25+i}", f"v_lshl_add_u32 v{25+i}, v30, 8, v{25+i}"])
    A.e(["v_lshlrev_b32 v1, 2, v30", "v_xor_b32 v1, v31, v1", "v_lshlrev_b32 v1, 4, v1", "v_lshl_add_u32 v29, v30, 8, v1",
         "s_lshr_b32 s12, s5, 3", "s_lshl_b32 s12, s12, 19", "s_lshl_b32 s92, s3, 12",
         "s_add_u32 s93, s12, s92", f"s_add_u32 s93, s93, {1536*256}",
         "s_mov_b32 s9, 7"])
    if pfG in (1, 2):
        srd(A, 72, P_WO, 4096 * 2048); srd(A, 80, P_WD, 3584 * 2048)
        A.e(["s_lshl_b32 s12, s2, 2", "s_add_u32 s12, s12, s3", "s_lshl_b32 s96, s12, 13", "s_mul_i32 s97, s12, 7168",
             f"v_and_b32 v31, {7 if pfs == 7 else 3}, v0", f"v_lshlrev_b32 v31, {pfs}, v31"])
    stamp(5, 1)
    A.e(["s_cmp_lg_u32 s3, 0", f"s_cbranch_scc1 {L('gotL')}",
         "v_and_b32 v1, 31, v0", "v_lshlrev_b32 v1, 5, v1", "s_lshl_b32 s95, s4, 10", f"s_add_u32 s95, s95, {FL_L}", SPINB])
    A.label(L("pollL"))
    A.e([f"buffer_load_dwordx2 v[128:129], v1, s[84:87], s95 offen {WT}", "s_waitcnt vmcnt(0)",
         "s_sub_u32 s12, s12, 1", f"s_cbranch_scc1 {L('gotL')}",
         "v_cmp_ne_u64 vcc, s[98:99], v[128:129]", f"s_cbranch_vccz {L('gotL')}", f"s_sleep {psleep}", f"s_branch {L('pollL')}"])
    A.label(L("gotL"))
    A.e("s_barrier")
    stamp(6, 1)
    for p_, sr in ((0, "s88"), (1, "s89"), (2, "s90")):
        for op in x_ops(p_): A.e(op[1].replace("s8 offen", f"{sr} offen")); vq.issue(op[2])
    for op in d_ops(3, 0): emit_vm(op, A.e, True)
    A.e([f"v_mov_b32 v{i}, 0" for i in (128, 129, 130, 131)])
    A.e(vq.need(("X", 2)))
    stamp(1)

    BARM = 47
    def step(t, E, first_ops=None, second_ops=None, last=False):
        v1 = d_ops(t + 3, 1) + x_ops(t + 3) if first_ops is None else first_ops
        v2_ = d_ops(t + 4, 0) if second_ops is None else second_ops
        if pfG == 1 and second_ops is None and t % 2 == 0: v2_ = v2_ + pf_op((t // 2) % 2)
        if pfG == 2 and second_ops is None and t == 0: v2_ = v2_ + pf_op(0)
        if gdbg & 1: v1 = [o for o in v1 if o[2][0] != "X"]
        if gdbg & 2:
            v1 = [o for o in v1 if o[2][0] != "D"]; v2_ = [o for o in v2_ if o[2][0] != "D"]
        def spread(n, lo, hi):
            c = [m for m in range(lo, hi) if m % 4 == 2]
            if n == 0: return []
            return [c[(i * len(c)) // n] for i in range(n)]
        sched = list(zip(spread(len(v1), 2, 44), v1)) + list(zip(spread(len(v2_), 54, 88), v2_))
        pend = []; post = []; pre = list(sched[0][1][0]) if sched else []; vi = 0
        for m in range(88):
            blk, j = m // 4, m % 4
            if m == 0: E(vq.need(("X", t)))
            if j == 0: E(dq.need(("A", t, blk)))
            E(mfma16(acc(blk, j), Afr(blk), Bfr(t % 4, j)))
            if m == BARM:
                E(vq.need(("D", t + 1, 1))); E(dq.drain()); E("s_barrier")
            if j == 3:
                if blk < 11: pend += rd_ops(t, blk + 11)
                elif not last: pend += rd_ops(t + 1, blk - 11)
            if vi < len(sched) and m == sched[vi][0]:
                assert not pre, (t, m, pre)
                op = sched[vi][1]
                E(op[1]); vq.issue(op[2]); post += op[3]; vi += 1
                if vi < len(sched): pre = list(sched[vi][1][0])
            else:
                used = 0
                if pend:
                    ins, tag = pend.pop(0); E(ins); dq.issue(tag); used += 1
                while post and used < 2: E(post.pop(0)); used += 1
                while pre and used < 2 and not post and not (sched[vi][0] > BARM and m < BARM - 8): E(pre.pop(0)); used += 1
        for ins, tag in pend: E(ins); dq.issue(tag)
        E(post)
    for t in range(4): step(t, lambda x: None)
    vq.rebase(4); dq.rebase(4)
    A.raw(".p2align 6")
    A.label(L("loop"))
    for t in range(4): step(t, A.e)
    A.e(["s_sub_u32 s9, s9, 1", "s_cmp_lg_u32 s9, 0", f"s_cbranch_scc1 {L('loop')}"])
    vq.rebase(4); dq.rebase(4)
    if cpf >= 2: emit_vm(code_touch(30, "a238"), A.e)
    step(0, A.e, None, kv_ops("K", 0) + kv_ops("K", 1))
    step(1, A.e, kv_ops("K", 2) + kv_ops("K", 3), kv_ops("V", 0) + kv_ops("V", 1))
    step(2, A.e, kv_ops("V", 2), kv_ops("V", 3) + (pf_op(0) if pfG in (1, 2) else []))
    step(3, A.e, [], [], last=True)
    stamp(2)

    HP = "" if hwb else WT
    A.e(["s_mul_i32 s6, s15, 114688", "s_mul_i32 s12, s5, 7", "s_add_u32 s12, s12, 1", "s_lshr_b32 s12, s12, 1", "s_lshl_b32 s12, s12, 10",
         "s_add_u32 s6, s6, s12",
         "s_and_b32 s13, s5, 1", "s_cmp_eq_u32 s13, 0", "s_mov_b32 s13, 0xfffffc08", "s_cselect_b32 s13, 0xc00, s13",
         "s_add_u32 s7, s6, s13",
         "s_mov_b32 s8, 0xbfb8aa3b", "s_mov_b32 s9, 0xbfb8aa3b"])
    def hblock(b, j, dst):
        g = 32 + ((2 * b) * 4 + j) * 4; u = g + 16
        out = []
        out += [f"v_pk_mul_f32 v[{g+r_}:{g+r_+1}], v[{g+r_}:{g+r_+1}], s[8:9]" for r_ in (0, 2)]
        out += [f"v_exp_f32 v{g+r_}, v{g+r_}" for r_ in range(4)]
        out += [f"v_pk_add_f32 v[{g+r_}:{g+r_+1}], v[{g+r_}:{g+r_+1}], 1.0 op_sel_hi:[1,0]" for r_ in (0, 2)]
        out += [f"v_rcp_f32 v{g+r_}, v{g+r_}" for r_ in range(4)]
        out += [f"v_pk_mul_f32 v[{g+r_}:{g+r_+1}], v[{g+r_}:{g+r_+1}], v[{u+r_}:{u+r_+1}]" for r_ in (0, 2)]
        out += [f"v_cvt_pk_bf16_f32 v{dst}, v{g}, v{g+1}", f"v_cvt_pk_bf16_f32 v{dst+1}, v{g+2}, v{g+3}"]
        return out
    for j in range(4):
        for i in range(3):
            dst = 32 + ((4 * i + 1) * 4 + j) * 4
            A.e(hblock(2 * i, j, dst)); A.e(hblock(2 * i + 1, j, dst + 2))
            A.e(f"buffer_store_dwordx4 {v(dst,4)}, v4, s[56:59], s6 offen offset:{i*1024} {HP}"); vq.issue(("H", 0))
        dst = 32 + (13 * 4 + j) * 4
        A.e(hblock(6, j, dst))
        A.e(f"buffer_store_dwordx2 {v(dst,2)}, v4, s[56:59], s7 offen {HP}"); vq.issue(("H", 0))
        if j < 3: A.e(["s_add_u32 s6, s6, 114688", "s_add_u32 s7, s7, 114688"])
    QF = lambda mu, t: 32 + (mu * 8 + t) * 4
    SB = lambda b, mu: 96 + (b * 2 + mu) * 16
    NM = lambda mu: 160 + mu * 16
    PB = lambda b, mu: 192 + (b * 2 + mu) * 8
    EB = 224; VL = 232; VTS = 234; VT = 236
    A.e([f"s_mov_b32 s12, {QSCALE:#x}", f"s_mov_b32 s13, {QSCALE:#x}", f"s_mov_b32 s95, {thr:#x}"])
    for t in range(8):
        for mu in range(2):
            tmp = 96 + ((t * 2 + mu) % 4) * 8
            for x in range(2):
                src = (t * 4 + 2 * mu + x) * 4
                A.e([f"v_accvgpr_read_b32 v{tmp+4*x+r_}, a{src+r_}" for r_ in range(4)])
            A.e([f"v_pk_mul_f32 v[{tmp+2*k}:{tmp+2*k+1}], v[{tmp+2*k}:{tmp+2*k+1}], s[12:13]" for k in range(4)])
            q = QF(mu, t)
            A.e([f"v_cvt_pk_bf16_f32 v{q+k}, v{tmp+2*k}, v{tmp+2*k+1}" for k in range(4)])
            if (t * 2 + mu) > 0:
                pq = QF(*prev)
                A.e([f"v_permlane16_swap_b32 v{pq}, v{pq+2}", f"v_permlane16_swap_b32 v{pq+1}, v{pq+3}"])
            prev = (mu, t)
    A.e(["v_and_b32 v30, 31, v0", "v_lshrrev_b32 v31, 5, v0", "v_and_b32 v1, 15, v0", "v_xor_b32 v1, v1, v31",
         "v_lshlrev_b32 v30, 8, v30"])
    pq = QF(*prev)
    A.e([f"v_permlane16_swap_b32 v{pq}, v{pq+2}", f"v_permlane16_swap_b32 v{pq+1}, v{pq+3}"])
    for t in range(8):
        A.e([f"v_xor_b32 v{9+t}, {2*t}, v1", f"v_lshl_add_u32 v{9+t}, v{9+t}, 4, v30"])
    A.e(["v_bfe_u32 v1, v0, 2, 2", "v_lshlrev_b32 v30, 10, v31", "v_lshl_add_u32 v30, v1, 8, v30",
         "v_bfe_u32 v22, v0, 4, 1", "v_lshl_add_u32 v30, v22, 5, v30", "v_and_b32 v23, 3, v0", "v_lshl_add_u32 v30, v23, 3, v30",
         "v_add_u32 v30, 0x10000, v30"])
    for i in range(4):
        A.e([f"v_xor_b32 v23, {i}, v1", f"v_lshl_add_u32 v{17+i}, v23, 6, v30"])
    A.e(["v_lshlrev_b32 v21, 17, v22", "v_lshl_add_u32 v21, v31, 8, v21", "v_and_b32 v1, 15, v0", "v_lshl_add_u32 v21, v1, 4, v21"])
    A.e((["s_and_b32 s12, s2, 7", "s_lshr_b32 s72, s12, 2", "s_and_b32 s13, s12, 1", "s_lshl_b32 s73, s4, 1", "s_add_u32 s73, s73, s13",
         "s_bfe_u32 s13, s12, 0x10001"] if kmap == 0 else
        ["s_and_b32 s72, s2, 1", "s_bfe_u32 s13, s2, 0x10001", "s_lshl_b32 s73, s4, 1", "s_add_u32 s73, s73, s13",
         "s_bfe_u32 s13, s2, 0x10002"]) + ["s_lshl_b32 s13, s13, 2", "s_lshr_b32 s74, s2, 6", "s_add_u32 s74, s74, s13",
         "s_lshr_b32 s12, s3, 1", "s_and_b32 s13, s3, 1",
         "s_cmp_eq_u32 s72, 0",
         f"s_cselect_b32 s8, {8*N1S}, {8*N1Y}", f"s_cselect_b32 s9, 0, {16*N1S}", "s_mul_i32 s8, s8, s12", "s_add_u32 s8, s8, s9",
         "s_cmp_eq_u32 s72, 0",
         f"s_cselect_b32 s75, {SS}, {64-SS}", f"s_cselect_b32 s96, 0, {2*SS}", "s_mul_i32 s75, s75, s12", "s_add_u32 s75, s75, s96",
         "s_lshl_b32 s9, s8, 10", "s_lshl_b32 s8, s8, 16",
         "s_lshl_b32 s96, s75, 10", "s_lshl_b32 s75, s75, 16",
         "s_lshl_b32 s13, s13, 12",
         "s_lshl_b32 s10, s12, 17", "s_add_u32 s10, s10, s13",
         "s_lshl_b32 s11, s12, 16", "s_add_u32 s11, s11, 0x8000", "s_add_u32 s11, s11, s13",
         "v_lshrrev_b32 v30, 4, v0", "v_and_b32 v31, 15, v0", "v_lshlrev_b32 v1, 2, v30", "v_xor_b32 v31, v31, v1",
         "s_lshl_b32 s13, s13, 3", "s_lshl_b32 s97, s74, 8", "s_add_u32 s97, s97, s13",
         "v_lshlrev_b32 v30, 11, v30", "v_add_u32 v30, s97, v30",
         "v_lshl_add_u32 v246, v31, 4, v30", "v_xor_b32 v31, 2, v31", "v_lshl_add_u32 v247, v31, 4, v30", "v_add_u32 v247, 7168, v247",
         "v_add_u32 v248, 14336, v246", "v_add_u32 v249, 14336, v247", "v_mov_b32 v250, s98", "v_mov_b32 v251, s99", "v_mov_b32 v252, 0",
         "s_lshl_b32 s97, s73, 3", "s_and_b32 s13, s3, 1", "s_lshl_b32 s13, s13, 2", "s_add_u32 s97, s97, s13", "s_lshl_b32 s12, s12, 1"])
    for jj in range(4):
        A.e([f"s_xor_b32 s13, s12, {jj}", "s_add_u32 s13, s13, s97", "s_mul_i32 s90, s13, 114688", f"v_add_u32 v{5+jj}, s90, v4",
             "s_lshl_b32 s90, s13, 17", f"v_add_u32 v{242+jj}, s90, v4"])
    A.e(["v_lshlrev_b32 v24, 5, v0", "v_and_b32 v24, 0x3e0, v24",
         "s_lshl_b32 s12, s4, 10", f"s_add_u32 s91, s12, {FL_H}", f"s_add_u32 s97, s12, {FL_O}",
         "s_lshl_b32 s13, s5, 5", "s_add_u32 s88, s91, s13", "s_add_u32 s89, s97, s13"])
    srd(A, 48, P_WS, FL_SZ, WS_FLAG)
    srd(A, 44, P_WD, 3584 * 2048)
    srd(A, 40, P_WS, SZ_HF, WS_HF)
    for i in range(8):
        A.e([f"s_add_u32 s13, s14, {i}", "s_and_b32 s13, s13, 7", f"s_lshl_b32 s{80+i}, s13, 10"])
    WV = 246
    def w_ops(t, half=False):
        slot = t % 8
        ops = []
        rot_ = [f"s_and_b32 s12, s{80+slot}, 0xc00", "s_lshl_b32 s12, s12, 6"] if half else [f"s_lshl_b32 s12, s{80+slot}, 6"]
        for i in range(4):
            ops.append(([f"s_add_u32 m0, s{10 if slot < 4 else 11}, {(slot%4)*8192}"] + rot_ + ["s_add_u32 s12, s12, s8"] if i == 0 else [],
                        f"buffer_load_dwordx4 v{WV+i}, s[44:47], s12 offen offset:{i*1024} lds", ("W", t),
                        ["s_add_u32 s8, s8, 0x80000"] if (i == 3 and slot == 7) else []))
        return ops
    BR = [192, 208, 224, 0, 16, 32, 48, 64]
    facc = lambda cb, jj: v(32 + (cb * 4 + jj) * 4, 4)
    FA = lambda cb, h=None: a(128 + cb * 4, 4) if h is None else a(128 + cb * 4 + 2 * h, 2)
    FB = lambda slot, jj: a(BR[slot] + jj * 4, 4)
    def a_ops(t, half=False):
        slot = t % 8
        return [(([f"s_and_b32 s13, s{80+slot}, 0xc00", "s_add_u32 s13, s13, s9"] if half else [f"s_add_u32 s13, s{80+slot}, s9"]) if jj == 0 else [],
                 f"buffer_load_dwordx4 {FB(slot,jj)}, v{5+jj}, s[40:43], s13 offen {apol}", ("X", t),
                 ["s_add_u32 s9, s9, 0x2000"] if (jj == 3 and slot == 7) else []) for jj in range(4)]
    spins = []
    def check_flags(tag, reg, addr, off):
        A.e([f"v_cmp_ne_u64 vcc, s[98:99], v[{reg}:{reg+1}]", f"s_cbranch_vccnz {L('spin' + tag)}"])
        A.label(L("ok" + tag))
        spins.append((tag, reg, addr, off))

    Kf = lambda t: a(128 + t * 4, 4)
    Vf = lambda i, tp, h=None: a(160 + (i * 2 + tp) * 4, 4) if h is None else a(160 + (i * 2 + tp) * 4 + 2 * h, 2)
    Oacc = lambda i, mu: a((i * 2 + mu) * 16, 16)
    def k_reads(T): return [(f"ds_read_b128 {Kf(t)}, v{9+t} offset:{(T % 8) * 8192}", ("K", T, t)) for t in range(8)]
    def v_reads(T):
        return [(f"ds_read_b64_tr_b16 {Vf(i,tp,h)}, v{17+i} offset:{(T % 8) * 8192 + tp * 4096 + h * 2048}", ("V", T, i, tp))
                for i in range(4) for tp in range(2) for h in range(2)]
    def qk(T, c0):
        return [(mfma32(v(SB(T & 1, mu), 16), Kf(t), v(QF(mu, t), 4), (c0(mu) if t == 0 else None)), ("K", T, t)) for t in range(8) for mu in range(2)]
    def pv(T):
        return [(mfma32(Oacc(i, mu), Vf(i, tp), v(PB(T & 1, mu) + 4 * tp, 4), ("0" if (T == 0 and tp == 0) else None)), ("V", T, i, tp))
                for i in range(4) for tp in range(2) for mu in range(2)]
    A.e(vq.need(("V", 3))); A.e("s_barrier")
    dq.slack = 15
    for ins, tag in k_reads(0): A.e(ins); dq.issue(tag)
    for ins, tag in qk(0, lambda mu: "0"):
        A.e(dq.need(tag)); A.e(ins)
    for ins, tag in k_reads(1): A.e(ins); dq.issue(tag)
    A.e(["v_mov_b32 v232, 0", "v_mov_b32 v233, 0", "s_nop 7"])
    def rowmax(S, dst, tmp):
        out = [f"v_max3_f32 v{dst}, v{S}, v{S+1}, v{S+2}"]
        for k in range(3, 15, 2): out.append(f"v_max3_f32 v{dst}, v{dst}, v{S+k}, v{S+k+1}")
        out += [f"v_max_f32 v{dst}, v{dst}, v{S+15}", f"v_mov_b32 v{tmp}, v{dst}", "s_nop 1",
                f"v_permlane32_swap_b32 v{tmp}, v{dst}", f"v_max_f32 v{dst}, v{dst}, v{tmp}"]
        return out
    for mu in range(2):
        A.e(rowmax(SB(0, mu), VT + mu, VT + 2))
        A.e([f"v_sub_f32 v{NM(mu)+k}, 0, v{VT+mu}" for k in range(16)])
        A.e([f"v_sub_f32 v{SB(0,mu)+k}, v{SB(0,mu)+k}, v{VT+mu}" for k in range(16)])
    def sm(T):
        b = T & 1
        out = []
        def ex(n): return (f"v_exp_f32 v{EB + n % 8}, v{SB(b, n // 16) + n % 16}", 8)
        def fin(n):
            mu, r_ = n // 16, n % 16; e = EB + n % 8; o = []
            if r_ == 1: o.append((f"v_add_f32 v{VTS+mu}, v{EB + (n-1) % 8}, v{e}", 4))
            elif r_ > 1: o.append((f"v_add_f32 v{VTS+mu}, v{VTS+mu}, v{e}", 4))
            if r_ % 2 == 1: o.append((f"v_cvt_pk_bf16_f32 v{PB(b,mu) + r_//2}, v{EB + (n-1) % 8}, v{e}", 5))
            return o
        out.append(ex(0)); out.append(ex(1))
        for n in range(2, 32):
            out.append(ex(n)); out += fin(n - 2)
        out += fin(30) + fin(31)
        out += [(f"v_max_f32 v{VT}, v{VTS}, v{VTS+1}", 4), (f"v_cmp_nge_f32 vcc, s95, v{VT}", 4)]
        return out
    stamp(3)
    def flag_store(off_sreg):
        lab = L("fl%d" % A.nlabel); A.nlabel += 1
        A.e(["s_cmp_lg_u32 s3, 0", f"s_cbranch_scc1 {lab}", "s_mov_b64 exec, 1",
             f"buffer_store_dwordx2 v[250:251], v252, s[48:51], {off_sreg} offen {WT}", "s_mov_b64 exec, -1"])
        A.label(lab)
    rare_sites = []
    for T in range(17):
        mf = (qk(T + 1, lambda mu: v(NM(mu), 16)) if T + 1 <= 15 else []) + (pv(T - 1) if T >= 1 else [])
        nq = 16 if T + 1 <= 15 else 0
        va = ([(f"v_add_f32 v{VL}, v{VL}, v{VTS}", 4), (f"v_add_f32 v{VL+1}, v{VL+1}, v{VTS+1}", 4)] if T >= 1 else []) + (sm(T) if T <= 15 else [])
        rdv = v_reads(T - 1) if T >= 1 else []
        rdk = k_reads(T + 2) if T + 2 <= 15 else []
        vm = []
        if T % 2 == 0 and T <= 14:
            w = []
            if T == 2: w += vq.need(("H", 0))
            if T >= 6: w += vq.need(("K", (T + 2) // 2))
            if T >= 8: w += vq.need(("V", T // 2))
            A.e(w[-1:]); A.e(dq.drain()); A.e("s_barrier")
            if T == 2:
                if hwb:
                    lab = L("wb")
                    A.e(["s_cmp_lg_u32 s3, 0", f"s_cbranch_scc1 {lab}", "buffer_wbl2 sc1"]); A.label(lab)
                else: flag_store("s88")
            if T == 8 and hwb: flag_store("s88")
            if T <= 6: vm += kv_ops("K", T // 2 + 4)
            if 4 <= T <= 10: vm += kv_ops("V", T // 2 + 2)
            if T == 12: vm += w_ops(0) + w_ops(1)
            if T == 14:
                A.e(vq.need(("F", 0))); check_flags("H", 22, 24, "s91")
                vm += a_ops(0) + a_ops(1)
        if pfA and 3 <= T <= 10:
            pre = []
            if T == 3:
                pre = [f"s_mov_b32 s52, s{P_WO}", f"s_and_b32 s53, s{P_WO+1}, 0xffff", f"s_mov_b32 s54, {4096*2048:#x}",
                       "s_lshl_b32 s12, s2, 2", "s_add_u32 s12, s12, s3", "s_lshl_b32 s100, s12, 13", "s_mul_i32 s101, s12, 7168",
                       "v_and_b32 v2, 7, v0", "v_lshlrev_b32 v2, 7, v2", "v_add_u32 v3, 4096, v2"]
            k = T - 3
            if k < 7: vm += [(pre, f"buffer_load_dword v30, v{2 if k < 4 else 3}, s[44:47], s101 offen offset:{(k % 4) * 1024}", ("P", 0), [])]
            if pfA == 2: vm += [([], f"buffer_load_dword v30, v{2 if k < 4 else 3}, s[52:55], s100 offen offset:{(k % 4) * 1024}", ("P", 0), [])]
        if T == 9 and cpf >= 3: emit_vm(code_touch(31, "v31"), A.e)
        if T == 11: vm += [([], f"buffer_load_dwordx2 v[22:23], v24, s[48:51], s91 offen {WT}", ("F", 0), [])]
        if T == 13: vm += w_ops(2) + w_ops(3)
        if T == 15: vm += a_ops(2)
        if nq == 0:
            for ins, tag in rdv: A.e(ins); dq.issue(tag)
            rdv = []
        n = len(mf)
        vml = []
        for op in vm:
            vml += [(x, 4, None) for x in op[0]] + ([("s_nop 0", 4, None)] if op[0] else []) + [(op[1], 8, op[2])] + [(x, 4, None) for x in op[3]]
        tot = sum(c for _, c in va) + 4 * (len(rdv) + len(rdk)) + sum(c for _, c, _ in vml)
        done = 0
        for m, (ins, tag) in enumerate(mf):
            w = dq.need(tag, dsl); A.e(w); A.e(ins)
            used = 4 * len(w)
            budget = max(cap, -(-(tot - done) // (n - m)) + 3) if m < n - 1 else 10 ** 6
            target = (tot * (m + 1)) // n + 6
            rd = rdv if (m < nq and rdv) else (rdk if (m >= nq and rdk) else None)
            if rd:
                ri, rt = rd.pop(0); A.e(ri); dq.issue(rt); used += 4; done += 4
                if rd is rdv and len(rd) > (nq - 3 - m):
                    ri, rt = rd.pop(0); A.e(ri); dq.issue(rt); used += 4; done += 4
            elif vml:
                x, c, tg = vml.pop(0); A.e(x); used += c; done += c
                if tg: vq.issue(tg)
                while vml and c == 4 and used < 12:
                    x, c, tg = vml.pop(0); A.e(x); used += c; done += c
                    if tg: vq.issue(tg)
            while va and used + va[0][1] <= budget and (done < target or m == n - 1):
                x, c = va.pop(0); A.e(x); used += c; done += c
        assert not rdv
        for ins, tag in rdk: A.e(ins); dq.issue(tag)
        for x, c, tg in vml:
            A.e(x)
            if tg: vq.issue(tg)
        for x, c in va: A.e(x)
        if T <= 15:
            A.e([f"s_cbranch_vccnz {L('rs%d' % T)}"])
            A.label(L("rb%d" % T))
            rare_sites.append(T)
    stamp(4)
    A.e(["s_lshl_b32 s6, s15, 17", "s_lshl_b32 s12, s5, 12", "s_add_u32 s6, s6, s12", "s_add_u32 s7, s6, 0x40000"])
    for mu in range(2):
        A.e([f"v_mov_b32 v{VT}, v{VL+mu}", "s_nop 1", f"v_permlane32_swap_b32 v{VT}, v{VL+mu}", f"v_add_f32 v{VT}, v{VT}, v{VL+mu}",
             f"v_rcp_f32 v{VT+2+2*mu}, v{VT}", "s_nop 0", f"v_mov_b32 v{VT+3+2*mu}, v{VT+2+2*mu}"])
    A.e(["v_mov_b32 v29, v21", "s_barrier"])
    for t in range(4, 7):
        for op in w_ops(t): emit_vm(op, A.e, True)
    A.e(["v_mov_b32 v253, v24",
         "v_lshrrev_b32 v1, 4, v0", "v_lshlrev_b32 v30, 10, v1", "v_and_b32 v1, 1, v1",
         "v_bfe_u32 v31, v0, 2, 2", "v_lshl_add_u32 v30, v31, 8, v30", "v_lshl_or_b32 v31, v31, 1, v1",
         "v_and_b32 v1, 3, v0", "v_lshl_add_u32 v30, v1, 3, v30",
         "s_lshr_b32 s13, s3, 1", "s_lshl_b32 s12, s13, 17", "s_lshl_b32 s13, s13, 16", "s_add_u32 s13, s13, 0x8000"])
    for cb in range(8):
        A.e([f"v_xor_b32 v1, {cb}, v31", "v_lshl_add_u32 v1, v1, 5, v30", f"v_add_u32 v{9+cb}, s12, v1", f"v_add_u32 v{17+cb}, s13, v1"])
    def frd(t, cb):
        slot = t % 8
        reg = (9 if slot < 4 else 17) + cb; off = (slot % 4) * 8192
        return [(f"ds_read_b64_tr_b16 {FA(cb,0)}, v{reg} offset:{off}", ("A", t, cb)),
                (f"ds_read_b64_tr_b16 {FA(cb,1)}, v{reg} offset:{off+4096}", ("A", t, cb))]
    dq.slack = 8
    ostores = []
    cnt = 0
    for i in range(4):
        for mu in range(2):
            tmp = 96 + (cnt % 4) * 16; dst = 160 + cnt * 8; cnt += 1
            src = (i * 2 + mu) * 16
            A.e([f"v_accvgpr_read_b32 v{tmp+k}, a{src+k}" for k in range(16)])
            A.e([f"v_pk_mul_f32 v[{tmp+2*k}:{tmp+2*k+1}], v[{tmp+2*k}:{tmp+2*k+1}], v[{VT+2+2*mu}:{VT+3+2*mu}]" for k in range(8)])
            for s_ in range(2):
                for jj, j in enumerate((s_, s_ + 2)):
                    A.e([f"v_cvt_pk_bf16_f32 v{dst+4*s_+2*jj}, v{tmp+4*j}, v{tmp+4*j+1}", f"v_cvt_pk_bf16_f32 v{dst+4*s_+2*jj+1}, v{tmp+4*j+2}, v{tmp+4*j+3}"])
                ostores.append(([], f"buffer_store_dwordx4 {v(dst+4*s_,4)}, v29, s[60:63], s{6+mu} offen offset:{i*1024+s_*512} {WT}", ("O", 0), []))
            if cnt in (1, 2, 3, 4):
                for op in a_ops(2 + cnt): emit_vm(op, A.e)
            if cnt == 5:
                A.e(vq.need(("W", 3))); A.e("s_barrier")
                for cb in range(8):
                    for ins, tag in frd(0, cb): A.e(ins); dq.issue(tag)
    srd(A, 52, P_WS, G_SZ, G_BASE)
    srd(A, 64, P_X, 2048 * 2048)
    srd(A, 68, P_OUT, 2048 * 2048)
    A.e(["s_cmp_eq_u32 s72, 0",
         f"s_cselect_b32 s90, {N1S-1}, {N1Y-1}", f"s_cselect_b32 s95, {N1S-2}, {N1Y-2}", "s_mov_b32 s91, 0",
         "s_lshl_b32 s12, s73, 3", "s_add_u32 s12, s12, s74",
         "s_lshl_b32 s92, s12, 2", "s_add_u32 s92, s92, s3",
         "s_lshl_b32 s92, s92, 13",
         "s_lshl_b32 s93, s12, 7", f"s_add_u32 s101, s93, {FL_P}", "s_lshl_b32 s12, s3, 5", "s_add_u32 s93, s93, s12",
         "s_lshl_b32 s94, s73, 7", "s_and_b32 s12, s3, 1", "s_lshl_b32 s12, s12, 6", "s_add_u32 s94, s94, s12",
         "s_lshr_b32 s12, s3, 1", "s_lshl_b32 s12, s12, 5", "s_add_u32 s94, s94, s12",
         "s_lshl_b32 s94, s94, 11", "s_lshl_b32 s12, s74, 8", "s_add_u32 s94, s94, s12",
         "v_and_b32 v1, 15, v0", "v_lshlrev_b32 v1, 11, v1", "v_lshrrev_b32 v30, 4, v0",
         "v_lshl_add_u32 v25, v30, 3, v1", "v_add_u32 v26, 0x8000, v25",
         "v_lshl_add_u32 v27, v30, 4, v1", "v_add_u32 v28, 0x8000, v27",
         "s_lshl_b32 s12, s3, 14", "v_add_u32 v2, s12, v4", "s_xor_b32 s12, s12, 0x8000", "v_add_u32 v3, s12, v4",
         "s_lshl_b32 s12, s3, 13", "s_add_u32 s12, s12, 0x10000", "v_add_u32 v254, s12, v4", "s_xor_b32 s12, s12, 0x4000", "v_add_u32 v255, s12, v4"])
    stamp(5)
    XP = (2, 8, 12, 16, 20, 24, 28)
    def fstep(t, E, last=False, extra=(), czero=False, prev=None, afterbar=None, needbar=(), va=None, xp=None):
        if not last: vops = w_ops(t + 7) + a_ops(t + 7)
        else: vops = (w_ops(t + 7, t > 0) + a_ops(t + 7, t > 0)) if t + 7 < tail else []
        xq = xp or (XP if vops else vpos)
        sched = sorted(list(zip(vpos, vops)) + list(zip(xq, extra)), key=lambda x: x[0])
        assert len(extra) <= len(xq)
        isbar = (t % 2 == 1)
        doread = not (last and t == tail - 1)
        pend = []; vi = 0; post = []; pre = [x for _, op in sched for x in op[0]] if False else None
        pres = [list(op[0]) for _, op in sched]
        for m in range(32):
            cb, jj = m // 4, m % 4
            if m == 0: E(vq.need(("X", t)))
            if jj == 0: E(dq.need(("A", t, cb)))
            if prev: E(prev(cb, jj))
            E(mfma16(facc(cb, jj), FA(cb), FB(t % 8, jj), "0" if czero else None))
            if isbar and m == barpos:
                w = vq.need(("W", t + 2))
                for tg in needbar: w += vq.need(tg)
                E(w[-1:]); E(dq.drain()); E("s_barrier")
                if afterbar: afterbar()
            if jj == 3 and doread: pend += frd(t + 1, cb)
            if vi < len(sched) and m == sched[vi][0]:
                assert not pres[vi]
                op = sched[vi][1]
                E(op[1]); vq.issue(op[2]); post += op[3]; vi += 1
            else:
                used = 0
                if not (isbar and m < barpos) and pend:
                    ins, tag = pend.pop(0); E(ins); dq.issue(tag); used += 1
                k = next((k for k in range(vi, len(sched)) if pres[k]), None)
                if k is not None and any("m0" in x for x in pres[k]) and any(" lds" in sched[k2][1][1] for k2 in range(vi, k)): k = None
                while k is not None and pres[k] and used < 2: E(pres[k].pop(0)); used += 1
                if post and used < 2: E(post.pop(0)); used += 1
                cyc = 4 * used
                while va and cyc + va[0][1] <= vcap:
                    x, c = va.pop(0); E(x); cyc += c
        for ins, tag in pend: E(ins); dq.issue(tag)
        E(post)
    oflag = [([], f"buffer_load_dwordx2 v[30:31], v253, s[48:51], s97 offen {WT}", ("F", 0), [])]
    def loop_body(E, real):
        for t in range(8):
            fstep(t, E, extra=oflag if t == 2 else ())
            if t == 0 and real:
                A.e(["s_cmp_lg_u32 s95, 0", f"s_cbranch_scc1 {L('nosw')}"])
                check_flags("O", 30, 253, "s97")
                srd(A, 40, P_WS, SZ_OF, WS_OF); srd(A, 44, P_WO, 4096 * 2048)
                A.e(["s_mov_b32 s8, s75", "s_mov_b32 s9, s96", "s_mov_b32 s97, s101", "v_mov_b32 v253, 0"] + [f"v_mov_b32 v{5+jj}, v{242+jj}" for jj in range(4)])
                A.label(L("nosw"))
    XP8 = (1, 2, 4, 8, 12, 16, 20, 24)
    for t in range(8):
        k0 = sum(ost[:t]); ex = ostores[k0:k0 + ost[t]] if t < len(ost) else ()
        fstep(t, A.e, extra=ex, czero=(t == 0), xp=XP8 if t % 2 == 0 else (4, 5, 8, 12, 16, 20, 24, 28),
              needbar=[("O", 0)] if t == oflt else (), afterbar=(lambda: flag_store("s89")) if t == oflt else None)
    stamp(6)
    vq.rebase(8); dq.rebase(8)
    q_first = (list(vq.q), list(dq.q))
    loop_body(lambda x: None, False)
    vq.rebase(8); dq.rebase(8)
    q_steady = (list(vq.q), list(dq.q))
    assert not any(t[0] == "F" for t in q_steady[0]) and N1S >= 3 and N1Y >= 3
    def covers(entry, steady):
        def younger(q, tag): return len(q) - 1 - max(i for i, t in enumerate(q) if t == tag)
        for tag in set(entry):
            if tag[0] not in "WXA": continue
            if tag not in steady or younger(entry, tag) < younger(steady, tag): return False
        return True
    assert covers(q_first[0], q_steady[0]) and covers(q_first[1], q_steady[1]), (q_first, q_steady)
    A.raw(".p2align 6")
    A.label(L("floop"))
    loop_body(A.e, True)
    A.e(["s_sub_u32 s95, s95, 1", "s_sub_u32 s90, s90, 1", "s_cmp_lg_u32 s90, 0", f"s_cbranch_scc1 {L('floop')}",
         "s_cmp_lg_u32 s91, 0", f"s_cbranch_scc1 {L('flast')}"])
    stamp(3, 2)
    vq.rebase(8); dq.rebase(8)
    YS = lambda cb, jj: 160 + (cb * 2 + jj) * 4
    A.e("s_nop 2")
    for rnd in range(2):
        for cb in range(4 * rnd, 4 * rnd + 4):
            for jj in (2, 3): A.e(f"ds_write_b128 v254, {facc(cb,jj)} offset:{((cb%4)*2+jj-2)*1024}")
        if rnd == 1:
            for cb in range(4):
                for jj in range(2):
                    b = 32 + (cb * 4 + jj) * 4; y = YS(cb, jj)
                    A.e([f"v_pk_add_f32 v[{y+r_}:{y+r_+1}], v[{b+r_}:{b+r_+1}], v[{b+8+r_}:{b+9+r_}]" for r_ in (0, 2)])
        A.e(["s_waitcnt lgkmcnt(0)", "s_barrier"])
        for cb in range(4 * rnd, 4 * rnd + 4):
            for jj in (2, 3): A.e(f"ds_read_b128 {facc(cb,jj)}, v255 offset:{((cb%4)*2+jj-2)*1024}")
        if rnd == 0: A.e(["s_waitcnt lgkmcnt(0)", "s_barrier"])
    for cb in range(4, 8):
        for jj in range(2):
            b = 32 + (cb * 4 + jj) * 4; y = YS(cb, jj)
            A.e(f"s_waitcnt lgkmcnt({7 - ((cb-4)*2+jj)})")
            A.e([f"v_pk_add_f32 v[{y+r_}:{y+r_+1}], v[{b+r_}:{b+r_+1}], v[{b+8+r_}:{b+9+r_}]" for r_ in (0, 2)])
    A.e(["s_cmp_eq_u32 s72, 0", f"s_cbranch_scc1 {L('firstC')}", "s_add_u32 s6, s92, 4096"])
    for jj in range(2):
        for i in range(4):
            d = 224 + (i % 2) * 4 + jj * 8
            for h in range(2):
                y = YS(2 * i + h, jj)
                A.e([f"v_cvt_pk_bf16_f32 v{d+2*h}, v{y}, v{y+1}", f"v_cvt_pk_bf16_f32 v{d+2*h+1}, v{y+2}, v{y+3}"])
            A.e(f"buffer_store_dwordx4 {v(d,4)}, v4, s[52:55], {'s6' if jj else 's92'} offen offset:{i*1024} {WT}")
    A.label(L("firstC"))
    stamp(4, 2)
    vq.q, dq.q = list(q_steady[0]), list(q_steady[1])
    def pflag():
        lab = L("pf")
        A.e(["s_xor_b32 s6, s72, 1", "s_or_b32 s6, s6, s3", "s_cmp_lg_u32 s6, 0", f"s_cbranch_scc1 {lab}", "s_mov_b64 exec, 1",
             f"buffer_store_dwordx2 v[250:251], v252, s[48:51], s101 offen {WT}", "s_mov_b64 exec, -1"])
        A.label(lab)
    xpre = ["v_lshrrev_b32 v228, 4, v0", "v_and_b32 v229, 15, v0", "v_xor_b32 v229, v229, v228"]
    for i in range(4):
        xpre += [f"v_xor_b32 v{224+i}, {4*i}, v229", f"v_lshlrev_b32 v{224+i}, 4, v{224+i}", f"v_lshl_add_u32 v{224+i}, v228, 11, v{224+i}",
                 f"v_add_u32 v{224+i}, {7168*i}, v{224+i}"]
    xdma = [([f"s_add_u32 m0, s15, {4096*hh}"], f"buffer_load_dwordx4 v{224+i}, s[64:67], {'s100' if hh else 's94'} offen offset:{i*1024} lds", ("R", 0), [])
            for hh in range(2) for i in range(4)]
    A.e(xpre + ["s_lshl_b32 s15, s3, 13", "s_add_u32 s15, s15, 0x10000", "s_add_u32 s100, s94, 0x8000"])
    nopre = lambda op: ([],) + tuple(op[1:])
    mark = ("MARK", vq.total)
    for t in range(8):
        fstep(t, A.e, czero=(t == 0), afterbar=pflag if t == pft else None, needbar=[mark] if t == pft else (), extra={2: [xdma[0], nopre(xdma[1])], 3: [xdma[2]], 4: [xdma[3]], 5: [xdma[4]] + oflag, 6: [xdma[5], nopre(xdma[6])], 7: [xdma[7]]}.get(t, ()),
              xp=(1, 2) if t in (2, 6) else None)
    FW = vq.need(("F", 0))
    vq.rebase(8); dq.rebase(8)
    assert covers(vq.q, q_steady[0]) and covers(dq.q, q_steady[1])
    stamp(5, 2)
    A.e(["s_mov_b32 s91, 1", f"s_mov_b32 s90, {(64-SS-8-tail)//8}", "s_cmp_lg_u32 s72, 0", f"s_cbranch_scc1 {L('floop')}"])
    A.e(FW); check_flags("P", 30, 252, "s101")
    YP = lambda jj, i: 224 + (jj * 4 + i) * 4
    YA = lambda i: 80 + i * 4
    A.e("s_add_u32 s6, s92, 4096")
    for i in range(4):
        A.e([f"buffer_load_dwordx4 {v(YP(0,i),4)}, v4, s[52:55], s92 offen offset:{i*1024} {WT}",
             f"buffer_load_dwordx4 {a(YA(i),4)}, v4, s[52:55], s6 offen offset:{i*1024} {WT}"])
    A.e([f"s_mov_b32 s90, {(SS-8-tail)//8}", f"s_branch {L('floop')}"])
    A.label(L("flast"))
    stamp(6, 2)
    A.e(["s_mov_b32 s6, 0xbfb8aa3b", "s_mov_b32 s7, 0xbfb8aa3b", "s_cmp_lg_u32 s72, 0", f"s_cbranch_scc1 {L('flast2')}"])
    for cb in range(8):
        y = YS(cb, 0); pc = YP(0, cb // 2) + 2 * (cb % 2); T0 = 240 if cb % 2 == 0 else 242
        T0 = 240
        A.e([f"v_lshlrev_b32 v{T0}, 16, v{pc}", f"v_and_b32 v{T0+1}, 0xffff0000, v{pc}",
             f"v_lshlrev_b32 v{T0+2}, 16, v{pc+1}", f"v_and_b32 v{T0+3}, 0xffff0000, v{pc+1}"])
        A.e([f"v_pk_add_f32 v[{y+r_}:{y+r_+1}], v[{y+r_}:{y+r_+1}], v[{T0+r_}:{T0+r_+1}]" for r_ in (0, 2)])
        A.e([f"v_pk_mul_f32 v[{T0+r_}:{T0+r_+1}], v[{y+r_}:{y+r_+1}], s[6:7]" for r_ in (0, 2)])
        A.e([f"v_exp_f32 v{T0+r_}, v{T0+r_}" for r_ in range(4)])
        A.e([f"v_pk_add_f32 v[{T0+r_}:{T0+r_+1}], v[{T0+r_}:{T0+r_+1}], 1.0 op_sel_hi:[1,0]" for r_ in (0, 2)])
        A.e([f"v_rcp_f32 v{T0+r_}, v{T0+r_}" for r_ in range(4)])
        A.e([f"v_pk_mul_f32 v[{y+r_}:{y+r_+1}], v[{y+r_}:{y+r_+1}], v[{T0+r_}:{T0+r_+1}]" for r_ in (0, 2)])
    A.label(L("flast2"))
    vq.q, dq.q = list(q_steady[0]), list(q_steady[1])
    va = []
    for cb in range(8):
        y = YS(cb, 1); pc = YA(cb // 2) + 2 * (cb % 2); T0 = 224 + 4 * (cb % 2)
        va += [(f"v_accvgpr_read_b32 v{T0+1}, a{pc}", 4), (f"v_accvgpr_read_b32 v{T0+3}, a{pc+1}", 4),
               (f"v_lshlrev_b32 v{T0}, 16, v{T0+1}", 4), (f"v_and_b32 v{T0+1}, 0xffff0000, v{T0+1}", 4),
               (f"v_lshlrev_b32 v{T0+2}, 16, v{T0+3}", 4), (f"v_and_b32 v{T0+3}, 0xffff0000, v{T0+3}", 4)]
        va += [(f"v_add_f32 v{y+r_}, v{y+r_}, v{T0+r_}", 4) for r_ in range(4)]
        va += [(f"v_mul_f32 v{T0+r_}, s7, v{y+r_}", 4) for r_ in range(4)]
        va += [(f"v_exp_f32 v{T0+r_}, v{T0+r_}", 8) for r_ in range(4)]
        va += [(f"v_add_f32 v{T0+r_}, 1.0, v{T0+r_}", 4) for r_ in range(4)]
        va += [(f"v_rcp_f32 v{T0+r_}, v{T0+r_}", 8) for r_ in range(4)]
        va += [(f"v_mul_f32 v{y+r_}, v{y+r_}, v{T0+r_}", 4) for r_ in range(4)]
    fin = [(["v_mov_b32 v29, 0"], f"buffer_load_dwordx2 v[30:31], v29, s[48:51], s93 offen {WT}", ("G", 0), [])]
    for t in range(tail):
        fstep(t, A.e, last=True, extra={tail - 3: fin}.get(t, ()), va=va if t >= vat else None)
    A.c(f"left over fillers: {len(va)}")
    for x, c in va: A.e(x)
    stamp(7)
    A.e(["v_mov_b32 v22, s98", "v_mov_b32 v23, s99", f"s_add_u32 s6, s92, {G_SF}", f"s_add_u32 s7, s92, {G_SF+4096}",
         "s_cmp_lg_u32 s72, 0", f"s_cbranch_scc1 {L('xch')}"])
    s2loads = [f"buffer_load_dwordx4 {v(YP(jj,i),4)}, v4, s[52:55], s{6+jj} offen offset:{i*1024} {WT}" for jj in range(2) for i in range(4)]
    A.e(vq.need(("G", 0)))
    A.e(["v_cmp_ne_u64 vcc, s[98:99], v[30:31]", f"s_cbranch_vccnz {L('xch')}", "s_mov_b32 s91, 2"] + s2loads)
    A.label(L("xch"))
    A.e("s_nop 2")
    for cb in range(8):
        for jj in (2, 3):
            A.e(f"ds_write_b128 v2, {facc(cb,jj)} offset:{(cb*2+jj-2)*1024}")
    A.e(["s_waitcnt lgkmcnt(0)", "s_barrier"])
    for jj in (2, 3):
        for cb in range(8):
            A.e(f"ds_read_b128 {facc(cb,jj)}, v3 offset:{(cb*2+jj-2)*1024}")
    A.e(["s_cmp_eq_u32 s72, 0", f"s_cbranch_scc1 {L('sepi')}"])
    for jj in range(2):
        for i in range(4):
            dst = 160 + (jj * 4 + i) * 4
            for h in range(2):
                cb = 2 * i + h
                A.e(f"s_waitcnt lgkmcnt({15 - (jj*8+cb)})")
                b = 32 + (cb * 4 + jj) * 4
                A.e([f"v_pk_add_f32 v[{b+r_}:{b+r_+1}], v[{b+r_}:{b+r_+1}], v[{b+8+r_}:{b+9+r_}]" for r_ in (0, 2)])
                A.e([f"v_cvt_pk_bf16_f32 v{dst+2*h}, v{b}, v{b+1}", f"v_cvt_pk_bf16_f32 v{dst+2*h+1}, v{b+2}, v{b+3}"])
            A.e(f"buffer_store_dwordx4 {v(dst,4)}, v4, s[52:55], s{6+jj} offen offset:{i*1024} {WT}")
    A.e(["s_waitcnt vmcnt(0)", "s_mov_b64 exec, 1",
         f"buffer_store_dwordx2 v[22:23], v29, s[48:51], s93 offen {WT}", "s_mov_b64 exec, -1", f"s_branch {L('fin')}"])
    A.label(L("sepi"))
    A.e(["v_and_b32 v1, 15, v0", "v_lshrrev_b32 v5, 5, v0", "v_xor_b32 v5, v5, v1", "v_bfe_u32 v6, v0, 4, 1", "v_lshlrev_b32 v6, 3, v6",
         "v_lshl_add_u32 v6, v1, 8, v6", "s_lshl_b32 s15, s3, 13", "s_add_u32 s15, s15, 0x10000", "v_add_u32 v6, s15, v6"])
    XR = lambda cb, jj: 96 + (cb * 2 + jj) * 2
    for cb in range(8):
        A.e([f"v_xor_b32 v7, {2*cb}, v5", "v_lshl_add_u32 v7, v7, 4, v6",
             f"ds_read_b64 {a(XR(cb,0),2)}, v7", f"ds_read_b64 {a(XR(cb,1),2)}, v7 offset:4096"])
    for n in range(16):
        jj, cb = n // 8, n % 8
        b = 32 + (cb * 4 + jj) * 4; y = YS(cb, jj); xa = XR(cb, jj); T0 = 8 + 4 * (n % 2)
        if n == 0: A.e("s_waitcnt lgkmcnt(0)")
        A.e([f"v_accvgpr_read_b32 v{T0+1}, a{xa}", f"v_accvgpr_read_b32 v{T0+3}, a{xa+1}"])
        A.e([f"v_pk_add_f32 v[{b+r_}:{b+r_+1}], v[{b+r_}:{b+r_+1}], v[{b+8+r_}:{b+9+r_}]" for r_ in (0, 2)])
        A.e([f"v_lshlrev_b32 v{T0}, 16, v{T0+1}", f"v_and_b32 v{T0+1}, 0xffff0000, v{T0+1}",
             f"v_lshlrev_b32 v{T0+2}, 16, v{T0+3}", f"v_and_b32 v{T0+3}, 0xffff0000, v{T0+3}"])
        A.e([f"v_pk_fma_f32 v[{b+r_}:{b+r_+1}], v[{b+r_}:{b+r_+1}], v[{y+r_}:{y+r_+1}], v[{T0+r_}:{T0+r_+1}]" for r_ in (0, 2)])
    A.e(["s_cmp_eq_u32 s91, 2", f"s_cbranch_scc1 {L('have')}", SPINB])
    A.label(L("poll"))
    A.e([f"buffer_load_dwordx2 v[30:31], v29, s[48:51], s93 offen {WT}", "s_waitcnt vmcnt(0)",
         "s_sub_u32 s12, s12, 1", f"s_cbranch_scc1 {L('got')}",
         "v_cmp_ne_u64 vcc, s[98:99], v[30:31]", f"s_cbranch_vccz {L('got')}", "s_sleep 1", f"s_branch {L('poll')}"])
    A.label(L("got"))
    A.e(s2loads)
    A.label(L("have"))
    for jj in range(2):
        for i in range(4):
            o = YP(jj, i)
            A.e("s_waitcnt vmcnt(7)")
            for h in range(2):
                cb = 2 * i + h
                b = 32 + (cb * 4 + jj) * 4; y = YS(cb, jj); T0 = 8 + 4 * h
                A.e([f"v_lshlrev_b32 v{T0}, 16, v{o+2*h}", f"v_and_b32 v{T0+1}, 0xffff0000, v{o+2*h}",
                     f"v_lshlrev_b32 v{T0+2}, 16, v{o+2*h+1}", f"v_and_b32 v{T0+3}, 0xffff0000, v{o+2*h+1}"])
                A.e([f"v_pk_fma_f32 v[{b+r_}:{b+r_+1}], v[{T0+r_}:{T0+r_+1}], v[{y+r_}:{y+r_+1}], v[{b+r_}:{b+r_+1}]" for r_ in (0, 2)])
                A.e([f"v_cvt_pk_bf16_f32 v{o+2*h}, v{b}, v{b+1}", f"v_cvt_pk_bf16_f32 v{o+2*h+1}, v{b+2}, v{b+3}"])
            A.e(["s_nop 1", f"v_permlane32_swap_b32 v{o}, v{o+2}", f"v_permlane32_swap_b32 v{o+1}, v{o+3}", "s_nop 0",
                 f"v_permlane16_swap_b32 v{o}, v{o+2}", f"v_permlane16_swap_b32 v{o+1}, v{o+3}",
                 f"buffer_store_dwordx4 {v(o,4)}, v{27+jj}, s[68:71], s94 offen offset:{i*64}"])
    A.label(L("fin"))
    if stamps:
        srd(A, 40, P_WS, 0x100000, WS_STAMP)
        A.e(["s_waitcnt vmcnt(0)", "s_memtime s[76:77]", "s_memrealtime s[78:79]", "s_waitcnt lgkmcnt(0)",
             "v_mov_b32 v8, s76", "v_mov_b32 v9, s78", "v_mov_b32 v10, s72", "s_getreg_b32 s10, hwreg(HW_REG_XCC_ID)", "v_mov_b32 v11, s10",
             "s_lshl_b32 s10, s2, 2", "s_add_u32 s10, s10, s3", "s_lshl_b32 s10, s10, 7", "v_mov_b32 v1, s10", "s_mov_b64 exec, 1"])
        for k in range(4): A.e(f"buffer_store_dwordx4 a[{240+4*k}:{243+4*k}], v1, s[40:43], 0 offen offset:{16*k}")
        A.e("buffer_store_dwordx4 v[8:11], v1, s[40:43], 0 offen offset:64")
    if dbgst:
        srd(A, 40, P_DBG, 256)
        A.e(["s_and_b32 s10, s2, 0xfb", "s_or_b32 s10, s10, s3", "s_cmp_lg_u32 s10, 0", f"s_cbranch_scc1 {L('end')}", "s_mov_b64 exec, 1",
             "v_accvgpr_read_b32 v12, a241", "s_lshl_b32 s10, s2, 3", "v_mov_b32 v1, s10"])
        for k in range(1, 8): A.e([f"v_accvgpr_read_b32 v13, a{241+2*k}", f"v_sub_u32 v{15+k}, v13, v12"])
        A.e(["v_sub_u32 v23, v9, v12", "buffer_store_dwordx4 v[16:19], v1, s[40:43], 0 offen", "buffer_store_dwordx4 v[20:23], v1, s[40:43], 0 offen offset:16"])
    A.label(L("end"))
    A.e("s_endpgm")
    for tag, reg, addr, off in spins:
        A.label(L("spin" + tag))
        A.e(SPINB)
        A.label(L("spinl" + tag))
        A.e(["s_sleep 2", f"buffer_load_dwordx2 v[{reg}:{reg+1}], v{addr}, s[48:51], {off} offen {WT}", "s_waitcnt vmcnt(0)",
             "s_sub_u32 s12, s12, 1", f"s_cbranch_scc1 {L('ok' + tag)}",
             f"v_cmp_ne_u64 vcc, s[98:99], v[{reg}:{reg+1}]", f"s_cbranch_vccnz {L('spinl' + tag)}", f"s_branch {L('ok' + tag)}"])
    for T in rare_sites:
        A.label(L("rs%d" % T))
        A.e([f"s_call_b64 s[6:7], {L('rare%d' % (T & 1))}", f"s_branch {L('rb%d' % T)}"])
    for b in range(2):
        A.label(L("rare%d" % b))
        A.e(["s_nop 15", "s_nop 15"])
        for mu in range(2):
            S = SB(b, mu); S2 = SB(b ^ 1, mu)
            A.e(rowmax(S, VT, VT + 2))
            A.e([f"v_max_f32 v{VT}, 0, v{VT}", f"v_exp_f32 v{VT+1}, -v{VT}"])
            A.e([f"v_sub_f32 v{NM(mu)+k}, v{NM(mu)+k}, v{VT}" for k in range(16)])
            A.e([f"v_sub_f32 v{S+k}, v{S+k}, v{VT}" for k in range(16)])
            A.e([f"v_sub_f32 v{S2+k}, v{S2+k}, v{VT}" for k in range(16)])
            A.e(f"v_mul_f32 v{VL+mu}, v{VL+mu}, v{VT+1}")
            for i in range(4):
                o = (i * 2 + mu) * 16
                for k in range(16):
                    A.e([f"v_accvgpr_read_b32 v{VT+2}, a{o+k}", f"v_mul_f32 v{VT+2}, v{VT+2}, v{VT+1}", f"v_accvgpr_write_b32 a{o+k}, v{VT+2}"])
            for k in range(0, 16, 2):
                A.e([f"v_exp_f32 v{EB}, v{S+k}", f"v_exp_f32 v{EB+1}, v{S+k+1}", "s_nop 0",
                     f"v_cvt_pk_bf16_f32 v{PB(b,mu)+k//2}, v{EB}, v{EB+1}", f"v_add_f32 v{EB}, v{EB}, v{EB+1}",
                     f"v_mov_b32 v{VTS+mu}, v{EB}" if k == 0 else f"v_add_f32 v{VTS+mu}, v{VTS+mu}, v{EB}"])
        A.e(["s_nop 3", "s_setpc_b64 s[6:7]"])
    A.label(f"{name}_codeend")
    return (name, 512, 256, "(256,1,1)", "(256,1,1)", 163840)
```

```python
from common import *
import struct, math
QSCALE = struct.unpack("<I", struct.pack("<f", math.log2(math.e) / math.sqrt(128.0)))[0]
THR = 0x49800000
FL_L, FL_H, FL_O, FL_P, FL_SZ = 0x4000, 0x6000, 0x8000, 0xA000, 0xE000
G_BASE, G_SF, G_PF, G_SZ = 0x2200000, 0x600000, 0xA00000, 0x1200000
SS_UNUSED = 28
N1S, N1Y = 4, 3
WT = "sc0 sc1"
SPINB = "s_mov_b32 s12, 0x40000"

def kf(A, name="kf_kernel", stamps=0, thr=THR, vpos=(6, 10, 14, 18, 22, 26, 29, 30), barpos=3, apol=WT, pfT=0, pfG=0, cpf=3, ln=1, dbgst=0, pst=0, psleep=1, hwb=0, cap=24, dsl=6, vcap=8, ost=None, oflt=3, rotm=(1, 2), xpol=None, gdbg=0, pfs=7, pfA=2, rot0=1, vat=None, pft=3, tail=8, kmap=1, SS=None, hfT=2, barm=47, gsl=10, sp1=(2, 44), sp2=(54, 88), vmod=2, lead=0, nf=8, oft=14, oin=8, hdf=0):
    L = lambda s: f"{name}_{s}"
    if SS is None: SS = 32 if tail == 8 else 28
    if vat is None: vat = tail - 7
    if ost is None: ost = (8, 8)[:2 - oin // 8]
    vq = Q("vmcnt", 63); dq = Q("lgkmcnt", 15, gsl)
    def stamp(i, pro=0):
        if not stamps: return
        if pst == 1:
            if pro == 0 and i == 1: i = 7
            elif not (pro == 1 or i == 0): return
        elif pst == 2:
            if pro == 0 and i == 5: i = 1
            elif pro == 0 and i == 6: i = 2
            elif not (pro == 2 or (pro == 0 and i in (0, 7))): return
        elif pst == 3:
            if pro or i != 1: return
            i = 0
        elif pro: return
        A.e(["s_memtime s[76:77]", "s_memrealtime s[78:79]", "s_waitcnt lgkmcnt(0)", "v_mov_b32 v30, s76", f"v_accvgpr_write_b32 a{240+2*i}, v30",
             "v_mov_b32 v30, s78", f"v_accvgpr_write_b32 a{241+2*i}, v30"]); dq.drain()
    A.raw(kernel_head(name))
    A.e(["s_cmp_ge_u32 s2, 256", f"s_cbranch_scc1 {L('end')}"])
    cpn = [0]
    def code_touch(vr, dst, raw=False):
        lab = L("pc%d" % cpn[0]); cpn[0] += 1
        pre = ["s_getpc_b64 s[76:77]", lab + ":", f"s_sub_u32 s76, s76, {lab}-{name}", "s_subb_u32 s77, s77, 0",
               "s_lshr_b32 s78, s2, 3", "s_lshl_b32 s78, s78, 11"] + ([f"v_and_b32 v{vr}, 0xc0, v0", f"v_lshlrev_b32 v{vr+1}, 3, v{vr}"] if raw else ["s_lshl_b32 s79, s3, 9", "s_add_u32 s78, s78, s79"]) + [
               f"v_and_b32 v{vr}, 7, v0", f"v_mul_u32_u24 v{vr}, 0x4080, v{vr}", f"v_and_b32 v{vr}, 0x10180, v{vr}"] + ([f"v_add_u32 v{vr}, v{vr+1}, v{vr}"] if raw else []) + [
               f"v_add_u32 v{vr}, s78, v{vr}", f"v_min_u32 v{vr}, {name}_codeend-{name}-4, v{vr}"]
        return (pre, f"global_load_dword {dst}, v{vr}, s[76:77]", ("C", 0), [])
    stamp(0)
    A.e(LOADARGS)
    if cpf:
        op = code_touch(30, "a238", raw=True); A.e(op[0]); A.e(op[1])
    A.e(["v_lshrrev_b32 v1, 6, v0", "v_and_b32 v0, 63, v0", "s_nop 0", "v_readfirstlane_b32 s3, v1",
         "s_and_b32 s10, s2, 7", "s_lshr_b32 s11, s2, 3", "s_and_b32 s4, s11, 7", "s_lshr_b32 s11, s11, 3",
         "s_lshl_b32 s5, s10, 2", "s_add_u32 s5, s5, s11",
         f"s_mul_i32 s14, s11, {rotm[1]}", f"s_mul_i32 s12, s4, {rotm[0]}", "s_add_u32 s14, s14, s12"])
    if ln:
        A.e(["v_and_b32 v40, 7, v0", "v_lshrrev_b32 v41, 3, v0", "s_lshl_b32 s12, s3, 5", "v_add_u32 v41, s12, v41",
             "v_lshlrev_b32 v42, 11, v40", "v_lshl_add_u32 v42, v41, 4, v42",
             "s_lshl_b32 s12, s4, 5", "s_add_u32 s91, s12, s5", "s_lshl_b32 s12, s91, 14",
             "s_waitcnt lgkmcnt(0)"])
        srd(A, 64, P_X, 2048 * 2048)
        for i in range(4):
            A.e(f"buffer_load_dwordx4 v[{48+4*i}:{51+4*i}], v42, s[64:67], s12 offen offset:{128*i}"); vq.issue(("L", 0))
        srd(A, 60, P_DBG, 256)
        A.e(["v_mov_b32 v47, 0", "s_or_b32 s12, s2, s3", "s_cmp_lg_u32 s12, 0", f"s_cbranch_scc1 {L('nn')}",
             "s_memrealtime s[12:13]", "s_waitcnt lgkmcnt(0)", "s_or_b32 s12, s12, 1", "v_mov_b32 v38, s12", "v_mov_b32 v39, s13", "s_mov_b64 exec, 1",
             f"buffer_store_dwordx2 v[38:39], v47, s[60:63], 0 offen {WT}", "s_mov_b64 exec, -1"])
        A.label(L("nn"))
    A.e([
         "v_lshrrev_b32 v30, 4, v0", "v_and_b32 v31, 15, v0",
         "s_lshr_b32 s12, s3, 1", "s_lshl_b32 s12, s12, 1",
         "v_lshlrev_b32 v1, 2, v30", "v_or_b32 v1, s12, v1", "v_xor_b32 v31, v31, v1",
         "s_lshl_b32 s12, s3, 2", "v_add_u32 v30, s12, v30",
         "v_lshlrev_b32 v2, 13, v30", "s_lshl_b32 s12, s5, 8", "v_lshl_add_u32 v2, v31, 4, v2", "v_add_u32 v2, s12, v2",
         "v_lshrrev_b32 v1, 1, v31", "v_min_u32 v1, 6, v1", "s_and_b32 s13, s5, 1", "v_add_u32 v1, s13, v1",
         "v_cmp_eq_u32 vcc, 7, v1", "v_and_b32 v31, 1, v31", "s_nop 0", "v_cndmask_b32 v1, v1, 0, vcc",
         "v_lshl_or_b32 v1, v1, 1, v31",
         "v_mul_u32_u24 v3, 7168, v30", "s_mul_i32 s12, s5, 224", "v_add_u32 v3, s12, v3", "v_lshl_add_u32 v3, v1, 4, v3",
         "s_lshl_b32 s12, s4, 4", "s_lshl_b32 s13, s3, 2", "s_add_u32 s15, s12, s13",
         "s_lshl_b32 s12, s15, 15", "v_lshlrev_b32 v4, 4, v0", "v_add_u32 v5, s12, v4",
         "v_add_u32 v6, 0x8000, v5", "v_add_u32 v7, 0x10000, v5", "v_add_u32 v8, 0x18000, v5",
         "s_mul_i32 s10, s3, 3072", "s_add_u32 s10, s10, 65536", "s_mov_b32 s11, 0", "s_mov_b32 s75, 0",
         "s_waitcnt lgkmcnt(0)"])
    srd(A, 44, P_WQ, 1024 * 4096 * 2)
    srd(A, 48, P_WG, 1024 * 3584 * 2 + 1024, -1024)
    srd(A, 52, P_WU, 1024 * 3584 * 2 + 2048, -2048)
    srd(A, 40, P_WS, SZ_XF, WS_XF)

    def acc(blk, j):
        if blk < 14: return v(32 + (blk * 4 + j) * 4, 4)
        return a(((blk - 14) * 4 + j) * 4, 4)
    Afr = lambda blk, h=None: a(192 + (blk % 11) * 4, 4) if h is None else a(192 + (blk % 11) * 4 + 2 * h, 2)
    Bfr = lambda slot, j: a(128 + slot * 16 + j * 4, 4)
    if lead:
        NEXTK = ["s_sub_u32 s12, s11, s14", "s_and_b32 s12, s12, 7", f"s_cmp_lt_u32 s11, {32-lead}", "s_cselect_b32 s12, s12, 1",
                 f"s_add_u32 s13, s11, {lead}", "s_cmp_eq_u32 s12, 0", "s_cselect_b32 s12, s13, s75", "s_subb_u32 s75, s75, -1",
                 f"s_sub_u32 s13, s75, {lead}", "s_cselect_b32 s6, 1, 0", "s_sub_u32 s13, s13, s14", "s_and_b32 s13, s13, 7", "s_or_b32 s13, s13, s6",
                 "s_cmp_eq_u32 s13, 0", "s_addc_u32 s75, s75, 0",
                 "s_add_u32 s11, s11, 1", "s_lshl_b32 s6, s12, 18", "s_mul_i32 s7, s12, 229376", "s_lshl_b32 s8, s12, 10"]
    else:
        NEXTK = ([] if rot0 == 7 else ["s_cmp_lt_u32 s11, 8", f"s_cselect_b32 s13, {rot0}, 7", "s_and_b32 s13, s13, s14"]) + ["s_add_u32 s12, s11, s14" if rot0 == 7 else "s_add_u32 s12, s11, s13", "s_and_b32 s12, s12, 7", "s_and_b32 s13, s11, 0x18", "s_or_b32 s12, s12, s13",
                 "s_add_u32 s11, s11, 1", "s_lshl_b32 s6, s12, 18", "s_mul_i32 s7, s12, 229376", "s_lshl_b32 s8, s12, 10"]
    def d_ops(p, h):
        base = (p % 4) * 24576 + h * 12288
        return [((NEXTK if h == 0 else []) + [f"s_add_u32 m0, s10, {base}"], "buffer_load_dwordx4 v2, s[44:47], s6 offen lds", ("D", p, h), ["s_add_u32 s6, s6, 131072"] if h == 0 else []),
                ([], "buffer_load_dwordx4 v3, s[48:51], s7 offen offset:1024 lds", ("D", p, h), []),
                ([], "buffer_load_dwordx4 v3, s[52:55], s7 offen offset:2048 lds", ("D", p, h), ["s_add_u32 s7, s7, 114688"] if h == 0 else [])]
    def x_ops(p):
        return [([], f"buffer_load_dwordx4 {Bfr(p % 4, j)}, v{5+j}, s[40:43], s8 offen {apol if xpol is None else xpol}", ("X", p), []) for j in range(4)]
    def rd_ops(t, blk):
        part, cb = (1 + (blk & 1), blk >> 1) if blk < 14 else (0, blk - 14)
        slot = t % 4
        reg = (9 if slot < 2 else 17) + cb
        off = (slot % 2) * 24576 + part * 1024
        return [(f"ds_read_b64_tr_b16 {Afr(blk,0)}, v{reg} offset:{off}", ("A", t, blk)),
                (f"ds_read_b64_tr_b16 {Afr(blk,1)}, v{reg} offset:{off+3072}", ("A", t, blk))]
    def emit_vm(op, E, nop=False):
        pre, ins, tag, post = op
        E(pre)
        if pre and nop: E("s_nop 0")
        E(ins); vq.issue(tag); E(post)
    def kv_ops(kind, P):
        reg = 0 if kind == "K" else 65536
        sr = "s[64:67]" if kind == "K" else "s[68:71]"
        ops = []
        for i in range(4):
            ops.append(([f"s_add_u32 m0, s92, {reg + (P % 4) * 16384}", f"s_add_u32 s94, s93, {P * 16384}"] if i == 0 else [],
                        f"buffer_load_dwordx4 v{25+i if kind == 'K' else 29}, {sr}, s94 offen offset:{i*1024} lds", (kind, P), []))
        return ops
    def pf_op(k):
        return [([], f"buffer_load_dword a239, v31, {'s[72:75], s96' if k == 0 else 's[80:83], s97'} offen", ("P", 0), [f"s_add_u32 s{96+k}, s{96+k}, 1024"])]
    for op in d_ops(0, 0) + d_ops(0, 1): emit_vm(op, A.e, True)
    A.e("s_mov_b32 s88, s8")
    srd(A, 84, P_WS, FL_SZ, WS_FLAG)
    A.e(["s_lshr_b32 s12, s91, 1", "s_lshl_b32 s12, s12, 15", "s_and_b32 s13, s91, 1", "s_lshl_b32 s13, s13, 7", "s_add_u32 s90, s12, s13",
         "v_lshlrev_b32 v43, 8, v41", "v_lshl_add_u32 v43, v40, 4, v43",
         "v_lshlrev_b32 v44, 5, v40", "s_lshl_b32 s12, s3, 3", "v_add_u32 v45, s12, v44",
         "s_lshl_b32 s91, s91, 5", f"s_add_u32 s91, s91, {FL_L}"])
    A.e([f"v_mov_b32 v{i}, 0" for i in range(132, 144)])
    A.e(f"buffer_load_dwordx2 v[128:129], v47, s[60:63], 0 offen {WT}"); vq.issue(("N", 0))
    A.e([mfma32(a(i, 16), v(132, 4), v(132, 4), "0") for i in range(0, 128, 16)] + [mfma32(v(i, 16), v(132, 4), v(132, 4), "0") for i in range(144, 256, 16)])
    stamp(1, 1)
    A.e(vq.need(("L", 0)))
    stamp(2, 1)
    X0 = 64
    for i in range(16):
        A.e([f"v_lshlrev_b32 v{X0+2*i}, 16, v{48+i}", f"v_and_b32 v{X0+1+2*i}, 0xffff0000, v{48+i}"])
    def lanesum(src):
        A.e(["s_nop 1", f"v_add_f32_dpp v{src}, v{src}, v{src} row_ror:8 row_mask:0xf bank_mask:0xf",
             f"v_mov_b32 v46, v{src}", "s_nop 1", f"v_permlane16_swap_b32 v46, v{src}", f"v_add_f32 v{src}, v46, v{src}",
             f"v_mov_b32 v46, v{src}", "s_nop 1", f"v_permlane32_swap_b32 v46, v{src}", f"v_add_f32 v{src}, v46, v{src}"])
    A.e([f"v_pk_add_f32 v[32:33], v[{X0}:{X0+1}], v[{X0+2}:{X0+3}]", f"v_pk_add_f32 v[34:35], v[{X0+4}:{X0+5}], v[{X0+6}:{X0+7}]"])
    A.e([f"v_pk_add_f32 v[{32+2*(i%2)}:{33+2*(i%2)}], v[{32+2*(i%2)}:{33+2*(i%2)}], v[{X0+2*i}:{X0+2*i+1}]" for i in range(4, 16)])
    A.e(["v_pk_add_f32 v[32:33], v[32:33], v[34:35]", "v_add_f32 v32, v32, v33"])
    lanesum(32)
    A.e(["v_mul_f32 v32, 0x3b800000, v32", "v_mov_b32 v34, v32", "v_mov_b32 v35, v32"])
    for i in range(16):
        A.e(f"v_pk_add_f32 v[{96+2*i}:{97+2*i}], v[{X0+2*i}:{X0+2*i+1}], v[34:35] neg_lo:[0,1] neg_hi:[0,1]")
    A.e(["v_pk_mul_f32 v[34:35], v[96:97], v[96:97]", "v_pk_mul_f32 v[36:37], v[98:99], v[98:99]"])
    for i in range(2, 16):
        r_ = 34 + 2 * (i % 2)
        A.e(f"v_pk_fma_f32 v[{r_}:{r_+1}], v[{96+2*i}:{97+2*i}], v[{96+2*i}:{97+2*i}], v[{r_}:{r_+1}]")
    A.e(["v_pk_add_f32 v[34:35], v[34:35], v[36:37]", "v_add_f32 v33, v34, v35"])
    lanesum(33)
    A.e(["ds_write_b64 v45, v[32:33]", "s_waitcnt lgkmcnt(0)", "s_barrier",
         "ds_read_b128 v[96:99], v44", "ds_read_b128 v[100:103], v44 offset:16", "s_waitcnt lgkmcnt(0)",
         "v_add_f32 v32, v96, v98", "v_add_f32 v33, v100, v102", "v_add_f32 v34, v97, v99", "v_add_f32 v35, v101, v103",
         "v_add_f32 v32, v32, v33", "v_add_f32 v34, v34, v35", "v_mul_f32 v32, 0.25, v32" if False else "v_mul_f32 v32, 0x3e800000, v32",
         "v_sub_f32 v96, v96, v32", "v_sub_f32 v98, v98, v32", "v_sub_f32 v100, v100, v32", "v_sub_f32 v102, v102, v32",
         "v_mul_f32 v35, v96, v96", "v_fmac_f32 v35, v98, v98", "v_fmac_f32 v35, v100, v100", "v_fmac_f32 v35, v102, v102",
         "v_mul_f32 v34, 0x3a800000, v34", "v_fmac_f32 v34, 0x3e800000, v35"])
    A.e(["v_cvt_pk_bf16_f32 v34, v34, v32", "v_and_b32 v32, 0xffff0000, v34", "v_lshlrev_b32 v34, 16, v34",
         "v_add_f32 v34, 0x3727c5ac, v34", "v_cvt_pk_bf16_f32 v34, v34, v34", "v_lshlrev_b32 v34, 16, v34",
         "v_sqrt_f32 v34, v34", "v_mov_b32 v33, v32", "v_cvt_pk_bf16_f32 v34, v34, v34", "v_lshlrev_b32 v34, 16, v34",
         "v_rcp_f32 v34, v34", "s_nop 0", "v_mov_b32 v35, v34"])
    for q4 in range(4):
        for i in range(4 * q4, 4 * q4 + 4):
            x = X0 + 2 * i
            A.e([f"v_pk_add_f32 v[{x}:{x+1}], v[{x}:{x+1}], v[32:33] neg_lo:[0,1] neg_hi:[0,1]",
                 f"v_cvt_pk_bf16_f32 v{48+i}, v{x}, v{x+1}",
                 f"v_lshlrev_b32 v{x}, 16, v{48+i}", f"v_and_b32 v{x+1}, 0xffff0000, v{48+i}",
                 f"v_pk_mul_f32 v[{x}:{x+1}], v[{x}:{x+1}], v[34:35]",
                 f"v_cvt_pk_bf16_f32 v{48+i}, v{x}, v{x+1}"])
        A.e(f"buffer_store_dwordx4 v[{48+4*q4}:{51+4*q4}], v43, s[40:43], s90 offen offset:{2048*(q4%2)} {WT}"); vq.issue(("S", 0))
        if q4 == 1: A.e("s_add_u32 s90, s90, 4096")
    stamp(3, 1)
    A.e(vq.need(("N", 0)))
    A.e(SPINB)
    A.label(L("pollN"))
    A.e(["v_readfirstlane_b32 s98, v128", "v_readfirstlane_b32 s99, v129", "s_cmp_lg_u32 s98, 0", f"s_cbranch_scc1 {L('gotN')}",
         "s_sub_u32 s12, s12, 1", f"s_cbranch_scc1 {L('gotN')}",
         f"buffer_load_dwordx2 v[128:129], v47, s[60:63], 0 offen {WT}", "s_waitcnt vmcnt(0)", f"s_branch {L('pollN')}"])
    A.label(L("gotN"))
    A.e([mfma32(v(i, 16), v(132, 4), v(132, 4), "0") for i in range(64, 128, 16)])
    A.e(vq.drain()); A.e("s_barrier")
    stamp(4, 1)
    A.e(["s_cmp_lg_u32 s3, 0", f"s_cbranch_scc1 {L('nf')}", "s_mov_b64 exec, 1",
         f"buffer_store_dwordx2 v[128:129], v47, s[84:87], s91 offen {WT}", "s_mov_b64 exec, -1"])
    A.label(L("nf"))
    for op in d_ops(1, 0) + d_ops(1, 1): emit_vm(op, A.e, True)
    A.e("s_mov_b32 s89, s8")
    for op in d_ops(2, 0) + d_ops(2, 1): emit_vm(op, A.e, True)
    A.e("s_mov_b32 s90, s8")
    A.e([mfma32(v(i, 16), v(132, 4), v(132, 4), "0") for i in (32, 48)])
    A.e(["v_lshrrev_b32 v1, 4, v0", "v_mul_u32_u24 v30, 6144, v1", "v_and_b32 v1, 1, v1",
         "v_bfe_u32 v31, v0, 2, 2", "v_lshl_add_u32 v30, v31, 8, v30", "v_lshl_or_b32 v31, v31, 1, v1",
         "v_and_b32 v1, 3, v0", "v_lshl_add_u32 v30, v1, 3, v30", "v_add_u32 v30, 0x10000, v30"])
    for cb in range(8):
        A.e([f"v_xor_b32 v1, {cb}, v31", f"v_lshl_add_u32 v{9+cb}, v1, 5, v30", f"v_add_u32 v{17+cb}, 49152, v{9+cb}"])
    for blk in range(11):
        for ins, tg in rd_ops(0, blk): A.e(ins); dq.issue(tg)
    srd(A, 64, P_K, 4 * 2048 * 256)
    srd(A, 68, P_V, 4 * 2048 * 256)
    srd(A, 56, P_WS, SZ_HF, WS_HF)
    srd(A, 60, P_WS, SZ_OF, WS_OF)
    A.e(["v_lshrrev_b32 v30, 4, v0", "v_and_b32 v31, 15, v0", "v_xor_b32 v1, v31, v30"])
    for i in range(4):
        A.e([f"v_xor_b32 v{25+i}, {4*i}, v1", f"v_lshlrev_b32 v{25+i}, 4, v{25+i}", f"v_lshl_add_u32 v{25+i}, v30, 8, v{25+i}"])
    A.e(["v_lshlrev_b32 v1, 2, v30", "v_xor_b32 v1, v31, v1", "v_lshlrev_b32 v1, 4, v1", "v_lshl_add_u32 v29, v30, 8, v1",
         "s_lshr_b32 s12, s5, 3", "s_lshl_b32 s12, s12, 19", "s_lshl_b32 s92, s3, 12",
         "s_add_u32 s93, s12, s92", f"s_add_u32 s93, s93, {1536*256}",
         "s_mov_b32 s9, 7"])
    if pfG in (1, 2):
        srd(A, 72, P_WO, 4096 * 2048); srd(A, 80, P_WD, 3584 * 2048)
        A.e(["s_lshl_b32 s12, s2, 2", "s_add_u32 s12, s12, s3", "s_lshl_b32 s96, s12, 13", "s_mul_i32 s97, s12, 7168",
             f"v_and_b32 v31, {7 if pfs == 7 else 3}, v0", f"v_lshlrev_b32 v31, {pfs}, v31"])
    stamp(5, 1)
    A.e(["s_cmp_lg_u32 s3, 0", f"s_cbranch_scc1 {L('gotL')}",
         "v_and_b32 v1, 31, v0", "v_lshlrev_b32 v1, 5, v1", "s_lshl_b32 s95, s4, 10", f"s_add_u32 s95, s95, {FL_L}", SPINB])
    A.label(L("pollL"))
    A.e([f"buffer_load_dwordx2 v[128:129], v1, s[84:87], s95 offen {WT}", "s_waitcnt vmcnt(0)",
         "s_sub_u32 s12, s12, 1", f"s_cbranch_scc1 {L('gotL')}",
         "v_cmp_ne_u64 vcc, s[98:99], v[128:129]", f"s_cbranch_vccz {L('gotL')}", f"s_sleep {psleep}", f"s_branch {L('pollL')}"])
    A.label(L("gotL"))
    A.e("s_barrier")
    stamp(6, 1)
    for p_, sr in ((0, "s88"), (1, "s89"), (2, "s90")):
        for op in x_ops(p_): A.e(op[1].replace("s8 offen", f"{sr} offen")); vq.issue(op[2])
    for op in d_ops(3, 0): emit_vm(op, A.e, True)
    A.e([f"v_mov_b32 v{i}, 0" for i in (128, 129, 130, 131)])
    A.e(vq.need(("X", 2)))
    stamp(1)

    BARM = barm
    def step(t, E, first_ops=None, second_ops=None, last=False):
        v1 = d_ops(t + 3, 1) + x_ops(t + 3) if first_ops is None else first_ops
        v2_ = d_ops(t + 4, 0) if second_ops is None else second_ops
        if pfG == 1 and second_ops is None and t % 2 == 0: v2_ = v2_ + pf_op((t // 2) % 2)
        if pfG == 2 and second_ops is None and t == 0: v2_ = v2_ + pf_op(0)
        if gdbg & 1: v1 = [o for o in v1 if o[2][0] != "X"]
        if gdbg & 2:
            v1 = [o for o in v1 if o[2][0] != "D"]; v2_ = [o for o in v2_ if o[2][0] != "D"]
        def spread(n, lo, hi):
            c = [m for m in range(lo, hi) if m % 4 == vmod]
            if n == 0: return []
            return [c[(i * len(c)) // n] for i in range(n)]
        sched = list(zip(spread(len(v1), *sp1), v1)) + list(zip(spread(len(v2_), max(sp2[0], BARM + 3), sp2[1]), v2_))
        pend = []; post = []; pre = list(sched[0][1][0]) if sched else []; vi = 0
        for m in range(88):
            blk, j = m // 4, m % 4
            if m == 0: E(vq.need(("X", t)))
            if j == 0: E(dq.need(("A", t, blk)))
            E(mfma16(acc(blk, j), Afr(blk), Bfr(t % 4, j)))
            if m == BARM:
                E(vq.need(("D", t + 1, 1))); E(dq.drain()); E("s_barrier")
            if j == 3:
                if blk < 11: pend += rd_ops(t, blk + 11)
                elif not last: pend += rd_ops(t + 1, blk - 11)
            if vi < len(sched) and m == sched[vi][0]:
                assert not pre, (t, m, pre)
                op = sched[vi][1]
                E(op[1]); vq.issue(op[2]); post += op[3]; vi += 1
                if vi < len(sched): pre = list(sched[vi][1][0])
            else:
                used = 0
                while pend and used < (2 if len(pend) > 2 else 1) and not (pend[0][1][1] > t and m < BARM):
                    ins, tag = pend.pop(0); E(ins); dq.issue(tag); used += 1
                while post and used < 2: E(post.pop(0)); used += 1
                while pre and used < 2 and not post and not (sched[vi][0] > BARM and m < BARM - 8): E(pre.pop(0)); used += 1
        for ins, tag in pend: E(ins); dq.issue(tag)
        E(post)
    for t in range(4): step(t, lambda x: None)
    vq.rebase(4); dq.rebase(4)
    A.raw(".p2align 6")
    A.label(L("loop"))
    for t in range(4): step(t, A.e)
    if pst == 3:
        A.e(["s_memtime s[76:77]", "s_memrealtime s[78:79]", "s_waitcnt lgkmcnt(0)", "v_cmp_eq_u32 vcc, s9, v0", "v_mov_b32 v1, s76", "s_nop 0", "v_cndmask_b32 v31, v31, v1, vcc", "v_mov_b32 v1, s78", "v_cndmask_b32 v30, v30, v1, vcc"])
    A.e(["s_sub_u32 s9, s9, 1", "s_cmp_lg_u32 s9, 0", f"s_cbranch_scc1 {L('loop')}"])
    if pst == 3:
        for k in range(1, 8):
            A.e([f"v_readlane_b32 s76, v31, {8-k}", f"v_readlane_b32 s78, v30, {8-k}", "s_nop 1", "v_mov_b32 v1, s76", f"v_accvgpr_write_b32 a{240+2*k}, v1", "v_mov_b32 v1, s78", f"v_accvgpr_write_b32 a{241+2*k}, v1"])
    vq.rebase(4); dq.rebase(4)
    if cpf >= 2: emit_vm(code_touch(30, "a238"), A.e)
    step(0, A.e, None, kv_ops("K", 0) + kv_ops("K", 1))
    step(1, A.e, kv_ops("K", 2) + kv_ops("K", 3), kv_ops("V", 0) + kv_ops("V", 1))
    step(2, A.e, kv_ops("V", 2), kv_ops("V", 3) + (pf_op(0) if pfG in (1, 2) else []))
    step(3, A.e, [], [], last=True)
    stamp(2)

    HP = "" if hwb else WT
    A.e(["s_mul_i32 s6, s15, 114688", "s_mul_i32 s12, s5, 7", "s_add_u32 s12, s12, 1", "s_lshr_b32 s12, s12, 1", "s_lshl_b32 s12, s12, 10",
         "s_add_u32 s6, s6, s12",
         "s_and_b32 s13, s5, 1", "s_cmp_eq_u32 s13, 0", "s_mov_b32 s13, 0xfffffc08", "s_cselect_b32 s13, 0xc00, s13",
         "s_add_u32 s7, s6, s13",
         "s_mov_b32 s8, 0xbfb8aa3b", "s_mov_b32 s9, 0xbfb8aa3b"])
    def hblock(b, j, dst):
        g = 32 + ((2 * b) * 4 + j) * 4; u = g + 16
        out = []
        out += [f"v_pk_mul_f32 v[{g+r_}:{g+r_+1}], v[{g+r_}:{g+r_+1}], s[8:9]" for r_ in (0, 2)]
        out += [f"v_exp_f32 v{g+r_}, v{g+r_}" for r_ in range(4)]
        out += [f"v_pk_add_f32 v[{g+r_}:{g+r_+1}], v[{g+r_}:{g+r_+1}], 1.0 op_sel_hi:[1,0]" for r_ in (0, 2)]
        out += [f"v_rcp_f32 v{g+r_}, v{g+r_}" for r_ in range(4)]
        out += [f"v_pk_mul_f32 v[{g+r_}:{g+r_+1}], v[{g+r_}:{g+r_+1}], v[{u+r_}:{u+r_+1}]" for r_ in (0, 2)]
        out += [f"v_cvt_pk_bf16_f32 v{dst}, v{g}, v{g+1}", f"v_cvt_pk_bf16_f32 v{dst+1}, v{g+2}, v{g+3}"]
        return out
    for i in range(2):
        for j in range(4):
            dst = 32 + ((4 * i + 1) * 4 + j) * 4
            A.e(hblock(2 * i, j, dst)); A.e(hblock(2 * i + 1, j, dst + 2))
            A.e([f"s_add_u32 s13, s6, {j*114688}", f"buffer_store_dwordx4 {v(dst,4)}, v4, s[56:59], s13 offen offset:{i*1024} {HP}"]); vq.issue(("H", 0))
    hrest = []; hdef = []
    if not hdf:
        for j in range(4):
            dst = 32 + (9 * 4 + j) * 4
            A.e(hblock(4, j, dst) + hblock(5, j, dst + 2) + [f"s_add_u32 s13, s6, {j*114688}", f"buffer_store_dwordx4 {v(dst,4)}, v4, s[56:59], s13 offen offset:2048 {HP}"]); vq.issue(("H", 0))
            dst = 32 + (13 * 4 + j) * 4
            A.e(hblock(6, j, dst) + [f"s_add_u32 s13, s7, {j*114688}", f"buffer_store_dwordx2 {v(dst,2)}, v4, s[56:59], s13 offen {HP}"]); vq.issue(("H", 0))
    for j in range(4 if hdf else 0):
        dst = 32 + (9 * 4 + j) * 4
        hrest += hblock(4, j, dst) + hblock(5, j, dst + 2) + [f"v_accvgpr_write_b32 a{192+4*j+k}, v{dst+k}" for k in range(4)]
        hdef.append(([f"s_add_u32 s90, s14, {j*114688}"], f"buffer_store_dwordx4 {a(192+4*j,4)}, v4, s[56:59], s90 offen offset:2048 {HP}", ("H", 0), []))
    for j in range(4 if hdf else 0):
        dst = 32 + (13 * 4 + j) * 4
        hrest += hblock(6, j, dst) + [f"v_accvgpr_write_b32 a{208+2*j+k}, v{dst+k}" for k in range(2)]
        hdef.append(([f"s_add_u32 s90, s4, {j*114688}"], f"buffer_store_dwordx2 {a(208+2*j,2)}, v4, s[56:59], s90 offen {HP}", ("H", 0), []))
    QF = lambda mu, t: 32 + (mu * 8 + t) * 4
    SB = lambda b, mu: 96 + (b * 2 + mu) * 16
    NM = lambda mu: 160 + mu * 16
    PB = lambda b, mu: 192 + (b * 2 + mu) * 8
    EB = 224; VL = 232; VTS = 234; VT = 236
    A.e([f"s_mov_b32 s12, {QSCALE:#x}", f"s_mov_b32 s13, {QSCALE:#x}", f"s_mov_b32 s95, {thr:#x}"])
    for t in range(8):
        for mu in range(2):
            tmp = 96 + ((t * 2 + mu) % 4) * 8
            for x in range(2):
                src = (t * 4 + 2 * mu + x) * 4
                A.e([f"v_accvgpr_read_b32 v{tmp+4*x+r_}, a{src+r_}" for r_ in range(4)])
            A.e([f"v_pk_mul_f32 v[{tmp+2*k}:{tmp+2*k+1}], v[{tmp+2*k}:{tmp+2*k+1}], s[12:13]" for k in range(4)])
            q = QF(mu, t)
            A.e([f"v_cvt_pk_bf16_f32 v{q+k}, v{tmp+2*k}, v{tmp+2*k+1}" for k in range(4)])
            if (t * 2 + mu) > 0:
                pq = QF(*prev)
                A.e([f"v_permlane16_swap_b32 v{pq}, v{pq+2}", f"v_permlane16_swap_b32 v{pq+1}, v{pq+3}"])
            prev = (mu, t)
    A.e(["v_and_b32 v30, 31, v0", "v_lshrrev_b32 v31, 5, v0", "v_and_b32 v1, 15, v0", "v_xor_b32 v1, v1, v31",
         "v_lshlrev_b32 v30, 8, v30"])
    pq = QF(*prev)
    A.e([f"v_permlane16_swap_b32 v{pq}, v{pq+2}", f"v_permlane16_swap_b32 v{pq+1}, v{pq+3}"])
    for t in range(8):
        A.e([f"v_xor_b32 v{9+t}, {2*t}, v1", f"v_lshl_add_u32 v{9+t}, v{9+t}, 4, v30"])
    A.e(["v_bfe_u32 v1, v0, 2, 2", "v_lshlrev_b32 v30, 10, v31", "v_lshl_add_u32 v30, v1, 8, v30",
         "v_bfe_u32 v22, v0, 4, 1", "v_lshl_add_u32 v30, v22, 5, v30", "v_and_b32 v23, 3, v0", "v_lshl_add_u32 v30, v23, 3, v30",
         "v_add_u32 v30, 0x10000, v30"])
    for i in range(4):
        A.e([f"v_xor_b32 v23, {i}, v1", f"v_lshl_add_u32 v{17+i}, v23, 6, v30"])
    A.e(["v_lshlrev_b32 v21, 17, v22", "v_lshl_add_u32 v21, v31, 8, v21", "v_and_b32 v1, 15, v0", "v_lshl_add_u32 v21, v1, 4, v21"])
    Kf = lambda t: a(128 + t * 4, 4)
    Vf = lambda i, tp, h=None: a(160 + (i * 2 + tp) * 4, 4) if h is None else a(160 + (i * 2 + tp) * 4 + 2 * h, 2)
    Oacc = lambda i, mu: a((i * 2 + mu) * 16, 16)
    def k_reads(T): return [(f"ds_read_b128 {Kf(t)}, v{9+t} offset:{(T % 8) * 8192}", ("K", T, t)) for t in range(8)]
    def v_reads(T):
        return [(f"ds_read_b64_tr_b16 {Vf(i,tp,h)}, v{17+i} offset:{(T % 8) * 8192 + tp * 4096 + h * 2048}", ("V", T, i, tp))
                for i in range(4) for tp in range(2) for h in range(2)]
    def qk(T, c0):
        return [(mfma32(v(SB(T & 1, mu), 16), Kf(t), v(QF(mu, t), 4), (c0(mu) if t == 0 else None)), ("K", T, t)) for t in range(8) for mu in range(2)]
    def pv(T):
        return [(mfma32(Oacc(i, mu), Vf(i, tp), v(PB(T & 1, mu) + 4 * tp, 4), ("0" if (T == 0 and tp == 0) else None)), ("V", T, i, tp))
                for i in range(4) for tp in range(2) for mu in range(2)]
    A.e(vq.need(("V", 3))); A.e("s_barrier")
    dq.slack = 15
    for ins, tag in k_reads(0): A.e(ins); dq.issue(tag)
    A.e(hrest[:12]); hrest = hrest[12:]
    for ins, tag in qk(0, lambda mu: "0"):
        A.e(dq.need(tag, 4)); A.e(ins); A.e(hrest[:4]); hrest = hrest[4:]
    for ins, tag in k_reads(1): A.e(ins); dq.issue(tag)
    A.e(hrest)
    A.e((["s_and_b32 s12, s2, 7", "s_lshr_b32 s72, s12, 2", "s_and_b32 s13, s12, 1", "s_lshl_b32 s73, s4, 1", "s_add_u32 s73, s73, s13",
         "s_bfe_u32 s13, s12, 0x10001"] if kmap == 0 else
        ["s_and_b32 s72, s2, 1", "s_bfe_u32 s13, s2, 0x10001", "s_lshl_b32 s73, s4, 1", "s_add_u32 s73, s73, s13",
         "s_bfe_u32 s13, s2, 0x10002"]) + ["s_lshl_b32 s13, s13, 2", "s_lshr_b32 s74, s2, 6", "s_add_u32 s74, s74, s13",
         "s_lshr_b32 s12, s3, 1", "s_and_b32 s13, s3, 1",
         "s_cmp_eq_u32 s72, 0",
         f"s_cselect_b32 s8, {8*N1S}, {8*N1Y}", f"s_cselect_b32 s9, 0, {16*N1S}", "s_mul_i32 s8, s8, s12", "s_add_u32 s8, s8, s9",
         "s_cmp_eq_u32 s72, 0",
         f"s_cselect_b32 s75, {SS}, {64-SS}", f"s_cselect_b32 s96, 0, {2*SS}", "s_mul_i32 s75, s75, s12", "s_add_u32 s75, s75, s96",
         "s_lshl_b32 s9, s8, 10", "s_lshl_b32 s8, s8, 16",
         "s_lshl_b32 s96, s75, 10", "s_lshl_b32 s75, s75, 16",
         "s_lshl_b32 s13, s13, 12",
         "s_lshl_b32 s10, s12, 17", "s_add_u32 s10, s10, s13",
         "s_lshl_b32 s11, s12, 16", "s_add_u32 s11, s11, 0x8000", "s_add_u32 s11, s11, s13",
         "v_lshrrev_b32 v30, 4, v0", "v_and_b32 v31, 15, v0", "v_lshlrev_b32 v1, 2, v30", "v_xor_b32 v31, v31, v1",
         "s_lshl_b32 s13, s13, 3", "s_lshl_b32 s97, s74, 8", "s_add_u32 s97, s97, s13",
         "v_lshlrev_b32 v30, 11, v30", "v_add_u32 v30, s97, v30",
         "v_lshl_add_u32 v246, v31, 4, v30", "v_xor_b32 v31, 2, v31", "v_lshl_add_u32 v247, v31, 4, v30", "v_add_u32 v247, 7168, v247",
         "v_add_u32 v248, 14336, v246", "v_add_u32 v249, 14336, v247", "v_mov_b32 v250, s98", "v_mov_b32 v251, s99", "v_mov_b32 v252, 0",
         "s_lshl_b32 s97, s73, 3", "s_and_b32 s13, s3, 1", "s_lshl_b32 s13, s13, 2", "s_add_u32 s97, s97, s13", "s_lshl_b32 s12, s12, 1"])
    for jj in range(4):
        A.e([f"s_xor_b32 s13, s12, {jj}", "s_add_u32 s13, s13, s97", "s_mul_i32 s90, s13, 114688", f"v_add_u32 v{5+jj}, s90, v4",
             "s_lshl_b32 s90, s13, 17", f"v_add_u32 v{242+jj}, s90, v4"])
    A.e(["v_lshlrev_b32 v24, 5, v0", "v_and_b32 v24, 0x3e0, v24",
         "s_lshl_b32 s12, s4, 10", f"s_add_u32 s91, s12, {FL_H}", f"s_add_u32 s97, s12, {FL_O}",
         "s_lshl_b32 s13, s5, 5", "s_add_u32 s88, s91, s13", "s_add_u32 s89, s97, s13"])
    srd(A, 48, P_WS, FL_SZ, WS_FLAG)
    srd(A, 44, P_WD, 3584 * 2048)
    srd(A, 40, P_WS, SZ_HF, WS_HF)
    for i in range(8):
        A.e([f"s_add_u32 s13, s14, {i}", "s_and_b32 s13, s13, 7", f"s_lshl_b32 s{80+i}, s13, 10"])
    WV = 246
    def w_ops(t, half=False):
        slot = t % 8
        ops = []
        rot_ = [f"s_and_b32 s12, s{80+slot}, 0xc00", "s_lshl_b32 s12, s12, 6"] if half else [f"s_lshl_b32 s12, s{80+slot}, 6"]
        for i in range(4):
            ops.append(([f"s_add_u32 m0, s{10 if slot < 4 else 11}, {(slot%4)*8192}"] + rot_ + ["s_add_u32 s12, s12, s8"] if i == 0 else [],
                        f"buffer_load_dwordx4 v{WV+i}, s[44:47], s12 offen offset:{i*1024} lds", ("W", t),
                        ["s_add_u32 s8, s8, 0x80000"] if (i == 3 and slot == 7) else []))
        return ops
    BR = [192, 208, 224, 0, 16, 32, 48, 64]
    facc = lambda cb, jj: v(32 + (cb * 4 + jj) * 4, 4)
    FA = lambda cb, h=None: a(128 + cb * 4, 4) if h is None else a(128 + cb * 4 + 2 * h, 2)
    FB = lambda slot, jj: a(BR[slot] + jj * 4, 4)
    def a_ops(t, half=False):
        slot = t % 8
        return [(([f"s_and_b32 s13, s{80+slot}, 0xc00", "s_add_u32 s13, s13, s9"] if half else [f"s_add_u32 s13, s{80+slot}, s9"]) if jj == 0 else [],
                 f"buffer_load_dwordx4 {FB(slot,jj)}, v{5+jj}, s[40:43], s13 offen {apol}", ("X", t),
                 ["s_add_u32 s9, s9, 0x2000"] if (jj == 3 and slot == 7) else []) for jj in range(4)]
    spins = []
    def check_flags(tag, reg, addr, off):
        A.e([f"v_cmp_ne_u64 vcc, s[98:99], v[{reg}:{reg+1}]", f"s_cbranch_vccnz {L('spin' + tag)}"])
        A.label(L("ok" + tag))
        spins.append((tag, reg, addr, off))

    A.e(["s_mov_b32 s14, s6", "s_mov_b32 s4, s7"])
    A.e(["v_mov_b32 v232, 0", "v_mov_b32 v233, 0"])
    def rowmax(S, dst, tmp):
        out = [f"v_max3_f32 v{dst}, v{S}, v{S+1}, v{S+2}"]
        for k in range(3, 15, 2): out.append(f"v_max3_f32 v{dst}, v{dst}, v{S+k}, v{S+k+1}")
        out += [f"v_max_f32 v{dst}, v{dst}, v{S+15}", f"v_mov_b32 v{tmp}, v{dst}", "s_nop 1",
                f"v_permlane32_swap_b32 v{tmp}, v{dst}", f"v_max_f32 v{dst}, v{dst}, v{tmp}"]
        return out
    for mu in range(2):
        A.e(rowmax(SB(0, mu), VT + mu, VT + 2))
        A.e([f"v_sub_f32 v{NM(mu)+k}, 0, v{VT+mu}" for k in range(16)])
        A.e([f"v_sub_f32 v{SB(0,mu)+k}, v{SB(0,mu)+k}, v{VT+mu}" for k in range(16)])
    def sm(T):
        b = T & 1
        out = []
        def ex(n): return (f"v_exp_f32 v{EB + n % 8}, v{SB(b, n // 16) + n % 16}", 8)
        def fin(n):
            mu, r_ = n // 16, n % 16; e = EB + n % 8; o = []
            if r_ == 1: o.append((f"v_add_f32 v{VTS+mu}, v{EB + (n-1) % 8}, v{e}", 4))
            elif r_ > 1: o.append((f"v_add_f32 v{VTS+mu}, v{VTS+mu}, v{e}", 4))
            if r_ % 2 == 1: o.append((f"v_cvt_pk_bf16_f32 v{PB(b,mu) + r_//2}, v{EB + (n-1) % 8}, v{e}", 5))
            return o
        out.append(ex(0)); out.append(ex(1))
        for n in range(2, 32):
            out.append(ex(n)); out += fin(n - 2)
        out += fin(30) + fin(31)
        out += [(f"v_max_f32 v{VT}, v{VTS}, v{VTS+1}", 4), (f"v_cmp_nge_f32 vcc, s95, v{VT}", 4)]
        return out
    stamp(3)
    def flag_store(off_sreg):
        lab = L("fl%d" % A.nlabel); A.nlabel += 1
        A.e(["s_cmp_lg_u32 s3, 0", f"s_cbranch_scc1 {lab}", "s_mov_b64 exec, 1",
             f"buffer_store_dwordx2 v[250:251], v252, s[48:51], {off_sreg} offen {WT}", "s_mov_b64 exec, -1"])
        A.label(lab)
    rare_sites = []
    for T in range(17):
        mf = (qk(T + 1, lambda mu: v(NM(mu), 16)) if T + 1 <= 15 else []) + (pv(T - 1) if T >= 1 else [])
        nq = 16 if T + 1 <= 15 else 0
        va = ([(f"v_add_f32 v{VL}, v{VL}, v{VTS}", 4), (f"v_add_f32 v{VL+1}, v{VL+1}, v{VTS+1}", 4)] if T >= 1 else []) + (sm(T) if T <= 15 else [])
        rdv = v_reads(T - 1) if T >= 1 else []
        rdk = k_reads(T + 2) if T + 2 <= 15 else []
        vm = []
        if T % 2 == 0 and T <= 14:
            w = []
            if T == hfT: w += vq.need(("H", 0))
            if T >= 6: w += vq.need(("K", (T + 2) // 2))
            if T >= 8: w += vq.need(("V", T // 2))
            A.e(w[-1:]); A.e(dq.drain()); A.e("s_barrier")
            if T == hfT:
                if hwb:
                    lab = L("wb")
                    A.e(["s_cmp_lg_u32 s3, 0", f"s_cbranch_scc1 {lab}", "buffer_wbl2 sc1"]); A.label(lab)
                else: flag_store("s88")
            if T == 8 and hwb: flag_store("s88")
            if T <= 6: vm += kv_ops("K", T // 2 + 4)
            if 4 <= T <= 10: vm += kv_ops("V", T // 2 + 2)
            if T == 12: vm += w_ops(0) + w_ops(1)
            if T == 14:
                A.e(vq.need(("F", 0))); check_flags("H", 22, 24, "s91")
                vm += a_ops(0) + a_ops(1)
        if pfA and 3 <= T <= 10:
            pre = []
            if T == 3:
                pre = [f"s_mov_b32 s52, s{P_WO}", f"s_and_b32 s53, s{P_WO+1}, 0xffff", f"s_mov_b32 s54, {4096*2048:#x}",
                       "s_lshl_b32 s12, s2, 2", "s_add_u32 s12, s12, s3", "s_lshl_b32 s100, s12, 13", "s_mul_i32 s101, s12, 7168",
                       "v_and_b32 v2, 7, v0", "v_lshlrev_b32 v2, 7, v2", "v_add_u32 v3, 4096, v2"]
            k = T - 3
            if k < 7: vm += [(pre, f"buffer_load_dword v30, v{2 if k < 4 else 3}, s[44:47], s101 offen offset:{(k % 4) * 1024}", ("P", 0), [])]
            if pfA == 2: vm += [([], f"buffer_load_dword v30, v{2 if k < 4 else 3}, s[52:55], s100 offen offset:{(k % 4) * 1024}", ("P", 0), [])]
        if T == 9 and cpf >= 3: emit_vm(code_touch(31, "v31"), A.e)
        if T == 12: vm += [([], f"buffer_load_dwordx2 v[22:23], v24, s[48:51], s91 offen {WT}", ("F", 0), [])]
        if T == 13: vm += w_ops(2) + w_ops(3)
        if T < 4: vm += hdef[2 * T: 2 * T + 2]
        if T == 15: vm += a_ops(2)
        if nq == 0:
            for ins, tag in rdv: A.e(ins); dq.issue(tag)
            rdv = []
        n = len(mf)
        vml = []
        for op in vm:
            vml += [(x, 4, None) for x in op[0]] + ([("s_nop 0", 4, None)] if op[0] else []) + [(op[1], 8, op[2])] + [(x, 4, None) for x in op[3]]
        tot = sum(c for _, c in va) + 4 * (len(rdv) + len(rdk)) + sum(c for _, c, _ in vml)
        done = 0
        for m, (ins, tag) in enumerate(mf):
            w = dq.need(tag, dsl); A.e(w); A.e(ins)
            used = 4 * len(w)
            budget = max(cap, -(-(tot - done) // (n - m)) + 3) if m < n - 1 else 10 ** 6
            target = (tot * (m + 1)) // n + 6
            rd = rdv if (m < nq and rdv) else (rdk if (m >= nq and rdk) else None)
            if rd:
                ri, rt = rd.pop(0); A.e(ri); dq.issue(rt); used += 4; done += 4
                if rd is rdv and len(rd) > (nq - 3 - m):
                    ri, rt = rd.pop(0); A.e(ri); dq.issue(rt); used += 4; done += 4
            elif vml:
                x, c, tg = vml.pop(0); A.e(x); used += c; done += c
                if tg: vq.issue(tg)
                while vml and c == 4 and used < 12:
                    x, c, tg = vml.pop(0); A.e(x); used += c; done += c
                    if tg: vq.issue(tg)
            while va and used + va[0][1] <= budget and (done < target or m == n - 1):
                x, c = va.pop(0); A.e(x); used += c; done += c
        assert not rdv
        for ins, tag in rdk: A.e(ins); dq.issue(tag)
        for x, c, tg in vml:
            A.e(x)
            if tg: vq.issue(tg)
        for x, c in va: A.e(x)
        if T <= 15:
            A.e([f"s_cbranch_vccnz {L('rs%d' % T)}"])
            A.label(L("rb%d" % T))
            rare_sites.append(T)
    stamp(4)
    A.e(["s_lshl_b32 s6, s15, 17", "s_lshl_b32 s12, s5, 12", "s_add_u32 s6, s6, s12", "s_add_u32 s7, s6, 0x40000"])
    for mu in range(2):
        A.e([f"v_mov_b32 v{VT}, v{VL+mu}", "s_nop 1", f"v_permlane32_swap_b32 v{VT}, v{VL+mu}", f"v_add_f32 v{VT}, v{VT}, v{VL+mu}",
             f"v_rcp_f32 v{VT+2+2*mu}, v{VT}", "s_nop 0", f"v_mov_b32 v{VT+3+2*mu}, v{VT+2+2*mu}"])
    A.e(["v_mov_b32 v29, v21", "s_barrier"])
    for t in range(4, 7):
        for op in w_ops(t): emit_vm(op, A.e, True)
    A.e(["v_mov_b32 v253, v24",
         "v_lshrrev_b32 v1, 4, v0", "v_lshlrev_b32 v30, 10, v1", "v_and_b32 v1, 1, v1",
         "v_bfe_u32 v31, v0, 2, 2", "v_lshl_add_u32 v30, v31, 8, v30", "v_lshl_or_b32 v31, v31, 1, v1",
         "v_and_b32 v1, 3, v0", "v_lshl_add_u32 v30, v1, 3, v30",
         "s_lshr_b32 s13, s3, 1", "s_lshl_b32 s12, s13, 17", "s_lshl_b32 s13, s13, 16", "s_add_u32 s13, s13, 0x8000"])
    for cb in range(8):
        A.e([f"v_xor_b32 v1, {cb}, v31", "v_lshl_add_u32 v1, v1, 5, v30", f"v_add_u32 v{9+cb}, s12, v1", f"v_add_u32 v{17+cb}, s13, v1"])
    def frd(t, cb):
        slot = t % 8
        reg = (9 if slot < 4 else 17) + cb; off = (slot % 4) * 8192
        return [(f"ds_read_b64_tr_b16 {FA(cb,0)}, v{reg} offset:{off}", ("A", t, cb)),
                (f"ds_read_b64_tr_b16 {FA(cb,1)}, v{reg} offset:{off+4096}", ("A", t, cb))]
    dq.slack = 8
    ostores = []
    cnt = 0
    if oin:
        A.e([f"v_accvgpr_read_b32 v{96+k}, a{k}" for k in range(64)])
        for t in range(3, 7):
            for op in a_ops(t): emit_vm(op, A.e)
        A.e(vq.need(("W", 3))); A.e("s_barrier")
        for cb in range(8):
            for ins, tag in frd(0, cb): A.e(ins); dq.issue(tag)
    for i in range(4):
        for mu in range(2):
            tmp = 96 + (cnt % 4) * 16; dst = 160 + cnt * 8; cnt += 1
            src = (i * 2 + mu) * 16
            if not (oin and cnt <= 4): A.e([f"v_accvgpr_read_b32 v{tmp+k}, a{src+k}" for k in range(16)])
            A.e([f"v_pk_mul_f32 v[{tmp+2*k}:{tmp+2*k+1}], v[{tmp+2*k}:{tmp+2*k+1}], v[{VT+2+2*mu}:{VT+3+2*mu}]" for k in range(8)])
            for s_ in range(2):
                for jj, j in enumerate((s_, s_ + 2)):
                    A.e([f"v_cvt_pk_bf16_f32 v{dst+4*s_+2*jj}, v{tmp+4*j}, v{tmp+4*j+1}", f"v_cvt_pk_bf16_f32 v{dst+4*s_+2*jj+1}, v{tmp+4*j+2}, v{tmp+4*j+3}"])
                ostores.append(([], f"buffer_store_dwordx4 {v(dst+4*s_,4)}, v29, s[60:63], s{6+mu} offen offset:{i*1024+s_*512} {WT}", ("O", 0), []))
                if oin and len(ostores) <= oin: emit_vm(ostores[-1], A.e)
            if not oin and cnt in (1, 2, 3, 4):
                for op in a_ops(2 + cnt): emit_vm(op, A.e)
            if not oin and cnt == 5:
                A.e(vq.need(("W", 3))); A.e("s_barrier")
                for cb in range(8):
                    for ins, tag in frd(0, cb): A.e(ins); dq.issue(tag)
    ostores = ostores[oin:]
    srd(A, 52, P_WS, G_SZ, G_BASE)
    srd(A, 64, P_X, 2048 * 2048)
    srd(A, 68, P_OUT, 2048 * 2048)
    A.e(["s_cmp_eq_u32 s72, 0",
         f"s_cselect_b32 s90, {N1S-nf//8}, {N1Y-nf//8}", f"s_cselect_b32 s95, {N1S-1-nf//8}, {N1Y-1-nf//8}", "s_mov_b32 s91, 0",
         "s_lshl_b32 s12, s73, 3", "s_add_u32 s12, s12, s74",
         "s_lshl_b32 s92, s12, 2", "s_add_u32 s92, s92, s3",
         "s_lshl_b32 s92, s92, 13",
         "s_lshl_b32 s93, s12, 7", f"s_add_u32 s101, s93, {FL_P}", "s_lshl_b32 s12, s3, 5", "s_add_u32 s93, s93, s12",
         "s_lshl_b32 s94, s73, 7", "s_and_b32 s12, s3, 1", "s_lshl_b32 s12, s12, 6", "s_add_u32 s94, s94, s12",
         "s_lshr_b32 s12, s3, 1", "s_lshl_b32 s12, s12, 5", "s_add_u32 s94, s94, s12",
         "s_lshl_b32 s94, s94, 11", "s_lshl_b32 s12, s74, 8", "s_add_u32 s94, s94, s12",
         "v_and_b32 v1, 15, v0", "v_lshlrev_b32 v1, 11, v1", "v_lshrrev_b32 v30, 4, v0",
         "v_lshl_add_u32 v25, v30, 3, v1", "v_add_u32 v26, 0x8000, v25",
         "v_lshl_add_u32 v27, v30, 4, v1", "v_add_u32 v28, 0x8000, v27",
         "s_lshl_b32 s12, s3, 14", "v_add_u32 v2, s12, v4", "s_xor_b32 s12, s12, 0x8000", "v_add_u32 v3, s12, v4",
         "s_lshl_b32 s12, s3, 13", "s_add_u32 s12, s12, 0x10000", "v_add_u32 v254, s12, v4", "s_xor_b32 s12, s12, 0x4000", "v_add_u32 v255, s12, v4"])
    stamp(5)
    XP = (2, 8, 12, 16, 20, 24, 28)
    def fstep(t, E, last=False, extra=(), czero=False, prev=None, afterbar=None, needbar=(), va=None, xp=None):
        if not last: vops = w_ops(t + 7) + a_ops(t + 7)
        else: vops = (w_ops(t + 7, t > 0) + a_ops(t + 7, t > 0)) if t + 7 < tail else []
        xq = xp or (XP if vops else vpos)
        sched = sorted(list(zip(vpos, vops)) + list(zip(xq, extra)), key=lambda x: x[0])
        assert len(extra) <= len(xq)
        isbar = (t % 2 == 1)
        doread = not (last and t == tail - 1)
        pend = []; vi = 0; post = []; pre = [x for _, op in sched for x in op[0]] if False else None
        pres = [list(op[0]) for _, op in sched]
        for m in range(32):
            cb, jj = m // 4, m % 4
            if m == 0: E(vq.need(("X", t)))
            if jj == 0: E(dq.need(("A", t, cb)))
            if prev: E(prev(cb, jj))
            E(mfma16(facc(cb, jj), FA(cb), FB(t % 8, jj), "0" if czero else None))
            if isbar and m == barpos:
                w = vq.need(("W", t + 2))
                for tg in needbar: w += vq.need(tg)
                E(w[-1:]); E(dq.drain()); E("s_barrier")
                if afterbar: afterbar()
            if jj == 3 and doread: pend += frd(t + 1, cb)
            if vi < len(sched) and m == sched[vi][0]:
                assert not pres[vi]
                op = sched[vi][1]
                E(op[1]); vq.issue(op[2]); post += op[3]; vi += 1
            else:
                used = 0
                if not (isbar and m < barpos) and pend:
                    ins, tag = pend.pop(0); E(ins); dq.issue(tag); used += 1
                k = next((k for k in range(vi, len(sched)) if pres[k]), None)
                if k is not None and any("m0" in x for x in pres[k]) and any(" lds" in sched[k2][1][1] for k2 in range(vi, k)): k = None
                while k is not None and pres[k] and used < 2: E(pres[k].pop(0)); used += 1
                if post and used < 2: E(post.pop(0)); used += 1
                cyc = 4 * used
                while va and cyc + va[0][1] <= vcap:
                    x, c = va.pop(0); E(x); cyc += c
        for ins, tag in pend: E(ins); dq.issue(tag)
        E(post)
    oflag = [([], f"buffer_load_dwordx2 v[30:31], v253, s[48:51], s97 offen {WT}", ("F", 0), [])]
    SWW = [[]]
    def loop_body(E, real):
        for t in range(8):
            fstep(t, E, extra=oflag if t == 2 else ())
            if t == 0 and real:
                A.e(["s_cmp_lg_u32 s95, 0", f"s_cbranch_scc1 {L('nosw')}"])
                A.e(SWW[0]); check_flags("O", 30, 253, "s97")
                srd(A, 40, P_WS, SZ_OF, WS_OF); srd(A, 44, P_WO, 4096 * 2048)
                A.e(["s_mov_b32 s8, s75", "s_mov_b32 s9, s96", "s_mov_b32 s97, s101", "v_mov_b32 v253, 0"] + [f"v_mov_b32 v{5+jj}, v{242+jj}" for jj in range(4)])
                A.label(L("nosw"))
    XP8 = (1, 2, 4, 8, 12, 16, 20, 24)
    for t in range(nf):
        k0 = sum(ost[:t]); ex = list(ostores[k0:k0 + ost[t]]) if t < len(ost) else []
        if nf == 16 and t == oft: ex = ex + oflag
        fstep(t, A.e, extra=ex, czero=(t == 0), xp=(XP8 if t % 2 == 0 else (4, 5, 8, 12, 16, 20, 24, 28)) if len(ex) > 3 else (8, 16, 24),
              needbar=[("O", 0)] if t == oflt else (), afterbar=(lambda: flag_store("s89")) if t == oflt else None)
    stamp(6)
    SWW[0] = [f"s_waitcnt vmcnt({vq.count_after(('F', 0)) + 8})"] if ("F", 0) in vq.q else []
    vq.rebase(nf); dq.rebase(nf)
    q_first = (list(vq.q), list(dq.q))
    loop_body(lambda x: None, False)
    vq.rebase(8); dq.rebase(8)
    q_steady = (list(vq.q), list(dq.q))
    assert not any(t[0] == "F" for t in q_steady[0]) and N1S >= 3 and N1Y >= 3
    def covers(entry, steady):
        def younger(q, tag): return len(q) - 1 - max(i for i, t in enumerate(q) if t == tag)
        for tag in set(entry):
            if tag[0] not in "WXA": continue
            if tag not in steady or younger(entry, tag) < younger(steady, tag): return False
        return True
    assert covers(q_first[0], q_steady[0]) and covers(q_first[1], q_steady[1]), (q_first, q_steady)
    A.raw(".p2align 6")
    A.label(L("floop"))
    loop_body(A.e, True)
    A.e(["s_sub_u32 s95, s95, 1", "s_sub_u32 s90, s90, 1", "s_cmp_lg_u32 s90, 0", f"s_cbranch_scc1 {L('floop')}",
         "s_cmp_lg_u32 s91, 0", f"s_cbranch_scc1 {L('flast')}"])
    stamp(3, 2)
    vq.rebase(8); dq.rebase(8)
    YS = lambda cb, jj: 160 + (cb * 2 + jj) * 4
    A.e("s_nop 2")
    for rnd in range(2):
        for cb in range(4 * rnd, 4 * rnd + 4):
            for jj in (2, 3): A.e(f"ds_write_b128 v254, {facc(cb,jj)} offset:{((cb%4)*2+jj-2)*1024}")
        if rnd == 1:
            for cb in range(4):
                for jj in range(2):
                    b = 32 + (cb * 4 + jj) * 4; y = YS(cb, jj)
                    A.e([f"v_pk_add_f32 v[{y+r_}:{y+r_+1}], v[{b+r_}:{b+r_+1}], v[{b+8+r_}:{b+9+r_}]" for r_ in (0, 2)])
        A.e(["s_waitcnt lgkmcnt(0)", "s_barrier"])
        for cb in range(4 * rnd, 4 * rnd + 4):
            for jj in (2, 3): A.e(f"ds_read_b128 {facc(cb,jj)}, v255 offset:{((cb%4)*2+jj-2)*1024}")
        if rnd == 0: A.e(["s_waitcnt lgkmcnt(0)", "s_barrier"])
    for cb in range(4, 8):
        for jj in range(2):
            b = 32 + (cb * 4 + jj) * 4; y = YS(cb, jj)
            A.e(f"s_waitcnt lgkmcnt({7 - ((cb-4)*2+jj)})")
            A.e([f"v_pk_add_f32 v[{y+r_}:{y+r_+1}], v[{b+r_}:{b+r_+1}], v[{b+8+r_}:{b+9+r_}]" for r_ in (0, 2)])
    A.e(["s_cmp_eq_u32 s72, 0", f"s_cbranch_scc1 {L('firstC')}", "s_add_u32 s6, s92, 4096"])
    for jj in range(2):
        for i in range(4):
            d = 224 + (i % 2) * 4 + jj * 8
            for h in range(2):
                y = YS(2 * i + h, jj)
                A.e([f"v_cvt_pk_bf16_f32 v{d+2*h}, v{y}, v{y+1}", f"v_cvt_pk_bf16_f32 v{d+2*h+1}, v{y+2}, v{y+3}"])
            A.e(f"buffer_store_dwordx4 {v(d,4)}, v4, s[52:55], {'s6' if jj else 's92'} offen offset:{i*1024} {WT}")
    A.label(L("firstC"))
    stamp(4, 2)
    vq.q, dq.q = list(q_steady[0]), list(q_steady[1])
    def pflag():
        lab = L("pf")
        A.e(["s_xor_b32 s6, s72, 1", "s_or_b32 s6, s6, s3", "s_cmp_lg_u32 s6, 0", f"s_cbranch_scc1 {lab}", "s_mov_b64 exec, 1",
             f"buffer_store_dwordx2 v[250:251], v252, s[48:51], s101 offen {WT}", "s_mov_b64 exec, -1"])
        A.label(lab)
    xpre = ["v_lshrrev_b32 v228, 4, v0", "v_and_b32 v229, 15, v0", "v_xor_b32 v229, v229, v228"]
    for i in range(4):
        xpre += [f"v_xor_b32 v{224+i}, {4*i}, v229", f"v_lshlrev_b32 v{224+i}, 4, v{224+i}", f"v_lshl_add_u32 v{224+i}, v228, 11, v{224+i}",
                 f"v_add_u32 v{224+i}, {7168*i}, v{224+i}"]
    xdma = [([f"s_add_u32 m0, s15, {4096*hh}"], f"buffer_load_dwordx4 v{224+i}, s[64:67], {'s100' if hh else 's94'} offen offset:{i*1024} lds", ("R", 0), [])
            for hh in range(2) for i in range(4)]
    A.e(xpre + ["s_lshl_b32 s15, s3, 13", "s_add_u32 s15, s15, 0x10000", "s_add_u32 s100, s94, 0x8000"])
    nopre = lambda op: ([],) + tuple(op[1:])
    mark = ("MARK", vq.total)
    for t in range(8):
        fstep(t, A.e, czero=(t == 0), afterbar=pflag if t == pft else None, needbar=[mark] if t == pft else (), extra={2: [xdma[0], nopre(xdma[1])], 3: [xdma[2]], 4: [xdma[3]], 5: [xdma[4]] + oflag, 6: [xdma[5], nopre(xdma[6])], 7: [xdma[7]]}.get(t, ()),
              xp=(1, 2) if t in (2, 6) else None)
    FW = vq.need(("F", 0))
    vq.rebase(8); dq.rebase(8)
    assert covers(vq.q, q_steady[0]) and covers(dq.q, q_steady[1])
    stamp(5, 2)
    A.e(["s_mov_b32 s91, 1", f"s_mov_b32 s90, {(64-SS-8-tail)//8}", "s_cmp_lg_u32 s72, 0", f"s_cbranch_scc1 {L('floop')}"])
    A.e(FW); check_flags("P", 30, 252, "s101")
    YP = lambda jj, i: 224 + (jj * 4 + i) * 4
    YA = lambda i: 80 + i * 4
    A.e("s_add_u32 s6, s92, 4096")
    for i in range(4):
        A.e([f"buffer_load_dwordx4 {v(YP(0,i),4)}, v4, s[52:55], s92 offen offset:{i*1024} {WT}",
             f"buffer_load_dwordx4 {a(YA(i),4)}, v4, s[52:55], s6 offen offset:{i*1024} {WT}"])
    A.e([f"s_mov_b32 s90, {(SS-8-tail)//8}", f"s_branch {L('floop')}"])
    A.label(L("flast"))
    stamp(6, 2)
    A.e(["s_mov_b32 s6, 0xbfb8aa3b", "s_mov_b32 s7, 0xbfb8aa3b", "s_cmp_lg_u32 s72, 0", f"s_cbranch_scc1 {L('flast2')}"])
    for cb in range(8):
        y = YS(cb, 0); pc = YP(0, cb // 2) + 2 * (cb % 2); T0 = 240 if cb % 2 == 0 else 242
        T0 = 240
        A.e([f"v_lshlrev_b32 v{T0}, 16, v{pc}", f"v_and_b32 v{T0+1}, 0xffff0000, v{pc}",
             f"v_lshlrev_b32 v{T0+2}, 16, v{pc+1}", f"v_and_b32 v{T0+3}, 0xffff0000, v{pc+1}"])
        A.e([f"v_pk_add_f32 v[{y+r_}:{y+r_+1}], v[{y+r_}:{y+r_+1}], v[{T0+r_}:{T0+r_+1}]" for r_ in (0, 2)])
        A.e([f"v_pk_mul_f32 v[{T0+r_}:{T0+r_+1}], v[{y+r_}:{y+r_+1}], s[6:7]" for r_ in (0, 2)])
        A.e([f"v_exp_f32 v{T0+r_}, v{T0+r_}" for r_ in range(4)])
        A.e([f"v_pk_add_f32 v[{T0+r_}:{T0+r_+1}], v[{T0+r_}:{T0+r_+1}], 1.0 op_sel_hi:[1,0]" for r_ in (0, 2)])
        A.e([f"v_rcp_f32 v{T0+r_}, v{T0+r_}" for r_ in range(4)])
        A.e([f"v_pk_mul_f32 v[{y+r_}:{y+r_+1}], v[{y+r_}:{y+r_+1}], v[{T0+r_}:{T0+r_+1}]" for r_ in (0, 2)])
    A.label(L("flast2"))
    vq.q, dq.q = list(q_steady[0]), list(q_steady[1])
    va = []
    for cb in range(8):
        y = YS(cb, 1); pc = YA(cb // 2) + 2 * (cb % 2); T0 = 224 + 4 * (cb % 2)
        va += [(f"v_accvgpr_read_b32 v{T0+1}, a{pc}", 4), (f"v_accvgpr_read_b32 v{T0+3}, a{pc+1}", 4),
               (f"v_lshlrev_b32 v{T0}, 16, v{T0+1}", 4), (f"v_and_b32 v{T0+1}, 0xffff0000, v{T0+1}", 4),
               (f"v_lshlrev_b32 v{T0+2}, 16, v{T0+3}", 4), (f"v_and_b32 v{T0+3}, 0xffff0000, v{T0+3}", 4)]
        va += [(f"v_add_f32 v{y+r_}, v{y+r_}, v{T0+r_}", 4) for r_ in range(4)]
        va += [(f"v_mul_f32 v{T0+r_}, s7, v{y+r_}", 4) for r_ in range(4)]
        va += [(f"v_exp_f32 v{T0+r_}, v{T0+r_}", 8) for r_ in range(4)]
        va += [(f"v_add_f32 v{T0+r_}, 1.0, v{T0+r_}", 4) for r_ in range(4)]
        va += [(f"v_rcp_f32 v{T0+r_}, v{T0+r_}", 8) for r_ in range(4)]
        va += [(f"v_mul_f32 v{y+r_}, v{y+r_}, v{T0+r_}", 4) for r_ in range(4)]
    fin = [(["v_mov_b32 v29, 0"], f"buffer_load_dwordx2 v[30:31], v29, s[48:51], s93 offen {WT}", ("G", 0), [])]
    for t in range(tail):
        fstep(t, A.e, last=True, extra={tail - 3: fin}.get(t, ()), va=va if t >= vat else None)
    A.c(f"left over fillers: {len(va)}")
    for x, c in va: A.e(x)
    stamp(7)
    A.e(["v_mov_b32 v22, s98", "v_mov_b32 v23, s99", f"s_add_u32 s6, s92, {G_SF}", f"s_add_u32 s7, s92, {G_SF+4096}",
         "s_cmp_lg_u32 s72, 0", f"s_cbranch_scc1 {L('xch')}"])
    s2loads = [f"buffer_load_dwordx4 {v(YP(jj,i),4)}, v4, s[52:55], s{6+jj} offen offset:{i*1024} {WT}" for jj in range(2) for i in range(4)]
    A.e(vq.need(("G", 0)))
    A.e(["v_cmp_ne_u64 vcc, s[98:99], v[30:31]", f"s_cbranch_vccnz {L('xch')}", "s_mov_b32 s91, 2"] + s2loads)
    A.label(L("xch"))
    A.e("s_nop 2")
    for cb in range(8):
        for jj in (2, 3):
            A.e(f"ds_write_b128 v2, {facc(cb,jj)} offset:{(cb*2+jj-2)*1024}")
    A.e(["s_waitcnt lgkmcnt(0)", "s_barrier"])
    for jj in (2, 3):
        for cb in range(8):
            A.e(f"ds_read_b128 {facc(cb,jj)}, v3 offset:{(cb*2+jj-2)*1024}")
    A.e(["s_cmp_eq_u32 s72, 0", f"s_cbranch_scc1 {L('sepi')}"])
    for jj in range(2):
        for i in range(4):
            dst = 160 + (jj * 4 + i) * 4
            for h in range(2):
                cb = 2 * i + h
                A.e(f"s_waitcnt lgkmcnt({15 - (jj*8+cb)})")
                b = 32 + (cb * 4 + jj) * 4
                A.e([f"v_pk_add_f32 v[{b+r_}:{b+r_+1}], v[{b+r_}:{b+r_+1}], v[{b+8+r_}:{b+9+r_}]" for r_ in (0, 2)])
                A.e([f"v_cvt_pk_bf16_f32 v{dst+2*h}, v{b}, v{b+1}", f"v_cvt_pk_bf16_f32 v{dst+2*h+1}, v{b+2}, v{b+3}"])
            A.e(f"buffer_store_dwordx4 {v(dst,4)}, v4, s[52:55], s{6+jj} offen offset:{i*1024} {WT}")
    A.e(["s_waitcnt vmcnt(0)", "s_mov_b64 exec, 1",
         f"buffer_store_dwordx2 v[22:23], v29, s[48:51], s93 offen {WT}", "s_mov_b64 exec, -1", f"s_branch {L('fin')}"])
    A.label(L("sepi"))
    A.e(["v_and_b32 v1, 15, v0", "v_lshrrev_b32 v5, 5, v0", "v_xor_b32 v5, v5, v1", "v_bfe_u32 v6, v0, 4, 1", "v_lshlrev_b32 v6, 3, v6",
         "v_lshl_add_u32 v6, v1, 8, v6", "s_lshl_b32 s15, s3, 13", "s_add_u32 s15, s15, 0x10000", "v_add_u32 v6, s15, v6"])
    XR = lambda cb, jj: 96 + (cb * 2 + jj) * 2
    for cb in range(8):
        A.e([f"v_xor_b32 v7, {2*cb}, v5", "v_lshl_add_u32 v7, v7, 4, v6",
             f"ds_read_b64 {a(XR(cb,0),2)}, v7", f"ds_read_b64 {a(XR(cb,1),2)}, v7 offset:4096"])
    for n in range(16):
        jj, cb = n // 8, n % 8
        b = 32 + (cb * 4 + jj) * 4; y = YS(cb, jj); xa = XR(cb, jj); T0 = 8 + 4 * (n % 2)
        if n == 0: A.e("s_waitcnt lgkmcnt(0)")
        A.e([f"v_accvgpr_read_b32 v{T0+1}, a{xa}", f"v_accvgpr_read_b32 v{T0+3}, a{xa+1}"])
        A.e([f"v_pk_add_f32 v[{b+r_}:{b+r_+1}], v[{b+r_}:{b+r_+1}], v[{b+8+r_}:{b+9+r_}]" for r_ in (0, 2)])
        A.e([f"v_lshlrev_b32 v{T0}, 16, v{T0+1}", f"v_and_b32 v{T0+1}, 0xffff0000, v{T0+1}",
             f"v_lshlrev_b32 v{T0+2}, 16, v{T0+3}", f"v_and_b32 v{T0+3}, 0xffff0000, v{T0+3}"])
        A.e([f"v_pk_fma_f32 v[{b+r_}:{b+r_+1}], v[{b+r_}:{b+r_+1}], v[{y+r_}:{y+r_+1}], v[{T0+r_}:{T0+r_+1}]" for r_ in (0, 2)])
    A.e(["s_cmp_eq_u32 s91, 2", f"s_cbranch_scc1 {L('have')}", SPINB])
    A.label(L("poll"))
    A.e([f"buffer_load_dwordx2 v[30:31], v29, s[48:51], s93 offen {WT}", "s_waitcnt vmcnt(0)",
         "s_sub_u32 s12, s12, 1", f"s_cbranch_scc1 {L('got')}",
         "v_cmp_ne_u64 vcc, s[98:99], v[30:31]", f"s_cbranch_vccz {L('got')}", "s_sleep 1", f"s_branch {L('poll')}"])
    A.label(L("got"))
    A.e(s2loads)
    A.label(L("have"))
    for jj in range(2):
        for i in range(4):
            o = YP(jj, i)
            A.e("s_waitcnt vmcnt(7)")
            for h in range(2):
                cb = 2 * i + h
                b = 32 + (cb * 4 + jj) * 4; y = YS(cb, jj); T0 = 8 + 4 * h
                A.e([f"v_lshlrev_b32 v{T0}, 16, v{o+2*h}", f"v_and_b32 v{T0+1}, 0xffff0000, v{o+2*h}",
                     f"v_lshlrev_b32 v{T0+2}, 16, v{o+2*h+1}", f"v_and_b32 v{T0+3}, 0xffff0000, v{o+2*h+1}"])
                A.e([f"v_pk_fma_f32 v[{b+r_}:{b+r_+1}], v[{T0+r_}:{T0+r_+1}], v[{y+r_}:{y+r_+1}], v[{b+r_}:{b+r_+1}]" for r_ in (0, 2)])
                A.e([f"v_cvt_pk_bf16_f32 v{o+2*h}, v{b}, v{b+1}", f"v_cvt_pk_bf16_f32 v{o+2*h+1}, v{b+2}, v{b+3}"])
            A.e(["s_nop 1", f"v_permlane32_swap_b32 v{o}, v{o+2}", f"v_permlane32_swap_b32 v{o+1}, v{o+3}", "s_nop 0",
                 f"v_permlane16_swap_b32 v{o}, v{o+2}", f"v_permlane16_swap_b32 v{o+1}, v{o+3}",
                 f"buffer_store_dwordx4 {v(o,4)}, v{27+jj}, s[68:71], s94 offen offset:{i*64}"])
    A.label(L("fin"))
    if stamps:
        srd(A, 40, P_WS, 0x100000, WS_STAMP)
        A.e(["s_waitcnt vmcnt(0)", "s_memtime s[76:77]", "s_memrealtime s[78:79]", "s_waitcnt lgkmcnt(0)",
             "v_mov_b32 v8, s76", "v_mov_b32 v9, s78", "v_mov_b32 v10, s72", "s_getreg_b32 s10, hwreg(HW_REG_XCC_ID)", "v_mov_b32 v11, s10",
             "s_lshl_b32 s10, s2, 2", "s_add_u32 s10, s10, s3", "s_lshl_b32 s10, s10, 7", "v_mov_b32 v1, s10", "s_mov_b64 exec, 1"])
        for k in range(4): A.e(f"buffer_store_dwordx4 a[{240+4*k}:{243+4*k}], v1, s[40:43], 0 offen offset:{16*k}")
        A.e("buffer_store_dwordx4 v[8:11], v1, s[40:43], 0 offen offset:64")
    if dbgst:
        srd(A, 40, P_DBG, 256)
        A.e(["s_and_b32 s10, s2, 0xfb", "s_or_b32 s10, s10, s3", "s_cmp_lg_u32 s10, 0", f"s_cbranch_scc1 {L('end')}", "s_mov_b64 exec, 1",
             "v_accvgpr_read_b32 v12, a241", "s_lshl_b32 s10, s2, 3", "v_mov_b32 v1, s10"])
        for k in range(1, 8): A.e([f"v_accvgpr_read_b32 v13, a{241+2*k}", f"v_sub_u32 v{15+k}, v13, v12"])
        A.e(["v_sub_u32 v23, v9, v12", "buffer_store_dwordx4 v[16:19], v1, s[40:43], 0 offen", "buffer_store_dwordx4 v[20:23], v1, s[40:43], 0 offen offset:16"])
    A.label(L("end"))
    A.e("s_endpgm")
    for tag, reg, addr, off in spins:
        A.label(L("spin" + tag))
        A.e(SPINB)
        A.label(L("spinl" + tag))
        A.e(["s_sleep 2", f"buffer_load_dwordx2 v[{reg}:{reg+1}], v{addr}, s[48:51], {off} offen {WT}", "s_waitcnt vmcnt(0)",
             "s_sub_u32 s12, s12, 1", f"s_cbranch_scc1 {L('ok' + tag)}",
             f"v_cmp_ne_u64 vcc, s[98:99], v[{reg}:{reg+1}]", f"s_cbranch_vccnz {L('spinl' + tag)}", f"s_branch {L('ok' + tag)}"])
    for T in rare_sites:
        A.label(L("rs%d" % T))
        A.e([f"s_call_b64 s[6:7], {L('rare%d' % (T & 1))}", f"s_branch {L('rb%d' % T)}"])
    for b in range(2):
        A.label(L("rare%d" % b))
        A.e(["s_nop 15", "s_nop 15"])
        for mu in range(2):
            S = SB(b, mu); S2 = SB(b ^ 1, mu)
            A.e(rowmax(S, VT, VT + 2))
            A.e([f"v_max_f32 v{VT}, 0, v{VT}", f"v_exp_f32 v{VT+1}, -v{VT}"])
            A.e([f"v_sub_f32 v{NM(mu)+k}, v{NM(mu)+k}, v{VT}" for k in range(16)])
            A.e([f"v_sub_f32 v{S+k}, v{S+k}, v{VT}" for k in range(16)])
            A.e([f"v_sub_f32 v{S2+k}, v{S2+k}, v{VT}" for k in range(16)])
            A.e(f"v_mul_f32 v{VL+mu}, v{VL+mu}, v{VT+1}")
            for i in range(4):
                o = (i * 2 + mu) * 16
                for k in range(16):
                    A.e([f"v_accvgpr_read_b32 v{VT+2}, a{o+k}", f"v_mul_f32 v{VT+2}, v{VT+2}, v{VT+1}", f"v_accvgpr_write_b32 a{o+k}, v{VT+2}"])
            for k in range(0, 16, 2):
                A.e([f"v_exp_f32 v{EB}, v{S+k}", f"v_exp_f32 v{EB+1}, v{S+k+1}", "s_nop 0",
                     f"v_cvt_pk_bf16_f32 v{PB(b,mu)+k//2}, v{EB}, v{EB+1}", f"v_add_f32 v{EB}, v{EB}, v{EB+1}",
                     f"v_mov_b32 v{VTS+mu}, v{EB}" if k == 0 else f"v_add_f32 v{VTS+mu}, v{VTS+mu}, v{EB}"])
        A.e(["s_nop 3", "s_setpc_b64 s[6:7]"])
    A.label(f"{name}_codeend")
    return (name, 512, 256, "(256,1,1)", "(256,1,1)", 163840)
```

```python
from common import *
import struct, math
QSCALE = struct.unpack("<I", struct.pack("<f", math.log2(math.e) / math.sqrt(128.0)))[0]
THR = 0x49800000
FL_L, FL_H, FL_O, FL_P, FL_SZ = 0x4000, 0x6000, 0x8000, 0xA000, 0xE000
G_BASE, G_SF, G_PF, G_SZ = 0x2200000, 0x600000, 0xA00000, 0x1200000
SS_UNUSED = 28
N1S, N1Y = 4, 3
WT = "sc0 sc1"
SPINB = "s_mov_b32 s12, 0x40000"

def kf(A, name="kf_kernel", stamps=0, thr=THR, vpos=(6, 10, 14, 18, 22, 26, 29, 30), barpos=3, apol=WT, pfT=0, pfG=0, cpf=3, ln=1, dbgst=0, pst=0, psleep=1, hwb=0, cap=24, dsl=6, vcap=8, ost=None, oflt=3, rotm=(1, 2), xpol=None, gdbg=0, pfs=7, pfA=2, rot0=1, vat=None, pft=3, tail=8, kmap=1, SS=None, hfT=2, barm=47, gsl=10, sp1=(2, 44), sp2=(54, 88), vmod=2, lead=0, nf=8, oft=14, oin=8, hdf=0, tlb=3):
    L = lambda s: f"{name}_{s}"
    if SS is None: SS = 32 if tail == 8 else 28
    if vat is None: vat = tail - 7
    if ost is None: ost = (8, 8)[:2 - oin // 8]
    vq = Q("vmcnt", 63); dq = Q("lgkmcnt", 15, gsl)
    def stamp(i, pro=0):
        if not stamps: return
        if pst == 1:
            if pro == 0 and i == 1: i = 7
            elif not (pro == 1 or i == 0): return
        elif pst == 2:
            if pro == 0 and i == 5: i = 1
            elif pro == 0 and i == 6: i = 2
            elif not (pro == 2 or (pro == 0 and i in (0, 7))): return
        elif pst == 3:
            if pro or i != 1: return
            i = 0
        elif pro: return
        A.e(["s_memtime s[76:77]", "s_memrealtime s[78:79]", "s_waitcnt lgkmcnt(0)", "v_mov_b32 v30, s76", f"v_accvgpr_write_b32 a{240+2*i}, v30",
             "v_mov_b32 v30, s78", f"v_accvgpr_write_b32 a{241+2*i}, v30"]); dq.drain()
    A.raw(kernel_head(name))
    A.e(["s_cmp_ge_u32 s2, 256", f"s_cbranch_scc1 {L('end')}"])
    cpn = [0]
    def code_touch(vr, dst, raw=False):
        lab = L("pc%d" % cpn[0]); cpn[0] += 1
        pre = ["s_getpc_b64 s[76:77]", lab + ":", f"s_sub_u32 s76, s76, {lab}-{name}", "s_subb_u32 s77, s77, 0",
               "s_lshr_b32 s78, s2, 3", "s_lshl_b32 s78, s78, 11"] + ([f"v_and_b32 v{vr}, 0xc0, v0", f"v_lshlrev_b32 v{vr+1}, 3, v{vr}"] if raw else ["s_lshl_b32 s79, s3, 9", "s_add_u32 s78, s78, s79"]) + [
               f"v_and_b32 v{vr}, 7, v0", f"v_mul_u32_u24 v{vr}, 0x4080, v{vr}", f"v_and_b32 v{vr}, 0x10180, v{vr}"] + ([f"v_add_u32 v{vr}, v{vr+1}, v{vr}"] if raw else []) + [
               f"v_add_u32 v{vr}, s78, v{vr}", f"v_min_u32 v{vr}, {name}_codeend-{name}-4, v{vr}"]
        return (pre, f"global_load_dword {dst}, v{vr}, s[76:77]", ("C", 0), [])
    stamp(0)
    A.e(LOADARGS)
    if cpf:
        op = code_touch(30, "a238", raw=True); A.e(op[0]); A.e(op[1])
    A.e(["v_lshrrev_b32 v1, 6, v0", "v_and_b32 v0, 63, v0", "s_nop 0", "v_readfirstlane_b32 s3, v1",
         "s_and_b32 s10, s2, 7", "s_lshr_b32 s11, s2, 3", "s_and_b32 s4, s11, 7", "s_lshr_b32 s11, s11, 3",
         "s_lshl_b32 s5, s10, 2", "s_add_u32 s5, s5, s11",
         f"s_mul_i32 s14, s11, {rotm[1]}", f"s_mul_i32 s12, s4, {rotm[0]}", "s_add_u32 s14, s14, s12"])
    if ln:
        A.e(["v_and_b32 v40, 7, v0", "v_lshrrev_b32 v41, 3, v0", "s_lshl_b32 s12, s3, 5", "v_add_u32 v41, s12, v41",
             "v_lshlrev_b32 v42, 11, v40", "v_lshl_add_u32 v42, v41, 4, v42",
             "s_lshl_b32 s12, s4, 5", "s_add_u32 s91, s12, s5", "s_lshl_b32 s12, s91, 14",
             "s_waitcnt lgkmcnt(0)"])
        srd(A, 64, P_X, 2048 * 2048)
        for i in range(4):
            A.e(f"buffer_load_dwordx4 v[{48+4*i}:{51+4*i}], v42, s[64:67], s12 offen offset:{128*i}"); vq.issue(("L", 0))
        if tlb & 1:
            srd(A, 68, P_WS, 0x3000000)
            A.e(["v_lshlrev_b32 v39, 21, v0", "buffer_load_dword a237, v39, s[68:71], 0 offen"])
        srd(A, 60, P_DBG, 256)
        A.e(["v_mov_b32 v47, 0", "s_or_b32 s12, s2, s3", "s_cmp_lg_u32 s12, 0", f"s_cbranch_scc1 {L('nn')}",
             "s_memrealtime s[12:13]", "s_waitcnt lgkmcnt(0)", "s_or_b32 s12, s12, 1", "v_mov_b32 v38, s12", "v_mov_b32 v39, s13", "s_mov_b64 exec, 1",
             f"buffer_store_dwordx2 v[38:39], v47, s[60:63], 0 offen {WT}", "s_mov_b64 exec, -1"])
        A.label(L("nn"))
    A.e([
         "v_lshrrev_b32 v30, 4, v0", "v_and_b32 v31, 15, v0",
         "s_lshr_b32 s12, s3, 1", "s_lshl_b32 s12, s12, 1",
         "v_lshlrev_b32 v1, 2, v30", "v_or_b32 v1, s12, v1", "v_xor_b32 v31, v31, v1",
         "s_lshl_b32 s12, s3, 2", "v_add_u32 v30, s12, v30",
         "v_lshlrev_b32 v2, 13, v30", "s_lshl_b32 s12, s5, 8", "v_lshl_add_u32 v2, v31, 4, v2", "v_add_u32 v2, s12, v2",
         "v_lshrrev_b32 v1, 1, v31", "v_min_u32 v1, 6, v1", "s_and_b32 s13, s5, 1", "v_add_u32 v1, s13, v1",
         "v_cmp_eq_u32 vcc, 7, v1", "v_and_b32 v31, 1, v31", "s_nop 0", "v_cndmask_b32 v1, v1, 0, vcc",
         "v_lshl_or_b32 v1, v1, 1, v31",
         "v_mul_u32_u24 v3, 7168, v30", "s_mul_i32 s12, s5, 224", "v_add_u32 v3, s12, v3", "v_lshl_add_u32 v3, v1, 4, v3",
         "s_lshl_b32 s12, s4, 4", "s_lshl_b32 s13, s3, 2", "s_add_u32 s15, s12, s13",
         "s_lshl_b32 s12, s15, 15", "v_lshlrev_b32 v4, 4, v0", "v_add_u32 v5, s12, v4",
         "v_add_u32 v6, 0x8000, v5", "v_add_u32 v7, 0x10000, v5", "v_add_u32 v8, 0x18000, v5",
         "s_mul_i32 s10, s3, 3072", "s_add_u32 s10, s10, 65536", "s_mov_b32 s11, 0", "s_mov_b32 s75, 0",
         "s_waitcnt lgkmcnt(0)"])
    srd(A, 44, P_WQ, 1024 * 4096 * 2)
    srd(A, 48, P_WG, 1024 * 3584 * 2 + 1024, -1024)
    srd(A, 52, P_WU, 1024 * 3584 * 2 + 2048, -2048)
    srd(A, 40, P_WS, SZ_XF, WS_XF)

    def acc(blk, j):
        if blk < 14: return v(32 + (blk * 4 + j) * 4, 4)
        return a(((blk - 14) * 4 + j) * 4, 4)
    Afr = lambda blk, h=None: a(192 + (blk % 11) * 4, 4) if h is None else a(192 + (blk % 11) * 4 + 2 * h, 2)
    Bfr = lambda slot, j: a(128 + slot * 16 + j * 4, 4)
    if lead:
        NEXTK = ["s_sub_u32 s12, s11, s14", "s_and_b32 s12, s12, 7", f"s_cmp_lt_u32 s11, {32-lead}", "s_cselect_b32 s12, s12, 1",
                 f"s_add_u32 s13, s11, {lead}", "s_cmp_eq_u32 s12, 0", "s_cselect_b32 s12, s13, s75", "s_subb_u32 s75, s75, -1",
                 f"s_sub_u32 s13, s75, {lead}", "s_cselect_b32 s6, 1, 0", "s_sub_u32 s13, s13, s14", "s_and_b32 s13, s13, 7", "s_or_b32 s13, s13, s6",
                 "s_cmp_eq_u32 s13, 0", "s_addc_u32 s75, s75, 0",
                 "s_add_u32 s11, s11, 1", "s_lshl_b32 s6, s12, 18", "s_mul_i32 s7, s12, 229376", "s_lshl_b32 s8, s12, 10"]
    else:
        NEXTK = ([] if rot0 == 7 else ["s_cmp_lt_u32 s11, 8", f"s_cselect_b32 s13, {rot0}, 7", "s_and_b32 s13, s13, s14"]) + ["s_add_u32 s12, s11, s14" if rot0 == 7 else "s_add_u32 s12, s11, s13", "s_and_b32 s12, s12, 7", "s_and_b32 s13, s11, 0x18", "s_or_b32 s12, s12, s13",
                 "s_add_u32 s11, s11, 1", "s_lshl_b32 s6, s12, 18", "s_mul_i32 s7, s12, 229376", "s_lshl_b32 s8, s12, 10"]
    def d_ops(p, h):
        base = (p % 4) * 24576 + h * 12288
        return [((NEXTK if h == 0 else []) + [f"s_add_u32 m0, s10, {base}"], "buffer_load_dwordx4 v2, s[44:47], s6 offen lds", ("D", p, h), ["s_add_u32 s6, s6, 131072"] if h == 0 else []),
                ([], "buffer_load_dwordx4 v3, s[48:51], s7 offen offset:1024 lds", ("D", p, h), []),
                ([], "buffer_load_dwordx4 v3, s[52:55], s7 offen offset:2048 lds", ("D", p, h), ["s_add_u32 s7, s7, 114688"] if h == 0 else [])]
    def x_ops(p):
        return [([], f"buffer_load_dwordx4 {Bfr(p % 4, j)}, v{5+j}, s[40:43], s8 offen {apol if xpol is None else xpol}", ("X", p), []) for j in range(4)]
    def rd_ops(t, blk):
        part, cb = (1 + (blk & 1), blk >> 1) if blk < 14 else (0, blk - 14)
        slot = t % 4
        reg = (9 if slot < 2 else 17) + cb
        off = (slot % 2) * 24576 + part * 1024
        return [(f"ds_read_b64_tr_b16 {Afr(blk,0)}, v{reg} offset:{off}", ("A", t, blk)),
                (f"ds_read_b64_tr_b16 {Afr(blk,1)}, v{reg} offset:{off+3072}", ("A", t, blk))]
    def emit_vm(op, E, nop=False):
        pre, ins, tag, post = op
        E(pre)
        if pre and nop: E("s_nop 0")
        E(ins); vq.issue(tag); E(post)
    def kv_ops(kind, P):
        reg = 0 if kind == "K" else 65536
        sr = "s[64:67]" if kind == "K" else "s[68:71]"
        ops = []
        for i in range(4):
            ops.append(([f"s_add_u32 m0, s92, {reg + (P % 4) * 16384}", f"s_add_u32 s94, s93, {P * 16384}"] if i == 0 else [],
                        f"buffer_load_dwordx4 v{25+i if kind == 'K' else 29}, {sr}, s94 offen offset:{i*1024} lds", (kind, P), []))
        return ops
    def pf_op(k):
        return [([], f"buffer_load_dword a239, v31, {'s[72:75], s96' if k == 0 else 's[80:83], s97'} offen", ("P", 0), [f"s_add_u32 s{96+k}, s{96+k}, 1024"])]
    for op in d_ops(0, 0) + d_ops(0, 1): emit_vm(op, A.e, True)
    A.e("s_mov_b32 s88, s8")
    srd(A, 84, P_WS, FL_SZ, WS_FLAG)
    A.e(["s_lshr_b32 s12, s91, 1", "s_lshl_b32 s12, s12, 15", "s_and_b32 s13, s91, 1", "s_lshl_b32 s13, s13, 7", "s_add_u32 s90, s12, s13",
         "v_lshlrev_b32 v43, 8, v41", "v_lshl_add_u32 v43, v40, 4, v43",
         "v_lshlrev_b32 v44, 5, v40", "s_lshl_b32 s12, s3, 3", "v_add_u32 v45, s12, v44",
         "s_lshl_b32 s91, s91, 5", f"s_add_u32 s91, s91, {FL_L}"])
    A.e([f"v_mov_b32 v{i}, 0" for i in range(132, 144)])
    A.e(f"buffer_load_dwordx2 v[128:129], v47, s[60:63], 0 offen {WT}"); vq.issue(("N", 0))
    A.e([mfma32(a(i, 16), v(132, 4), v(132, 4), "0") for i in range(0, 128, 16)] + [mfma32(v(i, 16), v(132, 4), v(132, 4), "0") for i in range(144, 256, 16)])
    stamp(1, 1)
    A.e(vq.need(("L", 0)))
    stamp(2, 1)
    X0 = 64
    for i in range(16):
        A.e([f"v_lshlrev_b32 v{X0+2*i}, 16, v{48+i}", f"v_and_b32 v{X0+1+2*i}, 0xffff0000, v{48+i}"])
    def lanesum(src):
        A.e(["s_nop 1", f"v_add_f32_dpp v{src}, v{src}, v{src} row_ror:8 row_mask:0xf bank_mask:0xf",
             f"v_mov_b32 v46, v{src}", "s_nop 1", f"v_permlane16_swap_b32 v46, v{src}", f"v_add_f32 v{src}, v46, v{src}",
             f"v_mov_b32 v46, v{src}", "s_nop 1", f"v_permlane32_swap_b32 v46, v{src}", f"v_add_f32 v{src}, v46, v{src}"])
    A.e([f"v_pk_add_f32 v[32:33], v[{X0}:{X0+1}], v[{X0+2}:{X0+3}]", f"v_pk_add_f32 v[34:35], v[{X0+4}:{X0+5}], v[{X0+6}:{X0+7}]"])
    A.e([f"v_pk_add_f32 v[{32+2*(i%2)}:{33+2*(i%2)}], v[{32+2*(i%2)}:{33+2*(i%2)}], v[{X0+2*i}:{X0+2*i+1}]" for i in range(4, 16)])
    A.e(["v_pk_add_f32 v[32:33], v[32:33], v[34:35]", "v_add_f32 v32, v32, v33"])
    lanesum(32)
    A.e(["v_mul_f32 v32, 0x3b800000, v32", "v_mov_b32 v34, v32", "v_mov_b32 v35, v32"])
    for i in range(16):
        A.e(f"v_pk_add_f32 v[{96+2*i}:{97+2*i}], v[{X0+2*i}:{X0+2*i+1}], v[34:35] neg_lo:[0,1] neg_hi:[0,1]")
    A.e(["v_pk_mul_f32 v[34:35], v[96:97], v[96:97]", "v_pk_mul_f32 v[36:37], v[98:99], v[98:99]"])
    for i in range(2, 16):
        r_ = 34 + 2 * (i % 2)
        A.e(f"v_pk_fma_f32 v[{r_}:{r_+1}], v[{96+2*i}:{97+2*i}], v[{96+2*i}:{97+2*i}], v[{r_}:{r_+1}]")
    A.e(["v_pk_add_f32 v[34:35], v[34:35], v[36:37]", "v_add_f32 v33, v34, v35"])
    lanesum(33)
    A.e(["ds_write_b64 v45, v[32:33]", "s_waitcnt lgkmcnt(0)", "s_barrier",
         "ds_read_b128 v[96:99], v44", "ds_read_b128 v[100:103], v44 offset:16", "s_waitcnt lgkmcnt(0)",
         "v_add_f32 v32, v96, v98", "v_add_f32 v33, v100, v102", "v_add_f32 v34, v97, v99", "v_add_f32 v35, v101, v103",
         "v_add_f32 v32, v32, v33", "v_add_f32 v34, v34, v35", "v_mul_f32 v32, 0.25, v32" if False else "v_mul_f32 v32, 0x3e800000, v32",
         "v_sub_f32 v96, v96, v32", "v_sub_f32 v98, v98, v32", "v_sub_f32 v100, v100, v32", "v_sub_f32 v102, v102, v32",
         "v_mul_f32 v35, v96, v96", "v_fmac_f32 v35, v98, v98", "v_fmac_f32 v35, v100, v100", "v_fmac_f32 v35, v102, v102",
         "v_mul_f32 v34, 0x3a800000, v34", "v_fmac_f32 v34, 0x3e800000, v35"])
    A.e(["v_cvt_pk_bf16_f32 v34, v34, v32", "v_and_b32 v32, 0xffff0000, v34", "v_lshlrev_b32 v34, 16, v34",
         "v_add_f32 v34, 0x3727c5ac, v34", "v_cvt_pk_bf16_f32 v34, v34, v34", "v_lshlrev_b32 v34, 16, v34",
         "v_sqrt_f32 v34, v34", "v_mov_b32 v33, v32", "v_cvt_pk_bf16_f32 v34, v34, v34", "v_lshlrev_b32 v34, 16, v34",
         "v_rcp_f32 v34, v34", "s_nop 0", "v_mov_b32 v35, v34"])
    for q4 in range(4):
        for i in range(4 * q4, 4 * q4 + 4):
            x = X0 + 2 * i
            A.e([f"v_pk_add_f32 v[{x}:{x+1}], v[{x}:{x+1}], v[32:33] neg_lo:[0,1] neg_hi:[0,1]",
                 f"v_cvt_pk_bf16_f32 v{48+i}, v{x}, v{x+1}",
                 f"v_lshlrev_b32 v{x}, 16, v{48+i}", f"v_and_b32 v{x+1}, 0xffff0000, v{48+i}",
                 f"v_pk_mul_f32 v[{x}:{x+1}], v[{x}:{x+1}], v[34:35]",
                 f"v_cvt_pk_bf16_f32 v{48+i}, v{x}, v{x+1}"])
        A.e(f"buffer_store_dwordx4 v[{48+4*q4}:{51+4*q4}], v43, s[40:43], s90 offen offset:{2048*(q4%2)} {WT}"); vq.issue(("S", 0))
        if q4 == 1: A.e("s_add_u32 s90, s90, 4096")
    stamp(3, 1)
    A.e(vq.need(("N", 0)))
    A.e(SPINB)
    A.label(L("pollN"))
    A.e(["v_readfirstlane_b32 s98, v128", "v_readfirstlane_b32 s99, v129", "s_cmp_lg_u32 s98, 0", f"s_cbranch_scc1 {L('gotN')}",
         "s_sub_u32 s12, s12, 1", f"s_cbranch_scc1 {L('gotN')}",
         f"buffer_load_dwordx2 v[128:129], v47, s[60:63], 0 offen {WT}", "s_waitcnt vmcnt(0)", f"s_branch {L('pollN')}"])
    A.label(L("gotN"))
    A.e([mfma32(v(i, 16), v(132, 4), v(132, 4), "0") for i in range(64, 128, 16)])
    A.e(vq.drain()); A.e("s_barrier")
    stamp(4, 1)
    A.e(["s_cmp_lg_u32 s3, 0", f"s_cbranch_scc1 {L('nf')}", "s_mov_b64 exec, 1",
         f"buffer_store_dwordx2 v[128:129], v47, s[84:87], s91 offen {WT}", "s_mov_b64 exec, -1"])
    A.label(L("nf"))
    for op in d_ops(1, 0) + d_ops(1, 1): emit_vm(op, A.e, True)
    A.e("s_mov_b32 s89, s8")
    for op in d_ops(2, 0) + d_ops(2, 1): emit_vm(op, A.e, True)
    A.e("s_mov_b32 s90, s8")
    if tlb & 2:
        srd(A, 68, P_OUT, 2048 * 2048)
        A.e(["v_lshlrev_b32 v1, 21, v0"] + [f"buffer_load_dword a237, v1, s[{r}:{r+3}], 0 offen offset:2048" for r in (44, 48, 52, 68)])
    A.e([mfma32(v(i, 16), v(132, 4), v(132, 4), "0") for i in (32, 48)])
    A.e(["v_lshrrev_b32 v1, 4, v0", "v_mul_u32_u24 v30, 6144, v1", "v_and_b32 v1, 1, v1",
         "v_bfe_u32 v31, v0, 2, 2", "v_lshl_add_u32 v30, v31, 8, v30", "v_lshl_or_b32 v31, v31, 1, v1",
         "v_and_b32 v1, 3, v0", "v_lshl_add_u32 v30, v1, 3, v30", "v_add_u32 v30, 0x10000, v30"])
    for cb in range(8):
        A.e([f"v_xor_b32 v1, {cb}, v31", f"v_lshl_add_u32 v{9+cb}, v1, 5, v30", f"v_add_u32 v{17+cb}, 49152, v{9+cb}"])
    for blk in range(11):
        for ins, tg in rd_ops(0, blk): A.e(ins); dq.issue(tg)
    srd(A, 64, P_K, 4 * 2048 * 256)
    srd(A, 68, P_V, 4 * 2048 * 256)
    srd(A, 56, P_WS, SZ_HF, WS_HF)
    srd(A, 60, P_WS, SZ_OF, WS_OF)
    A.e(["v_lshrrev_b32 v30, 4, v0", "v_and_b32 v31, 15, v0", "v_xor_b32 v1, v31, v30"])
    for i in range(4):
        A.e([f"v_xor_b32 v{25+i}, {4*i}, v1", f"v_lshlrev_b32 v{25+i}, 4, v{25+i}", f"v_lshl_add_u32 v{25+i}, v30, 8, v{25+i}"])
    A.e(["v_lshlrev_b32 v1, 2, v30", "v_xor_b32 v1, v31, v1", "v_lshlrev_b32 v1, 4, v1", "v_lshl_add_u32 v29, v30, 8, v1",
         "s_lshr_b32 s12, s5, 3", "s_lshl_b32 s12, s12, 19", "s_lshl_b32 s92, s3, 12",
         "s_add_u32 s93, s12, s92", f"s_add_u32 s93, s93, {1536*256}",
         "s_mov_b32 s9, 7"])
    if pfG in (1, 2):
        srd(A, 72, P_WO, 4096 * 2048); srd(A, 80, P_WD, 3584 * 2048)
        A.e(["s_lshl_b32 s12, s2, 2", "s_add_u32 s12, s12, s3", "s_lshl_b32 s96, s12, 13", "s_mul_i32 s97, s12, 7168",
             f"v_and_b32 v31, {7 if pfs == 7 else 3}, v0", f"v_lshlrev_b32 v31, {pfs}, v31"])
    stamp(5, 1)
    A.e(["s_cmp_lg_u32 s3, 0", f"s_cbranch_scc1 {L('gotL')}",
         "v_and_b32 v1, 31, v0", "v_lshlrev_b32 v1, 5, v1", "s_lshl_b32 s95, s4, 10", f"s_add_u32 s95, s95, {FL_L}", SPINB])
    A.label(L("pollL"))
    A.e([f"buffer_load_dwordx2 v[128:129], v1, s[84:87], s95 offen {WT}", "s_waitcnt vmcnt(0)",
         "s_sub_u32 s12, s12, 1", f"s_cbranch_scc1 {L('gotL')}",
         "v_cmp_ne_u64 vcc, s[98:99], v[128:129]", f"s_cbranch_vccz {L('gotL')}", f"s_sleep {psleep}", f"s_branch {L('pollL')}"])
    A.label(L("gotL"))
    A.e("s_barrier")
    stamp(6, 1)
    for p_, sr in ((0, "s88"), (1, "s89"), (2, "s90")):
        for op in x_ops(p_): A.e(op[1].replace("s8 offen", f"{sr} offen")); vq.issue(op[2])
    for op in d_ops(3, 0): emit_vm(op, A.e, True)
    A.e([f"v_mov_b32 v{i}, 0" for i in (128, 129, 130, 131)])
    A.e(vq.need(("X", 2)))
    stamp(1)

    BARM = barm
    def step(t, E, first_ops=None, second_ops=None, last=False):
        v1 = d_ops(t + 3, 1) + x_ops(t + 3) if first_ops is None else first_ops
        v2_ = d_ops(t + 4, 0) if second_ops is None else second_ops
        if pfG == 1 and second_ops is None and t % 2 == 0: v2_ = v2_ + pf_op((t // 2) % 2)
        if pfG == 2 and second_ops is None and t == 0: v2_ = v2_ + pf_op(0)
        if gdbg & 1: v1 = [o for o in v1 if o[2][0] != "X"]
        if gdbg & 2:
            v1 = [o for o in v1 if o[2][0] != "D"]; v2_ = [o for o in v2_ if o[2][0] != "D"]
        def spread(n, lo, hi):
            c = [m for m in range(lo, hi) if m % 4 == vmod]
            if n == 0: return []
            return [c[(i * len(c)) // n] for i in range(n)]
        sched = list(zip(spread(len(v1), *sp1), v1)) + list(zip(spread(len(v2_), max(sp2[0], BARM + 3), sp2[1]), v2_))
        pend = []; post = []; pre = list(sched[0][1][0]) if sched else []; vi = 0
        for m in range(88):
            blk, j = m // 4, m % 4
            if m == 0: E(vq.need(("X", t)))
            if j == 0: E(dq.need(("A", t, blk)))
            E(mfma16(acc(blk, j), Afr(blk), Bfr(t % 4, j)))
            if m == BARM:
                E(vq.need(("D", t + 1, 1))); E(dq.drain()); E("s_barrier")
            if j == 3:
                if blk < 11: pend += rd_ops(t, blk + 11)
                elif not last: pend += rd_ops(t + 1, blk - 11)
            if vi < len(sched) and m == sched[vi][0]:
                assert not pre, (t, m, pre)
                op = sched[vi][1]
                E(op[1]); vq.issue(op[2]); post += op[3]; vi += 1
                if vi < len(sched): pre = list(sched[vi][1][0])
            else:
                used = 0
                while pend and used < (2 if len(pend) > 2 else 1) and not (pend[0][1][1] > t and m < BARM):
                    ins, tag = pend.pop(0); E(ins); dq.issue(tag); used += 1
                while post and used < 2: E(post.pop(0)); used += 1
                while pre and used < 2 and not post and not (sched[vi][0] > BARM and m < BARM - 8): E(pre.pop(0)); used += 1
        for ins, tag in pend: E(ins); dq.issue(tag)
        E(post)
    for t in range(4): step(t, lambda x: None)
    vq.rebase(4); dq.rebase(4)
    A.raw(".p2align 6")
    A.label(L("loop"))
    for t in range(4): step(t, A.e)
    if pst == 3:
        A.e(["s_memtime s[76:77]", "s_memrealtime s[78:79]", "s_waitcnt lgkmcnt(0)", "v_cmp_eq_u32 vcc, s9, v0", "v_mov_b32 v1, s76", "s_nop 0", "v_cndmask_b32 v31, v31, v1, vcc", "v_mov_b32 v1, s78", "v_cndmask_b32 v30, v30, v1, vcc"])
    A.e(["s_sub_u32 s9, s9, 1", "s_cmp_lg_u32 s9, 0", f"s_cbranch_scc1 {L('loop')}"])
    if pst == 3:
        for k in range(1, 8):
            A.e([f"v_readlane_b32 s76, v31, {8-k}", f"v_readlane_b32 s78, v30, {8-k}", "s_nop 1", "v_mov_b32 v1, s76", f"v_accvgpr_write_b32 a{240+2*k}, v1", "v_mov_b32 v1, s78", f"v_accvgpr_write_b32 a{241+2*k}, v1"])
    vq.rebase(4); dq.rebase(4)
    if cpf >= 2: emit_vm(code_touch(30, "a238"), A.e)
    step(0, A.e, None, kv_ops("K", 0) + kv_ops("K", 1))
    step(1, A.e, kv_ops("K", 2) + kv_ops("K", 3), kv_ops("V", 0) + kv_ops("V", 1))
    step(2, A.e, kv_ops("V", 2), kv_ops("V", 3) + (pf_op(0) if pfG in (1, 2) else []))
    step(3, A.e, [], [], last=True)
    stamp(2)

    HP = "" if hwb else WT
    A.e(["s_mul_i32 s6, s15, 114688", "s_mul_i32 s12, s5, 7", "s_add_u32 s12, s12, 1", "s_lshr_b32 s12, s12, 1", "s_lshl_b32 s12, s12, 10",
         "s_add_u32 s6, s6, s12",
         "s_and_b32 s13, s5, 1", "s_cmp_eq_u32 s13, 0", "s_mov_b32 s13, 0xfffffc08", "s_cselect_b32 s13, 0xc00, s13",
         "s_add_u32 s7, s6, s13",
         "s_mov_b32 s8, 0xbfb8aa3b", "s_mov_b32 s9, 0xbfb8aa3b"])
    def hblock(b, j, dst):
        g = 32 + ((2 * b) * 4 + j) * 4; u = g + 16
        out = []
        out += [f"v_pk_mul_f32 v[{g+r_}:{g+r_+1}], v[{g+r_}:{g+r_+1}], s[8:9]" for r_ in (0, 2)]
        out += [f"v_exp_f32 v{g+r_}, v{g+r_}" for r_ in range(4)]
        out += [f"v_pk_add_f32 v[{g+r_}:{g+r_+1}], v[{g+r_}:{g+r_+1}], 1.0 op_sel_hi:[1,0]" for r_ in (0, 2)]
        out += [f"v_rcp_f32 v{g+r_}, v{g+r_}" for r_ in range(4)]
        out += [f"v_pk_mul_f32 v[{g+r_}:{g+r_+1}], v[{g+r_}:{g+r_+1}], v[{u+r_}:{u+r_+1}]" for r_ in (0, 2)]
        out += [f"v_cvt_pk_bf16_f32 v{dst}, v{g}, v{g+1}", f"v_cvt_pk_bf16_f32 v{dst+1}, v{g+2}, v{g+3}"]
        return out
    for i in range(2):
        for j in range(4):
            dst = 32 + ((4 * i + 1) * 4 + j) * 4
            A.e(hblock(2 * i, j, dst)); A.e(hblock(2 * i + 1, j, dst + 2))
            A.e([f"s_add_u32 s13, s6, {j*114688}", f"buffer_store_dwordx4 {v(dst,4)}, v4, s[56:59], s13 offen offset:{i*1024} {HP}"]); vq.issue(("H", 0))
    hrest = []; hdef = []
    if not hdf:
        for j in range(4):
            dst = 32 + (9 * 4 + j) * 4
            A.e(hblock(4, j, dst) + hblock(5, j, dst + 2) + [f"s_add_u32 s13, s6, {j*114688}", f"buffer_store_dwordx4 {v(dst,4)}, v4, s[56:59], s13 offen offset:2048 {HP}"]); vq.issue(("H", 0))
            dst = 32 + (13 * 4 + j) * 4
            A.e(hblock(6, j, dst) + [f"s_add_u32 s13, s7, {j*114688}", f"buffer_store_dwordx2 {v(dst,2)}, v4, s[56:59], s13 offen {HP}"]); vq.issue(("H", 0))
    for j in range(4 if hdf else 0):
        dst = 32 + (9 * 4 + j) * 4
        hrest += hblock(4, j, dst) + hblock(5, j, dst + 2) + [f"v_accvgpr_write_b32 a{192+4*j+k}, v{dst+k}" for k in range(4)]
        hdef.append(([f"s_add_u32 s90, s14, {j*114688}"], f"buffer_store_dwordx4 {a(192+4*j,4)}, v4, s[56:59], s90 offen offset:2048 {HP}", ("H", 0), []))
    for j in range(4 if hdf else 0):
        dst = 32 + (13 * 4 + j) * 4
        hrest += hblock(6, j, dst) + [f"v_accvgpr_write_b32 a{208+2*j+k}, v{dst+k}" for k in range(2)]
        hdef.append(([f"s_add_u32 s90, s4, {j*114688}"], f"buffer_store_dwordx2 {a(208+2*j,2)}, v4, s[56:59], s90 offen {HP}", ("H", 0), []))
    QF = lambda mu, t: 32 + (mu * 8 + t) * 4
    SB = lambda b, mu: 96 + (b * 2 + mu) * 16
    NM = lambda mu: 160 + mu * 16
    PB = lambda b, mu: 192 + (b * 2 + mu) * 8
    EB = 224; VL = 232; VTS = 234; VT = 236
    A.e([f"s_mov_b32 s12, {QSCALE:#x}", f"s_mov_b32 s13, {QSCALE:#x}", f"s_mov_b32 s95, {thr:#x}"])
    for t in range(8):
        for mu in range(2):
            tmp = 96 + ((t * 2 + mu) % 4) * 8
            for x in range(2):
                src = (t * 4 + 2 * mu + x) * 4
                A.e([f"v_accvgpr_read_b32 v{tmp+4*x+r_}, a{src+r_}" for r_ in range(4)])
            A.e([f"v_pk_mul_f32 v[{tmp+2*k}:{tmp+2*k+1}], v[{tmp+2*k}:{tmp+2*k+1}], s[12:13]" for k in range(4)])
            q = QF(mu, t)
            A.e([f"v_cvt_pk_bf16_f32 v{q+k}, v{tmp+2*k}, v{tmp+2*k+1}" for k in range(4)])
            if (t * 2 + mu) > 0:
                pq = QF(*prev)
                A.e([f"v_permlane16_swap_b32 v{pq}, v{pq+2}", f"v_permlane16_swap_b32 v{pq+1}, v{pq+3}"])
            prev = (mu, t)
    A.e(["v_and_b32 v30, 31, v0", "v_lshrrev_b32 v31, 5, v0", "v_and_b32 v1, 15, v0", "v_xor_b32 v1, v1, v31",
         "v_lshlrev_b32 v30, 8, v30"])
    pq = QF(*prev)
    A.e([f"v_permlane16_swap_b32 v{pq}, v{pq+2}", f"v_permlane16_swap_b32 v{pq+1}, v{pq+3}"])
    for t in range(8):
        A.e([f"v_xor_b32 v{9+t}, {2*t}, v1", f"v_lshl_add_u32 v{9+t}, v{9+t}, 4, v30"])
    A.e(["v_bfe_u32 v1, v0, 2, 2", "v_lshlrev_b32 v30, 10, v31", "v_lshl_add_u32 v30, v1, 8, v30",
         "v_bfe_u32 v22, v0, 4, 1", "v_lshl_add_u32 v30, v22, 5, v30", "v_and_b32 v23, 3, v0", "v_lshl_add_u32 v30, v23, 3, v30",
         "v_add_u32 v30, 0x10000, v30"])
    for i in range(4):
        A.e([f"v_xor_b32 v23, {i}, v1", f"v_lshl_add_u32 v{17+i}, v23, 6, v30"])
    A.e(["v_lshlrev_b32 v21, 17, v22", "v_lshl_add_u32 v21, v31, 8, v21", "v_and_b32 v1, 15, v0", "v_lshl_add_u32 v21, v1, 4, v21"])
    Kf = lambda t: a(128 + t * 4, 4)
    Vf = lambda i, tp, h=None: a(160 + (i * 2 + tp) * 4, 4) if h is None else a(160 + (i * 2 + tp) * 4 + 2 * h, 2)
    Oacc = lambda i, mu: a((i * 2 + mu) * 16, 16)
    def k_reads(T): return [(f"ds_read_b128 {Kf(t)}, v{9+t} offset:{(T % 8) * 8192}", ("K", T, t)) for t in range(8)]
    def v_reads(T):
        return [(f"ds_read_b64_tr_b16 {Vf(i,tp,h)}, v{17+i} offset:{(T % 8) * 8192 + tp * 4096 + h * 2048}", ("V", T, i, tp))
                for i in range(4) for tp in range(2) for h in range(2)]
    def qk(T, c0):
        return [(mfma32(v(SB(T & 1, mu), 16), Kf(t), v(QF(mu, t), 4), (c0(mu) if t == 0 else None)), ("K", T, t)) for t in range(8) for mu in range(2)]
    def pv(T):
        return [(mfma32(Oacc(i, mu), Vf(i, tp), v(PB(T & 1, mu) + 4 * tp, 4), ("0" if (T == 0 and tp == 0) else None)), ("V", T, i, tp))
                for i in range(4) for tp in range(2) for mu in range(2)]
    A.e(vq.need(("V", 3))); A.e("s_barrier")
    dq.slack = 15
    for ins, tag in k_reads(0): A.e(ins); dq.issue(tag)
    A.e(hrest[:12]); hrest = hrest[12:]
    for ins, tag in qk(0, lambda mu: "0"):
        A.e(dq.need(tag, 4)); A.e(ins); A.e(hrest[:4]); hrest = hrest[4:]
    for ins, tag in k_reads(1): A.e(ins); dq.issue(tag)
    A.e(hrest)
    A.e((["s_and_b32 s12, s2, 7", "s_lshr_b32 s72, s12, 2", "s_and_b32 s13, s12, 1", "s_lshl_b32 s73, s4, 1", "s_add_u32 s73, s73, s13",
         "s_bfe_u32 s13, s12, 0x10001"] if kmap == 0 else
        ["s_and_b32 s72, s2, 1", "s_bfe_u32 s13, s2, 0x10001", "s_lshl_b32 s73, s4, 1", "s_add_u32 s73, s73, s13",
         "s_bfe_u32 s13, s2, 0x10002"]) + ["s_lshl_b32 s13, s13, 2", "s_lshr_b32 s74, s2, 6", "s_add_u32 s74, s74, s13",
         "s_lshr_b32 s12, s3, 1", "s_and_b32 s13, s3, 1",
         "s_cmp_eq_u32 s72, 0",
         f"s_cselect_b32 s8, {8*N1S}, {8*N1Y}", f"s_cselect_b32 s9, 0, {16*N1S}", "s_mul_i32 s8, s8, s12", "s_add_u32 s8, s8, s9",
         "s_cmp_eq_u32 s72, 0",
         f"s_cselect_b32 s75, {SS}, {64-SS}", f"s_cselect_b32 s96, 0, {2*SS}", "s_mul_i32 s75, s75, s12", "s_add_u32 s75, s75, s96",
         "s_lshl_b32 s9, s8, 10", "s_lshl_b32 s8, s8, 16",
         "s_lshl_b32 s96, s75, 10", "s_lshl_b32 s75, s75, 16",
         "s_lshl_b32 s13, s13, 12",
         "s_lshl_b32 s10, s12, 17", "s_add_u32 s10, s10, s13",
         "s_lshl_b32 s11, s12, 16", "s_add_u32 s11, s11, 0x8000", "s_add_u32 s11, s11, s13",
         "v_lshrrev_b32 v30, 4, v0", "v_and_b32 v31, 15, v0", "v_lshlrev_b32 v1, 2, v30", "v_xor_b32 v31, v31, v1",
         "s_lshl_b32 s13, s13, 3", "s_lshl_b32 s97, s74, 8", "s_add_u32 s97, s97, s13",
         "v_lshlrev_b32 v30, 11, v30", "v_add_u32 v30, s97, v30",
         "v_lshl_add_u32 v246, v31, 4, v30", "v_xor_b32 v31, 2, v31", "v_lshl_add_u32 v247, v31, 4, v30", "v_add_u32 v247, 7168, v247",
         "v_add_u32 v248, 14336, v246", "v_add_u32 v249, 14336, v247", "v_mov_b32 v250, s98", "v_mov_b32 v251, s99", "v_mov_b32 v252, 0",
         "s_lshl_b32 s97, s73, 3", "s_and_b32 s13, s3, 1", "s_lshl_b32 s13, s13, 2", "s_add_u32 s97, s97, s13", "s_lshl_b32 s12, s12, 1"])
    for jj in range(4):
        A.e([f"s_xor_b32 s13, s12, {jj}", "s_add_u32 s13, s13, s97", "s_mul_i32 s90, s13, 114688", f"v_add_u32 v{5+jj}, s90, v4",
             "s_lshl_b32 s90, s13, 17", f"v_add_u32 v{242+jj}, s90, v4"])
    A.e(["v_lshlrev_b32 v24, 5, v0", "v_and_b32 v24, 0x3e0, v24",
         "s_lshl_b32 s12, s4, 10", f"s_add_u32 s91, s12, {FL_H}", f"s_add_u32 s97, s12, {FL_O}",
         "s_lshl_b32 s13, s5, 5", "s_add_u32 s88, s91, s13", "s_add_u32 s89, s97, s13"])
    srd(A, 48, P_WS, FL_SZ, WS_FLAG)
    srd(A, 44, P_WD, 3584 * 2048)
    srd(A, 40, P_WS, SZ_HF, WS_HF)
    for i in range(8):
        A.e([f"s_add_u32 s13, s14, {i}", "s_and_b32 s13, s13, 7", f"s_lshl_b32 s{80+i}, s13, 10"])
    WV = 246
    def w_ops(t, half=False):
        slot = t % 8
        ops = []
        rot_ = [f"s_and_b32 s12, s{80+slot}, 0xc00", "s_lshl_b32 s12, s12, 6"] if half else [f"s_lshl_b32 s12, s{80+slot}, 6"]
        for i in range(4):
            ops.append(([f"s_add_u32 m0, s{10 if slot < 4 else 11}, {(slot%4)*8192}"] + rot_ + ["s_add_u32 s12, s12, s8"] if i == 0 else [],
                        f"buffer_load_dwordx4 v{WV+i}, s[44:47], s12 offen offset:{i*1024} lds", ("W", t),
                        ["s_add_u32 s8, s8, 0x80000"] if (i == 3 and slot == 7) else []))
        return ops
    BR = [192, 208, 224, 0, 16, 32, 48, 64]
    facc = lambda cb, jj: v(32 + (cb * 4 + jj) * 4, 4)
    FA = lambda cb, h=None: a(128 + cb * 4, 4) if h is None else a(128 + cb * 4 + 2 * h, 2)
    FB = lambda slot, jj: a(BR[slot] + jj * 4, 4)
    def a_ops(t, half=False):
        slot = t % 8
        return [(([f"s_and_b32 s13, s{80+slot}, 0xc00", "s_add_u32 s13, s13, s9"] if half else [f"s_add_u32 s13, s{80+slot}, s9"]) if jj == 0 else [],
                 f"buffer_load_dwordx4 {FB(slot,jj)}, v{5+jj}, s[40:43], s13 offen {apol}", ("X", t),
                 ["s_add_u32 s9, s9, 0x2000"] if (jj == 3 and slot == 7) else []) for jj in range(4)]
    spins = []
    def check_flags(tag, reg, addr, off):
        A.e([f"v_cmp_ne_u64 vcc, s[98:99], v[{reg}:{reg+1}]", f"s_cbranch_vccnz {L('spin' + tag)}"])
        A.label(L("ok" + tag))
        spins.append((tag, reg, addr, off))

    A.e(["s_mov_b32 s14, s6", "s_mov_b32 s4, s7"])
    A.e(["v_mov_b32 v232, 0", "v_mov_b32 v233, 0"])
    def rowmax(S, dst, tmp):
        out = [f"v_max3_f32 v{dst}, v{S}, v{S+1}, v{S+2}"]
        for k in range(3, 15, 2): out.append(f"v_max3_f32 v{dst}, v{dst}, v{S+k}, v{S+k+1}")
        out += [f"v_max_f32 v{dst}, v{dst}, v{S+15}", f"v_mov_b32 v{tmp}, v{dst}", "s_nop 1",
                f"v_permlane32_swap_b32 v{tmp}, v{dst}", f"v_max_f32 v{dst}, v{dst}, v{tmp}"]
        return out
    for mu in range(2):
        A.e(rowmax(SB(0, mu), VT + mu, VT + 2))
        A.e([f"v_sub_f32 v{NM(mu)+k}, 0, v{VT+mu}" for k in range(16)])
        A.e([f"v_sub_f32 v{SB(0,mu)+k}, v{SB(0,mu)+k}, v{VT+mu}" for k in range(16)])
    def sm(T):
        b = T & 1
        out = []
        def ex(n): return (f"v_exp_f32 v{EB + n % 8}, v{SB(b, n // 16) + n % 16}", 8)
        def fin(n):
            mu, r_ = n // 16, n % 16; e = EB + n % 8; o = []
            if r_ == 1: o.append((f"v_add_f32 v{VTS+mu}, v{EB + (n-1) % 8}, v{e}", 4))
            elif r_ > 1: o.append((f"v_add_f32 v{VTS+mu}, v{VTS+mu}, v{e}", 4))
            if r_ % 2 == 1: o.append((f"v_cvt_pk_bf16_f32 v{PB(b,mu) + r_//2}, v{EB + (n-1) % 8}, v{e}", 5))
            return o
        out.append(ex(0)); out.append(ex(1))
        for n in range(2, 32):
            out.append(ex(n)); out += fin(n - 2)
        out += fin(30) + fin(31)
        out += [(f"v_max_f32 v{VT}, v{VTS}, v{VTS+1}", 4), (f"v_cmp_nge_f32 vcc, s95, v{VT}", 4)]
        return out
    stamp(3)
    def flag_store(off_sreg):
        lab = L("fl%d" % A.nlabel); A.nlabel += 1
        A.e(["s_cmp_lg_u32 s3, 0", f"s_cbranch_scc1 {lab}", "s_mov_b64 exec, 1",
             f"buffer_store_dwordx2 v[250:251], v252, s[48:51], {off_sreg} offen {WT}", "s_mov_b64 exec, -1"])
        A.label(lab)
    rare_sites = []
    for T in range(17):
        mf = (qk(T + 1, lambda mu: v(NM(mu), 16)) if T + 1 <= 15 else []) + (pv(T - 1) if T >= 1 else [])
        nq = 16 if T + 1 <= 15 else 0
        va = ([(f"v_add_f32 v{VL}, v{VL}, v{VTS}", 4), (f"v_add_f32 v{VL+1}, v{VL+1}, v{VTS+1}", 4)] if T >= 1 else []) + (sm(T) if T <= 15 else [])
        rdv = v_reads(T - 1) if T >= 1 else []
        rdk = k_reads(T + 2) if T + 2 <= 15 else []
        vm = []
        if T % 2 == 0 and T <= 14:
            w = []
            if T == hfT: w += vq.need(("H", 0))
            if T >= 6: w += vq.need(("K", (T + 2) // 2))
            if T >= 8: w += vq.need(("V", T // 2))
            A.e(w[-1:]); A.e(dq.drain()); A.e("s_barrier")
            if T == hfT:
                if hwb:
                    lab = L("wb")
                    A.e(["s_cmp_lg_u32 s3, 0", f"s_cbranch_scc1 {lab}", "buffer_wbl2 sc1"]); A.label(lab)
                else: flag_store("s88")
            if T == 8 and hwb: flag_store("s88")
            if T <= 6: vm += kv_ops("K", T // 2 + 4)
            if 4 <= T <= 10: vm += kv_ops("V", T // 2 + 2)
            if T == 12: vm += w_ops(0) + w_ops(1)
            if T == 14:
                A.e(vq.need(("F", 0))); check_flags("H", 22, 24, "s91")
                vm += a_ops(0) + a_ops(1)
        if pfA and 3 <= T <= 10:
            pre = []
            if T == 3:
                pre = [f"s_mov_b32 s52, s{P_WO}", f"s_and_b32 s53, s{P_WO+1}, 0xffff", f"s_mov_b32 s54, {4096*2048:#x}",
                       "s_lshl_b32 s12, s2, 2", "s_add_u32 s12, s12, s3", "s_lshl_b32 s100, s12, 13", "s_mul_i32 s101, s12, 7168",
                       "v_and_b32 v2, 7, v0", "v_lshlrev_b32 v2, 7, v2", "v_add_u32 v3, 4096, v2"]
            k = T - 3
            if k < 7: vm += [(pre, f"buffer_load_dword v30, v{2 if k < 4 else 3}, s[44:47], s101 offen offset:{(k % 4) * 1024}", ("P", 0), [])]
            if pfA == 2: vm += [([], f"buffer_load_dword v30, v{2 if k < 4 else 3}, s[52:55], s100 offen offset:{(k % 4) * 1024}", ("P", 0), [])]
        if T == 9 and cpf >= 3: emit_vm(code_touch(31, "v31"), A.e)
        if T == 12: vm += [([], f"buffer_load_dwordx2 v[22:23], v24, s[48:51], s91 offen {WT}", ("F", 0), [])]
        if T == 13: vm += w_ops(2) + w_ops(3)
        if T < 4: vm += hdef[2 * T: 2 * T + 2]
        if T == 15: vm += a_ops(2)
        if nq == 0:
            for ins, tag in rdv: A.e(ins); dq.issue(tag)
            rdv = []
        n = len(mf)
        vml = []
        for op in vm:
            vml += [(x, 4, None) for x in op[0]] + ([("s_nop 0", 4, None)] if op[0] else []) + [(op[1], 8, op[2])] + [(x, 4, None) for x in op[3]]
        tot = sum(c for _, c in va) + 4 * (len(rdv) + len(rdk)) + sum(c for _, c, _ in vml)
        done = 0
        for m, (ins, tag) in enumerate(mf):
            w = dq.need(tag, dsl); A.e(w); A.e(ins)
            used = 4 * len(w)
            budget = max(cap, -(-(tot - done) // (n - m)) + 3) if m < n - 1 else 10 ** 6
            target = (tot * (m + 1)) // n + 6
            rd = rdv if (m < nq and rdv) else (rdk if (m >= nq and rdk) else None)
            if rd:
                ri, rt = rd.pop(0); A.e(ri); dq.issue(rt); used += 4; done += 4
                if rd is rdv and len(rd) > (nq - 3 - m):
                    ri, rt = rd.pop(0); A.e(ri); dq.issue(rt); used += 4; done += 4
            elif vml:
                x, c, tg = vml.pop(0); A.e(x); used += c; done += c
                if tg: vq.issue(tg)
                while vml and c == 4 and used < 12:
                    x, c, tg = vml.pop(0); A.e(x); used += c; done += c
                    if tg: vq.issue(tg)
            while va and used + va[0][1] <= budget and (done < target or m == n - 1):
                x, c = va.pop(0); A.e(x); used += c; done += c
        assert not rdv
        for ins, tag in rdk: A.e(ins); dq.issue(tag)
        for x, c, tg in vml:
            A.e(x)
            if tg: vq.issue(tg)
        for x, c in va: A.e(x)
        if T <= 15:
            A.e([f"s_cbranch_vccnz {L('rs%d' % T)}"])
            A.label(L("rb%d" % T))
            rare_sites.append(T)
    stamp(4)
    A.e(["s_lshl_b32 s6, s15, 17", "s_lshl_b32 s12, s5, 12", "s_add_u32 s6, s6, s12", "s_add_u32 s7, s6, 0x40000"])
    for mu in range(2):
        A.e([f"v_mov_b32 v{VT}, v{VL+mu}", "s_nop 1", f"v_permlane32_swap_b32 v{VT}, v{VL+mu}", f"v_add_f32 v{VT}, v{VT}, v{VL+mu}",
             f"v_rcp_f32 v{VT+2+2*mu}, v{VT}", "s_nop 0", f"v_mov_b32 v{VT+3+2*mu}, v{VT+2+2*mu}"])
    A.e(["v_mov_b32 v29, v21", "s_barrier"])
    for t in range(4, 7):
        for op in w_ops(t): emit_vm(op, A.e, True)
    A.e(["v_mov_b32 v253, v24",
         "v_lshrrev_b32 v1, 4, v0", "v_lshlrev_b32 v30, 10, v1", "v_and_b32 v1, 1, v1",
         "v_bfe_u32 v31, v0, 2, 2", "v_lshl_add_u32 v30, v31, 8, v30", "v_lshl_or_b32 v31, v31, 1, v1",
         "v_and_b32 v1, 3, v0", "v_lshl_add_u32 v30, v1, 3, v30",
         "s_lshr_b32 s13, s3, 1", "s_lshl_b32 s12, s13, 17", "s_lshl_b32 s13, s13, 16", "s_add_u32 s13, s13, 0x8000"])
    for cb in range(8):
        A.e([f"v_xor_b32 v1, {cb}, v31", "v_lshl_add_u32 v1, v1, 5, v30", f"v_add_u32 v{9+cb}, s12, v1", f"v_add_u32 v{17+cb}, s13, v1"])
    def frd(t, cb):
        slot = t % 8
        reg = (9 if slot < 4 else 17) + cb; off = (slot % 4) * 8192
        return [(f"ds_read_b64_tr_b16 {FA(cb,0)}, v{reg} offset:{off}", ("A", t, cb)),
                (f"ds_read_b64_tr_b16 {FA(cb,1)}, v{reg} offset:{off+4096}", ("A", t, cb))]
    dq.slack = 8
    ostores = []
    cnt = 0
    if oin:
        A.e([f"v_accvgpr_read_b32 v{96+k}, a{k}" for k in range(64)])
        for t in range(3, 7):
            for op in a_ops(t): emit_vm(op, A.e)
        A.e(vq.need(("W", 3))); A.e("s_barrier")
        for cb in range(8):
            for ins, tag in frd(0, cb): A.e(ins); dq.issue(tag)
    for i in range(4):
        for mu in range(2):
            tmp = 96 + (cnt % 4) * 16; dst = 160 + cnt * 8; cnt += 1
            src = (i * 2 + mu) * 16
            if not (oin and cnt <= 4): A.e([f"v_accvgpr_read_b32 v{tmp+k}, a{src+k}" for k in range(16)])
            A.e([f"v_pk_mul_f32 v[{tmp+2*k}:{tmp+2*k+1}], v[{tmp+2*k}:{tmp+2*k+1}], v[{VT+2+2*mu}:{VT+3+2*mu}]" for k in range(8)])
            for s_ in range(2):
                for jj, j in enumerate((s_, s_ + 2)):
                    A.e([f"v_cvt_pk_bf16_f32 v{dst+4*s_+2*jj}, v{tmp+4*j}, v{tmp+4*j+1}", f"v_cvt_pk_bf16_f32 v{dst+4*s_+2*jj+1}, v{tmp+4*j+2}, v{tmp+4*j+3}"])
                ostores.append(([], f"buffer_store_dwordx4 {v(dst+4*s_,4)}, v29, s[60:63], s{6+mu} offen offset:{i*1024+s_*512} {WT}", ("O", 0), []))
                if oin and len(ostores) <= oin: emit_vm(ostores[-1], A.e)
            if not oin and cnt in (1, 2, 3, 4):
                for op in a_ops(2 + cnt): emit_vm(op, A.e)
            if not oin and cnt == 5:
                A.e(vq.need(("W", 3))); A.e("s_barrier")
                for cb in range(8):
                    for ins, tag in frd(0, cb): A.e(ins); dq.issue(tag)
    ostores = ostores[oin:]
    srd(A, 52, P_WS, G_SZ, G_BASE)
    srd(A, 64, P_X, 2048 * 2048)
    srd(A, 68, P_OUT, 2048 * 2048)
    A.e(["s_cmp_eq_u32 s72, 0",
         f"s_cselect_b32 s90, {N1S-nf//8}, {N1Y-nf//8}", f"s_cselect_b32 s95, {N1S-1-nf//8}, {N1Y-1-nf//8}", "s_mov_b32 s91, 0",
         "s_lshl_b32 s12, s73, 3", "s_add_u32 s12, s12, s74",
         "s_lshl_b32 s92, s12, 2", "s_add_u32 s92, s92, s3",
         "s_lshl_b32 s92, s92, 13",
         "s_lshl_b32 s93, s12, 7", f"s_add_u32 s101, s93, {FL_P}", "s_lshl_b32 s12, s3, 5", "s_add_u32 s93, s93, s12",
         "s_lshl_b32 s94, s73, 7", "s_and_b32 s12, s3, 1", "s_lshl_b32 s12, s12, 6", "s_add_u32 s94, s94, s12",
         "s_lshr_b32 s12, s3, 1", "s_lshl_b32 s12, s12, 5", "s_add_u32 s94, s94, s12",
         "s_lshl_b32 s94, s94, 11", "s_lshl_b32 s12, s74, 8", "s_add_u32 s94, s94, s12",
         "v_and_b32 v1, 15, v0", "v_lshlrev_b32 v1, 11, v1", "v_lshrrev_b32 v30, 4, v0",
         "v_lshl_add_u32 v25, v30, 3, v1", "v_add_u32 v26, 0x8000, v25",
         "v_lshl_add_u32 v27, v30, 4, v1", "v_add_u32 v28, 0x8000, v27",
         "s_lshl_b32 s12, s3, 14", "v_add_u32 v2, s12, v4", "s_xor_b32 s12, s12, 0x8000", "v_add_u32 v3, s12, v4",
         "s_lshl_b32 s12, s3, 13", "s_add_u32 s12, s12, 0x10000", "v_add_u32 v254, s12, v4", "s_xor_b32 s12, s12, 0x4000", "v_add_u32 v255, s12, v4"])
    stamp(5)
    XP = (2, 8, 12, 16, 20, 24, 28)
    def fstep(t, E, last=False, extra=(), czero=False, prev=None, afterbar=None, needbar=(), va=None, xp=None):
        if not last: vops = w_ops(t + 7) + a_ops(t + 7)
        else: vops = (w_ops(t + 7, t > 0) + a_ops(t + 7, t > 0)) if t + 7 < tail else []
        xq = xp or (XP if vops else vpos)
        sched = sorted(list(zip(vpos, vops)) + list(zip(xq, extra)), key=lambda x: x[0])
        assert len(extra) <= len(xq)
        isbar = (t % 2 == 1)
        doread = not (last and t == tail - 1)
        pend = []; vi = 0; post = []; pre = [x for _, op in sched for x in op[0]] if False else None
        pres = [list(op[0]) for _, op in sched]
        for m in range(32):
            cb, jj = m // 4, m % 4
            if m == 0: E(vq.need(("X", t)))
            if jj == 0: E(dq.need(("A", t, cb)))
            if prev: E(prev(cb, jj))
            E(mfma16(facc(cb, jj), FA(cb), FB(t % 8, jj), "0" if czero else None))
            if isbar and m == barpos:
                w = vq.need(("W", t + 2))
                for tg in needbar: w += vq.need(tg)
                E(w[-1:]); E(dq.drain()); E("s_barrier")
                if afterbar: afterbar()
            if jj == 3 and doread: pend += frd(t + 1, cb)
            if vi < len(sched) and m == sched[vi][0]:
                assert not pres[vi]
                op = sched[vi][1]
                E(op[1]); vq.issue(op[2]); post += op[3]; vi += 1
            else:
                used = 0
                if not (isbar and m < barpos) and pend:
                    ins, tag = pend.pop(0); E(ins); dq.issue(tag); used += 1
                k = next((k for k in range(vi, len(sched)) if pres[k]), None)
                if k is not None and any("m0" in x for x in pres[k]) and any(" lds" in sched[k2][1][1] for k2 in range(vi, k)): k = None
                while k is not None and pres[k] and used < 2: E(pres[k].pop(0)); used += 1
                if post and used < 2: E(post.pop(0)); used += 1
                cyc = 4 * used
                while va and cyc + va[0][1] <= vcap:
                    x, c = va.pop(0); E(x); cyc += c
        for ins, tag in pend: E(ins); dq.issue(tag)
        E(post)
    oflag = [([], f"buffer_load_dwordx2 v[30:31], v253, s[48:51], s97 offen {WT}", ("F", 0), [])]
    SWW = [[]]
    def loop_body(E, real):
        for t in range(8):
            fstep(t, E, extra=oflag if t == 2 else ())
            if t == 0 and real:
                A.e(["s_cmp_lg_u32 s95, 0", f"s_cbranch_scc1 {L('nosw')}"])
                A.e(SWW[0]); check_flags("O", 30, 253, "s97")
                srd(A, 40, P_WS, SZ_OF, WS_OF); srd(A, 44, P_WO, 4096 * 2048)
                A.e(["s_mov_b32 s8, s75", "s_mov_b32 s9, s96", "s_mov_b32 s97, s101", "v_mov_b32 v253, 0"] + [f"v_mov_b32 v{5+jj}, v{242+jj}" for jj in range(4)])
                A.label(L("nosw"))
    XP8 = (1, 2, 4, 8, 12, 16, 20, 24)
    for t in range(nf):
        k0 = sum(ost[:t]); ex = list(ostores[k0:k0 + ost[t]]) if t < len(ost) else []
        if nf == 16 and t == oft: ex = ex + oflag
        fstep(t, A.e, extra=ex, czero=(t == 0), xp=(XP8 if t % 2 == 0 else (4, 5, 8, 12, 16, 20, 24, 28)) if len(ex) > 3 else (8, 16, 24),
              needbar=[("O", 0)] if t == oflt else (), afterbar=(lambda: flag_store("s89")) if t == oflt else None)
    stamp(6)
    SWW[0] = [f"s_waitcnt vmcnt({vq.count_after(('F', 0)) + 8})"] if ("F", 0) in vq.q else []
    vq.rebase(nf); dq.rebase(nf)
    q_first = (list(vq.q), list(dq.q))
    loop_body(lambda x: None, False)
    vq.rebase(8); dq.rebase(8)
    q_steady = (list(vq.q), list(dq.q))
    assert not any(t[0] == "F" for t in q_steady[0]) and N1S >= 3 and N1Y >= 3
    def covers(entry, steady):
        def younger(q, tag): return len(q) - 1 - max(i for i, t in enumerate(q) if t == tag)
        for tag in set(entry):
            if tag[0] not in "WXA": continue
            if tag not in steady or younger(entry, tag) < younger(steady, tag): return False
        return True
    assert covers(q_first[0], q_steady[0]) and covers(q_first[1], q_steady[1]), (q_first, q_steady)
    A.raw(".p2align 6")
    A.label(L("floop"))
    loop_body(A.e, True)
    A.e(["s_sub_u32 s95, s95, 1", "s_sub_u32 s90, s90, 1", "s_cmp_lg_u32 s90, 0", f"s_cbranch_scc1 {L('floop')}",
         "s_cmp_lg_u32 s91, 0", f"s_cbranch_scc1 {L('flast')}"])
    stamp(3, 2)
    vq.rebase(8); dq.rebase(8)
    YS = lambda cb, jj: 160 + (cb * 2 + jj) * 4
    A.e("s_nop 2")
    for rnd in range(2):
        for cb in range(4 * rnd, 4 * rnd + 4):
            for jj in (2, 3): A.e(f"ds_write_b128 v254, {facc(cb,jj)} offset:{((cb%4)*2+jj-2)*1024}")
        if rnd == 1:
            for cb in range(4):
                for jj in range(2):
                    b = 32 + (cb * 4 + jj) * 4; y = YS(cb, jj)
                    A.e([f"v_pk_add_f32 v[{y+r_}:{y+r_+1}], v[{b+r_}:{b+r_+1}], v[{b+8+r_}:{b+9+r_}]" for r_ in (0, 2)])
        A.e(["s_waitcnt lgkmcnt(0)", "s_barrier"])
        for cb in range(4 * rnd, 4 * rnd + 4):
            for jj in (2, 3): A.e(f"ds_read_b128 {facc(cb,jj)}, v255 offset:{((cb%4)*2+jj-2)*1024}")
        if rnd == 0: A.e(["s_waitcnt lgkmcnt(0)", "s_barrier"])
    for cb in range(4, 8):
        for jj in range(2):
            b = 32 + (cb * 4 + jj) * 4; y = YS(cb, jj)
            A.e(f"s_waitcnt lgkmcnt({7 - ((cb-4)*2+jj)})")
            A.e([f"v_pk_add_f32 v[{y+r_}:{y+r_+1}], v[{b+r_}:{b+r_+1}], v[{b+8+r_}:{b+9+r_}]" for r_ in (0, 2)])
    A.e(["s_cmp_eq_u32 s72, 0", f"s_cbranch_scc1 {L('firstC')}", "s_add_u32 s6, s92, 4096"])
    for jj in range(2):
        for i in range(4):
            d = 224 + (i % 2) * 4 + jj * 8
            for h in range(2):
                y = YS(2 * i + h, jj)
                A.e([f"v_cvt_pk_bf16_f32 v{d+2*h}, v{y}, v{y+1}", f"v_cvt_pk_bf16_f32 v{d+2*h+1}, v{y+2}, v{y+3}"])
            A.e(f"buffer_store_dwordx4 {v(d,4)}, v4, s[52:55], {'s6' if jj else 's92'} offen offset:{i*1024} {WT}")
    A.label(L("firstC"))
    stamp(4, 2)
    vq.q, dq.q = list(q_steady[0]), list(q_steady[1])
    def pflag():
        lab = L("pf")
        A.e(["s_xor_b32 s6, s72, 1", "s_or_b32 s6, s6, s3", "s_cmp_lg_u32 s6, 0", f"s_cbranch_scc1 {lab}", "s_mov_b64 exec, 1",
             f"buffer_store_dwordx2 v[250:251], v252, s[48:51], s101 offen {WT}", "s_mov_b64 exec, -1"])
        A.label(lab)
    xpre = ["v_lshrrev_b32 v228, 4, v0", "v_and_b32 v229, 15, v0", "v_xor_b32 v229, v229, v228"]
    for i in range(4):
        xpre += [f"v_xor_b32 v{224+i}, {4*i}, v229", f"v_lshlrev_b32 v{224+i}, 4, v{224+i}", f"v_lshl_add_u32 v{224+i}, v228, 11, v{224+i}",
                 f"v_add_u32 v{224+i}, {7168*i}, v{224+i}"]
    xdma = [([f"s_add_u32 m0, s15, {4096*hh}"], f"buffer_load_dwordx4 v{224+i}, s[64:67], {'s100' if hh else 's94'} offen offset:{i*1024} lds", ("R", 0), [])
            for hh in range(2) for i in range(4)]
    A.e(xpre + ["s_lshl_b32 s15, s3, 13", "s_add_u32 s15, s15, 0x10000", "s_add_u32 s100, s94, 0x8000"])
    nopre = lambda op: ([],) + tuple(op[1:])
    mark = ("MARK", vq.total)
    for t in range(8):
        fstep(t, A.e, czero=(t == 0), afterbar=pflag if t == pft else None, needbar=[mark] if t == pft else (), extra={2: [xdma[0], nopre(xdma[1])], 3: [xdma[2]], 4: [xdma[3]], 5: [xdma[4]] + oflag, 6: [xdma[5], nopre(xdma[6])], 7: [xdma[7]]}.get(t, ()),
              xp=(1, 2) if t in (2, 6) else None)
    FW = vq.need(("F", 0))
    vq.rebase(8); dq.rebase(8)
    assert covers(vq.q, q_steady[0]) and covers(dq.q, q_steady[1])
    stamp(5, 2)
    A.e(["s_mov_b32 s91, 1", f"s_mov_b32 s90, {(64-SS-8-tail)//8}", "s_cmp_lg_u32 s72, 0", f"s_cbranch_scc1 {L('floop')}"])
    A.e(FW); check_flags("P", 30, 252, "s101")
    YP = lambda jj, i: 224 + (jj * 4 + i) * 4
    YA = lambda i: 80 + i * 4
    A.e("s_add_u32 s6, s92, 4096")
    for i in range(4):
        A.e([f"buffer_load_dwordx4 {v(YP(0,i),4)}, v4, s[52:55], s92 offen offset:{i*1024} {WT}",
             f"buffer_load_dwordx4 {a(YA(i),4)}, v4, s[52:55], s6 offen offset:{i*1024} {WT}"])
    A.e([f"s_mov_b32 s90, {(SS-8-tail)//8}", f"s_branch {L('floop')}"])
    A.label(L("flast"))
    stamp(6, 2)
    A.e(["s_mov_b32 s6, 0xbfb8aa3b", "s_mov_b32 s7, 0xbfb8aa3b", "s_cmp_lg_u32 s72, 0", f"s_cbranch_scc1 {L('flast2')}"])
    for cb in range(8):
        y = YS(cb, 0); pc = YP(0, cb // 2) + 2 * (cb % 2); T0 = 240 if cb % 2 == 0 else 242
        T0 = 240
        A.e([f"v_lshlrev_b32 v{T0}, 16, v{pc}", f"v_and_b32 v{T0+1}, 0xffff0000, v{pc}",
             f"v_lshlrev_b32 v{T0+2}, 16, v{pc+1}", f"v_and_b32 v{T0+3}, 0xffff0000, v{pc+1}"])
        A.e([f"v_pk_add_f32 v[{y+r_}:{y+r_+1}], v[{y+r_}:{y+r_+1}], v[{T0+r_}:{T0+r_+1}]" for r_ in (0, 2)])
        A.e([f"v_pk_mul_f32 v[{T0+r_}:{T0+r_+1}], v[{y+r_}:{y+r_+1}], s[6:7]" for r_ in (0, 2)])
        A.e([f"v_exp_f32 v{T0+r_}, v{T0+r_}" for r_ in range(4)])
        A.e([f"v_pk_add_f32 v[{T0+r_}:{T0+r_+1}], v[{T0+r_}:{T0+r_+1}], 1.0 op_sel_hi:[1,0]" for r_ in (0, 2)])
        A.e([f"v_rcp_f32 v{T0+r_}, v{T0+r_}" for r_ in range(4)])
        A.e([f"v_pk_mul_f32 v[{y+r_}:{y+r_+1}], v[{y+r_}:{y+r_+1}], v[{T0+r_}:{T0+r_+1}]" for r_ in (0, 2)])
    A.label(L("flast2"))
    vq.q, dq.q = list(q_steady[0]), list(q_steady[1])
    va = []
    for cb in range(8):
        y = YS(cb, 1); pc = YA(cb // 2) + 2 * (cb % 2); T0 = 224 + 4 * (cb % 2)
        va += [(f"v_accvgpr_read_b32 v{T0+1}, a{pc}", 4), (f"v_accvgpr_read_b32 v{T0+3}, a{pc+1}", 4),
               (f"v_lshlrev_b32 v{T0}, 16, v{T0+1}", 4), (f"v_and_b32 v{T0+1}, 0xffff0000, v{T0+1}", 4),
               (f"v_lshlrev_b32 v{T0+2}, 16, v{T0+3}", 4), (f"v_and_b32 v{T0+3}, 0xffff0000, v{T0+3}", 4)]
        va += [(f"v_add_f32 v{y+r_}, v{y+r_}, v{T0+r_}", 4) for r_ in range(4)]
        va += [(f"v_mul_f32 v{T0+r_}, s7, v{y+r_}", 4) for r_ in range(4)]
        va += [(f"v_exp_f32 v{T0+r_}, v{T0+r_}", 8) for r_ in range(4)]
        va += [(f"v_add_f32 v{T0+r_}, 1.0, v{T0+r_}", 4) for r_ in range(4)]
        va += [(f"v_rcp_f32 v{T0+r_}, v{T0+r_}", 8) for r_ in range(4)]
        va += [(f"v_mul_f32 v{y+r_}, v{y+r_}, v{T0+r_}", 4) for r_ in range(4)]
    fin = [(["v_mov_b32 v29, 0"], f"buffer_load_dwordx2 v[30:31], v29, s[48:51], s93 offen {WT}", ("G", 0), [])]
    for t in range(tail):
        fstep(t, A.e, last=True, extra={tail - 3: fin}.get(t, ()), va=va if t >= vat else None)
    A.c(f"left over fillers: {len(va)}")
    for x, c in va: A.e(x)
    stamp(7)
    A.e(["v_mov_b32 v22, s98", "v_mov_b32 v23, s99", f"s_add_u32 s6, s92, {G_SF}", f"s_add_u32 s7, s92, {G_SF+4096}",
         "s_cmp_lg_u32 s72, 0", f"s_cbranch_scc1 {L('xch')}"])
    s2loads = [f"buffer_load_dwordx4 {v(YP(jj,i),4)}, v4, s[52:55], s{6+jj} offen offset:{i*1024} {WT}" for jj in range(2) for i in range(4)]
    A.e(vq.need(("G", 0)))
    A.e(["v_cmp_ne_u64 vcc, s[98:99], v[30:31]", f"s_cbranch_vccnz {L('xch')}", "s_mov_b32 s91, 2"] + s2loads)
    A.label(L("xch"))
    A.e("s_nop 2")
    for cb in range(8):
        for jj in (2, 3):
            A.e(f"ds_write_b128 v2, {facc(cb,jj)} offset:{(cb*2+jj-2)*1024}")
    A.e(["s_waitcnt lgkmcnt(0)", "s_barrier"])
    for jj in (2, 3):
        for cb in range(8):
            A.e(f"ds_read_b128 {facc(cb,jj)}, v3 offset:{(cb*2+jj-2)*1024}")
    A.e(["s_cmp_eq_u32 s72, 0", f"s_cbranch_scc1 {L('sepi')}"])
    for jj in range(2):
        for i in range(4):
            dst = 160 + (jj * 4 + i) * 4
            for h in range(2):
                cb = 2 * i + h
                A.e(f"s_waitcnt lgkmcnt({15 - (jj*8+cb)})")
                b = 32 + (cb * 4 + jj) * 4
                A.e([f"v_pk_add_f32 v[{b+r_}:{b+r_+1}], v[{b+r_}:{b+r_+1}], v[{b+8+r_}:{b+9+r_}]" for r_ in (0, 2)])
                A.e([f"v_cvt_pk_bf16_f32 v{dst+2*h}, v{b}, v{b+1}", f"v_cvt_pk_bf16_f32 v{dst+2*h+1}, v{b+2}, v{b+3}"])
            A.e(f"buffer_store_dwordx4 {v(dst,4)}, v4, s[52:55], s{6+jj} offen offset:{i*1024} {WT}")
    A.e(["s_waitcnt vmcnt(0)", "s_mov_b64 exec, 1",
         f"buffer_store_dwordx2 v[22:23], v29, s[48:51], s93 offen {WT}", "s_mov_b64 exec, -1", f"s_branch {L('fin')}"])
    A.label(L("sepi"))
    A.e(["v_and_b32 v1, 15, v0", "v_lshrrev_b32 v5, 5, v0", "v_xor_b32 v5, v5, v1", "v_bfe_u32 v6, v0, 4, 1", "v_lshlrev_b32 v6, 3, v6",
         "v_lshl_add_u32 v6, v1, 8, v6", "s_lshl_b32 s15, s3, 13", "s_add_u32 s15, s15, 0x10000", "v_add_u32 v6, s15, v6"])
    XR = lambda cb, jj: 96 + (cb * 2 + jj) * 2
    for cb in range(8):
        A.e([f"v_xor_b32 v7, {2*cb}, v5", "v_lshl_add_u32 v7, v7, 4, v6",
             f"ds_read_b64 {a(XR(cb,0),2)}, v7", f"ds_read_b64 {a(XR(cb,1),2)}, v7 offset:4096"])
    for n in range(16):
        jj, cb = n // 8, n % 8
        b = 32 + (cb * 4 + jj) * 4; y = YS(cb, jj); xa = XR(cb, jj); T0 = 8 + 4 * (n % 2)
        if n == 0: A.e("s_waitcnt lgkmcnt(0)")
        A.e([f"v_accvgpr_read_b32 v{T0+1}, a{xa}", f"v_accvgpr_read_b32 v{T0+3}, a{xa+1}"])
        A.e([f"v_pk_add_f32 v[{b+r_}:{b+r_+1}], v[{b+r_}:{b+r_+1}], v[{b+8+r_}:{b+9+r_}]" for r_ in (0, 2)])
        A.e([f"v_lshlrev_b32 v{T0}, 16, v{T0+1}", f"v_and_b32 v{T0+1}, 0xffff0000, v{T0+1}",
             f"v_lshlrev_b32 v{T0+2}, 16, v{T0+3}", f"v_and_b32 v{T0+3}, 0xffff0000, v{T0+3}"])
        A.e([f"v_pk_fma_f32 v[{b+r_}:{b+r_+1}], v[{b+r_}:{b+r_+1}], v[{y+r_}:{y+r_+1}], v[{T0+r_}:{T0+r_+1}]" for r_ in (0, 2)])
    A.e(["s_cmp_eq_u32 s91, 2", f"s_cbranch_scc1 {L('have')}", SPINB])
    A.label(L("poll"))
    A.e([f"buffer_load_dwordx2 v[30:31], v29, s[48:51], s93 offen {WT}", "s_waitcnt vmcnt(0)",
         "s_sub_u32 s12, s12, 1", f"s_cbranch_scc1 {L('got')}",
         "v_cmp_ne_u64 vcc, s[98:99], v[30:31]", f"s_cbranch_vccz {L('got')}", "s_sleep 1", f"s_branch {L('poll')}"])
    A.label(L("got"))
    A.e(s2loads)
    A.label(L("have"))
    for jj in range(2):
        for i in range(4):
            o = YP(jj, i)
            A.e("s_waitcnt vmcnt(7)")
            for h in range(2):
                cb = 2 * i + h
                b = 32 + (cb * 4 + jj) * 4; y = YS(cb, jj); T0 = 8 + 4 * h
                A.e([f"v_lshlrev_b32 v{T0}, 16, v{o+2*h}", f"v_and_b32 v{T0+1}, 0xffff0000, v{o+2*h}",
                     f"v_lshlrev_b32 v{T0+2}, 16, v{o+2*h+1}", f"v_and_b32 v{T0+3}, 0xffff0000, v{o+2*h+1}"])
                A.e([f"v_pk_fma_f32 v[{b+r_}:{b+r_+1}], v[{T0+r_}:{T0+r_+1}], v[{y+r_}:{y+r_+1}], v[{b+r_}:{b+r_+1}]" for r_ in (0, 2)])
                A.e([f"v_cvt_pk_bf16_f32 v{o+2*h}, v{b}, v{b+1}", f"v_cvt_pk_bf16_f32 v{o+2*h+1}, v{b+2}, v{b+3}"])
            A.e(["s_nop 1", f"v_permlane32_swap_b32 v{o}, v{o+2}", f"v_permlane32_swap_b32 v{o+1}, v{o+3}", "s_nop 0",
                 f"v_permlane16_swap_b32 v{o}, v{o+2}", f"v_permlane16_swap_b32 v{o+1}, v{o+3}",
                 f"buffer_store_dwordx4 {v(o,4)}, v{27+jj}, s[68:71], s94 offen offset:{i*64}"])
    A.label(L("fin"))
    if stamps:
        srd(A, 40, P_WS, 0x100000, WS_STAMP)
        A.e(["s_waitcnt vmcnt(0)", "s_memtime s[76:77]", "s_memrealtime s[78:79]", "s_waitcnt lgkmcnt(0)",
             "v_mov_b32 v8, s76", "v_mov_b32 v9, s78", "v_mov_b32 v10, s72", "s_getreg_b32 s10, hwreg(HW_REG_XCC_ID)", "v_mov_b32 v11, s10",
             "s_lshl_b32 s10, s2, 2", "s_add_u32 s10, s10, s3", "s_lshl_b32 s10, s10, 7", "v_mov_b32 v1, s10", "s_mov_b64 exec, 1"])
        for k in range(4): A.e(f"buffer_store_dwordx4 a[{240+4*k}:{243+4*k}], v1, s[40:43], 0 offen offset:{16*k}")
        A.e("buffer_store_dwordx4 v[8:11], v1, s[40:43], 0 offen offset:64")
    if dbgst:
        srd(A, 40, P_DBG, 256)
        A.e(["s_and_b32 s10, s2, 0xfb", "s_or_b32 s10, s10, s3", "s_cmp_lg_u32 s10, 0", f"s_cbranch_scc1 {L('end')}", "s_mov_b64 exec, 1",
             "v_accvgpr_read_b32 v12, a241", "s_lshl_b32 s10, s2, 3", "v_mov_b32 v1, s10"])
        for k in range(1, 8): A.e([f"v_accvgpr_read_b32 v13, a{241+2*k}", f"v_sub_u32 v{15+k}, v13, v12"])
        A.e(["v_sub_u32 v23, v9, v12", "buffer_store_dwordx4 v[16:19], v1, s[40:43], 0 offen", "buffer_store_dwordx4 v[20:23], v1, s[40:43], 0 offen offset:16"])
    A.label(L("end"))
    A.e("s_endpgm")
    for tag, reg, addr, off in spins:
        A.label(L("spin" + tag))
        A.e(SPINB)
        A.label(L("spinl" + tag))
        A.e(["s_sleep 2", f"buffer_load_dwordx2 v[{reg}:{reg+1}], v{addr}, s[48:51], {off} offen {WT}", "s_waitcnt vmcnt(0)",
             "s_sub_u32 s12, s12, 1", f"s_cbranch_scc1 {L('ok' + tag)}",
             f"v_cmp_ne_u64 vcc, s[98:99], v[{reg}:{reg+1}]", f"s_cbranch_vccnz {L('spinl' + tag)}", f"s_branch {L('ok' + tag)}"])
    for T in rare_sites:
        A.label(L("rs%d" % T))
        A.e([f"s_call_b64 s[6:7], {L('rare%d' % (T & 1))}", f"s_branch {L('rb%d' % T)}"])
    for b in range(2):
        A.label(L("rare%d" % b))
        A.e(["s_nop 15", "s_nop 15"])
        for mu in range(2):
            S = SB(b, mu); S2 = SB(b ^ 1, mu)
            A.e(rowmax(S, VT, VT + 2))
            A.e([f"v_max_f32 v{VT}, 0, v{VT}", f"v_exp_f32 v{VT+1}, -v{VT}"])
            A.e([f"v_sub_f32 v{NM(mu)+k}, v{NM(mu)+k}, v{VT}" for k in range(16)])
            A.e([f"v_sub_f32 v{S+k}, v{S+k}, v{VT}" for k in range(16)])
            A.e([f"v_sub_f32 v{S2+k}, v{S2+k}, v{VT}" for k in range(16)])
            A.e(f"v_mul_f32 v{VL+mu}, v{VL+mu}, v{VT+1}")
            for i in range(4):
                o = (i * 2 + mu) * 16
                for k in range(16):
                    A.e([f"v_accvgpr_read_b32 v{VT+2}, a{o+k}", f"v_mul_f32 v{VT+2}, v{VT+2}, v{VT+1}", f"v_accvgpr_write_b32 a{o+k}, v{VT+2}"])
            for k in range(0, 16, 2):
                A.e([f"v_exp_f32 v{EB}, v{S+k}", f"v_exp_f32 v{EB+1}, v{S+k+1}", "s_nop 0",
                     f"v_cvt_pk_bf16_f32 v{PB(b,mu)+k//2}, v{EB}, v{EB+1}", f"v_add_f32 v{EB}, v{EB}, v{EB+1}",
                     f"v_mov_b32 v{VTS+mu}, v{EB}" if k == 0 else f"v_add_f32 v{VTS+mu}, v{VTS+mu}, v{EB}"])
        A.e(["s_nop 3", "s_setpc_b64 s[6:7]"])
    A.label(f"{name}_codeend")
    return (name, 512, 256, "(256,1,1)", "(256,1,1)", 163840)
```

```python
from common import *
import struct, math
QSCALE = struct.unpack("<I", struct.pack("<f", math.log2(math.e) / math.sqrt(128.0)))[0]
THR = 0x49800000
FL_L, FL_H, FL_O, FL_P, FL_SZ = 0x4000, 0x6000, 0x8000, 0xA000, 0xE000
G_BASE, G_SF, G_PF, G_SZ = 0x2200000, 0x600000, 0xA00000, 0x1200000
SS_UNUSED = 28
N1S, N1Y = 4, 3
WT = "sc0 sc1"
SPINB = "s_mov_b32 s12, 0x40000"

def kf(A, name="kf_kernel", stamps=0, thr=THR, vpos=(6, 10, 14, 18, 22, 26, 29, 30), barpos=3, apol=WT, pfT=0, pfG=0, cpf=3, ln=1, dbgst=0, pst=0, psleep=1, hwb=0, cap=24, dsl=6, vcap=8, ost=None, oflt=3, rotm=(1, 2), xpol=None, gdbg=0, pfs=7, pfA=2, rot0=1, vat=None, pft=3, tail=8, kmap=1, SS=None, hfT=2, barm=47, gsl=10, sp1=(2, 44), sp2=(54, 88), vmod=2, lead=0, nf=8, oft=14, oin=8, hdf=0, tlb=0, t16=1, mid1=1, fast=1):
    L = lambda s: f"{name}_{s}"
    if SS is None: SS = 32 if tail == 8 else 28
    if vat is None: vat = tail - 7
    if ost is None: ost = (8, 8)[:2 - oin // 8]
    vq = Q("vmcnt", 63); dq = Q("lgkmcnt", 15, gsl)
    def stamp(i, pro=0):
        if not stamps: return
        if pst == 1:
            if pro == 0 and i == 1: i = 7
            elif not (pro == 1 or i == 0): return
        elif pst == 2:
            if pro == 0 and i == 5: i = 1
            elif pro == 0 and i == 6: i = 2
            elif not (pro == 2 or (pro == 0 and i in (0, 7))): return
        elif pst == 3:
            if pro or i != 1: return
            i = 0
        elif pro: return
        A.e(["s_memtime s[76:77]", "s_memrealtime s[78:79]", "s_waitcnt lgkmcnt(0)", "v_mov_b32 v30, s76", f"v_accvgpr_write_b32 a{240+2*i}, v30",
             "v_mov_b32 v30, s78", f"v_accvgpr_write_b32 a{241+2*i}, v30"]); dq.drain()
    A.raw(kernel_head(name))
    A.e(["s_cmp_ge_u32 s2, 256", f"s_cbranch_scc1 {L('end')}"])
    cpn = [0]
    def code_touch(vr, dst, raw=False):
        lab = L("pc%d" % cpn[0]); cpn[0] += 1
        pre = ["s_getpc_b64 s[76:77]", lab + ":", f"s_sub_u32 s76, s76, {lab}-{name}", "s_subb_u32 s77, s77, 0",
               "s_lshr_b32 s78, s2, 3", "s_lshl_b32 s78, s78, 11"] + ([f"v_and_b32 v{vr}, 0xc0, v0", f"v_lshlrev_b32 v{vr+1}, 3, v{vr}"] if raw else ["s_lshl_b32 s79, s3, 9", "s_add_u32 s78, s78, s79"]) + [
               f"v_and_b32 v{vr}, 7, v0", f"v_mul_u32_u24 v{vr}, 0x4080, v{vr}", f"v_and_b32 v{vr}, 0x10180, v{vr}"] + ([f"v_add_u32 v{vr}, v{vr+1}, v{vr}"] if raw else []) + [
               f"v_add_u32 v{vr}, s78, v{vr}", f"v_min_u32 v{vr}, {name}_codeend-{name}-4, v{vr}"]
        return (pre, f"global_load_dword {dst}, v{vr}, s[76:77]", ("C", 0), [])
    stamp(0)
    A.e(LOADARGS)
    if cpf:
        op = code_touch(30, "a238", raw=True); A.e(op[0]); A.e(op[1])
    A.e(["v_lshrrev_b32 v1, 6, v0", "v_and_b32 v0, 63, v0", "s_nop 0", "v_readfirstlane_b32 s3, v1",
         "s_and_b32 s10, s2, 7", "s_lshr_b32 s11, s2, 3", "s_and_b32 s4, s11, 7", "s_lshr_b32 s11, s11, 3",
         "s_lshl_b32 s5, s10, 2", "s_add_u32 s5, s5, s11",
         f"s_mul_i32 s14, s11, {rotm[1]}", f"s_mul_i32 s12, s4, {rotm[0]}", "s_add_u32 s14, s14, s12"])
    if ln:
        A.e(["v_and_b32 v40, 7, v0", "v_lshrrev_b32 v41, 3, v0", "s_lshl_b32 s12, s3, 5", "v_add_u32 v41, s12, v41",
             "v_lshlrev_b32 v42, 11, v40", "v_lshl_add_u32 v42, v41, 4, v42",
             "s_lshl_b32 s12, s4, 5", "s_add_u32 s91, s12, s5", "s_lshl_b32 s12, s91, 14",
             "s_waitcnt lgkmcnt(0)"])
        srd(A, 64, P_X, 2048 * 2048)
        for i in range(4):
            A.e(f"buffer_load_dwordx4 v[{48+4*i}:{51+4*i}], v42, s[64:67], s12 offen offset:{128*i}"); vq.issue(("L", 0))
        if tlb & 1:
            srd(A, 68, P_WS, 0x3000000)
            A.e(["v_lshlrev_b32 v39, 21, v0", "buffer_load_dword a237, v39, s[68:71], 0 offen"])
        srd(A, 60, P_DBG, 256)
        A.e(["v_mov_b32 v47, 0", "s_or_b32 s12, s2, s3", "s_cmp_lg_u32 s12, 0", f"s_cbranch_scc1 {L('nn')}",
             "s_memrealtime s[12:13]", "s_waitcnt lgkmcnt(0)", "s_or_b32 s12, s12, 1", "v_mov_b32 v38, s12", "v_mov_b32 v39, s13", "s_mov_b64 exec, 1",
             f"buffer_store_dwordx2 v[38:39], v47, s[60:63], 0 offen {WT}", "s_mov_b64 exec, -1"])
        A.label(L("nn"))
    A.e([
         "v_lshrrev_b32 v30, 4, v0", "v_and_b32 v31, 15, v0",
         "s_lshr_b32 s12, s3, 1", "s_lshl_b32 s12, s12, 1",
         "v_lshlrev_b32 v1, 2, v30", "v_or_b32 v1, s12, v1", "v_xor_b32 v31, v31, v1",
         "s_lshl_b32 s12, s3, 2", "v_add_u32 v30, s12, v30",
         "v_lshlrev_b32 v2, 13, v30", "s_lshl_b32 s12, s5, 8", "v_lshl_add_u32 v2, v31, 4, v2", "v_add_u32 v2, s12, v2",
         "v_lshrrev_b32 v1, 1, v31", "v_min_u32 v1, 6, v1", "s_and_b32 s13, s5, 1", "v_add_u32 v1, s13, v1",
         "v_cmp_eq_u32 vcc, 7, v1", "v_and_b32 v31, 1, v31", "s_nop 0", "v_cndmask_b32 v1, v1, 0, vcc",
         "v_lshl_or_b32 v1, v1, 1, v31",
         "v_mul_u32_u24 v3, 7168, v30", "s_mul_i32 s12, s5, 224", "v_add_u32 v3, s12, v3", "v_lshl_add_u32 v3, v1, 4, v3",
         "s_lshl_b32 s12, s4, 4", "s_lshl_b32 s13, s3, 2", "s_add_u32 s15, s12, s13",
         "s_lshl_b32 s12, s15, 15", "v_lshlrev_b32 v4, 4, v0", "v_add_u32 v5, s12, v4",
         "v_add_u32 v6, 0x8000, v5", "v_add_u32 v7, 0x10000, v5", "v_add_u32 v8, 0x18000, v5",
         "s_mul_i32 s10, s3, 3072", "s_add_u32 s10, s10, 65536", "s_mov_b32 s11, 0", "s_mov_b32 s75, 0",
         "s_waitcnt lgkmcnt(0)"])
    srd(A, 44, P_WQ, 1024 * 4096 * 2)
    srd(A, 48, P_WG, 1024 * 3584 * 2 + 1024, -1024)
    srd(A, 52, P_WU, 1024 * 3584 * 2 + 2048, -2048)
    srd(A, 40, P_WS, SZ_XF, WS_XF)

    def acc(blk, j):
        if blk < 14: return v(32 + (blk * 4 + j) * 4, 4)
        return a(((blk - 14) * 4 + j) * 4, 4)
    Afr = lambda blk, h=None: a(192 + (blk % 11) * 4, 4) if h is None else a(192 + (blk % 11) * 4 + 2 * h, 2)
    Bfr = lambda slot, j: a(128 + slot * 16 + j * 4, 4)
    if lead:
        NEXTK = ["s_sub_u32 s12, s11, s14", "s_and_b32 s12, s12, 7", f"s_cmp_lt_u32 s11, {32-lead}", "s_cselect_b32 s12, s12, 1",
                 f"s_add_u32 s13, s11, {lead}", "s_cmp_eq_u32 s12, 0", "s_cselect_b32 s12, s13, s75", "s_subb_u32 s75, s75, -1",
                 f"s_sub_u32 s13, s75, {lead}", "s_cselect_b32 s6, 1, 0", "s_sub_u32 s13, s13, s14", "s_and_b32 s13, s13, 7", "s_or_b32 s13, s13, s6",
                 "s_cmp_eq_u32 s13, 0", "s_addc_u32 s75, s75, 0",
                 "s_add_u32 s11, s11, 1", "s_lshl_b32 s6, s12, 18", "s_mul_i32 s7, s12, 229376", "s_lshl_b32 s8, s12, 10"]
    else:
        NEXTK = ([] if rot0 == 7 else ["s_cmp_lt_u32 s11, 8", f"s_cselect_b32 s13, {rot0}, 7", "s_and_b32 s13, s13, s14"]) + ["s_add_u32 s12, s11, s14" if rot0 == 7 else "s_add_u32 s12, s11, s13", "s_and_b32 s12, s12, 7", "s_and_b32 s13, s11, 0x18", "s_or_b32 s12, s12, s13",
                 "s_add_u32 s11, s11, 1", "s_lshl_b32 s6, s12, 18", "s_mul_i32 s7, s12, 229376", "s_lshl_b32 s8, s12, 10"]
    def d_ops(p, h):
        base = (p % 4) * 24576 + h * 12288
        return [((NEXTK if h == 0 else []) + [f"s_add_u32 m0, s10, {base}"], "buffer_load_dwordx4 v2, s[44:47], s6 offen lds", ("D", p, h), ["s_add_u32 s6, s6, 131072"] if h == 0 else []),
                ([], "buffer_load_dwordx4 v3, s[48:51], s7 offen offset:1024 lds", ("D", p, h), []),
                ([], "buffer_load_dwordx4 v3, s[52:55], s7 offen offset:2048 lds", ("D", p, h), ["s_add_u32 s7, s7, 114688"] if h == 0 else [])]
    def x_ops(p):
        return [([], f"buffer_load_dwordx4 {Bfr(p % 4, j)}, v{5+j}, s[40:43], s8 offen {apol if xpol is None else xpol}", ("X", p), []) for j in range(4)]
    def rd_ops(t, blk):
        part, cb = (1 + (blk & 1), blk >> 1) if blk < 14 else (0, blk - 14)
        slot = t % 4
        reg = (9 if slot < 2 else 17) + cb
        off = (slot % 2) * 24576 + part * 1024
        return [(f"ds_read_b64_tr_b16 {Afr(blk,0)}, v{reg} offset:{off}", ("A", t, blk)),
                (f"ds_read_b64_tr_b16 {Afr(blk,1)}, v{reg} offset:{off+3072}", ("A", t, blk))]
    def emit_vm(op, E, nop=False):
        pre, ins, tag, post = op
        E(pre)
        if pre and nop: E("s_nop 0")
        E(ins); vq.issue(tag); E(post)
    def kv_ops(kind, P):
        reg = 0 if kind == "K" else 65536
        sr = "s[64:67]" if kind == "K" else "s[68:71]"
        ops = []
        for i in range(4):
            ops.append(([f"s_add_u32 m0, s92, {reg + (P % 4) * 16384}", f"s_add_u32 s94, s93, {P * 16384}"] if i == 0 else [],
                        f"buffer_load_dwordx4 v{25+i if kind == 'K' else 29}, {sr}, s94 offen offset:{i*1024} lds", (kind, P), []))
        return ops
    def pf_op(k):
        return [([], f"buffer_load_dword a239, v31, {'s[72:75], s96' if k == 0 else 's[80:83], s97'} offen", ("P", 0), [f"s_add_u32 s{96+k}, s{96+k}, 1024"])]
    for op in d_ops(0, 0) + d_ops(0, 1): emit_vm(op, A.e, True)
    A.e("s_mov_b32 s88, s8")
    srd(A, 84, P_WS, FL_SZ, WS_FLAG)
    A.e(["s_lshr_b32 s12, s91, 1", "s_lshl_b32 s12, s12, 15", "s_and_b32 s13, s91, 1", "s_lshl_b32 s13, s13, 7", "s_add_u32 s90, s12, s13",
         "v_lshlrev_b32 v43, 8, v41", "v_lshl_add_u32 v43, v40, 4, v43",
         "v_lshlrev_b32 v44, 5, v40", "s_lshl_b32 s12, s3, 3", "v_add_u32 v45, s12, v44",
         "s_lshl_b32 s91, s91, 5", f"s_add_u32 s91, s91, {FL_L}"])
    A.e([f"v_mov_b32 v{i}, 0" for i in range(132, 144)])
    A.e(f"buffer_load_dwordx2 v[128:129], v47, s[60:63], 0 offen {WT}"); vq.issue(("N", 0))
    A.e([mfma32(a(i, 16), v(132, 4), v(132, 4), "0") for i in range(0, 128, 16)] + [mfma32(v(i, 16), v(132, 4), v(132, 4), "0") for i in range(144, 256, 16)])
    stamp(1, 1)
    A.e(vq.need(("L", 0)))
    stamp(2, 1)
    X0 = 64
    for i in range(16):
        A.e([f"v_lshlrev_b32 v{X0+2*i}, 16, v{48+i}", f"v_and_b32 v{X0+1+2*i}, 0xffff0000, v{48+i}"])
    def lanesum(src):
        A.e(["s_nop 1", f"v_add_f32_dpp v{src}, v{src}, v{src} row_ror:8 row_mask:0xf bank_mask:0xf",
             f"v_mov_b32 v46, v{src}", "s_nop 1", f"v_permlane16_swap_b32 v46, v{src}", f"v_add_f32 v{src}, v46, v{src}",
             f"v_mov_b32 v46, v{src}", "s_nop 1", f"v_permlane32_swap_b32 v46, v{src}", f"v_add_f32 v{src}, v46, v{src}"])
    A.e([f"v_pk_add_f32 v[32:33], v[{X0}:{X0+1}], v[{X0+2}:{X0+3}]", f"v_pk_add_f32 v[34:35], v[{X0+4}:{X0+5}], v[{X0+6}:{X0+7}]"])
    A.e([f"v_pk_add_f32 v[{32+2*(i%2)}:{33+2*(i%2)}], v[{32+2*(i%2)}:{33+2*(i%2)}], v[{X0+2*i}:{X0+2*i+1}]" for i in range(4, 16)])
    A.e(["v_pk_add_f32 v[32:33], v[32:33], v[34:35]", "v_add_f32 v32, v32, v33"])
    lanesum(32)
    A.e(["v_mul_f32 v32, 0x3b800000, v32", "v_mov_b32 v34, v32", "v_mov_b32 v35, v32"])
    for i in range(16):
        A.e(f"v_pk_add_f32 v[{96+2*i}:{97+2*i}], v[{X0+2*i}:{X0+2*i+1}], v[34:35] neg_lo:[0,1] neg_hi:[0,1]")
    A.e(["v_pk_mul_f32 v[34:35], v[96:97], v[96:97]", "v_pk_mul_f32 v[36:37], v[98:99], v[98:99]"])
    for i in range(2, 16):
        r_ = 34 + 2 * (i % 2)
        A.e(f"v_pk_fma_f32 v[{r_}:{r_+1}], v[{96+2*i}:{97+2*i}], v[{96+2*i}:{97+2*i}], v[{r_}:{r_+1}]")
    A.e(["v_pk_add_f32 v[34:35], v[34:35], v[36:37]", "v_add_f32 v33, v34, v35"])
    lanesum(33)
    A.e(["ds_write_b64 v45, v[32:33]", "s_waitcnt lgkmcnt(0)", "s_barrier",
         "ds_read_b128 v[96:99], v44", "ds_read_b128 v[100:103], v44 offset:16", "s_waitcnt lgkmcnt(0)",
         "v_add_f32 v32, v96, v98", "v_add_f32 v33, v100, v102", "v_add_f32 v34, v97, v99", "v_add_f32 v35, v101, v103",
         "v_add_f32 v32, v32, v33", "v_add_f32 v34, v34, v35", "v_mul_f32 v32, 0.25, v32" if False else "v_mul_f32 v32, 0x3e800000, v32",
         "v_sub_f32 v96, v96, v32", "v_sub_f32 v98, v98, v32", "v_sub_f32 v100, v100, v32", "v_sub_f32 v102, v102, v32",
         "v_mul_f32 v35, v96, v96", "v_fmac_f32 v35, v98, v98", "v_fmac_f32 v35, v100, v100", "v_fmac_f32 v35, v102, v102",
         "v_mul_f32 v34, 0x3a800000, v34", "v_fmac_f32 v34, 0x3e800000, v35"])
    A.e(["v_cvt_pk_bf16_f32 v34, v34, v32", "v_and_b32 v32, 0xffff0000, v34", "v_lshlrev_b32 v34, 16, v34",
         "v_add_f32 v34, 0x3727c5ac, v34", "v_cvt_pk_bf16_f32 v34, v34, v34", "v_lshlrev_b32 v34, 16, v34",
         "v_sqrt_f32 v34, v34", "v_mov_b32 v33, v32", "v_cvt_pk_bf16_f32 v34, v34, v34", "v_lshlrev_b32 v34, 16, v34",
         "v_rcp_f32 v34, v34", "s_nop 0", "v_mov_b32 v35, v34"])
    for q4 in range(4):
        for i in range(4 * q4, 4 * q4 + 4):
            x = X0 + 2 * i
            A.e([f"v_pk_add_f32 v[{x}:{x+1}], v[{x}:{x+1}], v[32:33] neg_lo:[0,1] neg_hi:[0,1]",
                 f"v_cvt_pk_bf16_f32 v{48+i}, v{x}, v{x+1}",
                 f"v_lshlrev_b32 v{x}, 16, v{48+i}", f"v_and_b32 v{x+1}, 0xffff0000, v{48+i}",
                 f"v_pk_mul_f32 v[{x}:{x+1}], v[{x}:{x+1}], v[34:35]",
                 f"v_cvt_pk_bf16_f32 v{48+i}, v{x}, v{x+1}"])
        A.e(f"buffer_store_dwordx4 v[{48+4*q4}:{51+4*q4}], v43, s[40:43], s90 offen offset:{2048*(q4%2)} {WT}"); vq.issue(("S", 0))
        if q4 == 1: A.e("s_add_u32 s90, s90, 4096")
    stamp(3, 1)
    A.e(vq.need(("N", 0)))
    A.e(SPINB)
    A.label(L("pollN"))
    A.e(["v_readfirstlane_b32 s98, v128", "v_readfirstlane_b32 s99, v129", "s_cmp_lg_u32 s98, 0", f"s_cbranch_scc1 {L('gotN')}",
         "s_sub_u32 s12, s12, 1", f"s_cbranch_scc1 {L('gotN')}",
         f"buffer_load_dwordx2 v[128:129], v47, s[60:63], 0 offen {WT}", "s_waitcnt vmcnt(0)", f"s_branch {L('pollN')}"])
    A.label(L("gotN"))
    A.e([mfma32(v(i, 16), v(132, 4), v(132, 4), "0") for i in range(64, 128, 16)])
    A.e(vq.drain()); A.e("s_barrier")
    stamp(4, 1)
    A.e(["s_cmp_lg_u32 s3, 0", f"s_cbranch_scc1 {L('nf')}", "s_mov_b64 exec, 1",
         f"buffer_store_dwordx2 v[128:129], v47, s[84:87], s91 offen {WT}", "s_mov_b64 exec, -1"])
    A.label(L("nf"))
    for op in d_ops(1, 0) + d_ops(1, 1): emit_vm(op, A.e, True)
    A.e("s_mov_b32 s89, s8")
    for op in d_ops(2, 0) + d_ops(2, 1): emit_vm(op, A.e, True)
    A.e("s_mov_b32 s90, s8")
    if tlb & 2:
        srd(A, 68, P_OUT, 2048 * 2048)
        A.e(["v_lshlrev_b32 v1, 21, v0"] + [f"buffer_load_dword a237, v1, s[{r}:{r+3}], 0 offen offset:2048" for r in (44, 48, 52, 68)])
    A.e([mfma32(v(i, 16), v(132, 4), v(132, 4), "0") for i in (32, 48)])
    A.e(["v_lshrrev_b32 v1, 4, v0", "v_mul_u32_u24 v30, 6144, v1", "v_and_b32 v1, 1, v1",
         "v_bfe_u32 v31, v0, 2, 2", "v_lshl_add_u32 v30, v31, 8, v30", "v_lshl_or_b32 v31, v31, 1, v1",
         "v_and_b32 v1, 3, v0", "v_lshl_add_u32 v30, v1, 3, v30", "v_add_u32 v30, 0x10000, v30"])
    for cb in range(8):
        A.e([f"v_xor_b32 v1, {cb}, v31", f"v_lshl_add_u32 v{9+cb}, v1, 5, v30", f"v_add_u32 v{17+cb}, 49152, v{9+cb}"])
    for blk in range(11):
        for ins, tg in rd_ops(0, blk): A.e(ins); dq.issue(tg)
    srd(A, 64, P_K, 4 * 2048 * 256)
    srd(A, 68, P_V, 4 * 2048 * 256)
    srd(A, 56, P_WS, SZ_HF, WS_HF)
    srd(A, 60, P_WS, SZ_OF, WS_OF)
    A.e(["v_lshrrev_b32 v30, 4, v0", "v_and_b32 v31, 15, v0", "v_xor_b32 v1, v31, v30"])
    for i in range(4):
        A.e([f"v_xor_b32 v{25+i}, {4*i}, v1", f"v_lshlrev_b32 v{25+i}, 4, v{25+i}", f"v_lshl_add_u32 v{25+i}, v30, 8, v{25+i}"])
    A.e(["v_lshlrev_b32 v1, 2, v30", "v_xor_b32 v1, v31, v1", "v_lshlrev_b32 v1, 4, v1", "v_lshl_add_u32 v29, v30, 8, v1",
         "s_lshr_b32 s12, s5, 3", "s_lshl_b32 s12, s12, 19", "s_lshl_b32 s92, s3, 12",
         "s_add_u32 s93, s12, s92", f"s_add_u32 s93, s93, {1536*256}",
         "s_mov_b32 s9, 7"])
    if pfG in (1, 2):
        srd(A, 72, P_WO, 4096 * 2048); srd(A, 80, P_WD, 3584 * 2048)
        A.e(["s_lshl_b32 s12, s2, 2", "s_add_u32 s12, s12, s3", "s_lshl_b32 s96, s12, 13", "s_mul_i32 s97, s12, 7168",
             f"v_and_b32 v31, {7 if pfs == 7 else 3}, v0", f"v_lshlrev_b32 v31, {pfs}, v31"])
    stamp(5, 1)
    A.e(["s_cmp_lg_u32 s3, 0", f"s_cbranch_scc1 {L('gotL')}",
         "v_and_b32 v1, 31, v0", "v_lshlrev_b32 v1, 5, v1", "s_lshl_b32 s95, s4, 10", f"s_add_u32 s95, s95, {FL_L}", SPINB])
    A.label(L("pollL"))
    A.e([f"buffer_load_dwordx2 v[128:129], v1, s[84:87], s95 offen {WT}", "s_waitcnt vmcnt(0)",
         "s_sub_u32 s12, s12, 1", f"s_cbranch_scc1 {L('gotL')}",
         "v_cmp_ne_u64 vcc, s[98:99], v[128:129]", f"s_cbranch_vccz {L('gotL')}", f"s_sleep {psleep}", f"s_branch {L('pollL')}"])
    A.label(L("gotL"))
    A.e("s_barrier")
    stamp(6, 1)
    for p_, sr in ((0, "s88"), (1, "s89"), (2, "s90")):
        for op in x_ops(p_): A.e(op[1].replace("s8 offen", f"{sr} offen")); vq.issue(op[2])
    for op in d_ops(3, 0): emit_vm(op, A.e, True)
    A.e([f"v_mov_b32 v{i}, 0" for i in (128, 129, 130, 131)])
    A.e(vq.need(("X", 2)))
    stamp(1)

    BARM = barm
    def step(t, E, first_ops=None, second_ops=None, last=False):
        v1 = d_ops(t + 3, 1) + x_ops(t + 3) if first_ops is None else first_ops
        v2_ = d_ops(t + 4, 0) if second_ops is None else second_ops
        if pfG == 1 and second_ops is None and t % 2 == 0: v2_ = v2_ + pf_op((t // 2) % 2)
        if pfG == 2 and second_ops is None and t == 0: v2_ = v2_ + pf_op(0)
        if gdbg & 1: v1 = [o for o in v1 if o[2][0] != "X"]
        if gdbg & 2:
            v1 = [o for o in v1 if o[2][0] != "D"]; v2_ = [o for o in v2_ if o[2][0] != "D"]
        def spread(n, lo, hi):
            c = [m for m in range(lo, hi) if m % 4 == vmod]
            if n == 0: return []
            return [c[(i * len(c)) // n] for i in range(n)]
        sched = list(zip(spread(len(v1), *sp1), v1)) + list(zip(spread(len(v2_), max(sp2[0], BARM + 3), sp2[1]), v2_))
        pend = []; post = []; pre = list(sched[0][1][0]) if sched else []; vi = 0
        for m in range(88):
            blk, j = m // 4, m % 4
            if m == 0: E(vq.need(("X", t)))
            if j == 0: E(dq.need(("A", t, blk)))
            E(mfma16(acc(blk, j), Afr(blk), Bfr(t % 4, j)))
            if m == BARM:
                E(vq.need(("D", t + 1, 1))); E(dq.drain()); E("s_barrier")
            if j == 3:
                if blk < 11: pend += rd_ops(t, blk + 11)
                elif not last: pend += rd_ops(t + 1, blk - 11)
            if vi < len(sched) and m == sched[vi][0]:
                assert not pre, (t, m, pre)
                op = sched[vi][1]
                E(op[1]); vq.issue(op[2]); post += op[3]; vi += 1
                if vi < len(sched): pre = list(sched[vi][1][0])
            else:
                used = 0
                while pend and used < (2 if len(pend) > 2 else 1) and not (pend[0][1][1] > t and m < BARM):
                    ins, tag = pend.pop(0); E(ins); dq.issue(tag); used += 1
                while post and used < 2: E(post.pop(0)); used += 1
                while pre and used < 2 and not post and not (sched[vi][0] > BARM and m < BARM - 8): E(pre.pop(0)); used += 1
        for ins, tag in pend: E(ins); dq.issue(tag)
        E(post)
    for t in range(4): step(t, lambda x: None)
    vq.rebase(4); dq.rebase(4)
    A.raw(".p2align 6")
    A.label(L("loop"))
    for t in range(4): step(t, A.e)
    if pst == 3:
        A.e(["s_memtime s[76:77]", "s_memrealtime s[78:79]", "s_waitcnt lgkmcnt(0)", "v_cmp_eq_u32 vcc, s9, v0", "v_mov_b32 v1, s76", "s_nop 0", "v_cndmask_b32 v31, v31, v1, vcc", "v_mov_b32 v1, s78", "v_cndmask_b32 v30, v30, v1, vcc"])
    A.e(["s_sub_u32 s9, s9, 1", "s_cmp_lg_u32 s9, 0", f"s_cbranch_scc1 {L('loop')}"])
    if pst == 3:
        for k in range(1, 8):
            A.e([f"v_readlane_b32 s76, v31, {8-k}", f"v_readlane_b32 s78, v30, {8-k}", "s_nop 1", "v_mov_b32 v1, s76", f"v_accvgpr_write_b32 a{240+2*k}, v1", "v_mov_b32 v1, s78", f"v_accvgpr_write_b32 a{241+2*k}, v1"])
    vq.rebase(4); dq.rebase(4)
    if cpf >= 2: emit_vm(code_touch(30, "a238"), A.e)
    step(0, A.e, None, kv_ops("K", 0) + kv_ops("K", 1))
    step(1, A.e, kv_ops("K", 2) + kv_ops("K", 3), kv_ops("V", 0) + kv_ops("V", 1))
    step(2, A.e, kv_ops("V", 2), kv_ops("V", 3) + (pf_op(0) if pfG in (1, 2) else []))
    step(3, A.e, [], [], last=True)
    stamp(2)

    HP = "" if hwb else WT
    A.e(["s_mul_i32 s6, s15, 114688", "s_mul_i32 s12, s5, 7", "s_add_u32 s12, s12, 1", "s_lshr_b32 s12, s12, 1", "s_lshl_b32 s12, s12, 10",
         "s_add_u32 s6, s6, s12",
         "s_and_b32 s13, s5, 1", "s_cmp_eq_u32 s13, 0", "s_mov_b32 s13, 0xfffffc08", "s_cselect_b32 s13, 0xc00, s13",
         "s_add_u32 s7, s6, s13",
         "s_mov_b32 s8, 0xbfb8aa3b", "s_mov_b32 s9, 0xbfb8aa3b"])
    def hblock(b, j, dst):
        g = 32 + ((2 * b) * 4 + j) * 4; u = g + 16
        out = []
        out += [f"v_pk_mul_f32 v[{g+r_}:{g+r_+1}], v[{g+r_}:{g+r_+1}], s[8:9]" for r_ in (0, 2)]
        out += [f"v_exp_f32 v{g+r_}, v{g+r_}" for r_ in range(4)]
        out += [f"v_pk_add_f32 v[{g+r_}:{g+r_+1}], v[{g+r_}:{g+r_+1}], 1.0 op_sel_hi:[1,0]" for r_ in (0, 2)]
        out += [f"v_rcp_f32 v{g+r_}, v{g+r_}" for r_ in range(4)]
        out += [f"v_pk_mul_f32 v[{g+r_}:{g+r_+1}], v[{g+r_}:{g+r_+1}], v[{u+r_}:{u+r_+1}]" for r_ in (0, 2)]
        out += [f"v_cvt_pk_bf16_f32 v{dst}, v{g}, v{g+1}", f"v_cvt_pk_bf16_f32 v{dst+1}, v{g+2}, v{g+3}"]
        return out
    for i in range(2):
        for j in range(4):
            dst = 32 + ((4 * i + 1) * 4 + j) * 4
            A.e(hblock(2 * i, j, dst)); A.e(hblock(2 * i + 1, j, dst + 2))
            A.e([f"s_add_u32 s13, s6, {j*114688}", f"buffer_store_dwordx4 {v(dst,4)}, v4, s[56:59], s13 offen offset:{i*1024} {HP}"]); vq.issue(("H", 0))
    hrest = []; hdef = []
    if not hdf:
        for j in range(4):
            dst = 32 + (9 * 4 + j) * 4
            A.e(hblock(4, j, dst) + hblock(5, j, dst + 2) + [f"s_add_u32 s13, s6, {j*114688}", f"buffer_store_dwordx4 {v(dst,4)}, v4, s[56:59], s13 offen offset:2048 {HP}"]); vq.issue(("H", 0))
            dst = 32 + (13 * 4 + j) * 4
            A.e(hblock(6, j, dst) + [f"s_add_u32 s13, s7, {j*114688}", f"buffer_store_dwordx2 {v(dst,2)}, v4, s[56:59], s13 offen {HP}"]); vq.issue(("H", 0))
    for j in range(4 if hdf else 0):
        dst = 32 + (9 * 4 + j) * 4
        hrest += hblock(4, j, dst) + hblock(5, j, dst + 2) + [f"v_accvgpr_write_b32 a{192+4*j+k}, v{dst+k}" for k in range(4)]
        hdef.append(([f"s_add_u32 s90, s14, {j*114688}"], f"buffer_store_dwordx4 {a(192+4*j,4)}, v4, s[56:59], s90 offen offset:2048 {HP}", ("H", 0), []))
    for j in range(4 if hdf else 0):
        dst = 32 + (13 * 4 + j) * 4
        hrest += hblock(6, j, dst) + [f"v_accvgpr_write_b32 a{208+2*j+k}, v{dst+k}" for k in range(2)]
        hdef.append(([f"s_add_u32 s90, s4, {j*114688}"], f"buffer_store_dwordx2 {a(208+2*j,2)}, v4, s[56:59], s90 offen {HP}", ("H", 0), []))
    QF = lambda mu, t: 32 + (mu * 8 + t) * 4
    SB = lambda b, mu: 96 + (b * 2 + mu) * 16
    NM = lambda mu: 160 + mu * 16
    PB = lambda b, mu: 192 + (b * 2 + mu) * 8
    EB = 224; VL = 232; VTS = 234; VT = 236
    A.e([f"s_mov_b32 s12, {QSCALE:#x}", f"s_mov_b32 s13, {QSCALE:#x}", f"s_mov_b32 s95, {thr:#x}"])
    for t in range(8):
        for mu in range(2):
            tmp = 96 + ((t * 2 + mu) % 4) * 8
            for x in range(2):
                src = (t * 4 + 2 * mu + x) * 4
                A.e([f"v_accvgpr_read_b32 v{tmp+4*x+r_}, a{src+r_}" for r_ in range(4)])
            A.e([f"v_pk_mul_f32 v[{tmp+2*k}:{tmp+2*k+1}], v[{tmp+2*k}:{tmp+2*k+1}], s[12:13]" for k in range(4)])
            q = QF(mu, t)
            A.e([f"v_cvt_pk_bf16_f32 v{q+k}, v{tmp+2*k}, v{tmp+2*k+1}" for k in range(4)])
            if (t * 2 + mu) > 0:
                pq = QF(*prev)
                A.e([f"v_permlane16_swap_b32 v{pq}, v{pq+2}", f"v_permlane16_swap_b32 v{pq+1}, v{pq+3}"])
            prev = (mu, t)
    A.e(["v_and_b32 v30, 31, v0", "v_lshrrev_b32 v31, 5, v0", "v_and_b32 v1, 15, v0", "v_xor_b32 v1, v1, v31",
         "v_lshlrev_b32 v30, 8, v30"])
    pq = QF(*prev)
    A.e([f"v_permlane16_swap_b32 v{pq}, v{pq+2}", f"v_permlane16_swap_b32 v{pq+1}, v{pq+3}"])
    for t in range(8):
        A.e([f"v_xor_b32 v{9+t}, {2*t}, v1", f"v_lshl_add_u32 v{9+t}, v{9+t}, 4, v30"])
    A.e(["v_bfe_u32 v1, v0, 2, 2", "v_lshlrev_b32 v30, 10, v31", "v_lshl_add_u32 v30, v1, 8, v30",
         "v_bfe_u32 v22, v0, 4, 1", "v_lshl_add_u32 v30, v22, 5, v30", "v_and_b32 v23, 3, v0", "v_lshl_add_u32 v30, v23, 3, v30",
         "v_add_u32 v30, 0x10000, v30"])
    for i in range(4):
        A.e([f"v_xor_b32 v23, {i}, v1", f"v_lshl_add_u32 v{17+i}, v23, 6, v30"])
    A.e(["v_lshlrev_b32 v21, 17, v22", "v_lshl_add_u32 v21, v31, 8, v21", "v_and_b32 v1, 15, v0", "v_lshl_add_u32 v21, v1, 4, v21"])
    Kf = lambda t: a(128 + t * 4, 4)
    Vf = lambda i, tp, h=None: a(160 + (i * 2 + tp) * 4, 4) if h is None else a(160 + (i * 2 + tp) * 4 + 2 * h, 2)
    Oacc = lambda i, mu: a((i * 2 + mu) * 16, 16)
    def k_reads(T): return [(f"ds_read_b128 {Kf(t)}, v{9+t} offset:{(T % 8) * 8192}", ("K", T, t)) for t in range(8)]
    def v_reads(T):
        return [(f"ds_read_b64_tr_b16 {Vf(i,tp,h)}, v{17+i} offset:{(T % 8) * 8192 + tp * 4096 + h * 2048}", ("V", T, i, tp))
                for i in range(4) for tp in range(2) for h in range(2)]
    def qk(T, c0):
        return [(mfma32(v(SB(T & 1, mu), 16), Kf(t), v(QF(mu, t), 4), (c0(mu) if t == 0 else None)), ("K", T, t)) for t in range(8) for mu in range(2)]
    def pv(T):
        return [(mfma32(Oacc(i, mu), Vf(i, tp), v(PB(T & 1, mu) + 4 * tp, 4), ("0" if (T == 0 and tp == 0) else None)), ("V", T, i, tp))
                for i in range(4) for tp in range(2) for mu in range(2)]
    A.e(vq.need(("V", 3))); A.e("s_barrier")
    dq.slack = 15
    for ins, tag in k_reads(0): A.e(ins); dq.issue(tag)
    A.e(hrest[:12]); hrest = hrest[12:]
    for ins, tag in qk(0, lambda mu: "0"):
        A.e(dq.need(tag, 4)); A.e(ins); A.e(hrest[:4]); hrest = hrest[4:]
    for ins, tag in k_reads(1): A.e(ins); dq.issue(tag)
    A.e(hrest)
    A.e((["s_and_b32 s12, s2, 7", "s_lshr_b32 s72, s12, 2", "s_and_b32 s13, s12, 1", "s_lshl_b32 s73, s4, 1", "s_add_u32 s73, s73, s13",
         "s_bfe_u32 s13, s12, 0x10001"] if kmap == 0 else
        ["s_and_b32 s72, s2, 1", "s_bfe_u32 s13, s2, 0x10001", "s_lshl_b32 s73, s4, 1", "s_add_u32 s73, s73, s13",
         "s_bfe_u32 s13, s2, 0x10002"]) + ["s_lshl_b32 s13, s13, 2", "s_lshr_b32 s74, s2, 6", "s_add_u32 s74, s74, s13",
         "s_lshr_b32 s12, s3, 1", "s_and_b32 s13, s3, 1",
         "s_cmp_eq_u32 s72, 0",
         f"s_cselect_b32 s8, {8*N1S}, {8*N1Y}", f"s_cselect_b32 s9, 0, {16*N1S}", "s_mul_i32 s8, s8, s12", "s_add_u32 s8, s8, s9",
         "s_cmp_eq_u32 s72, 0",
         f"s_cselect_b32 s75, {SS}, {64-SS}", f"s_cselect_b32 s96, 0, {2*SS}", "s_mul_i32 s75, s75, s12", "s_add_u32 s75, s75, s96",
         "s_lshl_b32 s9, s8, 10", "s_lshl_b32 s8, s8, 16",
         "s_lshl_b32 s96, s75, 10", "s_lshl_b32 s75, s75, 16",
         "s_lshl_b32 s13, s13, 12",
         "s_lshl_b32 s10, s12, 17", "s_add_u32 s10, s10, s13",
         "s_lshl_b32 s11, s12, 16", "s_add_u32 s11, s11, 0x8000", "s_add_u32 s11, s11, s13",
         "v_lshrrev_b32 v30, 4, v0", "v_and_b32 v31, 15, v0", "v_lshlrev_b32 v1, 2, v30", "v_xor_b32 v31, v31, v1",
         "s_lshl_b32 s13, s13, 3", "s_lshl_b32 s97, s74, 8", "s_add_u32 s97, s97, s13",
         "v_lshlrev_b32 v30, 11, v30", "v_add_u32 v30, s97, v30",
         "v_lshl_add_u32 v246, v31, 4, v30", "v_xor_b32 v31, 2, v31", "v_lshl_add_u32 v247, v31, 4, v30", "v_add_u32 v247, 7168, v247",
         "v_add_u32 v248, 14336, v246", "v_add_u32 v249, 14336, v247", "v_mov_b32 v250, s98", "v_mov_b32 v251, s99", "v_mov_b32 v252, 0",
         "s_lshl_b32 s97, s73, 3", "s_and_b32 s13, s3, 1", "s_lshl_b32 s13, s13, 2", "s_add_u32 s97, s97, s13", "s_lshl_b32 s12, s12, 1"])
    for jj in range(4):
        A.e([f"s_xor_b32 s13, s12, {jj}", "s_add_u32 s13, s13, s97", "s_mul_i32 s90, s13, 114688", f"v_add_u32 v{5+jj}, s90, v4",
             "s_lshl_b32 s90, s13, 17", f"v_add_u32 v{242+jj}, s90, v4"])
    A.e(["v_lshlrev_b32 v24, 5, v0", "v_and_b32 v24, 0x3e0, v24",
         "s_lshl_b32 s12, s4, 10", f"s_add_u32 s91, s12, {FL_H}", f"s_add_u32 s97, s12, {FL_O}",
         "s_lshl_b32 s13, s5, 5", "s_add_u32 s88, s91, s13", "s_add_u32 s89, s97, s13"])
    srd(A, 48, P_WS, FL_SZ, WS_FLAG)
    srd(A, 44, P_WD, 3584 * 2048)
    srd(A, 40, P_WS, SZ_HF, WS_HF)
    for i in range(8):
        A.e([f"s_add_u32 s13, s14, {i}", "s_and_b32 s13, s13, 7", f"s_lshl_b32 s{80+i}, s13, 10"])
    WV = 246
    def w_ops(t, half=False):
        slot = t % 8
        ops = []
        rot_ = [f"s_and_b32 s12, s{80+slot}, 0xc00", "s_lshl_b32 s12, s12, 6"] if half else [f"s_lshl_b32 s12, s{80+slot}, 6"]
        for i in range(4):
            ops.append(([f"s_add_u32 m0, s{10 if slot < 4 else 11}, {(slot%4)*8192}"] + rot_ + ["s_add_u32 s12, s12, s8"] if i == 0 else [],
                        f"buffer_load_dwordx4 v{WV+i}, s[44:47], s12 offen offset:{i*1024} lds", ("W", t),
                        ["s_add_u32 s8, s8, 0x80000"] if (i == 3 and slot == 7) else []))
        return ops
    BR = [192, 208, 224, 0, 16, 32, 48, 64]
    facc = lambda cb, jj: v(32 + (cb * 4 + jj) * 4, 4)
    FA = lambda cb, h=None: a(128 + cb * 4, 4) if h is None else a(128 + cb * 4 + 2 * h, 2)
    FB = lambda slot, jj: a(BR[slot] + jj * 4, 4)
    def a_ops(t, half=False):
        slot = t % 8
        return [(([f"s_and_b32 s13, s{80+slot}, 0xc00", "s_add_u32 s13, s13, s9"] if half else [f"s_add_u32 s13, s{80+slot}, s9"]) if jj == 0 else [],
                 f"buffer_load_dwordx4 {FB(slot,jj)}, v{5+jj}, s[40:43], s13 offen {apol}", ("X", t),
                 ["s_add_u32 s9, s9, 0x2000"] if (jj == 3 and slot == 7) else []) for jj in range(4)]
    spins = []
    def check_flags(tag, reg, addr, off):
        A.e([f"v_cmp_ne_u64 vcc, s[98:99], v[{reg}:{reg+1}]", f"s_cbranch_vccnz {L('spin' + tag)}"])
        A.label(L("ok" + tag))
        spins.append((tag, reg, addr, off))

    A.e(["s_mov_b32 s14, s6", "s_mov_b32 s4, s7"])
    A.e(["v_mov_b32 v232, 0", "v_mov_b32 v233, 0"])
    def rowmax(S, dst, tmp):
        out = [f"v_max3_f32 v{dst}, v{S}, v{S+1}, v{S+2}"]
        for k in range(3, 15, 2): out.append(f"v_max3_f32 v{dst}, v{dst}, v{S+k}, v{S+k+1}")
        out += [f"v_max_f32 v{dst}, v{dst}, v{S+15}", f"v_mov_b32 v{tmp}, v{dst}", "s_nop 1",
                f"v_permlane32_swap_b32 v{tmp}, v{dst}", f"v_max_f32 v{dst}, v{dst}, v{tmp}"]
        return out
    for mu in range(2):
        A.e(rowmax(SB(0, mu), VT + mu, VT + 2))
        A.e([f"v_sub_f32 v{NM(mu)+k}, 0, v{VT+mu}" for k in range(16)])
        A.e([f"v_sub_f32 v{SB(0,mu)+k}, v{SB(0,mu)+k}, v{VT+mu}" for k in range(16)])
    def sm(T):
        b = T & 1
        out = []
        def ex(n): return (f"v_exp_f32 v{EB + n % 8}, v{SB(b, n // 16) + n % 16}", 8)
        def fin(n):
            mu, r_ = n // 16, n % 16; e = EB + n % 8; o = []
            if r_ == 1: o.append((f"v_add_f32 v{VTS+mu}, v{EB + (n-1) % 8}, v{e}", 4))
            elif r_ > 1: o.append((f"v_add_f32 v{VTS+mu}, v{VTS+mu}, v{e}", 4))
            if r_ % 2 == 1: o.append((f"v_cvt_pk_bf16_f32 v{PB(b,mu) + r_//2}, v{EB + (n-1) % 8}, v{e}", 5))
            return o
        out.append(ex(0)); out.append(ex(1))
        for n in range(2, 32):
            out.append(ex(n)); out += fin(n - 2)
        out += fin(30) + fin(31)
        out += [(f"v_max_f32 v{VT}, v{VTS}, v{VTS+1}", 4), (f"v_cmp_nge_f32 vcc, s95, v{VT}", 4)]
        return out
    stamp(3)
    def flag_store(off_sreg):
        lab = L("fl%d" % A.nlabel); A.nlabel += 1
        A.e(["s_cmp_lg_u32 s3, 0", f"s_cbranch_scc1 {lab}", "s_mov_b64 exec, 1",
             f"buffer_store_dwordx2 v[250:251], v252, s[48:51], {off_sreg} offen {WT}", "s_mov_b64 exec, -1"])
        A.label(lab)
    endsetup = ["s_lshl_b32 s6, s15, 17", "s_lshl_b32 s90, s5, 12", "s_add_u32 s6, s6, s90", "s_add_u32 s7, s6, 0x40000",
                f"v_mov_b32 v{VT}, v{VL}", f"v_mov_b32 v{VT+1}, v{VL+1}", "v_mov_b32 v29, v21", "v_mov_b32 v253, v24",
                f"v_permlane32_swap_b32 v{VT}, v{VL}", f"v_permlane32_swap_b32 v{VT+1}, v{VL+1}",
                f"v_add_f32 v{VT}, v{VT}, v{VL}", f"v_add_f32 v{VT+1}, v{VT+1}, v{VL+1}",
                f"v_rcp_f32 v{VT+2}, v{VT}", f"v_rcp_f32 v{VT+4}, v{VT+1}",
                "v_lshrrev_b32 v1, 4, v0", f"v_mov_b32 v{VT+3}, v{VT+2}", f"v_mov_b32 v{VT+5}, v{VT+4}",
                "v_lshlrev_b32 v30, 10, v1", "v_and_b32 v1, 1, v1",
                "v_bfe_u32 v31, v0, 2, 2", "v_lshl_add_u32 v30, v31, 8, v30", "v_lshl_or_b32 v31, v31, 1, v1",
                "v_and_b32 v1, 3, v0", "v_lshl_add_u32 v30, v1, 3, v30",
                "s_lshr_b32 s91, s3, 1", "s_lshl_b32 s90, s91, 17", "s_lshl_b32 s91, s91, 16", "s_add_u32 s91, s91, 0x8000"]
    for cb in range(8):
        endsetup += [f"v_xor_b32 v1, {cb}, v31", "v_lshl_add_u32 v1, v1, 5, v30", f"v_add_u32 v{9+cb}, s90, v1", f"v_add_u32 v{17+cb}, s91, v1"]
    rare_sites = []
    for T in range(17):
        mf = (qk(T + 1, lambda mu: v(NM(mu), 16)) if T + 1 <= 15 else []) + (pv(T - 1) if T >= 1 else [])
        nq = 16 if T + 1 <= 15 else 0
        va = ([(f"v_add_f32 v{VL}, v{VL}, v{VTS}", 4), (f"v_add_f32 v{VL+1}, v{VL+1}, v{VTS+1}", 4)] if T >= 1 else []) + (sm(T) if T <= 15 else [])
        rdv = v_reads(T - 1) if T >= 1 else []
        rdk = k_reads(T + 2) if T + 2 <= 15 else []
        vm = []
        if T % 2 == 0 and T <= 14:
            w = []
            if T == hfT: w += vq.need(("H", 0))
            if T >= 6: w += vq.need(("K", (T + 2) // 2))
            if T >= 8: w += vq.need(("V", T // 2))
            A.e(w[-1:]); A.e(dq.drain()); A.e("s_barrier")
            if T == hfT:
                if hwb:
                    lab = L("wb")
                    A.e(["s_cmp_lg_u32 s3, 0", f"s_cbranch_scc1 {lab}", "buffer_wbl2 sc1"]); A.label(lab)
                else: flag_store("s88")
            if T == 8 and hwb: flag_store("s88")
            if T <= 6: vm += kv_ops("K", T // 2 + 4)
            if 4 <= T <= 10: vm += kv_ops("V", T // 2 + 2)
            if T == 12: vm += w_ops(0) + w_ops(1)
            if T == 14:
                A.e(vq.need(("F", 0))); check_flags("H", 22, 24, "s91")
                vm += a_ops(0) + a_ops(1)
        if pfA and 3 <= T <= 10:
            pre = []
            if T == 3:
                pre = [f"s_mov_b32 s52, s{P_WO}", f"s_and_b32 s53, s{P_WO+1}, 0xffff", f"s_mov_b32 s54, {4096*2048:#x}",
                       "s_lshl_b32 s12, s2, 2", "s_add_u32 s12, s12, s3", "s_lshl_b32 s100, s12, 13", "s_mul_i32 s101, s12, 7168",
                       "v_and_b32 v2, 7, v0", "v_lshlrev_b32 v2, 7, v2", "v_add_u32 v3, 4096, v2"]
            k = T - 3
            if k < 7: vm += [(pre, f"buffer_load_dword v30, v{2 if k < 4 else 3}, s[44:47], s101 offen offset:{(k % 4) * 1024}", ("P", 0), [])]
            if pfA == 2: vm += [([], f"buffer_load_dword v30, v{2 if k < 4 else 3}, s[52:55], s100 offen offset:{(k % 4) * 1024}", ("P", 0), [])]
        if T == 9 and cpf >= 3: emit_vm(code_touch(31, "v31"), A.e)
        if T == 12: vm += [([], f"buffer_load_dwordx2 v[22:23], v24, s[48:51], s91 offen {WT}", ("F", 0), [])]
        if T == 13: vm += w_ops(2) + w_ops(3)
        if T < 4: vm += hdef[2 * T: 2 * T + 2]
        if T == 15: vm += a_ops(2)
        roll = v_reads(T) if (t16 and T in (14, 15)) else []
        if t16 and T >= 15: rdv = []
        if t16 and T == 16:
            A.e(dq.drain()); A.e("s_barrier")
            vm += w_ops(4) + w_ops(5) + w_ops(6)
            va += [(x, 4) for x in endsetup]
        if nq == 0:
            for ins, tag in rdv: A.e(ins); dq.issue(tag)
            rdv = []
        n = len(mf)
        vml = []
        for op in vm:
            vml += [(x, 4, None) for x in op[0]] + ([("s_nop 0", 4, None)] if op[0] else []) + [(op[1], 8, op[2])] + [(x, 4, None) for x in op[3]]
        tot = sum(c for _, c in va) + 4 * (len(rdv) + len(rdk) + len(roll)) + sum(c for _, c, _ in vml)
        done = 0
        for m, (ins, tag) in enumerate(mf):
            w = dq.need(tag, dsl); A.e(w); A.e(ins)
            used = 4 * len(w)
            budget = max(cap, -(-(tot - done) // (n - m)) + 3) if m < n - 1 else 10 ** 6
            target = (tot * (m + 1)) // n + 6
            if roll and m >= nq and (m - nq) % 2 == 1: rdk += roll[:2]; roll = roll[2:]
            rd = rdv if (m < nq and rdv) else (rdk if (m >= nq and rdk) else None)
            if rd:
                ri, rt = rd.pop(0); A.e(ri); dq.issue(rt); used += 4; done += 4
                if rd is rdv and len(rd) > (nq - 3 - m):
                    ri, rt = rd.pop(0); A.e(ri); dq.issue(rt); used += 4; done += 4
            elif vml:
                x, c, tg = vml.pop(0); A.e(x); used += c; done += c
                if tg: vq.issue(tg)
                while vml and c == 4 and used < 12:
                    x, c, tg = vml.pop(0); A.e(x); used += c; done += c
                    if tg: vq.issue(tg)
            while va and used + va[0][1] <= budget and (done < target or m == n - 1):
                x, c = va.pop(0); A.e(x); used += c; done += c
        assert not rdv
        for ins, tag in rdk: A.e(ins); dq.issue(tag)
        for x, c, tg in vml:
            A.e(x)
            if tg: vq.issue(tg)
        for x, c in va: A.e(x)
        if T <= 15:
            A.e([f"s_cbranch_vccnz {L('rs%d' % T)}"])
            A.label(L("rb%d" % T))
            rare_sites.append(T)
    stamp(4)
    if not t16:
        A.e("s_barrier")
        for t in range(4, 7):
            for op in w_ops(t): emit_vm(op, A.e, True)
        A.e(endsetup)
    def frd(t, cb):
        slot = t % 8
        reg = (9 if slot < 4 else 17) + cb; off = (slot % 4) * 8192
        return [(f"ds_read_b64_tr_b16 {FA(cb,0)}, v{reg} offset:{off}", ("A", t, cb)),
                (f"ds_read_b64_tr_b16 {FA(cb,1)}, v{reg} offset:{off+4096}", ("A", t, cb))]
    dq.slack = 8
    ostores = []
    cnt = 0
    if oin:
        A.e([f"v_accvgpr_read_b32 v{96+k}, a{k}" for k in range(64)])
        for t in range(3, 7):
            for op in a_ops(t): emit_vm(op, A.e)
        A.e(vq.need(("W", 3))); A.e("s_barrier")
        for cb in range(8):
            for ins, tag in frd(0, cb): A.e(ins); dq.issue(tag)
    for i in range(4):
        for mu in range(2):
            tmp = 96 + (cnt % 4) * 16; dst = 160 + cnt * 8; cnt += 1
            src = (i * 2 + mu) * 16
            if not (oin and cnt <= 4): A.e([f"v_accvgpr_read_b32 v{tmp+k}, a{src+k}" for k in range(16)])
            A.e([f"v_pk_mul_f32 v[{tmp+2*k}:{tmp+2*k+1}], v[{tmp+2*k}:{tmp+2*k+1}], v[{VT+2+2*mu}:{VT+3+2*mu}]" for k in range(8)])
            for s_ in range(2):
                for jj, j in enumerate((s_, s_ + 2)):
                    A.e([f"v_cvt_pk_bf16_f32 v{dst+4*s_+2*jj}, v{tmp+4*j}, v{tmp+4*j+1}", f"v_cvt_pk_bf16_f32 v{dst+4*s_+2*jj+1}, v{tmp+4*j+2}, v{tmp+4*j+3}"])
                ostores.append(([], f"buffer_store_dwordx4 {v(dst+4*s_,4)}, v29, s[60:63], s{6+mu} offen offset:{i*1024+s_*512} {WT}", ("O", 0), []))
                if oin and len(ostores) <= oin: emit_vm(ostores[-1], A.e)
            if not oin and cnt in (1, 2, 3, 4):
                for op in a_ops(2 + cnt): emit_vm(op, A.e)
            if not oin and cnt == 5:
                A.e(vq.need(("W", 3))); A.e("s_barrier")
                for cb in range(8):
                    for ins, tag in frd(0, cb): A.e(ins); dq.issue(tag)
    ostores = ostores[oin:]
    srd(A, 52, P_WS, G_SZ, G_BASE)
    srd(A, 64, P_X, 2048 * 2048)
    srd(A, 68, P_OUT, 2048 * 2048)
    A.e(["s_cmp_eq_u32 s72, 0",
         f"s_cselect_b32 s90, {N1S-nf//8}, {N1Y-nf//8}", f"s_cselect_b32 s95, {N1S-1-nf//8}, {N1Y-1-nf//8}", "s_mov_b32 s91, 0",
         "s_lshl_b32 s12, s73, 3", "s_add_u32 s12, s12, s74",
         "s_lshl_b32 s92, s12, 2", "s_add_u32 s92, s92, s3",
         "s_lshl_b32 s92, s92, 13",
         "s_lshl_b32 s93, s12, 7", f"s_add_u32 s101, s93, {FL_P}", "s_lshl_b32 s12, s3, 5", "s_add_u32 s93, s93, s12",
         "s_lshl_b32 s94, s73, 7", "s_and_b32 s12, s3, 1", "s_lshl_b32 s12, s12, 6", "s_add_u32 s94, s94, s12",
         "s_lshr_b32 s12, s3, 1", "s_lshl_b32 s12, s12, 5", "s_add_u32 s94, s94, s12",
         "s_lshl_b32 s94, s94, 11", "s_lshl_b32 s12, s74, 8", "s_add_u32 s94, s94, s12",
         "v_and_b32 v1, 15, v0", "v_lshlrev_b32 v1, 11, v1", "v_lshrrev_b32 v30, 4, v0",
         "v_lshl_add_u32 v25, v30, 3, v1", "v_add_u32 v26, 0x8000, v25",
         "v_lshl_add_u32 v27, v30, 4, v1", "v_add_u32 v28, 0x8000, v27",
         "s_lshl_b32 s12, s3, 14", "v_add_u32 v2, s12, v4", "s_xor_b32 s12, s12, 0x8000", "v_add_u32 v3, s12, v4",
         "s_lshl_b32 s12, s3, 13", "s_add_u32 s12, s12, 0x10000", "v_add_u32 v254, s12, v4", "s_xor_b32 s12, s12, 0x4000", "v_add_u32 v255, s12, v4"])
    stamp(5)
    XP = (2, 8, 12, 16, 20, 24, 28)
    def fstep(t, E, last=False, extra=(), czero=False, prev=None, afterbar=None, needbar=(), va=None, xp=None):
        if not last: vops = w_ops(t + 7) + a_ops(t + 7)
        else: vops = (w_ops(t + 7, t > 0) + a_ops(t + 7, t > 0)) if t + 7 < tail else []
        xq = xp or (XP if vops else vpos)
        sched = sorted(list(zip(vpos, vops)) + list(zip(xq, extra)), key=lambda x: x[0])
        assert len(extra) <= len(xq)
        isbar = (t % 2 == 1)
        doread = not (last and t == tail - 1)
        pend = []; vi = 0; post = []; pre = [x for _, op in sched for x in op[0]] if False else None
        pres = [list(op[0]) for _, op in sched]
        for m in range(32):
            cb, jj = m // 4, m % 4
            if m == 0: E(vq.need(("X", t)))
            if jj == 0: E(dq.need(("A", t, cb)))
            if prev: E(prev(cb, jj))
            E(mfma16(facc(cb, jj), FA(cb), FB(t % 8, jj), "0" if czero else None))
            if isbar and m == barpos:
                w = vq.need(("W", t + 2))
                for tg in needbar: w += vq.need(tg)
                E(w[-1:]); E(dq.drain()); E("s_barrier")
                if afterbar: afterbar()
            if jj == 3 and doread: pend += frd(t + 1, cb)
            if vi < len(sched) and m == sched[vi][0]:
                assert not pres[vi]
                op = sched[vi][1]
                E(op[1]); vq.issue(op[2]); post += op[3]; vi += 1
            else:
                used = 0
                if not (isbar and m < barpos) and pend:
                    ins, tag = pend.pop(0); E(ins); dq.issue(tag); used += 1
                k = next((k for k in range(vi, len(sched)) if pres[k]), None)
                if k is not None and any("m0" in x for x in pres[k]) and any(" lds" in sched[k2][1][1] for k2 in range(vi, k)): k = None
                while k is not None and pres[k] and used < 2: E(pres[k].pop(0)); used += 1
                if post and used < 2: E(post.pop(0)); used += 1
                cyc = 4 * used
                while va and cyc + va[0][1] <= vcap:
                    x, c = va.pop(0); E(x); cyc += c
        for ins, tag in pend: E(ins); dq.issue(tag)
        E(post)
    oflag = [([], f"buffer_load_dwordx2 v[30:31], v253, s[48:51], s97 offen {WT}", ("F", 0), [])]
    SWW = [[]]
    def loop_body(E, real):
        for t in range(8):
            fstep(t, E, extra=oflag if t == 2 else ())
            if t == 0 and real:
                A.e(["s_cmp_lg_u32 s95, 0", f"s_cbranch_scc1 {L('nosw')}"])
                A.e(SWW[0]); check_flags("O", 30, 253, "s97")
                srd(A, 40, P_WS, SZ_OF, WS_OF); srd(A, 44, P_WO, 4096 * 2048)
                A.e(["s_mov_b32 s8, s75", "s_mov_b32 s9, s96", "s_mov_b32 s97, s101", "v_mov_b32 v253, 0"] + [f"v_mov_b32 v{5+jj}, v{242+jj}" for jj in range(4)])
                A.label(L("nosw"))
    XP8 = (1, 2, 4, 8, 12, 16, 20, 24)
    for t in range(nf):
        k0 = sum(ost[:t]); ex = list(ostores[k0:k0 + ost[t]]) if t < len(ost) else []
        if nf == 16 and t == oft: ex = ex + oflag
        fstep(t, A.e, extra=ex, czero=(t == 0), xp=(XP8 if t % 2 == 0 else (4, 5, 8, 12, 16, 20, 24, 28)) if len(ex) > 3 else (8, 16, 24),
              needbar=[("O", 0)] if t == oflt else (), afterbar=(lambda: flag_store("s89")) if t == oflt else None)
    stamp(6)
    SWW[0] = [f"s_waitcnt vmcnt({vq.count_after(('F', 0)) + 8})"] if ("F", 0) in vq.q else []
    vq.rebase(nf); dq.rebase(nf)
    q_first = (list(vq.q), list(dq.q))
    loop_body(lambda x: None, False)
    vq.rebase(8); dq.rebase(8)
    q_steady = (list(vq.q), list(dq.q))
    assert not any(t[0] == "F" for t in q_steady[0]) and N1S >= 3 and N1Y >= 3
    def covers(entry, steady):
        def younger(q, tag): return len(q) - 1 - max(i for i, t in enumerate(q) if t == tag)
        for tag in set(entry):
            if tag[0] not in "WXA": continue
            if tag not in steady or younger(entry, tag) < younger(steady, tag): return False
        return True
    assert covers(q_first[0], q_steady[0]) and covers(q_first[1], q_steady[1]), (q_first, q_steady)
    A.raw(".p2align 6")
    A.label(L("floop"))
    loop_body(A.e, True)
    A.e(["s_sub_u32 s95, s95, 1", "s_sub_u32 s90, s90, 1", "s_cmp_lg_u32 s90, 0", f"s_cbranch_scc1 {L('floop')}",
         "s_cmp_lg_u32 s91, 0", f"s_cbranch_scc1 {L('flast')}"])
    stamp(3, 2)
    vq.rebase(8); dq.rebase(8)
    YS = lambda cb, jj: 160 + (cb * 2 + jj) * 4
    if mid1:
        A.e("s_nop 2")
        for jj in range(2):
            for i in range(4):
                d = YS(2 * i, jj)
                for h in range(2):
                    b = 32 + ((2 * i + h) * 4 + jj + 2) * 4
                    A.e([f"v_cvt_pk_bf16_f32 v{d+2*h}, v{b}, v{b+1}", f"v_cvt_pk_bf16_f32 v{d+2*h+1}, v{b+2}, v{b+3}"])
                A.e(f"ds_write_b128 v254, {v(d,4)} offset:{(jj*4+i)*1024}")
        A.e(["s_waitcnt lgkmcnt(0)", "s_barrier"])
        for jj in range(2):
            for i in range(4):
                A.e(f"ds_read_b128 {facc(2*i, jj+2)}, v255 offset:{(jj*4+i)*1024}")
        for jj in range(2):
            for i in range(4):
                pc = 32 + ((2 * i) * 4 + jj + 2) * 4
                A.e(f"s_waitcnt lgkmcnt({7 - (jj*4+i)})")
                for h in range(2):
                    b = 32 + ((2 * i + h) * 4 + jj) * 4; y = YS(2 * i + h, jj)
                    A.e([f"v_lshlrev_b32 v{y}, 16, v{pc+2*h}", f"v_and_b32 v{y+1}, 0xffff0000, v{pc+2*h}",
                         f"v_lshlrev_b32 v{y+2}, 16, v{pc+2*h+1}", f"v_and_b32 v{y+3}, 0xffff0000, v{pc+2*h+1}"])
                    A.e([f"v_pk_add_f32 v[{y+r_}:{y+r_+1}], v[{y+r_}:{y+r_+1}], v[{b+r_}:{b+r_+1}]" for r_ in (0, 2)])
    else:
        A.e("s_nop 2")
        for rnd in range(2):
            for cb in range(4 * rnd, 4 * rnd + 4):
                for jj in (2, 3): A.e(f"ds_write_b128 v254, {facc(cb,jj)} offset:{((cb%4)*2+jj-2)*1024}")
            if rnd == 1:
                for cb in range(4):
                    for jj in range(2):
                        b = 32 + (cb * 4 + jj) * 4; y = YS(cb, jj)
                        A.e([f"v_pk_add_f32 v[{y+r_}:{y+r_+1}], v[{b+r_}:{b+r_+1}], v[{b+8+r_}:{b+9+r_}]" for r_ in (0, 2)])
            A.e(["s_waitcnt lgkmcnt(0)", "s_barrier"])
            for cb in range(4 * rnd, 4 * rnd + 4):
                for jj in (2, 3): A.e(f"ds_read_b128 {facc(cb,jj)}, v255 offset:{((cb%4)*2+jj-2)*1024}")
            if rnd == 0: A.e(["s_waitcnt lgkmcnt(0)", "s_barrier"])
        for cb in range(4, 8):
            for jj in range(2):
                b = 32 + (cb * 4 + jj) * 4; y = YS(cb, jj)
                A.e(f"s_waitcnt lgkmcnt({7 - ((cb-4)*2+jj)})")
                A.e([f"v_pk_add_f32 v[{y+r_}:{y+r_+1}], v[{b+r_}:{b+r_+1}], v[{b+8+r_}:{b+9+r_}]" for r_ in (0, 2)])
    A.e(["s_cmp_eq_u32 s72, 0", f"s_cbranch_scc1 {L('firstC')}", "s_add_u32 s6, s92, 4096"])
    for jj in range(2):
        for i in range(4):
            d = 224 + (i % 2) * 4 + jj * 8
            for h in range(2):
                y = YS(2 * i + h, jj)
                A.e([f"v_cvt_pk_bf16_f32 v{d+2*h}, v{y}, v{y+1}", f"v_cvt_pk_bf16_f32 v{d+2*h+1}, v{y+2}, v{y+3}"])
            A.e(f"buffer_store_dwordx4 {v(d,4)}, v4, s[52:55], {'s6' if jj else 's92'} offen offset:{i*1024} {WT}")
    A.label(L("firstC"))
    stamp(4, 2)
    vq.q, dq.q = list(q_steady[0]), list(q_steady[1])
    def pflag():
        lab = L("pf")
        A.e(["s_xor_b32 s6, s72, 1", "s_or_b32 s6, s6, s3", "s_cmp_lg_u32 s6, 0", f"s_cbranch_scc1 {lab}", "s_mov_b64 exec, 1",
             f"buffer_store_dwordx2 v[250:251], v252, s[48:51], s101 offen {WT}", "s_mov_b64 exec, -1"])
        A.label(lab)
    xpre = ["v_lshrrev_b32 v228, 4, v0", "v_and_b32 v229, 15, v0", "v_xor_b32 v229, v229, v228"]
    for i in range(4):
        xpre += [f"v_xor_b32 v{224+i}, {4*i}, v229", f"v_lshlrev_b32 v{224+i}, 4, v{224+i}", f"v_lshl_add_u32 v{224+i}, v228, 11, v{224+i}",
                 f"v_add_u32 v{224+i}, {7168*i}, v{224+i}"]
    xdma = [([f"s_add_u32 m0, s15, {4096*hh}"], f"buffer_load_dwordx4 v{224+i}, s[64:67], {'s100' if hh else 's94'} offen offset:{i*1024} lds", ("R", 0), [])
            for hh in range(2) for i in range(4)]
    A.e(xpre + ["s_lshl_b32 s15, s3, 13", "s_add_u32 s15, s15, 0x10000", "s_add_u32 s100, s94, 0x8000"])
    nopre = lambda op: ([],) + tuple(op[1:])
    mark = ("MARK", vq.total)
    for t in range(8):
        fstep(t, A.e, czero=(t == 0), afterbar=pflag if t == pft else None, needbar=[mark] if t == pft else (), extra={2: [xdma[0], nopre(xdma[1])], 3: [xdma[2]], 4: [xdma[3]], 5: [xdma[4]] + oflag, 6: [xdma[5], nopre(xdma[6])], 7: [xdma[7]]}.get(t, ()),
              xp=(1, 2) if t in (2, 6) else None)
    FW = vq.need(("F", 0))
    vq.rebase(8); dq.rebase(8)
    assert covers(vq.q, q_steady[0]) and covers(dq.q, q_steady[1])
    stamp(5, 2)
    A.e(["s_mov_b32 s91, 1", f"s_mov_b32 s90, {(64-SS-8-tail)//8}", "s_cmp_lg_u32 s72, 0", f"s_cbranch_scc1 {L('floop')}"])
    A.e(FW); check_flags("P", 30, 252, "s101")
    YP = lambda jj, i: 224 + (jj * 4 + i) * 4
    YA = lambda i: 80 + i * 4
    A.e("s_add_u32 s6, s92, 4096")
    for i in range(4):
        A.e([f"buffer_load_dwordx4 {v(YP(0,i),4)}, v4, s[52:55], s92 offen offset:{i*1024} {WT}",
             f"buffer_load_dwordx4 {a(YA(i),4)}, v4, s[52:55], s6 offen offset:{i*1024} {WT}"])
    A.e([f"s_mov_b32 s90, {(SS-8-tail)//8}", f"s_branch {L('floop')}"])
    A.label(L("flast"))
    stamp(6, 2)
    A.e(["s_mov_b32 s6, 0xbfb8aa3b", "s_mov_b32 s7, 0xbfb8aa3b", "s_cmp_lg_u32 s72, 0", f"s_cbranch_scc1 {L('flast2')}"])
    for cb in range(8):
        y = YS(cb, 0); pc = YP(0, cb // 2) + 2 * (cb % 2); T0 = 240 if cb % 2 == 0 else 242
        T0 = 240
        A.e([f"v_lshlrev_b32 v{T0}, 16, v{pc}", f"v_and_b32 v{T0+1}, 0xffff0000, v{pc}",
             f"v_lshlrev_b32 v{T0+2}, 16, v{pc+1}", f"v_and_b32 v{T0+3}, 0xffff0000, v{pc+1}"])
        A.e([f"v_pk_add_f32 v[{y+r_}:{y+r_+1}], v[{y+r_}:{y+r_+1}], v[{T0+r_}:{T0+r_+1}]" for r_ in (0, 2)])
        A.e([f"v_pk_mul_f32 v[{T0+r_}:{T0+r_+1}], v[{y+r_}:{y+r_+1}], s[6:7]" for r_ in (0, 2)])
        A.e([f"v_exp_f32 v{T0+r_}, v{T0+r_}" for r_ in range(4)])
        A.e([f"v_pk_add_f32 v[{T0+r_}:{T0+r_+1}], v[{T0+r_}:{T0+r_+1}], 1.0 op_sel_hi:[1,0]" for r_ in (0, 2)])
        A.e([f"v_rcp_f32 v{T0+r_}, v{T0+r_}" for r_ in range(4)])
        A.e([f"v_pk_mul_f32 v[{y+r_}:{y+r_+1}], v[{y+r_}:{y+r_+1}], v[{T0+r_}:{T0+r_+1}]" for r_ in (0, 2)])
    A.label(L("flast2"))
    vq.q, dq.q = list(q_steady[0]), list(q_steady[1])
    va = []
    for cb in range(8):
        y = YS(cb, 1); pc = YA(cb // 2) + 2 * (cb % 2); T0 = 224 + 4 * (cb % 2)
        va += [(f"v_accvgpr_read_b32 v{T0+1}, a{pc}", 4), (f"v_accvgpr_read_b32 v{T0+3}, a{pc+1}", 4),
               (f"v_lshlrev_b32 v{T0}, 16, v{T0+1}", 4), (f"v_and_b32 v{T0+1}, 0xffff0000, v{T0+1}", 4),
               (f"v_lshlrev_b32 v{T0+2}, 16, v{T0+3}", 4), (f"v_and_b32 v{T0+3}, 0xffff0000, v{T0+3}", 4)]
        va += [(f"v_add_f32 v{y+r_}, v{y+r_}, v{T0+r_}", 4) for r_ in range(4)]
        va += [(f"v_mul_f32 v{T0+r_}, s7, v{y+r_}", 4) for r_ in range(4)]
        va += [(f"v_exp_f32 v{T0+r_}, v{T0+r_}", 8) for r_ in range(4)]
        va += [(f"v_add_f32 v{T0+r_}, 1.0, v{T0+r_}", 4) for r_ in range(4)]
        va += [(f"v_rcp_f32 v{T0+r_}, v{T0+r_}", 8) for r_ in range(4)]
        va += [(f"v_mul_f32 v{y+r_}, v{y+r_}, v{T0+r_}", 4) for r_ in range(4)]
    fin = [(["v_mov_b32 v29, 0"], f"buffer_load_dwordx2 v[30:31], v29, s[48:51], s93 offen {WT}", ("G", 0), [])]
    for t in range(tail):
        fstep(t, A.e, last=True, extra={tail - 3: fin}.get(t, ()), va=va if t >= vat else None)
    A.c(f"left over fillers: {len(va)}")
    for x, c in va: A.e(x)
    stamp(7)
    A.e(["v_mov_b32 v22, s98", "v_mov_b32 v23, s99", f"s_add_u32 s6, s92, {G_SF}", f"s_add_u32 s7, s92, {G_SF+4096}",
         "s_cmp_lg_u32 s72, 0", f"s_cbranch_scc1 {L('xch')}"])
    s2loads = [f"buffer_load_dwordx4 {v(YP(jj,i),4)}, v4, s[52:55], s{6+jj} offen offset:{i*1024} {WT}" for jj in range(2) for i in range(4)]
    A.e(vq.need(("G", 0)))
    A.e(["v_cmp_ne_u64 vcc, s[98:99], v[30:31]", f"s_cbranch_vccnz {L('xch')}", "s_mov_b32 s91, 2"] + s2loads)
    A.label(L("xch"))
    A.e("s_nop 2")
    for cb in range(8):
        for jj in (2, 3):
            A.e(f"ds_write_b128 v2, {facc(cb,jj)} offset:{(cb*2+jj-2)*1024}")
    A.e(["s_waitcnt lgkmcnt(0)", "s_barrier"])
    for jj in (2, 3):
        for cb in range(8):
            A.e(f"ds_read_b128 {facc(cb,jj)}, v3 offset:{(cb*2+jj-2)*1024}")
    A.e(["s_cmp_eq_u32 s72, 0", f"s_cbranch_scc1 {L('sepi')}"])
    for jj in range(2):
        for i in range(4):
            dst = 160 + (jj * 4 + i) * 4
            for h in range(2):
                cb = 2 * i + h
                A.e(f"s_waitcnt lgkmcnt({15 - (jj*8+cb)})")
                b = 32 + (cb * 4 + jj) * 4
                A.e([f"v_pk_add_f32 v[{b+r_}:{b+r_+1}], v[{b+r_}:{b+r_+1}], v[{b+8+r_}:{b+9+r_}]" for r_ in (0, 2)])
                A.e([f"v_cvt_pk_bf16_f32 v{dst+2*h}, v{b}, v{b+1}", f"v_cvt_pk_bf16_f32 v{dst+2*h+1}, v{b+2}, v{b+3}"])
            A.e(f"buffer_store_dwordx4 {v(dst,4)}, v4, s[52:55], s{6+jj} offen offset:{i*1024} {WT}")
    A.e(["s_waitcnt vmcnt(0)", "s_mov_b64 exec, 1",
         f"buffer_store_dwordx2 v[22:23], v29, s[48:51], s93 offen {WT}", "s_mov_b64 exec, -1", f"s_branch {L('fin')}"])
    A.label(L("sepi"))
    A.e(["v_and_b32 v1, 15, v0", "v_lshrrev_b32 v5, 5, v0", "v_xor_b32 v5, v5, v1", "v_bfe_u32 v6, v0, 4, 1", "v_lshlrev_b32 v6, 3, v6",
         "v_lshl_add_u32 v6, v1, 8, v6", "s_lshl_b32 s15, s3, 13", "s_add_u32 s15, s15, 0x10000", "v_add_u32 v6, s15, v6"])
    XR = lambda cb, jj: 96 + (cb * 2 + jj) * 2
    for cb in range(8):
        A.e([f"v_xor_b32 v7, {2*cb}, v5", "v_lshl_add_u32 v7, v7, 4, v6",
             f"ds_read_b64 {a(XR(cb,0),2)}, v7", f"ds_read_b64 {a(XR(cb,1),2)}, v7 offset:4096"])
    if fast:
        A.e(["s_cmp_lg_u32 s91, 2", f"s_cbranch_scc1 {L('slowp')}", "s_waitcnt lgkmcnt(0)"])
        for jj in range(2):
            for i in range(4):
                o = YP(jj, i)
                for h in range(2):
                    cb = 2 * i + h
                    b = 32 + (cb * 4 + jj) * 4; y = YS(cb, jj); xa = XR(cb, jj); T0 = 8 + 8 * h
                    A.e([f"v_accvgpr_read_b32 v{T0+1}, a{xa}", f"v_accvgpr_read_b32 v{T0+3}, a{xa+1}"])
                    A.e([f"v_pk_add_f32 v[{b+r_}:{b+r_+1}], v[{b+r_}:{b+r_+1}], v[{b+8+r_}:{b+9+r_}]" for r_ in (0, 2)])
                    A.e([f"v_lshlrev_b32 v{T0}, 16, v{T0+1}", f"v_and_b32 v{T0+1}, 0xffff0000, v{T0+1}",
                         f"v_lshlrev_b32 v{T0+2}, 16, v{T0+3}", f"v_and_b32 v{T0+3}, 0xffff0000, v{T0+3}"])
                    if h == 0: A.e("s_waitcnt vmcnt(7)")
                    A.e([f"v_lshlrev_b32 v{T0+4}, 16, v{o+2*h}", f"v_and_b32 v{T0+5}, 0xffff0000, v{o+2*h}",
                         f"v_lshlrev_b32 v{T0+6}, 16, v{o+2*h+1}", f"v_and_b32 v{T0+7}, 0xffff0000, v{o+2*h+1}"])
                    A.e([f"v_pk_fma_f32 v[{b+r_}:{b+r_+1}], v[{b+r_}:{b+r_+1}], v[{y+r_}:{y+r_+1}], v[{T0+r_}:{T0+r_+1}]" for r_ in (0, 2)])
                    A.e([f"v_pk_fma_f32 v[{b+r_}:{b+r_+1}], v[{T0+4+r_}:{T0+5+r_}], v[{y+r_}:{y+r_+1}], v[{b+r_}:{b+r_+1}]" for r_ in (0, 2)])
                    A.e([f"v_cvt_pk_bf16_f32 v{o+2*h}, v{b}, v{b+1}", f"v_cvt_pk_bf16_f32 v{o+2*h+1}, v{b+2}, v{b+3}"])
                A.e(["s_nop 1", f"v_permlane32_swap_b32 v{o}, v{o+2}", f"v_permlane32_swap_b32 v{o+1}, v{o+3}", "s_nop 0",
                     f"v_permlane16_swap_b32 v{o}, v{o+2}", f"v_permlane16_swap_b32 v{o+1}, v{o+3}",
                     f"buffer_store_dwordx4 {v(o,4)}, v{27+jj}, s[68:71], s94 offen offset:{i*64}"])
        A.e(f"s_branch {L('fin')}")
        A.label(L("slowp"))
    for n in range(16):
        jj, cb = n // 8, n % 8
        b = 32 + (cb * 4 + jj) * 4; y = YS(cb, jj); xa = XR(cb, jj); T0 = 8 + 4 * (n % 2)
        if n == 0: A.e("s_waitcnt lgkmcnt(0)")
        A.e([f"v_accvgpr_read_b32 v{T0+1}, a{xa}", f"v_accvgpr_read_b32 v{T0+3}, a{xa+1}"])
        A.e([f"v_pk_add_f32 v[{b+r_}:{b+r_+1}], v[{b+r_}:{b+r_+1}], v[{b+8+r_}:{b+9+r_}]" for r_ in (0, 2)])
        A.e([f"v_lshlrev_b32 v{T0}, 16, v{T0+1}", f"v_and_b32 v{T0+1}, 0xffff0000, v{T0+1}",
             f"v_lshlrev_b32 v{T0+2}, 16, v{T0+3}", f"v_and_b32 v{T0+3}, 0xffff0000, v{T0+3}"])
        A.e([f"v_pk_fma_f32 v[{b+r_}:{b+r_+1}], v[{b+r_}:{b+r_+1}], v[{y+r_}:{y+r_+1}], v[{T0+r_}:{T0+r_+1}]" for r_ in (0, 2)])
    A.e(["s_cmp_eq_u32 s91, 2", f"s_cbranch_scc1 {L('have')}", SPINB])
    A.label(L("poll"))
    A.e([f"buffer_load_dwordx2 v[30:31], v29, s[48:51], s93 offen {WT}", "s_waitcnt vmcnt(0)",
         "s_sub_u32 s12, s12, 1", f"s_cbranch_scc1 {L('got')}",
         "v_cmp_ne_u64 vcc, s[98:99], v[30:31]", f"s_cbranch_vccz {L('got')}", "s_sleep 1", f"s_branch {L('poll')}"])
    A.label(L("got"))
    A.e(s2loads)
    A.label(L("have"))
    for jj in range(2):
        for i in range(4):
            o = YP(jj, i)
            A.e("s_waitcnt vmcnt(7)")
            for h in range(2):
                cb = 2 * i + h
                b = 32 + (cb * 4 + jj) * 4; y = YS(cb, jj); T0 = 8 + 4 * h
                A.e([f"v_lshlrev_b32 v{T0}, 16, v{o+2*h}", f"v_and_b32 v{T0+1}, 0xffff0000, v{o+2*h}",
                     f"v_lshlrev_b32 v{T0+2}, 16, v{o+2*h+1}", f"v_and_b32 v{T0+3}, 0xffff0000, v{o+2*h+1}"])
                A.e([f"v_pk_fma_f32 v[{b+r_}:{b+r_+1}], v[{T0+r_}:{T0+r_+1}], v[{y+r_}:{y+r_+1}], v[{b+r_}:{b+r_+1}]" for r_ in (0, 2)])
                A.e([f"v_cvt_pk_bf16_f32 v{o+2*h}, v{b}, v{b+1}", f"v_cvt_pk_bf16_f32 v{o+2*h+1}, v{b+2}, v{b+3}"])
            A.e(["s_nop 1", f"v_permlane32_swap_b32 v{o}, v{o+2}", f"v_permlane32_swap_b32 v{o+1}, v{o+3}", "s_nop 0",
                 f"v_permlane16_swap_b32 v{o}, v{o+2}", f"v_permlane16_swap_b32 v{o+1}, v{o+3}",
                 f"buffer_store_dwordx4 {v(o,4)}, v{27+jj}, s[68:71], s94 offen offset:{i*64}"])
    A.label(L("fin"))
    if stamps:
        srd(A, 40, P_WS, 0x100000, WS_STAMP)
        A.e(["s_waitcnt vmcnt(0)", "s_memtime s[76:77]", "s_memrealtime s[78:79]", "s_waitcnt lgkmcnt(0)",
             "v_mov_b32 v8, s76", "v_mov_b32 v9, s78", "v_mov_b32 v10, s72", "s_getreg_b32 s10, hwreg(HW_REG_XCC_ID)", "v_mov_b32 v11, s10",
             "s_lshl_b32 s10, s2, 2", "s_add_u32 s10, s10, s3", "s_lshl_b32 s10, s10, 7", "v_mov_b32 v1, s10", "s_mov_b64 exec, 1"])
        for k in range(4): A.e(f"buffer_store_dwordx4 a[{240+4*k}:{243+4*k}], v1, s[40:43], 0 offen offset:{16*k}")
        A.e("buffer_store_dwordx4 v[8:11], v1, s[40:43], 0 offen offset:64")
    if dbgst:
        srd(A, 40, P_DBG, 256)
        A.e(["s_and_b32 s10, s2, 0xfb", "s_or_b32 s10, s10, s3", "s_cmp_lg_u32 s10, 0", f"s_cbranch_scc1 {L('end')}", "s_mov_b64 exec, 1",
             "v_accvgpr_read_b32 v12, a241", "s_lshl_b32 s10, s2, 3", "v_mov_b32 v1, s10"])
        for k in range(1, 8): A.e([f"v_accvgpr_read_b32 v13, a{241+2*k}", f"v_sub_u32 v{15+k}, v13, v12"])
        A.e(["v_sub_u32 v23, v9, v12", "buffer_store_dwordx4 v[16:19], v1, s[40:43], 0 offen", "buffer_store_dwordx4 v[20:23], v1, s[40:43], 0 offen offset:16"])
    A.label(L("end"))
    A.e("s_endpgm")
    for tag, reg, addr, off in spins:
        A.label(L("spin" + tag))
        A.e(SPINB)
        A.label(L("spinl" + tag))
        A.e(["s_sleep 2", f"buffer_load_dwordx2 v[{reg}:{reg+1}], v{addr}, s[48:51], {off} offen {WT}", "s_waitcnt vmcnt(0)",
             "s_sub_u32 s12, s12, 1", f"s_cbranch_scc1 {L('ok' + tag)}",
             f"v_cmp_ne_u64 vcc, s[98:99], v[{reg}:{reg+1}]", f"s_cbranch_vccnz {L('spinl' + tag)}", f"s_branch {L('ok' + tag)}"])
    for T in rare_sites:
        A.label(L("rs%d" % T))
        A.e([f"s_call_b64 s[6:7], {L('rare%d' % (T & 1))}", f"s_branch {L('rb%d' % T)}"])
    for b in range(2):
        A.label(L("rare%d" % b))
        A.e(["s_nop 15", "s_nop 15"])
        for mu in range(2):
            S = SB(b, mu); S2 = SB(b ^ 1, mu)
            A.e(rowmax(S, VT, VT + 2))
            A.e([f"v_max_f32 v{VT}, 0, v{VT}", f"v_exp_f32 v{VT+1}, -v{VT}"])
            A.e([f"v_sub_f32 v{NM(mu)+k}, v{NM(mu)+k}, v{VT}" for k in range(16)])
            A.e([f"v_sub_f32 v{S+k}, v{S+k}, v{VT}" for k in range(16)])
            A.e([f"v_sub_f32 v{S2+k}, v{S2+k}, v{VT}" for k in range(16)])
            A.e(f"v_mul_f32 v{VL+mu}, v{VL+mu}, v{VT+1}")
            for i in range(4):
                o = (i * 2 + mu) * 16
                for k in range(16):
                    A.e([f"v_accvgpr_read_b32 v{VT+2}, a{o+k}", f"v_mul_f32 v{VT+2}, v{VT+2}, v{VT+1}", f"v_accvgpr_write_b32 a{o+k}, v{VT+2}"])
            for k in range(0, 16, 2):
                A.e([f"v_exp_f32 v{EB}, v{S+k}", f"v_exp_f32 v{EB+1}, v{S+k+1}", "s_nop 0",
                     f"v_cvt_pk_bf16_f32 v{PB(b,mu)+k//2}, v{EB}, v{EB+1}", f"v_add_f32 v{EB}, v{EB}, v{EB+1}",
                     f"v_mov_b32 v{VTS+mu}, v{EB}" if k == 0 else f"v_add_f32 v{VTS+mu}, v{VTS+mu}, v{EB}"])
        A.e(["s_nop 3", "s_setpc_b64 s[6:7]"])
    A.label(f"{name}_codeend")
    return (name, 512, 256, "(256,1,1)", "(256,1,1)", 163840)
```

```python
from common import *
import struct, math
QSCALE = struct.unpack("<I", struct.pack("<f", math.log2(math.e) / math.sqrt(128.0)))[0]
THR = 0x49800000
FL_L, FL_H, FL_O, FL_P, FL_SZ = 0x4000, 0x6000, 0x8000, 0xA000, 0xE000
G_BASE, G_SF, G_PF, G_SZ = 0x2200000, 0x600000, 0xA00000, 0x1200000
SS_UNUSED = 28
N1S, N1Y = 4, 3
WT = "sc0 sc1"
SPINB = "s_mov_b32 s12, 0x40000"

def kf(A, name="kf_kernel", stamps=0, thr=THR, vpos=(6, 10, 14, 18, 22, 26, 29, 30), barpos=3, apol=WT, pfT=0, pfG=0, cpf=3, ln=1, dbgst=0, pst=0, psleep=1, hwb=0, cap=24, dsl=6, vcap=8, ost=None, oflt=3, rotm=(1, 2), xpol=None, gdbg=0, pfs=7, pfA=2, rot0=1, vat=None, pft=3, tail=8, kmap=1, SS=None, hfT=2, barm=47, gsl=10, sp1=(2, 44), sp2=(54, 88), vmod=2, lead=0, nf=8, oft=14, oin=8, hdf=0, tlb=0, t16=1, mid1=1, fast=0, lset=1):
    L = lambda s: f"{name}_{s}"
    if SS is None: SS = 32 if tail == 8 else 28
    if vat is None: vat = tail - 7
    pf0 = 4 if lset else 3
    if lset: hfT = max(hfT, 4)
    if ost is None: ost = (8, 8)[:2 - oin // 8]
    vq = Q("vmcnt", 63); dq = Q("lgkmcnt", 15, gsl)
    def stamp(i, pro=0):
        if not stamps: return
        if pst == 1:
            if pro == 0 and i == 1: i = 7
            elif not (pro == 1 or i == 0): return
        elif pst == 2:
            if pro == 0 and i == 5: i = 1
            elif pro == 0 and i == 6: i = 2
            elif not (pro == 2 or (pro == 0 and i in (0, 7))): return
        elif pst == 3:
            if pro or i != 1: return
            i = 0
        elif pro: return
        A.e(["s_memtime s[76:77]", "s_memrealtime s[78:79]", "s_waitcnt lgkmcnt(0)", "v_mov_b32 v30, s76", f"v_accvgpr_write_b32 a{240+2*i}, v30",
             "v_mov_b32 v30, s78", f"v_accvgpr_write_b32 a{241+2*i}, v30"]); dq.drain()
    A.raw(kernel_head(name))
    A.e(["s_cmp_ge_u32 s2, 256", f"s_cbranch_scc1 {L('end')}"])
    cpn = [0]
    def code_touch(vr, dst, raw=False):
        lab = L("pc%d" % cpn[0]); cpn[0] += 1
        pre = ["s_getpc_b64 s[76:77]", lab + ":", f"s_sub_u32 s76, s76, {lab}-{name}", "s_subb_u32 s77, s77, 0",
               "s_lshr_b32 s78, s2, 3", "s_lshl_b32 s78, s78, 11"] + ([f"v_and_b32 v{vr}, 0xc0, v0", f"v_lshlrev_b32 v{vr+1}, 3, v{vr}"] if raw else ["s_lshl_b32 s79, s3, 9", "s_add_u32 s78, s78, s79"]) + [
               f"v_and_b32 v{vr}, 7, v0", f"v_mul_u32_u24 v{vr}, 0x4080, v{vr}", f"v_and_b32 v{vr}, 0x10180, v{vr}"] + ([f"v_add_u32 v{vr}, v{vr+1}, v{vr}"] if raw else []) + [
               f"v_add_u32 v{vr}, s78, v{vr}", f"v_min_u32 v{vr}, {name}_codeend-{name}-4, v{vr}"]
        return (pre, f"global_load_dword {dst}, v{vr}, s[76:77]", ("C", 0), [])
    stamp(0)
    A.e(LOADARGS)
    if cpf:
        op = code_touch(30, "a238", raw=True); A.e(op[0]); A.e(op[1])
    A.e(["v_lshrrev_b32 v1, 6, v0", "v_and_b32 v0, 63, v0", "s_nop 0", "v_readfirstlane_b32 s3, v1",
         "s_and_b32 s10, s2, 7", "s_lshr_b32 s11, s2, 3", "s_and_b32 s4, s11, 7", "s_lshr_b32 s11, s11, 3",
         "s_lshl_b32 s5, s10, 2", "s_add_u32 s5, s5, s11",
         f"s_mul_i32 s14, s11, {rotm[1]}", f"s_mul_i32 s12, s4, {rotm[0]}", "s_add_u32 s14, s14, s12"])
    if ln:
        A.e(["v_and_b32 v40, 7, v0", "v_lshrrev_b32 v41, 3, v0", "s_lshl_b32 s12, s3, 5", "v_add_u32 v41, s12, v41",
             "v_lshlrev_b32 v42, 11, v40", "v_lshl_add_u32 v42, v41, 4, v42",
             "s_lshl_b32 s12, s4, 5", "s_add_u32 s91, s12, s5", "s_lshl_b32 s12, s91, 14",
             "s_waitcnt lgkmcnt(0)"])
        srd(A, 64, P_X, 2048 * 2048)
        for i in range(4):
            A.e(f"buffer_load_dwordx4 v[{48+4*i}:{51+4*i}], v42, s[64:67], s12 offen offset:{128*i}"); vq.issue(("L", 0))
        if tlb & 1:
            srd(A, 68, P_WS, 0x3000000)
            A.e(["v_lshlrev_b32 v39, 21, v0", "buffer_load_dword a237, v39, s[68:71], 0 offen"])
        srd(A, 60, P_DBG, 256)
        A.e(["v_mov_b32 v47, 0", "s_or_b32 s12, s2, s3", "s_cmp_lg_u32 s12, 0", f"s_cbranch_scc1 {L('nn')}",
             "s_memrealtime s[12:13]", "s_waitcnt lgkmcnt(0)", "s_or_b32 s12, s12, 1", "v_mov_b32 v38, s12", "v_mov_b32 v39, s13", "s_mov_b64 exec, 1",
             f"buffer_store_dwordx2 v[38:39], v47, s[60:63], 0 offen {WT}", "s_mov_b64 exec, -1"])
        A.label(L("nn"))
    A.e([
         "v_lshrrev_b32 v30, 4, v0", "v_and_b32 v31, 15, v0",
         "s_lshr_b32 s12, s3, 1", "s_lshl_b32 s12, s12, 1",
         "v_lshlrev_b32 v1, 2, v30", "v_or_b32 v1, s12, v1", "v_xor_b32 v31, v31, v1",
         "s_lshl_b32 s12, s3, 2", "v_add_u32 v30, s12, v30",
         "v_lshlrev_b32 v2, 13, v30", "s_lshl_b32 s12, s5, 8", "v_lshl_add_u32 v2, v31, 4, v2", "v_add_u32 v2, s12, v2",
         "v_lshrrev_b32 v1, 1, v31", "v_min_u32 v1, 6, v1", "s_and_b32 s13, s5, 1", "v_add_u32 v1, s13, v1",
         "v_cmp_eq_u32 vcc, 7, v1", "v_and_b32 v31, 1, v31", "s_nop 0", "v_cndmask_b32 v1, v1, 0, vcc",
         "v_lshl_or_b32 v1, v1, 1, v31",
         "v_mul_u32_u24 v3, 7168, v30", "s_mul_i32 s12, s5, 224", "v_add_u32 v3, s12, v3", "v_lshl_add_u32 v3, v1, 4, v3",
         "s_lshl_b32 s12, s4, 4", "s_lshl_b32 s13, s3, 2", "s_add_u32 s15, s12, s13",
         "s_lshl_b32 s12, s15, 15", "v_lshlrev_b32 v4, 4, v0", "v_add_u32 v5, s12, v4",
         "v_add_u32 v6, 0x8000, v5", "v_add_u32 v7, 0x10000, v5", "v_add_u32 v8, 0x18000, v5",
         "s_mul_i32 s10, s3, 3072", "s_add_u32 s10, s10, 65536", "s_mov_b32 s11, 0", "s_mov_b32 s75, 0",
         "s_waitcnt lgkmcnt(0)"])
    srd(A, 44, P_WQ, 1024 * 4096 * 2)
    srd(A, 48, P_WG, 1024 * 3584 * 2 + 1024, -1024)
    srd(A, 52, P_WU, 1024 * 3584 * 2 + 2048, -2048)
    srd(A, 40, P_WS, SZ_XF, WS_XF)

    def acc(blk, j):
        if blk < 14: return v(32 + (blk * 4 + j) * 4, 4)
        return a(((blk - 14) * 4 + j) * 4, 4)
    Afr = lambda blk, h=None: a(192 + (blk % 11) * 4, 4) if h is None else a(192 + (blk % 11) * 4 + 2 * h, 2)
    Bfr = lambda slot, j: a(128 + slot * 16 + j * 4, 4)
    if lead:
        NEXTK = ["s_sub_u32 s12, s11, s14", "s_and_b32 s12, s12, 7", f"s_cmp_lt_u32 s11, {32-lead}", "s_cselect_b32 s12, s12, 1",
                 f"s_add_u32 s13, s11, {lead}", "s_cmp_eq_u32 s12, 0", "s_cselect_b32 s12, s13, s75", "s_subb_u32 s75, s75, -1",
                 f"s_sub_u32 s13, s75, {lead}", "s_cselect_b32 s6, 1, 0", "s_sub_u32 s13, s13, s14", "s_and_b32 s13, s13, 7", "s_or_b32 s13, s13, s6",
                 "s_cmp_eq_u32 s13, 0", "s_addc_u32 s75, s75, 0",
                 "s_add_u32 s11, s11, 1", "s_lshl_b32 s6, s12, 18", "s_mul_i32 s7, s12, 229376", "s_lshl_b32 s8, s12, 10"]
    else:
        NEXTK = ([] if rot0 == 7 else ["s_cmp_lt_u32 s11, 8", f"s_cselect_b32 s13, {rot0}, 7", "s_and_b32 s13, s13, s14"]) + ["s_add_u32 s12, s11, s14" if rot0 == 7 else "s_add_u32 s12, s11, s13", "s_and_b32 s12, s12, 7", "s_and_b32 s13, s11, 0x18", "s_or_b32 s12, s12, s13",
                 "s_add_u32 s11, s11, 1", "s_lshl_b32 s6, s12, 18", "s_mul_i32 s7, s12, 229376", "s_lshl_b32 s8, s12, 10"]
    def d_ops(p, h):
        base = (p % 4) * 24576 + h * 12288
        return [((NEXTK if h == 0 else []) + [f"s_add_u32 m0, s10, {base}"], "buffer_load_dwordx4 v2, s[44:47], s6 offen lds", ("D", p, h), ["s_add_u32 s6, s6, 131072"] if h == 0 else []),
                ([], "buffer_load_dwordx4 v3, s[48:51], s7 offen offset:1024 lds", ("D", p, h), []),
                ([], "buffer_load_dwordx4 v3, s[52:55], s7 offen offset:2048 lds", ("D", p, h), ["s_add_u32 s7, s7, 114688"] if h == 0 else [])]
    def x_ops(p):
        return [([], f"buffer_load_dwordx4 {Bfr(p % 4, j)}, v{5+j}, s[40:43], s8 offen {apol if xpol is None else xpol}", ("X", p), []) for j in range(4)]
    def rd_ops(t, blk):
        part, cb = (1 + (blk & 1), blk >> 1) if blk < 14 else (0, blk - 14)
        slot = t % 4
        reg = (9 if slot < 2 else 17) + cb
        off = (slot % 2) * 24576 + part * 1024
        return [(f"ds_read_b64_tr_b16 {Afr(blk,0)}, v{reg} offset:{off}", ("A", t, blk)),
                (f"ds_read_b64_tr_b16 {Afr(blk,1)}, v{reg} offset:{off+3072}", ("A", t, blk))]
    def emit_vm(op, E, nop=False):
        pre, ins, tag, post = op
        E(pre)
        if pre and nop: E("s_nop 0")
        E(ins); vq.issue(tag); E(post)
    def kv_ops(kind, P):
        reg = 0 if kind == "K" else 65536
        sr = "s[64:67]" if kind == "K" else "s[68:71]"
        ops = []
        for i in range(4):
            ops.append(([f"s_add_u32 m0, s92, {reg + (P % 4) * 16384}", f"s_add_u32 s94, s93, {P * 16384}"] if i == 0 else [],
                        f"buffer_load_dwordx4 v{25+i if kind == 'K' else 29}, {sr}, s94 offen offset:{i*1024} lds", (kind, P), []))
        return ops
    def pf_op(k):
        return [([], f"buffer_load_dword a239, v31, {'s[72:75], s96' if k == 0 else 's[80:83], s97'} offen", ("P", 0), [f"s_add_u32 s{96+k}, s{96+k}, 1024"])]
    for op in d_ops(0, 0) + d_ops(0, 1): emit_vm(op, A.e, True)
    A.e("s_mov_b32 s88, s8")
    srd(A, 84, P_WS, FL_SZ, WS_FLAG)
    A.e(["s_lshr_b32 s12, s91, 1", "s_lshl_b32 s12, s12, 15", "s_and_b32 s13, s91, 1", "s_lshl_b32 s13, s13, 7", "s_add_u32 s90, s12, s13",
         "v_lshlrev_b32 v43, 8, v41", "v_lshl_add_u32 v43, v40, 4, v43",
         "v_lshlrev_b32 v44, 5, v40", "s_lshl_b32 s12, s3, 3", "v_add_u32 v45, s12, v44",
         "s_lshl_b32 s91, s91, 5", f"s_add_u32 s91, s91, {FL_L}"])
    A.e([f"v_mov_b32 v{i}, 0" for i in range(132, 144)])
    A.e(f"buffer_load_dwordx2 v[128:129], v47, s[60:63], 0 offen {WT}"); vq.issue(("N", 0))
    A.e([mfma32(a(i, 16), v(132, 4), v(132, 4), "0") for i in range(0, 128, 16)] + [mfma32(v(i, 16), v(132, 4), v(132, 4), "0") for i in range(144, 256, 16)])
    stamp(1, 1)
    A.e(vq.need(("L", 0)))
    stamp(2, 1)
    X0 = 64
    for i in range(16):
        A.e([f"v_lshlrev_b32 v{X0+2*i}, 16, v{48+i}", f"v_and_b32 v{X0+1+2*i}, 0xffff0000, v{48+i}"])
    def lanesum(src):
        A.e(["s_nop 1", f"v_add_f32_dpp v{src}, v{src}, v{src} row_ror:8 row_mask:0xf bank_mask:0xf",
             f"v_mov_b32 v46, v{src}", "s_nop 1", f"v_permlane16_swap_b32 v46, v{src}", f"v_add_f32 v{src}, v46, v{src}",
             f"v_mov_b32 v46, v{src}", "s_nop 1", f"v_permlane32_swap_b32 v46, v{src}", f"v_add_f32 v{src}, v46, v{src}"])
    A.e([f"v_pk_add_f32 v[32:33], v[{X0}:{X0+1}], v[{X0+2}:{X0+3}]", f"v_pk_add_f32 v[34:35], v[{X0+4}:{X0+5}], v[{X0+6}:{X0+7}]"])
    A.e([f"v_pk_add_f32 v[{32+2*(i%2)}:{33+2*(i%2)}], v[{32+2*(i%2)}:{33+2*(i%2)}], v[{X0+2*i}:{X0+2*i+1}]" for i in range(4, 16)])
    A.e(["v_pk_add_f32 v[32:33], v[32:33], v[34:35]", "v_add_f32 v32, v32, v33"])
    lanesum(32)
    A.e(["v_mul_f32 v32, 0x3b800000, v32", "v_mov_b32 v34, v32", "v_mov_b32 v35, v32"])
    for i in range(16):
        A.e(f"v_pk_add_f32 v[{96+2*i}:{97+2*i}], v[{X0+2*i}:{X0+2*i+1}], v[34:35] neg_lo:[0,1] neg_hi:[0,1]")
    A.e(["v_pk_mul_f32 v[34:35], v[96:97], v[96:97]", "v_pk_mul_f32 v[36:37], v[98:99], v[98:99]"])
    for i in range(2, 16):
        r_ = 34 + 2 * (i % 2)
        A.e(f"v_pk_fma_f32 v[{r_}:{r_+1}], v[{96+2*i}:{97+2*i}], v[{96+2*i}:{97+2*i}], v[{r_}:{r_+1}]")
    A.e(["v_pk_add_f32 v[34:35], v[34:35], v[36:37]", "v_add_f32 v33, v34, v35"])
    lanesum(33)
    A.e(["ds_write_b64 v45, v[32:33]", "s_waitcnt lgkmcnt(0)", "s_barrier",
         "ds_read_b128 v[96:99], v44", "ds_read_b128 v[100:103], v44 offset:16", "s_waitcnt lgkmcnt(0)",
         "v_add_f32 v32, v96, v98", "v_add_f32 v33, v100, v102", "v_add_f32 v34, v97, v99", "v_add_f32 v35, v101, v103",
         "v_add_f32 v32, v32, v33", "v_add_f32 v34, v34, v35", "v_mul_f32 v32, 0.25, v32" if False else "v_mul_f32 v32, 0x3e800000, v32",
         "v_sub_f32 v96, v96, v32", "v_sub_f32 v98, v98, v32", "v_sub_f32 v100, v100, v32", "v_sub_f32 v102, v102, v32",
         "v_mul_f32 v35, v96, v96", "v_fmac_f32 v35, v98, v98", "v_fmac_f32 v35, v100, v100", "v_fmac_f32 v35, v102, v102",
         "v_mul_f32 v34, 0x3a800000, v34", "v_fmac_f32 v34, 0x3e800000, v35"])
    A.e(["v_cvt_pk_bf16_f32 v34, v34, v32", "v_and_b32 v32, 0xffff0000, v34", "v_lshlrev_b32 v34, 16, v34",
         "v_add_f32 v34, 0x3727c5ac, v34", "v_cvt_pk_bf16_f32 v34, v34, v34", "v_lshlrev_b32 v34, 16, v34",
         "v_sqrt_f32 v34, v34", "v_mov_b32 v33, v32", "v_cvt_pk_bf16_f32 v34, v34, v34", "v_lshlrev_b32 v34, 16, v34",
         "v_rcp_f32 v34, v34", "s_nop 0", "v_mov_b32 v35, v34"])
    for q4 in range(4):
        for i in range(4 * q4, 4 * q4 + 4):
            x = X0 + 2 * i
            A.e([f"v_pk_add_f32 v[{x}:{x+1}], v[{x}:{x+1}], v[32:33] neg_lo:[0,1] neg_hi:[0,1]",
                 f"v_cvt_pk_bf16_f32 v{48+i}, v{x}, v{x+1}",
                 f"v_lshlrev_b32 v{x}, 16, v{48+i}", f"v_and_b32 v{x+1}, 0xffff0000, v{48+i}",
                 f"v_pk_mul_f32 v[{x}:{x+1}], v[{x}:{x+1}], v[34:35]",
                 f"v_cvt_pk_bf16_f32 v{48+i}, v{x}, v{x+1}"])
        A.e(f"buffer_store_dwordx4 v[{48+4*q4}:{51+4*q4}], v43, s[40:43], s90 offen offset:{2048*(q4%2)} {WT}"); vq.issue(("S", 0))
        if q4 == 1: A.e("s_add_u32 s90, s90, 4096")
    stamp(3, 1)
    A.e(vq.need(("N", 0)))
    A.e(SPINB)
    A.label(L("pollN"))
    A.e(["v_readfirstlane_b32 s98, v128", "v_readfirstlane_b32 s99, v129", "s_cmp_lg_u32 s98, 0", f"s_cbranch_scc1 {L('gotN')}",
         "s_sub_u32 s12, s12, 1", f"s_cbranch_scc1 {L('gotN')}",
         f"buffer_load_dwordx2 v[128:129], v47, s[60:63], 0 offen {WT}", "s_waitcnt vmcnt(0)", f"s_branch {L('pollN')}"])
    A.label(L("gotN"))
    A.e([mfma32(v(i, 16), v(132, 4), v(132, 4), "0") for i in range(64, 128, 16)])
    A.e(vq.drain()); A.e("s_barrier")
    stamp(4, 1)
    A.e(["s_cmp_lg_u32 s3, 0", f"s_cbranch_scc1 {L('nf')}", "s_mov_b64 exec, 1",
         f"buffer_store_dwordx2 v[128:129], v47, s[84:87], s91 offen {WT}", "s_mov_b64 exec, -1"])
    A.label(L("nf"))
    for op in d_ops(1, 0) + d_ops(1, 1): emit_vm(op, A.e, True)
    A.e("s_mov_b32 s89, s8")
    for op in d_ops(2, 0) + d_ops(2, 1): emit_vm(op, A.e, True)
    A.e("s_mov_b32 s90, s8")
    if tlb & 2:
        srd(A, 68, P_OUT, 2048 * 2048)
        A.e(["v_lshlrev_b32 v1, 21, v0"] + [f"buffer_load_dword a237, v1, s[{r}:{r+3}], 0 offen offset:2048" for r in (44, 48, 52, 68)])
    A.e([mfma32(v(i, 16), v(132, 4), v(132, 4), "0") for i in (32, 48)])
    A.e(["v_lshrrev_b32 v1, 4, v0", "v_mul_u32_u24 v30, 6144, v1", "v_and_b32 v1, 1, v1",
         "v_bfe_u32 v31, v0, 2, 2", "v_lshl_add_u32 v30, v31, 8, v30", "v_lshl_or_b32 v31, v31, 1, v1",
         "v_and_b32 v1, 3, v0", "v_lshl_add_u32 v30, v1, 3, v30", "v_add_u32 v30, 0x10000, v30"])
    for cb in range(8):
        A.e([f"v_xor_b32 v1, {cb}, v31", f"v_lshl_add_u32 v{9+cb}, v1, 5, v30", f"v_add_u32 v{17+cb}, 49152, v{9+cb}"])
    for blk in range(11):
        for ins, tg in rd_ops(0, blk): A.e(ins); dq.issue(tg)
    srd(A, 64, P_K, 4 * 2048 * 256)
    srd(A, 68, P_V, 4 * 2048 * 256)
    srd(A, 56, P_WS, SZ_HF, WS_HF)
    srd(A, 60, P_WS, SZ_OF, WS_OF)
    A.e(["v_lshrrev_b32 v30, 4, v0", "v_and_b32 v31, 15, v0", "v_xor_b32 v1, v31, v30"])
    for i in range(4):
        A.e([f"v_xor_b32 v{25+i}, {4*i}, v1", f"v_lshlrev_b32 v{25+i}, 4, v{25+i}", f"v_lshl_add_u32 v{25+i}, v30, 8, v{25+i}"])
    A.e(["v_lshlrev_b32 v1, 2, v30", "v_xor_b32 v1, v31, v1", "v_lshlrev_b32 v1, 4, v1", "v_lshl_add_u32 v29, v30, 8, v1",
         "s_lshr_b32 s12, s5, 3", "s_lshl_b32 s12, s12, 19", "s_lshl_b32 s92, s3, 12",
         "s_add_u32 s93, s12, s92", f"s_add_u32 s93, s93, {1536*256}",
         "s_mov_b32 s9, 7"])
    if pfG in (1, 2):
        srd(A, 72, P_WO, 4096 * 2048); srd(A, 80, P_WD, 3584 * 2048)
        A.e(["s_lshl_b32 s12, s2, 2", "s_add_u32 s12, s12, s3", "s_lshl_b32 s96, s12, 13", "s_mul_i32 s97, s12, 7168",
             f"v_and_b32 v31, {7 if pfs == 7 else 3}, v0", f"v_lshlrev_b32 v31, {pfs}, v31"])
    stamp(5, 1)
    A.e(["s_cmp_lg_u32 s3, 0", f"s_cbranch_scc1 {L('gotL')}",
         "v_and_b32 v1, 31, v0", "v_lshlrev_b32 v1, 5, v1", "s_lshl_b32 s95, s4, 10", f"s_add_u32 s95, s95, {FL_L}", SPINB])
    A.label(L("pollL"))
    A.e([f"buffer_load_dwordx2 v[128:129], v1, s[84:87], s95 offen {WT}", "s_waitcnt vmcnt(0)",
         "s_sub_u32 s12, s12, 1", f"s_cbranch_scc1 {L('gotL')}",
         "v_cmp_ne_u64 vcc, s[98:99], v[128:129]", f"s_cbranch_vccz {L('gotL')}", f"s_sleep {psleep}", f"s_branch {L('pollL')}"])
    A.label(L("gotL"))
    A.e("s_barrier")
    stamp(6, 1)
    for p_, sr in ((0, "s88"), (1, "s89"), (2, "s90")):
        for op in x_ops(p_): A.e(op[1].replace("s8 offen", f"{sr} offen")); vq.issue(op[2])
    for op in d_ops(3, 0): emit_vm(op, A.e, True)
    A.e([f"v_mov_b32 v{i}, 0" for i in (128, 129, 130, 131)])
    A.e(vq.need(("X", 2)))
    stamp(1)

    BARM = barm
    def step(t, E, first_ops=None, second_ops=None, last=False):
        v1 = d_ops(t + 3, 1) + x_ops(t + 3) if first_ops is None else first_ops
        v2_ = d_ops(t + 4, 0) if second_ops is None else second_ops
        if pfG == 1 and second_ops is None and t % 2 == 0: v2_ = v2_ + pf_op((t // 2) % 2)
        if pfG == 2 and second_ops is None and t == 0: v2_ = v2_ + pf_op(0)
        if gdbg & 1: v1 = [o for o in v1 if o[2][0] != "X"]
        if gdbg & 2:
            v1 = [o for o in v1 if o[2][0] != "D"]; v2_ = [o for o in v2_ if o[2][0] != "D"]
        def spread(n, lo, hi):
            c = [m for m in range(lo, hi) if m % 4 == vmod]
            if n == 0: return []
            return [c[(i * len(c)) // n] for i in range(n)]
        sched = list(zip(spread(len(v1), *sp1), v1)) + list(zip(spread(len(v2_), max(sp2[0], BARM + 3), sp2[1]), v2_))
        pend = []; post = []; pre = list(sched[0][1][0]) if sched else []; vi = 0
        for m in range(88):
            blk, j = m // 4, m % 4
            if m == 0: E(vq.need(("X", t)))
            if j == 0: E(dq.need(("A", t, blk)))
            E(mfma16(acc(blk, j), Afr(blk), Bfr(t % 4, j)))
            if m == BARM:
                E(vq.need(("D", t + 1, 1))); E(dq.drain()); E("s_barrier")
            if j == 3:
                if blk < 11: pend += rd_ops(t, blk + 11)
                elif not last: pend += rd_ops(t + 1, blk - 11)
            if vi < len(sched) and m == sched[vi][0]:
                assert not pre, (t, m, pre)
                op = sched[vi][1]
                E(op[1]); vq.issue(op[2]); post += op[3]; vi += 1
                if vi < len(sched): pre = list(sched[vi][1][0])
            else:
                used = 0
                while pend and used < (2 if len(pend) > 2 else 1) and not (pend[0][1][1] > t and m < BARM):
                    ins, tag = pend.pop(0); E(ins); dq.issue(tag); used += 1
                while post and used < 2: E(post.pop(0)); used += 1
                while pre and used < 2 and not post and not (sched[vi][0] > BARM and m < BARM - 8): E(pre.pop(0)); used += 1
        for ins, tag in pend: E(ins); dq.issue(tag)
        E(post)
    for t in range(4): step(t, lambda x: None)
    vq.rebase(4); dq.rebase(4)
    A.raw(".p2align 6")
    A.label(L("loop"))
    for t in range(4): step(t, A.e)
    if pst == 3:
        A.e(["s_memtime s[76:77]", "s_memrealtime s[78:79]", "s_waitcnt lgkmcnt(0)", "v_cmp_eq_u32 vcc, s9, v0", "v_mov_b32 v1, s76", "s_nop 0", "v_cndmask_b32 v31, v31, v1, vcc", "v_mov_b32 v1, s78", "v_cndmask_b32 v30, v30, v1, vcc"])
    A.e(["s_sub_u32 s9, s9, 1", "s_cmp_lg_u32 s9, 0", f"s_cbranch_scc1 {L('loop')}"])
    if pst == 3:
        for k in range(1, 8):
            A.e([f"v_readlane_b32 s76, v31, {8-k}", f"v_readlane_b32 s78, v30, {8-k}", "s_nop 1", "v_mov_b32 v1, s76", f"v_accvgpr_write_b32 a{240+2*k}, v1", "v_mov_b32 v1, s78", f"v_accvgpr_write_b32 a{241+2*k}, v1"])
    vq.rebase(4); dq.rebase(4)
    if cpf >= 2: emit_vm(code_touch(30, "a238"), A.e)
    step(0, A.e, None, kv_ops("K", 0) + kv_ops("K", 1))
    step(1, A.e, kv_ops("K", 2) + kv_ops("K", 3), kv_ops("V", 0) + kv_ops("V", 1))
    step(2, A.e, kv_ops("V", 2), kv_ops("V", 3) + (pf_op(0) if pfG in (1, 2) else []))
    step(3, A.e, [], [], last=True)
    stamp(2)

    HP = "" if hwb else WT
    A.e(["s_mul_i32 s6, s15, 114688", "s_mul_i32 s12, s5, 7", "s_add_u32 s12, s12, 1", "s_lshr_b32 s12, s12, 1", "s_lshl_b32 s12, s12, 10",
         "s_add_u32 s6, s6, s12",
         "s_and_b32 s13, s5, 1", "s_cmp_eq_u32 s13, 0", "s_mov_b32 s13, 0xfffffc08", "s_cselect_b32 s13, 0xc00, s13",
         "s_add_u32 s7, s6, s13",
         "s_mov_b32 s8, 0xbfb8aa3b", "s_mov_b32 s9, 0xbfb8aa3b"])
    def hblock(b, j, dst):
        g = 32 + ((2 * b) * 4 + j) * 4; u = g + 16
        out = []
        out += [f"v_pk_mul_f32 v[{g+r_}:{g+r_+1}], v[{g+r_}:{g+r_+1}], s[8:9]" for r_ in (0, 2)]
        out += [f"v_exp_f32 v{g+r_}, v{g+r_}" for r_ in range(4)]
        out += [f"v_pk_add_f32 v[{g+r_}:{g+r_+1}], v[{g+r_}:{g+r_+1}], 1.0 op_sel_hi:[1,0]" for r_ in (0, 2)]
        out += [f"v_rcp_f32 v{g+r_}, v{g+r_}" for r_ in range(4)]
        out += [f"v_pk_mul_f32 v[{g+r_}:{g+r_+1}], v[{g+r_}:{g+r_+1}], v[{u+r_}:{u+r_+1}]" for r_ in (0, 2)]
        out += [f"v_cvt_pk_bf16_f32 v{dst}, v{g}, v{g+1}", f"v_cvt_pk_bf16_f32 v{dst+1}, v{g+2}, v{g+3}"]
        return out
    for i in range(2):
        for j in range(4):
            dst = 32 + ((4 * i + 1) * 4 + j) * 4
            A.e(hblock(2 * i, j, dst)); A.e(hblock(2 * i + 1, j, dst + 2))
            A.e([f"s_add_u32 s13, s6, {j*114688}", f"buffer_store_dwordx4 {v(dst,4)}, v4, s[56:59], s13 offen offset:{i*1024} {HP}"]); vq.issue(("H", 0))
    hrest = []; hdef = []
    if not hdf:
        for j in range(4):
            dst = 32 + (9 * 4 + j) * 4
            A.e(hblock(4, j, dst) + hblock(5, j, dst + 2) + [f"s_add_u32 s13, s6, {j*114688}", f"buffer_store_dwordx4 {v(dst,4)}, v4, s[56:59], s13 offen offset:2048 {HP}"]); vq.issue(("H", 0))
            dst = 32 + (13 * 4 + j) * 4
            A.e(hblock(6, j, dst) + [f"s_add_u32 s13, s7, {j*114688}", f"buffer_store_dwordx2 {v(dst,2)}, v4, s[56:59], s13 offen {HP}"]); vq.issue(("H", 0))
    for j in range(4 if hdf else 0):
        dst = 32 + (9 * 4 + j) * 4
        if hdf == 2:
            hrest += hblock(4, j, dst) + hblock(5, j, dst + 2) + [f"s_add_u32 s13, s6, {j*114688}", f"buffer_store_dwordx4 {v(dst,4)}, v4, s[56:59], s13 offen offset:2048 {HP}"]
            continue
        hrest += hblock(4, j, dst) + hblock(5, j, dst + 2) + [f"v_accvgpr_write_b32 a{192+4*j+k}, v{dst+k}" for k in range(4)]
        hdef.append(([f"s_add_u32 s90, s14, {j*114688}"], f"buffer_store_dwordx4 {a(192+4*j,4)}, v4, s[56:59], s90 offen offset:2048 {HP}", ("H", 0), []))
    for j in range(4 if hdf else 0):
        dst = 32 + (13 * 4 + j) * 4
        if hdf == 2:
            hrest += hblock(6, j, dst) + [f"s_add_u32 s13, s7, {j*114688}", f"buffer_store_dwordx2 {v(dst,2)}, v4, s[56:59], s13 offen {HP}"]
            continue
        hrest += hblock(6, j, dst) + [f"v_accvgpr_write_b32 a{208+2*j+k}, v{dst+k}" for k in range(2)]
        hdef.append(([f"s_add_u32 s90, s4, {j*114688}"], f"buffer_store_dwordx2 {a(208+2*j,2)}, v4, s[56:59], s90 offen {HP}", ("H", 0), []))
    QF = lambda mu, t: 32 + (mu * 8 + t) * 4
    SB = lambda b, mu: 96 + (b * 2 + mu) * 16
    NM = lambda mu: 160 + mu * 16
    PB = lambda b, mu: 192 + (b * 2 + mu) * 8
    EB = 224; VL = 232; VTS = 234; VT = 236
    A.e([f"s_mov_b32 s12, {QSCALE:#x}", f"s_mov_b32 s13, {QSCALE:#x}", f"s_mov_b32 s95, {thr:#x}"])
    for t in range(8):
        for mu in range(2):
            tmp = 96 + ((t * 2 + mu) % 4) * 8
            for x in range(2):
                src = (t * 4 + 2 * mu + x) * 4
                A.e([f"v_accvgpr_read_b32 v{tmp+4*x+r_}, a{src+r_}" for r_ in range(4)])
            A.e([f"v_pk_mul_f32 v[{tmp+2*k}:{tmp+2*k+1}], v[{tmp+2*k}:{tmp+2*k+1}], s[12:13]" for k in range(4)])
            q = QF(mu, t)
            A.e([f"v_cvt_pk_bf16_f32 v{q+k}, v{tmp+2*k}, v{tmp+2*k+1}" for k in range(4)])
            if (t * 2 + mu) > 0:
                pq = QF(*prev)
                A.e([f"v_permlane16_swap_b32 v{pq}, v{pq+2}", f"v_permlane16_swap_b32 v{pq+1}, v{pq+3}"])
            prev = (mu, t)
    A.e(["v_and_b32 v30, 31, v0", "v_lshrrev_b32 v31, 5, v0", "v_and_b32 v1, 15, v0", "v_xor_b32 v1, v1, v31",
         "v_lshlrev_b32 v30, 8, v30"])
    pq = QF(*prev)
    A.e([f"v_permlane16_swap_b32 v{pq}, v{pq+2}", f"v_permlane16_swap_b32 v{pq+1}, v{pq+3}"])
    for t in range(8):
        A.e([f"v_xor_b32 v{9+t}, {2*t}, v1", f"v_lshl_add_u32 v{9+t}, v{9+t}, 4, v30"])
    A.e(["v_bfe_u32 v1, v0, 2, 2", "v_lshlrev_b32 v30, 10, v31", "v_lshl_add_u32 v30, v1, 8, v30",
         "v_bfe_u32 v22, v0, 4, 1", "v_lshl_add_u32 v30, v22, 5, v30", "v_and_b32 v23, 3, v0", "v_lshl_add_u32 v30, v23, 3, v30",
         "v_add_u32 v30, 0x10000, v30"])
    for i in range(4):
        A.e([f"v_xor_b32 v23, {i}, v1", f"v_lshl_add_u32 v{17+i}, v23, 6, v30"])
    A.e(["v_lshlrev_b32 v21, 17, v22", "v_lshl_add_u32 v21, v31, 8, v21", "v_and_b32 v1, 15, v0", "v_lshl_add_u32 v21, v1, 4, v21"])
    Kf = lambda t: a(128 + t * 4, 4)
    Vf = lambda i, tp, h=None: a(160 + (i * 2 + tp) * 4, 4) if h is None else a(160 + (i * 2 + tp) * 4 + 2 * h, 2)
    Oacc = lambda i, mu: a((i * 2 + mu) * 16, 16)
    def k_reads(T): return [(f"ds_read_b128 {Kf(t)}, v{9+t} offset:{(T % 8) * 8192}", ("K", T, t)) for t in range(8)]
    def v_reads(T):
        return [(f"ds_read_b64_tr_b16 {Vf(i,tp,h)}, v{17+i} offset:{(T % 8) * 8192 + tp * 4096 + h * 2048}", ("V", T, i, tp))
                for i in range(4) for tp in range(2) for h in range(2)]
    def qk(T, c0):
        return [(mfma32(v(SB(T & 1, mu), 16), Kf(t), v(QF(mu, t), 4), (c0(mu) if t == 0 else None)), ("K", T, t)) for t in range(8) for mu in range(2)]
    def pv(T):
        return [(mfma32(Oacc(i, mu), Vf(i, tp), v(PB(T & 1, mu) + 4 * tp, 4), ("0" if (T == 0 and tp == 0) else None)), ("V", T, i, tp))
                for i in range(4) for tp in range(2) for mu in range(2)]
    A.e(vq.need(("V", 3))); A.e("s_barrier")
    dq.slack = 15
    for ins, tag in k_reads(0): A.e(ins); dq.issue(tag)
    A.e(hrest[:12]); hrest = hrest[12:]
    for ins, tag in qk(0, lambda mu: "0"):
        A.e(dq.need(tag, 4)); A.e(ins); A.e(hrest[:4]); hrest = hrest[4:]
    for ins, tag in k_reads(1): A.e(ins); dq.issue(tag)
    A.e(hrest)
    if hdf == 2:
        for _ in range(8): vq.issue(("H", 0))
    B = Asm()
    B.e((["s_and_b32 s12, s2, 7", "s_lshr_b32 s72, s12, 2", "s_and_b32 s13, s12, 1", "s_lshl_b32 s73, s4, 1", "s_add_u32 s73, s73, s13",
         "s_bfe_u32 s13, s12, 0x10001"] if kmap == 0 else
        ["s_and_b32 s72, s2, 1", "s_bfe_u32 s13, s2, 0x10001", "s_lshl_b32 s73, s4, 1", "s_add_u32 s73, s73, s13",
         "s_bfe_u32 s13, s2, 0x10002"]) + ["s_lshl_b32 s13, s13, 2", "s_lshr_b32 s74, s2, 6", "s_add_u32 s74, s74, s13",
         "s_lshr_b32 s12, s3, 1", "s_and_b32 s13, s3, 1",
         "s_cmp_eq_u32 s72, 0",
         f"s_cselect_b32 s8, {8*N1S}, {8*N1Y}", f"s_cselect_b32 s9, 0, {16*N1S}", "s_mul_i32 s8, s8, s12", "s_add_u32 s8, s8, s9",
         "s_cmp_eq_u32 s72, 0",
         f"s_cselect_b32 s75, {SS}, {64-SS}", f"s_cselect_b32 s96, 0, {2*SS}", "s_mul_i32 s75, s75, s12", "s_add_u32 s75, s75, s96",
         "s_lshl_b32 s9, s8, 10", "s_lshl_b32 s8, s8, 16",
         "s_lshl_b32 s96, s75, 10", "s_lshl_b32 s75, s75, 16",
         "s_lshl_b32 s13, s13, 12",
         "s_lshl_b32 s10, s12, 17", "s_add_u32 s10, s10, s13",
         "s_lshl_b32 s11, s12, 16", "s_add_u32 s11, s11, 0x8000", "s_add_u32 s11, s11, s13",
         "v_lshrrev_b32 v30, 4, v0", "v_and_b32 v31, 15, v0", "v_lshlrev_b32 v1, 2, v30", "v_xor_b32 v31, v31, v1",
         "s_lshl_b32 s13, s13, 3", "s_lshl_b32 s97, s74, 8", "s_add_u32 s97, s97, s13",
         "v_lshlrev_b32 v30, 11, v30", "v_add_u32 v30, s97, v30",
         "v_lshl_add_u32 v246, v31, 4, v30", "v_xor_b32 v31, 2, v31", "v_lshl_add_u32 v247, v31, 4, v30", "v_add_u32 v247, 7168, v247",
         "v_add_u32 v248, 14336, v246", "v_add_u32 v249, 14336, v247", "v_mov_b32 v250, s98", "v_mov_b32 v251, s99", "v_mov_b32 v252, 0",
         "s_lshl_b32 s97, s73, 3", "s_and_b32 s13, s3, 1", "s_lshl_b32 s13, s13, 2", "s_add_u32 s97, s97, s13", "s_lshl_b32 s12, s12, 1"])
    for jj in range(4):
        B.e([f"s_xor_b32 s13, s12, {jj}", "s_add_u32 s13, s13, s97", "s_mul_i32 s90, s13, 114688", f"v_add_u32 v{5+jj}, s90, v4",
             "s_lshl_b32 s90, s13, 17", f"v_add_u32 v{242+jj}, s90, v4"])
    B.e(["v_lshlrev_b32 v24, 5, v0", "v_and_b32 v24, 0x3e0, v24",
         "s_lshl_b32 s12, s4, 10", f"s_add_u32 s91, s12, {FL_H}", f"s_add_u32 s97, s12, {FL_O}",
         "s_lshl_b32 s13, s5, 5", "s_add_u32 s88, s91, s13", "s_add_u32 s89, s97, s13"])
    srd(B, 48, P_WS, FL_SZ, WS_FLAG)
    srd(B, 44, P_WD, 3584 * 2048)
    srd(B, 40, P_WS, SZ_HF, WS_HF)
    for i in range(8):
        B.e([f"s_add_u32 s13, s14, {i}", "s_and_b32 s13, s13, 7", f"s_lshl_b32 s{80+i}, s13, 10"])
    late = []
    for l_ in [x.strip() for x in B.lines]:
        if l_.startswith(("s_cselect", "s_addc", "s_subb")): late[-1] = (late[-1][0] + [l_], late[-1][1] + 4)
        else: late.append(([l_], 4))
    if not lset:
        for x, c in late: A.e(x)
        late = []
    WV = 246
    def w_ops(t, half=False):
        slot = t % 8
        ops = []
        rot_ = [f"s_and_b32 s12, s{80+slot}, 0xc00", "s_lshl_b32 s12, s12, 6"] if half else [f"s_lshl_b32 s12, s{80+slot}, 6"]
        for i in range(4):
            ops.append(([f"s_add_u32 m0, s{10 if slot < 4 else 11}, {(slot%4)*8192}"] + rot_ + ["s_add_u32 s12, s12, s8"] if i == 0 else [],
                        f"buffer_load_dwordx4 v{WV+i}, s[44:47], s12 offen offset:{i*1024} lds", ("W", t),
                        ["s_add_u32 s8, s8, 0x80000"] if (i == 3 and slot == 7) else []))
        return ops
    BR = [192, 208, 224, 0, 16, 32, 48, 64]
    facc = lambda cb, jj: v(32 + (cb * 4 + jj) * 4, 4)
    FA = lambda cb, h=None: a(128 + cb * 4, 4) if h is None else a(128 + cb * 4 + 2 * h, 2)
    FB = lambda slot, jj: a(BR[slot] + jj * 4, 4)
    def a_ops(t, half=False):
        slot = t % 8
        return [(([f"s_and_b32 s13, s{80+slot}, 0xc00", "s_add_u32 s13, s13, s9"] if half else [f"s_add_u32 s13, s{80+slot}, s9"]) if jj == 0 else [],
                 f"buffer_load_dwordx4 {FB(slot,jj)}, v{5+jj}, s[40:43], s13 offen {apol}", ("X", t),
                 ["s_add_u32 s9, s9, 0x2000"] if (jj == 3 and slot == 7) else []) for jj in range(4)]
    spins = []
    def check_flags(tag, reg, addr, off):
        A.e([f"v_cmp_ne_u64 vcc, s[98:99], v[{reg}:{reg+1}]", f"s_cbranch_vccnz {L('spin' + tag)}"])
        A.label(L("ok" + tag))
        spins.append((tag, reg, addr, off))

    if hdf == 1: A.e(["s_mov_b32 s14, s6", "s_mov_b32 s4, s7"]); assert not lset
    A.e(["v_mov_b32 v232, 0", "v_mov_b32 v233, 0"] + (["s_nop 2"] if (lset and not hdf) else []))
    def rowmax(S, dst, tmp):
        out = [f"v_max3_f32 v{dst}, v{S}, v{S+1}, v{S+2}"]
        for k in range(3, 15, 2): out.append(f"v_max3_f32 v{dst}, v{dst}, v{S+k}, v{S+k+1}")
        out += [f"v_max_f32 v{dst}, v{dst}, v{S+15}", f"v_mov_b32 v{tmp}, v{dst}", "s_nop 1",
                f"v_permlane32_swap_b32 v{tmp}, v{dst}", f"v_max_f32 v{dst}, v{dst}, v{tmp}"]
        return out
    for mu in range(2):
        A.e(rowmax(SB(0, mu), VT + mu, VT + 2))
        A.e([f"v_sub_f32 v{NM(mu)+k}, 0, v{VT+mu}" for k in range(16)])
        A.e([f"v_sub_f32 v{SB(0,mu)+k}, v{SB(0,mu)+k}, v{VT+mu}" for k in range(16)])
    def sm(T):
        b = T & 1
        out = []
        def ex(n): return (f"v_exp_f32 v{EB + n % 8}, v{SB(b, n // 16) + n % 16}", 8)
        def fin(n):
            mu, r_ = n // 16, n % 16; e = EB + n % 8; o = []
            if r_ == 1: o.append((f"v_add_f32 v{VTS+mu}, v{EB + (n-1) % 8}, v{e}", 4))
            elif r_ > 1: o.append((f"v_add_f32 v{VTS+mu}, v{VTS+mu}, v{e}", 4))
            if r_ % 2 == 1: o.append((f"v_cvt_pk_bf16_f32 v{PB(b,mu) + r_//2}, v{EB + (n-1) % 8}, v{e}", 5))
            return o
        out.append(ex(0)); out.append(ex(1))
        for n in range(2, 32):
            out.append(ex(n)); out += fin(n - 2)
        out += fin(30) + fin(31)
        out += [(f"v_max_f32 v{VT}, v{VTS}, v{VTS+1}", 4), (f"v_cmp_nge_f32 vcc, s95, v{VT}", 4)]
        return out
    stamp(3)
    def flag_store(off_sreg):
        lab = L("fl%d" % A.nlabel); A.nlabel += 1
        A.e(["s_cmp_lg_u32 s3, 0", f"s_cbranch_scc1 {lab}", "s_mov_b64 exec, 1",
             f"buffer_store_dwordx2 v[250:251], v252, s[48:51], {off_sreg} offen {WT}", "s_mov_b64 exec, -1"])
        A.label(lab)
    endsetup = ["s_lshl_b32 s6, s15, 17", "s_lshl_b32 s90, s5, 12", "s_add_u32 s6, s6, s90", "s_add_u32 s7, s6, 0x40000",
                f"v_mov_b32 v{VT}, v{VL}", f"v_mov_b32 v{VT+1}, v{VL+1}", "v_mov_b32 v29, v21", "v_mov_b32 v253, v24",
                f"v_permlane32_swap_b32 v{VT}, v{VL}", f"v_permlane32_swap_b32 v{VT+1}, v{VL+1}",
                f"v_add_f32 v{VT}, v{VT}, v{VL}", f"v_add_f32 v{VT+1}, v{VT+1}, v{VL+1}",
                f"v_rcp_f32 v{VT+2}, v{VT}", f"v_rcp_f32 v{VT+4}, v{VT+1}",
                "v_lshrrev_b32 v1, 4, v0", f"v_mov_b32 v{VT+3}, v{VT+2}", f"v_mov_b32 v{VT+5}, v{VT+4}",
                "v_lshlrev_b32 v30, 10, v1", "v_and_b32 v1, 1, v1",
                "v_bfe_u32 v31, v0, 2, 2", "v_lshl_add_u32 v30, v31, 8, v30", "v_lshl_or_b32 v31, v31, 1, v1",
                "v_and_b32 v1, 3, v0", "v_lshl_add_u32 v30, v1, 3, v30",
                "s_lshr_b32 s91, s3, 1", "s_lshl_b32 s90, s91, 17", "s_lshl_b32 s91, s91, 16", "s_add_u32 s91, s91, 0x8000"]
    for cb in range(8):
        endsetup += [f"v_xor_b32 v1, {cb}, v31", "v_lshl_add_u32 v1, v1, 5, v30", f"v_add_u32 v{9+cb}, s90, v1", f"v_add_u32 v{17+cb}, s91, v1"]
    rare_sites = []
    for T in range(17):
        mf = (qk(T + 1, lambda mu: v(NM(mu), 16)) if T + 1 <= 15 else []) + (pv(T - 1) if T >= 1 else [])
        nq = 16 if T + 1 <= 15 else 0
        va = ([(f"v_add_f32 v{VL}, v{VL}, v{VTS}", 4), (f"v_add_f32 v{VL+1}, v{VL+1}, v{VTS+1}", 4)] if T >= 1 else []) + (sm(T) if T <= 15 else [])
        rdv = v_reads(T - 1) if T >= 1 else []
        rdk = k_reads(T + 2) if T + 2 <= 15 else []
        vm = []
        if T % 2 == 0 and T <= 14:
            w = []
            if T == hfT: w += vq.need(("H", 0))
            if T >= 6: w += vq.need(("K", (T + 2) // 2))
            if T >= 8: w += vq.need(("V", T // 2))
            A.e(w[-1:]); A.e(dq.drain()); A.e("s_barrier")
            if T == hfT:
                if hwb:
                    lab = L("wb")
                    A.e(["s_cmp_lg_u32 s3, 0", f"s_cbranch_scc1 {lab}", "buffer_wbl2 sc1"]); A.label(lab)
                else: flag_store("s88")
            if T == 8 and hwb: flag_store("s88")
            if T <= 6: vm += kv_ops("K", T // 2 + 4)
            if 4 <= T <= 10: vm += kv_ops("V", T // 2 + 2)
            if T == 12: vm += w_ops(0) + w_ops(1)
            if T == 14:
                A.e(vq.need(("F", 0))); check_flags("H", 22, 24, "s91")
                vm += a_ops(0) + a_ops(1)
        if pfA and pf0 <= T <= pf0 + 7:
            pre = []
            if T == pf0:
                pre = [f"s_mov_b32 s52, s{P_WO}", f"s_and_b32 s53, s{P_WO+1}, 0xffff", f"s_mov_b32 s54, {4096*2048:#x}",
                       "s_lshl_b32 s12, s2, 2", "s_add_u32 s12, s12, s3", "s_lshl_b32 s100, s12, 13", "s_mul_i32 s101, s12, 7168",
                       "v_and_b32 v2, 7, v0", "v_lshlrev_b32 v2, 7, v2", "v_add_u32 v3, 4096, v2"]
            k = T - pf0
            if k < 7: vm += [(pre, f"buffer_load_dword v30, v{2 if k < 4 else 3}, s[44:47], s101 offen offset:{(k % 4) * 1024}", ("P", 0), [])]
            if pfA == 2: vm += [([], f"buffer_load_dword v30, v{2 if k < 4 else 3}, s[52:55], s100 offen offset:{(k % 4) * 1024}", ("P", 0), [])]
        if T == 9 and cpf >= 3: emit_vm(code_touch(31, "v31"), A.e)
        if T == 12: vm += [([], f"buffer_load_dwordx2 v[22:23], v24, s[48:51], s91 offen {WT}", ("F", 0), [])]
        if T == 13: vm += w_ops(2) + w_ops(3)
        if T < 4: vm += hdef[2 * T: 2 * T + 2]
        if T == 15: vm += a_ops(2)
        if late and 1 <= T <= 3:
            k_ = -(-len(late) // (4 - T)); ch = late[:k_]; late = late[k_:]
            nv = []; st_ = max(1, len(va) // len(ch))
            for i_, it_ in enumerate(va[:-2]):
                nv.append(it_)
                if ch and i_ % st_ == st_ - 1 and not it_[0].startswith("v_exp"): pass
                if ch and i_ % st_ == st_ - 1: nv.append(ch.pop(0))
            va = nv + ch + va[-2:]
        roll = v_reads(T) if (t16 and T in (14, 15)) else []
        if t16 and T >= 15: rdv = []
        if t16 and T == 16:
            A.e(dq.drain()); A.e("s_barrier")
            vm += w_ops(4) + w_ops(5) + w_ops(6)
            va += [(x, 4) for x in endsetup]
        if nq == 0:
            for ins, tag in rdv: A.e(ins); dq.issue(tag)
            rdv = []
        n = len(mf)
        vml = []
        for op in vm:
            vml += [(x, 4, None) for x in op[0]] + ([("s_nop 0", 4, None)] if op[0] else []) + [(op[1], 8, op[2])] + [(x, 4, None) for x in op[3]]
        tot = sum(c for _, c in va) + 4 * (len(rdv) + len(rdk) + len(roll)) + sum(c for _, c, _ in vml)
        done = 0
        for m, (ins, tag) in enumerate(mf):
            w = dq.need(tag, dsl); A.e(w); A.e(ins)
            used = 4 * len(w)
            budget = max(cap, -(-(tot - done) // (n - m)) + 3) if m < n - 1 else 10 ** 6
            target = (tot * (m + 1)) // n + 6
            if roll and m >= nq and (m - nq) % 2 == 1: rdk += roll[:2]; roll = roll[2:]
            rd = rdv if (m < nq and rdv) else (rdk if (m >= nq and rdk) else None)
            if rd:
                ri, rt = rd.pop(0); A.e(ri); dq.issue(rt); used += 4; done += 4
                if rd is rdv and len(rd) > (nq - 3 - m):
                    ri, rt = rd.pop(0); A.e(ri); dq.issue(rt); used += 4; done += 4
            elif vml:
                x, c, tg = vml.pop(0); A.e(x); used += c; done += c
                if tg: vq.issue(tg)
                while vml and c == 4 and used < 12:
                    x, c, tg = vml.pop(0); A.e(x); used += c; done += c
                    if tg: vq.issue(tg)
            while va and used + va[0][1] <= budget and (done < target or m == n - 1):
                x, c = va.pop(0); A.e(x); used += c; done += c
        assert not rdv
        for ins, tag in rdk: A.e(ins); dq.issue(tag)
        for x, c, tg in vml:
            A.e(x)
            if tg: vq.issue(tg)
        for x, c in va: A.e(x)
        if T <= 15:
            A.e([f"s_cbranch_vccnz {L('rs%d' % T)}"])
            A.label(L("rb%d" % T))
            rare_sites.append(T)
    stamp(4)
    if not t16:
        A.e("s_barrier")
        for t in range(4, 7):
            for op in w_ops(t): emit_vm(op, A.e, True)
        A.e(endsetup)
    def frd(t, cb):
        slot = t % 8
        reg = (9 if slot < 4 else 17) + cb; off = (slot % 4) * 8192
        return [(f"ds_read_b64_tr_b16 {FA(cb,0)}, v{reg} offset:{off}", ("A", t, cb)),
                (f"ds_read_b64_tr_b16 {FA(cb,1)}, v{reg} offset:{off+4096}", ("A", t, cb))]
    dq.slack = 8
    ostores = []
    cnt = 0
    if oin:
        A.e([f"v_accvgpr_read_b32 v{96+k}, a{k}" for k in range(64)])
        for t in range(3, 7):
            for op in a_ops(t): emit_vm(op, A.e)
        A.e(vq.need(("W", 3))); A.e("s_barrier")
        for cb in range(8):
            for ins, tag in frd(0, cb): A.e(ins); dq.issue(tag)
    for i in range(4):
        for mu in range(2):
            tmp = 96 + (cnt % 4) * 16; dst = 160 + cnt * 8; cnt += 1
            src = (i * 2 + mu) * 16
            if not (oin and cnt <= 4): A.e([f"v_accvgpr_read_b32 v{tmp+k}, a{src+k}" for k in range(16)])
            A.e([f"v_pk_mul_f32 v[{tmp+2*k}:{tmp+2*k+1}], v[{tmp+2*k}:{tmp+2*k+1}], v[{VT+2+2*mu}:{VT+3+2*mu}]" for k in range(8)])
            for s_ in range(2):
                for jj, j in enumerate((s_, s_ + 2)):
                    A.e([f"v_cvt_pk_bf16_f32 v{dst+4*s_+2*jj}, v{tmp+4*j}, v{tmp+4*j+1}", f"v_cvt_pk_bf16_f32 v{dst+4*s_+2*jj+1}, v{tmp+4*j+2}, v{tmp+4*j+3}"])
                ostores.append(([], f"buffer_store_dwordx4 {v(dst+4*s_,4)}, v29, s[60:63], s{6+mu} offen offset:{i*1024+s_*512} {WT}", ("O", 0), []))
                if oin and len(ostores) <= oin: emit_vm(ostores[-1], A.e)
            if not oin and cnt in (1, 2, 3, 4):
                for op in a_ops(2 + cnt): emit_vm(op, A.e)
            if not oin and cnt == 5:
                A.e(vq.need(("W", 3))); A.e("s_barrier")
                for cb in range(8):
                    for ins, tag in frd(0, cb): A.e(ins); dq.issue(tag)
    ostores = ostores[oin:]
    srd(A, 52, P_WS, G_SZ, G_BASE)
    srd(A, 64, P_X, 2048 * 2048)
    srd(A, 68, P_OUT, 2048 * 2048)
    A.e(["s_cmp_eq_u32 s72, 0",
         f"s_cselect_b32 s90, {N1S-nf//8}, {N1Y-nf//8}", f"s_cselect_b32 s95, {N1S-1-nf//8}, {N1Y-1-nf//8}", "s_mov_b32 s91, 0",
         "s_lshl_b32 s12, s73, 3", "s_add_u32 s12, s12, s74",
         "s_lshl_b32 s92, s12, 2", "s_add_u32 s92, s92, s3",
         "s_lshl_b32 s92, s92, 13",
         "s_lshl_b32 s93, s12, 7", f"s_add_u32 s101, s93, {FL_P}", "s_lshl_b32 s12, s3, 5", "s_add_u32 s93, s93, s12",
         "s_lshl_b32 s94, s73, 7", "s_and_b32 s12, s3, 1", "s_lshl_b32 s12, s12, 6", "s_add_u32 s94, s94, s12",
         "s_lshr_b32 s12, s3, 1", "s_lshl_b32 s12, s12, 5", "s_add_u32 s94, s94, s12",
         "s_lshl_b32 s94, s94, 11", "s_lshl_b32 s12, s74, 8", "s_add_u32 s94, s94, s12",
         "v_and_b32 v1, 15, v0", "v_lshlrev_b32 v1, 11, v1", "v_lshrrev_b32 v30, 4, v0",
         "v_lshl_add_u32 v25, v30, 3, v1", "v_add_u32 v26, 0x8000, v25",
         "v_lshl_add_u32 v27, v30, 4, v1", "v_add_u32 v28, 0x8000, v27",
         "s_lshl_b32 s12, s3, 14", "v_add_u32 v2, s12, v4", "s_xor_b32 s12, s12, 0x8000", "v_add_u32 v3, s12, v4",
         "s_lshl_b32 s12, s3, 13", "s_add_u32 s12, s12, 0x10000", "v_add_u32 v254, s12, v4", "s_xor_b32 s12, s12, 0x4000", "v_add_u32 v255, s12, v4"])
    stamp(5)
    XP = (2, 8, 12, 16, 20, 24, 28)
    def fstep(t, E, last=False, extra=(), czero=False, prev=None, afterbar=None, needbar=(), va=None, xp=None):
        if not last: vops = w_ops(t + 7) + a_ops(t + 7)
        else: vops = (w_ops(t + 7, t > 0) + a_ops(t + 7, t > 0)) if t + 7 < tail else []
        xq = xp or (XP if vops else vpos)
        sched = sorted(list(zip(vpos, vops)) + list(zip(xq, extra)), key=lambda x: x[0])
        assert len(extra) <= len(xq)
        isbar = (t % 2 == 1)
        doread = not (last and t == tail - 1)
        pend = []; vi = 0; post = []; pre = [x for _, op in sched for x in op[0]] if False else None
        pres = [list(op[0]) for _, op in sched]
        for m in range(32):
            cb, jj = m // 4, m % 4
            if m == 0: E(vq.need(("X", t)))
            if jj == 0: E(dq.need(("A", t, cb)))
            if prev: E(prev(cb, jj))
            E(mfma16(facc(cb, jj), FA(cb), FB(t % 8, jj), "0" if czero else None))
            if isbar and m == barpos:
                w = vq.need(("W", t + 2))
                for tg in needbar: w += vq.need(tg)
                E(w[-1:]); E(dq.drain()); E("s_barrier")
                if afterbar: afterbar()
            if jj == 3 and doread: pend += frd(t + 1, cb)
            if vi < len(sched) and m == sched[vi][0]:
                assert not pres[vi]
                op = sched[vi][1]
                E(op[1]); vq.issue(op[2]); post += op[3]; vi += 1
            else:
                used = 0
                if not (isbar and m < barpos) and pend:
                    ins, tag = pend.pop(0); E(ins); dq.issue(tag); used += 1
                k = next((k for k in range(vi, len(sched)) if pres[k]), None)
                if k is not None and any("m0" in x for x in pres[k]) and any(" lds" in sched[k2][1][1] for k2 in range(vi, k)): k = None
                while k is not None and pres[k] and used < 2: E(pres[k].pop(0)); used += 1
                if post and used < 2: E(post.pop(0)); used += 1
                cyc = 4 * used
                while va and cyc + va[0][1] <= vcap:
                    x, c = va.pop(0); E(x); cyc += c
        for ins, tag in pend: E(ins); dq.issue(tag)
        E(post)
    oflag = [([], f"buffer_load_dwordx2 v[30:31], v253, s[48:51], s97 offen {WT}", ("F", 0), [])]
    SWW = [[]]
    def loop_body(E, real):
        for t in range(8):
            fstep(t, E, extra=oflag if t == 2 else ())
            if t == 0 and real:
                A.e(["s_cmp_lg_u32 s95, 0", f"s_cbranch_scc1 {L('nosw')}"])
                A.e(SWW[0]); check_flags("O", 30, 253, "s97")
                srd(A, 40, P_WS, SZ_OF, WS_OF); srd(A, 44, P_WO, 4096 * 2048)
                A.e(["s_mov_b32 s8, s75", "s_mov_b32 s9, s96", "s_mov_b32 s97, s101", "v_mov_b32 v253, 0"] + [f"v_mov_b32 v{5+jj}, v{242+jj}" for jj in range(4)])
                A.label(L("nosw"))
    XP8 = (1, 2, 4, 8, 12, 16, 20, 24)
    for t in range(nf):
        k0 = sum(ost[:t]); ex = list(ostores[k0:k0 + ost[t]]) if t < len(ost) else []
        if nf == 16 and t == oft: ex = ex + oflag
        fstep(t, A.e, extra=ex, czero=(t == 0), xp=(XP8 if t % 2 == 0 else (4, 5, 8, 12, 16, 20, 24, 28)) if len(ex) > 3 else (8, 16, 24),
              needbar=[("O", 0)] if t == oflt else (), afterbar=(lambda: flag_store("s89")) if t == oflt else None)
    stamp(6)
    SWW[0] = [f"s_waitcnt vmcnt({vq.count_after(('F', 0)) + 8})"] if ("F", 0) in vq.q else []
    vq.rebase(nf); dq.rebase(nf)
    q_first = (list(vq.q), list(dq.q))
    loop_body(lambda x: None, False)
    vq.rebase(8); dq.rebase(8)
    q_steady = (list(vq.q), list(dq.q))
    assert not any(t[0] == "F" for t in q_steady[0]) and N1S >= 3 and N1Y >= 3
    def covers(entry, steady):
        def younger(q, tag): return len(q) - 1 - max(i for i, t in enumerate(q) if t == tag)
        for tag in set(entry):
            if tag[0] not in "WXA": continue
            if tag not in steady or younger(entry, tag) < younger(steady, tag): return False
        return True
    assert covers(q_first[0], q_steady[0]) and covers(q_first[1], q_steady[1]), (q_first, q_steady)
    A.raw(".p2align 6")
    A.label(L("floop"))
    loop_body(A.e, True)
    A.e(["s_sub_u32 s95, s95, 1", "s_sub_u32 s90, s90, 1", "s_cmp_lg_u32 s90, 0", f"s_cbranch_scc1 {L('floop')}",
         "s_cmp_lg_u32 s91, 0", f"s_cbranch_scc1 {L('flast')}"])
    stamp(3, 2)
    vq.rebase(8); dq.rebase(8)
    YS = lambda cb, jj: 160 + (cb * 2 + jj) * 4
    if mid1:
        A.e("s_nop 2")
        for jj in range(2):
            for i in range(4):
                d = YS(2 * i, jj)
                for h in range(2):
                    b = 32 + ((2 * i + h) * 4 + jj + 2) * 4
                    A.e([f"v_cvt_pk_bf16_f32 v{d+2*h}, v{b}, v{b+1}", f"v_cvt_pk_bf16_f32 v{d+2*h+1}, v{b+2}, v{b+3}"])
                A.e(f"ds_write_b128 v254, {v(d,4)} offset:{(jj*4+i)*1024}")
        A.e(["s_waitcnt lgkmcnt(0)", "s_barrier"])
        for jj in range(2):
            for i in range(4):
                A.e(f"ds_read_b128 {facc(2*i, jj+2)}, v255 offset:{(jj*4+i)*1024}")
        for jj in range(2):
            for i in range(4):
                pc = 32 + ((2 * i) * 4 + jj + 2) * 4
                A.e(f"s_waitcnt lgkmcnt({7 - (jj*4+i)})")
                for h in range(2):
                    b = 32 + ((2 * i + h) * 4 + jj) * 4; y = YS(2 * i + h, jj)
                    A.e([f"v_lshlrev_b32 v{y}, 16, v{pc+2*h}", f"v_and_b32 v{y+1}, 0xffff0000, v{pc+2*h}",
                         f"v_lshlrev_b32 v{y+2}, 16, v{pc+2*h+1}", f"v_and_b32 v{y+3}, 0xffff0000, v{pc+2*h+1}"])
                    A.e([f"v_pk_add_f32 v[{y+r_}:{y+r_+1}], v[{y+r_}:{y+r_+1}], v[{b+r_}:{b+r_+1}]" for r_ in (0, 2)])
    else:
        A.e("s_nop 2")
        for rnd in range(2):
            for cb in range(4 * rnd, 4 * rnd + 4):
                for jj in (2, 3): A.e(f"ds_write_b128 v254, {facc(cb,jj)} offset:{((cb%4)*2+jj-2)*1024}")
            if rnd == 1:
                for cb in range(4):
                    for jj in range(2):
                        b = 32 + (cb * 4 + jj) * 4; y = YS(cb, jj)
                        A.e([f"v_pk_add_f32 v[{y+r_}:{y+r_+1}], v[{b+r_}:{b+r_+1}], v[{b+8+r_}:{b+9+r_}]" for r_ in (0, 2)])
            A.e(["s_waitcnt lgkmcnt(0)", "s_barrier"])
            for cb in range(4 * rnd, 4 * rnd + 4):
                for jj in (2, 3): A.e(f"ds_read_b128 {facc(cb,jj)}, v255 offset:{((cb%4)*2+jj-2)*1024}")
            if rnd == 0: A.e(["s_waitcnt lgkmcnt(0)", "s_barrier"])
        for cb in range(4, 8):
            for jj in range(2):
                b = 32 + (cb * 4 + jj) * 4; y = YS(cb, jj)
                A.e(f"s_waitcnt lgkmcnt({7 - ((cb-4)*2+jj)})")
                A.e([f"v_pk_add_f32 v[{y+r_}:{y+r_+1}], v[{b+r_}:{b+r_+1}], v[{b+8+r_}:{b+9+r_}]" for r_ in (0, 2)])
    A.e(["s_cmp_eq_u32 s72, 0", f"s_cbranch_scc1 {L('firstC')}", "s_add_u32 s6, s92, 4096"])
    for jj in range(2):
        for i in range(4):
            d = 224 + (i % 2) * 4 + jj * 8
            for h in range(2):
                y = YS(2 * i + h, jj)
                A.e([f"v_cvt_pk_bf16_f32 v{d+2*h}, v{y}, v{y+1}", f"v_cvt_pk_bf16_f32 v{d+2*h+1}, v{y+2}, v{y+3}"])
            A.e(f"buffer_store_dwordx4 {v(d,4)}, v4, s[52:55], {'s6' if jj else 's92'} offen offset:{i*1024} {WT}")
    A.label(L("firstC"))
    stamp(4, 2)
    vq.q, dq.q = list(q_steady[0]), list(q_steady[1])
    def pflag():
        lab = L("pf")
        A.e(["s_xor_b32 s6, s72, 1", "s_or_b32 s6, s6, s3", "s_cmp_lg_u32 s6, 0", f"s_cbranch_scc1 {lab}", "s_mov_b64 exec, 1",
             f"buffer_store_dwordx2 v[250:251], v252, s[48:51], s101 offen {WT}", "s_mov_b64 exec, -1"])
        A.label(lab)
    xpre = ["v_lshrrev_b32 v228, 4, v0", "v_and_b32 v229, 15, v0", "v_xor_b32 v229, v229, v228"]
    for i in range(4):
        xpre += [f"v_xor_b32 v{224+i}, {4*i}, v229", f"v_lshlrev_b32 v{224+i}, 4, v{224+i}", f"v_lshl_add_u32 v{224+i}, v228, 11, v{224+i}",
                 f"v_add_u32 v{224+i}, {7168*i}, v{224+i}"]
    xdma = [([f"s_add_u32 m0, s15, {4096*hh}"], f"buffer_load_dwordx4 v{224+i}, s[64:67], {'s100' if hh else 's94'} offen offset:{i*1024} lds", ("R", 0), [])
            for hh in range(2) for i in range(4)]
    A.e(xpre + ["s_lshl_b32 s15, s3, 13", "s_add_u32 s15, s15, 0x10000", "s_add_u32 s100, s94, 0x8000"])
    nopre = lambda op: ([],) + tuple(op[1:])
    mark = ("MARK", vq.total)
    for t in range(8):
        fstep(t, A.e, czero=(t == 0), afterbar=pflag if t == pft else None, needbar=[mark] if t == pft else (), extra={2: [xdma[0], nopre(xdma[1])], 3: [xdma[2]], 4: [xdma[3]], 5: [xdma[4]] + oflag, 6: [xdma[5], nopre(xdma[6])], 7: [xdma[7]]}.get(t, ()),
              xp=(1, 2) if t in (2, 6) else None)
    FW = vq.need(("F", 0))
    vq.rebase(8); dq.rebase(8)
    assert covers(vq.q, q_steady[0]) and covers(dq.q, q_steady[1])
    stamp(5, 2)
    A.e(["s_mov_b32 s91, 1", f"s_mov_b32 s90, {(64-SS-8-tail)//8}", "s_cmp_lg_u32 s72, 0", f"s_cbranch_scc1 {L('floop')}"])
    A.e(FW); check_flags("P", 30, 252, "s101")
    YP = lambda jj, i: 224 + (jj * 4 + i) * 4
    YA = lambda i: 80 + i * 4
    A.e("s_add_u32 s6, s92, 4096")
    for i in range(4):
        A.e([f"buffer_load_dwordx4 {v(YP(0,i),4)}, v4, s[52:55], s92 offen offset:{i*1024} {WT}",
             f"buffer_load_dwordx4 {a(YA(i),4)}, v4, s[52:55], s6 offen offset:{i*1024} {WT}"])
    A.e([f"s_mov_b32 s90, {(SS-8-tail)//8}", f"s_branch {L('floop')}"])
    A.label(L("flast"))
    stamp(6, 2)
    A.e(["s_mov_b32 s6, 0xbfb8aa3b", "s_mov_b32 s7, 0xbfb8aa3b", "s_cmp_lg_u32 s72, 0", f"s_cbranch_scc1 {L('flast2')}"])
    for cb in range(8):
        y = YS(cb, 0); pc = YP(0, cb // 2) + 2 * (cb % 2); T0 = 240 if cb % 2 == 0 else 242
        T0 = 240
        A.e([f"v_lshlrev_b32 v{T0}, 16, v{pc}", f"v_and_b32 v{T0+1}, 0xffff0000, v{pc}",
             f"v_lshlrev_b32 v{T0+2}, 16, v{pc+1}", f"v_and_b32 v{T0+3}, 0xffff0000, v{pc+1}"])
        A.e([f"v_pk_add_f32 v[{y+r_}:{y+r_+1}], v[{y+r_}:{y+r_+1}], v[{T0+r_}:{T0+r_+1}]" for r_ in (0, 2)])
        A.e([f"v_pk_mul_f32 v[{T0+r_}:{T0+r_+1}], v[{y+r_}:{y+r_+1}], s[6:7]" for r_ in (0, 2)])
        A.e([f"v_exp_f32 v{T0+r_}, v{T0+r_}" for r_ in range(4)])
        A.e([f"v_pk_add_f32 v[{T0+r_}:{T0+r_+1}], v[{T0+r_}:{T0+r_+1}], 1.0 op_sel_hi:[1,0]" for r_ in (0, 2)])
        A.e([f"v_rcp_f32 v{T0+r_}, v{T0+r_}" for r_ in range(4)])
        A.e([f"v_pk_mul_f32 v[{y+r_}:{y+r_+1}], v[{y+r_}:{y+r_+1}], v[{T0+r_}:{T0+r_+1}]" for r_ in (0, 2)])
    A.label(L("flast2"))
    vq.q, dq.q = list(q_steady[0]), list(q_steady[1])
    va = []
    for cb in range(8):
        y = YS(cb, 1); pc = YA(cb // 2) + 2 * (cb % 2); T0 = 224 + 4 * (cb % 2)
        va += [(f"v_accvgpr_read_b32 v{T0+1}, a{pc}", 4), (f"v_accvgpr_read_b32 v{T0+3}, a{pc+1}", 4),
               (f"v_lshlrev_b32 v{T0}, 16, v{T0+1}", 4), (f"v_and_b32 v{T0+1}, 0xffff0000, v{T0+1}", 4),
               (f"v_lshlrev_b32 v{T0+2}, 16, v{T0+3}", 4), (f"v_and_b32 v{T0+3}, 0xffff0000, v{T0+3}", 4)]
        va += [(f"v_add_f32 v{y+r_}, v{y+r_}, v{T0+r_}", 4) for r_ in range(4)]
        va += [(f"v_mul_f32 v{T0+r_}, s7, v{y+r_}", 4) for r_ in range(4)]
        va += [(f"v_exp_f32 v{T0+r_}, v{T0+r_}", 8) for r_ in range(4)]
        va += [(f"v_add_f32 v{T0+r_}, 1.0, v{T0+r_}", 4) for r_ in range(4)]
        va += [(f"v_rcp_f32 v{T0+r_}, v{T0+r_}", 8) for r_ in range(4)]
        va += [(f"v_mul_f32 v{y+r_}, v{y+r_}, v{T0+r_}", 4) for r_ in range(4)]
    fin = [(["v_mov_b32 v29, 0"], f"buffer_load_dwordx2 v[30:31], v29, s[48:51], s93 offen {WT}", ("G", 0), [])]
    for t in range(tail):
        fstep(t, A.e, last=True, extra={tail - 3: fin}.get(t, ()), va=va if t >= vat else None)
    A.c(f"left over fillers: {len(va)}")
    for x, c in va: A.e(x)
    stamp(7)
    A.e(["v_mov_b32 v22, s98", "v_mov_b32 v23, s99", f"s_add_u32 s6, s92, {G_SF}", f"s_add_u32 s7, s92, {G_SF+4096}",
         "s_cmp_lg_u32 s72, 0", f"s_cbranch_scc1 {L('xch')}"])
    s2loads = [f"buffer_load_dwordx4 {v(YP(jj,i),4)}, v4, s[52:55], s{6+jj} offen offset:{i*1024} {WT}" for jj in range(2) for i in range(4)]
    A.e(vq.need(("G", 0)))
    A.e(["v_cmp_ne_u64 vcc, s[98:99], v[30:31]", f"s_cbranch_vccnz {L('xch')}", "s_mov_b32 s91, 2"] + s2loads)
    A.label(L("xch"))
    A.e("s_nop 2")
    for cb in range(8):
        for jj in (2, 3):
            A.e(f"ds_write_b128 v2, {facc(cb,jj)} offset:{(cb*2+jj-2)*1024}")
    A.e(["s_waitcnt lgkmcnt(0)", "s_barrier"])
    for jj in (2, 3):
        for cb in range(8):
            A.e(f"ds_read_b128 {facc(cb,jj)}, v3 offset:{(cb*2+jj-2)*1024}")
    A.e(["s_cmp_eq_u32 s72, 0", f"s_cbranch_scc1 {L('sepi')}"])
    for jj in range(2):
        for i in range(4):
            dst = 160 + (jj * 4 + i) * 4
            for h in range(2):
                cb = 2 * i + h
                A.e(f"s_waitcnt lgkmcnt({15 - (jj*8+cb)})")
                b = 32 + (cb * 4 + jj) * 4
                A.e([f"v_pk_add_f32 v[{b+r_}:{b+r_+1}], v[{b+r_}:{b+r_+1}], v[{b+8+r_}:{b+9+r_}]" for r_ in (0, 2)])
                A.e([f"v_cvt_pk_bf16_f32 v{dst+2*h}, v{b}, v{b+1}", f"v_cvt_pk_bf16_f32 v{dst+2*h+1}, v{b+2}, v{b+3}"])
            A.e(f"buffer_store_dwordx4 {v(dst,4)}, v4, s[52:55], s{6+jj} offen offset:{i*1024} {WT}")
    A.e(["s_waitcnt vmcnt(0)", "s_mov_b64 exec, 1",
         f"buffer_store_dwordx2 v[22:23], v29, s[48:51], s93 offen {WT}", "s_mov_b64 exec, -1", f"s_branch {L('fin')}"])
    A.label(L("sepi"))
    A.e(["v_and_b32 v1, 15, v0", "v_lshrrev_b32 v5, 5, v0", "v_xor_b32 v5, v5, v1", "v_bfe_u32 v6, v0, 4, 1", "v_lshlrev_b32 v6, 3, v6",
         "v_lshl_add_u32 v6, v1, 8, v6", "s_lshl_b32 s15, s3, 13", "s_add_u32 s15, s15, 0x10000", "v_add_u32 v6, s15, v6"])
    XR = lambda cb, jj: 96 + (cb * 2 + jj) * 2
    for cb in range(8):
        A.e([f"v_xor_b32 v7, {2*cb}, v5", "v_lshl_add_u32 v7, v7, 4, v6",
             f"ds_read_b64 {a(XR(cb,0),2)}, v7", f"ds_read_b64 {a(XR(cb,1),2)}, v7 offset:4096"])
    if fast:
        A.e(["s_cmp_lg_u32 s91, 2", f"s_cbranch_scc1 {L('slowp')}", "s_waitcnt lgkmcnt(0)"])
        for jj in range(2):
            for i in range(4):
                o = YP(jj, i)
                for h in range(2):
                    cb = 2 * i + h
                    b = 32 + (cb * 4 + jj) * 4; y = YS(cb, jj); xa = XR(cb, jj); T0 = 8 + 8 * h
                    A.e([f"v_accvgpr_read_b32 v{T0+1}, a{xa}", f"v_accvgpr_read_b32 v{T0+3}, a{xa+1}"])
                    A.e([f"v_pk_add_f32 v[{b+r_}:{b+r_+1}], v[{b+r_}:{b+r_+1}], v[{b+8+r_}:{b+9+r_}]" for r_ in (0, 2)])
                    A.e([f"v_lshlrev_b32 v{T0}, 16, v{T0+1}", f"v_and_b32 v{T0+1}, 0xffff0000, v{T0+1}",
                         f"v_lshlrev_b32 v{T0+2}, 16, v{T0+3}", f"v_and_b32 v{T0+3}, 0xffff0000, v{T0+3}"])
                    if h == 0: A.e("s_waitcnt vmcnt(7)")
                    A.e([f"v_lshlrev_b32 v{T0+4}, 16, v{o+2*h}", f"v_and_b32 v{T0+5}, 0xffff0000, v{o+2*h}",
                         f"v_lshlrev_b32 v{T0+6}, 16, v{o+2*h+1}", f"v_and_b32 v{T0+7}, 0xffff0000, v{o+2*h+1}"])
                    A.e([f"v_pk_fma_f32 v[{b+r_}:{b+r_+1}], v[{b+r_}:{b+r_+1}], v[{y+r_}:{y+r_+1}], v[{T0+r_}:{T0+r_+1}]" for r_ in (0, 2)])
                    A.e([f"v_pk_fma_f32 v[{b+r_}:{b+r_+1}], v[{T0+4+r_}:{T0+5+r_}], v[{y+r_}:{y+r_+1}], v[{b+r_}:{b+r_+1}]" for r_ in (0, 2)])
                    A.e([f"v_cvt_pk_bf16_f32 v{o+2*h}, v{b}, v{b+1}", f"v_cvt_pk_bf16_f32 v{o+2*h+1}, v{b+2}, v{b+3}"])
                A.e(["s_nop 1", f"v_permlane32_swap_b32 v{o}, v{o+2}", f"v_permlane32_swap_b32 v{o+1}, v{o+3}", "s_nop 0",
                     f"v_permlane16_swap_b32 v{o}, v{o+2}", f"v_permlane16_swap_b32 v{o+1}, v{o+3}",
                     f"buffer_store_dwordx4 {v(o,4)}, v{27+jj}, s[68:71], s94 offen offset:{i*64}"])
        A.e(f"s_branch {L('fin')}")
        A.label(L("slowp"))
    for n in range(16):
        jj, cb = n // 8, n % 8
        b = 32 + (cb * 4 + jj) * 4; y = YS(cb, jj); xa = XR(cb, jj); T0 = 8 + 4 * (n % 2)
        if n == 0: A.e("s_waitcnt lgkmcnt(0)")
        A.e([f"v_accvgpr_read_b32 v{T0+1}, a{xa}", f"v_accvgpr_read_b32 v{T0+3}, a{xa+1}"])
        A.e([f"v_pk_add_f32 v[{b+r_}:{b+r_+1}], v[{b+r_}:{b+r_+1}], v[{b+8+r_}:{b+9+r_}]" for r_ in (0, 2)])
        A.e([f"v_lshlrev_b32 v{T0}, 16, v{T0+1}", f"v_and_b32 v{T0+1}, 0xffff0000, v{T0+1}",
             f"v_lshlrev_b32 v{T0+2}, 16, v{T0+3}", f"v_and_b32 v{T0+3}, 0xffff0000, v{T0+3}"])
        A.e([f"v_pk_fma_f32 v[{b+r_}:{b+r_+1}], v[{b+r_}:{b+r_+1}], v[{y+r_}:{y+r_+1}], v[{T0+r_}:{T0+r_+1}]" for r_ in (0, 2)])
    A.e(["s_cmp_eq_u32 s91, 2", f"s_cbranch_scc1 {L('have')}", SPINB])
    A.label(L("poll"))
    A.e([f"buffer_load_dwordx2 v[30:31], v29, s[48:51], s93 offen {WT}", "s_waitcnt vmcnt(0)",
         "s_sub_u32 s12, s12, 1", f"s_cbranch_scc1 {L('got')}",
         "v_cmp_ne_u64 vcc, s[98:99], v[30:31]", f"s_cbranch_vccz {L('got')}", "s_sleep 1", f"s_branch {L('poll')}"])
    A.label(L("got"))
    A.e(s2loads)
    A.label(L("have"))
    for jj in range(2):
        for i in range(4):
            o = YP(jj, i)
            A.e("s_waitcnt vmcnt(7)")
            for h in range(2):
                cb = 2 * i + h
                b = 32 + (cb * 4 + jj) * 4; y = YS(cb, jj); T0 = 8 + 4 * h
                A.e([f"v_lshlrev_b32 v{T0}, 16, v{o+2*h}", f"v_and_b32 v{T0+1}, 0xffff0000, v{o+2*h}",
                     f"v_lshlrev_b32 v{T0+2}, 16, v{o+2*h+1}", f"v_and_b32 v{T0+3}, 0xffff0000, v{o+2*h+1}"])
                A.e([f"v_pk_fma_f32 v[{b+r_}:{b+r_+1}], v[{T0+r_}:{T0+r_+1}], v[{y+r_}:{y+r_+1}], v[{b+r_}:{b+r_+1}]" for r_ in (0, 2)])
                A.e([f"v_cvt_pk_bf16_f32 v{o+2*h}, v{b}, v{b+1}", f"v_cvt_pk_bf16_f32 v{o+2*h+1}, v{b+2}, v{b+3}"])
            A.e(["s_nop 1", f"v_permlane32_swap_b32 v{o}, v{o+2}", f"v_permlane32_swap_b32 v{o+1}, v{o+3}", "s_nop 0",
                 f"v_permlane16_swap_b32 v{o}, v{o+2}", f"v_permlane16_swap_b32 v{o+1}, v{o+3}",
                 f"buffer_store_dwordx4 {v(o,4)}, v{27+jj}, s[68:71], s94 offen offset:{i*64}"])
    A.label(L("fin"))
    if stamps:
        srd(A, 40, P_WS, 0x100000, WS_STAMP)
        A.e(["s_waitcnt vmcnt(0)", "s_memtime s[76:77]", "s_memrealtime s[78:79]", "s_waitcnt lgkmcnt(0)",
             "v_mov_b32 v8, s76", "v_mov_b32 v9, s78", "v_mov_b32 v10, s72", "s_getreg_b32 s10, hwreg(HW_REG_XCC_ID)", "v_mov_b32 v11, s10",
             "s_lshl_b32 s10, s2, 2", "s_add_u32 s10, s10, s3", "s_lshl_b32 s10, s10, 7", "v_mov_b32 v1, s10", "s_mov_b64 exec, 1"])
        for k in range(4): A.e(f"buffer_store_dwordx4 a[{240+4*k}:{243+4*k}], v1, s[40:43], 0 offen offset:{16*k}")
        A.e("buffer_store_dwordx4 v[8:11], v1, s[40:43], 0 offen offset:64")
    if dbgst:
        srd(A, 40, P_DBG, 256)
        A.e(["s_and_b32 s10, s2, 0xfb", "s_or_b32 s10, s10, s3", "s_cmp_lg_u32 s10, 0", f"s_cbranch_scc1 {L('end')}", "s_mov_b64 exec, 1",
             "v_accvgpr_read_b32 v12, a241", "s_lshl_b32 s10, s2, 3", "v_mov_b32 v1, s10"])
        for k in range(1, 8): A.e([f"v_accvgpr_read_b32 v13, a{241+2*k}", f"v_sub_u32 v{15+k}, v13, v12"])
        A.e(["v_sub_u32 v23, v9, v12", "buffer_store_dwordx4 v[16:19], v1, s[40:43], 0 offen", "buffer_store_dwordx4 v[20:23], v1, s[40:43], 0 offen offset:16"])
    A.label(L("end"))
    A.e("s_endpgm")
    for tag, reg, addr, off in spins:
        A.label(L("spin" + tag))
        A.e(SPINB)
        A.label(L("spinl" + tag))
        A.e(["s_sleep 2", f"buffer_load_dwordx2 v[{reg}:{reg+1}], v{addr}, s[48:51], {off} offen {WT}", "s_waitcnt vmcnt(0)",
             "s_sub_u32 s12, s12, 1", f"s_cbranch_scc1 {L('ok' + tag)}",
             f"v_cmp_ne_u64 vcc, s[98:99], v[{reg}:{reg+1}]", f"s_cbranch_vccnz {L('spinl' + tag)}", f"s_branch {L('ok' + tag)}"])
    for T in rare_sites:
        A.label(L("rs%d" % T))
        A.e([f"s_call_b64 s[6:7], {L('rare%d' % (T & 1))}", f"s_branch {L('rb%d' % T)}"])
    for b in range(2):
        A.label(L("rare%d" % b))
        A.e(["s_nop 15", "s_nop 15"])
        for mu in range(2):
            S = SB(b, mu); S2 = SB(b ^ 1, mu)
            A.e(rowmax(S, VT, VT + 2))
            A.e([f"v_max_f32 v{VT}, 0, v{VT}", f"v_exp_f32 v{VT+1}, -v{VT}"])
            A.e([f"v_sub_f32 v{NM(mu)+k}, v{NM(mu)+k}, v{VT}" for k in range(16)])
            A.e([f"v_sub_f32 v{S+k}, v{S+k}, v{VT}" for k in range(16)])
            A.e([f"v_sub_f32 v{S2+k}, v{S2+k}, v{VT}" for k in range(16)])
            A.e(f"v_mul_f32 v{VL+mu}, v{VL+mu}, v{VT+1}")
            for i in range(4):
                o = (i * 2 + mu) * 16
                for k in range(16):
                    A.e([f"v_accvgpr_read_b32 v{VT+2}, a{o+k}", f"v_mul_f32 v{VT+2}, v{VT+2}, v{VT+1}", f"v_accvgpr_write_b32 a{o+k}, v{VT+2}"])
            for k in range(0, 16, 2):
                A.e([f"v_exp_f32 v{EB}, v{S+k}", f"v_exp_f32 v{EB+1}, v{S+k+1}", "s_nop 0",
                     f"v_cvt_pk_bf16_f32 v{PB(b,mu)+k//2}, v{EB}, v{EB+1}", f"v_add_f32 v{EB}, v{EB}, v{EB+1}",
                     f"v_mov_b32 v{VTS+mu}, v{EB}" if k == 0 else f"v_add_f32 v{VTS+mu}, v{VTS+mu}, v{EB}"])
        A.e(["s_nop 3", "s_setpc_b64 s[6:7]"])
    A.label(f"{name}_codeend")
    return (name, 512, 256, "(256,1,1)", "(256,1,1)", 163840)
```

```python
from common import *
import struct, math
QSCALE = struct.unpack("<I", struct.pack("<f", math.log2(math.e) / math.sqrt(128.0)))[0]
THR = 0x49800000
FL_L, FL_H, FL_O, FL_P, FL_SZ = 0x4000, 0x6000, 0x8000, 0xA000, 0xE000
G_BASE, G_SF, G_PF, G_SZ = 0x2200000, 0x600000, 0xA00000, 0x1200000
SS_UNUSED = 28
N1S, N1Y = 4, 3
WT = "sc0 sc1"
SPINB = "s_mov_b32 s12, 0x40000"

def kf(A, name="kf_kernel", stamps=0, thr=THR, vpos=(6, 10, 14, 18, 22, 26, 29, 30), barpos=3, apol=WT, pfT=0, pfG=0, cpf=3, ln=1, dbgst=0, pst=0, psleep=1, hwb=0, cap=24, dsl=6, vcap=8, ost=None, oflt=3, rotm=(1, 2), xpol=None, gdbg=0, pfs=7, pfA=2, rot0=1, vat=None, pft=3, tail=8, kmap=1, SS=None, hfT=2, barm=47, gsl=10, sp1=(2, 44), sp2=(54, 88), vmod=2, lead=0, nf=8, oft=14, oin=8, hdf=2, tlb=0, t16=1, mid1=1, fast=0, lset=1, xe=1, ew=1, sen=1):
    L = lambda s: f"{name}_{s}"
    if SS is None: SS = 32 if tail == 8 else 28
    if vat is None: vat = tail - 7
    pf0 = 4 if lset else 3
    if lset: hfT = max(hfT, 4)
    if ost is None: ost = (8, 8)[:2 - oin // 8]
    vq = Q("vmcnt", 63); dq = Q("lgkmcnt", 15, gsl)
    def stamp(i, pro=0):
        if not stamps: return
        if pst == 1:
            if pro == 0 and i == 1: i = 7
            elif not (pro == 1 or i == 0): return
        elif pst == 2:
            if pro == 0 and i == 5: i = 1
            elif pro == 0 and i == 6: i = 2
            elif not (pro == 2 or (pro == 0 and i in (0, 7))): return
        elif pst == 3:
            if pro or i != 1: return
            i = 0
        elif pro: return
        first = (i == 0 and pst != 3)
        A.e(["s_memtime s[76:77]", "s_memrealtime s[78:79]"] + (["s_load_dwordx2 s[38:39], s[0:1], 88", "v_lshrrev_b32 v1, 6, v0", "s_nop 0", "v_readfirstlane_b32 s3, v1"] if first else []) +
            ["s_waitcnt lgkmcnt(0)", "v_mov_b32 v30, s76", "v_mov_b32 v31, s78",
             "s_lshl_b32 s76, s2, 2", "s_add_u32 s76, s76, s3", "s_lshl_b32 s76, s76, 7", f"s_add_u32 s76, s76, {WS_STAMP:#x}", "v_mov_b32 v1, s76",
             "s_mov_b64 exec, 1", f"global_store_dwordx2 v1, v[30:31], s[38:39] offset:{8*i}", "s_mov_b64 exec, -1"]); dq.drain()
    A.raw(kernel_head(name))
    A.e(["s_cmp_ge_u32 s2, 256", f"s_cbranch_scc1 {L('end')}"])
    cpn = [0]
    def code_touch(vr, dst, raw=False):
        lab = L("pc%d" % cpn[0]); cpn[0] += 1
        pre = ["s_getpc_b64 s[76:77]", lab + ":", f"s_sub_u32 s76, s76, {lab}-{name}", "s_subb_u32 s77, s77, 0",
               "s_lshr_b32 s78, s2, 3", "s_lshl_b32 s78, s78, 11"] + ([f"v_and_b32 v{vr}, 0xc0, v0", f"v_lshlrev_b32 v{vr+1}, 3, v{vr}"] if raw else ["s_lshl_b32 s79, s3, 9", "s_add_u32 s78, s78, s79"]) + [
               f"v_and_b32 v{vr}, 7, v0", f"v_mul_u32_u24 v{vr}, 0x4080, v{vr}", f"v_and_b32 v{vr}, 0x10180, v{vr}"] + ([f"v_add_u32 v{vr}, v{vr+1}, v{vr}"] if raw else []) + [
               f"v_add_u32 v{vr}, s78, v{vr}", f"v_min_u32 v{vr}, {name}_codeend-{name}-4, v{vr}"]
        return (pre, f"global_load_dword {dst}, v{vr}, s[76:77]", ("C", 0), [])
    stamp(0)
    A.e(LOADARGS)
    if cpf:
        op = code_touch(30, "a238", raw=True); A.e(op[0]); A.e(op[1])
    A.e(["v_lshrrev_b32 v1, 6, v0", "v_and_b32 v0, 63, v0", "s_nop 0", "v_readfirstlane_b32 s3, v1",
         "s_and_b32 s10, s2, 7", "s_lshr_b32 s11, s2, 3", "s_and_b32 s4, s11, 7", "s_lshr_b32 s11, s11, 3",
         "s_lshl_b32 s5, s10, 2", "s_add_u32 s5, s5, s11",
         f"s_mul_i32 s14, s11, {rotm[1]}", f"s_mul_i32 s12, s4, {rotm[0]}", "s_add_u32 s14, s14, s12"])
    if ln:
        A.e(["v_and_b32 v40, 7, v0", "v_lshrrev_b32 v41, 3, v0", "s_lshl_b32 s12, s3, 5", "v_add_u32 v41, s12, v41",
             "v_lshlrev_b32 v42, 11, v40", "v_lshl_add_u32 v42, v41, 4, v42",
             "s_lshl_b32 s12, s4, 5", "s_add_u32 s91, s12, s5", "s_lshl_b32 s12, s91, 14",
             "s_waitcnt lgkmcnt(0)"])
        srd(A, 64, P_X, 2048 * 2048)
        for i in range(4):
            A.e(f"buffer_load_dwordx4 v[{48+4*i}:{51+4*i}], v42, s[64:67], s12 offen offset:{128*i}"); vq.issue(("L", 0))
        if tlb & 1:
            srd(A, 68, P_WS, 0x3000000)
            A.e(["v_lshlrev_b32 v39, 21, v0", "buffer_load_dword a237, v39, s[68:71], 0 offen"])
        srd(A, 60, P_DBG, 256)
        A.e(["v_mov_b32 v47, 0", "s_or_b32 s12, s2, s3", "s_cmp_lg_u32 s12, 0", f"s_cbranch_scc1 {L('nn')}",
             "s_memrealtime s[12:13]", "s_waitcnt lgkmcnt(0)", "s_or_b32 s12, s12, 1", "v_mov_b32 v38, s12", "v_mov_b32 v39, s13", "s_mov_b64 exec, 1",
             f"buffer_store_dwordx2 v[38:39], v47, s[60:63], 0 offen {WT}", "s_mov_b64 exec, -1"])
        A.label(L("nn"))
    A.e([
         "v_lshrrev_b32 v30, 4, v0", "v_and_b32 v31, 15, v0",
         "s_lshr_b32 s12, s3, 1", "s_lshl_b32 s12, s12, 1",
         "v_lshlrev_b32 v1, 2, v30", "v_or_b32 v1, s12, v1", "v_xor_b32 v31, v31, v1",
         "s_lshl_b32 s12, s3, 2", "v_add_u32 v30, s12, v30",
         "v_lshlrev_b32 v2, 13, v30", "s_lshl_b32 s12, s5, 8", "v_lshl_add_u32 v2, v31, 4, v2", "v_add_u32 v2, s12, v2",
         "v_lshrrev_b32 v1, 1, v31", "v_min_u32 v1, 6, v1", "s_and_b32 s13, s5, 1", "v_add_u32 v1, s13, v1",
         "v_cmp_eq_u32 vcc, 7, v1", "v_and_b32 v31, 1, v31", "s_nop 0", "v_cndmask_b32 v1, v1, 0, vcc",
         "v_lshl_or_b32 v1, v1, 1, v31",
         "v_mul_u32_u24 v3, 7168, v30", "s_mul_i32 s12, s5, 224", "v_add_u32 v3, s12, v3", "v_lshl_add_u32 v3, v1, 4, v3",
         "s_lshl_b32 s12, s4, 4", "s_lshl_b32 s13, s3, 2", "s_add_u32 s15, s12, s13",
         "s_lshl_b32 s12, s15, 15", "v_lshlrev_b32 v4, 4, v0", "v_add_u32 v5, s12, v4",
         "v_add_u32 v6, 0x8000, v5", "v_add_u32 v7, 0x10000, v5", "v_add_u32 v8, 0x18000, v5",
         "s_mul_i32 s10, s3, 3072", "s_add_u32 s10, s10, 65536", "s_mov_b32 s11, 0", "s_mov_b32 s75, 0",
         "s_waitcnt lgkmcnt(0)"])
    srd(A, 44, P_WQ, 1024 * 4096 * 2)
    srd(A, 48, P_WG, 1024 * 3584 * 2 + 1024, -1024)
    srd(A, 52, P_WU, 1024 * 3584 * 2 + 2048, -2048)
    srd(A, 40, P_WS, SZ_XF, WS_XF)

    def acc(blk, j):
        if blk < 14: return v(32 + (blk * 4 + j) * 4, 4)
        return a(((blk - 14) * 4 + j) * 4, 4)
    Afr = lambda blk, h=None: a(192 + (blk % 11) * 4, 4) if h is None else a(192 + (blk % 11) * 4 + 2 * h, 2)
    Bfr = lambda slot, j: a(128 + slot * 16 + j * 4, 4)
    if lead:
        NEXTK = ["s_sub_u32 s12, s11, s14", "s_and_b32 s12, s12, 7", f"s_cmp_lt_u32 s11, {32-lead}", "s_cselect_b32 s12, s12, 1",
                 f"s_add_u32 s13, s11, {lead}", "s_cmp_eq_u32 s12, 0", "s_cselect_b32 s12, s13, s75", "s_subb_u32 s75, s75, -1",
                 f"s_sub_u32 s13, s75, {lead}", "s_cselect_b32 s6, 1, 0", "s_sub_u32 s13, s13, s14", "s_and_b32 s13, s13, 7", "s_or_b32 s13, s13, s6",
                 "s_cmp_eq_u32 s13, 0", "s_addc_u32 s75, s75, 0",
                 "s_add_u32 s11, s11, 1", "s_lshl_b32 s6, s12, 18", "s_mul_i32 s7, s12, 229376", "s_lshl_b32 s8, s12, 10"]
    else:
        NEXTK = ([] if rot0 == 7 else ["s_cmp_lt_u32 s11, 8", f"s_cselect_b32 s13, {rot0}, 7", "s_and_b32 s13, s13, s14"]) + ["s_add_u32 s12, s11, s14" if rot0 == 7 else "s_add_u32 s12, s11, s13", "s_and_b32 s12, s12, 7", "s_and_b32 s13, s11, 0x18", "s_or_b32 s12, s12, s13",
                 "s_add_u32 s11, s11, 1", "s_lshl_b32 s6, s12, 18", "s_mul_i32 s7, s12, 229376", "s_lshl_b32 s8, s12, 10"]
    def d_ops(p, h):
        base = (p % 4) * 24576 + h * 12288
        return [((NEXTK if h == 0 else []) + [f"s_add_u32 m0, s10, {base}"], "buffer_load_dwordx4 v2, s[44:47], s6 offen lds", ("D", p, h), ["s_add_u32 s6, s6, 131072"] if h == 0 else []),
                ([], "buffer_load_dwordx4 v3, s[48:51], s7 offen offset:1024 lds", ("D", p, h), []),
                ([], "buffer_load_dwordx4 v3, s[52:55], s7 offen offset:2048 lds", ("D", p, h), ["s_add_u32 s7, s7, 114688"] if h == 0 else [])]
    def x_ops(p):
        return [([], f"buffer_load_dwordx4 {Bfr(p % 4, j)}, v{5+j}, s[40:43], s8 offen {apol if xpol is None else xpol}", ("X", p), []) for j in range(4)]
    def rd_ops(t, blk):
        part, cb = (1 + (blk & 1), blk >> 1) if blk < 14 else (0, blk - 14)
        slot = t % 4
        reg = (9 if slot < 2 else 17) + cb
        off = (slot % 2) * 24576 + part * 1024
        return [(f"ds_read_b64_tr_b16 {Afr(blk,0)}, v{reg} offset:{off}", ("A", t, blk)),
                (f"ds_read_b64_tr_b16 {Afr(blk,1)}, v{reg} offset:{off+3072}", ("A", t, blk))]
    def emit_vm(op, E, nop=False):
        pre, ins, tag, post = op
        E(pre)
        if pre and nop: E("s_nop 0")
        E(ins); vq.issue(tag); E(post)
    def kv_ops(kind, P):
        reg = 0 if kind == "K" else 65536
        sr = "s[64:67]" if kind == "K" else "s[68:71]"
        ops = []
        for i in range(4):
            ops.append(([f"s_add_u32 m0, s92, {reg + (P % 4) * 16384}", f"s_add_u32 s94, s93, {P * 16384}"] if i == 0 else [],
                        f"buffer_load_dwordx4 v{25+i if kind == 'K' else 29}, {sr}, s94 offen offset:{i*1024} lds", (kind, P), []))
        return ops
    def pf_op(k):
        return [([], f"buffer_load_dword a239, v31, {'s[72:75], s96' if k == 0 else 's[80:83], s97'} offen", ("P", 0), [f"s_add_u32 s{96+k}, s{96+k}, 1024"])]
    for op in d_ops(0, 0) + d_ops(0, 1): emit_vm(op, A.e, True)
    A.e("s_mov_b32 s88, s8")
    srd(A, 84, P_WS, FL_SZ, WS_FLAG)
    A.e(["s_lshr_b32 s12, s91, 1", "s_lshl_b32 s12, s12, 15", "s_and_b32 s13, s91, 1", "s_lshl_b32 s13, s13, 7", "s_add_u32 s90, s12, s13",
         "v_lshlrev_b32 v43, 8, v41", "v_lshl_add_u32 v43, v40, 4, v43",
         "v_lshlrev_b32 v44, 5, v40", "s_lshl_b32 s12, s3, 3", "v_add_u32 v45, s12, v44",
         "s_lshl_b32 s91, s91, 5", f"s_add_u32 s91, s91, {FL_L}"])
    A.e([f"v_mov_b32 v{i}, 0" for i in range(132, 144)])
    A.e(f"buffer_load_dwordx2 v[128:129], v47, s[60:63], 0 offen {WT}"); vq.issue(("N", 0))
    A.e([mfma32(a(i, 16), v(132, 4), v(132, 4), "0") for i in range(0, 128, 16)] + [mfma32(v(i, 16), v(132, 4), v(132, 4), "0") for i in range(144, 256, 16)])
    stamp(1, 1)
    A.e(vq.need(("L", 0)))
    stamp(2, 1)
    X0 = 64
    for i in range(16):
        A.e([f"v_lshlrev_b32 v{X0+2*i}, 16, v{48+i}", f"v_and_b32 v{X0+1+2*i}, 0xffff0000, v{48+i}"])
    def lanesum(src):
        A.e(["s_nop 1", f"v_add_f32_dpp v{src}, v{src}, v{src} row_ror:8 row_mask:0xf bank_mask:0xf",
             f"v_mov_b32 v46, v{src}", "s_nop 1", f"v_permlane16_swap_b32 v46, v{src}", f"v_add_f32 v{src}, v46, v{src}",
             f"v_mov_b32 v46, v{src}", "s_nop 1", f"v_permlane32_swap_b32 v46, v{src}", f"v_add_f32 v{src}, v46, v{src}"])
    A.e([f"v_pk_add_f32 v[32:33], v[{X0}:{X0+1}], v[{X0+2}:{X0+3}]", f"v_pk_add_f32 v[34:35], v[{X0+4}:{X0+5}], v[{X0+6}:{X0+7}]"])
    A.e([f"v_pk_add_f32 v[{32+2*(i%2)}:{33+2*(i%2)}], v[{32+2*(i%2)}:{33+2*(i%2)}], v[{X0+2*i}:{X0+2*i+1}]" for i in range(4, 16)])
    A.e(["v_pk_add_f32 v[32:33], v[32:33], v[34:35]", "v_add_f32 v32, v32, v33"])
    lanesum(32)
    A.e(["v_mul_f32 v32, 0x3b800000, v32", "v_mov_b32 v34, v32", "v_mov_b32 v35, v32"])
    for i in range(16):
        A.e(f"v_pk_add_f32 v[{96+2*i}:{97+2*i}], v[{X0+2*i}:{X0+2*i+1}], v[34:35] neg_lo:[0,1] neg_hi:[0,1]")
    A.e(["v_pk_mul_f32 v[34:35], v[96:97], v[96:97]", "v_pk_mul_f32 v[36:37], v[98:99], v[98:99]"])
    for i in range(2, 16):
        r_ = 34 + 2 * (i % 2)
        A.e(f"v_pk_fma_f32 v[{r_}:{r_+1}], v[{96+2*i}:{97+2*i}], v[{96+2*i}:{97+2*i}], v[{r_}:{r_+1}]")
    A.e(["v_pk_add_f32 v[34:35], v[34:35], v[36:37]", "v_add_f32 v33, v34, v35"])
    lanesum(33)
    A.e(["ds_write_b64 v45, v[32:33]", "s_waitcnt lgkmcnt(0)", "s_barrier",
         "ds_read_b128 v[96:99], v44", "ds_read_b128 v[100:103], v44 offset:16", "s_waitcnt lgkmcnt(0)",
         "v_add_f32 v32, v96, v98", "v_add_f32 v33, v100, v102", "v_add_f32 v34, v97, v99", "v_add_f32 v35, v101, v103",
         "v_add_f32 v32, v32, v33", "v_add_f32 v34, v34, v35", "v_mul_f32 v32, 0.25, v32" if False else "v_mul_f32 v32, 0x3e800000, v32",
         "v_sub_f32 v96, v96, v32", "v_sub_f32 v98, v98, v32", "v_sub_f32 v100, v100, v32", "v_sub_f32 v102, v102, v32",
         "v_mul_f32 v35, v96, v96", "v_fmac_f32 v35, v98, v98", "v_fmac_f32 v35, v100, v100", "v_fmac_f32 v35, v102, v102",
         "v_mul_f32 v34, 0x3a800000, v34", "v_fmac_f32 v34, 0x3e800000, v35"])
    A.e(["v_cvt_pk_bf16_f32 v34, v34, v32", "v_and_b32 v32, 0xffff0000, v34", "v_lshlrev_b32 v34, 16, v34",
         "v_add_f32 v34, 0x3727c5ac, v34", "v_cvt_pk_bf16_f32 v34, v34, v34", "v_lshlrev_b32 v34, 16, v34",
         "v_sqrt_f32 v34, v34", "v_mov_b32 v33, v32", "v_cvt_pk_bf16_f32 v34, v34, v34", "v_lshlrev_b32 v34, 16, v34",
         "v_rcp_f32 v34, v34", "s_nop 0", "v_mov_b32 v35, v34"])
    for q4 in range(4):
        for i in range(4 * q4, 4 * q4 + 4):
            x = X0 + 2 * i
            A.e([f"v_pk_add_f32 v[{x}:{x+1}], v[{x}:{x+1}], v[32:33] neg_lo:[0,1] neg_hi:[0,1]",
                 f"v_cvt_pk_bf16_f32 v{48+i}, v{x}, v{x+1}",
                 f"v_lshlrev_b32 v{x}, 16, v{48+i}", f"v_and_b32 v{x+1}, 0xffff0000, v{48+i}",
                 f"v_pk_mul_f32 v[{x}:{x+1}], v[{x}:{x+1}], v[34:35]",
                 f"v_cvt_pk_bf16_f32 v{48+i}, v{x}, v{x+1}"])
        A.e(f"buffer_store_dwordx4 v[{48+4*q4}:{51+4*q4}], v43, s[40:43], s90 offen offset:{2048*(q4%2)} {WT}"); vq.issue(("S", 0))
        if q4 == 1: A.e("s_add_u32 s90, s90, 4096")
    stamp(3, 1)
    A.e(vq.need(("N", 0)))
    A.e(SPINB)
    A.label(L("pollN"))
    A.e(["v_readfirstlane_b32 s98, v128", "v_readfirstlane_b32 s99, v129", "s_cmp_lg_u32 s98, 0", f"s_cbranch_scc1 {L('gotN')}",
         "s_sub_u32 s12, s12, 1", f"s_cbranch_scc1 {L('gotN')}",
         f"buffer_load_dwordx2 v[128:129], v47, s[60:63], 0 offen {WT}", "s_waitcnt vmcnt(0)", f"s_branch {L('pollN')}"])
    A.label(L("gotN"))
    A.e([mfma32(v(i, 16), v(132, 4), v(132, 4), "0") for i in range(64, 128, 16)])
    A.e(vq.drain()); A.e("s_barrier")
    stamp(4, 1)
    A.e(["s_cmp_lg_u32 s3, 0", f"s_cbranch_scc1 {L('nf')}", "s_mov_b64 exec, 1",
         f"buffer_store_dwordx2 v[128:129], v47, s[84:87], s91 offen {WT}", "s_mov_b64 exec, -1"])
    A.label(L("nf"))
    for op in d_ops(1, 0) + d_ops(1, 1): emit_vm(op, A.e, True)
    A.e("s_mov_b32 s89, s8")
    for op in d_ops(2, 0) + d_ops(2, 1): emit_vm(op, A.e, True)
    A.e("s_mov_b32 s90, s8")
    if tlb & 2:
        srd(A, 68, P_OUT, 2048 * 2048)
        A.e(["v_lshlrev_b32 v1, 21, v0"] + [f"buffer_load_dword a237, v1, s[{r}:{r+3}], 0 offen offset:2048" for r in (44, 48, 52, 68)])
    A.e([mfma32(v(i, 16), v(132, 4), v(132, 4), "0") for i in (32, 48)])
    A.e(["v_lshrrev_b32 v1, 4, v0", "v_mul_u32_u24 v30, 6144, v1", "v_and_b32 v1, 1, v1",
         "v_bfe_u32 v31, v0, 2, 2", "v_lshl_add_u32 v30, v31, 8, v30", "v_lshl_or_b32 v31, v31, 1, v1",
         "v_and_b32 v1, 3, v0", "v_lshl_add_u32 v30, v1, 3, v30", "v_add_u32 v30, 0x10000, v30"])
    for cb in range(8):
        A.e([f"v_xor_b32 v1, {cb}, v31", f"v_lshl_add_u32 v{9+cb}, v1, 5, v30", f"v_add_u32 v{17+cb}, 49152, v{9+cb}"])
    for blk in range(11):
        for ins, tg in rd_ops(0, blk): A.e(ins); dq.issue(tg)
    srd(A, 64, P_K, 4 * 2048 * 256)
    srd(A, 68, P_V, 4 * 2048 * 256)
    srd(A, 56, P_WS, SZ_HF, WS_HF)
    srd(A, 60, P_WS, (G_BASE + G_SF + 0x400000 - WS_OF) if sen else SZ_OF, WS_OF)
    A.e(["v_lshrrev_b32 v30, 4, v0", "v_and_b32 v31, 15, v0", "v_xor_b32 v1, v31, v30"])
    for i in range(4):
        A.e([f"v_xor_b32 v{25+i}, {4*i}, v1", f"v_lshlrev_b32 v{25+i}, 4, v{25+i}", f"v_lshl_add_u32 v{25+i}, v30, 8, v{25+i}"])
    A.e(["v_lshlrev_b32 v1, 2, v30", "v_xor_b32 v1, v31, v1", "v_lshlrev_b32 v1, 4, v1", "v_lshl_add_u32 v29, v30, 8, v1",
         "s_lshr_b32 s12, s5, 3", "s_lshl_b32 s12, s12, 19", "s_lshl_b32 s92, s3, 12",
         "s_add_u32 s93, s12, s92", f"s_add_u32 s93, s93, {1536*256}",
         "s_mov_b32 s9, 7"])
    if pfG in (1, 2):
        srd(A, 72, P_WO, 4096 * 2048); srd(A, 80, P_WD, 3584 * 2048)
        A.e(["s_lshl_b32 s12, s2, 2", "s_add_u32 s12, s12, s3", "s_lshl_b32 s96, s12, 13", "s_mul_i32 s97, s12, 7168",
             f"v_and_b32 v31, {7 if pfs == 7 else 3}, v0", f"v_lshlrev_b32 v31, {pfs}, v31"])
    stamp(5, 1)
    A.e(["s_cmp_lg_u32 s3, 0", f"s_cbranch_scc1 {L('gotL')}",
         "v_and_b32 v1, 31, v0", "v_lshlrev_b32 v1, 5, v1", "s_lshl_b32 s95, s4, 10", f"s_add_u32 s95, s95, {FL_L}", SPINB])
    A.label(L("pollL"))
    A.e([f"buffer_load_dwordx2 v[128:129], v1, s[84:87], s95 offen {WT}", "s_waitcnt vmcnt(0)",
         "s_sub_u32 s12, s12, 1", f"s_cbranch_scc1 {L('gotL')}",
         "v_cmp_ne_u64 vcc, s[98:99], v[128:129]", f"s_cbranch_vccz {L('gotL')}", f"s_sleep {psleep}", f"s_branch {L('pollL')}"])
    A.label(L("gotL"))
    A.e("s_barrier")
    stamp(6, 1)
    for p_, sr in ((0, "s88"), (1, "s89"), (2, "s90")):
        for op in x_ops(p_): A.e(op[1].replace("s8 offen", f"{sr} offen")); vq.issue(op[2])
    for op in d_ops(3, 0): emit_vm(op, A.e, True)
    A.e([f"v_mov_b32 v{i}, 0" for i in (128, 129, 130, 131)])
    A.e(vq.need(("X", 2)))
    stamp(1)

    BARM = barm
    def step(t, E, first_ops=None, second_ops=None, last=False):
        v1 = d_ops(t + 3, 1) + x_ops(t + 3) if first_ops is None else first_ops
        v2_ = d_ops(t + 4, 0) if second_ops is None else second_ops
        if pfG == 1 and second_ops is None and t % 2 == 0: v2_ = v2_ + pf_op((t // 2) % 2)
        if pfG == 2 and second_ops is None and t == 0: v2_ = v2_ + pf_op(0)
        if gdbg & 1: v1 = [o for o in v1 if o[2][0] != "X"]
        if gdbg & 2:
            v1 = [o for o in v1 if o[2][0] != "D"]; v2_ = [o for o in v2_ if o[2][0] != "D"]
        def spread(n, lo, hi):
            c = [m for m in range(lo, hi) if m % 4 == vmod]
            if n == 0: return []
            return [c[(i * len(c)) // n] for i in range(n)]
        sched = list(zip(spread(len(v1), *sp1), v1)) + list(zip(spread(len(v2_), max(sp2[0], BARM + 3), sp2[1]), v2_))
        pend = []; post = []; pre = list(sched[0][1][0]) if sched else []; vi = 0
        for m in range(88):
            blk, j = m // 4, m % 4
            if m == 0: E(vq.need(("X", t)))
            if j == 0: E(dq.need(("A", t, blk)))
            E(mfma16(acc(blk, j), Afr(blk), Bfr(t % 4, j)))
            if m == BARM:
                E(vq.need(("D", t + 1, 1))); E(dq.drain()); E("s_barrier")
            if j == 3:
                if blk < 11: pend += rd_ops(t, blk + 11)
                elif not last: pend += rd_ops(t + 1, blk - 11)
            if vi < len(sched) and m == sched[vi][0]:
                assert not pre, (t, m, pre)
                op = sched[vi][1]
                E(op[1]); vq.issue(op[2]); post += op[3]; vi += 1
                if vi < len(sched): pre = list(sched[vi][1][0])
            else:
                used = 0
                while pend and used < (2 if len(pend) > 2 else 1) and not (pend[0][1][1] > t and m < BARM):
                    ins, tag = pend.pop(0); E(ins); dq.issue(tag); used += 1
                while post and used < 2: E(post.pop(0)); used += 1
                while pre and used < 2 and not post and not (sched[vi][0] > BARM and m < BARM - 8): E(pre.pop(0)); used += 1
        for ins, tag in pend: E(ins); dq.issue(tag)
        E(post)
    for t in range(4): step(t, lambda x: None)
    vq.rebase(4); dq.rebase(4)
    A.raw(".p2align 6")
    A.label(L("loop"))
    for t in range(4): step(t, A.e)
    if pst == 3:
        A.e(["s_memtime s[76:77]", "s_memrealtime s[78:79]", "s_waitcnt lgkmcnt(0)", "v_cmp_eq_u32 vcc, s9, v0", "v_mov_b32 v1, s76", "s_nop 0", "v_cndmask_b32 v31, v31, v1, vcc", "v_mov_b32 v1, s78", "v_cndmask_b32 v30, v30, v1, vcc"])
    A.e(["s_sub_u32 s9, s9, 1", "s_cmp_lg_u32 s9, 0", f"s_cbranch_scc1 {L('loop')}"])
    if pst == 3:
        for k in range(1, 8):
            A.e([f"v_readlane_b32 s76, v31, {8-k}", f"v_readlane_b32 s78, v30, {8-k}", "s_nop 1", "v_mov_b32 v1, s76", f"v_accvgpr_write_b32 a{240+2*k}, v1", "v_mov_b32 v1, s78", f"v_accvgpr_write_b32 a{241+2*k}, v1"])
    vq.rebase(4); dq.rebase(4)
    if cpf >= 2: emit_vm(code_touch(30, "a238"), A.e)
    step(0, A.e, None, kv_ops("K", 0) + kv_ops("K", 1))
    step(1, A.e, kv_ops("K", 2) + kv_ops("K", 3), kv_ops("V", 0) + kv_ops("V", 1))
    step(2, A.e, kv_ops("V", 2), kv_ops("V", 3) + (pf_op(0) if pfG in (1, 2) else []))
    step(3, A.e, [], [], last=True)
    stamp(2)

    HP = "" if hwb else WT
    A.e(["s_mul_i32 s6, s15, 114688", "s_mul_i32 s12, s5, 7", "s_add_u32 s12, s12, 1", "s_lshr_b32 s12, s12, 1", "s_lshl_b32 s12, s12, 10",
         "s_add_u32 s6, s6, s12",
         "s_and_b32 s13, s5, 1", "s_cmp_eq_u32 s13, 0", "s_mov_b32 s13, 0xfffffc08", "s_cselect_b32 s13, 0xc00, s13",
         "s_add_u32 s7, s6, s13",
         "s_mov_b32 s8, 0xbfb8aa3b", "s_mov_b32 s9, 0xbfb8aa3b"])
    def hblock(b, j, dst):
        g = 32 + ((2 * b) * 4 + j) * 4; u = g + 16
        out = []
        out += [f"v_pk_mul_f32 v[{g+r_}:{g+r_+1}], v[{g+r_}:{g+r_+1}], s[8:9]" for r_ in (0, 2)]
        out += [f"v_exp_f32 v{g+r_}, v{g+r_}" for r_ in range(4)]
        out += [f"v_pk_add_f32 v[{g+r_}:{g+r_+1}], v[{g+r_}:{g+r_+1}], 1.0 op_sel_hi:[1,0]" for r_ in (0, 2)]
        out += [f"v_rcp_f32 v{g+r_}, v{g+r_}" for r_ in range(4)]
        out += [f"v_pk_mul_f32 v[{g+r_}:{g+r_+1}], v[{g+r_}:{g+r_+1}], v[{u+r_}:{u+r_+1}]" for r_ in (0, 2)]
        out += [f"v_cvt_pk_bf16_f32 v{dst}, v{g}, v{g+1}", f"v_cvt_pk_bf16_f32 v{dst+1}, v{g+2}, v{g+3}"]
        return out
    for i in range(2):
        for j in range(4):
            dst = 32 + ((4 * i + 1) * 4 + j) * 4
            A.e(hblock(2 * i, j, dst)); A.e(hblock(2 * i + 1, j, dst + 2))
            A.e([f"s_add_u32 s13, s6, {j*114688}", f"buffer_store_dwordx4 {v(dst,4)}, v4, s[56:59], s13 offen offset:{i*1024} {HP}"]); vq.issue(("H", 0))
    hrest = []; hdef = []
    if not hdf:
        for j in range(4):
            dst = 32 + (9 * 4 + j) * 4
            A.e(hblock(4, j, dst) + hblock(5, j, dst + 2) + [f"s_add_u32 s13, s6, {j*114688}", f"buffer_store_dwordx4 {v(dst,4)}, v4, s[56:59], s13 offen offset:2048 {HP}"]); vq.issue(("H", 0))
            dst = 32 + (13 * 4 + j) * 4
            A.e(hblock(6, j, dst) + [f"s_add_u32 s13, s7, {j*114688}", f"buffer_store_dwordx2 {v(dst,2)}, v4, s[56:59], s13 offen {HP}"]); vq.issue(("H", 0))
    for j in range(4 if hdf else 0):
        dst = 32 + (9 * 4 + j) * 4
        if hdf == 2:
            hrest += hblock(4, j, dst) + hblock(5, j, dst + 2) + [f"s_add_u32 s13, s6, {j*114688}", f"buffer_store_dwordx4 {v(dst,4)}, v4, s[56:59], s13 offen offset:2048 {HP}"]
            continue
        hrest += hblock(4, j, dst) + hblock(5, j, dst + 2) + [f"v_accvgpr_write_b32 a{192+4*j+k}, v{dst+k}" for k in range(4)]
        hdef.append(([f"s_add_u32 s90, s14, {j*114688}"], f"buffer_store_dwordx4 {a(192+4*j,4)}, v4, s[56:59], s90 offen offset:2048 {HP}", ("H", 0), []))
    for j in range(4 if hdf else 0):
        dst = 32 + (13 * 4 + j) * 4
        if hdf == 2:
            hrest += hblock(6, j, dst) + [f"s_add_u32 s13, s7, {j*114688}", f"buffer_store_dwordx2 {v(dst,2)}, v4, s[56:59], s13 offen {HP}"]
            continue
        hrest += hblock(6, j, dst) + [f"v_accvgpr_write_b32 a{208+2*j+k}, v{dst+k}" for k in range(2)]
        hdef.append(([f"s_add_u32 s90, s4, {j*114688}"], f"buffer_store_dwordx2 {a(208+2*j,2)}, v4, s[56:59], s90 offen {HP}", ("H", 0), []))
    QF = lambda mu, t: 32 + (mu * 8 + t) * 4
    SB = lambda b, mu: 96 + (b * 2 + mu) * 16
    NM = lambda mu: 160 + mu * 16
    PB = lambda b, mu: 192 + (b * 2 + mu) * 8
    EB = 224; VL = 232; VTS = 234; VT = 236
    A.e([f"s_mov_b32 s12, {QSCALE:#x}", f"s_mov_b32 s13, {QSCALE:#x}", f"s_mov_b32 s95, {thr:#x}"])
    for t in range(8):
        for mu in range(2):
            tmp = 96 + ((t * 2 + mu) % 4) * 8
            for x in range(2):
                src = (t * 4 + 2 * mu + x) * 4
                A.e([f"v_accvgpr_read_b32 v{tmp+4*x+r_}, a{src+r_}" for r_ in range(4)])
            A.e([f"v_pk_mul_f32 v[{tmp+2*k}:{tmp+2*k+1}], v[{tmp+2*k}:{tmp+2*k+1}], s[12:13]" for k in range(4)])
            q = QF(mu, t)
            A.e([f"v_cvt_pk_bf16_f32 v{q+k}, v{tmp+2*k}, v{tmp+2*k+1}" for k in range(4)])
            if (t * 2 + mu) > 0:
                pq = QF(*prev)
                A.e([f"v_permlane16_swap_b32 v{pq}, v{pq+2}", f"v_permlane16_swap_b32 v{pq+1}, v{pq+3}"])
            prev = (mu, t)
    A.e(["v_and_b32 v30, 31, v0", "v_lshrrev_b32 v31, 5, v0", "v_and_b32 v1, 15, v0", "v_xor_b32 v1, v1, v31",
         "v_lshlrev_b32 v30, 8, v30"])
    pq = QF(*prev)
    A.e([f"v_permlane16_swap_b32 v{pq}, v{pq+2}", f"v_permlane16_swap_b32 v{pq+1}, v{pq+3}"])
    for t in range(8):
        A.e([f"v_xor_b32 v{9+t}, {2*t}, v1", f"v_lshl_add_u32 v{9+t}, v{9+t}, 4, v30"])
    A.e(["v_bfe_u32 v1, v0, 2, 2", "v_lshlrev_b32 v30, 10, v31", "v_lshl_add_u32 v30, v1, 8, v30",
         "v_bfe_u32 v22, v0, 4, 1", "v_lshl_add_u32 v30, v22, 5, v30", "v_and_b32 v23, 3, v0", "v_lshl_add_u32 v30, v23, 3, v30",
         "v_add_u32 v30, 0x10000, v30"])
    for i in range(4):
        A.e([f"v_xor_b32 v23, {i}, v1", f"v_lshl_add_u32 v{17+i}, v23, 6, v30"])
    A.e(["v_lshlrev_b32 v21, 17, v22", "v_lshl_add_u32 v21, v31, 8, v21", "v_and_b32 v1, 15, v0", "v_lshl_add_u32 v21, v1, 4, v21"])
    Kf = lambda t: a(128 + t * 4, 4)
    Vf = lambda i, tp, h=None: a(160 + (i * 2 + tp) * 4, 4) if h is None else a(160 + (i * 2 + tp) * 4 + 2 * h, 2)
    Oacc = lambda i, mu: a((i * 2 + mu) * 16, 16)
    def k_reads(T): return [(f"ds_read_b128 {Kf(t)}, v{9+t} offset:{(T % 8) * 8192}", ("K", T, t)) for t in range(8)]
    def v_reads(T):
        return [(f"ds_read_b64_tr_b16 {Vf(i,tp,h)}, v{17+i} offset:{(T % 8) * 8192 + tp * 4096 + h * 2048}", ("V", T, i, tp))
                for i in range(4) for tp in range(2) for h in range(2)]
    def qk(T, c0):
        return [(mfma32(v(SB(T & 1, mu), 16), Kf(t), v(QF(mu, t), 4), (c0(mu) if t == 0 else None)), ("K", T, t)) for t in range(8) for mu in range(2)]
    def pv(T):
        return [(mfma32(Oacc(i, mu), Vf(i, tp), v(PB(T & 1, mu) + 4 * tp, 4), ("0" if (T == 0 and tp == 0) else None)), ("V", T, i, tp))
                for i in range(4) for tp in range(2) for mu in range(2)]
    A.e(vq.need(("V", 3))); A.e("s_barrier")
    dq.slack = 15
    for ins, tag in k_reads(0): A.e(ins); dq.issue(tag)
    A.e(hrest[:12]); hrest = hrest[12:]
    for ins, tag in qk(0, lambda mu: "0"):
        A.e(dq.need(tag, 4)); A.e(ins); A.e(hrest[:4]); hrest = hrest[4:]
    for ins, tag in k_reads(1): A.e(ins); dq.issue(tag)
    A.e(hrest)
    if hdf == 2:
        for _ in range(8): vq.issue(("H", 0))
    B = Asm()
    B.e((["s_and_b32 s12, s2, 7", "s_lshr_b32 s72, s12, 2", "s_and_b32 s13, s12, 1", "s_lshl_b32 s73, s4, 1", "s_add_u32 s73, s73, s13",
         "s_bfe_u32 s13, s12, 0x10001"] if kmap == 0 else
        ["s_and_b32 s72, s2, 1", "s_bfe_u32 s13, s2, 0x10001", "s_lshl_b32 s73, s4, 1", "s_add_u32 s73, s73, s13",
         "s_bfe_u32 s13, s2, 0x10002"]) + ["s_lshl_b32 s13, s13, 2", "s_lshr_b32 s74, s2, 6", "s_add_u32 s74, s74, s13",
         "s_lshr_b32 s12, s3, 1", "s_and_b32 s13, s3, 1",
         "s_cmp_eq_u32 s72, 0",
         f"s_cselect_b32 s8, {8*N1S}, {8*N1Y}", f"s_cselect_b32 s9, 0, {16*N1S}", "s_mul_i32 s8, s8, s12", "s_add_u32 s8, s8, s9",
         "s_cmp_eq_u32 s72, 0",
         f"s_cselect_b32 s75, {SS}, {64-SS}", f"s_cselect_b32 s96, 0, {2*SS}", "s_mul_i32 s75, s75, s12", "s_add_u32 s75, s75, s96",
         "s_lshl_b32 s9, s8, 10", "s_lshl_b32 s8, s8, 16",
         "s_lshl_b32 s96, s75, 10", "s_lshl_b32 s75, s75, 16",
         "s_lshl_b32 s13, s13, 12",
         "s_lshl_b32 s10, s12, 17", "s_add_u32 s10, s10, s13",
         "s_lshl_b32 s11, s12, 16", "s_add_u32 s11, s11, 0x8000", "s_add_u32 s11, s11, s13",
         "v_lshrrev_b32 v30, 4, v0", "v_and_b32 v31, 15, v0", "v_lshlrev_b32 v1, 2, v30", "v_xor_b32 v31, v31, v1",
         "s_lshl_b32 s13, s13, 3", "s_lshl_b32 s97, s74, 8", "s_add_u32 s97, s97, s13",
         "v_lshlrev_b32 v30, 11, v30", "v_add_u32 v30, s97, v30",
         "v_lshl_add_u32 v246, v31, 4, v30", "v_xor_b32 v31, 2, v31", "v_lshl_add_u32 v247, v31, 4, v30", "v_add_u32 v247, 7168, v247",
         "v_add_u32 v248, 14336, v246", "v_add_u32 v249, 14336, v247", "v_mov_b32 v250, s98", "v_mov_b32 v251, s99", "v_mov_b32 v252, 0",
         "s_lshl_b32 s97, s73, 3", "s_and_b32 s13, s3, 1", "s_lshl_b32 s13, s13, 2", "s_add_u32 s97, s97, s13", "s_lshl_b32 s12, s12, 1"])
    for jj in range(4):
        B.e([f"s_xor_b32 s13, s12, {jj}", "s_add_u32 s13, s13, s97", "s_mul_i32 s90, s13, 114688", f"v_add_u32 v{5+jj}, s90, v4",
             "s_lshl_b32 s90, s13, 17", f"v_add_u32 v{242+jj}, s90, v4"])
    B.e(["v_lshlrev_b32 v24, 5, v0", "v_and_b32 v24, 0x3e0, v24",
         "s_lshl_b32 s12, s4, 10", f"s_add_u32 s91, s12, {FL_H}", f"s_add_u32 s97, s12, {FL_O}",
         "s_lshl_b32 s13, s5, 5", "s_add_u32 s88, s91, s13", "s_add_u32 s89, s97, s13"])
    srd(B, 48, P_WS, FL_SZ, WS_FLAG)
    srd(B, 44, P_WD, 3584 * 2048)
    srd(B, 40, P_WS, SZ_HF, WS_HF)
    for i in range(8):
        B.e([f"s_add_u32 s13, s14, {i}", "s_and_b32 s13, s13, 7", f"s_lshl_b32 s{80+i}, s13, 10"])
    if xe:
        srd(B, 56, P_X, 2048 * 2048)
        B.e(["s_lshl_b32 s90, s73, 7", "s_and_b32 s12, s3, 1", "s_lshl_b32 s12, s12, 6", "s_add_u32 s90, s90, s12",
             "s_lshr_b32 s12, s3, 1", "s_lshl_b32 s12, s12, 5", "s_add_u32 s90, s90, s12",
             "s_lshl_b32 s90, s90, 11", "s_lshl_b32 s12, s74, 8", "s_add_u32 s90, s90, s12",
             "s_lshl_b32 s4, s3, 13", "s_add_u32 s4, s4, 0x20000", "s_add_u32 s14, s90, 0x8000",
             "v_lshrrev_b32 v30, 4, v0", "v_and_b32 v1, 15, v0", "v_xor_b32 v1, v1, v30", "v_lshlrev_b32 v30, 11, v30"])
        for i, r_ in ((1, 253), (2, 254), (3, 255), (0, 1)):
            B.e([f"v_xor_b32 v{r_}, {4*i}, v1", f"v_lshl_add_u32 v{r_}, v{r_}, 4, v30"] + ([f"v_add_u32 v{r_}, {7168*i}, v{r_}"] if i else []))
    late = []
    for l_ in [x.strip() for x in B.lines]:
        if l_.startswith(("s_cselect", "s_addc", "s_subb")): late[-1] = (late[-1][0] + [l_], late[-1][1] + 4)
        else: late.append(([l_], 4))
    if not lset:
        for x, c in late: A.e(x)
        late = []
    WV = 246
    def w_ops(t, half=False):
        slot = t % 8
        ops = []
        rot_ = [f"s_and_b32 s12, s{80+slot}, 0xc00", "s_lshl_b32 s12, s12, 6"] if half else [f"s_lshl_b32 s12, s{80+slot}, 6"]
        for i in range(4):
            ops.append(([f"s_add_u32 m0, s{10 if slot < 4 else 11}, {(slot%4)*8192}"] + rot_ + ["s_add_u32 s12, s12, s8"] if i == 0 else [],
                        f"buffer_load_dwordx4 v{WV+i}, s[44:47], s12 offen offset:{i*1024} lds", ("W", t),
                        ["s_add_u32 s8, s8, 0x80000"] if (i == 3 and slot == 7) else []))
        return ops
    BR = [192, 208, 0, 16, 32, 48, 64, 80] if xe else [192, 208, 224, 0, 16, 32, 48, 64]
    facc = lambda cb, jj: v(32 + (cb * 4 + jj) * 4, 4)
    FA = lambda cb, h=None: a(128 + cb * 4, 4) if h is None else a(128 + cb * 4 + 2 * h, 2)
    FB = lambda slot, jj: a(BR[slot] + jj * 4, 4)
    def a_ops(t, half=False):
        slot = t % 8
        return [(([f"s_and_b32 s13, s{80+slot}, 0xc00", "s_add_u32 s13, s13, s9"] if half else [f"s_add_u32 s13, s{80+slot}, s9"]) if jj == 0 else [],
                 f"buffer_load_dwordx4 {FB(slot,jj)}, v{5+jj}, s[40:43], s13 offen {apol}", ("X", t),
                 ["s_add_u32 s9, s9, 0x2000"] if (jj == 3 and slot == 7) else []) for jj in range(4)]
    spins = []
    def check_flags(tag, reg, addr, off):
        A.e([f"v_cmp_ne_u64 vcc, s[98:99], v[{reg}:{reg+1}]", f"s_cbranch_vccnz {L('spin' + tag)}"])
        A.label(L("ok" + tag))
        spins.append((tag, reg, addr, off))

    if hdf == 1: A.e(["s_mov_b32 s14, s6", "s_mov_b32 s4, s7"]); assert not lset
    A.e(["v_mov_b32 v232, 0", "v_mov_b32 v233, 0"] + (["s_nop 2"] if (lset and not hdf) else []))
    def rowmax(S, dst, tmp):
        out = [f"v_max3_f32 v{dst}, v{S}, v{S+1}, v{S+2}"]
        for k in range(3, 15, 2): out.append(f"v_max3_f32 v{dst}, v{dst}, v{S+k}, v{S+k+1}")
        out += [f"v_max_f32 v{dst}, v{dst}, v{S+15}", f"v_mov_b32 v{tmp}, v{dst}", "s_nop 1",
                f"v_permlane32_swap_b32 v{tmp}, v{dst}", f"v_max_f32 v{dst}, v{dst}, v{tmp}"]
        return out
    for mu in range(2):
        A.e(rowmax(SB(0, mu), VT + mu, VT + 2))
        A.e([f"v_sub_f32 v{NM(mu)+k}, 0, v{VT+mu}" for k in range(16)])
        A.e([f"v_sub_f32 v{SB(0,mu)+k}, v{SB(0,mu)+k}, v{VT+mu}" for k in range(16)])
    def sm(T):
        b = T & 1
        out = []
        def ex(n): return (f"v_exp_f32 v{EB + n % 8}, v{SB(b, n // 16) + n % 16}", 8)
        def fin(n):
            mu, r_ = n // 16, n % 16; e = EB + n % 8; o = []
            if r_ == 1: o.append((f"v_add_f32 v{VTS+mu}, v{EB + (n-1) % 8}, v{e}", 4))
            elif r_ > 1: o.append((f"v_add_f32 v{VTS+mu}, v{VTS+mu}, v{e}", 4))
            if r_ % 2 == 1: o.append((f"v_cvt_pk_bf16_f32 v{PB(b,mu) + r_//2}, v{EB + (n-1) % 8}, v{e}", 5))
            return o
        out.append(ex(0)); out.append(ex(1))
        for n in range(2, 32):
            out.append(ex(n)); out += fin(n - 2)
        out += fin(30) + fin(31)
        out += [(f"v_max_f32 v{VT}, v{VTS}, v{VTS+1}", 4), (f"v_cmp_nge_f32 vcc, s95, v{VT}", 4)]
        return out
    stamp(3)
    def flag_store(off_sreg):
        lab = L("fl%d" % A.nlabel); A.nlabel += 1
        A.e(["s_cmp_lg_u32 s3, 0", f"s_cbranch_scc1 {lab}", "s_mov_b64 exec, 1",
             f"buffer_store_dwordx2 v[250:251], v252, s[48:51], {off_sreg} offen {WT}", "s_mov_b64 exec, -1"])
        A.label(lab)
    endsetup = ["s_lshl_b32 s6, s15, 17", "s_lshl_b32 s90, s5, 12", "s_add_u32 s6, s6, s90", "s_add_u32 s7, s6, 0x40000",
                f"v_mov_b32 v{VT}, v{VL}", f"v_mov_b32 v{VT+1}, v{VL+1}", "v_mov_b32 v29, v21", "v_mov_b32 v253, v24",
                f"v_permlane32_swap_b32 v{VT}, v{VL}", f"v_permlane32_swap_b32 v{VT+1}, v{VL+1}",
                f"v_add_f32 v{VT}, v{VT}, v{VL}", f"v_add_f32 v{VT+1}, v{VT+1}, v{VL+1}",
                f"v_rcp_f32 v{VT+2}, v{VT}", f"v_rcp_f32 v{VT+4}, v{VT+1}",
                "v_lshrrev_b32 v1, 4, v0", f"v_mov_b32 v{VT+3}, v{VT+2}", f"v_mov_b32 v{VT+5}, v{VT+4}",
                "v_lshlrev_b32 v30, 10, v1", "v_and_b32 v1, 1, v1",
                "v_bfe_u32 v31, v0, 2, 2", "v_lshl_add_u32 v30, v31, 8, v30", "v_lshl_or_b32 v31, v31, 1, v1",
                "v_and_b32 v1, 3, v0", "v_lshl_add_u32 v30, v1, 3, v30",
                "s_lshr_b32 s91, s3, 1", "s_lshl_b32 s90, s91, 17", "s_lshl_b32 s91, s91, 16", "s_add_u32 s91, s91, 0x8000"]
    for cb in range(8):
        endsetup += [f"v_xor_b32 v1, {cb}, v31", "v_lshl_add_u32 v1, v1, 5, v30", f"v_add_u32 v{9+cb}, s90, v1", f"v_add_u32 v{17+cb}, s91, v1"]
    rare_sites = []
    for T in range(17):
        mf = (qk(T + 1, lambda mu: v(NM(mu), 16)) if T + 1 <= 15 else []) + (pv(T - 1) if T >= 1 else [])
        nq = 16 if T + 1 <= 15 else 0
        va = ([(f"v_add_f32 v{VL}, v{VL}, v{VTS}", 4), (f"v_add_f32 v{VL+1}, v{VL+1}, v{VTS+1}", 4)] if T >= 1 else []) + (sm(T) if T <= 15 else [])
        rdv = v_reads(T - 1) if T >= 1 else []
        rdk = k_reads(T + 2) if T + 2 <= 15 else []
        vm = []
        if T % 2 == 0 and T <= 14:
            w = []
            if T == hfT: w += vq.need(("H", 0))
            if T >= 6: w += vq.need(("K", (T + 2) // 2))
            if T >= 8: w += vq.need(("V", T // 2))
            A.e(w[-1:]); A.e(dq.drain()); A.e("s_barrier")
            if T == hfT:
                if hwb:
                    lab = L("wb")
                    A.e(["s_cmp_lg_u32 s3, 0", f"s_cbranch_scc1 {lab}", "buffer_wbl2 sc1"]); A.label(lab)
                else: flag_store("s88")
            if T == 8 and hwb: flag_store("s88")
            if T <= 6: vm += kv_ops("K", T // 2 + 4)
            if 4 <= T <= 10: vm += kv_ops("V", T // 2 + 2)
            if T == 12: vm += w_ops(0) + w_ops(1)
            if T == 14:
                A.e(vq.need(("F", 0))); check_flags("H", 22, 24, "s91")
                vm += a_ops(0) + a_ops(1)
        if pfA and pf0 <= T <= pf0 + 7:
            pre = []
            if T == pf0:
                pre = [f"s_mov_b32 s52, s{P_WO}", f"s_and_b32 s53, s{P_WO+1}, 0xffff", f"s_mov_b32 s54, {4096*2048:#x}",
                       "s_lshl_b32 s12, s2, 2", "s_add_u32 s12, s12, s3", "s_lshl_b32 s100, s12, 13", "s_mul_i32 s101, s12, 7168",
                       "v_and_b32 v2, 7, v0", "v_lshlrev_b32 v2, 7, v2", "v_add_u32 v3, 4096, v2"]
            k = T - pf0
            if k < 7: vm += [(pre, f"buffer_load_dword v31, v{2 if k < 4 else 3}, s[44:47], s101 offen offset:{(k % 4) * 1024}", ("P", 0), [])]
            if pfA == 2: vm += [([], f"buffer_load_dword v31, v{2 if k < 4 else 3}, s[52:55], s100 offen offset:{(k % 4) * 1024}", ("P", 0), [])]
        if xe and 5 <= T <= 8:
            hh, i0 = (T - 5) // 2, 2 * ((T - 5) % 2)
            for i in (i0, i0 + 1):
                vm += [([f"s_add_u32 m0, s4, {4096*hh}"] if i == i0 else [],
                        f"buffer_load_dwordx4 v{(1, 253, 254, 255)[i]}, s[56:59], {'s14' if hh else 's90'} offen offset:{i*1024} lds", ("R", 0), [])]
        if sen and 5 <= T <= 10:
            ks = {5: (0,), 6: (1,), 7: (2, 3), 8: (4,), 9: (5, 6), 10: (7,)}[T]
            for k in ks:
                pre = []
                if k == 0:
                    pre = ["s_lshl_b32 s12, s73, 3", "s_add_u32 s12, s12, s74", "s_lshl_b32 s12, s12, 2", "s_add_u32 s12, s12, s3", "s_lshl_b32 s12, s12, 13",
                           f"s_add_u32 s88, s12, {G_BASE + G_SF - WS_OF:#x}", ["s_cmp_eq_u32 s72, 0", "s_cselect_b32 s88, 0x7fff0000, s88"]] + \
                          [f"v_accvgpr_write_b32 a{252+i}, -1" for i in range(4)]
                if k == 4: pre = ["s_add_u32 s88, s88, 4096"]
                vm += [(pre, f"buffer_store_dwordx4 a[252:255], v4, s[60:63], s88 offen offset:{(k%4)*1024} {WT}", ("E", 0), [])]
        if xe and T == 11:
            A.e(vq.need(("R", 0)))
            xr_ = ["v_and_b32 v1, 15, v0", "v_lshrrev_b32 v253, 5, v0", "v_xor_b32 v253, v253, v1", "v_bfe_u32 v254, v0, 4, 1", "v_lshlrev_b32 v254, 3, v254",
                   "v_lshl_add_u32 v254, v1, 8, v254", "v_add_u32 v254, s4, v254"]
            vm += [([], x, None, []) for x in xr_]
            for cb in range(8):
                vm += [([], f"v_xor_b32 v30, {2*cb}, v253", None, []), ([], "v_lshl_add_u32 v30, v30, 4, v254", None, []),
                       ([], f"ds_read_b64 {a(224+4*cb,2)}, v30", "DS", []), ([], f"ds_read_b64 {a(226+4*cb,2)}, v30 offset:4096", "DS", [])]
        if T == 9 and cpf >= 3: emit_vm(code_touch(30, "v31"), A.e)
        if T == 12: vm += [([], f"buffer_load_dwordx2 v[22:23], v24, s[48:51], s91 offen {WT}", ("F", 0), [])]
        if T == 13: vm += w_ops(2) + w_ops(3)
        if T < 4: vm += hdef[2 * T: 2 * T + 2]
        if T == 15 and not xe: vm += a_ops(2)
        if late and 1 <= T <= 3:
            k_ = -(-len(late) // (4 - T)); ch = late[:k_]; late = late[k_:]
            nv = []; st_ = max(1, len(va) // len(ch))
            for i_, it_ in enumerate(va[:-2]):
                nv.append(it_)
                if ch and i_ % st_ == st_ - 1 and not it_[0].startswith("v_exp"): pass
                if ch and i_ % st_ == st_ - 1: nv.append(ch.pop(0))
            va = nv + ch + va[-2:]
        roll = v_reads(T) if (t16 and T in (14, 15)) else []
        if t16 and T >= 15: rdv = []
        if t16 and T == 16:
            A.e(dq.drain()); A.e("s_barrier")
            vm += w_ops(4) + w_ops(5) + w_ops(6)
            va += [(x, 4) for x in endsetup]
        if nq == 0:
            for ins, tag in rdv: A.e(ins); dq.issue(tag)
            rdv = []
        n = len(mf)
        vml = []
        for op in vm:
            vml += [(x, 4 if isinstance(x, str) else 4 * len(x), None) for x in op[0]] + ([("s_nop 0", 4, None)] if op[0] else []) + [(op[1], 8 if isinstance(op[2], tuple) else 4, op[2])] + [(x, 4, None) for x in op[3]]
        tot = sum(c for _, c in va) + 4 * (len(rdv) + len(rdk) + len(roll)) + sum(c for _, c, _ in vml)
        done = 0
        for m, (ins, tag) in enumerate(mf):
            w = dq.need(tag, dsl); A.e(w); A.e(ins)
            used = 4 * len(w)
            budget = max(cap, -(-(tot - done) // (n - m)) + 3) if m < n - 1 else 10 ** 6
            target = (tot * (m + 1)) // n + 6
            if roll and m >= nq and (m - nq) % 2 == 1: rdk += roll[:2]; roll = roll[2:]
            rd = rdv if (m < nq and rdv) else (rdk if (m >= nq and rdk) else None)
            if rd:
                ri, rt = rd.pop(0); A.e(ri); dq.issue(rt); used += 4; done += 4
                if rd is rdv and len(rd) > (nq - 3 - m):
                    ri, rt = rd.pop(0); A.e(ri); dq.issue(rt); used += 4; done += 4
            elif vml:
                x, c, tg = vml.pop(0); A.e(x); used += c; done += c
                if tg: (dq.issue(('XR', 0)) if tg == 'DS' else vq.issue(tg))
                while vml and c == 4 and used < 12:
                    x, c, tg = vml.pop(0); A.e(x); used += c; done += c
                    if tg: (dq.issue(('XR', 0)) if tg == 'DS' else vq.issue(tg))
            while va and used + va[0][1] <= budget and (done < target or m == n - 1):
                x, c = va.pop(0); A.e(x); used += c; done += c
        assert not rdv
        for ins, tag in rdk: A.e(ins); dq.issue(tag)
        for x, c, tg in vml:
            A.e(x)
            if tg: (dq.issue(('XR', 0)) if tg == 'DS' else vq.issue(tg))
        for x, c in va: A.e(x)
        if T <= 15:
            A.e([f"s_cbranch_vccnz {L('rs%d' % T)}"])
            A.label(L("rb%d" % T))
            rare_sites.append(T)
    stamp(4)
    if not t16:
        A.e("s_barrier")
        for t in range(4, 7):
            for op in w_ops(t): emit_vm(op, A.e, True)
        A.e(endsetup)
    def frd(t, cb):
        slot = t % 8
        reg = (9 if slot < 4 else 17) + cb; off = (slot % 4) * 8192
        return [(f"ds_read_b64_tr_b16 {FA(cb,0)}, v{reg} offset:{off}", ("A", t, cb)),
                (f"ds_read_b64_tr_b16 {FA(cb,1)}, v{reg} offset:{off+4096}", ("A", t, cb))]
    dq.slack = 8
    ostores = []
    cnt = 0
    if oin:
        A.e([f"v_accvgpr_read_b32 v{96+k}, a{k}" for k in range(64)])
        for t in (range(2, 6) if xe else range(3, 7)):
            for op in a_ops(t): emit_vm(op, A.e)
        A.e(vq.need(("W", 3))); A.e("s_barrier")
        for cb in range(8):
            for ins, tag in frd(0, cb): A.e(ins); dq.issue(tag)
    for i in range(4):
        for mu in range(2):
            tmp = 96 + (cnt % 4) * 16; dst = 160 + cnt * 8; cnt += 1
            src = (i * 2 + mu) * 16
            if not (oin and cnt <= 4): A.e([f"v_accvgpr_read_b32 v{tmp+k}, a{src+k}" for k in range(16)])
            A.e([f"v_pk_mul_f32 v[{tmp+2*k}:{tmp+2*k+1}], v[{tmp+2*k}:{tmp+2*k+1}], v[{VT+2+2*mu}:{VT+3+2*mu}]" for k in range(8)])
            for s_ in range(2):
                for jj, j in enumerate((s_, s_ + 2)):
                    A.e([f"v_cvt_pk_bf16_f32 v{dst+4*s_+2*jj}, v{tmp+4*j}, v{tmp+4*j+1}", f"v_cvt_pk_bf16_f32 v{dst+4*s_+2*jj+1}, v{tmp+4*j+2}, v{tmp+4*j+3}"])
                ostores.append(([], f"buffer_store_dwordx4 {v(dst+4*s_,4)}, v29, s[60:63], s{6+mu} offen offset:{i*1024+s_*512} {WT}", ("O", 0), []))
                if oin and len(ostores) <= oin: emit_vm(ostores[-1], A.e)
            if xe and cnt == 5:
                for op in a_ops(6): emit_vm(op, A.e)
            if not oin and cnt in (1, 2, 3, 4):
                for op in a_ops(2 + cnt): emit_vm(op, A.e)
            if not oin and cnt == 5:
                A.e(vq.need(("W", 3))); A.e("s_barrier")
                for cb in range(8):
                    for ins, tag in frd(0, cb): A.e(ins); dq.issue(tag)
    ostores = ostores[oin:]
    srd(A, 52, P_WS, G_SZ, G_BASE)
    srd(A, 64, P_X, 2048 * 2048)
    srd(A, 68, P_OUT, 2048 * 2048)
    A.e(["s_cmp_eq_u32 s72, 0",
         f"s_cselect_b32 s90, {N1S-nf//8}, {N1Y-nf//8}", f"s_cselect_b32 s95, {N1S-1-nf//8}, {N1Y-1-nf//8}", "s_mov_b32 s91, 0",
         "s_lshl_b32 s12, s73, 3", "s_add_u32 s12, s12, s74",
         "s_lshl_b32 s92, s12, 2", "s_add_u32 s92, s92, s3",
         "s_lshl_b32 s92, s92, 13",
         "s_lshl_b32 s93, s12, 7", f"s_add_u32 s101, s93, {FL_P}", "s_lshl_b32 s12, s3, 5", "s_add_u32 s93, s93, s12",
         "s_lshl_b32 s94, s73, 7", "s_and_b32 s12, s3, 1", "s_lshl_b32 s12, s12, 6", "s_add_u32 s94, s94, s12",
         "s_lshr_b32 s12, s3, 1", "s_lshl_b32 s12, s12, 5", "s_add_u32 s94, s94, s12",
         "s_lshl_b32 s94, s94, 11", "s_lshl_b32 s12, s74, 8", "s_add_u32 s94, s94, s12",
         "v_and_b32 v1, 15, v0", "v_lshlrev_b32 v1, 11, v1", "v_lshrrev_b32 v30, 4, v0",
         "v_lshl_add_u32 v25, v30, 3, v1", "v_add_u32 v26, 0x8000, v25",
         "v_lshl_add_u32 v27, v30, 4, v1", "v_add_u32 v28, 0x8000, v27",
         "s_lshl_b32 s12, s3, 14", "v_add_u32 v2, s12, v4", "s_xor_b32 s12, s12, 0x8000", "v_add_u32 v3, s12, v4",
         "s_lshl_b32 s12, s3, 13", "s_add_u32 s12, s12, 0x10000", "v_add_u32 v254, s12, v4", "s_xor_b32 s12, s12, 0x4000", "v_add_u32 v255, s12, v4"])
    stamp(5)
    XP = (2, 8, 12, 16, 20, 24, 28)
    def fstep(t, E, last=False, extra=(), czero=False, prev=None, afterbar=None, needbar=(), va=None, xp=None, hook=None):
        if not last: vops = w_ops(t + 7) + a_ops(t + 7)
        else: vops = (w_ops(t + 7, t > 0) + a_ops(t + 7, t > 0)) if t + 7 < tail else []
        xq = xp or (XP if vops else vpos)
        sched = sorted(list(zip(vpos, vops)) + list(zip(xq, extra)), key=lambda x: x[0])
        assert len(extra) <= len(xq)
        isbar = (t % 2 == 1)
        doread = not (last and t == tail - 1)
        pend = []; vi = 0; post = []; pre = [x for _, op in sched for x in op[0]] if False else None
        pres = [list(op[0]) for _, op in sched]
        for m in range(32):
            cb, jj = m // 4, m % 4
            if m == 0: E(vq.need(("X", t)))
            if jj == 0: E(dq.need(("A", t, cb)))
            if prev: E(prev(cb, jj))
            E(mfma16(facc(cb, jj), FA(cb), FB(t % 8, jj), "0" if czero else None))
            if isbar and m == barpos:
                w = vq.need(("W", t + 2))
                for tg in needbar: w += vq.need(tg)
                E(w[-1:]); E(dq.drain()); E("s_barrier")
                if afterbar: afterbar()
            if jj == 3 and doread: pend += frd(t + 1, cb)
            if hook and hook(m): E(hook(m)); continue
            if vi < len(sched) and m == sched[vi][0]:
                assert not pres[vi]
                op = sched[vi][1]
                E(op[1]); vq.issue(op[2]); post += op[3]; vi += 1
            else:
                used = 0
                if not (isbar and m < barpos) and pend:
                    ins, tag = pend.pop(0); E(ins); dq.issue(tag); used += 1
                k = next((k for k in range(vi, len(sched)) if pres[k]), None)
                if k is not None and any("m0" in x for x in pres[k]) and any(" lds" in sched[k2][1][1] for k2 in range(vi, k)): k = None
                while k is not None and pres[k] and used < 2: E(pres[k].pop(0)); used += 1
                if post and used < 2: E(post.pop(0)); used += 1
                cyc = 4 * used
                while va and cyc + va[0][1] <= vcap:
                    x, c = va.pop(0); E(x); cyc += c
        for ins, tag in pend: E(ins); dq.issue(tag)
        E(post)
    oflag = [([], f"buffer_load_dwordx2 v[30:31], v253, s[48:51], s97 offen {WT}", ("F", 0), [])]
    SWW = [[]]
    def loop_body(E, real):
        for t in range(8):
            fstep(t, E, extra=oflag if t == 2 else ())
            if t == 0 and real:
                A.e(["s_cmp_lg_u32 s95, 0", f"s_cbranch_scc1 {L('nosw')}"])
                A.e(SWW[0]); check_flags("O", 30, 253, "s97")
                srd(A, 40, P_WS, SZ_OF, WS_OF); srd(A, 44, P_WO, 4096 * 2048)
                A.e(["s_mov_b32 s8, s75", "s_mov_b32 s9, s96", "s_mov_b32 s97, s101", "v_mov_b32 v253, 0"] + [f"v_mov_b32 v{5+jj}, v{242+jj}" for jj in range(4)])
                A.label(L("nosw"))
    XP8 = (1, 2, 4, 8, 12, 16, 20, 24)
    for t in range(nf):
        k0 = sum(ost[:t]); ex = list(ostores[k0:k0 + ost[t]]) if t < len(ost) else []
        if nf == 16 and t == oft: ex = ex + oflag
        fstep(t, A.e, extra=ex, czero=(t == 0), xp=(XP8 if t % 2 == 0 else (4, 5, 8, 12, 16, 20, 24, 28)) if len(ex) > 3 else (8, 16, 24),
              needbar=[("O", 0)] if t == oflt else (), afterbar=(lambda: flag_store("s89")) if t == oflt else None)
    stamp(6)
    SWW[0] = [f"s_waitcnt vmcnt({vq.count_after(('F', 0)) + 8})"] if ("F", 0) in vq.q else []
    vq.rebase(nf); dq.rebase(nf)
    q_first = (list(vq.q), list(dq.q))
    loop_body(lambda x: None, False)
    vq.rebase(8); dq.rebase(8)
    q_steady = (list(vq.q), list(dq.q))
    assert not any(t[0] == "F" for t in q_steady[0]) and N1S >= 3 and N1Y >= 3
    def covers(entry, steady):
        def younger(q, tag): return len(q) - 1 - max(i for i, t in enumerate(q) if t == tag)
        for tag in set(entry):
            if tag[0] not in "WXA": continue
            if tag not in steady or younger(entry, tag) < younger(steady, tag): return False
        return True
    assert covers(q_first[0], q_steady[0]) and covers(q_first[1], q_steady[1]), (q_first, q_steady)
    A.raw(".p2align 6")
    A.label(L("floop"))
    loop_body(A.e, True)
    A.e(["s_sub_u32 s95, s95, 1", "s_sub_u32 s90, s90, 1", "s_cmp_lg_u32 s90, 0", f"s_cbranch_scc1 {L('floop')}",
         "s_cmp_lg_u32 s91, 0", f"s_cbranch_scc1 {L('flast')}"])
    stamp(3, 2)
    vq.rebase(8); dq.rebase(8)
    YS = lambda cb, jj: 160 + (cb * 2 + jj) * 4
    if mid1:
        A.e("s_nop 2")
        for jj in range(2):
            for i in range(4):
                d = YS(2 * i, jj)
                for h in range(2):
                    b = 32 + ((2 * i + h) * 4 + jj + 2) * 4
                    A.e([f"v_cvt_pk_bf16_f32 v{d+2*h}, v{b}, v{b+1}", f"v_cvt_pk_bf16_f32 v{d+2*h+1}, v{b+2}, v{b+3}"])
                A.e(f"ds_write_b128 v254, {v(d,4)} offset:{(jj*4+i)*1024}")
        A.e(["s_waitcnt lgkmcnt(0)", "s_barrier"])
        for jj in range(2):
            for i in range(4):
                A.e(f"ds_read_b128 {facc(2*i, jj+2)}, v255 offset:{(jj*4+i)*1024}")
        for jj in range(2):
            for i in range(4):
                pc = 32 + ((2 * i) * 4 + jj + 2) * 4
                A.e(f"s_waitcnt lgkmcnt({7 - (jj*4+i)})")
                for h in range(2):
                    b = 32 + ((2 * i + h) * 4 + jj) * 4; y = YS(2 * i + h, jj)
                    A.e([f"v_lshlrev_b32 v{y}, 16, v{pc+2*h}", f"v_and_b32 v{y+1}, 0xffff0000, v{pc+2*h}",
                         f"v_lshlrev_b32 v{y+2}, 16, v{pc+2*h+1}", f"v_and_b32 v{y+3}, 0xffff0000, v{pc+2*h+1}"])
                    A.e([f"v_pk_add_f32 v[{y+r_}:{y+r_+1}], v[{y+r_}:{y+r_+1}], v[{b+r_}:{b+r_+1}]" for r_ in (0, 2)])
    else:
        A.e("s_nop 2")
        for rnd in range(2):
            for cb in range(4 * rnd, 4 * rnd + 4):
                for jj in (2, 3): A.e(f"ds_write_b128 v254, {facc(cb,jj)} offset:{((cb%4)*2+jj-2)*1024}")
            if rnd == 1:
                for cb in range(4):
                    for jj in range(2):
                        b = 32 + (cb * 4 + jj) * 4; y = YS(cb, jj)
                        A.e([f"v_pk_add_f32 v[{y+r_}:{y+r_+1}], v[{b+r_}:{b+r_+1}], v[{b+8+r_}:{b+9+r_}]" for r_ in (0, 2)])
            A.e(["s_waitcnt lgkmcnt(0)", "s_barrier"])
            for cb in range(4 * rnd, 4 * rnd + 4):
                for jj in (2, 3): A.e(f"ds_read_b128 {facc(cb,jj)}, v255 offset:{((cb%4)*2+jj-2)*1024}")
            if rnd == 0: A.e(["s_waitcnt lgkmcnt(0)", "s_barrier"])
        for cb in range(4, 8):
            for jj in range(2):
                b = 32 + (cb * 4 + jj) * 4; y = YS(cb, jj)
                A.e(f"s_waitcnt lgkmcnt({7 - ((cb-4)*2+jj)})")
                A.e([f"v_pk_add_f32 v[{y+r_}:{y+r_+1}], v[{b+r_}:{b+r_+1}], v[{b+8+r_}:{b+9+r_}]" for r_ in (0, 2)])
    A.e(["s_cmp_eq_u32 s72, 0", f"s_cbranch_scc1 {L('firstC')}", "s_add_u32 s6, s92, 4096"])
    for jj in range(2):
        for i in range(4):
            d = 224 + (i % 2) * 4 + jj * 8
            for h in range(2):
                y = YS(2 * i + h, jj)
                A.e([f"v_cvt_pk_bf16_f32 v{d+2*h}, v{y}, v{y+1}", f"v_cvt_pk_bf16_f32 v{d+2*h+1}, v{y+2}, v{y+3}"])
            A.e(f"buffer_store_dwordx4 {v(d,4)}, v4, s[52:55], {'s6' if jj else 's92'} offen offset:{i*1024} {WT}")
    A.label(L("firstC"))
    stamp(4, 2)
    vq.q, dq.q = list(q_steady[0]), list(q_steady[1])
    def pflag():
        lab = L("pf")
        A.e(["s_xor_b32 s6, s72, 1", "s_or_b32 s6, s6, s3", "s_cmp_lg_u32 s6, 0", f"s_cbranch_scc1 {lab}", "s_mov_b64 exec, 1",
             f"buffer_store_dwordx2 v[250:251], v252, s[48:51], s101 offen {WT}", "s_mov_b64 exec, -1"])
        A.label(lab)
    xpre = ["v_lshrrev_b32 v228, 4, v0", "v_and_b32 v229, 15, v0", "v_xor_b32 v229, v229, v228"]
    for i in range(4):
        xpre += [f"v_xor_b32 v{224+i}, {4*i}, v229", f"v_lshlrev_b32 v{224+i}, 4, v{224+i}", f"v_lshl_add_u32 v{224+i}, v228, 11, v{224+i}",
                 f"v_add_u32 v{224+i}, {7168*i}, v{224+i}"]
    xdma = [([f"s_add_u32 m0, s15, {4096*hh}"], f"buffer_load_dwordx4 v{224+i}, s[64:67], {'s100' if hh else 's94'} offen offset:{i*1024} lds", ("R", 0), [])
            for hh in range(2) for i in range(4)]
    if not xe: A.e(xpre + ["s_lshl_b32 s15, s3, 13", "s_add_u32 s15, s15, 0x10000", "s_add_u32 s100, s94, 0x8000"])
    nopre = lambda op: ([],) + tuple(op[1:])
    mark = ("MARK", vq.total)
    for t in range(8):
        fstep(t, A.e, czero=(t == 0), afterbar=pflag if t == pft else None, needbar=[mark] if t == pft else (), extra=({5: oflag} if xe else {2: [xdma[0], nopre(xdma[1])], 3: [xdma[2]], 4: [xdma[3]], 5: [xdma[4]] + oflag, 6: [xdma[5], nopre(xdma[6])], 7: [xdma[7]]}).get(t, ()),
              xp=(1, 2) if (t in (2, 6) and not xe) else None)
    FW = vq.need(("F", 0))
    vq.rebase(8); dq.rebase(8)
    assert covers(vq.q, q_steady[0]) and covers(dq.q, q_steady[1])
    stamp(5, 2)
    A.e(["s_mov_b32 s91, 1", f"s_mov_b32 s90, {(64-SS-8-tail)//8}", "s_cmp_lg_u32 s72, 0", f"s_cbranch_scc1 {L('floop')}"])
    A.e(FW); check_flags("P", 30, 252, "s101")
    YP = lambda jj, i: 224 + (jj * 4 + i) * 4
    YA = lambda i: (96 if xe else 80) + i * 4
    A.e("s_add_u32 s6, s92, 4096")
    for i in range(4):
        A.e([f"buffer_load_dwordx4 {v(YP(0,i),4)}, v4, s[52:55], s92 offen offset:{i*1024} {WT}",
             f"buffer_load_dwordx4 {a(YA(i),4)}, v4, s[52:55], s6 offen offset:{i*1024} {WT}"])
    A.e([f"s_mov_b32 s90, {(SS-8-tail)//8}", f"s_branch {L('floop')}"])
    A.label(L("flast"))
    stamp(6, 2)
    A.e(["s_mov_b32 s6, 0xbfb8aa3b", "s_mov_b32 s7, 0xbfb8aa3b", "s_cmp_lg_u32 s72, 0", f"s_cbranch_scc1 {L('flast2')}"])
    for cb in range(8):
        y = YS(cb, 0); pc = YP(0, cb // 2) + 2 * (cb % 2); T0 = 240 if cb % 2 == 0 else 242
        T0 = 240
        A.e([f"v_lshlrev_b32 v{T0}, 16, v{pc}", f"v_and_b32 v{T0+1}, 0xffff0000, v{pc}",
             f"v_lshlrev_b32 v{T0+2}, 16, v{pc+1}", f"v_and_b32 v{T0+3}, 0xffff0000, v{pc+1}"])
        A.e([f"v_pk_add_f32 v[{y+r_}:{y+r_+1}], v[{y+r_}:{y+r_+1}], v[{T0+r_}:{T0+r_+1}]" for r_ in (0, 2)])
        A.e([f"v_pk_mul_f32 v[{T0+r_}:{T0+r_+1}], v[{y+r_}:{y+r_+1}], s[6:7]" for r_ in (0, 2)])
        A.e([f"v_exp_f32 v{T0+r_}, v{T0+r_}" for r_ in range(4)])
        A.e([f"v_pk_add_f32 v[{T0+r_}:{T0+r_+1}], v[{T0+r_}:{T0+r_+1}], 1.0 op_sel_hi:[1,0]" for r_ in (0, 2)])
        A.e([f"v_rcp_f32 v{T0+r_}, v{T0+r_}" for r_ in range(4)])
        A.e([f"v_pk_mul_f32 v[{y+r_}:{y+r_+1}], v[{y+r_}:{y+r_+1}], v[{T0+r_}:{T0+r_+1}]" for r_ in (0, 2)])
    A.label(L("flast2"))
    vq.q, dq.q = list(q_steady[0]), list(q_steady[1])
    va = []
    for cb in range(8):
        y = YS(cb, 1); pc = YA(cb // 2) + 2 * (cb % 2); T0 = 224 + 4 * (cb % 2)
        va += [(f"v_accvgpr_read_b32 v{T0+1}, a{pc}", 4), (f"v_accvgpr_read_b32 v{T0+3}, a{pc+1}", 4),
               (f"v_lshlrev_b32 v{T0}, 16, v{T0+1}", 4), (f"v_and_b32 v{T0+1}, 0xffff0000, v{T0+1}", 4),
               (f"v_lshlrev_b32 v{T0+2}, 16, v{T0+3}", 4), (f"v_and_b32 v{T0+3}, 0xffff0000, v{T0+3}", 4)]
        va += [(f"v_add_f32 v{y+r_}, v{y+r_}, v{T0+r_}", 4) for r_ in range(4)]
        va += [(f"v_mul_f32 v{T0+r_}, s7, v{y+r_}", 4) for r_ in range(4)]
        va += [(f"v_exp_f32 v{T0+r_}, v{T0+r_}", 8) for r_ in range(4)]
        va += [(f"v_add_f32 v{T0+r_}, 1.0, v{T0+r_}", 4) for r_ in range(4)]
        va += [(f"v_rcp_f32 v{T0+r_}, v{T0+r_}", 8) for r_ in range(4)]
        va += [(f"v_mul_f32 v{y+r_}, v{y+r_}, v{T0+r_}", 4) for r_ in range(4)]
    xw = lambda cb, jj: f"ds_write_b128 v2, {facc(cb,jj)} offset:{(cb*2+jj-2)*1024}"
    def ehook(m):
        k = m - 12
        return [xw(k // 4, 2 + (k % 4) // 2)] if (k >= 0 and k % 2 == 0) else None
    fin = [(["v_mov_b32 v29, 0"], f"buffer_load_dwordx2 v[30:31], v29, s[48:51], s93 offen {WT}", ("G", 0), [])]
    for t in range(tail):
        fstep(t, A.e, last=True, extra=({} if sen else {tail - 3: fin}).get(t, ()), va=va if t >= vat else None, hook=ehook if (ew and t == tail - 1) else None)
    A.c(f"left over fillers: {len(va)}")
    for x, c in va: A.e(x)
    stamp(7)
    A.e(["v_mov_b32 v22, s98", "v_mov_b32 v23, s99", f"s_add_u32 s6, s92, {G_SF}", f"s_add_u32 s7, s92, {G_SF+4096}",
         "s_cmp_lg_u32 s72, 0", f"s_cbranch_scc1 {L('xch')}"])
    s2loads = [f"buffer_load_dwordx4 {v(YP(jj,i),4)}, v4, s[52:55], s{6+jj} offen offset:{i*1024} {WT}" for jj in range(2) for i in range(4)]
    if sen: A.e(["s_mov_b32 s15, -1"] + s2loads)
    else:
        A.e(vq.need(("G", 0)))
        A.e(["v_cmp_ne_u64 vcc, s[98:99], v[30:31]", f"s_cbranch_vccnz {L('xch')}", "s_mov_b32 s91, 2"] + s2loads)
    A.label(L("xch"))
    A.e("s_nop 2")
    for cb in range(5 if ew else 0, 8):
        for jj in (2, 3):
            A.e(xw(cb, jj))
    A.e(["s_waitcnt lgkmcnt(0)", "s_barrier"])
    for jj in (2, 3):
        for cb in range(8):
            A.e(f"ds_read_b128 {facc(cb,jj)}, v3 offset:{(cb*2+jj-2)*1024}")
    A.e(["s_cmp_eq_u32 s72, 0", f"s_cbranch_scc1 {L('sepi')}"])
    for jj in range(2):
        for i in range(4):
            dst = 160 + (jj * 4 + i) * 4
            for h in range(2):
                cb = 2 * i + h
                A.e(f"s_waitcnt lgkmcnt({15 - (jj*8+cb)})")
                b = 32 + (cb * 4 + jj) * 4
                A.e([f"v_pk_add_f32 v[{b+r_}:{b+r_+1}], v[{b+r_}:{b+r_+1}], v[{b+8+r_}:{b+9+r_}]" for r_ in (0, 2)])
                A.e([f"v_cvt_pk_bf16_f32 v{dst+2*h}, v{b}, v{b+1}", f"v_cvt_pk_bf16_f32 v{dst+2*h+1}, v{b+2}, v{b+3}"])
            if sen: A.e([f"v_min_u32 v{dst+k}, -2, v{dst+k}" for k in range(4)])
            A.e(f"buffer_store_dwordx4 {v(dst,4)}, v4, s[52:55], s{6+jj} offen offset:{i*1024} {WT}")
    if sen: A.e(f"s_branch {L('fin')}")
    else:
        A.e(["s_waitcnt vmcnt(0)", "s_mov_b64 exec, 1",
             f"buffer_store_dwordx2 v[22:23], v29, s[48:51], s93 offen {WT}", "s_mov_b64 exec, -1", f"s_branch {L('fin')}"])
    A.label(L("sepi"))
    XR = lambda cb, jj: (224 if xe else 96) + (cb * 2 + jj) * 2
    if not xe:
        A.e(["v_and_b32 v1, 15, v0", "v_lshrrev_b32 v5, 5, v0", "v_xor_b32 v5, v5, v1", "v_bfe_u32 v6, v0, 4, 1", "v_lshlrev_b32 v6, 3, v6",
             "v_lshl_add_u32 v6, v1, 8, v6", "s_lshl_b32 s15, s3, 13", "s_add_u32 s15, s15, 0x10000", "v_add_u32 v6, s15, v6"])
        for cb in range(8):
            A.e([f"v_xor_b32 v7, {2*cb}, v5", "v_lshl_add_u32 v7, v7, 4, v6",
                 f"ds_read_b64 {a(XR(cb,0),2)}, v7", f"ds_read_b64 {a(XR(cb,1),2)}, v7 offset:4096"])
    if fast:
        A.e(["s_cmp_lg_u32 s91, 2", f"s_cbranch_scc1 {L('slowp')}", "s_waitcnt lgkmcnt(0)"])
        for jj in range(2):
            for i in range(4):
                o = YP(jj, i)
                for h in range(2):
                    cb = 2 * i + h
                    b = 32 + (cb * 4 + jj) * 4; y = YS(cb, jj); xa = XR(cb, jj); T0 = 8 + 8 * h
                    A.e([f"v_accvgpr_read_b32 v{T0+1}, a{xa}", f"v_accvgpr_read_b32 v{T0+3}, a{xa+1}"])
                    A.e([f"v_pk_add_f32 v[{b+r_}:{b+r_+1}], v[{b+r_}:{b+r_+1}], v[{b+8+r_}:{b+9+r_}]" for r_ in (0, 2)])
                    A.e([f"v_lshlrev_b32 v{T0}, 16, v{T0+1}", f"v_and_b32 v{T0+1}, 0xffff0000, v{T0+1}",
                         f"v_lshlrev_b32 v{T0+2}, 16, v{T0+3}", f"v_and_b32 v{T0+3}, 0xffff0000, v{T0+3}"])
                    if h == 0: A.e("s_waitcnt vmcnt(7)")
                    A.e([f"v_lshlrev_b32 v{T0+4}, 16, v{o+2*h}", f"v_and_b32 v{T0+5}, 0xffff0000, v{o+2*h}",
                         f"v_lshlrev_b32 v{T0+6}, 16, v{o+2*h+1}", f"v_and_b32 v{T0+7}, 0xffff0000, v{o+2*h+1}"])
                    A.e([f"v_pk_fma_f32 v[{b+r_}:{b+r_+1}], v[{b+r_}:{b+r_+1}], v[{y+r_}:{y+r_+1}], v[{T0+r_}:{T0+r_+1}]" for r_ in (0, 2)])
                    A.e([f"v_pk_fma_f32 v[{b+r_}:{b+r_+1}], v[{T0+4+r_}:{T0+5+r_}], v[{y+r_}:{y+r_+1}], v[{b+r_}:{b+r_+1}]" for r_ in (0, 2)])
                    A.e([f"v_cvt_pk_bf16_f32 v{o+2*h}, v{b}, v{b+1}", f"v_cvt_pk_bf16_f32 v{o+2*h+1}, v{b+2}, v{b+3}"])
                A.e(["s_nop 1", f"v_permlane32_swap_b32 v{o}, v{o+2}", f"v_permlane32_swap_b32 v{o+1}, v{o+3}", "s_nop 0",
                     f"v_permlane16_swap_b32 v{o}, v{o+2}", f"v_permlane16_swap_b32 v{o+1}, v{o+3}",
                     f"buffer_store_dwordx4 {v(o,4)}, v{27+jj}, s[68:71], s94 offen offset:{i*64}"])
        A.e(f"s_branch {L('fin')}")
        A.label(L("slowp"))
    for n in range(16):
        jj, cb = n // 8, n % 8
        b = 32 + (cb * 4 + jj) * 4; y = YS(cb, jj); xa = XR(cb, jj); T0 = 8 + 4 * (n % 2)
        if n == 0: A.e("s_waitcnt lgkmcnt(0)")
        A.e([f"v_accvgpr_read_b32 v{T0+1}, a{xa}", f"v_accvgpr_read_b32 v{T0+3}, a{xa+1}"])
        A.e([f"v_pk_add_f32 v[{b+r_}:{b+r_+1}], v[{b+r_}:{b+r_+1}], v[{b+8+r_}:{b+9+r_}]" for r_ in (0, 2)])
        A.e([f"v_lshlrev_b32 v{T0}, 16, v{T0+1}", f"v_and_b32 v{T0+1}, 0xffff0000, v{T0+1}",
             f"v_lshlrev_b32 v{T0+2}, 16, v{T0+3}", f"v_and_b32 v{T0+3}, 0xffff0000, v{T0+3}"])
        A.e([f"v_pk_fma_f32 v[{b+r_}:{b+r_+1}], v[{b+r_}:{b+r_+1}], v[{y+r_}:{y+r_+1}], v[{T0+r_}:{T0+r_+1}]" for r_ in (0, 2)])
    if sen:
        A.e(SPINB)
        A.label(L("poll"))
        A.e(["s_waitcnt vmcnt(0)", "v_max3_u32 v8, v224, v225, v226", "v_max3_u32 v9, v227, v228, v229"])
        for k in range(230, 254, 4): A.e([f"v_max3_u32 v8, v8, v{k}, v{k+1}", f"v_max3_u32 v9, v9, v{k+2}, v{k+3}"])
        A.e(["v_max3_u32 v8, v8, v254, v255", "v_max_u32 v8, v8, v9", "v_cmp_eq_u32 vcc, s15, v8", f"s_cbranch_vccz {L('have')}",
             "s_sub_u32 s12, s12, 1", f"s_cbranch_scc1 {L('have')}"] + s2loads + [f"s_branch {L('poll')}"])
    else:
        A.e(["s_cmp_eq_u32 s91, 2", f"s_cbranch_scc1 {L('have')}", SPINB])
        A.label(L("poll"))
        A.e([f"buffer_load_dwordx2 v[30:31], v29, s[48:51], s93 offen {WT}", "s_waitcnt vmcnt(0)",
             "s_sub_u32 s12, s12, 1", f"s_cbranch_scc1 {L('got')}",
             "v_cmp_ne_u64 vcc, s[98:99], v[30:31]", f"s_cbranch_vccz {L('got')}", "s_sleep 1", f"s_branch {L('poll')}"])
        A.label(L("got"))
        A.e(s2loads)
    A.label(L("have"))
    for jj in range(2):
        for i in range(4):
            o = YP(jj, i)
            if not sen: A.e("s_waitcnt vmcnt(7)")
            for h in range(2):
                cb = 2 * i + h
                b = 32 + (cb * 4 + jj) * 4; y = YS(cb, jj); T0 = 8 + 4 * h
                A.e([f"v_lshlrev_b32 v{T0}, 16, v{o+2*h}", f"v_and_b32 v{T0+1}, 0xffff0000, v{o+2*h}",
                     f"v_lshlrev_b32 v{T0+2}, 16, v{o+2*h+1}", f"v_and_b32 v{T0+3}, 0xffff0000, v{o+2*h+1}"])
                A.e([f"v_pk_fma_f32 v[{b+r_}:{b+r_+1}], v[{T0+r_}:{T0+r_+1}], v[{y+r_}:{y+r_+1}], v[{b+r_}:{b+r_+1}]" for r_ in (0, 2)])
                A.e([f"v_cvt_pk_bf16_f32 v{o+2*h}, v{b}, v{b+1}", f"v_cvt_pk_bf16_f32 v{o+2*h+1}, v{b+2}, v{b+3}"])
            A.e(["s_nop 1", f"v_permlane32_swap_b32 v{o}, v{o+2}", f"v_permlane32_swap_b32 v{o+1}, v{o+3}", "s_nop 0",
                 f"v_permlane16_swap_b32 v{o}, v{o+2}", f"v_permlane16_swap_b32 v{o+1}, v{o+3}",
                 f"buffer_store_dwordx4 {v(o,4)}, v{27+jj}, s[68:71], s94 offen offset:{i*64}"])
    A.label(L("fin"))
    if stamps:
        srd(A, 40, P_WS, 0x100000, WS_STAMP)
        A.e(["s_waitcnt vmcnt(0)", "s_memtime s[76:77]", "s_memrealtime s[78:79]", "s_waitcnt lgkmcnt(0)",
             "v_mov_b32 v8, s76", "v_mov_b32 v9, s78", "v_mov_b32 v10, s72", "s_getreg_b32 s10, hwreg(HW_REG_XCC_ID)", "v_mov_b32 v11, s10",
             "s_lshl_b32 s10, s2, 2", "s_add_u32 s10, s10, s3", "s_lshl_b32 s10, s10, 7", "v_mov_b32 v1, s10", "s_mov_b64 exec, 1"])
        A.e("buffer_store_dwordx4 v[8:11], v1, s[40:43], 0 offen offset:64")
    if dbgst:
        srd(A, 40, P_DBG, 256)
        A.e(["s_and_b32 s10, s2, 0xfb", "s_or_b32 s10, s10, s3", "s_cmp_lg_u32 s10, 0", f"s_cbranch_scc1 {L('end')}", "s_mov_b64 exec, 1",
             "v_accvgpr_read_b32 v12, a241", "s_lshl_b32 s10, s2, 3", "v_mov_b32 v1, s10"])
        for k in range(1, 8): A.e([f"v_accvgpr_read_b32 v13, a{241+2*k}", f"v_sub_u32 v{15+k}, v13, v12"])
        A.e(["v_sub_u32 v23, v9, v12", "buffer_store_dwordx4 v[16:19], v1, s[40:43], 0 offen", "buffer_store_dwordx4 v[20:23], v1, s[40:43], 0 offen offset:16"])
    A.label(L("end"))
    A.e("s_endpgm")
    for tag, reg, addr, off in spins:
        A.label(L("spin" + tag))
        A.e(SPINB)
        A.label(L("spinl" + tag))
        A.e(["s_sleep 2", f"buffer_load_dwordx2 v[{reg}:{reg+1}], v{addr}, s[48:51], {off} offen {WT}", "s_waitcnt vmcnt(0)",
             "s_sub_u32 s12, s12, 1", f"s_cbranch_scc1 {L('ok' + tag)}",
             f"v_cmp_ne_u64 vcc, s[98:99], v[{reg}:{reg+1}]", f"s_cbranch_vccnz {L('spinl' + tag)}", f"s_branch {L('ok' + tag)}"])
    for T in rare_sites:
        A.label(L("rs%d" % T))
        A.e([f"s_call_b64 s[6:7], {L('rare%d' % (T & 1))}", f"s_branch {L('rb%d' % T)}"])
    for b in range(2):
        A.label(L("rare%d" % b))
        A.e(["s_nop 15", "s_nop 15"])
        for mu in range(2):
            S = SB(b, mu); S2 = SB(b ^ 1, mu)
            A.e(rowmax(S, VT, VT + 2))
            A.e([f"v_max_f32 v{VT}, 0, v{VT}", f"v_exp_f32 v{VT+1}, -v{VT}"])
            A.e([f"v_sub_f32 v{NM(mu)+k}, v{NM(mu)+k}, v{VT}" for k in range(16)])
            A.e([f"v_sub_f32 v{S+k}, v{S+k}, v{VT}" for k in range(16)])
            A.e([f"v_sub_f32 v{S2+k}, v{S2+k}, v{VT}" for k in range(16)])
            A.e(f"v_mul_f32 v{VL+mu}, v{VL+mu}, v{VT+1}")
            for i in range(4):
                o = (i * 2 + mu) * 16
                for k in range(16):
                    A.e([f"v_accvgpr_read_b32 v{VT+2}, a{o+k}", f"v_mul_f32 v{VT+2}, v{VT+2}, v{VT+1}", f"v_accvgpr_write_b32 a{o+k}, v{VT+2}"])
            for k in range(0, 16, 2):
                A.e([f"v_exp_f32 v{EB}, v{S+k}", f"v_exp_f32 v{EB+1}, v{S+k+1}", "s_nop 0",
                     f"v_cvt_pk_bf16_f32 v{PB(b,mu)+k//2}, v{EB}, v{EB+1}", f"v_add_f32 v{EB}, v{EB}, v{EB+1}",
                     f"v_mov_b32 v{VTS+mu}, v{EB}" if k == 0 else f"v_add_f32 v{VTS+mu}, v{VTS+mu}, v{EB}"])
        A.e(["s_nop 3", "s_setpc_b64 s[6:7]"])
    A.label(f"{name}_codeend")
    return (name, 512, 256, "(256,1,1)", "(256,1,1)", 163840)
```

```python
from common import *
import struct, math
QSCALE = struct.unpack("<I", struct.pack("<f", math.log2(math.e) / math.sqrt(128.0)))[0]
THR = 0x49800000
FL_L, FL_H, FL_O, FL_P, FL_SZ = 0x4000, 0x6000, 0x8000, 0xA000, 0xE000
G_BASE, G_SF, G_PF, G_SZ = 0x2200000, 0x600000, 0xA00000, 0x1200000
SS_UNUSED = 28
N1S, N1Y = 4, 3
WT = "sc0 sc1"
SPINB = "s_mov_b32 s12, 0x40000"

def kf(A, name="kf_kernel", stamps=0, thr=THR, vpos=(6, 10, 14, 18, 22, 26, 29, 30), barpos=3, apol=WT, pfT=0, pfG=0, cpf=3, ln=1, dbgst=0, pst=0, psleep=1, hwb=0, cap=24, dsl=6, vcap=8, ost=None, oflt=3, rotm=(1, 2), xpol=None, gdbg=0, pfs=7, pfA=2, rot0=1, vat=None, pft=3, tail=8, kmap=1, SS=None, hfT=2, barm=47, gsl=10, sp1=(2, 44), sp2=(54, 88), vmod=2, lead=0, nf=8, oft=14, oin=8, hdf=2, tlb=0, t16=1, mid1=1, fast=0, lset=1, xe=1, ew=1, sen=0, oflt2=4, pft2=2):
    L = lambda s: f"{name}_{s}"
    if SS is None: SS = 32 if tail == 8 else 28
    if vat is None: vat = tail - 7
    pf0 = 4 if lset else 3
    if lset: hfT = max(hfT, 4)
    if ost is None: ost = (8, 8)[:2 - oin // 8]
    vq = Q("vmcnt", 63); dq = Q("lgkmcnt", 15, gsl)
    def stamp(i, pro=0):
        if not stamps: return
        if pst == 1:
            if pro == 0 and i == 1: i = 7
            elif not (pro == 1 or i == 0): return
        elif pst == 2:
            if pro == 0 and i == 5: i = 1
            elif pro == 0 and i == 6: i = 2
            elif not (pro == 2 or (pro == 0 and i in (0, 7))): return
        elif pst == 3:
            if pro or i != 1: return
            i = 0
        elif pro: return
        first = (i == 0 and pst != 3)
        A.e(["s_memtime s[76:77]", "s_memrealtime s[78:79]"] + (["s_load_dwordx2 s[38:39], s[0:1], 88", "v_lshrrev_b32 v1, 6, v0", "s_nop 0", "v_readfirstlane_b32 s3, v1"] if first else []) +
            ["s_waitcnt lgkmcnt(0)", "v_mov_b32 v30, s76", "v_mov_b32 v31, s78",
             "s_lshl_b32 s76, s2, 2", "s_add_u32 s76, s76, s3", "s_lshl_b32 s76, s76, 7", f"s_add_u32 s76, s76, {WS_STAMP:#x}", "v_mov_b32 v1, s76",
             "s_mov_b64 exec, 1", f"global_store_dwordx2 v1, v[30:31], s[38:39] offset:{8*i}", "s_mov_b64 exec, -1"]); dq.drain()
    A.raw(kernel_head(name))
    A.e(["s_cmp_ge_u32 s2, 256", f"s_cbranch_scc1 {L('end')}"])
    cpn = [0]
    def code_touch(vr, dst, raw=False):
        lab = L("pc%d" % cpn[0]); cpn[0] += 1
        pre = ["s_getpc_b64 s[76:77]", lab + ":", f"s_sub_u32 s76, s76, {lab}-{name}", "s_subb_u32 s77, s77, 0",
               "s_lshr_b32 s78, s2, 3", "s_lshl_b32 s78, s78, 11"] + ([f"v_and_b32 v{vr}, 0xc0, v0", f"v_lshlrev_b32 v{vr+1}, 3, v{vr}"] if raw else ["s_lshl_b32 s79, s3, 9", "s_add_u32 s78, s78, s79"]) + [
               f"v_and_b32 v{vr}, 7, v0", f"v_mul_u32_u24 v{vr}, 0x4080, v{vr}", f"v_and_b32 v{vr}, 0x10180, v{vr}"] + ([f"v_add_u32 v{vr}, v{vr+1}, v{vr}"] if raw else []) + [
               f"v_add_u32 v{vr}, s78, v{vr}", f"v_min_u32 v{vr}, {name}_codeend-{name}-4, v{vr}"]
        return (pre, f"global_load_dword {dst}, v{vr}, s[76:77]", ("C", 0), [])
    stamp(0)
    A.e(LOADARGS)
    if cpf:
        op = code_touch(30, "a238", raw=True); A.e(op[0]); A.e(op[1])
    A.e(["v_lshrrev_b32 v1, 6, v0", "v_and_b32 v0, 63, v0", "s_nop 0", "v_readfirstlane_b32 s3, v1",
         "s_and_b32 s10, s2, 7", "s_lshr_b32 s11, s2, 3", "s_and_b32 s4, s11, 7", "s_lshr_b32 s11, s11, 3",
         "s_lshl_b32 s5, s10, 2", "s_add_u32 s5, s5, s11",
         f"s_mul_i32 s14, s11, {rotm[1]}", f"s_mul_i32 s12, s4, {rotm[0]}", "s_add_u32 s14, s14, s12"])
    if ln:
        A.e(["v_and_b32 v40, 7, v0", "v_lshrrev_b32 v41, 3, v0", "s_lshl_b32 s12, s3, 5", "v_add_u32 v41, s12, v41",
             "v_lshlrev_b32 v42, 11, v40", "v_lshl_add_u32 v42, v41, 4, v42",
             "s_lshl_b32 s12, s4, 5", "s_add_u32 s91, s12, s5", "s_lshl_b32 s12, s91, 14",
             "s_waitcnt lgkmcnt(0)"])
        srd(A, 64, P_X, 2048 * 2048)
        for i in range(4):
            A.e(f"buffer_load_dwordx4 v[{48+4*i}:{51+4*i}], v42, s[64:67], s12 offen offset:{128*i}"); vq.issue(("L", 0))
        if tlb & 1:
            srd(A, 68, P_WS, 0x3000000)
            A.e(["v_lshlrev_b32 v39, 21, v0", "buffer_load_dword a237, v39, s[68:71], 0 offen"])
        srd(A, 60, P_DBG, 256)
        A.e(["v_mov_b32 v47, 0", "s_or_b32 s12, s2, s3", "s_cmp_lg_u32 s12, 0", f"s_cbranch_scc1 {L('nn')}",
             "s_memrealtime s[12:13]", "s_waitcnt lgkmcnt(0)", "s_or_b32 s12, s12, 1", "v_mov_b32 v38, s12", "v_mov_b32 v39, s13", "s_mov_b64 exec, 1",
             f"buffer_store_dwordx2 v[38:39], v47, s[60:63], 0 offen {WT}", "s_mov_b64 exec, -1"])
        A.label(L("nn"))
    A.e([
         "v_lshrrev_b32 v30, 4, v0", "v_and_b32 v31, 15, v0",
         "s_lshr_b32 s12, s3, 1", "s_lshl_b32 s12, s12, 1",
         "v_lshlrev_b32 v1, 2, v30", "v_or_b32 v1, s12, v1", "v_xor_b32 v31, v31, v1",
         "s_lshl_b32 s12, s3, 2", "v_add_u32 v30, s12, v30",
         "v_lshlrev_b32 v2, 13, v30", "s_lshl_b32 s12, s5, 8", "v_lshl_add_u32 v2, v31, 4, v2", "v_add_u32 v2, s12, v2",
         "v_lshrrev_b32 v1, 1, v31", "v_min_u32 v1, 6, v1", "s_and_b32 s13, s5, 1", "v_add_u32 v1, s13, v1",
         "v_cmp_eq_u32 vcc, 7, v1", "v_and_b32 v31, 1, v31", "s_nop 0", "v_cndmask_b32 v1, v1, 0, vcc",
         "v_lshl_or_b32 v1, v1, 1, v31",
         "v_mul_u32_u24 v3, 7168, v30", "s_mul_i32 s12, s5, 224", "v_add_u32 v3, s12, v3", "v_lshl_add_u32 v3, v1, 4, v3",
         "s_lshl_b32 s12, s4, 4", "s_lshl_b32 s13, s3, 2", "s_add_u32 s15, s12, s13",
         "s_lshl_b32 s12, s15, 15", "v_lshlrev_b32 v4, 4, v0", "v_add_u32 v5, s12, v4",
         "v_add_u32 v6, 0x8000, v5", "v_add_u32 v7, 0x10000, v5", "v_add_u32 v8, 0x18000, v5",
         "s_mul_i32 s95, s3, 3072", "s_add_u32 s95, s95, 16384", "s_mov_b32 s10, s95", "s_mov_b32 s72, 98304", "s_mov_b32 s11, 0", "s_mov_b32 s75, 0",
         "s_waitcnt lgkmcnt(0)"])
    srd(A, 44, P_WQ, 1024 * 4096 * 2)
    srd(A, 48, P_WG, 1024 * 3584 * 2 + 1024, -1024)
    srd(A, 52, P_WU, 1024 * 3584 * 2 + 2048, -2048)
    srd(A, 40, P_WS, SZ_XF, WS_XF)

    def acc(blk, j):
        if blk < 14: return v(32 + (blk * 4 + j) * 4, 4)
        return a(((blk - 14) * 4 + j) * 4, 4)
    Afr = lambda S, b, c, h=None: a(192 + ((22 * S + b) % 4) * 8 + c * 4, 4) if h is None else a(192 + ((22 * S + b) % 4) * 8 + c * 4 + 2 * h, 2)
    Bfr = lambda slot, j: a(128 + slot * 16 + j * 4, 4)
    if lead:
        NEXTK = ["s_sub_u32 s12, s11, s14", "s_and_b32 s12, s12, 7", f"s_cmp_lt_u32 s11, {32-lead}", "s_cselect_b32 s12, s12, 1",
                 f"s_add_u32 s13, s11, {lead}", "s_cmp_eq_u32 s12, 0", "s_cselect_b32 s12, s13, s75", "s_subb_u32 s75, s75, -1",
                 f"s_sub_u32 s13, s75, {lead}", "s_cselect_b32 s6, 1, 0", "s_sub_u32 s13, s13, s14", "s_and_b32 s13, s13, 7", "s_or_b32 s13, s13, s6",
                 "s_cmp_eq_u32 s13, 0", "s_addc_u32 s75, s75, 0",
                 "s_add_u32 s11, s11, 1", "s_lshl_b32 s6, s12, 18", "s_mul_i32 s7, s12, 229376", "s_lshl_b32 s8, s12, 10"]
    else:
        NEXTK = ([] if rot0 == 7 else ["s_cmp_lt_u32 s11, 8", f"s_cselect_b32 s13, {rot0}, 7", "s_and_b32 s13, s13, s14"]) + ["s_add_u32 s12, s11, s14" if rot0 == 7 else "s_add_u32 s12, s11, s13", "s_and_b32 s12, s12, 7", "s_and_b32 s13, s11, 0x18", "s_or_b32 s12, s12, s13",
                 "s_add_u32 s11, s11, 1", "s_lshl_b32 s6, s12, 18", "s_mul_i32 s7, s12, 229376", "s_lshl_b32 s8, s12, 10"]
    def d_ops(p, h, static=False):
        base = (p % 2) * 24576 + h * 12288 + ((p // 2) * 49152 if static else 0)
        return [((NEXTK + [f"s_mov_b32 s{88 + p % 2}, s8"] if h == 0 else []) + [f"s_add_u32 m0, s10, {base}"], "buffer_load_dwordx4 v2, s[44:47], s6 offen lds", ("D", p, h), ["s_add_u32 s6, s6, 131072"] if h == 0 else []),
                ([], "buffer_load_dwordx4 v3, s[48:51], s7 offen offset:1024 lds", ("D", p, h), []),
                ([], "buffer_load_dwordx4 v3, s[52:55], s7 offen offset:2048 lds", ("D", p, h), ["s_add_u32 s7, s7, 114688"] if h == 0 else [])]
    def x_ops(p):
        return [([], f"buffer_load_dwordx4 {Bfr(p % 4, j)}, v{5+j}, s[40:43], s{88 + p % 2} offen {apol if xpol is None else xpol}", ("X", p), []) for j in range(4)]
    def rd_ops(S, blk):
        part, cb = (1 + (blk & 1), blk >> 1) if blk < 14 else (0, blk - 14)
        reg = (9 if S % 2 == 0 else 17) + cb
        return [(f"ds_read_b64_tr_b16 {Afr(S,blk,c,h)}, v{reg} offset:{c*24576 + part*1024 + h*3072}", ("A", S, blk)) for c in range(2) for h in range(2)]
    def emit_vm(op, E, nop=False):
        pre, ins, tag, post = op
        E(pre)
        if pre and nop: E("s_nop 0")
        E(ins); vq.issue(tag); E(post)
    def kv_ops(kind, P):
        reg = 0 if kind == "K" else 65536
        sr = "s[64:67]" if kind == "K" else "s[68:71]"
        ops = []
        for i in range(4):
            ops.append(([f"s_add_u32 m0, s92, {reg + (P % 4) * 16384}", f"s_add_u32 s94, s93, {P * 16384}"] if i == 0 else [],
                        f"buffer_load_dwordx4 v{25+i if kind == 'K' else 29}, {sr}, s94 offen offset:{i*1024} lds", (kind, P), []))
        return ops
    def pf_op(k):
        return [([], f"buffer_load_dword a239, v31, {'s[72:75], s96' if k == 0 else 's[80:83], s97'} offen", ("P", 0), [f"s_add_u32 s{96+k}, s{96+k}, 1024"])]
    for op in d_ops(0, 0, True) + d_ops(0, 1, True): emit_vm(op, A.e, True)
    srd(A, 84, P_WS, FL_SZ, WS_FLAG)
    A.e(["s_lshr_b32 s12, s91, 1", "s_lshl_b32 s12, s12, 15", "s_and_b32 s13, s91, 1", "s_lshl_b32 s13, s13, 7", "s_add_u32 s90, s12, s13",
         "v_lshlrev_b32 v43, 8, v41", "v_lshl_add_u32 v43, v40, 4, v43",
         "v_lshlrev_b32 v44, 5, v40", "s_lshl_b32 s12, s3, 3", "v_add_u32 v45, s12, v44",
         "s_lshl_b32 s91, s91, 5", f"s_add_u32 s91, s91, {FL_L}"])
    A.e([f"v_mov_b32 v{i}, 0" for i in range(132, 144)])
    A.e(f"buffer_load_dwordx2 v[128:129], v47, s[60:63], 0 offen {WT}"); vq.issue(("N", 0))
    A.e([mfma32(a(i, 16), v(132, 4), v(132, 4), "0") for i in range(0, 128, 16)] + [mfma32(v(i, 16), v(132, 4), v(132, 4), "0") for i in range(144, 256, 16)])
    stamp(1, 1)
    A.e(vq.need(("L", 0)))
    stamp(2, 1)
    X0 = 64
    for i in range(16):
        A.e([f"v_lshlrev_b32 v{X0+2*i}, 16, v{48+i}", f"v_and_b32 v{X0+1+2*i}, 0xffff0000, v{48+i}"])
    def lanesum(src):
        A.e(["s_nop 1", f"v_add_f32_dpp v{src}, v{src}, v{src} row_ror:8 row_mask:0xf bank_mask:0xf",
             f"v_mov_b32 v46, v{src}", "s_nop 1", f"v_permlane16_swap_b32 v46, v{src}", f"v_add_f32 v{src}, v46, v{src}",
             f"v_mov_b32 v46, v{src}", "s_nop 1", f"v_permlane32_swap_b32 v46, v{src}", f"v_add_f32 v{src}, v46, v{src}"])
    A.e([f"v_pk_add_f32 v[32:33], v[{X0}:{X0+1}], v[{X0+2}:{X0+3}]", f"v_pk_add_f32 v[34:35], v[{X0+4}:{X0+5}], v[{X0+6}:{X0+7}]"])
    A.e([f"v_pk_add_f32 v[{32+2*(i%2)}:{33+2*(i%2)}], v[{32+2*(i%2)}:{33+2*(i%2)}], v[{X0+2*i}:{X0+2*i+1}]" for i in range(4, 16)])
    A.e(["v_pk_add_f32 v[32:33], v[32:33], v[34:35]", "v_add_f32 v32, v32, v33"])
    lanesum(32)
    A.e(["v_mul_f32 v32, 0x3b800000, v32", "v_mov_b32 v34, v32", "v_mov_b32 v35, v32"])
    for i in range(16):
        A.e(f"v_pk_add_f32 v[{96+2*i}:{97+2*i}], v[{X0+2*i}:{X0+2*i+1}], v[34:35] neg_lo:[0,1] neg_hi:[0,1]")
    A.e(["v_pk_mul_f32 v[34:35], v[96:97], v[96:97]", "v_pk_mul_f32 v[36:37], v[98:99], v[98:99]"])
    for i in range(2, 16):
        r_ = 34 + 2 * (i % 2)
        A.e(f"v_pk_fma_f32 v[{r_}:{r_+1}], v[{96+2*i}:{97+2*i}], v[{96+2*i}:{97+2*i}], v[{r_}:{r_+1}]")
    A.e(["v_pk_add_f32 v[34:35], v[34:35], v[36:37]", "v_add_f32 v33, v34, v35"])
    lanesum(33)
    A.e(["ds_write_b64 v45, v[32:33]", "s_waitcnt lgkmcnt(0)", "s_barrier",
         "ds_read_b128 v[96:99], v44", "ds_read_b128 v[100:103], v44 offset:16", "s_waitcnt lgkmcnt(0)",
         "v_add_f32 v32, v96, v98", "v_add_f32 v33, v100, v102", "v_add_f32 v34, v97, v99", "v_add_f32 v35, v101, v103",
         "v_add_f32 v32, v32, v33", "v_add_f32 v34, v34, v35", "v_mul_f32 v32, 0.25, v32" if False else "v_mul_f32 v32, 0x3e800000, v32",
         "v_sub_f32 v96, v96, v32", "v_sub_f32 v98, v98, v32", "v_sub_f32 v100, v100, v32", "v_sub_f32 v102, v102, v32",
         "v_mul_f32 v35, v96, v96", "v_fmac_f32 v35, v98, v98", "v_fmac_f32 v35, v100, v100", "v_fmac_f32 v35, v102, v102",
         "v_mul_f32 v34, 0x3a800000, v34", "v_fmac_f32 v34, 0x3e800000, v35"])
    A.e(["v_cvt_pk_bf16_f32 v34, v34, v32", "v_and_b32 v32, 0xffff0000, v34", "v_lshlrev_b32 v34, 16, v34",
         "v_add_f32 v34, 0x3727c5ac, v34", "v_cvt_pk_bf16_f32 v34, v34, v34", "v_lshlrev_b32 v34, 16, v34",
         "v_sqrt_f32 v34, v34", "v_mov_b32 v33, v32", "v_cvt_pk_bf16_f32 v34, v34, v34", "v_lshlrev_b32 v34, 16, v34",
         "v_rcp_f32 v34, v34", "s_nop 0", "v_mov_b32 v35, v34"])
    for q4 in range(4):
        for i in range(4 * q4, 4 * q4 + 4):
            x = X0 + 2 * i
            A.e([f"v_pk_add_f32 v[{x}:{x+1}], v[{x}:{x+1}], v[32:33] neg_lo:[0,1] neg_hi:[0,1]",
                 f"v_cvt_pk_bf16_f32 v{48+i}, v{x}, v{x+1}",
                 f"v_lshlrev_b32 v{x}, 16, v{48+i}", f"v_and_b32 v{x+1}, 0xffff0000, v{48+i}",
                 f"v_pk_mul_f32 v[{x}:{x+1}], v[{x}:{x+1}], v[34:35]",
                 f"v_cvt_pk_bf16_f32 v{48+i}, v{x}, v{x+1}"])
        A.e(f"buffer_store_dwordx4 v[{48+4*q4}:{51+4*q4}], v43, s[40:43], s90 offen offset:{2048*(q4%2)} {WT}"); vq.issue(("S", 0))
        if q4 == 1: A.e("s_add_u32 s90, s90, 4096")
    stamp(3, 1)
    A.e(vq.need(("N", 0)))
    A.e(SPINB)
    A.label(L("pollN"))
    A.e(["v_readfirstlane_b32 s98, v128", "v_readfirstlane_b32 s99, v129", "s_cmp_lg_u32 s98, 0", f"s_cbranch_scc1 {L('gotN')}",
         "s_sub_u32 s12, s12, 1", f"s_cbranch_scc1 {L('gotN')}",
         f"buffer_load_dwordx2 v[128:129], v47, s[60:63], 0 offen {WT}", "s_waitcnt vmcnt(0)", f"s_branch {L('pollN')}"])
    A.label(L("gotN"))
    A.e([mfma32(v(i, 16), v(132, 4), v(132, 4), "0") for i in range(64, 128, 16)])
    A.e(vq.drain()); A.e("s_barrier")
    stamp(4, 1)
    A.e(["s_cmp_lg_u32 s3, 0", f"s_cbranch_scc1 {L('nf')}", "s_mov_b64 exec, 1",
         f"buffer_store_dwordx2 v[128:129], v47, s[84:87], s91 offen {WT}", "s_mov_b64 exec, -1"])
    A.label(L("nf"))
    for op in d_ops(1, 0, True) + d_ops(1, 1, True): emit_vm(op, A.e, True)
    A.e("s_mov_b32 s90, s88")
    for op in d_ops(2, 0, True) + d_ops(2, 1, True): emit_vm(op, A.e, True)
    if tlb & 2:
        srd(A, 68, P_OUT, 2048 * 2048)
        A.e(["v_lshlrev_b32 v1, 21, v0"] + [f"buffer_load_dword a237, v1, s[{r}:{r+3}], 0 offen offset:2048" for r in (44, 48, 52, 68)])
    A.e([mfma32(v(i, 16), v(132, 4), v(132, 4), "0") for i in (32, 48)])
    A.e(["v_lshrrev_b32 v1, 4, v0", "v_mul_u32_u24 v30, 6144, v1", "v_and_b32 v1, 1, v1",
         "v_bfe_u32 v31, v0, 2, 2", "v_lshl_add_u32 v30, v31, 8, v30", "v_lshl_or_b32 v31, v31, 1, v1",
         "v_and_b32 v1, 3, v0", "v_lshl_add_u32 v30, v1, 3, v30", "v_add_u32 v30, 0x4000, v30"])
    for cb in range(8):
        A.e([f"v_xor_b32 v1, {cb}, v31", f"v_lshl_add_u32 v{9+cb}, v1, 5, v30", f"v_add_u32 v{17+cb}, 98304, v{9+cb}"])
    srd(A, 64, P_K, 4 * 2048 * 256)
    srd(A, 68, P_V, 4 * 2048 * 256)
    srd(A, 56, P_WS, SZ_HF, WS_HF)
    srd(A, 60, P_WS, (G_BASE + G_SF + 0x400000 - WS_OF) if sen else SZ_OF, WS_OF)
    A.e(["v_lshrrev_b32 v30, 4, v0", "v_and_b32 v31, 15, v0", "v_xor_b32 v1, v31, v30"])
    for i in range(4):
        A.e([f"v_xor_b32 v{25+i}, {4*i}, v1", f"v_lshlrev_b32 v{25+i}, 4, v{25+i}", f"v_lshl_add_u32 v{25+i}, v30, 8, v{25+i}"])
    A.e(["v_lshlrev_b32 v1, 2, v30", "v_xor_b32 v1, v31, v1", "v_lshlrev_b32 v1, 4, v1", "v_lshl_add_u32 v29, v30, 8, v1",
         "s_lshr_b32 s12, s5, 3", "s_lshl_b32 s12, s12, 19", "s_lshl_b32 s92, s3, 12",
         "s_add_u32 s93, s12, s92", f"s_add_u32 s93, s93, {1536*256}",
         "s_mov_b32 s9, 7"])
    if pfG in (1, 2):
        srd(A, 72, P_WO, 4096 * 2048); srd(A, 80, P_WD, 3584 * 2048)
        A.e(["s_lshl_b32 s12, s2, 2", "s_add_u32 s12, s12, s3", "s_lshl_b32 s96, s12, 13", "s_mul_i32 s97, s12, 7168",
             f"v_and_b32 v31, {7 if pfs == 7 else 3}, v0", f"v_lshlrev_b32 v31, {pfs}, v31"])
    stamp(5, 1)
    A.e(["s_cmp_lg_u32 s3, 0", f"s_cbranch_scc1 {L('gotL')}",
         "v_and_b32 v1, 31, v0", "v_lshlrev_b32 v1, 5, v1", "s_lshl_b32 s13, s4, 10", f"s_add_u32 s13, s13, {FL_L}", SPINB])
    A.label(L("pollL"))
    A.e([f"buffer_load_dwordx2 v[128:129], v1, s[84:87], s13 offen {WT}", "s_waitcnt vmcnt(0)",
         "s_sub_u32 s12, s12, 1", f"s_cbranch_scc1 {L('gotL')}",
         "v_cmp_ne_u64 vcc, s[98:99], v[128:129]", f"s_cbranch_vccz {L('gotL')}", f"s_sleep {psleep}", f"s_branch {L('pollL')}"])
    A.label(L("gotL"))
    A.e(vq.need(("D", 1, 1))); A.e("s_barrier")
    stamp(6, 1)
    for op in x_ops(0): A.e(op[1].replace("s88 offen", "s90 offen")); vq.issue(op[2])
    for op in x_ops(1): A.e(op[1]); vq.issue(op[2])
    for op in d_ops(3, 0, True) + d_ops(3, 1, True): emit_vm(op, A.e, True)
    for blk in range(4):
        for ins, tg in rd_ops(0, blk): A.e(ins); dq.issue(tg)
    A.e([f"v_mov_b32 v{i}, 0" for i in (128, 129, 130, 131)])
    A.e(vq.need(("X", 1)))
    stamp(1)

    BARM = 151
    SLOT = ["s_add_u32 s10, s72, s95", "s_add_u32 s73, s72, 98304", ["s_cmp_ge_u32 s73, 147456", "s_cselect_b32 s74, 147456, 0"], "s_sub_u32 s73, 98304, s74",
            "s_add_u32 s72, s72, 49152", ["s_cmp_ge_u32 s72, 147456", "s_cselect_b32 s72, 0, s72"]]
    def sstep(S, E, xs=True, ds=None, after=(), last=False):
        xo = x_ops(2 * S + 2) + x_ops(2 * S + 3) if xs else []
        do = (d_ops(2 * S + 4, 0) + d_ops(2 * S + 4, 1) + d_ops(2 * S + 5, 0) + d_ops(2 * S + 5, 1)) if ds is None else list(ds)
        c1 = [m for m in range(2, 148) if m % 4 == 2]
        px = c1[:len(xo)]; rest = c1[len(xo) + 2:]
        pd = [rest[(i * len(rest)) // len(do)] for i in range(len(do))] if do else []
        c2 = [m for m in range(BARM + 2, 176, 2)]
        sched = list(zip(px, xo)) + list(zip(pd, do)) + list(zip(c2, after))
        tailops = list(after)[len(c2):]
        misc = [] if last else list(SLOT) + [f"v_add_u32 v{(17 if S % 2 == 0 else 9) + cb}, s73, v{(17 if S % 2 == 0 else 9) + cb}" for cb in range(8)]
        pend = []; post = []; vi = 0
        pres = [list(op[0]) for _, op in sched]
        for m in range(176):
            b, j, c = m // 8, (m % 8) // 2, m % 2
            if m == 0: E(vq.need(("X", 2 * S + 1)))
            if m % 8 == 0: E(dq.need(("A", S, b)))
            E(mfma16(acc(b, j), Afr(S, b, c), Bfr((2 * S + c) % 4, j)))
            if m == BARM:
                E(vq.need(("D", 2 * S + 3, 1))); E(dq.drain()); E("s_barrier")
            if m % 8 == 7:
                if b + 4 < 22: pend += rd_ops(S, b + 4)
                elif not last: pend += rd_ops(S + 1, b + 4 - 22)
            if vi < len(sched) and m == sched[vi][0]:
                E(pres[vi]);
                if pres[vi]: E("s_nop 0")
                op = sched[vi][1]
                E(op[1]); vq.issue(op[2]); post += op[3]; vi += 1
            else:
                used = 0
                if pend:
                    ins, tag = pend.pop(0); E(ins); dq.issue(tag); used += 1
                while misc and used < 2:
                    x = misc.pop(0); E(x); used += 1 if isinstance(x, str) else 2
                while post and used < 2: E(post.pop(0)); used += 1
                if vi < len(sched) and not misc and not post and vi >= len(xo) and not (sched[vi][0] > BARM and m < BARM):
                    while pres[vi] and used < 2:
                        x = pres[vi].pop(0)
                        if x.startswith("s_cmp"): x = [x, pres[vi].pop(0)]; used += 1
                        E(x); used += 1
        for ins, tag in pend: E(ins); dq.issue(tag)
        E(post)
        for op in tailops: emit_vm(op, E, True)
    reb = lambda q: [((t[0], t[1] - (2 if t[0] == "A" else 4)) + tuple(t[2:])) for t in q]
    for S in range(2): sstep(S, lambda x: None)
    vq.q = reb(vq.q); dq.q = reb(dq.q)
    A.raw(".p2align 6")
    A.label(L("loop"))
    for S in range(2): sstep(S, A.e)
    A.e(["s_sub_u32 s9, s9, 1", "s_cmp_lg_u32 s9, 0", f"s_cbranch_scc1 {L('loop')}"])
    vq.q = reb(vq.q); dq.q = reb(dq.q)
    if cpf >= 2: emit_vm(code_touch(30, "a238"), A.e)
    sstep(0, A.e, ds=kv_ops("K", 0) + kv_ops("V", 0) + kv_ops("V", 1) + kv_ops("V", 2))
    sstep(1, A.e, xs=False, ds=kv_ops("V", 3), after=kv_ops("K", 1) + kv_ops("K", 2) + kv_ops("K", 3), last=True)
    stamp(2)

    HP = "" if hwb else WT
    A.e(["s_mul_i32 s6, s15, 114688", "s_mul_i32 s12, s5, 7", "s_add_u32 s12, s12, 1", "s_lshr_b32 s12, s12, 1", "s_lshl_b32 s12, s12, 10",
         "s_add_u32 s6, s6, s12",
         "s_and_b32 s13, s5, 1", "s_cmp_eq_u32 s13, 0", "s_mov_b32 s13, 0xfffffc08", "s_cselect_b32 s13, 0xc00, s13",
         "s_add_u32 s7, s6, s13",
         "s_mov_b32 s8, 0xbfb8aa3b", "s_mov_b32 s9, 0xbfb8aa3b"])
    def hblock(b, j, dst):
        g = 32 + ((2 * b) * 4 + j) * 4; u = g + 16
        out = []
        out += [f"v_pk_mul_f32 v[{g+r_}:{g+r_+1}], v[{g+r_}:{g+r_+1}], s[8:9]" for r_ in (0, 2)]
        out += [f"v_exp_f32 v{g+r_}, v{g+r_}" for r_ in range(4)]
        out += [f"v_pk_add_f32 v[{g+r_}:{g+r_+1}], v[{g+r_}:{g+r_+1}], 1.0 op_sel_hi:[1,0]" for r_ in (0, 2)]
        out += [f"v_rcp_f32 v{g+r_}, v{g+r_}" for r_ in range(4)]
        out += [f"v_pk_mul_f32 v[{g+r_}:{g+r_+1}], v[{g+r_}:{g+r_+1}], v[{u+r_}:{u+r_+1}]" for r_ in (0, 2)]
        out += [f"v_cvt_pk_bf16_f32 v{dst}, v{g}, v{g+1}", f"v_cvt_pk_bf16_f32 v{dst+1}, v{g+2}, v{g+3}"]
        return out
    for i in range(2):
        for j in range(4):
            dst = 32 + ((4 * i + 1) * 4 + j) * 4
            A.e(hblock(2 * i, j, dst)); A.e(hblock(2 * i + 1, j, dst + 2))
            A.e([f"s_add_u32 s13, s6, {j*114688}", f"buffer_store_dwordx4 {v(dst,4)}, v4, s[56:59], s13 offen offset:{i*1024} {HP}"]); vq.issue(("H", 0))
    hrest = []; hdef = []
    if not hdf:
        for j in range(4):
            dst = 32 + (9 * 4 + j) * 4
            A.e(hblock(4, j, dst) + hblock(5, j, dst + 2) + [f"s_add_u32 s13, s6, {j*114688}", f"buffer_store_dwordx4 {v(dst,4)}, v4, s[56:59], s13 offen offset:2048 {HP}"]); vq.issue(("H", 0))
            dst = 32 + (13 * 4 + j) * 4
            A.e(hblock(6, j, dst) + [f"s_add_u32 s13, s7, {j*114688}", f"buffer_store_dwordx2 {v(dst,2)}, v4, s[56:59], s13 offen {HP}"]); vq.issue(("H", 0))
    for j in range(4 if hdf else 0):
        dst = 32 + (9 * 4 + j) * 4
        if hdf == 2:
            hrest += hblock(4, j, dst) + hblock(5, j, dst + 2) + [f"s_add_u32 s13, s6, {j*114688}", f"buffer_store_dwordx4 {v(dst,4)}, v4, s[56:59], s13 offen offset:2048 {HP}"]
            continue
        hrest += hblock(4, j, dst) + hblock(5, j, dst + 2) + [f"v_accvgpr_write_b32 a{192+4*j+k}, v{dst+k}" for k in range(4)]
        hdef.append(([f"s_add_u32 s90, s14, {j*114688}"], f"buffer_store_dwordx4 {a(192+4*j,4)}, v4, s[56:59], s90 offen offset:2048 {HP}", ("H", 0), []))
    for j in range(4 if hdf else 0):
        dst = 32 + (13 * 4 + j) * 4
        if hdf == 2:
            hrest += hblock(6, j, dst) + [f"s_add_u32 s13, s7, {j*114688}", f"buffer_store_dwordx2 {v(dst,2)}, v4, s[56:59], s13 offen {HP}"]
            continue
        hrest += hblock(6, j, dst) + [f"v_accvgpr_write_b32 a{208+2*j+k}, v{dst+k}" for k in range(2)]
        hdef.append(([f"s_add_u32 s90, s4, {j*114688}"], f"buffer_store_dwordx2 {a(208+2*j,2)}, v4, s[56:59], s90 offen {HP}", ("H", 0), []))
    QF = lambda mu, t: 32 + (mu * 8 + t) * 4
    SB = lambda b, mu: 96 + (b * 2 + mu) * 16
    NM = lambda mu: 160 + mu * 16
    PB = lambda b, mu: 192 + (b * 2 + mu) * 8
    EB = 224; VL = 232; VTS = 234; VT = 236
    A.e([f"s_mov_b32 s12, {QSCALE:#x}", f"s_mov_b32 s13, {QSCALE:#x}", f"s_mov_b32 s95, {thr:#x}"])
    for t in range(8):
        for mu in range(2):
            tmp = 96 + ((t * 2 + mu) % 4) * 8
            for x in range(2):
                src = (t * 4 + 2 * mu + x) * 4
                A.e([f"v_accvgpr_read_b32 v{tmp+4*x+r_}, a{src+r_}" for r_ in range(4)])
            A.e([f"v_pk_mul_f32 v[{tmp+2*k}:{tmp+2*k+1}], v[{tmp+2*k}:{tmp+2*k+1}], s[12:13]" for k in range(4)])
            q = QF(mu, t)
            A.e([f"v_cvt_pk_bf16_f32 v{q+k}, v{tmp+2*k}, v{tmp+2*k+1}" for k in range(4)])
            if (t * 2 + mu) > 0:
                pq = QF(*prev)
                A.e([f"v_permlane16_swap_b32 v{pq}, v{pq+2}", f"v_permlane16_swap_b32 v{pq+1}, v{pq+3}"])
            prev = (mu, t)
    A.e(["v_and_b32 v30, 31, v0", "v_lshrrev_b32 v31, 5, v0", "v_and_b32 v1, 15, v0", "v_xor_b32 v1, v1, v31",
         "v_lshlrev_b32 v30, 8, v30"])
    pq = QF(*prev)
    A.e([f"v_permlane16_swap_b32 v{pq}, v{pq+2}", f"v_permlane16_swap_b32 v{pq+1}, v{pq+3}"])
    for t in range(8):
        A.e([f"v_xor_b32 v{9+t}, {2*t}, v1", f"v_lshl_add_u32 v{9+t}, v{9+t}, 4, v30"])
    A.e(["v_bfe_u32 v1, v0, 2, 2", "v_lshlrev_b32 v30, 10, v31", "v_lshl_add_u32 v30, v1, 8, v30",
         "v_bfe_u32 v22, v0, 4, 1", "v_lshl_add_u32 v30, v22, 5, v30", "v_and_b32 v23, 3, v0", "v_lshl_add_u32 v30, v23, 3, v30",
         "v_add_u32 v30, 0x10000, v30"])
    for i in range(4):
        A.e([f"v_xor_b32 v23, {i}, v1", f"v_lshl_add_u32 v{17+i}, v23, 6, v30"])
    A.e(["v_lshlrev_b32 v21, 17, v22", "v_lshl_add_u32 v21, v31, 8, v21", "v_and_b32 v1, 15, v0", "v_lshl_add_u32 v21, v1, 4, v21"])
    Kf = lambda t: a(128 + t * 4, 4)
    Vf = lambda i, tp, h=None: a(160 + (i * 2 + tp) * 4, 4) if h is None else a(160 + (i * 2 + tp) * 4 + 2 * h, 2)
    Oacc = lambda i, mu: a((i * 2 + mu) * 16, 16)
    def k_reads(T): return [(f"ds_read_b128 {Kf(t)}, v{9+t} offset:{(T % 8) * 8192}", ("K", T, t)) for t in range(8)]
    def v_reads(T):
        return [(f"ds_read_b64_tr_b16 {Vf(i,tp,h)}, v{17+i} offset:{(T % 8) * 8192 + tp * 4096 + h * 2048}", ("V", T, i, tp))
                for i in range(4) for tp in range(2) for h in range(2)]
    def qk(T, c0):
        return [(mfma32(v(SB(T & 1, mu), 16), Kf(t), v(QF(mu, t), 4), (c0(mu) if t == 0 else None)), ("K", T, t)) for t in range(8) for mu in range(2)]
    def pv(T):
        return [(mfma32(Oacc(i, mu), Vf(i, tp), v(PB(T & 1, mu) + 4 * tp, 4), ("0" if (T == 0 and tp == 0) else None)), ("V", T, i, tp))
                for i in range(4) for tp in range(2) for mu in range(2)]
    A.e(vq.need(("K", 3))); A.e("s_barrier")
    dq.slack = 15
    for ins, tag in k_reads(0): A.e(ins); dq.issue(tag)
    A.e(hrest[:12]); hrest = hrest[12:]
    for ins, tag in qk(0, lambda mu: "0"):
        A.e(dq.need(tag, 4)); A.e(ins); A.e(hrest[:4]); hrest = hrest[4:]
    for ins, tag in k_reads(1): A.e(ins); dq.issue(tag)
    A.e(hrest)
    if hdf == 2:
        for _ in range(8): vq.issue(("H", 0))
    B = Asm()
    B.e((["s_and_b32 s12, s2, 7", "s_lshr_b32 s72, s12, 2", "s_and_b32 s13, s12, 1", "s_lshl_b32 s73, s4, 1", "s_add_u32 s73, s73, s13",
         "s_bfe_u32 s13, s12, 0x10001"] if kmap == 0 else
        ["s_and_b32 s72, s2, 1", "s_bfe_u32 s13, s2, 0x10001", "s_lshl_b32 s73, s4, 1", "s_add_u32 s73, s73, s13",
         "s_bfe_u32 s13, s2, 0x10002"]) + ["s_lshl_b32 s13, s13, 2", "s_lshr_b32 s74, s2, 6", "s_add_u32 s74, s74, s13",
         "s_lshr_b32 s12, s3, 1", "s_and_b32 s13, s3, 1",
         "s_cmp_eq_u32 s72, 0",
         f"s_cselect_b32 s8, {8*N1S}, {8*N1Y}", f"s_cselect_b32 s9, 0, {16*N1S}", "s_mul_i32 s8, s8, s12", "s_add_u32 s8, s8, s9",
         "s_cmp_eq_u32 s72, 0",
         f"s_cselect_b32 s75, {SS}, {64-SS}", f"s_cselect_b32 s96, 0, {2*SS}", "s_mul_i32 s75, s75, s12", "s_add_u32 s75, s75, s96",
         "s_lshl_b32 s9, s8, 10", "s_lshl_b32 s8, s8, 16",
         "s_lshl_b32 s96, s75, 10", "s_lshl_b32 s75, s75, 16",
         "s_lshl_b32 s13, s13, 12",
         "s_lshl_b32 s10, s12, 17", "s_add_u32 s10, s10, s13",
         "s_lshl_b32 s11, s12, 16", "s_add_u32 s11, s11, 0x8000", "s_add_u32 s11, s11, s13",
         "v_lshrrev_b32 v30, 4, v0", "v_and_b32 v31, 15, v0", "v_lshlrev_b32 v1, 2, v30", "v_xor_b32 v31, v31, v1",
         "s_lshl_b32 s13, s13, 3", "s_lshl_b32 s97, s74, 8", "s_add_u32 s97, s97, s13",
         "v_lshlrev_b32 v30, 11, v30", "v_add_u32 v30, s97, v30",
         "v_lshl_add_u32 v246, v31, 4, v30", "v_xor_b32 v31, 2, v31", "v_lshl_add_u32 v247, v31, 4, v30", "v_add_u32 v247, 7168, v247",
         "v_add_u32 v248, 14336, v246", "v_add_u32 v249, 14336, v247", "v_mov_b32 v250, s98", "v_mov_b32 v251, s99", "v_mov_b32 v252, 0",
         "s_lshl_b32 s97, s73, 3", "s_and_b32 s13, s3, 1", "s_lshl_b32 s13, s13, 2", "s_add_u32 s97, s97, s13", "s_lshl_b32 s12, s12, 1"])
    for jj in range(4):
        B.e([f"s_xor_b32 s13, s12, {jj}", "s_add_u32 s13, s13, s97", "s_mul_i32 s90, s13, 114688", f"v_add_u32 v{5+jj}, s90, v4",
             "s_lshl_b32 s90, s13, 17", f"v_add_u32 v{242+jj}, s90, v4"])
    B.e(["v_lshlrev_b32 v24, 5, v0", "v_and_b32 v24, 0x3e0, v24",
         "s_lshl_b32 s12, s4, 10", f"s_add_u32 s91, s12, {FL_H}", f"s_add_u32 s97, s12, {FL_O}",
         "s_lshl_b32 s13, s5, 5", "s_add_u32 s88, s91, s13", "s_add_u32 s89, s97, s13"])
    srd(B, 48, P_WS, FL_SZ, WS_FLAG)
    srd(B, 44, P_WD, 3584 * 2048)
    srd(B, 40, P_WS, SZ_HF, WS_HF)
    for i in range(8):
        B.e([f"s_add_u32 s13, s14, {i}", "s_and_b32 s13, s13, 7", f"s_lshl_b32 s{80+i}, s13, 10"])
    if xe:
        srd(B, 56, P_X, 2048 * 2048)
        B.e(["s_lshl_b32 s90, s73, 7", "s_and_b32 s12, s3, 1", "s_lshl_b32 s12, s12, 6", "s_add_u32 s90, s90, s12",
             "s_lshr_b32 s12, s3, 1", "s_lshl_b32 s12, s12, 5", "s_add_u32 s90, s90, s12",
             "s_lshl_b32 s90, s90, 11", "s_lshl_b32 s12, s74, 8", "s_add_u32 s90, s90, s12",
             "s_lshl_b32 s4, s3, 13", "s_add_u32 s4, s4, 0x20000", "s_add_u32 s14, s90, 0x8000",
             "v_lshrrev_b32 v30, 4, v0", "v_and_b32 v1, 15, v0", "v_xor_b32 v1, v1, v30", "v_lshlrev_b32 v30, 11, v30"])
        for i, r_ in ((1, 253), (2, 254), (3, 255), (0, 1)):
            B.e([f"v_xor_b32 v{r_}, {4*i}, v1", f"v_lshl_add_u32 v{r_}, v{r_}, 4, v30"] + ([f"v_add_u32 v{r_}, {7168*i}, v{r_}"] if i else []))
    late = []
    for l_ in [x.strip() for x in B.lines]:
        if l_.startswith(("s_cselect", "s_addc", "s_subb")): late[-1] = (late[-1][0] + [l_], late[-1][1] + 4)
        else: late.append(([l_], 4))
    if not lset:
        for x, c in late: A.e(x)
        late = []
    WV = 246
    def w_ops(t, half=False):
        slot = t % 8
        ops = []
        rot_ = [f"s_and_b32 s12, s{80+slot}, 0xc00", "s_lshl_b32 s12, s12, 6"] if half else [f"s_lshl_b32 s12, s{80+slot}, 6"]
        for i in range(4):
            ops.append(([f"s_add_u32 m0, s{10 if slot < 4 else 11}, {(slot%4)*8192}"] + rot_ + ["s_add_u32 s12, s12, s8"] if i == 0 else [],
                        f"buffer_load_dwordx4 v{WV+i}, s[44:47], s12 offen offset:{i*1024} lds", ("W", t),
                        ["s_add_u32 s8, s8, 0x80000"] if (i == 3 and slot == 7) else []))
        return ops
    BR = [192, 208, 0, 16, 32, 48, 64, 80] if xe else [192, 208, 224, 0, 16, 32, 48, 64]
    facc = lambda cb, jj: v(32 + (cb * 4 + jj) * 4, 4)
    FA = lambda cb, c, h=None: a(128 + (c * 8 + cb) * 4, 4) if h is None else a(128 + (c * 8 + cb) * 4 + 2 * h, 2)
    FB = lambda slot, jj: a(BR[slot] + jj * 4, 4)
    def a_ops(t, half=False):
        slot = t % 8
        return [(([f"s_and_b32 s13, s{80+slot}, 0xc00", "s_add_u32 s13, s13, s9"] if half else [f"s_add_u32 s13, s{80+slot}, s9"]) if jj == 0 else [],
                 f"buffer_load_dwordx4 {FB(slot,jj)}, v{5+jj}, s[40:43], s13 offen {apol}", ("X", t),
                 ["s_add_u32 s9, s9, 0x2000"] if (jj == 3 and slot == 7) else []) for jj in range(4)]
    spins = []
    def check_flags(tag, reg, addr, off):
        A.e([f"v_cmp_ne_u64 vcc, s[98:99], v[{reg}:{reg+1}]", f"s_cbranch_vccnz {L('spin' + tag)}"])
        A.label(L("ok" + tag))
        spins.append((tag, reg, addr, off))

    if hdf == 1: A.e(["s_mov_b32 s14, s6", "s_mov_b32 s4, s7"]); assert not lset
    A.e(["v_mov_b32 v232, 0", "v_mov_b32 v233, 0"] + (["s_nop 2"] if (lset and not hdf) else []))
    def rowmax(S, dst, tmp):
        out = [f"v_max3_f32 v{dst}, v{S}, v{S+1}, v{S+2}"]
        for k in range(3, 15, 2): out.append(f"v_max3_f32 v{dst}, v{dst}, v{S+k}, v{S+k+1}")
        out += [f"v_max_f32 v{dst}, v{dst}, v{S+15}", f"v_mov_b32 v{tmp}, v{dst}", "s_nop 1",
                f"v_permlane32_swap_b32 v{tmp}, v{dst}", f"v_max_f32 v{dst}, v{dst}, v{tmp}"]
        return out
    for mu in range(2):
        A.e(rowmax(SB(0, mu), VT + mu, VT + 2))
        A.e([f"v_sub_f32 v{NM(mu)+k}, 0, v{VT+mu}" for k in range(16)])
        A.e([f"v_sub_f32 v{SB(0,mu)+k}, v{SB(0,mu)+k}, v{VT+mu}" for k in range(16)])
    def sm(T):
        b = T & 1
        out = []
        def ex(n): return (f"v_exp_f32 v{EB + n % 8}, v{SB(b, n // 16) + n % 16}", 8)
        def fin(n):
            mu, r_ = n // 16, n % 16; e = EB + n % 8; o = []
            if r_ == 1: o.append((f"v_add_f32 v{VTS+mu}, v{EB + (n-1) % 8}, v{e}", 4))
            elif r_ > 1: o.append((f"v_add_f32 v{VTS+mu}, v{VTS+mu}, v{e}", 4))
            if r_ % 2 == 1: o.append((f"v_cvt_pk_bf16_f32 v{PB(b,mu) + r_//2}, v{EB + (n-1) % 8}, v{e}", 5))
            return o
        out.append(ex(0)); out.append(ex(1))
        for n in range(2, 32):
            out.append(ex(n)); out += fin(n - 2)
        out += fin(30) + fin(31)
        out += [(f"v_max_f32 v{VT}, v{VTS}, v{VTS+1}", 4), (f"v_cmp_nge_f32 vcc, s95, v{VT}", 4)]
        return out
    stamp(3)
    def flag_store(off_sreg):
        lab = L("fl%d" % A.nlabel); A.nlabel += 1
        A.e(["s_cmp_lg_u32 s3, 0", f"s_cbranch_scc1 {lab}", "s_mov_b64 exec, 1",
             f"buffer_store_dwordx2 v[250:251], v252, s[48:51], {off_sreg} offen {WT}", "s_mov_b64 exec, -1"])
        A.label(lab)
    endsetup = ["s_lshl_b32 s6, s15, 17", "s_lshl_b32 s90, s5, 12", "s_add_u32 s6, s6, s90", "s_add_u32 s7, s6, 0x40000",
                f"v_mov_b32 v{VT}, v{VL}", f"v_mov_b32 v{VT+1}, v{VL+1}", "v_mov_b32 v29, v21", "v_mov_b32 v253, v24",
                f"v_permlane32_swap_b32 v{VT}, v{VL}", f"v_permlane32_swap_b32 v{VT+1}, v{VL+1}",
                f"v_add_f32 v{VT}, v{VT}, v{VL}", f"v_add_f32 v{VT+1}, v{VT+1}, v{VL+1}",
                f"v_rcp_f32 v{VT+2}, v{VT}", f"v_rcp_f32 v{VT+4}, v{VT+1}",
                "v_lshrrev_b32 v1, 4, v0", f"v_mov_b32 v{VT+3}, v{VT+2}", f"v_mov_b32 v{VT+5}, v{VT+4}",
                "v_lshlrev_b32 v30, 10, v1", "v_and_b32 v1, 1, v1",
                "v_bfe_u32 v31, v0, 2, 2", "v_lshl_add_u32 v30, v31, 8, v30", "v_lshl_or_b32 v31, v31, 1, v1",
                "v_and_b32 v1, 3, v0", "v_lshl_add_u32 v30, v1, 3, v30",
                "s_lshr_b32 s91, s3, 1", "s_lshl_b32 s90, s91, 17", "s_lshl_b32 s91, s91, 16", "s_add_u32 s91, s91, 0x8000"]
    for cb in range(8):
        endsetup += [f"v_xor_b32 v1, {cb}, v31", "v_lshl_add_u32 v1, v1, 5, v30", f"v_add_u32 v{9+cb}, s90, v1", f"v_add_u32 v{17+cb}, s91, v1"]
    rare_sites = []
    for T in range(17):
        mf = (qk(T + 1, lambda mu: v(NM(mu), 16)) if T + 1 <= 15 else []) + (pv(T - 1) if T >= 1 else [])
        nq = 16 if T + 1 <= 15 else 0
        va = ([(f"v_add_f32 v{VL}, v{VL}, v{VTS}", 4), (f"v_add_f32 v{VL+1}, v{VL+1}, v{VTS+1}", 4)] if T >= 1 else []) + (sm(T) if T <= 15 else [])
        rdv = v_reads(T - 1) if T >= 1 else []
        rdk = k_reads(T + 2) if T + 2 <= 15 else []
        vm = []
        if T % 2 == 0 and T <= 14:
            w = []
            if T == hfT: w += vq.need(("H", 0))
            if T >= 6: w += vq.need(("K", (T + 2) // 2))
            if T >= 8: w += vq.need(("V", T // 2))
            A.e(w[-1:]); A.e(dq.drain()); A.e("s_barrier")
            if T == hfT:
                if hwb:
                    lab = L("wb")
                    A.e(["s_cmp_lg_u32 s3, 0", f"s_cbranch_scc1 {lab}", "buffer_wbl2 sc1"]); A.label(lab)
                else: flag_store("s88")
            if T == 8 and hwb: flag_store("s88")
            if T <= 6: vm += kv_ops("K", T // 2 + 4)
            if 4 <= T <= 10: vm += kv_ops("V", T // 2 + 2)
            if T == 12: vm += w_ops(0) + w_ops(1)
            if T == 14:
                A.e(vq.need(("F", 0))); check_flags("H", 22, 24, "s91")
                vm += a_ops(0) + a_ops(1)
        if pfA and pf0 <= T <= pf0 + 7:
            pre = []
            if T == pf0:
                pre = [f"s_mov_b32 s52, s{P_WO}", f"s_and_b32 s53, s{P_WO+1}, 0xffff", f"s_mov_b32 s54, {4096*2048:#x}",
                       "s_lshl_b32 s12, s2, 2", "s_add_u32 s12, s12, s3", "s_lshl_b32 s100, s12, 13", "s_mul_i32 s101, s12, 7168",
                       "v_and_b32 v2, 7, v0", "v_lshlrev_b32 v2, 7, v2", "v_add_u32 v3, 4096, v2"]
            k = T - pf0
            if k < 7: vm += [(pre, f"buffer_load_dword v31, v{2 if k < 4 else 3}, s[44:47], s101 offen offset:{(k % 4) * 1024}", ("P", 0), [])]
            if pfA == 2: vm += [([], f"buffer_load_dword v31, v{2 if k < 4 else 3}, s[52:55], s100 offen offset:{(k % 4) * 1024}", ("P", 0), [])]
        if xe and 5 <= T <= 8:
            hh, i0 = (T - 5) // 2, 2 * ((T - 5) % 2)
            for i in (i0, i0 + 1):
                vm += [([f"s_add_u32 m0, s4, {4096*hh}"] if i == i0 else [],
                        f"buffer_load_dwordx4 v{(1, 253, 254, 255)[i]}, s[56:59], {'s14' if hh else 's90'} offen offset:{i*1024} lds", ("R", 0), [])]
        if sen and 5 <= T <= 10:
            ks = {5: (0,), 6: (1,), 7: (2, 3), 8: (4,), 9: (5, 6), 10: (7,)}[T]
            for k in ks:
                pre = []
                if k == 0:
                    pre = ["s_lshl_b32 s12, s73, 3", "s_add_u32 s12, s12, s74", "s_lshl_b32 s12, s12, 2", "s_add_u32 s12, s12, s3", "s_lshl_b32 s12, s12, 13",
                           f"s_add_u32 s88, s12, {G_BASE + G_SF - WS_OF:#x}", ["s_cmp_eq_u32 s72, 0", "s_cselect_b32 s88, 0x7fff0000, s88"]] + \
                          [f"v_accvgpr_write_b32 a{252+i}, -1" for i in range(4)]
                if k == 4: pre = ["s_add_u32 s88, s88, 4096"]
                vm += [(pre, f"buffer_store_dwordx4 a[252:255], v4, s[60:63], s88 offen offset:{(k%4)*1024} {WT}", ("E", 0), [])]
        if xe and T == 11:
            A.e(vq.need(("R", 0)))
            xr_ = ["v_and_b32 v1, 15, v0", "v_lshrrev_b32 v253, 5, v0", "v_xor_b32 v253, v253, v1", "v_bfe_u32 v254, v0, 4, 1", "v_lshlrev_b32 v254, 3, v254",
                   "v_lshl_add_u32 v254, v1, 8, v254", "v_add_u32 v254, s4, v254"]
            vm += [([], x, None, []) for x in xr_]
            for cb in range(8):
                vm += [([], f"v_xor_b32 v30, {2*cb}, v253", None, []), ([], "v_lshl_add_u32 v30, v30, 4, v254", None, []),
                       ([], f"ds_read_b64 {a(224+4*cb,2)}, v30", "DS", []), ([], f"ds_read_b64 {a(226+4*cb,2)}, v30 offset:4096", "DS", [])]
        if T == 9 and cpf >= 3: emit_vm(code_touch(30, "v31"), A.e)
        if T == 12: vm += [([], f"buffer_load_dwordx2 v[22:23], v24, s[48:51], s91 offen {WT}", ("F", 0), [])]
        if T == 13: vm += w_ops(2) + w_ops(3)
        if T < 4: vm += hdef[2 * T: 2 * T + 2]
        if T == 15 and not xe: vm += a_ops(2)
        if late and 1 <= T <= 3:
            k_ = -(-len(late) // (4 - T)); ch = late[:k_]; late = late[k_:]
            nv = []; st_ = max(1, len(va) // len(ch))
            for i_, it_ in enumerate(va[:-2]):
                nv.append(it_)
                if ch and i_ % st_ == st_ - 1 and not it_[0].startswith("v_exp"): pass
                if ch and i_ % st_ == st_ - 1: nv.append(ch.pop(0))
            va = nv + ch + va[-2:]
        roll = v_reads(T) if (t16 and T in (14, 15)) else []
        if t16 and T >= 15: rdv = []
        if t16 and T == 16:
            A.e(dq.drain()); A.e("s_barrier")
            vm += w_ops(4) + w_ops(5) + w_ops(6) + w_ops(7)
            va += [(x, 4) for x in endsetup]
        if nq == 0:
            for ins, tag in rdv: A.e(ins); dq.issue(tag)
            rdv = []
        n = len(mf)
        vml = []
        for op in vm:
            vml += [(x, 4 if isinstance(x, str) else 4 * len(x), None) for x in op[0]] + ([("s_nop 0", 4, None)] if op[0] else []) + [(op[1], 8 if isinstance(op[2], tuple) else 4, op[2])] + [(x, 4, None) for x in op[3]]
        tot = sum(c for _, c in va) + 4 * (len(rdv) + len(rdk) + len(roll)) + sum(c for _, c, _ in vml)
        done = 0
        for m, (ins, tag) in enumerate(mf):
            w = dq.need(tag, dsl); A.e(w); A.e(ins)
            used = 4 * len(w)
            budget = max(cap, -(-(tot - done) // (n - m)) + 3) if m < n - 1 else 10 ** 6
            target = (tot * (m + 1)) // n + 6
            if roll and m >= nq and (m - nq) % 2 == 1: rdk += roll[:2]; roll = roll[2:]
            rd = rdv if (m < nq and rdv) else (rdk if (m >= nq and rdk) else None)
            if rd:
                ri, rt = rd.pop(0); A.e(ri); dq.issue(rt); used += 4; done += 4
                if rd is rdv and len(rd) > (nq - 3 - m):
                    ri, rt = rd.pop(0); A.e(ri); dq.issue(rt); used += 4; done += 4
            elif vml:
                x, c, tg = vml.pop(0); A.e(x); used += c; done += c
                if tg: (dq.issue(('XR', 0)) if tg == 'DS' else vq.issue(tg))
                while vml and c == 4 and used < 12:
                    x, c, tg = vml.pop(0); A.e(x); used += c; done += c
                    if tg: (dq.issue(('XR', 0)) if tg == 'DS' else vq.issue(tg))
            while va and used + va[0][1] <= budget and (done < target or m == n - 1):
                x, c = va.pop(0); A.e(x); used += c; done += c
        assert not rdv
        for ins, tag in rdk: A.e(ins); dq.issue(tag)
        for x, c, tg in vml:
            A.e(x)
            if tg: (dq.issue(('XR', 0)) if tg == 'DS' else vq.issue(tg))
        for x, c in va: A.e(x)
        if T <= 15:
            A.e([f"s_cbranch_vccnz {L('rs%d' % T)}"])
            A.label(L("rb%d" % T))
            rare_sites.append(T)
    stamp(4)
    if not t16:
        A.e("s_barrier")
        for t in range(4, 7):
            for op in w_ops(t): emit_vm(op, A.e, True)
        A.e(endsetup)
    def frd(t, cb):
        out = []
        for c in range(2):
            slot = (t + c) % 8
            reg = (9 if slot < 4 else 17) + cb; off = (slot % 4) * 8192
            out += [(f"ds_read_b64_tr_b16 {FA(cb,c,0)}, v{reg} offset:{off}", ("A", t, cb)),
                    (f"ds_read_b64_tr_b16 {FA(cb,c,1)}, v{reg} offset:{off+4096}", ("A", t, cb))]
        return out
    dq.slack = 8
    ostores = []
    cnt = 0
    if oin:
        A.e([f"v_accvgpr_read_b32 v{96+k}, a{k}" for k in range(64)])
        for t in (range(2, 6) if xe else range(3, 7)):
            for op in a_ops(t): emit_vm(op, A.e)
        A.e(vq.need(("W", 3))); A.e("s_barrier")
        for cb in range(8):
            for ins, tag in frd(0, cb): A.e(ins); dq.issue(tag)
    for i in range(4):
        for mu in range(2):
            tmp = 96 + (cnt % 4) * 16; dst = 160 + cnt * 8; cnt += 1
            src = (i * 2 + mu) * 16
            if not (oin and cnt <= 4): A.e([f"v_accvgpr_read_b32 v{tmp+k}, a{src+k}" for k in range(16)])
            A.e([f"v_pk_mul_f32 v[{tmp+2*k}:{tmp+2*k+1}], v[{tmp+2*k}:{tmp+2*k+1}], v[{VT+2+2*mu}:{VT+3+2*mu}]" for k in range(8)])
            for s_ in range(2):
                for jj, j in enumerate((s_, s_ + 2)):
                    A.e([f"v_cvt_pk_bf16_f32 v{dst+4*s_+2*jj}, v{tmp+4*j}, v{tmp+4*j+1}", f"v_cvt_pk_bf16_f32 v{dst+4*s_+2*jj+1}, v{tmp+4*j+2}, v{tmp+4*j+3}"])
                ostores.append(([], f"buffer_store_dwordx4 {v(dst+4*s_,4)}, v29, s[60:63], s{6+mu} offen offset:{i*1024+s_*512} {WT}", ("O", 0), []))
                if oin and len(ostores) <= oin: emit_vm(ostores[-1], A.e)
            if not oin and cnt in (1, 2, 3, 4):
                for op in a_ops(2 + cnt): emit_vm(op, A.e)
            if not oin and cnt == 5:
                A.e(vq.need(("W", 3))); A.e("s_barrier")
                for cb in range(8):
                    for ins, tag in frd(0, cb): A.e(ins); dq.issue(tag)
    ostores = ostores[oin:]
    srd(A, 52, P_WS, G_SZ, G_BASE)
    srd(A, 64, P_X, 2048 * 2048)
    srd(A, 68, P_OUT, 2048 * 2048)
    A.e(["s_cmp_eq_u32 s72, 0",
         f"s_cselect_b32 s90, {N1S-nf//8}, {N1Y-nf//8}", f"s_cselect_b32 s95, {N1S-1-nf//8}, {N1Y-1-nf//8}", "s_mov_b32 s91, 0",
         "s_lshl_b32 s12, s73, 3", "s_add_u32 s12, s12, s74",
         "s_lshl_b32 s92, s12, 2", "s_add_u32 s92, s92, s3",
         "s_lshl_b32 s92, s92, 13",
         "s_lshl_b32 s93, s12, 7", f"s_add_u32 s101, s93, {FL_P}", "s_lshl_b32 s12, s3, 5", "s_add_u32 s93, s93, s12",
         "s_lshl_b32 s94, s73, 7", "s_and_b32 s12, s3, 1", "s_lshl_b32 s12, s12, 6", "s_add_u32 s94, s94, s12",
         "s_lshr_b32 s12, s3, 1", "s_lshl_b32 s12, s12, 5", "s_add_u32 s94, s94, s12",
         "s_lshl_b32 s94, s94, 11", "s_lshl_b32 s12, s74, 8", "s_add_u32 s94, s94, s12",
         "v_and_b32 v1, 15, v0", "v_lshlrev_b32 v1, 11, v1", "v_lshrrev_b32 v30, 4, v0",
         "v_lshl_add_u32 v25, v30, 3, v1", "v_add_u32 v26, 0x8000, v25",
         "v_lshl_add_u32 v27, v30, 4, v1", "v_add_u32 v28, 0x8000, v27",
         "s_lshl_b32 s12, s3, 14", "v_add_u32 v2, s12, v4", "s_xor_b32 s12, s12, 0x8000", "v_add_u32 v3, s12, v4",
         "s_lshl_b32 s12, s3, 13", "s_add_u32 s12, s12, 0x10000", "v_add_u32 v254, s12, v4", "s_xor_b32 s12, s12, 0x4000", "v_add_u32 v255, s12, v4"])
    stamp(5)
    VP = [m for m in range(64) if m % 8 in (3, 5)]
    XP = [m for m in range(64) if m % 8 in (4, 6)]
    FBAR = 7
    def fss(t, E, last=False, extra=(), czero=False, afterbar=None, needbar=(), va=None, hook=None):
        if not last: vops = a_ops(t + 6) + a_ops(t + 7) + w_ops(t + 8) + w_ops(t + 9)
        else: vops = a_ops(6) + a_ops(7) if t == 0 else []
        sched = sorted(list(zip(VP, vops)) + list(zip(XP, extra)), key=lambda x: x[0])
        assert len(extra) <= len(XP)
        doread = not (last and t == 6)
        pend = []; vi = 0; post = []
        pres = [list(op[0]) for _, op in sched]
        for m in range(64):
            cb, jj, c = m // 8, (m % 8) // 2, m % 2
            if m == 0: E(vq.need(("X", t + 1)))
            if m % 8 == 0: E(dq.need(("A", t, cb)))
            E(mfma16(facc(cb, jj), FA(cb, c), FB((t + c) % 8, jj), "0" if (czero and c == 0) else None))
            if m == FBAR:
                w = vq.need(("W", t + 3))
                for tg in needbar: w += vq.need(tg)
                E(w[-1:]); E(dq.drain()); E("s_barrier")
                if afterbar: afterbar()
            if m % 8 == 7 and doread: pend += frd(t + 2, cb)
            if hook and hook(m): E(hook(m)); continue
            if vi < len(sched) and m == sched[vi][0]:
                assert not pres[vi], (t, m, pres[vi])
                op = sched[vi][1]
                E(op[1]); vq.issue(op[2]); post += op[3]; vi += 1
            else:
                used = 0
                if pend:
                    ins, tag = pend.pop(0); E(ins); dq.issue(tag); used += 1
                if post and used < 2: E(post.pop(0)); used += 1
                k = next((k for k in range(vi, len(sched)) if pres[k]), None)
                if k is not None:
                    busy = any((" lds" in sched[k2][1][1] and " lds" in sched[k][1][1]) or (" s13 " in sched[k2][1][1] and " s13 " in sched[k][1][1]) for k2 in range(vi, k))
                    while not busy and not post and pres[k] and used < 2: E(pres[k].pop(0)); used += 1
                cyc = 4 * used
                while va and cyc + va[0][1] <= vcap:
                    x, c_ = va.pop(0); E(x); cyc += c_
        for ins, tag in pend: E(ins); dq.issue(tag)
        E(post)
    oflag = [([], f"buffer_load_dwordx2 v[30:31], v253, s[48:51], s97 offen {WT}", ("F", 0), [])]
    def loop_body(E, real):
        if real:
            A.e(["s_cmp_lg_u32 s95, 0", f"s_cbranch_scc1 {L('nosw1')}"])
            srd(A, 44, P_WO, 4096 * 2048); A.e("s_mov_b32 s8, s75")
            A.label(L("nosw1"))
        for t in range(0, 8, 2):
            fss(t, E, extra=oflag if t == 2 else ())
            if t == 0 and real:
                A.e(["s_cmp_lg_u32 s95, 0", f"s_cbranch_scc1 {L('nosw')}"])
                check_flags("O", 30, 253, "s97")
                srd(A, 40, P_WS, SZ_OF, WS_OF)
                A.e(["s_mov_b32 s9, s96", "s_mov_b32 s97, s101", "v_mov_b32 v253, 0"] + [f"v_mov_b32 v{5+jj}, v{242+jj}" for jj in range(4)])
                A.label(L("nosw"))
    for t in range(0, 8, 2):
        fss(t, A.e, extra=ostores if t == 0 else (), czero=(t == 0),
            needbar=[("O", 0)] if t == oflt2 else (), afterbar=(lambda: flag_store("s89")) if t == oflt2 else None)
    stamp(6)
    vq.rebase(8); dq.rebase(8)
    q_first = (list(vq.q), list(dq.q))
    loop_body(lambda x: None, False)
    vq.rebase(8); dq.rebase(8)
    q_steady = (list(vq.q), list(dq.q))
    assert N1S >= 3 and N1Y >= 3
    _v, _d = list(vq.q), list(dq.q); fss(0, lambda x: None); assert not any(t[0] == "F" for t in vq.q); vq.q, dq.q = _v, _d
    def covers(entry, steady):
        def younger(q, tag): return len(q) - 1 - max(i for i, t in enumerate(q) if t == tag)
        for tag in set(entry):
            if tag[0] not in "WXA": continue
            if tag not in steady or younger(entry, tag) < younger(steady, tag): return False
        return True
    assert covers(q_first[0], q_steady[0]) and covers(q_first[1], q_steady[1]), (q_first, q_steady)
    A.raw(".p2align 6")
    A.label(L("floop"))
    loop_body(A.e, True)
    A.e(["s_sub_u32 s95, s95, 1", "s_sub_u32 s90, s90, 1", "s_cmp_lg_u32 s90, 0", f"s_cbranch_scc1 {L('floop')}",
         "s_cmp_lg_u32 s91, 0", f"s_cbranch_scc1 {L('flast')}"])
    stamp(3, 2)
    vq.rebase(8); dq.rebase(8)
    YS = lambda cb, jj: 160 + (cb * 2 + jj) * 4
    if mid1:
        A.e("s_nop 2")
        for jj in range(2):
            for i in range(4):
                d = YS(2 * i, jj)
                for h in range(2):
                    b = 32 + ((2 * i + h) * 4 + jj + 2) * 4
                    A.e([f"v_cvt_pk_bf16_f32 v{d+2*h}, v{b}, v{b+1}", f"v_cvt_pk_bf16_f32 v{d+2*h+1}, v{b+2}, v{b+3}"])
                A.e(f"ds_write_b128 v254, {v(d,4)} offset:{(jj*4+i)*1024}")
        A.e(["s_waitcnt lgkmcnt(0)", "s_barrier"])
        for jj in range(2):
            for i in range(4):
                A.e(f"ds_read_b128 {facc(2*i, jj+2)}, v255 offset:{(jj*4+i)*1024}")
        for jj in range(2):
            for i in range(4):
                pc = 32 + ((2 * i) * 4 + jj + 2) * 4
                A.e(f"s_waitcnt lgkmcnt({7 - (jj*4+i)})")
                for h in range(2):
                    b = 32 + ((2 * i + h) * 4 + jj) * 4; y = YS(2 * i + h, jj)
                    A.e([f"v_lshlrev_b32 v{y}, 16, v{pc+2*h}", f"v_and_b32 v{y+1}, 0xffff0000, v{pc+2*h}",
                         f"v_lshlrev_b32 v{y+2}, 16, v{pc+2*h+1}", f"v_and_b32 v{y+3}, 0xffff0000, v{pc+2*h+1}"])
                    A.e([f"v_pk_add_f32 v[{y+r_}:{y+r_+1}], v[{y+r_}:{y+r_+1}], v[{b+r_}:{b+r_+1}]" for r_ in (0, 2)])
    else:
        A.e("s_nop 2")
        for rnd in range(2):
            for cb in range(4 * rnd, 4 * rnd + 4):
                for jj in (2, 3): A.e(f"ds_write_b128 v254, {facc(cb,jj)} offset:{((cb%4)*2+jj-2)*1024}")
            if rnd == 1:
                for cb in range(4):
                    for jj in range(2):
                        b = 32 + (cb * 4 + jj) * 4; y = YS(cb, jj)
                        A.e([f"v_pk_add_f32 v[{y+r_}:{y+r_+1}], v[{b+r_}:{b+r_+1}], v[{b+8+r_}:{b+9+r_}]" for r_ in (0, 2)])
            A.e(["s_waitcnt lgkmcnt(0)", "s_barrier"])
            for cb in range(4 * rnd, 4 * rnd + 4):
                for jj in (2, 3): A.e(f"ds_read_b128 {facc(cb,jj)}, v255 offset:{((cb%4)*2+jj-2)*1024}")
            if rnd == 0: A.e(["s_waitcnt lgkmcnt(0)", "s_barrier"])
        for cb in range(4, 8):
            for jj in range(2):
                b = 32 + (cb * 4 + jj) * 4; y = YS(cb, jj)
                A.e(f"s_waitcnt lgkmcnt({7 - ((cb-4)*2+jj)})")
                A.e([f"v_pk_add_f32 v[{y+r_}:{y+r_+1}], v[{b+r_}:{b+r_+1}], v[{b+8+r_}:{b+9+r_}]" for r_ in (0, 2)])
    A.e(["s_cmp_eq_u32 s72, 0", f"s_cbranch_scc1 {L('firstC')}", "s_add_u32 s6, s92, 4096"])
    for jj in range(2):
        for i in range(4):
            d = 224 + (i % 2) * 4 + jj * 8
            for h in range(2):
                y = YS(2 * i + h, jj)
                A.e([f"v_cvt_pk_bf16_f32 v{d+2*h}, v{y}, v{y+1}", f"v_cvt_pk_bf16_f32 v{d+2*h+1}, v{y+2}, v{y+3}"])
            A.e(f"buffer_store_dwordx4 {v(d,4)}, v4, s[52:55], {'s6' if jj else 's92'} offen offset:{i*1024} {WT}")
    A.label(L("firstC"))
    stamp(4, 2)
    vq.q, dq.q = list(q_steady[0]), list(q_steady[1])
    def pflag():
        lab = L("pf")
        A.e(["s_xor_b32 s6, s72, 1", "s_or_b32 s6, s6, s3", "s_cmp_lg_u32 s6, 0", f"s_cbranch_scc1 {lab}", "s_mov_b64 exec, 1",
             f"buffer_store_dwordx2 v[250:251], v252, s[48:51], s101 offen {WT}", "s_mov_b64 exec, -1"])
        A.label(lab)
    mark = ("MARK", vq.total)
    for t in range(0, 8, 2):
        fss(t, A.e, czero=(t == 0), afterbar=pflag if t == pft2 else None, needbar=[mark] if t == pft2 else (), extra=oflag if t == 4 else ())
    FW = vq.need(("F", 0))
    vq.rebase(8); dq.rebase(8)
    assert covers(vq.q, q_steady[0]) and covers(dq.q, q_steady[1])
    stamp(5, 2)
    A.e(["s_mov_b32 s91, 1", f"s_mov_b32 s90, {(64-SS-8-tail)//8}", "s_cmp_lg_u32 s72, 0", f"s_cbranch_scc1 {L('floop')}"])
    A.e(FW); check_flags("P", 30, 252, "s101")
    YP = lambda jj, i: 224 + (jj * 4 + i) * 4
    YA = lambda i: (96 if xe else 80) + i * 4
    A.e("s_add_u32 s6, s92, 4096")
    for i in range(4):
        A.e([f"buffer_load_dwordx4 {v(YP(0,i),4)}, v4, s[52:55], s92 offen offset:{i*1024} {WT}",
             f"buffer_load_dwordx4 {a(YA(i),4)}, v4, s[52:55], s6 offen offset:{i*1024} {WT}"])
    A.e([f"s_mov_b32 s90, {(SS-8-tail)//8}", f"s_branch {L('floop')}"])
    A.label(L("flast"))
    stamp(6, 2)
    A.e(["s_mov_b32 s6, 0xbfb8aa3b", "s_mov_b32 s7, 0xbfb8aa3b", "s_cmp_lg_u32 s72, 0", f"s_cbranch_scc1 {L('flast2')}"])
    for cb in range(8):
        y = YS(cb, 0); pc = YP(0, cb // 2) + 2 * (cb % 2); T0 = 240 if cb % 2 == 0 else 242
        T0 = 240
        A.e([f"v_lshlrev_b32 v{T0}, 16, v{pc}", f"v_and_b32 v{T0+1}, 0xffff0000, v{pc}",
             f"v_lshlrev_b32 v{T0+2}, 16, v{pc+1}", f"v_and_b32 v{T0+3}, 0xffff0000, v{pc+1}"])
        A.e([f"v_pk_add_f32 v[{y+r_}:{y+r_+1}], v[{y+r_}:{y+r_+1}], v[{T0+r_}:{T0+r_+1}]" for r_ in (0, 2)])
        A.e([f"v_pk_mul_f32 v[{T0+r_}:{T0+r_+1}], v[{y+r_}:{y+r_+1}], s[6:7]" for r_ in (0, 2)])
        A.e([f"v_exp_f32 v{T0+r_}, v{T0+r_}" for r_ in range(4)])
        A.e([f"v_pk_add_f32 v[{T0+r_}:{T0+r_+1}], v[{T0+r_}:{T0+r_+1}], 1.0 op_sel_hi:[1,0]" for r_ in (0, 2)])
        A.e([f"v_rcp_f32 v{T0+r_}, v{T0+r_}" for r_ in range(4)])
        A.e([f"v_pk_mul_f32 v[{y+r_}:{y+r_+1}], v[{y+r_}:{y+r_+1}], v[{T0+r_}:{T0+r_+1}]" for r_ in (0, 2)])
    A.label(L("flast2"))
    vq.q, dq.q = list(q_steady[0]), list(q_steady[1])
    va = []
    for cb in range(8):
        y = YS(cb, 1); pc = YA(cb // 2) + 2 * (cb % 2); T0 = 224 + 4 * (cb % 2)
        va += [(f"v_accvgpr_read_b32 v{T0+1}, a{pc}", 4), (f"v_accvgpr_read_b32 v{T0+3}, a{pc+1}", 4),
               (f"v_lshlrev_b32 v{T0}, 16, v{T0+1}", 4), (f"v_and_b32 v{T0+1}, 0xffff0000, v{T0+1}", 4),
               (f"v_lshlrev_b32 v{T0+2}, 16, v{T0+3}", 4), (f"v_and_b32 v{T0+3}, 0xffff0000, v{T0+3}", 4)]
        va += [(f"v_add_f32 v{y+r_}, v{y+r_}, v{T0+r_}", 4) for r_ in range(4)]
        va += [(f"v_mul_f32 v{T0+r_}, s7, v{y+r_}", 4) for r_ in range(4)]
        va += [(f"v_exp_f32 v{T0+r_}, v{T0+r_}", 8) for r_ in range(4)]
        va += [(f"v_add_f32 v{T0+r_}, 1.0, v{T0+r_}", 4) for r_ in range(4)]
        va += [(f"v_rcp_f32 v{T0+r_}, v{T0+r_}", 8) for r_ in range(4)]
        va += [(f"v_mul_f32 v{y+r_}, v{y+r_}, v{T0+r_}", 4) for r_ in range(4)]
    xw = lambda cb, jj: f"ds_write_b128 v2, {facc(cb,jj)} offset:{(cb*2+jj-2)*1024}"
    def ehook(m):
        return [xw(m // 8 - 2, 2 + (m % 8 - 4) // 2)] if (m >= 16 and m % 8 in (4, 6)) else None
    fin = [(["v_mov_b32 v29, 0"], f"buffer_load_dwordx2 v[30:31], v29, s[48:51], s93 offen {WT}", ("G", 0), [])]
    for t in range(0, 8, 2):
        fss(t, A.e, last=True, extra=fin if t == 4 else (), va=va, hook=ehook if (ew and t == 6) else None)
    A.c(f"left over fillers: {len(va)}")
    for x, c in va: A.e(x)
    stamp(7)
    A.e(["v_mov_b32 v22, s98", "v_mov_b32 v23, s99", f"s_add_u32 s6, s92, {G_SF}", f"s_add_u32 s7, s92, {G_SF+4096}",
         "s_cmp_lg_u32 s72, 0", f"s_cbranch_scc1 {L('xch')}"])
    s2loads = [f"buffer_load_dwordx4 {v(YP(jj,i),4)}, v4, s[52:55], s{6+jj} offen offset:{i*1024} {WT}" for jj in range(2) for i in range(4)]
    if sen: A.e(["s_mov_b32 s15, -1"] + s2loads)
    else:
        A.e(vq.need(("G", 0)))
        A.e(["v_cmp_ne_u64 vcc, s[98:99], v[30:31]", f"s_cbranch_vccnz {L('xch')}", "s_mov_b32 s91, 2"] + s2loads)
    A.label(L("xch"))
    A.e("s_nop 2")
    for cb in range(6 if ew else 0, 8):
        for jj in (2, 3):
            A.e(xw(cb, jj))
    A.e(["s_waitcnt lgkmcnt(0)", "s_barrier"])
    for jj in (2, 3):
        for cb in range(8):
            A.e(f"ds_read_b128 {facc(cb,jj)}, v3 offset:{(cb*2+jj-2)*1024}")
    A.e(["s_cmp_eq_u32 s72, 0", f"s_cbranch_scc1 {L('sepi')}"])
    for jj in range(2):
        for i in range(4):
            dst = 160 + (jj * 4 + i) * 4
            for h in range(2):
                cb = 2 * i + h
                A.e(f"s_waitcnt lgkmcnt({15 - (jj*8+cb)})")
                b = 32 + (cb * 4 + jj) * 4
                A.e([f"v_pk_add_f32 v[{b+r_}:{b+r_+1}], v[{b+r_}:{b+r_+1}], v[{b+8+r_}:{b+9+r_}]" for r_ in (0, 2)])
                A.e([f"v_cvt_pk_bf16_f32 v{dst+2*h}, v{b}, v{b+1}", f"v_cvt_pk_bf16_f32 v{dst+2*h+1}, v{b+2}, v{b+3}"])
            if sen: A.e([f"v_min_u32 v{dst+k}, -2, v{dst+k}" for k in range(4)])
            A.e(f"buffer_store_dwordx4 {v(dst,4)}, v4, s[52:55], s{6+jj} offen offset:{i*1024} {WT}")
    if sen: A.e(f"s_branch {L('fin')}")
    else:
        A.e(["s_waitcnt vmcnt(0)", "s_mov_b64 exec, 1",
             f"buffer_store_dwordx2 v[22:23], v29, s[48:51], s93 offen {WT}", "s_mov_b64 exec, -1", f"s_branch {L('fin')}"])
    A.label(L("sepi"))
    XR = lambda cb, jj: (224 if xe else 96) + (cb * 2 + jj) * 2
    if not xe:
        A.e(["v_and_b32 v1, 15, v0", "v_lshrrev_b32 v5, 5, v0", "v_xor_b32 v5, v5, v1", "v_bfe_u32 v6, v0, 4, 1", "v_lshlrev_b32 v6, 3, v6",
             "v_lshl_add_u32 v6, v1, 8, v6", "s_lshl_b32 s15, s3, 13", "s_add_u32 s15, s15, 0x10000", "v_add_u32 v6, s15, v6"])
        for cb in range(8):
            A.e([f"v_xor_b32 v7, {2*cb}, v5", "v_lshl_add_u32 v7, v7, 4, v6",
                 f"ds_read_b64 {a(XR(cb,0),2)}, v7", f"ds_read_b64 {a(XR(cb,1),2)}, v7 offset:4096"])
    if fast:
        A.e(["s_cmp_lg_u32 s91, 2", f"s_cbranch_scc1 {L('slowp')}", "s_waitcnt lgkmcnt(0)"])
        for jj in range(2):
            for i in range(4):
                o = YP(jj, i)
                for h in range(2):
                    cb = 2 * i + h
                    b = 32 + (cb * 4 + jj) * 4; y = YS(cb, jj); xa = XR(cb, jj); T0 = 8 + 8 * h
                    A.e([f"v_accvgpr_read_b32 v{T0+1}, a{xa}", f"v_accvgpr_read_b32 v{T0+3}, a{xa+1}"])
                    A.e([f"v_pk_add_f32 v[{b+r_}:{b+r_+1}], v[{b+r_}:{b+r_+1}], v[{b+8+r_}:{b+9+r_}]" for r_ in (0, 2)])
                    A.e([f"v_lshlrev_b32 v{T0}, 16, v{T0+1}", f"v_and_b32 v{T0+1}, 0xffff0000, v{T0+1}",
                         f"v_lshlrev_b32 v{T0+2}, 16, v{T0+3}", f"v_and_b32 v{T0+3}, 0xffff0000, v{T0+3}"])
                    if h == 0: A.e("s_waitcnt vmcnt(7)")
                    A.e([f"v_lshlrev_b32 v{T0+4}, 16, v{o+2*h}", f"v_and_b32 v{T0+5}, 0xffff0000, v{o+2*h}",
                         f"v_lshlrev_b32 v{T0+6}, 16, v{o+2*h+1}", f"v_and_b32 v{T0+7}, 0xffff0000, v{o+2*h+1}"])
                    A.e([f"v_pk_fma_f32 v[{b+r_}:{b+r_+1}], v[{b+r_}:{b+r_+1}], v[{y+r_}:{y+r_+1}], v[{T0+r_}:{T0+r_+1}]" for r_ in (0, 2)])
                    A.e([f"v_pk_fma_f32 v[{b+r_}:{b+r_+1}], v[{T0+4+r_}:{T0+5+r_}], v[{y+r_}:{y+r_+1}], v[{b+r_}:{b+r_+1}]" for r_ in (0, 2)])
                    A.e([f"v_cvt_pk_bf16_f32 v{o+2*h}, v{b}, v{b+1}", f"v_cvt_pk_bf16_f32 v{o+2*h+1}, v{b+2}, v{b+3}"])
                A.e(["s_nop 1", f"v_permlane32_swap_b32 v{o}, v{o+2}", f"v_permlane32_swap_b32 v{o+1}, v{o+3}", "s_nop 0",
                     f"v_permlane16_swap_b32 v{o}, v{o+2}", f"v_permlane16_swap_b32 v{o+1}, v{o+3}",
                     f"buffer_store_dwordx4 {v(o,4)}, v{27+jj}, s[68:71], s94 offen offset:{i*64}"])
        A.e(f"s_branch {L('fin')}")
        A.label(L("slowp"))
    for n in range(16):
        jj, cb = n // 8, n % 8
        b = 32 + (cb * 4 + jj) * 4; y = YS(cb, jj); xa = XR(cb, jj); T0 = 8 + 4 * (n % 2)
        if n == 0: A.e("s_waitcnt lgkmcnt(0)")
        A.e([f"v_accvgpr_read_b32 v{T0+1}, a{xa}", f"v_accvgpr_read_b32 v{T0+3}, a{xa+1}"])
        A.e([f"v_pk_add_f32 v[{b+r_}:{b+r_+1}], v[{b+r_}:{b+r_+1}], v[{b+8+r_}:{b+9+r_}]" for r_ in (0, 2)])
        A.e([f"v_lshlrev_b32 v{T0}, 16, v{T0+1}", f"v_and_b32 v{T0+1}, 0xffff0000, v{T0+1}",
             f"v_lshlrev_b32 v{T0+2}, 16, v{T0+3}", f"v_and_b32 v{T0+3}, 0xffff0000, v{T0+3}"])
        A.e([f"v_pk_fma_f32 v[{b+r_}:{b+r_+1}], v[{b+r_}:{b+r_+1}], v[{y+r_}:{y+r_+1}], v[{T0+r_}:{T0+r_+1}]" for r_ in (0, 2)])
    if sen:
        A.e(SPINB)
        A.label(L("poll"))
        A.e(["s_waitcnt vmcnt(0)", "v_max3_u32 v8, v224, v225, v226", "v_max3_u32 v9, v227, v228, v229"])
        for k in range(230, 254, 4): A.e([f"v_max3_u32 v8, v8, v{k}, v{k+1}", f"v_max3_u32 v9, v9, v{k+2}, v{k+3}"])
        A.e(["v_max3_u32 v8, v8, v254, v255", "v_max_u32 v8, v8, v9", "v_cmp_eq_u32 vcc, s15, v8", f"s_cbranch_vccz {L('have')}",
             "s_sub_u32 s12, s12, 1", f"s_cbranch_scc1 {L('have')}"] + s2loads + [f"s_branch {L('poll')}"])
    else:
        A.e(["s_cmp_eq_u32 s91, 2", f"s_cbranch_scc1 {L('have')}", SPINB])
        A.label(L("poll"))
        A.e([f"buffer_load_dwordx2 v[30:31], v29, s[48:51], s93 offen {WT}", "s_waitcnt vmcnt(0)",
             "s_sub_u32 s12, s12, 1", f"s_cbranch_scc1 {L('got')}",
             "v_cmp_ne_u64 vcc, s[98:99], v[30:31]", f"s_cbranch_vccz {L('got')}", "s_sleep 1", f"s_branch {L('poll')}"])
        A.label(L("got"))
        A.e(s2loads)
    A.label(L("have"))
    for jj in range(2):
        for i in range(4):
            o = YP(jj, i)
            if not sen: A.e("s_waitcnt vmcnt(7)")
            for h in range(2):
                cb = 2 * i + h
                b = 32 + (cb * 4 + jj) * 4; y = YS(cb, jj); T0 = 8 + 4 * h
                A.e([f"v_lshlrev_b32 v{T0}, 16, v{o+2*h}", f"v_and_b32 v{T0+1}, 0xffff0000, v{o+2*h}",
                     f"v_lshlrev_b32 v{T0+2}, 16, v{o+2*h+1}", f"v_and_b32 v{T0+3}, 0xffff0000, v{o+2*h+1}"])
                A.e([f"v_pk_fma_f32 v[{b+r_}:{b+r_+1}], v[{T0+r_}:{T0+r_+1}], v[{y+r_}:{y+r_+1}], v[{b+r_}:{b+r_+1}]" for r_ in (0, 2)])
                A.e([f"v_cvt_pk_bf16_f32 v{o+2*h}, v{b}, v{b+1}", f"v_cvt_pk_bf16_f32 v{o+2*h+1}, v{b+2}, v{b+3}"])
            A.e(["s_nop 1", f"v_permlane32_swap_b32 v{o}, v{o+2}", f"v_permlane32_swap_b32 v{o+1}, v{o+3}", "s_nop 0",
                 f"v_permlane16_swap_b32 v{o}, v{o+2}", f"v_permlane16_swap_b32 v{o+1}, v{o+3}",
                 f"buffer_store_dwordx4 {v(o,4)}, v{27+jj}, s[68:71], s94 offen offset:{i*64}"])
    A.label(L("fin"))
    if stamps:
        srd(A, 40, P_WS, 0x100000, WS_STAMP)
        A.e(["s_waitcnt vmcnt(0)", "s_memtime s[76:77]", "s_memrealtime s[78:79]", "s_waitcnt lgkmcnt(0)",
             "v_mov_b32 v8, s76", "v_mov_b32 v9, s78", "v_mov_b32 v10, s72", "s_getreg_b32 s10, hwreg(HW_REG_XCC_ID)", "v_mov_b32 v11, s10",
             "s_lshl_b32 s10, s2, 2", "s_add_u32 s10, s10, s3", "s_lshl_b32 s10, s10, 7", "v_mov_b32 v1, s10", "s_mov_b64 exec, 1"])
        A.e("buffer_store_dwordx4 v[8:11], v1, s[40:43], 0 offen offset:64")
    if dbgst:
        srd(A, 40, P_DBG, 256)
        A.e(["s_and_b32 s10, s2, 0xfb", "s_or_b32 s10, s10, s3", "s_cmp_lg_u32 s10, 0", f"s_cbranch_scc1 {L('end')}", "s_mov_b64 exec, 1",
             "v_accvgpr_read_b32 v12, a241", "s_lshl_b32 s10, s2, 3", "v_mov_b32 v1, s10"])
        for k in range(1, 8): A.e([f"v_accvgpr_read_b32 v13, a{241+2*k}", f"v_sub_u32 v{15+k}, v13, v12"])
        A.e(["v_sub_u32 v23, v9, v12", "buffer_store_dwordx4 v[16:19], v1, s[40:43], 0 offen", "buffer_store_dwordx4 v[20:23], v1, s[40:43], 0 offen offset:16"])
    A.label(L("end"))
    A.e("s_endpgm")
    for tag, reg, addr, off in spins:
        A.label(L("spin" + tag))
        A.e(SPINB)
        A.label(L("spinl" + tag))
        A.e(["s_sleep 2", f"buffer_load_dwordx2 v[{reg}:{reg+1}], v{addr}, s[48:51], {off} offen {WT}", "s_waitcnt vmcnt(0)",
             "s_sub_u32 s12, s12, 1", f"s_cbranch_scc1 {L('ok' + tag)}",
             f"v_cmp_ne_u64 vcc, s[98:99], v[{reg}:{reg+1}]", f"s_cbranch_vccnz {L('spinl' + tag)}", f"s_branch {L('ok' + tag)}"])
    for T in rare_sites:
        A.label(L("rs%d" % T))
        A.e([f"s_call_b64 s[6:7], {L('rare%d' % (T & 1))}", f"s_branch {L('rb%d' % T)}"])
    for b in range(2):
        A.label(L("rare%d" % b))
        A.e(["s_nop 15", "s_nop 15"])
        for mu in range(2):
            S = SB(b, mu); S2 = SB(b ^ 1, mu)
            A.e(rowmax(S, VT, VT + 2))
            A.e([f"v_max_f32 v{VT}, 0, v{VT}", f"v_exp_f32 v{VT+1}, -v{VT}"])
            A.e([f"v_sub_f32 v{NM(mu)+k}, v{NM(mu)+k}, v{VT}" for k in range(16)])
            A.e([f"v_sub_f32 v{S+k}, v{S+k}, v{VT}" for k in range(16)])
            A.e([f"v_sub_f32 v{S2+k}, v{S2+k}, v{VT}" for k in range(16)])
            A.e(f"v_mul_f32 v{VL+mu}, v{VL+mu}, v{VT+1}")
            for i in range(4):
                o = (i * 2 + mu) * 16
                for k in range(16):
                    A.e([f"v_accvgpr_read_b32 v{VT+2}, a{o+k}", f"v_mul_f32 v{VT+2}, v{VT+2}, v{VT+1}", f"v_accvgpr_write_b32 a{o+k}, v{VT+2}"])
            for k in range(0, 16, 2):
                A.e([f"v_exp_f32 v{EB}, v{S+k}", f"v_exp_f32 v{EB+1}, v{S+k+1}", "s_nop 0",
                     f"v_cvt_pk_bf16_f32 v{PB(b,mu)+k//2}, v{EB}, v{EB+1}", f"v_add_f32 v{EB}, v{EB}, v{EB+1}",
                     f"v_mov_b32 v{VTS+mu}, v{EB}" if k == 0 else f"v_add_f32 v{VTS+mu}, v{VTS+mu}, v{EB}"])
        A.e(["s_nop 3", "s_setpc_b64 s[6:7]"])
    A.label(f"{name}_codeend")
    return (name, 512, 256, "(256,1,1)", "(256,1,1)", 163840)
```

```python
from common import *
import struct, math
QSCALE = struct.unpack("<I", struct.pack("<f", math.log2(math.e) / math.sqrt(128.0)))[0]
THR = 0x49800000
FL_L, FL_H, FL_O, FL_P, FL_SZ = 0x4000, 0x6000, 0x8000, 0xA000, 0xE000
G_BASE, G_SF, G_PF, G_SZ = 0x2200000, 0x600000, 0xA00000, 0x1200000
SS_UNUSED = 28
N1S, N1Y = 4, 3
WT = "sc0 sc1"
SPINB = "s_mov_b32 s12, 0x40000"

def kf(A, name="kf_kernel", stamps=0, thr=THR, vpos=(6, 10, 14, 18, 22, 26, 29, 30), barpos=3, apol=WT, pfT=0, pfG=0, cpf=3, ln=1, dbgst=0, pst=0, psleep=1, hwb=0, cap=24, dsl=6, vcap=8, ost=None, oflt=3, rotm=(1, 2), xpol=None, gdbg=0, pfs=7, pfA=2, rot0=1, vat=None, pft=3, tail=8, kmap=1, SS=None, hfT=2, barm=47, gsl=10, sp1=(2, 44), sp2=(54, 88), vmod=2, lead=0, nf=8, oft=14, oin=8, hdf=2, tlb=0, t16=1, mid1=1, fast=0, lset=1, xe=1, ew=1, sen=0, oflt2=4, pft2=2, alt=0, pka=0):
    L = lambda s: f"{name}_{s}"
    if SS is None: SS = 32 if tail == 8 else 28
    if vat is None: vat = tail - 7
    pf0 = 4 if lset else 3
    if lset: hfT = max(hfT, 4)
    if ost is None: ost = (8, 8)[:2 - oin // 8]
    vq = Q("vmcnt", 63); dq = Q("lgkmcnt", 15, gsl)
    def stamp(i, pro=0):
        if not stamps: return
        if pst == 1:
            if pro == 0 and i == 1: i = 7
            elif not (pro == 1 or i == 0): return
        elif pst == 2:
            if pro == 0 and i == 5: i = 1
            elif pro == 0 and i == 6: i = 2
            elif not (pro == 2 or (pro == 0 and i in (0, 7))): return
        elif pst == 3:
            if pro or i != 1: return
            i = 0
        elif pro: return
        first = (i == 0 and pst != 3)
        A.e(["s_memtime s[76:77]", "s_memrealtime s[78:79]"] + (["s_load_dwordx2 s[38:39], s[0:1], 88", "v_lshrrev_b32 v1, 6, v0", "s_nop 0", "v_readfirstlane_b32 s3, v1"] if first else []) +
            ["s_waitcnt lgkmcnt(0)", "v_mov_b32 v30, s76", "v_mov_b32 v31, s78",
             "s_lshl_b32 s76, s2, 2", "s_add_u32 s76, s76, s3", "s_lshl_b32 s76, s76, 7", f"s_add_u32 s76, s76, {WS_STAMP:#x}", "v_mov_b32 v1, s76",
             "s_mov_b64 exec, 1", f"global_store_dwordx2 v1, v[30:31], s[38:39] offset:{8*i}", "s_mov_b64 exec, -1"]); dq.drain()
    A.raw(kernel_head(name))
    A.e(["s_cmp_ge_u32 s2, 256", f"s_cbranch_scc1 {L('end')}"])
    cpn = [0]
    def code_touch(vr, dst, raw=False):
        lab = L("pc%d" % cpn[0]); cpn[0] += 1
        pre = ["s_getpc_b64 s[76:77]", lab + ":", f"s_sub_u32 s76, s76, {lab}-{name}", "s_subb_u32 s77, s77, 0",
               "s_lshr_b32 s78, s2, 3", "s_lshl_b32 s78, s78, 11"] + ([f"v_and_b32 v{vr}, 0xc0, v0", f"v_lshlrev_b32 v{vr+1}, 3, v{vr}"] if raw else ["s_lshl_b32 s79, s3, 9", "s_add_u32 s78, s78, s79"]) + [
               f"v_and_b32 v{vr}, 7, v0", f"v_mul_u32_u24 v{vr}, 0x4080, v{vr}", f"v_and_b32 v{vr}, 0x10180, v{vr}"] + ([f"v_add_u32 v{vr}, v{vr+1}, v{vr}"] if raw else []) + [
               f"v_add_u32 v{vr}, s78, v{vr}", f"v_min_u32 v{vr}, {name}_codeend-{name}-4, v{vr}"]
        return (pre, f"global_load_dword {dst}, v{vr}, s[76:77]", ("C", 0), [])
    stamp(0)
    A.e(LOADARGS)
    if cpf:
        op = code_touch(30, "a238", raw=True); A.e(op[0]); A.e(op[1])
    A.e(["v_lshrrev_b32 v1, 6, v0", "v_and_b32 v0, 63, v0", "s_nop 0", "v_readfirstlane_b32 s3, v1",
         "s_and_b32 s10, s2, 7", "s_lshr_b32 s11, s2, 3", "s_and_b32 s4, s11, 7", "s_lshr_b32 s11, s11, 3",
         "s_lshl_b32 s5, s10, 2", "s_add_u32 s5, s5, s11",
         f"s_mul_i32 s14, s11, {rotm[1]}", f"s_mul_i32 s12, s4, {rotm[0]}", "s_add_u32 s14, s14, s12"])
    if ln:
        A.e(["v_and_b32 v40, 7, v0", "v_lshrrev_b32 v41, 3, v0", "s_lshl_b32 s12, s3, 5", "v_add_u32 v41, s12, v41",
             "v_lshlrev_b32 v42, 11, v40", "v_lshl_add_u32 v42, v41, 4, v42",
             "s_lshl_b32 s12, s4, 5", "s_add_u32 s91, s12, s5", "s_lshl_b32 s12, s91, 14",
             "s_waitcnt lgkmcnt(0)"])
        srd(A, 64, P_X, 2048 * 2048)
        for i in range(4):
            A.e(f"buffer_load_dwordx4 v[{48+4*i}:{51+4*i}], v42, s[64:67], s12 offen offset:{128*i}"); vq.issue(("L", 0))
        if tlb & 1:
            srd(A, 68, P_WS, 0x3000000)
            A.e(["v_lshlrev_b32 v39, 21, v0", "buffer_load_dword a237, v39, s[68:71], 0 offen"])
        srd(A, 60, P_DBG, 256)
        A.e(["v_mov_b32 v47, 0", "s_or_b32 s12, s2, s3", "s_cmp_lg_u32 s12, 0", f"s_cbranch_scc1 {L('nn')}",
             "s_memrealtime s[12:13]", "s_waitcnt lgkmcnt(0)", "s_or_b32 s12, s12, 1", "v_mov_b32 v38, s12", "v_mov_b32 v39, s13", "s_mov_b64 exec, 1",
             f"buffer_store_dwordx2 v[38:39], v47, s[60:63], 0 offen {WT}", "s_mov_b64 exec, -1"])
        A.label(L("nn"))
    A.e([
         "v_lshrrev_b32 v30, 4, v0", "v_and_b32 v31, 15, v0",
         "s_lshr_b32 s12, s3, 1", "s_lshl_b32 s12, s12, 1",
         "v_lshlrev_b32 v1, 2, v30", "v_or_b32 v1, s12, v1", "v_xor_b32 v31, v31, v1",
         "s_lshl_b32 s12, s3, 2", "v_add_u32 v30, s12, v30",
         "v_lshlrev_b32 v2, 13, v30", "s_lshl_b32 s12, s5, 8", "v_lshl_add_u32 v2, v31, 4, v2", "v_add_u32 v2, s12, v2",
         "v_lshrrev_b32 v1, 1, v31", "v_min_u32 v1, 6, v1", "s_and_b32 s13, s5, 1", "v_add_u32 v1, s13, v1",
         "v_cmp_eq_u32 vcc, 7, v1", "v_and_b32 v31, 1, v31", "s_nop 0", "v_cndmask_b32 v1, v1, 0, vcc",
         "v_lshl_or_b32 v1, v1, 1, v31",
         "v_mul_u32_u24 v3, 7168, v30", "s_mul_i32 s12, s5, 224", "v_add_u32 v3, s12, v3", "v_lshl_add_u32 v3, v1, 4, v3",
         "s_lshl_b32 s12, s4, 4", "s_lshl_b32 s13, s3, 2", "s_add_u32 s15, s12, s13",
         "s_lshl_b32 s12, s15, 15", "v_lshlrev_b32 v4, 4, v0", "v_add_u32 v5, s12, v4",
         "v_add_u32 v6, 0x8000, v5", "v_add_u32 v7, 0x10000, v5", "v_add_u32 v8, 0x18000, v5",
         "s_mul_i32 s95, s3, 3072", "s_add_u32 s95, s95, 16384", "s_mov_b32 s10, s95", "s_mov_b32 s72, 98304", "s_mov_b32 s11, 0", "s_mov_b32 s75, 0",
         "s_waitcnt lgkmcnt(0)"])
    srd(A, 44, P_WQ, 1024 * 4096 * 2)
    srd(A, 48, P_WG, 1024 * 3584 * 2 + 1024, -1024)
    srd(A, 52, P_WU, 1024 * 3584 * 2 + 2048, -2048)
    srd(A, 40, P_WS, SZ_XF, WS_XF)

    def acc(blk, j):
        if blk < 14: return v(32 + (blk * 4 + j) * 4, 4)
        return a(((blk - 14) * 4 + j) * 4, 4)
    Afr = lambda S, b, c, h=None: a(192 + ((22 * S + b) % 4) * 8 + c * 4, 4) if h is None else a(192 + ((22 * S + b) % 4) * 8 + c * 4 + 2 * h, 2)
    Bfr = lambda slot, j: a(128 + slot * 16 + j * 4, 4)
    if lead:
        NEXTK = ["s_sub_u32 s12, s11, s14", "s_and_b32 s12, s12, 7", f"s_cmp_lt_u32 s11, {32-lead}", "s_cselect_b32 s12, s12, 1",
                 f"s_add_u32 s13, s11, {lead}", "s_cmp_eq_u32 s12, 0", "s_cselect_b32 s12, s13, s75", "s_subb_u32 s75, s75, -1",
                 f"s_sub_u32 s13, s75, {lead}", "s_cselect_b32 s6, 1, 0", "s_sub_u32 s13, s13, s14", "s_and_b32 s13, s13, 7", "s_or_b32 s13, s13, s6",
                 "s_cmp_eq_u32 s13, 0", "s_addc_u32 s75, s75, 0",
                 "s_add_u32 s11, s11, 1", "s_lshl_b32 s6, s12, 18", "s_mul_i32 s7, s12, 229376", "s_lshl_b32 s8, s12, 10"]
    else:
        NEXTK = ([] if rot0 == 7 else ["s_cmp_lt_u32 s11, 8", f"s_cselect_b32 s13, {rot0}, 7", "s_and_b32 s13, s13, s14"]) + ["s_add_u32 s12, s11, s14" if rot0 == 7 else "s_add_u32 s12, s11, s13", "s_and_b32 s12, s12, 7", "s_and_b32 s13, s11, 0x18", "s_or_b32 s12, s12, s13",
                 "s_add_u32 s11, s11, 1", "s_lshl_b32 s6, s12, 18", "s_mul_i32 s7, s12, 229376", "s_lshl_b32 s8, s12, 10"]
    def d_ops(p, h, static=False):
        base = (p % 2) * 24576 + h * 12288 + ((p // 2) * 49152 if static else 0)
        return [((NEXTK + [f"s_mov_b32 s{88 + p % 2}, s8"] if h == 0 else []) + [f"s_add_u32 m0, s10, {base}"], "buffer_load_dwordx4 v2, s[44:47], s6 offen lds", ("D", p, h), ["s_add_u32 s6, s6, 131072"] if h == 0 else []),
                ([], "buffer_load_dwordx4 v3, s[48:51], s7 offen offset:1024 lds", ("D", p, h), []),
                ([], "buffer_load_dwordx4 v3, s[52:55], s7 offen offset:2048 lds", ("D", p, h), ["s_add_u32 s7, s7, 114688"] if h == 0 else [])]
    def x_ops(p):
        return [([], f"buffer_load_dwordx4 {Bfr(p % 4, j)}, v{5+j}, s[40:43], s{88 + p % 2} offen {apol if xpol is None else xpol}", ("X", p), []) for j in range(4)]
    def rd_ops(S, blk):
        part, cb = (1 + (blk & 1), blk >> 1) if blk < 14 else (0, blk - 14)
        reg = (9 if S % 2 == 0 else 17) + cb
        return [(f"ds_read_b64_tr_b16 {Afr(S,blk,c,h)}, v{reg} offset:{c*24576 + part*1024 + h*3072}", ("A", S, blk)) for c in range(2) for h in range(2)]
    def emit_vm(op, E, nop=False):
        pre, ins, tag, post = op
        E(pre)
        if pre and nop: E("s_nop 0")
        E(ins); vq.issue(tag); E(post)
    def kv_ops(kind, P):
        reg = 0 if kind == "K" else 65536
        sr = "s[64:67]" if kind == "K" else "s[68:71]"
        ops = []
        for i in range(4):
            ops.append(([f"s_add_u32 m0, s92, {reg + (P % 4) * 16384}", f"s_add_u32 s94, s93, {P * 16384}"] if i == 0 else [],
                        f"buffer_load_dwordx4 v{25+i if kind == 'K' else 29}, {sr}, s94 offen offset:{i*1024} lds", (kind, P), []))
        return ops
    def pf_op(k):
        return [([], f"buffer_load_dword a239, v31, {'s[72:75], s96' if k == 0 else 's[80:83], s97'} offen", ("P", 0), [f"s_add_u32 s{96+k}, s{96+k}, 1024"])]
    for op in d_ops(0, 0, True) + d_ops(0, 1, True): emit_vm(op, A.e, True)
    srd(A, 84, P_WS, FL_SZ, WS_FLAG)
    A.e(["s_lshr_b32 s12, s91, 1", "s_lshl_b32 s12, s12, 15", "s_and_b32 s13, s91, 1", "s_lshl_b32 s13, s13, 7", "s_add_u32 s90, s12, s13",
         "v_lshlrev_b32 v43, 8, v41", "v_lshl_add_u32 v43, v40, 4, v43",
         "v_lshlrev_b32 v44, 5, v40", "s_lshl_b32 s12, s3, 3", "v_add_u32 v45, s12, v44",
         "s_lshl_b32 s91, s91, 5", f"s_add_u32 s91, s91, {FL_L}"])
    A.e([f"v_mov_b32 v{i}, 0" for i in range(132, 144)])
    A.e(f"buffer_load_dwordx2 v[128:129], v47, s[60:63], 0 offen {WT}"); vq.issue(("N", 0))
    A.e([mfma32(a(i, 16), v(132, 4), v(132, 4), "0") for i in range(0, 128, 16)] + [mfma32(v(i, 16), v(132, 4), v(132, 4), "0") for i in range(144, 256, 16)])
    stamp(1, 1)
    A.e(vq.need(("L", 0)))
    stamp(2, 1)
    X0 = 64
    for i in range(16):
        A.e([f"v_lshlrev_b32 v{X0+2*i}, 16, v{48+i}", f"v_and_b32 v{X0+1+2*i}, 0xffff0000, v{48+i}"])
    def lanesum(src):
        A.e(["s_nop 1", f"v_add_f32_dpp v{src}, v{src}, v{src} row_ror:8 row_mask:0xf bank_mask:0xf",
             f"v_mov_b32 v46, v{src}", "s_nop 1", f"v_permlane16_swap_b32 v46, v{src}", f"v_add_f32 v{src}, v46, v{src}",
             f"v_mov_b32 v46, v{src}", "s_nop 1", f"v_permlane32_swap_b32 v46, v{src}", f"v_add_f32 v{src}, v46, v{src}"])
    A.e([f"v_pk_add_f32 v[32:33], v[{X0}:{X0+1}], v[{X0+2}:{X0+3}]", f"v_pk_add_f32 v[34:35], v[{X0+4}:{X0+5}], v[{X0+6}:{X0+7}]"])
    A.e([f"v_pk_add_f32 v[{32+2*(i%2)}:{33+2*(i%2)}], v[{32+2*(i%2)}:{33+2*(i%2)}], v[{X0+2*i}:{X0+2*i+1}]" for i in range(4, 16)])
    A.e(["v_pk_add_f32 v[32:33], v[32:33], v[34:35]", "v_add_f32 v32, v32, v33"])
    lanesum(32)
    A.e(["v_mul_f32 v32, 0x3b800000, v32", "v_mov_b32 v34, v32", "v_mov_b32 v35, v32"])
    for i in range(16):
        A.e(f"v_pk_add_f32 v[{96+2*i}:{97+2*i}], v[{X0+2*i}:{X0+2*i+1}], v[34:35] neg_lo:[0,1] neg_hi:[0,1]")
    A.e(["v_pk_mul_f32 v[34:35], v[96:97], v[96:97]", "v_pk_mul_f32 v[36:37], v[98:99], v[98:99]"])
    for i in range(2, 16):
        r_ = 34 + 2 * (i % 2)
        A.e(f"v_pk_fma_f32 v[{r_}:{r_+1}], v[{96+2*i}:{97+2*i}], v[{96+2*i}:{97+2*i}], v[{r_}:{r_+1}]")
    A.e(["v_pk_add_f32 v[34:35], v[34:35], v[36:37]", "v_add_f32 v33, v34, v35"])
    lanesum(33)
    A.e(["ds_write_b64 v45, v[32:33]", "s_waitcnt lgkmcnt(0)", "s_barrier",
         "ds_read_b128 v[96:99], v44", "ds_read_b128 v[100:103], v44 offset:16", "s_waitcnt lgkmcnt(0)",
         "v_add_f32 v32, v96, v98", "v_add_f32 v33, v100, v102", "v_add_f32 v34, v97, v99", "v_add_f32 v35, v101, v103",
         "v_add_f32 v32, v32, v33", "v_add_f32 v34, v34, v35", "v_mul_f32 v32, 0.25, v32" if False else "v_mul_f32 v32, 0x3e800000, v32",
         "v_sub_f32 v96, v96, v32", "v_sub_f32 v98, v98, v32", "v_sub_f32 v100, v100, v32", "v_sub_f32 v102, v102, v32",
         "v_mul_f32 v35, v96, v96", "v_fmac_f32 v35, v98, v98", "v_fmac_f32 v35, v100, v100", "v_fmac_f32 v35, v102, v102",
         "v_mul_f32 v34, 0x3a800000, v34", "v_fmac_f32 v34, 0x3e800000, v35"])
    A.e(["v_cvt_pk_bf16_f32 v34, v34, v32", "v_and_b32 v32, 0xffff0000, v34", "v_lshlrev_b32 v34, 16, v34",
         "v_add_f32 v34, 0x3727c5ac, v34", "v_cvt_pk_bf16_f32 v34, v34, v34", "v_lshlrev_b32 v34, 16, v34",
         "v_sqrt_f32 v34, v34", "v_mov_b32 v33, v32", "v_cvt_pk_bf16_f32 v34, v34, v34", "v_lshlrev_b32 v34, 16, v34",
         "v_rcp_f32 v34, v34", "s_nop 0", "v_mov_b32 v35, v34"])
    for q4 in range(4):
        for i in range(4 * q4, 4 * q4 + 4):
            x = X0 + 2 * i
            A.e([f"v_pk_add_f32 v[{x}:{x+1}], v[{x}:{x+1}], v[32:33] neg_lo:[0,1] neg_hi:[0,1]",
                 f"v_cvt_pk_bf16_f32 v{48+i}, v{x}, v{x+1}",
                 f"v_lshlrev_b32 v{x}, 16, v{48+i}", f"v_and_b32 v{x+1}, 0xffff0000, v{48+i}",
                 f"v_pk_mul_f32 v[{x}:{x+1}], v[{x}:{x+1}], v[34:35]",
                 f"v_cvt_pk_bf16_f32 v{48+i}, v{x}, v{x+1}"])
        A.e(f"buffer_store_dwordx4 v[{48+4*q4}:{51+4*q4}], v43, s[40:43], s90 offen offset:{2048*(q4%2)} {WT}"); vq.issue(("S", 0))
        if q4 == 1: A.e("s_add_u32 s90, s90, 4096")
    stamp(3, 1)
    A.e(vq.need(("N", 0)))
    A.e(SPINB)
    A.label(L("pollN"))
    A.e(["v_readfirstlane_b32 s98, v128", "v_readfirstlane_b32 s99, v129", "s_cmp_lg_u32 s98, 0", f"s_cbranch_scc1 {L('gotN')}",
         "s_sub_u32 s12, s12, 1", f"s_cbranch_scc1 {L('gotN')}",
         f"buffer_load_dwordx2 v[128:129], v47, s[60:63], 0 offen {WT}", "s_waitcnt vmcnt(0)", f"s_branch {L('pollN')}"])
    A.label(L("gotN"))
    A.e([mfma32(v(i, 16), v(132, 4), v(132, 4), "0") for i in range(64, 128, 16)])
    A.e(vq.drain()); A.e("s_barrier")
    stamp(4, 1)
    A.e(["s_cmp_lg_u32 s3, 0", f"s_cbranch_scc1 {L('nf')}", "s_mov_b64 exec, 1",
         f"buffer_store_dwordx2 v[128:129], v47, s[84:87], s91 offen {WT}", "s_mov_b64 exec, -1"])
    A.label(L("nf"))
    for op in d_ops(1, 0, True) + d_ops(1, 1, True): emit_vm(op, A.e, True)
    A.e("s_mov_b32 s90, s88")
    for op in d_ops(2, 0, True) + d_ops(2, 1, True): emit_vm(op, A.e, True)
    if tlb & 2:
        srd(A, 68, P_OUT, 2048 * 2048)
        A.e(["v_lshlrev_b32 v1, 21, v0"] + [f"buffer_load_dword a237, v1, s[{r}:{r+3}], 0 offen offset:2048" for r in (44, 48, 52, 68)])
    A.e([mfma32(v(i, 16), v(132, 4), v(132, 4), "0") for i in (32, 48)])
    A.e(["v_lshrrev_b32 v1, 4, v0", "v_mul_u32_u24 v30, 6144, v1", "v_and_b32 v1, 1, v1",
         "v_bfe_u32 v31, v0, 2, 2", "v_lshl_add_u32 v30, v31, 8, v30", "v_lshl_or_b32 v31, v31, 1, v1",
         "v_and_b32 v1, 3, v0", "v_lshl_add_u32 v30, v1, 3, v30", "v_add_u32 v30, 0x4000, v30"])
    for cb in range(8):
        A.e([f"v_xor_b32 v1, {cb}, v31", f"v_lshl_add_u32 v{9+cb}, v1, 5, v30", f"v_add_u32 v{17+cb}, 98304, v{9+cb}"])
    srd(A, 64, P_K, 4 * 2048 * 256)
    srd(A, 68, P_V, 4 * 2048 * 256)
    srd(A, 56, P_WS, SZ_HF, WS_HF)
    srd(A, 60, P_WS, (G_BASE + G_SF + 0x400000 - WS_OF) if sen else SZ_OF, WS_OF)
    A.e(["v_lshrrev_b32 v30, 4, v0", "v_and_b32 v31, 15, v0", "v_xor_b32 v1, v31, v30"])
    for i in range(4):
        A.e([f"v_xor_b32 v{25+i}, {4*i}, v1", f"v_lshlrev_b32 v{25+i}, 4, v{25+i}", f"v_lshl_add_u32 v{25+i}, v30, 8, v{25+i}"])
    A.e(["v_lshlrev_b32 v1, 2, v30", "v_xor_b32 v1, v31, v1", "v_lshlrev_b32 v1, 4, v1", "v_lshl_add_u32 v29, v30, 8, v1",
         "s_lshr_b32 s12, s5, 3", "s_lshl_b32 s12, s12, 19", "s_lshl_b32 s92, s3, 12",
         "s_add_u32 s93, s12, s92", f"s_add_u32 s93, s93, {1536*256}",
         "s_mov_b32 s9, 7"])
    if pfG in (1, 2):
        srd(A, 72, P_WO, 4096 * 2048); srd(A, 80, P_WD, 3584 * 2048)
        A.e(["s_lshl_b32 s12, s2, 2", "s_add_u32 s12, s12, s3", "s_lshl_b32 s96, s12, 13", "s_mul_i32 s97, s12, 7168",
             f"v_and_b32 v31, {7 if pfs == 7 else 3}, v0", f"v_lshlrev_b32 v31, {pfs}, v31"])
    stamp(5, 1)
    A.e(["s_cmp_lg_u32 s3, 0", f"s_cbranch_scc1 {L('gotL')}",
         "v_and_b32 v1, 31, v0", "v_lshlrev_b32 v1, 5, v1", "s_lshl_b32 s13, s4, 10", f"s_add_u32 s13, s13, {FL_L}", SPINB])
    A.label(L("pollL"))
    A.e([f"buffer_load_dwordx2 v[128:129], v1, s[84:87], s13 offen {WT}", "s_waitcnt vmcnt(0)",
         "s_sub_u32 s12, s12, 1", f"s_cbranch_scc1 {L('gotL')}",
         "v_cmp_ne_u64 vcc, s[98:99], v[128:129]", f"s_cbranch_vccz {L('gotL')}", f"s_sleep {psleep}", f"s_branch {L('pollL')}"])
    A.label(L("gotL"))
    A.e(vq.need(("D", 1, 1))); A.e("s_barrier")
    stamp(6, 1)
    for op in x_ops(0): A.e(op[1].replace("s88 offen", "s90 offen")); vq.issue(op[2])
    for op in x_ops(1): A.e(op[1]); vq.issue(op[2])
    for op in d_ops(3, 0, True) + d_ops(3, 1, True): emit_vm(op, A.e, True)
    for blk in range(4):
        for ins, tg in rd_ops(0, blk): A.e(ins); dq.issue(tg)
    A.e([f"v_mov_b32 v{i}, 0" for i in (128, 129, 130, 131)])
    A.e(vq.need(("X", 1)))
    stamp(1)

    BARM = 151
    SLOT = ["s_add_u32 s10, s72, s95", "s_add_u32 s73, s72, 98304", ["s_cmp_ge_u32 s73, 147456", "s_cselect_b32 s74, 147456, 0"], "s_sub_u32 s73, 98304, s74",
            "s_add_u32 s72, s72, 49152", ["s_cmp_ge_u32 s72, 147456", "s_cselect_b32 s72, 0, s72"]]
    def sstep(S, E, xs=True, ds=None, after=(), last=False):
        xo = x_ops(2 * S + 2) + x_ops(2 * S + 3) if xs else []
        do = (d_ops(2 * S + 4, 0) + d_ops(2 * S + 4, 1) + d_ops(2 * S + 5, 0) + d_ops(2 * S + 5, 1)) if ds is None else list(ds)
        c1 = [m for m in range(2, 148) if m % 4 == 2]
        px = c1[:len(xo)]; rest = c1[len(xo) + 2:]
        pd = [rest[(i * len(rest)) // len(do)] for i in range(len(do))] if do else []
        c2 = [m for m in range(BARM + 2, 176, 2)]
        sched = list(zip(px, xo)) + list(zip(pd, do)) + list(zip(c2, after))
        tailops = list(after)[len(c2):]
        misc = [] if last else list(SLOT) + [f"v_add_u32 v{(17 if S % 2 == 0 else 9) + cb}, s73, v{(17 if S % 2 == 0 else 9) + cb}" for cb in range(8)]
        pend = []; post = []; vi = 0
        pres = [list(op[0]) for _, op in sched]
        for m in range(176):
            b, j, c = m // 8, (m % 8) // 2, m % 2
            if alt & 1: c ^= j & 1
            if alt & 2 and b % 2: j = 3 - j
            if m == 0: E(vq.need(("X", 2 * S + 1)))
            if m % 8 == 0: E(dq.need(("A", S, b)))
            E(mfma16(acc(b, j), Afr(S, b, c), Bfr((2 * S + c) % 4, j)))
            if m == BARM:
                E(vq.need(("D", 2 * S + 3, 1))); E(dq.drain()); E("s_barrier")
            if m % 8 == 7:
                if b + 4 < 22: pend += rd_ops(S, b + 4)
                elif not last: pend += rd_ops(S + 1, b + 4 - 22)
            if vi < len(sched) and m == sched[vi][0]:
                E(pres[vi]);
                if pres[vi]: E("s_nop 0")
                op = sched[vi][1]
                E(op[1]); vq.issue(op[2]); post += op[3]; vi += 1
            else:
                used = 0
                if pend:
                    ins, tag = pend.pop(0); E(ins); dq.issue(tag); used += 1
                while misc and used < 2:
                    x = misc.pop(0); E(x); used += 1 if isinstance(x, str) else 2
                while post and used < 2: E(post.pop(0)); used += 1
                if vi < len(sched) and not misc and not post and vi >= len(xo) and not (sched[vi][0] > BARM and m < BARM):
                    while pres[vi] and used < 2:
                        x = pres[vi].pop(0)
                        if x.startswith("s_cmp"): x = [x, pres[vi].pop(0)]; used += 1
                        E(x); used += 1
        for ins, tag in pend: E(ins); dq.issue(tag)
        E(post)
        for op in tailops: emit_vm(op, E, True)
    reb = lambda q: [((t[0], t[1] - (2 if t[0] == "A" else 4)) + tuple(t[2:])) for t in q]
    for S in range(2): sstep(S, lambda x: None)
    vq.q = reb(vq.q); dq.q = reb(dq.q)
    A.raw(".p2align 6")
    A.label(L("loop"))
    for S in range(2): sstep(S, A.e)
    A.e(["s_sub_u32 s9, s9, 1", "s_cmp_lg_u32 s9, 0", f"s_cbranch_scc1 {L('loop')}"])
    vq.q = reb(vq.q); dq.q = reb(dq.q)
    if cpf >= 2: emit_vm(code_touch(30, "a238"), A.e)
    sstep(0, A.e, ds=kv_ops("K", 0) + kv_ops("V", 0) + kv_ops("V", 1) + kv_ops("V", 2))
    sstep(1, A.e, xs=False, ds=kv_ops("V", 3), after=kv_ops("K", 1) + kv_ops("K", 2) + kv_ops("K", 3), last=True)
    stamp(2)

    HP = "" if hwb else WT
    A.e(["s_mul_i32 s6, s15, 114688", "s_mul_i32 s12, s5, 7", "s_add_u32 s12, s12, 1", "s_lshr_b32 s12, s12, 1", "s_lshl_b32 s12, s12, 10",
         "s_add_u32 s6, s6, s12",
         "s_and_b32 s13, s5, 1", "s_cmp_eq_u32 s13, 0", "s_mov_b32 s13, 0xfffffc08", "s_cselect_b32 s13, 0xc00, s13",
         "s_add_u32 s7, s6, s13",
         "s_mov_b32 s8, 0xbfb8aa3b", "s_mov_b32 s9, 0xbfb8aa3b"])
    def hblock(b, j, dst):
        g = 32 + ((2 * b) * 4 + j) * 4; u = g + 16
        out = []
        out += [f"v_pk_mul_f32 v[{g+r_}:{g+r_+1}], v[{g+r_}:{g+r_+1}], s[8:9]" for r_ in (0, 2)]
        out += [f"v_exp_f32 v{g+r_}, v{g+r_}" for r_ in range(4)]
        out += [f"v_pk_add_f32 v[{g+r_}:{g+r_+1}], v[{g+r_}:{g+r_+1}], 1.0 op_sel_hi:[1,0]" for r_ in (0, 2)]
        out += [f"v_rcp_f32 v{g+r_}, v{g+r_}" for r_ in range(4)]
        out += [f"v_pk_mul_f32 v[{g+r_}:{g+r_+1}], v[{g+r_}:{g+r_+1}], v[{u+r_}:{u+r_+1}]" for r_ in (0, 2)]
        out += [f"v_cvt_pk_bf16_f32 v{dst}, v{g}, v{g+1}", f"v_cvt_pk_bf16_f32 v{dst+1}, v{g+2}, v{g+3}"]
        return out
    for i in range(2):
        for j in range(4):
            dst = 32 + ((4 * i + 1) * 4 + j) * 4
            A.e(hblock(2 * i, j, dst)); A.e(hblock(2 * i + 1, j, dst + 2))
            A.e([f"s_add_u32 s13, s6, {j*114688}", f"buffer_store_dwordx4 {v(dst,4)}, v4, s[56:59], s13 offen offset:{i*1024} {HP}"]); vq.issue(("H", 0))
    hrest = []; hdef = []
    if not hdf:
        for j in range(4):
            dst = 32 + (9 * 4 + j) * 4
            A.e(hblock(4, j, dst) + hblock(5, j, dst + 2) + [f"s_add_u32 s13, s6, {j*114688}", f"buffer_store_dwordx4 {v(dst,4)}, v4, s[56:59], s13 offen offset:2048 {HP}"]); vq.issue(("H", 0))
            dst = 32 + (13 * 4 + j) * 4
            A.e(hblock(6, j, dst) + [f"s_add_u32 s13, s7, {j*114688}", f"buffer_store_dwordx2 {v(dst,2)}, v4, s[56:59], s13 offen {HP}"]); vq.issue(("H", 0))
    for j in range(4 if hdf else 0):
        dst = 32 + (9 * 4 + j) * 4
        if hdf == 2:
            hrest += hblock(4, j, dst) + hblock(5, j, dst + 2) + [f"s_add_u32 s13, s6, {j*114688}", f"buffer_store_dwordx4 {v(dst,4)}, v4, s[56:59], s13 offen offset:2048 {HP}"]
            continue
        hrest += hblock(4, j, dst) + hblock(5, j, dst + 2) + [f"v_accvgpr_write_b32 a{192+4*j+k}, v{dst+k}" for k in range(4)]
        hdef.append(([f"s_add_u32 s90, s14, {j*114688}"], f"buffer_store_dwordx4 {a(192+4*j,4)}, v4, s[56:59], s90 offen offset:2048 {HP}", ("H", 0), []))
    for j in range(4 if hdf else 0):
        dst = 32 + (13 * 4 + j) * 4
        if hdf == 2:
            hrest += hblock(6, j, dst) + [f"s_add_u32 s13, s7, {j*114688}", f"buffer_store_dwordx2 {v(dst,2)}, v4, s[56:59], s13 offen {HP}"]
            continue
        hrest += hblock(6, j, dst) + [f"v_accvgpr_write_b32 a{208+2*j+k}, v{dst+k}" for k in range(2)]
        hdef.append(([f"s_add_u32 s90, s4, {j*114688}"], f"buffer_store_dwordx2 {a(208+2*j,2)}, v4, s[56:59], s90 offen {HP}", ("H", 0), []))
    QF = lambda mu, t: 32 + (mu * 8 + t) * 4
    SB = lambda b, mu: 96 + (b * 2 + mu) * 16
    NM = lambda mu: 160 + mu * 16
    PB = lambda b, mu: 192 + (b * 2 + mu) * 8
    EB = 224; VL = 232; VTS = 234; VT = 236
    A.e([f"s_mov_b32 s12, {QSCALE:#x}", f"s_mov_b32 s13, {QSCALE:#x}", f"s_mov_b32 s95, {thr:#x}"])
    for t in range(8):
        for mu in range(2):
            tmp = 96 + ((t * 2 + mu) % 4) * 8
            for x in range(2):
                src = (t * 4 + 2 * mu + x) * 4
                A.e([f"v_accvgpr_read_b32 v{tmp+4*x+r_}, a{src+r_}" for r_ in range(4)])
            A.e([f"v_pk_mul_f32 v[{tmp+2*k}:{tmp+2*k+1}], v[{tmp+2*k}:{tmp+2*k+1}], s[12:13]" for k in range(4)])
            q = QF(mu, t)
            A.e([f"v_cvt_pk_bf16_f32 v{q+k}, v{tmp+2*k}, v{tmp+2*k+1}" for k in range(4)])
            if (t * 2 + mu) > 0:
                pq = QF(*prev)
                A.e([f"v_permlane16_swap_b32 v{pq}, v{pq+2}", f"v_permlane16_swap_b32 v{pq+1}, v{pq+3}"])
            prev = (mu, t)
    A.e(["v_and_b32 v30, 31, v0", "v_lshrrev_b32 v31, 5, v0", "v_and_b32 v1, 15, v0", "v_xor_b32 v1, v1, v31",
         "v_lshlrev_b32 v30, 8, v30"])
    pq = QF(*prev)
    A.e([f"v_permlane16_swap_b32 v{pq}, v{pq+2}", f"v_permlane16_swap_b32 v{pq+1}, v{pq+3}"])
    for t in range(8):
        A.e([f"v_xor_b32 v{9+t}, {2*t}, v1", f"v_lshl_add_u32 v{9+t}, v{9+t}, 4, v30"])
    A.e(["v_bfe_u32 v1, v0, 2, 2", "v_lshlrev_b32 v30, 10, v31", "v_lshl_add_u32 v30, v1, 8, v30",
         "v_bfe_u32 v22, v0, 4, 1", "v_lshl_add_u32 v30, v22, 5, v30", "v_and_b32 v23, 3, v0", "v_lshl_add_u32 v30, v23, 3, v30",
         "v_add_u32 v30, 0x10000, v30"])
    for i in range(4):
        A.e([f"v_xor_b32 v23, {i}, v1", f"v_lshl_add_u32 v{17+i}, v23, 6, v30"])
    A.e(["v_lshlrev_b32 v21, 17, v22", "v_lshl_add_u32 v21, v31, 8, v21", "v_and_b32 v1, 15, v0", "v_lshl_add_u32 v21, v1, 4, v21"])
    Kf = lambda t: a(128 + t * 4, 4)
    Vf = lambda i, tp, h=None: a(160 + (i * 2 + tp) * 4, 4) if h is None else a(160 + (i * 2 + tp) * 4 + 2 * h, 2)
    Oacc = lambda i, mu: a((i * 2 + mu) * 16, 16)
    def k_reads(T): return [(f"ds_read_b128 {Kf(t)}, v{9+t} offset:{(T % 8) * 8192}", ("K", T, t)) for t in range(8)]
    def v_reads(T):
        return [(f"ds_read_b64_tr_b16 {Vf(i,tp,h)}, v{17+i} offset:{(T % 8) * 8192 + tp * 4096 + h * 2048}", ("V", T, i, tp))
                for i in range(4) for tp in range(2) for h in range(2)]
    def qk(T, c0):
        return [(mfma32(v(SB(T & 1, mu), 16), Kf(t), v(QF(mu, t), 4), (c0(mu) if t == 0 else None)), ("K", T, t)) for t in range(8) for mu in range(2)]
    def pv(T):
        return [(mfma32(Oacc(i, mu), Vf(i, tp), v(PB(T & 1, mu) + 4 * tp, 4), ("0" if (T == 0 and tp == 0) else None)), ("V", T, i, tp))
                for i in range(4) for tp in range(2) for mu in range(2)]
    A.e(vq.need(("K", 3))); A.e("s_barrier")
    dq.slack = 15
    for ins, tag in k_reads(0): A.e(ins); dq.issue(tag)
    A.e(hrest[:12]); hrest = hrest[12:]
    for ins, tag in qk(0, lambda mu: "0"):
        A.e(dq.need(tag, 4)); A.e(ins); A.e(hrest[:4]); hrest = hrest[4:]
    for ins, tag in k_reads(1): A.e(ins); dq.issue(tag)
    A.e(hrest)
    if hdf == 2:
        for _ in range(8): vq.issue(("H", 0))
    B = Asm()
    B.e((["s_and_b32 s12, s2, 7", "s_lshr_b32 s72, s12, 2", "s_and_b32 s13, s12, 1", "s_lshl_b32 s73, s4, 1", "s_add_u32 s73, s73, s13",
         "s_bfe_u32 s13, s12, 0x10001"] if kmap == 0 else
        ["s_and_b32 s72, s2, 1", "s_bfe_u32 s13, s2, 0x10001", "s_lshl_b32 s73, s4, 1", "s_add_u32 s73, s73, s13",
         "s_bfe_u32 s13, s2, 0x10002"]) + ["s_lshl_b32 s13, s13, 2", "s_lshr_b32 s74, s2, 6", "s_add_u32 s74, s74, s13",
         "s_lshr_b32 s12, s3, 1", "s_and_b32 s13, s3, 1",
         "s_cmp_eq_u32 s72, 0",
         f"s_cselect_b32 s8, {8*N1S}, {8*N1Y}", f"s_cselect_b32 s9, 0, {16*N1S}", "s_mul_i32 s8, s8, s12", "s_add_u32 s8, s8, s9",
         "s_cmp_eq_u32 s72, 0",
         f"s_cselect_b32 s75, {SS}, {64-SS}", f"s_cselect_b32 s96, 0, {2*SS}", "s_mul_i32 s75, s75, s12", "s_add_u32 s75, s75, s96",
         "s_lshl_b32 s9, s8, 10", "s_lshl_b32 s8, s8, 16",
         "s_lshl_b32 s96, s75, 10", "s_lshl_b32 s75, s75, 16",
         "s_lshl_b32 s13, s13, 12",
         "s_lshl_b32 s10, s12, 17", "s_add_u32 s10, s10, s13",
         "s_lshl_b32 s11, s12, 16", "s_add_u32 s11, s11, 0x8000", "s_add_u32 s11, s11, s13",
         "v_lshrrev_b32 v30, 4, v0", "v_and_b32 v31, 15, v0", "v_lshlrev_b32 v1, 2, v30", "v_xor_b32 v31, v31, v1",
         "s_lshl_b32 s13, s13, 3", "s_lshl_b32 s97, s74, 8", "s_add_u32 s97, s97, s13",
         "v_lshlrev_b32 v30, 11, v30", "v_add_u32 v30, s97, v30",
         "v_lshl_add_u32 v246, v31, 4, v30", "v_xor_b32 v31, 2, v31", "v_lshl_add_u32 v247, v31, 4, v30", "v_add_u32 v247, 7168, v247",
         "v_add_u32 v248, 14336, v246", "v_add_u32 v249, 14336, v247", "v_mov_b32 v250, s98", "v_mov_b32 v251, s99", "v_mov_b32 v252, 0",
         "s_lshl_b32 s97, s73, 3", "s_and_b32 s13, s3, 1", "s_lshl_b32 s13, s13, 2", "s_add_u32 s97, s97, s13", "s_lshl_b32 s12, s12, 1"])
    for jj in range(4):
        B.e([f"s_xor_b32 s13, s12, {jj}", "s_add_u32 s13, s13, s97", "s_mul_i32 s90, s13, 114688", f"v_add_u32 v{5+jj}, s90, v4",
             "s_lshl_b32 s90, s13, 17", f"v_add_u32 v{242+jj}, s90, v4"])
    B.e(["v_lshlrev_b32 v24, 5, v0", "v_and_b32 v24, 0x3e0, v24",
         "s_lshl_b32 s12, s4, 10", f"s_add_u32 s91, s12, {FL_H}", f"s_add_u32 s97, s12, {FL_O}",
         "s_lshl_b32 s13, s5, 5", "s_add_u32 s88, s91, s13", "s_add_u32 s89, s97, s13"])
    srd(B, 48, P_WS, FL_SZ, WS_FLAG)
    srd(B, 44, P_WD, 3584 * 2048)
    srd(B, 40, P_WS, SZ_HF, WS_HF)
    for i in range(8):
        B.e([f"s_add_u32 s13, s14, {i}", "s_and_b32 s13, s13, 7", f"s_lshl_b32 s{80+i}, s13, 10"])
    if xe:
        srd(B, 56, P_X, 2048 * 2048)
        B.e(["s_lshl_b32 s90, s73, 7", "s_and_b32 s12, s3, 1", "s_lshl_b32 s12, s12, 6", "s_add_u32 s90, s90, s12",
             "s_lshr_b32 s12, s3, 1", "s_lshl_b32 s12, s12, 5", "s_add_u32 s90, s90, s12",
             "s_lshl_b32 s90, s90, 11", "s_lshl_b32 s12, s74, 8", "s_add_u32 s90, s90, s12",
             "s_cmp_eq_u32 s72, 0", "s_cselect_b32 s90, s90, 0x7fff0000",
             "s_lshl_b32 s4, s3, 13", "s_add_u32 s4, s4, 0x20000", "s_add_u32 s14, s90, 0x8000",
             "v_lshrrev_b32 v30, 4, v0", "v_and_b32 v1, 15, v0", "v_xor_b32 v1, v1, v30", "v_lshlrev_b32 v30, 11, v30"])
        for i, r_ in ((1, 253), (2, 254), (3, 255), (0, 1)):
            B.e([f"v_xor_b32 v{r_}, {4*i}, v1", f"v_lshl_add_u32 v{r_}, v{r_}, 4, v30"] + ([f"v_add_u32 v{r_}, {7168*i}, v{r_}"] if i else []))
    late = []
    for l_ in [x.strip() for x in B.lines]:
        if l_.startswith(("s_cselect", "s_addc", "s_subb")): late[-1] = (late[-1][0] + [l_], late[-1][1] + 4)
        else: late.append(([l_], 4))
    if not lset:
        for x, c in late: A.e(x)
        late = []
    WV = 246
    def w_ops(t, half=False):
        slot = t % 8
        ops = []
        rot_ = [f"s_and_b32 s12, s{80+slot}, 0xc00", "s_lshl_b32 s12, s12, 6"] if half else [f"s_lshl_b32 s12, s{80+slot}, 6"]
        for i in range(4):
            ops.append(([f"s_add_u32 m0, s{10 if slot < 4 else 11}, {(slot%4)*8192}"] + rot_ + ["s_add_u32 s12, s12, s8"] if i == 0 else [],
                        f"buffer_load_dwordx4 v{WV+i}, s[44:47], s12 offen offset:{i*1024} lds", ("W", t),
                        ["s_add_u32 s8, s8, 0x80000"] if (i == 3 and slot == 7) else []))
        return ops
    BR = [192, 208, 0, 16, 32, 48, 64, 80] if xe else [192, 208, 224, 0, 16, 32, 48, 64]
    facc = lambda cb, jj: v(32 + (cb * 4 + jj) * 4, 4)
    FA = lambda cb, c, h=None: a(128 + (c * 8 + cb) * 4, 4) if h is None else a(128 + (c * 8 + cb) * 4 + 2 * h, 2)
    FB = lambda slot, jj: a(BR[slot] + jj * 4, 4)
    def a_ops(t, half=False):
        slot = t % 8
        return [(([f"s_and_b32 s13, s{80+slot}, 0xc00", "s_add_u32 s13, s13, s9"] if half else [f"s_add_u32 s13, s{80+slot}, s9"]) if jj == 0 else [],
                 f"buffer_load_dwordx4 {FB(slot,jj)}, v{5+jj}, s[40:43], s13 offen {apol}", ("X", t),
                 ["s_add_u32 s9, s9, 0x2000"] if (jj == 3 and slot == 7) else []) for jj in range(4)]
    spins = []
    def check_flags(tag, reg, addr, off):
        A.e([f"v_cmp_ne_u64 vcc, s[98:99], v[{reg}:{reg+1}]", f"s_cbranch_vccnz {L('spin' + tag)}"])
        A.label(L("ok" + tag))
        spins.append((tag, reg, addr, off))

    if hdf == 1: A.e(["s_mov_b32 s14, s6", "s_mov_b32 s4, s7"]); assert not lset
    A.e(["v_mov_b32 v232, 0", "v_mov_b32 v233, 0"] + (["s_nop 2"] if (lset and not hdf) else []))
    def rowmax(S, dst, tmp):
        out = [f"v_max3_f32 v{dst}, v{S}, v{S+1}, v{S+2}"]
        for k in range(3, 15, 2): out.append(f"v_max3_f32 v{dst}, v{dst}, v{S+k}, v{S+k+1}")
        out += [f"v_max_f32 v{dst}, v{dst}, v{S+15}", f"v_mov_b32 v{tmp}, v{dst}", "s_nop 1",
                f"v_permlane32_swap_b32 v{tmp}, v{dst}", f"v_max_f32 v{dst}, v{dst}, v{tmp}"]
        return out
    for mu in range(2):
        A.e(rowmax(SB(0, mu), VT + mu, VT + 2))
        A.e([f"v_sub_f32 v{NM(mu)+k}, 0, v{VT+mu}" for k in range(16)])
        A.e([f"v_sub_f32 v{SB(0,mu)+k}, v{SB(0,mu)+k}, v{VT+mu}" for k in range(16)])
    def sm(T):
        b = T & 1
        out = []
        def ex(n): return (f"v_exp_f32 v{EB + n % 8}, v{SB(b, n // 16) + n % 16}", 8)
        def fin(n):
            mu, r_ = n // 16, n % 16; e = EB + n % 8; o = []
            if pka:
                if r_ % 2 == 1:
                    P_ = VT + 2 + 2 * mu
                    if r_ == 3: o.append((f"v_pk_add_f32 v[{P_}:{P_+1}], v[{EB + (n-3) % 8}:{EB + (n-3) % 8 + 1}], v[{e-1}:{e}]", 8))
                    elif r_ > 3: o.append((f"v_pk_add_f32 v[{P_}:{P_+1}], v[{P_}:{P_+1}], v[{e-1}:{e}]", 8))
                    o.append((f"v_cvt_pk_bf16_f32 v{PB(b,mu) + r_//2}, v{e-1}, v{e}", 5))
                    if r_ == 15: o.append((f"v_add_f32 v{VTS+mu}, v{P_}, v{P_+1}", 4))
                return o
            if r_ == 1: o.append((f"v_add_f32 v{VTS+mu}, v{EB + (n-1) % 8}, v{e}", 4))
            elif r_ > 1: o.append((f"v_add_f32 v{VTS+mu}, v{VTS+mu}, v{e}", 4))
            if r_ % 2 == 1: o.append((f"v_cvt_pk_bf16_f32 v{PB(b,mu) + r_//2}, v{EB + (n-1) % 8}, v{e}", 5))
            return o
        out.append(ex(0)); out.append(ex(1))
        for n in range(2, 32):
            out.append(ex(n)); out += fin(n - 2)
        out += fin(30) + fin(31)
        out += [(f"v_max_f32 v{VT}, v{VTS}, v{VTS+1}", 4), (f"v_cmp_nge_f32 vcc, s95, v{VT}", 4)]
        return out
    stamp(3)
    def flag_store(off_sreg):
        lab = L("fl%d" % A.nlabel); A.nlabel += 1
        A.e(["s_cmp_lg_u32 s3, 0", f"s_cbranch_scc1 {lab}", "s_mov_b64 exec, 1",
             f"buffer_store_dwordx2 v[250:251], v252, s[48:51], {off_sreg} offen {WT}", "s_mov_b64 exec, -1"])
        A.label(lab)
    endsetup = ["s_lshl_b32 s6, s15, 17", "s_lshl_b32 s90, s5, 12", "s_add_u32 s6, s6, s90", "s_add_u32 s7, s6, 0x40000",
                f"v_mov_b32 v{VT}, v{VL}", f"v_mov_b32 v{VT+1}, v{VL+1}", "v_mov_b32 v29, v21", "v_mov_b32 v253, v24",
                f"v_permlane32_swap_b32 v{VT}, v{VL}", f"v_permlane32_swap_b32 v{VT+1}, v{VL+1}",
                f"v_add_f32 v{VT}, v{VT}, v{VL}", f"v_add_f32 v{VT+1}, v{VT+1}, v{VL+1}",
                f"v_rcp_f32 v{VT+2}, v{VT}", f"v_rcp_f32 v{VT+4}, v{VT+1}",
                "v_lshrrev_b32 v1, 4, v0", f"v_mov_b32 v{VT+3}, v{VT+2}", f"v_mov_b32 v{VT+5}, v{VT+4}",
                "v_lshlrev_b32 v30, 10, v1", "v_and_b32 v1, 1, v1",
                "v_bfe_u32 v31, v0, 2, 2", "v_lshl_add_u32 v30, v31, 8, v30", "v_lshl_or_b32 v31, v31, 1, v1",
                "v_and_b32 v1, 3, v0", "v_lshl_add_u32 v30, v1, 3, v30",
                "s_lshr_b32 s91, s3, 1", "s_lshl_b32 s90, s91, 17", "s_lshl_b32 s91, s91, 16", "s_add_u32 s91, s91, 0x8000"]
    for cb in range(8):
        endsetup += [f"v_xor_b32 v1, {cb}, v31", "v_lshl_add_u32 v1, v1, 5, v30", f"v_add_u32 v{9+cb}, s90, v1", f"v_add_u32 v{17+cb}, s91, v1"]
    rare_sites = []
    for T in range(17):
        mf = (qk(T + 1, lambda mu: v(NM(mu), 16)) if T + 1 <= 15 else []) + (pv(T - 1) if T >= 1 else [])
        nq = 16 if T + 1 <= 15 else 0
        va = ([(f"v_add_f32 v{VL}, v{VL}, v{VTS}", 4), (f"v_add_f32 v{VL+1}, v{VL+1}, v{VTS+1}", 4)] if T >= 1 else []) + (sm(T) if T <= 15 else [])
        rdv = v_reads(T - 1) if T >= 1 else []
        rdk = k_reads(T + 2) if T + 2 <= 15 else []
        vm = []
        if T % 2 == 0 and T <= 14:
            w = []
            if T == hfT: w += vq.need(("H", 0))
            if T >= 6: w += vq.need(("K", (T + 2) // 2))
            if T >= 8: w += vq.need(("V", T // 2))
            A.e(w[-1:]); A.e(dq.drain()); A.e("s_barrier")
            if T == hfT:
                if hwb:
                    lab = L("wb")
                    A.e(["s_cmp_lg_u32 s3, 0", f"s_cbranch_scc1 {lab}", "buffer_wbl2 sc1"]); A.label(lab)
                else: flag_store("s88")
            if T == 8 and hwb: flag_store("s88")
            if T <= 6: vm += kv_ops("K", T // 2 + 4)
            if 4 <= T <= 10: vm += kv_ops("V", T // 2 + 2)
            if T == 12: vm += w_ops(0) + w_ops(1)
            if T == 14:
                A.e(vq.need(("F", 0))); check_flags("H", 22, 24, "s91")
                vm += a_ops(0) + a_ops(1)
        if pfA and pf0 <= T <= pf0 + 7:
            pre = []
            if T == pf0:
                pre = [f"s_mov_b32 s52, s{P_WO}", f"s_and_b32 s53, s{P_WO+1}, 0xffff", f"s_mov_b32 s54, {4096*2048:#x}",
                       "s_lshl_b32 s12, s2, 2", "s_add_u32 s12, s12, s3", "s_lshl_b32 s100, s12, 13", "s_mul_i32 s101, s12, 7168",
                       "v_and_b32 v2, 7, v0", "v_lshlrev_b32 v2, 7, v2", "v_add_u32 v3, 4096, v2"]
            k = T - pf0
            if k < 7: vm += [(pre, f"buffer_load_dword v31, v{2 if k < 4 else 3}, s[44:47], s101 offen offset:{(k % 4) * 1024}", ("P", 0), [])]
            if pfA == 2: vm += [([], f"buffer_load_dword v31, v{2 if k < 4 else 3}, s[52:55], s100 offen offset:{(k % 4) * 1024}", ("P", 0), [])]
        if xe and 5 <= T <= 8:
            hh, i0 = (T - 5) // 2, 2 * ((T - 5) % 2)
            for i in (i0, i0 + 1):
                vm += [([f"s_add_u32 m0, s4, {4096*hh}"] if i == i0 else [],
                        f"buffer_load_dwordx4 v{(1, 253, 254, 255)[i]}, s[56:59], {'s14' if hh else 's90'} offen offset:{i*1024} lds", ("R", 0), [])]
        if sen and 5 <= T <= 10:
            ks = {5: (0,), 6: (1,), 7: (2, 3), 8: (4,), 9: (5, 6), 10: (7,)}[T]
            for k in ks:
                pre = []
                if k == 0:
                    pre = ["s_lshl_b32 s12, s73, 3", "s_add_u32 s12, s12, s74", "s_lshl_b32 s12, s12, 2", "s_add_u32 s12, s12, s3", "s_lshl_b32 s12, s12, 13",
                           f"s_add_u32 s88, s12, {G_BASE + G_SF - WS_OF:#x}", ["s_cmp_eq_u32 s72, 0", "s_cselect_b32 s88, 0x7fff0000, s88"]] + \
                          [f"v_accvgpr_write_b32 a{252+i}, -1" for i in range(4)]
                if k == 4: pre = ["s_add_u32 s88, s88, 4096"]
                vm += [(pre, f"buffer_store_dwordx4 a[252:255], v4, s[60:63], s88 offen offset:{(k%4)*1024} {WT}", ("E", 0), [])]
        if xe and T == 11:
            A.e(vq.need(("R", 0)))
            xr_ = ["v_and_b32 v1, 15, v0", "v_lshrrev_b32 v253, 5, v0", "v_xor_b32 v253, v253, v1", "v_bfe_u32 v254, v0, 4, 1", "v_lshlrev_b32 v254, 3, v254",
                   "v_lshl_add_u32 v254, v1, 8, v254", "v_add_u32 v254, s4, v254"]
            vm += [([], x, None, []) for x in xr_]
            for cb in range(8):
                vm += [([], f"v_xor_b32 v30, {2*cb}, v253", None, []), ([], "v_lshl_add_u32 v30, v30, 4, v254", None, []),
                       ([], f"ds_read_b64 {a(224+4*cb,2)}, v30", "DS", []), ([], f"ds_read_b64 {a(226+4*cb,2)}, v30 offset:4096", "DS", [])]
        if T == 9 and cpf >= 3: emit_vm(code_touch(30, "v31"), A.e)
        if T == 12: vm += [([], f"buffer_load_dwordx2 v[22:23], v24, s[48:51], s91 offen {WT}", ("F", 0), [])]
        if T == 13: vm += w_ops(2) + w_ops(3)
        if T < 4: vm += hdef[2 * T: 2 * T + 2]
        if T == 15 and not xe: vm += a_ops(2)
        if late and 1 <= T <= 3:
            k_ = -(-len(late) // (4 - T)); ch = late[:k_]; late = late[k_:]
            nv = []; st_ = max(1, len(va) // len(ch))
            for i_, it_ in enumerate(va[:-2]):
                nv.append(it_)
                if ch and i_ % st_ == st_ - 1 and not it_[0].startswith("v_exp"): pass
                if ch and i_ % st_ == st_ - 1: nv.append(ch.pop(0))
            va = nv + ch + va[-2:]
        roll = v_reads(T) if (t16 and T in (14, 15)) else []
        if t16 and T >= 15: rdv = []
        if t16 and T == 16:
            A.e(dq.drain()); A.e("s_barrier")
            vm += w_ops(4) + w_ops(5) + w_ops(6) + w_ops(7)
            va += [(x, 4) for x in endsetup]
        if nq == 0:
            for ins, tag in rdv: A.e(ins); dq.issue(tag)
            rdv = []
        n = len(mf)
        vml = []
        for op in vm:
            vml += [(x, 4 if isinstance(x, str) else 4 * len(x), None) for x in op[0]] + ([("s_nop 0", 4, None)] if op[0] else []) + [(op[1], 8 if isinstance(op[2], tuple) else 4, op[2])] + [(x, 4, None) for x in op[3]]
        tot = sum(c for _, c in va) + 4 * (len(rdv) + len(rdk) + len(roll)) + sum(c for _, c, _ in vml)
        done = 0
        for m, (ins, tag) in enumerate(mf):
            w = dq.need(tag, dsl); A.e(w); A.e(ins)
            used = 4 * len(w)
            budget = max(cap, -(-(tot - done) // (n - m)) + 3) if m < n - 1 else 10 ** 6
            target = (tot * (m + 1)) // n + 6
            if roll and m >= nq and (m - nq) % 2 == 1: rdk += roll[:2]; roll = roll[2:]
            rd = rdv if (m < nq and rdv) else (rdk if (m >= nq and rdk) else None)
            if rd:
                ri, rt = rd.pop(0); A.e(ri); dq.issue(rt); used += 4; done += 4
                if rd is rdv and len(rd) > (nq - 3 - m):
                    ri, rt = rd.pop(0); A.e(ri); dq.issue(rt); used += 4; done += 4
            elif vml:
                x, c, tg = vml.pop(0); A.e(x); used += c; done += c
                if tg: (dq.issue(('XR', 0)) if tg == 'DS' else vq.issue(tg))
                while vml and c == 4 and used < 12:
                    x, c, tg = vml.pop(0); A.e(x); used += c; done += c
                    if tg: (dq.issue(('XR', 0)) if tg == 'DS' else vq.issue(tg))
            while va and used + va[0][1] <= budget and (done < target or m == n - 1):
                x, c = va.pop(0); A.e(x); used += c; done += c
        assert not rdv
        for ins, tag in rdk: A.e(ins); dq.issue(tag)
        for x, c, tg in vml:
            A.e(x)
            if tg: (dq.issue(('XR', 0)) if tg == 'DS' else vq.issue(tg))
        for x, c in va: A.e(x)
        if T <= 15:
            A.e([f"s_cbranch_vccnz {L('rs%d' % T)}"])
            A.label(L("rb%d" % T))
            rare_sites.append(T)
    stamp(4)
    if not t16:
        A.e("s_barrier")
        for t in range(4, 7):
            for op in w_ops(t): emit_vm(op, A.e, True)
        A.e(endsetup)
    def frd(t, cb):
        out = []
        for c in range(2):
            slot = (t + c) % 8
            reg = (9 if slot < 4 else 17) + cb; off = (slot % 4) * 8192
            out += [(f"ds_read_b64_tr_b16 {FA(cb,c,0)}, v{reg} offset:{off}", ("A", t, cb)),
                    (f"ds_read_b64_tr_b16 {FA(cb,c,1)}, v{reg} offset:{off+4096}", ("A", t, cb))]
        return out
    dq.slack = 8
    ostores = []
    cnt = 0
    if oin:
        A.e([f"v_accvgpr_read_b32 v{96+k}, a{k}" for k in range(64)])
        for t in (range(2, 6) if xe else range(3, 7)):
            for op in a_ops(t): emit_vm(op, A.e)
        A.e(vq.need(("W", 3))); A.e("s_barrier")
        for cb in range(8):
            for ins, tag in frd(0, cb): A.e(ins); dq.issue(tag)
    for i in range(4):
        for mu in range(2):
            tmp = 96 + (cnt % 4) * 16; dst = 160 + cnt * 8; cnt += 1
            src = (i * 2 + mu) * 16
            if not (oin and cnt <= 4): A.e([f"v_accvgpr_read_b32 v{tmp+k}, a{src+k}" for k in range(16)])
            A.e([f"v_pk_mul_f32 v[{tmp+2*k}:{tmp+2*k+1}], v[{tmp+2*k}:{tmp+2*k+1}], v[{VT+2+2*mu}:{VT+3+2*mu}]" for k in range(8)])
            for s_ in range(2):
                for jj, j in enumerate((s_, s_ + 2)):
                    A.e([f"v_cvt_pk_bf16_f32 v{dst+4*s_+2*jj}, v{tmp+4*j}, v{tmp+4*j+1}", f"v_cvt_pk_bf16_f32 v{dst+4*s_+2*jj+1}, v{tmp+4*j+2}, v{tmp+4*j+3}"])
                ostores.append(([], f"buffer_store_dwordx4 {v(dst+4*s_,4)}, v29, s[60:63], s{6+mu} offen offset:{i*1024+s_*512} {WT}", ("O", 0), []))
                if oin and len(ostores) <= oin: emit_vm(ostores[-1], A.e)
            if not oin and cnt in (1, 2, 3, 4):
                for op in a_ops(2 + cnt): emit_vm(op, A.e)
            if not oin and cnt == 5:
                A.e(vq.need(("W", 3))); A.e("s_barrier")
                for cb in range(8):
                    for ins, tag in frd(0, cb): A.e(ins); dq.issue(tag)
    ostores = ostores[oin:]
    srd(A, 52, P_WS, G_SZ, G_BASE)
    srd(A, 64, P_X, 2048 * 2048)
    srd(A, 68, P_OUT, 2048 * 2048)
    A.e(["s_cmp_eq_u32 s72, 0",
         f"s_cselect_b32 s90, {N1S-nf//8}, {N1Y-nf//8}", f"s_cselect_b32 s95, {N1S-1-nf//8}, {N1Y-1-nf//8}", "s_mov_b32 s91, 0",
         "s_lshl_b32 s12, s73, 3", "s_add_u32 s12, s12, s74",
         "s_lshl_b32 s92, s12, 2", "s_add_u32 s92, s92, s3",
         "s_lshl_b32 s92, s92, 13",
         "s_lshl_b32 s93, s12, 7", f"s_add_u32 s101, s93, {FL_P}", "s_lshl_b32 s12, s3, 5", "s_add_u32 s93, s93, s12",
         "s_lshl_b32 s94, s73, 7", "s_and_b32 s12, s3, 1", "s_lshl_b32 s12, s12, 6", "s_add_u32 s94, s94, s12",
         "s_lshr_b32 s12, s3, 1", "s_lshl_b32 s12, s12, 5", "s_add_u32 s94, s94, s12",
         "s_lshl_b32 s94, s94, 11", "s_lshl_b32 s12, s74, 8", "s_add_u32 s94, s94, s12",
         "v_and_b32 v1, 15, v0", "v_lshlrev_b32 v1, 11, v1", "v_lshrrev_b32 v30, 4, v0",
         "v_lshl_add_u32 v25, v30, 3, v1", "v_add_u32 v26, 0x8000, v25",
         "v_lshl_add_u32 v27, v30, 4, v1", "v_add_u32 v28, 0x8000, v27",
         "s_lshl_b32 s12, s3, 14", "v_add_u32 v2, s12, v4", "s_xor_b32 s12, s12, 0x8000", "v_add_u32 v3, s12, v4",
         "s_lshl_b32 s12, s3, 13", "s_add_u32 s12, s12, 0x10000", "v_add_u32 v254, s12, v4", "s_xor_b32 s12, s12, 0x4000", "v_add_u32 v255, s12, v4"])
    stamp(5)
    VP = [m for m in range(64) if m % 8 in (3, 5)]
    XP = [m for m in range(64) if m % 8 in (4, 6)]
    FBAR = 7
    def fss(t, E, last=False, extra=(), czero=False, afterbar=None, needbar=(), va=None, hook=None):
        if not last: vops = a_ops(t + 6) + a_ops(t + 7) + w_ops(t + 8) + w_ops(t + 9)
        else: vops = a_ops(6) + a_ops(7) if t == 0 else []
        sched = sorted(list(zip(VP, vops)) + list(zip(XP, extra)), key=lambda x: x[0])
        assert len(extra) <= len(XP)
        doread = not (last and t == 6)
        pend = []; vi = 0; post = []
        pres = [list(op[0]) for _, op in sched]
        for m in range(64):
            cb, jj, c = m // 8, (m % 8) // 2, m % 2
            if alt & 1: c ^= jj & 1
            if alt & 2 and cb % 2: jj = 3 - jj
            if m == 0: E(vq.need(("X", t + 1)))
            if m % 8 == 0: E(dq.need(("A", t, cb)))
            E(mfma16(facc(cb, jj), FA(cb, c), FB((t + c) % 8, jj), "0" if (czero and m % 2 == 0) else None))
            if m == FBAR:
                w = vq.need(("W", t + 3))
                for tg in needbar: w += vq.need(tg)
                E(w[-1:]); E(dq.drain()); E("s_barrier")
                if afterbar: afterbar()
            if m % 8 == 7 and doread: pend += frd(t + 2, cb)
            if hook and hook(m): E(hook(m)); continue
            if vi < len(sched) and m == sched[vi][0]:
                assert not pres[vi], (t, m, pres[vi])
                op = sched[vi][1]
                E(op[1]); vq.issue(op[2]); post += op[3]; vi += 1
            else:
                used = 0
                if pend:
                    ins, tag = pend.pop(0); E(ins); dq.issue(tag); used += 1
                if post and used < 2: E(post.pop(0)); used += 1
                k = next((k for k in range(vi, len(sched)) if pres[k]), None)
                if k is not None:
                    busy = any((" lds" in sched[k2][1][1] and " lds" in sched[k][1][1]) or (" s13 " in sched[k2][1][1] and " s13 " in sched[k][1][1]) for k2 in range(vi, k))
                    while not busy and not post and pres[k] and used < 2: E(pres[k].pop(0)); used += 1
                cyc = 4 * used
                while va and cyc + va[0][1] <= vcap:
                    x, c_ = va.pop(0); E(x); cyc += c_
        for ins, tag in pend: E(ins); dq.issue(tag)
        E(post)
    oflag = [([], f"buffer_load_dwordx2 v[30:31], v253, s[48:51], s97 offen {WT}", ("F", 0), [])]
    def loop_body(E, real):
        if real:
            A.e(["s_cmp_lg_u32 s95, 0", f"s_cbranch_scc1 {L('nosw1')}"])
            srd(A, 44, P_WO, 4096 * 2048); A.e("s_mov_b32 s8, s75")
            A.label(L("nosw1"))
        for t in range(0, 8, 2):
            fss(t, E, extra=oflag if t == 2 else ())
            if t == 0 and real:
                A.e(["s_cmp_lg_u32 s95, 0", f"s_cbranch_scc1 {L('nosw')}"])
                check_flags("O", 30, 253, "s97")
                srd(A, 40, P_WS, SZ_OF, WS_OF)
                A.e(["s_mov_b32 s9, s96", "s_mov_b32 s97, s101", "v_mov_b32 v253, 0"] + [f"v_mov_b32 v{5+jj}, v{242+jj}" for jj in range(4)])
                A.label(L("nosw"))
    for t in range(0, 8, 2):
        fss(t, A.e, extra=ostores if t == 0 else (), czero=(t == 0),
            needbar=[("O", 0)] if t == oflt2 else (), afterbar=(lambda: flag_store("s89")) if t == oflt2 else None)
    stamp(6)
    vq.rebase(8); dq.rebase(8)
    q_first = (list(vq.q), list(dq.q))
    loop_body(lambda x: None, False)
    vq.rebase(8); dq.rebase(8)
    q_steady = (list(vq.q), list(dq.q))
    assert N1S >= 3 and N1Y >= 3
    _v, _d = list(vq.q), list(dq.q); fss(0, lambda x: None); assert not any(t[0] == "F" for t in vq.q); vq.q, dq.q = _v, _d
    def covers(entry, steady):
        def younger(q, tag): return len(q) - 1 - max(i for i, t in enumerate(q) if t == tag)
        for tag in set(entry):
            if tag[0] not in "WXA": continue
            if tag not in steady or younger(entry, tag) < younger(steady, tag): return False
        return True
    assert covers(q_first[0], q_steady[0]) and covers(q_first[1], q_steady[1]), (q_first, q_steady)
    A.raw(".p2align 6")
    A.label(L("floop"))
    loop_body(A.e, True)
    A.e(["s_sub_u32 s95, s95, 1", "s_sub_u32 s90, s90, 1", "s_cmp_lg_u32 s90, 0", f"s_cbranch_scc1 {L('floop')}",
         "s_cmp_lg_u32 s91, 0", f"s_cbranch_scc1 {L('flast')}"])
    stamp(3, 2)
    vq.rebase(8); dq.rebase(8)
    YS = lambda cb, jj: 160 + (cb * 2 + jj) * 4
    if mid1:
        A.e("s_nop 2")
        for jj in range(2):
            for i in range(4):
                d = YS(2 * i, jj)
                for h in range(2):
                    b = 32 + ((2 * i + h) * 4 + jj + 2) * 4
                    A.e([f"v_cvt_pk_bf16_f32 v{d+2*h}, v{b}, v{b+1}", f"v_cvt_pk_bf16_f32 v{d+2*h+1}, v{b+2}, v{b+3}"])
                A.e(f"ds_write_b128 v254, {v(d,4)} offset:{(jj*4+i)*1024}")
        A.e(["s_waitcnt lgkmcnt(0)", "s_barrier"])
        for jj in range(2):
            for i in range(4):
                A.e(f"ds_read_b128 {facc(2*i, jj+2)}, v255 offset:{(jj*4+i)*1024}")
        for jj in range(2):
            for i in range(4):
                pc = 32 + ((2 * i) * 4 + jj + 2) * 4
                A.e(f"s_waitcnt lgkmcnt({7 - (jj*4+i)})")
                for h in range(2):
                    b = 32 + ((2 * i + h) * 4 + jj) * 4; y = YS(2 * i + h, jj)
                    A.e([f"v_lshlrev_b32 v{y}, 16, v{pc+2*h}", f"v_and_b32 v{y+1}, 0xffff0000, v{pc+2*h}",
                         f"v_lshlrev_b32 v{y+2}, 16, v{pc+2*h+1}", f"v_and_b32 v{y+3}, 0xffff0000, v{pc+2*h+1}"])
                    A.e([f"v_pk_add_f32 v[{y+r_}:{y+r_+1}], v[{y+r_}:{y+r_+1}], v[{b+r_}:{b+r_+1}]" for r_ in (0, 2)])
    else:
        A.e("s_nop 2")
        for rnd in range(2):
            for cb in range(4 * rnd, 4 * rnd + 4):
                for jj in (2, 3): A.e(f"ds_write_b128 v254, {facc(cb,jj)} offset:{((cb%4)*2+jj-2)*1024}")
            if rnd == 1:
                for cb in range(4):
                    for jj in range(2):
                        b = 32 + (cb * 4 + jj) * 4; y = YS(cb, jj)
                        A.e([f"v_pk_add_f32 v[{y+r_}:{y+r_+1}], v[{b+r_}:{b+r_+1}], v[{b+8+r_}:{b+9+r_}]" for r_ in (0, 2)])
            A.e(["s_waitcnt lgkmcnt(0)", "s_barrier"])
            for cb in range(4 * rnd, 4 * rnd + 4):
                for jj in (2, 3): A.e(f"ds_read_b128 {facc(cb,jj)}, v255 offset:{((cb%4)*2+jj-2)*1024}")
            if rnd == 0: A.e(["s_waitcnt lgkmcnt(0)", "s_barrier"])
        for cb in range(4, 8):
            for jj in range(2):
                b = 32 + (cb * 4 + jj) * 4; y = YS(cb, jj)
                A.e(f"s_waitcnt lgkmcnt({7 - ((cb-4)*2+jj)})")
                A.e([f"v_pk_add_f32 v[{y+r_}:{y+r_+1}], v[{b+r_}:{b+r_+1}], v[{b+8+r_}:{b+9+r_}]" for r_ in (0, 2)])
    A.e(["s_cmp_eq_u32 s72, 0", f"s_cbranch_scc1 {L('firstC')}", "s_add_u32 s6, s92, 4096"])
    for jj in range(2):
        for i in range(4):
            d = 224 + (i % 2) * 4 + jj * 8
            for h in range(2):
                y = YS(2 * i + h, jj)
                A.e([f"v_cvt_pk_bf16_f32 v{d+2*h}, v{y}, v{y+1}", f"v_cvt_pk_bf16_f32 v{d+2*h+1}, v{y+2}, v{y+3}"])
            A.e(f"buffer_store_dwordx4 {v(d,4)}, v4, s[52:55], {'s6' if jj else 's92'} offen offset:{i*1024} {WT}")
    A.label(L("firstC"))
    stamp(4, 2)
    vq.q, dq.q = list(q_steady[0]), list(q_steady[1])
    def pflag():
        lab = L("pf")
        A.e(["s_xor_b32 s6, s72, 1", "s_or_b32 s6, s6, s3", "s_cmp_lg_u32 s6, 0", f"s_cbranch_scc1 {lab}", "s_mov_b64 exec, 1",
             f"buffer_store_dwordx2 v[250:251], v252, s[48:51], s101 offen {WT}", "s_mov_b64 exec, -1"])
        A.label(lab)
    mark = ("MARK", vq.total)
    for t in range(0, 8, 2):
        fss(t, A.e, czero=(t == 0), afterbar=pflag if t == pft2 else None, needbar=[mark] if t == pft2 else (), extra=oflag if t == 4 else ())
    FW = vq.need(("F", 0))
    vq.rebase(8); dq.rebase(8)
    assert covers(vq.q, q_steady[0]) and covers(dq.q, q_steady[1])
    stamp(5, 2)
    A.e(["s_mov_b32 s91, 1", f"s_mov_b32 s90, {(64-SS-8-tail)//8}", "s_cmp_lg_u32 s72, 0", f"s_cbranch_scc1 {L('floop')}"])
    A.e(FW); check_flags("P", 30, 252, "s101")
    YP = lambda jj, i: 224 + (jj * 4 + i) * 4
    YA = lambda i: (96 if xe else 80) + i * 4
    A.e("s_add_u32 s6, s92, 4096")
    for i in range(4):
        A.e([f"buffer_load_dwordx4 {v(YP(0,i),4)}, v4, s[52:55], s92 offen offset:{i*1024} {WT}",
             f"buffer_load_dwordx4 {a(YA(i),4)}, v4, s[52:55], s6 offen offset:{i*1024} {WT}"])
    A.e([f"s_mov_b32 s90, {(SS-8-tail)//8}", f"s_branch {L('floop')}"])
    A.label(L("flast"))
    stamp(6, 2)
    A.e(["s_mov_b32 s6, 0xbfb8aa3b", "s_mov_b32 s7, 0xbfb8aa3b", "s_cmp_lg_u32 s72, 0", f"s_cbranch_scc1 {L('flast2')}"])
    for cb in range(8):
        y = YS(cb, 0); pc = YP(0, cb // 2) + 2 * (cb % 2); T0 = 240 if cb % 2 == 0 else 242
        T0 = 240
        A.e([f"v_lshlrev_b32 v{T0}, 16, v{pc}", f"v_and_b32 v{T0+1}, 0xffff0000, v{pc}",
             f"v_lshlrev_b32 v{T0+2}, 16, v{pc+1}", f"v_and_b32 v{T0+3}, 0xffff0000, v{pc+1}"])
        A.e([f"v_pk_add_f32 v[{y+r_}:{y+r_+1}], v[{y+r_}:{y+r_+1}], v[{T0+r_}:{T0+r_+1}]" for r_ in (0, 2)])
        A.e([f"v_pk_mul_f32 v[{T0+r_}:{T0+r_+1}], v[{y+r_}:{y+r_+1}], s[6:7]" for r_ in (0, 2)])
        A.e([f"v_exp_f32 v{T0+r_}, v{T0+r_}" for r_ in range(4)])
        A.e([f"v_pk_add_f32 v[{T0+r_}:{T0+r_+1}], v[{T0+r_}:{T0+r_+1}], 1.0 op_sel_hi:[1,0]" for r_ in (0, 2)])
        A.e([f"v_rcp_f32 v{T0+r_}, v{T0+r_}" for r_ in range(4)])
        A.e([f"v_pk_mul_f32 v[{y+r_}:{y+r_+1}], v[{y+r_}:{y+r_+1}], v[{T0+r_}:{T0+r_+1}]" for r_ in (0, 2)])
    A.label(L("flast2"))
    vq.q, dq.q = list(q_steady[0]), list(q_steady[1])
    va = []
    for cb in range(8):
        y = YS(cb, 1); pc = YA(cb // 2) + 2 * (cb % 2); T0 = 224 + 4 * (cb % 2)
        va += [(f"v_accvgpr_read_b32 v{T0+1}, a{pc}", 4), (f"v_accvgpr_read_b32 v{T0+3}, a{pc+1}", 4),
               (f"v_lshlrev_b32 v{T0}, 16, v{T0+1}", 4), (f"v_and_b32 v{T0+1}, 0xffff0000, v{T0+1}", 4),
               (f"v_lshlrev_b32 v{T0+2}, 16, v{T0+3}", 4), (f"v_and_b32 v{T0+3}, 0xffff0000, v{T0+3}", 4)]
        va += [(f"v_add_f32 v{y+r_}, v{y+r_}, v{T0+r_}", 4) for r_ in range(4)]
        va += [(f"v_mul_f32 v{T0+r_}, s7, v{y+r_}", 4) for r_ in range(4)]
        va += [(f"v_exp_f32 v{T0+r_}, v{T0+r_}", 8) for r_ in range(4)]
        va += [(f"v_add_f32 v{T0+r_}, 1.0, v{T0+r_}", 4) for r_ in range(4)]
        va += [(f"v_rcp_f32 v{T0+r_}, v{T0+r_}", 8) for r_ in range(4)]
        va += [(f"v_mul_f32 v{y+r_}, v{y+r_}, v{T0+r_}", 4) for r_ in range(4)]
    xw = lambda cb, jj: f"ds_write_b128 v2, {facc(cb,jj)} offset:{(cb*2+jj-2)*1024}"
    def ehook(m):
        return [xw(m // 8 - 2, 2 + (m % 8 - 4) // 2)] if (m >= 16 and m % 8 in (4, 6)) else None
    fin = [(["v_mov_b32 v29, 0"], f"buffer_load_dwordx2 v[30:31], v29, s[48:51], s93 offen {WT}", ("G", 0), [])]
    for t in range(0, 8, 2):
        fss(t, A.e, last=True, extra=fin if t == 4 else (), va=va, hook=ehook if (ew and t == 6) else None)
    A.c(f"left over fillers: {len(va)}")
    for x, c in va: A.e(x)
    stamp(7)
    A.e(["v_mov_b32 v22, s98", "v_mov_b32 v23, s99", f"s_add_u32 s6, s92, {G_SF}", f"s_add_u32 s7, s92, {G_SF+4096}",
         "s_cmp_lg_u32 s72, 0", f"s_cbranch_scc1 {L('xch')}"])
    s2loads = [f"buffer_load_dwordx4 {v(YP(jj,i),4)}, v4, s[52:55], s{6+jj} offen offset:{i*1024} {WT}" for jj in range(2) for i in range(4)]
    if sen: A.e(["s_mov_b32 s15, -1"] + s2loads)
    else:
        A.e(vq.need(("G", 0)))
        A.e(["v_cmp_ne_u64 vcc, s[98:99], v[30:31]", f"s_cbranch_vccnz {L('xch')}", "s_mov_b32 s91, 2"] + s2loads)
    A.label(L("xch"))
    A.e("s_nop 2")
    for cb in range(6 if ew else 0, 8):
        for jj in (2, 3):
            A.e(xw(cb, jj))
    A.e(["s_waitcnt lgkmcnt(0)", "s_barrier"])
    for jj in (2, 3):
        for cb in range(8):
            A.e(f"ds_read_b128 {facc(cb,jj)}, v3 offset:{(cb*2+jj-2)*1024}")
    A.e(["s_cmp_eq_u32 s72, 0", f"s_cbranch_scc1 {L('sepi')}"])
    for jj in range(2):
        for i in range(4):
            dst = 160 + (jj * 4 + i) * 4
            for h in range(2):
                cb = 2 * i + h
                A.e(f"s_waitcnt lgkmcnt({15 - (jj*8+cb)})")
                b = 32 + (cb * 4 + jj) * 4
                A.e([f"v_pk_add_f32 v[{b+r_}:{b+r_+1}], v[{b+r_}:{b+r_+1}], v[{b+8+r_}:{b+9+r_}]" for r_ in (0, 2)])
                A.e([f"v_cvt_pk_bf16_f32 v{dst+2*h}, v{b}, v{b+1}", f"v_cvt_pk_bf16_f32 v{dst+2*h+1}, v{b+2}, v{b+3}"])
            if sen: A.e([f"v_min_u32 v{dst+k}, -2, v{dst+k}" for k in range(4)])
            A.e(f"buffer_store_dwordx4 {v(dst,4)}, v4, s[52:55], s{6+jj} offen offset:{i*1024} {WT}")
    if sen: A.e(f"s_branch {L('fin')}")
    else:
        A.e(["s_waitcnt vmcnt(0)", "s_mov_b64 exec, 1",
             f"buffer_store_dwordx2 v[22:23], v29, s[48:51], s93 offen {WT}", "s_mov_b64 exec, -1", f"s_branch {L('fin')}"])
    A.label(L("sepi"))
    XR = lambda cb, jj: (224 if xe else 96) + (cb * 2 + jj) * 2
    if not xe:
        A.e(["v_and_b32 v1, 15, v0", "v_lshrrev_b32 v5, 5, v0", "v_xor_b32 v5, v5, v1", "v_bfe_u32 v6, v0, 4, 1", "v_lshlrev_b32 v6, 3, v6",
             "v_lshl_add_u32 v6, v1, 8, v6", "s_lshl_b32 s15, s3, 13", "s_add_u32 s15, s15, 0x10000", "v_add_u32 v6, s15, v6"])
        for cb in range(8):
            A.e([f"v_xor_b32 v7, {2*cb}, v5", "v_lshl_add_u32 v7, v7, 4, v6",
                 f"ds_read_b64 {a(XR(cb,0),2)}, v7", f"ds_read_b64 {a(XR(cb,1),2)}, v7 offset:4096"])
    if fast:
        A.e(["s_cmp_lg_u32 s91, 2", f"s_cbranch_scc1 {L('slowp')}", "s_waitcnt lgkmcnt(0)"])
        for jj in range(2):
            for i in range(4):
                o = YP(jj, i)
                for h in range(2):
                    cb = 2 * i + h
                    b = 32 + (cb * 4 + jj) * 4; y = YS(cb, jj); xa = XR(cb, jj); T0 = 8 + 8 * h
                    A.e([f"v_accvgpr_read_b32 v{T0+1}, a{xa}", f"v_accvgpr_read_b32 v{T0+3}, a{xa+1}"])
                    A.e([f"v_pk_add_f32 v[{b+r_}:{b+r_+1}], v[{b+r_}:{b+r_+1}], v[{b+8+r_}:{b+9+r_}]" for r_ in (0, 2)])
                    A.e([f"v_lshlrev_b32 v{T0}, 16, v{T0+1}", f"v_and_b32 v{T0+1}, 0xffff0000, v{T0+1}",
                         f"v_lshlrev_b32 v{T0+2}, 16, v{T0+3}", f"v_and_b32 v{T0+3}, 0xffff0000, v{T0+3}"])
                    if h == 0: A.e("s_waitcnt vmcnt(7)")
                    A.e([f"v_lshlrev_b32 v{T0+4}, 16, v{o+2*h}", f"v_and_b32 v{T0+5}, 0xffff0000, v{o+2*h}",
                         f"v_lshlrev_b32 v{T0+6}, 16, v{o+2*h+1}", f"v_and_b32 v{T0+7}, 0xffff0000, v{o+2*h+1}"])
                    A.e([f"v_pk_fma_f32 v[{b+r_}:{b+r_+1}], v[{b+r_}:{b+r_+1}], v[{y+r_}:{y+r_+1}], v[{T0+r_}:{T0+r_+1}]" for r_ in (0, 2)])
                    A.e([f"v_pk_fma_f32 v[{b+r_}:{b+r_+1}], v[{T0+4+r_}:{T0+5+r_}], v[{y+r_}:{y+r_+1}], v[{b+r_}:{b+r_+1}]" for r_ in (0, 2)])
                    A.e([f"v_cvt_pk_bf16_f32 v{o+2*h}, v{b}, v{b+1}", f"v_cvt_pk_bf16_f32 v{o+2*h+1}, v{b+2}, v{b+3}"])
                A.e(["s_nop 1", f"v_permlane32_swap_b32 v{o}, v{o+2}", f"v_permlane32_swap_b32 v{o+1}, v{o+3}", "s_nop 0",
                     f"v_permlane16_swap_b32 v{o}, v{o+2}", f"v_permlane16_swap_b32 v{o+1}, v{o+3}",
                     f"buffer_store_dwordx4 {v(o,4)}, v{27+jj}, s[68:71], s94 offen offset:{i*64}"])
        A.e(f"s_branch {L('fin')}")
        A.label(L("slowp"))
    for n in range(16):
        jj, cb = n // 8, n % 8
        b = 32 + (cb * 4 + jj) * 4; y = YS(cb, jj); xa = XR(cb, jj); T0 = 8 + 4 * (n % 2)
        if n == 0: A.e("s_waitcnt lgkmcnt(0)")
        A.e([f"v_accvgpr_read_b32 v{T0+1}, a{xa}", f"v_accvgpr_read_b32 v{T0+3}, a{xa+1}"])
        A.e([f"v_pk_add_f32 v[{b+r_}:{b+r_+1}], v[{b+r_}:{b+r_+1}], v[{b+8+r_}:{b+9+r_}]" for r_ in (0, 2)])
        A.e([f"v_lshlrev_b32 v{T0}, 16, v{T0+1}", f"v_and_b32 v{T0+1}, 0xffff0000, v{T0+1}",
             f"v_lshlrev_b32 v{T0+2}, 16, v{T0+3}", f"v_and_b32 v{T0+3}, 0xffff0000, v{T0+3}"])
        A.e([f"v_pk_fma_f32 v[{b+r_}:{b+r_+1}], v[{b+r_}:{b+r_+1}], v[{y+r_}:{y+r_+1}], v[{T0+r_}:{T0+r_+1}]" for r_ in (0, 2)])
    if sen:
        A.e(SPINB)
        A.label(L("poll"))
        A.e(["s_waitcnt vmcnt(0)", "v_max3_u32 v8, v224, v225, v226", "v_max3_u32 v9, v227, v228, v229"])
        for k in range(230, 254, 4): A.e([f"v_max3_u32 v8, v8, v{k}, v{k+1}", f"v_max3_u32 v9, v9, v{k+2}, v{k+3}"])
        A.e(["v_max3_u32 v8, v8, v254, v255", "v_max_u32 v8, v8, v9", "v_cmp_eq_u32 vcc, s15, v8", f"s_cbranch_vccz {L('have')}",
             "s_sub_u32 s12, s12, 1", f"s_cbranch_scc1 {L('have')}"] + s2loads + [f"s_branch {L('poll')}"])
    else:
        A.e(["s_cmp_eq_u32 s91, 2", f"s_cbranch_scc1 {L('have')}", SPINB])
        A.label(L("poll"))
        A.e([f"buffer_load_dwordx2 v[30:31], v29, s[48:51], s93 offen {WT}", "s_waitcnt vmcnt(0)",
             "s_sub_u32 s12, s12, 1", f"s_cbranch_scc1 {L('got')}",
             "v_cmp_ne_u64 vcc, s[98:99], v[30:31]", f"s_cbranch_vccz {L('got')}", "s_sleep 1", f"s_branch {L('poll')}"])
        A.label(L("got"))
        A.e(s2loads)
    A.label(L("have"))
    for jj in range(2):
        for i in range(4):
            o = YP(jj, i)
            if not sen: A.e("s_waitcnt vmcnt(7)")
            for h in range(2):
                cb = 2 * i + h
                b = 32 + (cb * 4 + jj) * 4; y = YS(cb, jj); T0 = 8 + 4 * h
                A.e([f"v_lshlrev_b32 v{T0}, 16, v{o+2*h}", f"v_and_b32 v{T0+1}, 0xffff0000, v{o+2*h}",
                     f"v_lshlrev_b32 v{T0+2}, 16, v{o+2*h+1}", f"v_and_b32 v{T0+3}, 0xffff0000, v{o+2*h+1}"])
                A.e([f"v_pk_fma_f32 v[{b+r_}:{b+r_+1}], v[{T0+r_}:{T0+r_+1}], v[{y+r_}:{y+r_+1}], v[{b+r_}:{b+r_+1}]" for r_ in (0, 2)])
                A.e([f"v_cvt_pk_bf16_f32 v{o+2*h}, v{b}, v{b+1}", f"v_cvt_pk_bf16_f32 v{o+2*h+1}, v{b+2}, v{b+3}"])
            A.e(["s_nop 1", f"v_permlane32_swap_b32 v{o}, v{o+2}", f"v_permlane32_swap_b32 v{o+1}, v{o+3}", "s_nop 0",
                 f"v_permlane16_swap_b32 v{o}, v{o+2}", f"v_permlane16_swap_b32 v{o+1}, v{o+3}",
                 f"buffer_store_dwordx4 {v(o,4)}, v{27+jj}, s[68:71], s94 offen offset:{i*64}"])
    A.label(L("fin"))
    if stamps:
        srd(A, 40, P_WS, 0x100000, WS_STAMP)
        A.e(["s_waitcnt vmcnt(0)", "s_memtime s[76:77]", "s_memrealtime s[78:79]", "s_waitcnt lgkmcnt(0)",
             "v_mov_b32 v8, s76", "v_mov_b32 v9, s78", "v_mov_b32 v10, s72", "s_getreg_b32 s10, hwreg(HW_REG_XCC_ID)", "v_mov_b32 v11, s10",
             "s_lshl_b32 s10, s2, 2", "s_add_u32 s10, s10, s3", "s_lshl_b32 s10, s10, 7", "v_mov_b32 v1, s10", "s_mov_b64 exec, 1"])
        A.e("buffer_store_dwordx4 v[8:11], v1, s[40:43], 0 offen offset:64")
    if dbgst:
        srd(A, 40, P_DBG, 256)
        A.e(["s_and_b32 s10, s2, 0xfb", "s_or_b32 s10, s10, s3", "s_cmp_lg_u32 s10, 0", f"s_cbranch_scc1 {L('end')}", "s_mov_b64 exec, 1",
             "v_accvgpr_read_b32 v12, a241", "s_lshl_b32 s10, s2, 3", "v_mov_b32 v1, s10"])
        for k in range(1, 8): A.e([f"v_accvgpr_read_b32 v13, a{241+2*k}", f"v_sub_u32 v{15+k}, v13, v12"])
        A.e(["v_sub_u32 v23, v9, v12", "buffer_store_dwordx4 v[16:19], v1, s[40:43], 0 offen", "buffer_store_dwordx4 v[20:23], v1, s[40:43], 0 offen offset:16"])
    A.label(L("end"))
    A.e("s_endpgm")
    for tag, reg, addr, off in spins:
        A.label(L("spin" + tag))
        A.e(SPINB)
        A.label(L("spinl" + tag))
        A.e(["s_sleep 2", f"buffer_load_dwordx2 v[{reg}:{reg+1}], v{addr}, s[48:51], {off} offen {WT}", "s_waitcnt vmcnt(0)",
             "s_sub_u32 s12, s12, 1", f"s_cbranch_scc1 {L('ok' + tag)}",
             f"v_cmp_ne_u64 vcc, s[98:99], v[{reg}:{reg+1}]", f"s_cbranch_vccnz {L('spinl' + tag)}", f"s_branch {L('ok' + tag)}"])
    for T in rare_sites:
        A.label(L("rs%d" % T))
        A.e([f"s_call_b64 s[6:7], {L('rare%d' % (T & 1))}", f"s_branch {L('rb%d' % T)}"])
    for b in range(2):
        A.label(L("rare%d" % b))
        A.e(["s_nop 15", "s_nop 15"])
        for mu in range(2):
            S = SB(b, mu); S2 = SB(b ^ 1, mu)
            A.e(rowmax(S, VT, VT + 2))
            A.e([f"v_max_f32 v{VT}, 0, v{VT}", f"v_exp_f32 v{VT+1}, -v{VT}"])
            A.e([f"v_sub_f32 v{NM(mu)+k}, v{NM(mu)+k}, v{VT}" for k in range(16)])
            A.e([f"v_sub_f32 v{S+k}, v{S+k}, v{VT}" for k in range(16)])
            A.e([f"v_sub_f32 v{S2+k}, v{S2+k}, v{VT}" for k in range(16)])
            A.e(f"v_mul_f32 v{VL+mu}, v{VL+mu}, v{VT+1}")
            for i in range(4):
                o = (i * 2 + mu) * 16
                for k in range(16):
                    A.e([f"v_accvgpr_read_b32 v{VT+2}, a{o+k}", f"v_mul_f32 v{VT+2}, v{VT+2}, v{VT+1}", f"v_accvgpr_write_b32 a{o+k}, v{VT+2}"])
            for k in range(0, 16, 2):
                A.e([f"v_exp_f32 v{EB}, v{S+k}", f"v_exp_f32 v{EB+1}, v{S+k+1}", "s_nop 0",
                     f"v_cvt_pk_bf16_f32 v{PB(b,mu)+k//2}, v{EB}, v{EB+1}", f"v_add_f32 v{EB}, v{EB}, v{EB+1}",
                     f"v_mov_b32 v{VTS+mu}, v{EB}" if k == 0 else f"v_add_f32 v{VTS+mu}, v{VTS+mu}, v{EB}"])
        A.e(["s_nop 3", "s_setpc_b64 s[6:7]"])
    A.label(f"{name}_codeend")
    return (name, 512, 256, "(256,1,1)", "(256,1,1)", 163840)
```

```python
from common import *
import struct, math
QSCALE = struct.unpack("<I", struct.pack("<f", math.log2(math.e) / math.sqrt(128.0)))[0]
THR = 0x49800000
FL_L, FL_H, FL_O, FL_P, FL_SZ = 0x4000, 0x6000, 0x8000, 0xA000, 0xE000
G_BASE, G_SF, G_PF, G_SZ = 0x2200000, 0x600000, 0xA00000, 0x1200000
SS_UNUSED = 28
N1S, N1Y = 4, 3
WT = "sc0 sc1"
SPINN = 0x10000
SPINB = f"s_mov_b32 s12, {SPINN:#x}"

def kf(A, name="kf_kernel", stamps=0, thr=THR, vpos=(6, 10, 14, 18, 22, 26, 29, 30), barpos=3, apol=WT, pfT=0, pfG=0, cpf=3, ln=1, dbgst=0, pst=0, psleep=1, hwb=0, cap=24, dsl=6, vcap=8, ost=None, oflt=3, rotm=(1, 2), xpol=None, gdbg=0, pfs=7, pfA=2, rot0=1, vat=None, pft=3, tail=8, kmap=1, SS=None, hfT=2, barm=47, gsl=10, sp1=(2, 44), sp2=(54, 88), vmod=2, lead=0, nf=8, oft=14, oin=8, hdf=2, tlb=0, t16=1, mid1=1, fast=0, lset=1, xe=1, ew=1, sen=0, oflt2=4, pft2=2, alt=0, pka=0):
    L = lambda s: f"{name}_{s}"
    if SS is None: SS = 32 if tail == 8 else 28
    if vat is None: vat = tail - 7
    pf0 = 4 if lset else 3
    if lset: hfT = max(hfT, 4)
    if ost is None: ost = (8, 8)[:2 - oin // 8]
    vq = Q("vmcnt", 63); dq = Q("lgkmcnt", 15, gsl)
    def stamp(i, pro=0):
        if not stamps: return
        if pst == 1:
            if pro == 0 and i == 1: i = 7
            elif not (pro == 1 or i == 0): return
        elif pst == 2:
            if pro == 0 and i == 5: i = 1
            elif pro == 0 and i == 6: i = 2
            elif not (pro == 2 or (pro == 0 and i in (0, 7))): return
        elif pst == 3:
            if pro or i != 1: return
            i = 0
        elif pro: return
        first = (i == 0 and pst != 3)
        A.e(["s_memtime s[76:77]", "s_memrealtime s[78:79]"] + (["s_load_dwordx2 s[38:39], s[0:1], 88", "v_lshrrev_b32 v1, 6, v0", "s_nop 0", "v_readfirstlane_b32 s3, v1"] if first else []) +
            ["s_waitcnt lgkmcnt(0)", "v_mov_b32 v30, s76", "v_mov_b32 v31, s78",
             "s_lshl_b32 s76, s2, 2", "s_add_u32 s76, s76, s3", "s_lshl_b32 s76, s76, 7", f"s_add_u32 s76, s76, {WS_STAMP:#x}", "v_mov_b32 v1, s76",
             "s_mov_b64 exec, 1", f"global_store_dwordx2 v1, v[30:31], s[38:39] offset:{8*i}", "s_mov_b64 exec, -1"]); dq.drain()
    A.raw(kernel_head(name))
    A.e(["s_cmp_ge_u32 s2, 256", f"s_cbranch_scc1 {L('end')}"])
    cpn = [0]
    def code_touch(vr, dst, raw=False):
        lab = L("pc%d" % cpn[0]); cpn[0] += 1
        pre = ["s_getpc_b64 s[76:77]", lab + ":", f"s_sub_u32 s76, s76, {lab}-{name}", "s_subb_u32 s77, s77, 0",
               "s_lshr_b32 s78, s2, 3", "s_lshl_b32 s78, s78, 11"] + ([f"v_and_b32 v{vr}, 0xc0, v0", f"v_lshlrev_b32 v{vr+1}, 3, v{vr}"] if raw else ["s_lshl_b32 s79, s3, 9", "s_add_u32 s78, s78, s79"]) + [
               f"v_and_b32 v{vr}, 7, v0", f"v_mul_u32_u24 v{vr}, 0x4080, v{vr}", f"v_and_b32 v{vr}, 0x10180, v{vr}"] + ([f"v_add_u32 v{vr}, v{vr+1}, v{vr}"] if raw else []) + [
               f"v_add_u32 v{vr}, s78, v{vr}", f"v_min_u32 v{vr}, {name}_codeend-{name}-4, v{vr}"]
        return (pre, f"global_load_dword {dst}, v{vr}, s[76:77]", ("C", 0), [])
    stamp(0)
    A.e(LOADARGS)
    if cpf:
        op = code_touch(30, "a238", raw=True); A.e(op[0]); A.e(op[1])
    A.e(["v_lshrrev_b32 v1, 6, v0", "v_and_b32 v0, 63, v0", "s_nop 0", "v_readfirstlane_b32 s3, v1",
         "s_and_b32 s10, s2, 7", "s_lshr_b32 s11, s2, 3", "s_and_b32 s4, s11, 7", "s_lshr_b32 s11, s11, 3",
         "s_lshl_b32 s5, s10, 2", "s_add_u32 s5, s5, s11",
         f"s_mul_i32 s14, s11, {rotm[1]}", f"s_mul_i32 s12, s4, {rotm[0]}", "s_add_u32 s14, s14, s12"])
    if ln:
        A.e(["v_and_b32 v40, 7, v0", "v_lshrrev_b32 v41, 3, v0", "s_lshl_b32 s12, s3, 5", "v_add_u32 v41, s12, v41",
             "v_lshlrev_b32 v42, 11, v40", "v_lshl_add_u32 v42, v41, 4, v42",
             "s_lshl_b32 s12, s4, 5", "s_add_u32 s91, s12, s5", "s_lshl_b32 s12, s91, 14",
             "s_waitcnt lgkmcnt(0)"])
        srd(A, 64, P_X, 2048 * 2048)
        for i in range(4):
            A.e(f"buffer_load_dwordx4 v[{48+4*i}:{51+4*i}], v42, s[64:67], s12 offen offset:{128*i}"); vq.issue(("L", 0))
        if tlb & 1:
            srd(A, 68, P_WS, 0x3000000)
            A.e(["v_lshlrev_b32 v39, 21, v0", "buffer_load_dword a237, v39, s[68:71], 0 offen"])
        srd(A, 60, P_DBG, 256)
        A.e(["v_mov_b32 v47, 0", "s_or_b32 s12, s2, s3", "s_cmp_lg_u32 s12, 0", f"s_cbranch_scc1 {L('nn')}",
             "s_memrealtime s[12:13]", "s_waitcnt lgkmcnt(0)", "s_or_b32 s12, s12, 1", "s_or_b32 s13, s13, 0x80000000", "v_mov_b32 v38, s12", "v_mov_b32 v39, s13", "s_mov_b64 exec, 1",
             f"buffer_store_dwordx2 v[38:39], v47, s[60:63], 0 offen {WT}", "s_mov_b64 exec, -1"])
        A.label(L("nn"))
    A.e([
         "v_lshrrev_b32 v30, 4, v0", "v_and_b32 v31, 15, v0",
         "s_lshr_b32 s12, s3, 1", "s_lshl_b32 s12, s12, 1",
         "v_lshlrev_b32 v1, 2, v30", "v_or_b32 v1, s12, v1", "v_xor_b32 v31, v31, v1",
         "s_lshl_b32 s12, s3, 2", "v_add_u32 v30, s12, v30",
         "v_lshlrev_b32 v2, 13, v30", "s_lshl_b32 s12, s5, 8", "v_lshl_add_u32 v2, v31, 4, v2", "v_add_u32 v2, s12, v2",
         "v_lshrrev_b32 v1, 1, v31", "v_min_u32 v1, 6, v1", "s_and_b32 s13, s5, 1", "v_add_u32 v1, s13, v1",
         "v_cmp_eq_u32 vcc, 7, v1", "v_and_b32 v31, 1, v31", "s_nop 0", "v_cndmask_b32 v1, v1, 0, vcc",
         "v_lshl_or_b32 v1, v1, 1, v31",
         "v_mul_u32_u24 v3, 7168, v30", "s_mul_i32 s12, s5, 224", "v_add_u32 v3, s12, v3", "v_lshl_add_u32 v3, v1, 4, v3",
         "s_lshl_b32 s12, s4, 4", "s_lshl_b32 s13, s3, 2", "s_add_u32 s15, s12, s13",
         "s_lshl_b32 s12, s15, 15", "v_lshlrev_b32 v4, 4, v0", "v_add_u32 v5, s12, v4",
         "v_add_u32 v6, 0x8000, v5", "v_add_u32 v7, 0x10000, v5", "v_add_u32 v8, 0x18000, v5",
         "s_mul_i32 s95, s3, 3072", "s_add_u32 s95, s95, 16384", "s_mov_b32 s10, s95", "s_mov_b32 s72, 98304", "s_mov_b32 s11, 0", "s_mov_b32 s75, 0",
         "s_waitcnt lgkmcnt(0)"])
    srd(A, 44, P_WQ, 1024 * 4096 * 2)
    srd(A, 48, P_WG, 1024 * 3584 * 2 + 1024, -1024)
    srd(A, 52, P_WU, 1024 * 3584 * 2 + 2048, -2048)
    srd(A, 40, P_WS, SZ_XF, WS_XF)

    def acc(blk, j):
        if blk < 14: return v(32 + (blk * 4 + j) * 4, 4)
        return a(((blk - 14) * 4 + j) * 4, 4)
    Afr = lambda S, b, c, h=None: a(192 + ((22 * S + b) % 4) * 8 + c * 4, 4) if h is None else a(192 + ((22 * S + b) % 4) * 8 + c * 4 + 2 * h, 2)
    Bfr = lambda slot, j: a(128 + slot * 16 + j * 4, 4)
    if lead:
        NEXTK = ["s_sub_u32 s12, s11, s14", "s_and_b32 s12, s12, 7", f"s_cmp_lt_u32 s11, {32-lead}", "s_cselect_b32 s12, s12, 1",
                 f"s_add_u32 s13, s11, {lead}", "s_cmp_eq_u32 s12, 0", "s_cselect_b32 s12, s13, s75", "s_subb_u32 s75, s75, -1",
                 f"s_sub_u32 s13, s75, {lead}", "s_cselect_b32 s6, 1, 0", "s_sub_u32 s13, s13, s14", "s_and_b32 s13, s13, 7", "s_or_b32 s13, s13, s6",
                 "s_cmp_eq_u32 s13, 0", "s_addc_u32 s75, s75, 0",
                 "s_add_u32 s11, s11, 1", "s_lshl_b32 s6, s12, 18", "s_mul_i32 s7, s12, 229376", "s_lshl_b32 s8, s12, 10"]
    else:
        NEXTK = ([] if rot0 == 7 else ["s_cmp_lt_u32 s11, 8", f"s_cselect_b32 s13, {rot0}, 7", "s_and_b32 s13, s13, s14"]) + ["s_add_u32 s12, s11, s14" if rot0 == 7 else "s_add_u32 s12, s11, s13", "s_and_b32 s12, s12, 7", "s_and_b32 s13, s11, 0x18", "s_or_b32 s12, s12, s13",
                 "s_add_u32 s11, s11, 1", "s_lshl_b32 s6, s12, 18", "s_mul_i32 s7, s12, 229376", "s_lshl_b32 s8, s12, 10"]
    def d_ops(p, h, static=False):
        base = (p % 2) * 24576 + h * 12288 + ((p // 2) * 49152 if static else 0)
        return [((NEXTK + [f"s_mov_b32 s{88 + p % 2}, s8"] if h == 0 else []) + [f"s_add_u32 m0, s10, {base}"], "buffer_load_dwordx4 v2, s[44:47], s6 offen lds", ("D", p, h), ["s_add_u32 s6, s6, 131072"] if h == 0 else []),
                ([], "buffer_load_dwordx4 v3, s[48:51], s7 offen offset:1024 lds", ("D", p, h), []),
                ([], "buffer_load_dwordx4 v3, s[52:55], s7 offen offset:2048 lds", ("D", p, h), ["s_add_u32 s7, s7, 114688"] if h == 0 else [])]
    def x_ops(p):
        return [([], f"buffer_load_dwordx4 {Bfr(p % 4, j)}, v{5+j}, s[40:43], s{88 + p % 2} offen {apol if xpol is None else xpol}", ("X", p), []) for j in range(4)]
    def rd_ops(S, blk):
        part, cb = (1 + (blk & 1), blk >> 1) if blk < 14 else (0, blk - 14)
        reg = (9 if S % 2 == 0 else 17) + cb
        return [(f"ds_read_b64_tr_b16 {Afr(S,blk,c,h)}, v{reg} offset:{c*24576 + part*1024 + h*3072}", ("A", S, blk)) for c in range(2) for h in range(2)]
    def emit_vm(op, E, nop=False):
        pre, ins, tag, post = op
        E(pre)
        if pre and nop: E("s_nop 0")
        E(ins); vq.issue(tag); E(post)
    def kv_ops(kind, P):
        reg = 0 if kind == "K" else 65536
        sr = "s[64:67]" if kind == "K" else "s[68:71]"
        ops = []
        for i in range(4):
            ops.append(([f"s_add_u32 m0, s92, {reg + (P % 4) * 16384}", f"s_add_u32 s94, s93, {P * 16384}"] if i == 0 else [],
                        f"buffer_load_dwordx4 v{25+i if kind == 'K' else 29}, {sr}, s94 offen offset:{i*1024} lds", (kind, P), []))
        return ops
    def pf_op(k):
        return [([], f"buffer_load_dword a239, v31, {'s[72:75], s96' if k == 0 else 's[80:83], s97'} offen", ("P", 0), [f"s_add_u32 s{96+k}, s{96+k}, 1024"])]
    for op in d_ops(0, 0, True) + d_ops(0, 1, True): emit_vm(op, A.e, True)
    srd(A, 84, P_WS, FL_SZ, WS_FLAG)
    A.e(["s_lshr_b32 s12, s91, 1", "s_lshl_b32 s12, s12, 15", "s_and_b32 s13, s91, 1", "s_lshl_b32 s13, s13, 7", "s_add_u32 s90, s12, s13",
         "v_lshlrev_b32 v43, 8, v41", "v_lshl_add_u32 v43, v40, 4, v43",
         "v_lshlrev_b32 v44, 5, v40", "s_lshl_b32 s12, s3, 3", "v_add_u32 v45, s12, v44",
         "s_lshl_b32 s91, s91, 5", f"s_add_u32 s91, s91, {FL_L}"])
    A.e([f"v_mov_b32 v{i}, 0" for i in range(132, 144)])
    A.e(f"buffer_load_dwordx2 v[128:129], v47, s[60:63], 0 offen {WT}"); vq.issue(("N", 0))
    A.e([mfma32(a(i, 16), v(132, 4), v(132, 4), "0") for i in range(0, 128, 16)] + [mfma32(v(i, 16), v(132, 4), v(132, 4), "0") for i in range(144, 256, 16)])
    stamp(1, 1)
    A.e("s_memrealtime s[92:93]")
    A.e(vq.need(("L", 0)))
    stamp(2, 1)
    X0 = 64
    for i in range(16):
        A.e([f"v_lshlrev_b32 v{X0+2*i}, 16, v{48+i}", f"v_and_b32 v{X0+1+2*i}, 0xffff0000, v{48+i}"])
    def lanesum(src):
        A.e(["s_nop 1", f"v_add_f32_dpp v{src}, v{src}, v{src} row_ror:8 row_mask:0xf bank_mask:0xf",
             f"v_mov_b32 v46, v{src}", "s_nop 1", f"v_permlane16_swap_b32 v46, v{src}", f"v_add_f32 v{src}, v46, v{src}",
             f"v_mov_b32 v46, v{src}", "s_nop 1", f"v_permlane32_swap_b32 v46, v{src}", f"v_add_f32 v{src}, v46, v{src}"])
    A.e([f"v_pk_add_f32 v[32:33], v[{X0}:{X0+1}], v[{X0+2}:{X0+3}]", f"v_pk_add_f32 v[34:35], v[{X0+4}:{X0+5}], v[{X0+6}:{X0+7}]"])
    A.e([f"v_pk_add_f32 v[{32+2*(i%2)}:{33+2*(i%2)}], v[{32+2*(i%2)}:{33+2*(i%2)}], v[{X0+2*i}:{X0+2*i+1}]" for i in range(4, 16)])
    A.e(["v_pk_add_f32 v[32:33], v[32:33], v[34:35]", "v_add_f32 v32, v32, v33"])
    lanesum(32)
    A.e(["v_mul_f32 v32, 0x3b800000, v32", "v_mov_b32 v34, v32", "v_mov_b32 v35, v32"])
    for i in range(16):
        A.e(f"v_pk_add_f32 v[{96+2*i}:{97+2*i}], v[{X0+2*i}:{X0+2*i+1}], v[34:35] neg_lo:[0,1] neg_hi:[0,1]")
    A.e(["v_pk_mul_f32 v[34:35], v[96:97], v[96:97]", "v_pk_mul_f32 v[36:37], v[98:99], v[98:99]"])
    for i in range(2, 16):
        r_ = 34 + 2 * (i % 2)
        A.e(f"v_pk_fma_f32 v[{r_}:{r_+1}], v[{96+2*i}:{97+2*i}], v[{96+2*i}:{97+2*i}], v[{r_}:{r_+1}]")
    A.e(["v_pk_add_f32 v[34:35], v[34:35], v[36:37]", "v_add_f32 v33, v34, v35"])
    lanesum(33)
    A.e(["ds_write_b64 v45, v[32:33]", "s_waitcnt lgkmcnt(0)", "s_barrier",
         "ds_read_b128 v[96:99], v44", "ds_read_b128 v[100:103], v44 offset:16", "s_waitcnt lgkmcnt(0)",
         "v_add_f32 v32, v96, v98", "v_add_f32 v33, v100, v102", "v_add_f32 v34, v97, v99", "v_add_f32 v35, v101, v103",
         "v_add_f32 v32, v32, v33", "v_add_f32 v34, v34, v35", "v_mul_f32 v32, 0.25, v32" if False else "v_mul_f32 v32, 0x3e800000, v32",
         "v_sub_f32 v96, v96, v32", "v_sub_f32 v98, v98, v32", "v_sub_f32 v100, v100, v32", "v_sub_f32 v102, v102, v32",
         "v_mul_f32 v35, v96, v96", "v_fmac_f32 v35, v98, v98", "v_fmac_f32 v35, v100, v100", "v_fmac_f32 v35, v102, v102",
         "v_mul_f32 v34, 0x3a800000, v34", "v_fmac_f32 v34, 0x3e800000, v35"])
    A.e(["v_cvt_pk_bf16_f32 v34, v34, v32", "v_and_b32 v32, 0xffff0000, v34", "v_lshlrev_b32 v34, 16, v34",
         "v_add_f32 v34, 0x3727c5ac, v34", "v_cvt_pk_bf16_f32 v34, v34, v34", "v_lshlrev_b32 v34, 16, v34",
         "v_sqrt_f32 v34, v34", "v_mov_b32 v33, v32", "v_cvt_pk_bf16_f32 v34, v34, v34", "v_lshlrev_b32 v34, 16, v34",
         "v_rcp_f32 v34, v34", "s_nop 0", "v_mov_b32 v35, v34"])
    for q4 in range(4):
        for i in range(4 * q4, 4 * q4 + 4):
            x = X0 + 2 * i
            A.e([f"v_pk_add_f32 v[{x}:{x+1}], v[{x}:{x+1}], v[32:33] neg_lo:[0,1] neg_hi:[0,1]",
                 f"v_cvt_pk_bf16_f32 v{48+i}, v{x}, v{x+1}",
                 f"v_lshlrev_b32 v{x}, 16, v{48+i}", f"v_and_b32 v{x+1}, 0xffff0000, v{48+i}",
                 f"v_pk_mul_f32 v[{x}:{x+1}], v[{x}:{x+1}], v[34:35]",
                 f"v_cvt_pk_bf16_f32 v{48+i}, v{x}, v{x+1}"])
        A.e(f"buffer_store_dwordx4 v[{48+4*q4}:{51+4*q4}], v43, s[40:43], s90 offen offset:{2048*(q4%2)} {WT}"); vq.issue(("S", 0))
        if q4 == 1: A.e("s_add_u32 s90, s90, 4096")
    stamp(3, 1)
    A.e(vq.need(("N", 0)) + [SPINB, "s_sub_u32 s92, s92, 3000"])
    A.label(L("pollN"))
    A.e(["v_readfirstlane_b32 s98, v128", "v_readfirstlane_b32 s99, v129", "s_cmp_eq_u32 s99, 0", f"s_cbranch_scc1 {L('retN')}",
         "s_cmp_eq_u32 s98, 0", f"s_cbranch_scc1 {L('retN')}",
         "s_sub_u32 s13, s98, s92", "s_cmp_ge_i32 s13, 0", f"s_cbranch_scc1 {L('gotN')}",
         f"s_cmp_lt_u32 s12, {SPINN - 64:#x}", f"s_cbranch_scc1 {L('gotN')}"])
    A.label(L("retN"))
    A.e(["s_sub_u32 s12, s12, 1", f"s_cbranch_scc1 {L('gotN')}",
         f"buffer_load_dwordx2 v[128:129], v47, s[60:63], 0 offen {WT}", "s_waitcnt vmcnt(0)", f"s_branch {L('pollN')}"])
    A.label(L("gotN"))
    A.e([mfma32(v(i, 16), v(132, 4), v(132, 4), "0") for i in range(64, 128, 16)])
    A.e(vq.drain()); A.e("s_barrier")
    stamp(4, 1)
    A.e(["s_cmp_lg_u32 s3, 0", f"s_cbranch_scc1 {L('nf')}", "s_mov_b64 exec, 1",
         f"buffer_store_dwordx2 v[128:129], v47, s[84:87], s91 offen {WT}", "s_mov_b64 exec, -1"])
    A.label(L("nf"))
    for op in d_ops(1, 0, True) + d_ops(1, 1, True): emit_vm(op, A.e, True)
    A.e("s_mov_b32 s90, s88")
    for op in d_ops(2, 0, True) + d_ops(2, 1, True): emit_vm(op, A.e, True)
    if tlb & 2:
        srd(A, 68, P_OUT, 2048 * 2048)
        A.e(["v_lshlrev_b32 v1, 21, v0"] + [f"buffer_load_dword a237, v1, s[{r}:{r+3}], 0 offen offset:2048" for r in (44, 48, 52, 68)])
    A.e([mfma32(v(i, 16), v(132, 4), v(132, 4), "0") for i in (32, 48)])
    A.e(["v_lshrrev_b32 v1, 4, v0", "v_mul_u32_u24 v30, 6144, v1", "v_and_b32 v1, 1, v1",
         "v_bfe_u32 v31, v0, 2, 2", "v_lshl_add_u32 v30, v31, 8, v30", "v_lshl_or_b32 v31, v31, 1, v1",
         "v_and_b32 v1, 3, v0", "v_lshl_add_u32 v30, v1, 3, v30", "v_add_u32 v30, 0x4000, v30"])
    for cb in range(8):
        A.e([f"v_xor_b32 v1, {cb}, v31", f"v_lshl_add_u32 v{9+cb}, v1, 5, v30", f"v_add_u32 v{17+cb}, 98304, v{9+cb}"])
    srd(A, 64, P_K, 4 * 2048 * 256)
    srd(A, 68, P_V, 4 * 2048 * 256)
    srd(A, 56, P_WS, SZ_HF, WS_HF)
    srd(A, 60, P_WS, (G_BASE + G_SF + 0x400000 - WS_OF) if sen else SZ_OF, WS_OF)
    A.e(["v_lshrrev_b32 v30, 4, v0", "v_and_b32 v31, 15, v0", "v_xor_b32 v1, v31, v30"])
    for i in range(4):
        A.e([f"v_xor_b32 v{25+i}, {4*i}, v1", f"v_lshlrev_b32 v{25+i}, 4, v{25+i}", f"v_lshl_add_u32 v{25+i}, v30, 8, v{25+i}"])
    A.e(["v_lshlrev_b32 v1, 2, v30", "v_xor_b32 v1, v31, v1", "v_lshlrev_b32 v1, 4, v1", "v_lshl_add_u32 v29, v30, 8, v1",
         "s_lshr_b32 s12, s5, 3", "s_lshl_b32 s12, s12, 19", "s_lshl_b32 s92, s3, 12",
         "s_add_u32 s93, s12, s92", f"s_add_u32 s93, s93, {1536*256}",
         "s_mov_b32 s9, 7"])
    if pfG in (1, 2):
        srd(A, 72, P_WO, 4096 * 2048); srd(A, 80, P_WD, 3584 * 2048)
        A.e(["s_lshl_b32 s12, s2, 2", "s_add_u32 s12, s12, s3", "s_lshl_b32 s96, s12, 13", "s_mul_i32 s97, s12, 7168",
             f"v_and_b32 v31, {7 if pfs == 7 else 3}, v0", f"v_lshlrev_b32 v31, {pfs}, v31"])
    stamp(5, 1)
    A.e(["s_cmp_lg_u32 s3, 0", f"s_cbranch_scc1 {L('gotL')}",
         "v_and_b32 v1, 31, v0", "v_lshlrev_b32 v1, 5, v1", "s_lshl_b32 s13, s4, 10", f"s_add_u32 s13, s13, {FL_L}", SPINB])
    A.label(L("pollL"))
    A.e([f"buffer_load_dwordx2 v[128:129], v1, s[84:87], s13 offen {WT}", "s_waitcnt vmcnt(0)",
         "s_sub_u32 s12, s12, 1", f"s_cbranch_scc1 {L('gotL')}",
         "v_cmp_ne_u64 vcc, s[98:99], v[128:129]", f"s_cbranch_vccz {L('gotL')}", f"s_sleep {psleep}", f"s_branch {L('pollL')}"])
    A.label(L("gotL"))
    A.e(vq.need(("D", 1, 1))); A.e("s_barrier")
    stamp(6, 1)
    for op in x_ops(0): A.e(op[1].replace("s88 offen", "s90 offen")); vq.issue(op[2])
    for op in x_ops(1): A.e(op[1]); vq.issue(op[2])
    for op in d_ops(3, 0, True) + d_ops(3, 1, True): emit_vm(op, A.e, True)
    for blk in range(4):
        for ins, tg in rd_ops(0, blk): A.e(ins); dq.issue(tg)
    A.e([f"v_mov_b32 v{i}, 0" for i in (128, 129, 130, 131)])
    A.e(vq.need(("X", 1)))
    stamp(1)

    BARM = 151
    SLOT = ["s_add_u32 s10, s72, s95", "s_add_u32 s73, s72, 98304", ["s_cmp_ge_u32 s73, 147456", "s_cselect_b32 s74, 147456, 0"], "s_sub_u32 s73, 98304, s74",
            "s_add_u32 s72, s72, 49152", ["s_cmp_ge_u32 s72, 147456", "s_cselect_b32 s72, 0, s72"]]
    def sstep(S, E, xs=True, ds=None, after=(), last=False):
        xo = x_ops(2 * S + 2) + x_ops(2 * S + 3) if xs else []
        do = (d_ops(2 * S + 4, 0) + d_ops(2 * S + 4, 1) + d_ops(2 * S + 5, 0) + d_ops(2 * S + 5, 1)) if ds is None else list(ds)
        c1 = [m for m in range(2, 148) if m % 4 == 2]
        px = c1[:len(xo)]; rest = c1[len(xo) + 2:]
        pd = [rest[(i * len(rest)) // len(do)] for i in range(len(do))] if do else []
        c2 = [m for m in range(BARM + 2, 176, 2)]
        sched = list(zip(px, xo)) + list(zip(pd, do)) + list(zip(c2, after))
        tailops = list(after)[len(c2):]
        misc = [] if last else list(SLOT) + [f"v_add_u32 v{(17 if S % 2 == 0 else 9) + cb}, s73, v{(17 if S % 2 == 0 else 9) + cb}" for cb in range(8)]
        pend = []; post = []; vi = 0
        pres = [list(op[0]) for _, op in sched]
        for m in range(176):
            b, j, c = m // 8, (m % 8) // 2, m % 2
            if alt & 1: c ^= j & 1
            if alt & 2 and b % 2: j = 3 - j
            if m == 0: E(vq.need(("X", 2 * S + 1)))
            if m % 8 == 0: E(dq.need(("A", S, b)))
            E(mfma16(acc(b, j), Afr(S, b, c), Bfr((2 * S + c) % 4, j)))
            if m == BARM:
                E(vq.need(("D", 2 * S + 3, 1))); E(dq.drain()); E("s_barrier")
            if m % 8 == 7:
                if b + 4 < 22: pend += rd_ops(S, b + 4)
                elif not last: pend += rd_ops(S + 1, b + 4 - 22)
            if vi < len(sched) and m == sched[vi][0]:
                E(pres[vi]);
                if pres[vi]: E("s_nop 0")
                op = sched[vi][1]
                E(op[1]); vq.issue(op[2]); post += op[3]; vi += 1
            else:
                used = 0
                if pend:
                    ins, tag = pend.pop(0); E(ins); dq.issue(tag); used += 1
                while misc and used < 2:
                    x = misc.pop(0); E(x); used += 1 if isinstance(x, str) else 2
                while post and used < 2: E(post.pop(0)); used += 1
                if vi < len(sched) and not misc and not post and vi >= len(xo) and not (sched[vi][0] > BARM and m < BARM):
                    while pres[vi] and used < 2:
                        x = pres[vi].pop(0)
                        if x.startswith("s_cmp"): x = [x, pres[vi].pop(0)]; used += 1
                        E(x); used += 1
        for ins, tag in pend: E(ins); dq.issue(tag)
        E(post)
        for op in tailops: emit_vm(op, E, True)
    reb = lambda q: [((t[0], t[1] - (2 if t[0] == "A" else 4)) + tuple(t[2:])) for t in q]
    for S in range(2): sstep(S, lambda x: None)
    vq.q = reb(vq.q); dq.q = reb(dq.q)
    A.raw(".p2align 6")
    A.label(L("loop"))
    for S in range(2): sstep(S, A.e)
    A.e(["s_sub_u32 s9, s9, 1", "s_cmp_lg_u32 s9, 0", f"s_cbranch_scc1 {L('loop')}"])
    vq.q = reb(vq.q); dq.q = reb(dq.q)
    if cpf >= 2: emit_vm(code_touch(30, "a238"), A.e)
    sstep(0, A.e, ds=kv_ops("K", 0) + kv_ops("V", 0) + kv_ops("V", 1) + kv_ops("V", 2))
    sstep(1, A.e, xs=False, ds=kv_ops("V", 3), after=kv_ops("K", 1) + kv_ops("K", 2) + kv_ops("K", 3), last=True)
    stamp(2)

    HP = "" if hwb else WT
    A.e(["s_mul_i32 s6, s15, 114688", "s_mul_i32 s12, s5, 7", "s_add_u32 s12, s12, 1", "s_lshr_b32 s12, s12, 1", "s_lshl_b32 s12, s12, 10",
         "s_add_u32 s6, s6, s12",
         "s_and_b32 s13, s5, 1", "s_cmp_eq_u32 s13, 0", "s_mov_b32 s13, 0xfffffc08", "s_cselect_b32 s13, 0xc00, s13",
         "s_add_u32 s7, s6, s13",
         "s_mov_b32 s8, 0xbfb8aa3b", "s_mov_b32 s9, 0xbfb8aa3b"])
    def hblock(b, j, dst):
        g = 32 + ((2 * b) * 4 + j) * 4; u = g + 16
        out = []
        out += [f"v_pk_mul_f32 v[{g+r_}:{g+r_+1}], v[{g+r_}:{g+r_+1}], s[8:9]" for r_ in (0, 2)]
        out += [f"v_exp_f32 v{g+r_}, v{g+r_}" for r_ in range(4)]
        out += [f"v_pk_add_f32 v[{g+r_}:{g+r_+1}], v[{g+r_}:{g+r_+1}], 1.0 op_sel_hi:[1,0]" for r_ in (0, 2)]
        out += [f"v_rcp_f32 v{g+r_}, v{g+r_}" for r_ in range(4)]
        out += [f"v_pk_mul_f32 v[{g+r_}:{g+r_+1}], v[{g+r_}:{g+r_+1}], v[{u+r_}:{u+r_+1}]" for r_ in (0, 2)]
        out += [f"v_cvt_pk_bf16_f32 v{dst}, v{g}, v{g+1}", f"v_cvt_pk_bf16_f32 v{dst+1}, v{g+2}, v{g+3}"]
        return out
    for i in range(2):
        for j in range(4):
            dst = 32 + ((4 * i + 1) * 4 + j) * 4
            A.e(hblock(2 * i, j, dst)); A.e(hblock(2 * i + 1, j, dst + 2))
            A.e([f"s_add_u32 s13, s6, {j*114688}", f"buffer_store_dwordx4 {v(dst,4)}, v4, s[56:59], s13 offen offset:{i*1024} {HP}"]); vq.issue(("H", 0))
    hrest = []; hdef = []
    if not hdf:
        for j in range(4):
            dst = 32 + (9 * 4 + j) * 4
            A.e(hblock(4, j, dst) + hblock(5, j, dst + 2) + [f"s_add_u32 s13, s6, {j*114688}", f"buffer_store_dwordx4 {v(dst,4)}, v4, s[56:59], s13 offen offset:2048 {HP}"]); vq.issue(("H", 0))
            dst = 32 + (13 * 4 + j) * 4
            A.e(hblock(6, j, dst) + [f"s_add_u32 s13, s7, {j*114688}", f"buffer_store_dwordx2 {v(dst,2)}, v4, s[56:59], s13 offen {HP}"]); vq.issue(("H", 0))
    for j in range(4 if hdf else 0):
        dst = 32 + (9 * 4 + j) * 4
        if hdf == 2:
            hrest += hblock(4, j, dst) + hblock(5, j, dst + 2) + [f"s_add_u32 s13, s6, {j*114688}", f"buffer_store_dwordx4 {v(dst,4)}, v4, s[56:59], s13 offen offset:2048 {HP}"]
            continue
        hrest += hblock(4, j, dst) + hblock(5, j, dst + 2) + [f"v_accvgpr_write_b32 a{192+4*j+k}, v{dst+k}" for k in range(4)]
        hdef.append(([f"s_add_u32 s90, s14, {j*114688}"], f"buffer_store_dwordx4 {a(192+4*j,4)}, v4, s[56:59], s90 offen offset:2048 {HP}", ("H", 0), []))
    for j in range(4 if hdf else 0):
        dst = 32 + (13 * 4 + j) * 4
        if hdf == 2:
            hrest += hblock(6, j, dst) + [f"s_add_u32 s13, s7, {j*114688}", f"buffer_store_dwordx2 {v(dst,2)}, v4, s[56:59], s13 offen {HP}"]
            continue
        hrest += hblock(6, j, dst) + [f"v_accvgpr_write_b32 a{208+2*j+k}, v{dst+k}" for k in range(2)]
        hdef.append(([f"s_add_u32 s90, s4, {j*114688}"], f"buffer_store_dwordx2 {a(208+2*j,2)}, v4, s[56:59], s90 offen {HP}", ("H", 0), []))
    QF = lambda mu, t: 32 + (mu * 8 + t) * 4
    SB = lambda b, mu: 96 + (b * 2 + mu) * 16
    NM = lambda mu: 160 + mu * 16
    PB = lambda b, mu: 192 + (b * 2 + mu) * 8
    EB = 224; VL = 232; VTS = 234; VT = 236
    A.e([f"s_mov_b32 s12, {QSCALE:#x}", f"s_mov_b32 s13, {QSCALE:#x}", f"s_mov_b32 s95, {thr:#x}"])
    for t in range(8):
        for mu in range(2):
            tmp = 96 + ((t * 2 + mu) % 4) * 8
            for x in range(2):
                src = (t * 4 + 2 * mu + x) * 4
                A.e([f"v_accvgpr_read_b32 v{tmp+4*x+r_}, a{src+r_}" for r_ in range(4)])
            A.e([f"v_pk_mul_f32 v[{tmp+2*k}:{tmp+2*k+1}], v[{tmp+2*k}:{tmp+2*k+1}], s[12:13]" for k in range(4)])
            q = QF(mu, t)
            A.e([f"v_cvt_pk_bf16_f32 v{q+k}, v{tmp+2*k}, v{tmp+2*k+1}" for k in range(4)])
            if (t * 2 + mu) > 0:
                pq = QF(*prev)
                A.e([f"v_permlane16_swap_b32 v{pq}, v{pq+2}", f"v_permlane16_swap_b32 v{pq+1}, v{pq+3}"])
            prev = (mu, t)
    A.e(["v_and_b32 v30, 31, v0", "v_lshrrev_b32 v31, 5, v0", "v_and_b32 v1, 15, v0", "v_xor_b32 v1, v1, v31",
         "v_lshlrev_b32 v30, 8, v30"])
    pq = QF(*prev)
    A.e([f"v_permlane16_swap_b32 v{pq}, v{pq+2}", f"v_permlane16_swap_b32 v{pq+1}, v{pq+3}"])
    for t in range(8):
        A.e([f"v_xor_b32 v{9+t}, {2*t}, v1", f"v_lshl_add_u32 v{9+t}, v{9+t}, 4, v30"])
    A.e(["v_bfe_u32 v1, v0, 2, 2", "v_lshlrev_b32 v30, 10, v31", "v_lshl_add_u32 v30, v1, 8, v30",
         "v_bfe_u32 v22, v0, 4, 1", "v_lshl_add_u32 v30, v22, 5, v30", "v_and_b32 v23, 3, v0", "v_lshl_add_u32 v30, v23, 3, v30",
         "v_add_u32 v30, 0x10000, v30"])
    for i in range(4):
        A.e([f"v_xor_b32 v23, {i}, v1", f"v_lshl_add_u32 v{17+i}, v23, 6, v30"])
    A.e(["v_lshlrev_b32 v21, 17, v22", "v_lshl_add_u32 v21, v31, 8, v21", "v_and_b32 v1, 15, v0", "v_lshl_add_u32 v21, v1, 4, v21"])
    Kf = lambda t: a(128 + t * 4, 4)
    Vf = lambda i, tp, h=None: a(160 + (i * 2 + tp) * 4, 4) if h is None else a(160 + (i * 2 + tp) * 4 + 2 * h, 2)
    Oacc = lambda i, mu: a((i * 2 + mu) * 16, 16)
    def k_reads(T): return [(f"ds_read_b128 {Kf(t)}, v{9+t} offset:{(T % 8) * 8192}", ("K", T, t)) for t in range(8)]
    def v_reads(T):
        return [(f"ds_read_b64_tr_b16 {Vf(i,tp,h)}, v{17+i} offset:{(T % 8) * 8192 + tp * 4096 + h * 2048}", ("V", T, i, tp))
                for i in range(4) for tp in range(2) for h in range(2)]
    def qk(T, c0):
        return [(mfma32(v(SB(T & 1, mu), 16), Kf(t), v(QF(mu, t), 4), (c0(mu) if t == 0 else None)), ("K", T, t)) for t in range(8) for mu in range(2)]
    def pv(T):
        return [(mfma32(Oacc(i, mu), Vf(i, tp), v(PB(T & 1, mu) + 4 * tp, 4), ("0" if (T == 0 and tp == 0) else None)), ("V", T, i, tp))
                for i in range(4) for tp in range(2) for mu in range(2)]
    A.e(vq.need(("K", 3))); A.e("s_barrier")
    dq.slack = 15
    for ins, tag in k_reads(0): A.e(ins); dq.issue(tag)
    A.e(hrest[:12]); hrest = hrest[12:]
    for ins, tag in qk(0, lambda mu: "0"):
        A.e(dq.need(tag, 4)); A.e(ins); A.e(hrest[:4]); hrest = hrest[4:]
    for ins, tag in k_reads(1): A.e(ins); dq.issue(tag)
    A.e(hrest)
    if hdf == 2:
        for _ in range(8): vq.issue(("H", 0))
    B = Asm()
    B.e((["s_and_b32 s12, s2, 7", "s_lshr_b32 s72, s12, 2", "s_and_b32 s13, s12, 1", "s_lshl_b32 s73, s4, 1", "s_add_u32 s73, s73, s13",
         "s_bfe_u32 s13, s12, 0x10001"] if kmap == 0 else
        ["s_and_b32 s72, s2, 1", "s_bfe_u32 s13, s2, 0x10001", "s_lshl_b32 s73, s4, 1", "s_add_u32 s73, s73, s13",
         "s_bfe_u32 s13, s2, 0x10002"]) + ["s_lshl_b32 s13, s13, 2", "s_lshr_b32 s74, s2, 6", "s_add_u32 s74, s74, s13",
         "s_lshr_b32 s12, s3, 1", "s_and_b32 s13, s3, 1",
         "s_cmp_eq_u32 s72, 0",
         f"s_cselect_b32 s8, {8*N1S}, {8*N1Y}", f"s_cselect_b32 s9, 0, {16*N1S}", "s_mul_i32 s8, s8, s12", "s_add_u32 s8, s8, s9",
         "s_cmp_eq_u32 s72, 0",
         f"s_cselect_b32 s75, {SS}, {64-SS}", f"s_cselect_b32 s96, 0, {2*SS}", "s_mul_i32 s75, s75, s12", "s_add_u32 s75, s75, s96",
         "s_lshl_b32 s9, s8, 10", "s_lshl_b32 s8, s8, 16",
         "s_lshl_b32 s96, s75, 10", "s_lshl_b32 s75, s75, 16",
         "s_lshl_b32 s13, s13, 12",
         "s_lshl_b32 s10, s12, 17", "s_add_u32 s10, s10, s13",
         "s_lshl_b32 s11, s12, 16", "s_add_u32 s11, s11, 0x8000", "s_add_u32 s11, s11, s13",
         "v_lshrrev_b32 v30, 4, v0", "v_and_b32 v31, 15, v0", "v_lshlrev_b32 v1, 2, v30", "v_xor_b32 v31, v31, v1",
         "s_lshl_b32 s13, s13, 3", "s_lshl_b32 s97, s74, 8", "s_add_u32 s97, s97, s13",
         "v_lshlrev_b32 v30, 11, v30", "v_add_u32 v30, s97, v30",
         "v_lshl_add_u32 v246, v31, 4, v30", "v_xor_b32 v31, 2, v31", "v_lshl_add_u32 v247, v31, 4, v30", "v_add_u32 v247, 7168, v247",
         "v_add_u32 v248, 14336, v246", "v_add_u32 v249, 14336, v247", "v_mov_b32 v250, s98", "v_mov_b32 v251, s99", "v_mov_b32 v252, 0",
         "s_lshl_b32 s97, s73, 3", "s_and_b32 s13, s3, 1", "s_lshl_b32 s13, s13, 2", "s_add_u32 s97, s97, s13", "s_lshl_b32 s12, s12, 1"])
    for jj in range(4):
        B.e([f"s_xor_b32 s13, s12, {jj}", "s_add_u32 s13, s13, s97", "s_mul_i32 s90, s13, 114688", f"v_add_u32 v{5+jj}, s90, v4",
             "s_lshl_b32 s90, s13, 17", f"v_add_u32 v{242+jj}, s90, v4"])
    B.e(["v_lshlrev_b32 v24, 5, v0", "v_and_b32 v24, 0x3e0, v24",
         "s_lshl_b32 s12, s4, 10", f"s_add_u32 s91, s12, {FL_H}", f"s_add_u32 s97, s12, {FL_O}",
         "s_lshl_b32 s13, s5, 5", "s_add_u32 s88, s91, s13", "s_add_u32 s89, s97, s13"])
    srd(B, 48, P_WS, FL_SZ, WS_FLAG)
    srd(B, 44, P_WD, 3584 * 2048)
    srd(B, 40, P_WS, SZ_HF, WS_HF)
    for i in range(8):
        B.e([f"s_add_u32 s13, s14, {i}", "s_and_b32 s13, s13, 7", f"s_lshl_b32 s{80+i}, s13, 10"])
    if xe:
        srd(B, 56, P_X, 2048 * 2048)
        B.e(["s_lshl_b32 s90, s73, 7", "s_and_b32 s12, s3, 1", "s_lshl_b32 s12, s12, 6", "s_add_u32 s90, s90, s12",
             "s_lshr_b32 s12, s3, 1", "s_lshl_b32 s12, s12, 5", "s_add_u32 s90, s90, s12",
             "s_lshl_b32 s90, s90, 11", "s_lshl_b32 s12, s74, 8", "s_add_u32 s90, s90, s12",
             "s_cmp_eq_u32 s72, 0", "s_cselect_b32 s90, s90, 0x7fff0000",
             "s_lshl_b32 s4, s3, 13", "s_add_u32 s4, s4, 0x20000", "s_add_u32 s14, s90, 0x8000",
             "v_lshrrev_b32 v30, 4, v0", "v_and_b32 v1, 15, v0", "v_xor_b32 v1, v1, v30", "v_lshlrev_b32 v30, 11, v30"])
        for i, r_ in ((1, 253), (2, 254), (3, 255), (0, 1)):
            B.e([f"v_xor_b32 v{r_}, {4*i}, v1", f"v_lshl_add_u32 v{r_}, v{r_}, 4, v30"] + ([f"v_add_u32 v{r_}, {7168*i}, v{r_}"] if i else []))
    late = []
    for l_ in [x.strip() for x in B.lines]:
        if l_.startswith(("s_cselect", "s_addc", "s_subb")): late[-1] = (late[-1][0] + [l_], late[-1][1] + 4)
        else: late.append(([l_], 4))
    if not lset:
        for x, c in late: A.e(x)
        late = []
    WV = 246
    def w_ops(t, half=False):
        slot = t % 8
        ops = []
        rot_ = [f"s_and_b32 s12, s{80+slot}, 0xc00", "s_lshl_b32 s12, s12, 6"] if half else [f"s_lshl_b32 s12, s{80+slot}, 6"]
        for i in range(4):
            ops.append(([f"s_add_u32 m0, s{10 if slot < 4 else 11}, {(slot%4)*8192}"] + rot_ + ["s_add_u32 s12, s12, s8"] if i == 0 else [],
                        f"buffer_load_dwordx4 v{WV+i}, s[44:47], s12 offen offset:{i*1024} lds", ("W", t),
                        ["s_add_u32 s8, s8, 0x80000"] if (i == 3 and slot == 7) else []))
        return ops
    BR = [192, 208, 0, 16, 32, 48, 64, 80] if xe else [192, 208, 224, 0, 16, 32, 48, 64]
    facc = lambda cb, jj: v(32 + (cb * 4 + jj) * 4, 4)
    FA = lambda cb, c, h=None: a(128 + (c * 8 + cb) * 4, 4) if h is None else a(128 + (c * 8 + cb) * 4 + 2 * h, 2)
    FB = lambda slot, jj: a(BR[slot] + jj * 4, 4)
    def a_ops(t, half=False):
        slot = t % 8
        return [(([f"s_and_b32 s13, s{80+slot}, 0xc00", "s_add_u32 s13, s13, s9"] if half else [f"s_add_u32 s13, s{80+slot}, s9"]) if jj == 0 else [],
                 f"buffer_load_dwordx4 {FB(slot,jj)}, v{5+jj}, s[40:43], s13 offen {apol}", ("X", t),
                 ["s_add_u32 s9, s9, 0x2000"] if (jj == 3 and slot == 7) else []) for jj in range(4)]
    spins = []
    def check_flags(tag, reg, addr, off):
        A.e([f"v_cmp_ne_u64 vcc, s[98:99], v[{reg}:{reg+1}]", f"s_cbranch_vccnz {L('spin' + tag)}"])
        A.label(L("ok" + tag))
        spins.append((tag, reg, addr, off))

    if hdf == 1: A.e(["s_mov_b32 s14, s6", "s_mov_b32 s4, s7"]); assert not lset
    A.e(["v_mov_b32 v232, 0", "v_mov_b32 v233, 0"] + (["s_nop 2"] if (lset and not hdf) else []))
    def rowmax(S, dst, tmp):
        out = [f"v_max3_f32 v{dst}, v{S}, v{S+1}, v{S+2}"]
        for k in range(3, 15, 2): out.append(f"v_max3_f32 v{dst}, v{dst}, v{S+k}, v{S+k+1}")
        out += [f"v_max_f32 v{dst}, v{dst}, v{S+15}", f"v_mov_b32 v{tmp}, v{dst}", "s_nop 1",
                f"v_permlane32_swap_b32 v{tmp}, v{dst}", f"v_max_f32 v{dst}, v{dst}, v{tmp}"]
        return out
    for mu in range(2):
        A.e(rowmax(SB(0, mu), VT + mu, VT + 2))
        A.e([f"v_sub_f32 v{NM(mu)+k}, 0, v{VT+mu}" for k in range(16)])
        A.e([f"v_sub_f32 v{SB(0,mu)+k}, v{SB(0,mu)+k}, v{VT+mu}" for k in range(16)])
    def sm(T):
        b = T & 1
        out = []
        def ex(n): return (f"v_exp_f32 v{EB + n % 8}, v{SB(b, n // 16) + n % 16}", 8)
        def fin(n):
            mu, r_ = n // 16, n % 16; e = EB + n % 8; o = []
            if pka:
                if r_ % 2 == 1:
                    P_ = VT + 2 + 2 * mu
                    if r_ == 3: o.append((f"v_pk_add_f32 v[{P_}:{P_+1}], v[{EB + (n-3) % 8}:{EB + (n-3) % 8 + 1}], v[{e-1}:{e}]", 8))
                    elif r_ > 3: o.append((f"v_pk_add_f32 v[{P_}:{P_+1}], v[{P_}:{P_+1}], v[{e-1}:{e}]", 8))
                    o.append((f"v_cvt_pk_bf16_f32 v{PB(b,mu) + r_//2}, v{e-1}, v{e}", 5))
                    if r_ == 15: o.append((f"v_add_f32 v{VTS+mu}, v{P_}, v{P_+1}", 4))
                return o
            if r_ == 1: o.append((f"v_add_f32 v{VTS+mu}, v{EB + (n-1) % 8}, v{e}", 4))
            elif r_ > 1: o.append((f"v_add_f32 v{VTS+mu}, v{VTS+mu}, v{e}", 4))
            if r_ % 2 == 1: o.append((f"v_cvt_pk_bf16_f32 v{PB(b,mu) + r_//2}, v{EB + (n-1) % 8}, v{e}", 5))
            return o
        out.append(ex(0)); out.append(ex(1))
        for n in range(2, 32):
            out.append(ex(n)); out += fin(n - 2)
        out += fin(30) + fin(31)
        out += [(f"v_max_f32 v{VT}, v{VTS}, v{VTS+1}", 4), (f"v_cmp_nge_f32 vcc, s95, v{VT}", 4)]
        return out
    stamp(3)
    def flag_store(off_sreg):
        lab = L("fl%d" % A.nlabel); A.nlabel += 1
        A.e(["s_cmp_lg_u32 s3, 0", f"s_cbranch_scc1 {lab}", "s_mov_b64 exec, 1",
             f"buffer_store_dwordx2 v[250:251], v252, s[48:51], {off_sreg} offen {WT}", "s_mov_b64 exec, -1"])
        A.label(lab)
    endsetup = ["s_lshl_b32 s6, s15, 17", "s_lshl_b32 s90, s5, 12", "s_add_u32 s6, s6, s90", "s_add_u32 s7, s6, 0x40000",
                f"v_mov_b32 v{VT}, v{VL}", f"v_mov_b32 v{VT+1}, v{VL+1}", "v_mov_b32 v29, v21", "v_mov_b32 v253, v24",
                f"v_permlane32_swap_b32 v{VT}, v{VL}", f"v_permlane32_swap_b32 v{VT+1}, v{VL+1}",
                f"v_add_f32 v{VT}, v{VT}, v{VL}", f"v_add_f32 v{VT+1}, v{VT+1}, v{VL+1}",
                f"v_rcp_f32 v{VT+2}, v{VT}", f"v_rcp_f32 v{VT+4}, v{VT+1}",
                "v_lshrrev_b32 v1, 4, v0", f"v_mov_b32 v{VT+3}, v{VT+2}", f"v_mov_b32 v{VT+5}, v{VT+4}",
                "v_lshlrev_b32 v30, 10, v1", "v_and_b32 v1, 1, v1",
                "v_bfe_u32 v31, v0, 2, 2", "v_lshl_add_u32 v30, v31, 8, v30", "v_lshl_or_b32 v31, v31, 1, v1",
                "v_and_b32 v1, 3, v0", "v_lshl_add_u32 v30, v1, 3, v30",
                "s_lshr_b32 s91, s3, 1", "s_lshl_b32 s90, s91, 17", "s_lshl_b32 s91, s91, 16", "s_add_u32 s91, s91, 0x8000"]
    for cb in range(8):
        endsetup += [f"v_xor_b32 v1, {cb}, v31", "v_lshl_add_u32 v1, v1, 5, v30", f"v_add_u32 v{9+cb}, s90, v1", f"v_add_u32 v{17+cb}, s91, v1"]
    rare_sites = []
    for T in range(17):
        mf = (qk(T + 1, lambda mu: v(NM(mu), 16)) if T + 1 <= 15 else []) + (pv(T - 1) if T >= 1 else [])
        nq = 16 if T + 1 <= 15 else 0
        va = ([(f"v_add_f32 v{VL}, v{VL}, v{VTS}", 4), (f"v_add_f32 v{VL+1}, v{VL+1}, v{VTS+1}", 4)] if T >= 1 else []) + (sm(T) if T <= 15 else [])
        rdv = v_reads(T - 1) if T >= 1 else []
        rdk = k_reads(T + 2) if T + 2 <= 15 else []
        vm = []
        if T % 2 == 0 and T <= 14:
            w = []
            if T == hfT: w += vq.need(("H", 0))
            if T >= 6: w += vq.need(("K", (T + 2) // 2))
            if T >= 8: w += vq.need(("V", T // 2))
            A.e(w[-1:]); A.e(dq.drain()); A.e("s_barrier")
            if T == hfT:
                if hwb:
                    lab = L("wb")
                    A.e(["s_cmp_lg_u32 s3, 0", f"s_cbranch_scc1 {lab}", "buffer_wbl2 sc1"]); A.label(lab)
                else: flag_store("s88")
            if T == 8 and hwb: flag_store("s88")
            if T <= 6: vm += kv_ops("K", T // 2 + 4)
            if 4 <= T <= 10: vm += kv_ops("V", T // 2 + 2)
            if T == 12: vm += w_ops(0) + w_ops(1)
            if T == 14:
                A.e(vq.need(("F", 0))); check_flags("H", 22, 24, "s91")
                vm += a_ops(0) + a_ops(1)
        if pfA and pf0 <= T <= pf0 + 7:
            pre = []
            if T == pf0:
                pre = [f"s_mov_b32 s52, s{P_WO}", f"s_and_b32 s53, s{P_WO+1}, 0xffff", f"s_mov_b32 s54, {4096*2048:#x}",
                       "s_lshl_b32 s12, s2, 2", "s_add_u32 s12, s12, s3", "s_lshl_b32 s100, s12, 13", "s_mul_i32 s101, s12, 7168",
                       "v_and_b32 v2, 7, v0", "v_lshlrev_b32 v2, 7, v2", "v_add_u32 v3, 4096, v2"]
            k = T - pf0
            if k < 7: vm += [(pre, f"buffer_load_dword v31, v{2 if k < 4 else 3}, s[44:47], s101 offen offset:{(k % 4) * 1024}", ("P", 0), [])]
            if pfA == 2: vm += [([], f"buffer_load_dword v31, v{2 if k < 4 else 3}, s[52:55], s100 offen offset:{(k % 4) * 1024}", ("P", 0), [])]
        if xe and 5 <= T <= 8:
            hh, i0 = (T - 5) // 2, 2 * ((T - 5) % 2)
            for i in (i0, i0 + 1):
                vm += [([f"s_add_u32 m0, s4, {4096*hh}"] if i == i0 else [],
                        f"buffer_load_dwordx4 v{(1, 253, 254, 255)[i]}, s[56:59], {'s14' if hh else 's90'} offen offset:{i*1024} lds", ("R", 0), [])]
        if sen and 5 <= T <= 10:
            ks = {5: (0,), 6: (1,), 7: (2, 3), 8: (4,), 9: (5, 6), 10: (7,)}[T]
            for k in ks:
                pre = []
                if k == 0:
                    pre = ["s_lshl_b32 s12, s73, 3", "s_add_u32 s12, s12, s74", "s_lshl_b32 s12, s12, 2", "s_add_u32 s12, s12, s3", "s_lshl_b32 s12, s12, 13",
                           f"s_add_u32 s88, s12, {G_BASE + G_SF - WS_OF:#x}", ["s_cmp_eq_u32 s72, 0", "s_cselect_b32 s88, 0x7fff0000, s88"]] + \
                          [f"v_accvgpr_write_b32 a{252+i}, -1" for i in range(4)]
                if k == 4: pre = ["s_add_u32 s88, s88, 4096"]
                vm += [(pre, f"buffer_store_dwordx4 a[252:255], v4, s[60:63], s88 offen offset:{(k%4)*1024} {WT}", ("E", 0), [])]
        if xe and T == 11:
            A.e(vq.need(("R", 0)))
            xr_ = ["v_and_b32 v1, 15, v0", "v_lshrrev_b32 v253, 5, v0", "v_xor_b32 v253, v253, v1", "v_bfe_u32 v254, v0, 4, 1", "v_lshlrev_b32 v254, 3, v254",
                   "v_lshl_add_u32 v254, v1, 8, v254", "v_add_u32 v254, s4, v254"]
            vm += [([], x, None, []) for x in xr_]
            for cb in range(8):
                vm += [([], f"v_xor_b32 v30, {2*cb}, v253", None, []), ([], "v_lshl_add_u32 v30, v30, 4, v254", None, []),
                       ([], f"ds_read_b64 {a(224+4*cb,2)}, v30", "DS", []), ([], f"ds_read_b64 {a(226+4*cb,2)}, v30 offset:4096", "DS", [])]
        if T == 9 and cpf >= 3: emit_vm(code_touch(30, "v31"), A.e)
        if T == 12: vm += [([], f"buffer_load_dwordx2 v[22:23], v24, s[48:51], s91 offen {WT}", ("F", 0), [])]
        if T == 13: vm += w_ops(2) + w_ops(3)
        if T < 4: vm += hdef[2 * T: 2 * T + 2]
        if T == 15 and not xe: vm += a_ops(2)
        if late and 1 <= T <= 3:
            k_ = -(-len(late) // (4 - T)); ch = late[:k_]; late = late[k_:]
            nv = []; st_ = max(1, len(va) // len(ch))
            for i_, it_ in enumerate(va[:-2]):
                nv.append(it_)
                if ch and i_ % st_ == st_ - 1 and not it_[0].startswith("v_exp"): pass
                if ch and i_ % st_ == st_ - 1: nv.append(ch.pop(0))
            va = nv + ch + va[-2:]
        roll = v_reads(T) if (t16 and T in (14, 15)) else []
        if t16 and T >= 15: rdv = []
        if t16 and T == 16:
            A.e(dq.drain()); A.e("s_barrier")
            vm += w_ops(4) + w_ops(5) + w_ops(6) + w_ops(7)
            va += [(x, 4) for x in endsetup]
        if nq == 0:
            for ins, tag in rdv: A.e(ins); dq.issue(tag)
            rdv = []
        n = len(mf)
        vml = []
        for op in vm:
            vml += [(x, 4 if isinstance(x, str) else 4 * len(x), None) for x in op[0]] + ([("s_nop 0", 4, None)] if op[0] else []) + [(op[1], 8 if isinstance(op[2], tuple) else 4, op[2])] + [(x, 4, None) for x in op[3]]
        tot = sum(c for _, c in va) + 4 * (len(rdv) + len(rdk) + len(roll)) + sum(c for _, c, _ in vml)
        done = 0
        for m, (ins, tag) in enumerate(mf):
            w = dq.need(tag, dsl); A.e(w); A.e(ins)
            used = 4 * len(w)
            budget = max(cap, -(-(tot - done) // (n - m)) + 3) if m < n - 1 else 10 ** 6
            target = (tot * (m + 1)) // n + 6
            if roll and m >= nq and (m - nq) % 2 == 1: rdk += roll[:2]; roll = roll[2:]
            rd = rdv if (m < nq and rdv) else (rdk if (m >= nq and rdk) else None)
            if rd:
                ri, rt = rd.pop(0); A.e(ri); dq.issue(rt); used += 4; done += 4
                if rd is rdv and len(rd) > (nq - 3 - m):
                    ri, rt = rd.pop(0); A.e(ri); dq.issue(rt); used += 4; done += 4
            elif vml:
                x, c, tg = vml.pop(0); A.e(x); used += c; done += c
                if tg: (dq.issue(('XR', 0)) if tg == 'DS' else vq.issue(tg))
                while vml and c == 4 and used < 12:
                    x, c, tg = vml.pop(0); A.e(x); used += c; done += c
                    if tg: (dq.issue(('XR', 0)) if tg == 'DS' else vq.issue(tg))
            while va and used + va[0][1] <= budget and (done < target or m == n - 1):
                x, c = va.pop(0); A.e(x); used += c; done += c
        assert not rdv
        for ins, tag in rdk: A.e(ins); dq.issue(tag)
        for x, c, tg in vml:
            A.e(x)
            if tg: (dq.issue(('XR', 0)) if tg == 'DS' else vq.issue(tg))
        for x, c in va: A.e(x)
        if T <= 15:
            A.e([f"s_cbranch_vccnz {L('rs%d' % T)}"])
            A.label(L("rb%d" % T))
            rare_sites.append(T)
    stamp(4)
    if not t16:
        A.e("s_barrier")
        for t in range(4, 7):
            for op in w_ops(t): emit_vm(op, A.e, True)
        A.e(endsetup)
    def frd(t, cb):
        out = []
        for c in range(2):
            slot = (t + c) % 8
            reg = (9 if slot < 4 else 17) + cb; off = (slot % 4) * 8192
            out += [(f"ds_read_b64_tr_b16 {FA(cb,c,0)}, v{reg} offset:{off}", ("A", t, cb)),
                    (f"ds_read_b64_tr_b16 {FA(cb,c,1)}, v{reg} offset:{off+4096}", ("A", t, cb))]
        return out
    dq.slack = 8
    ostores = []
    cnt = 0
    if oin:
        A.e([f"v_accvgpr_read_b32 v{96+k}, a{k}" for k in range(64)])
        for t in (range(2, 6) if xe else range(3, 7)):
            for op in a_ops(t): emit_vm(op, A.e)
        A.e(vq.need(("W", 3))); A.e("s_barrier")
        for cb in range(8):
            for ins, tag in frd(0, cb): A.e(ins); dq.issue(tag)
    for i in range(4):
        for mu in range(2):
            tmp = 96 + (cnt % 4) * 16; dst = 160 + cnt * 8; cnt += 1
            src = (i * 2 + mu) * 16
            if not (oin and cnt <= 4): A.e([f"v_accvgpr_read_b32 v{tmp+k}, a{src+k}" for k in range(16)])
            A.e([f"v_pk_mul_f32 v[{tmp+2*k}:{tmp+2*k+1}], v[{tmp+2*k}:{tmp+2*k+1}], v[{VT+2+2*mu}:{VT+3+2*mu}]" for k in range(8)])
            for s_ in range(2):
                for jj, j in enumerate((s_, s_ + 2)):
                    A.e([f"v_cvt_pk_bf16_f32 v{dst+4*s_+2*jj}, v{tmp+4*j}, v{tmp+4*j+1}", f"v_cvt_pk_bf16_f32 v{dst+4*s_+2*jj+1}, v{tmp+4*j+2}, v{tmp+4*j+3}"])
                ostores.append(([], f"buffer_store_dwordx4 {v(dst+4*s_,4)}, v29, s[60:63], s{6+mu} offen offset:{i*1024+s_*512} {WT}", ("O", 0), []))
                if oin and len(ostores) <= oin: emit_vm(ostores[-1], A.e)
            if not oin and cnt in (1, 2, 3, 4):
                for op in a_ops(2 + cnt): emit_vm(op, A.e)
            if not oin and cnt == 5:
                A.e(vq.need(("W", 3))); A.e("s_barrier")
                for cb in range(8):
                    for ins, tag in frd(0, cb): A.e(ins); dq.issue(tag)
    ostores = ostores[oin:]
    srd(A, 52, P_WS, G_SZ, G_BASE)
    srd(A, 64, P_X, 2048 * 2048)
    srd(A, 68, P_OUT, 2048 * 2048)
    A.e(["s_cmp_eq_u32 s72, 0",
         f"s_cselect_b32 s90, {N1S-nf//8}, {N1Y-nf//8}", f"s_cselect_b32 s95, {N1S-1-nf//8}, {N1Y-1-nf//8}", "s_mov_b32 s91, 0",
         "s_lshl_b32 s12, s73, 3", "s_add_u32 s12, s12, s74",
         "s_lshl_b32 s92, s12, 2", "s_add_u32 s92, s92, s3",
         "s_lshl_b32 s92, s92, 13",
         "s_lshl_b32 s93, s12, 7", f"s_add_u32 s101, s93, {FL_P}", "s_lshl_b32 s12, s3, 5", "s_add_u32 s93, s93, s12",
         "s_lshl_b32 s94, s73, 7", "s_and_b32 s12, s3, 1", "s_lshl_b32 s12, s12, 6", "s_add_u32 s94, s94, s12",
         "s_lshr_b32 s12, s3, 1", "s_lshl_b32 s12, s12, 5", "s_add_u32 s94, s94, s12",
         "s_lshl_b32 s94, s94, 11", "s_lshl_b32 s12, s74, 8", "s_add_u32 s94, s94, s12",
         "v_and_b32 v1, 15, v0", "v_lshlrev_b32 v1, 11, v1", "v_lshrrev_b32 v30, 4, v0",
         "v_lshl_add_u32 v25, v30, 3, v1", "v_add_u32 v26, 0x8000, v25",
         "v_lshl_add_u32 v27, v30, 4, v1", "v_add_u32 v28, 0x8000, v27",
         "s_lshl_b32 s12, s3, 14", "v_add_u32 v2, s12, v4", "s_xor_b32 s12, s12, 0x8000", "v_add_u32 v3, s12, v4",
         "s_lshl_b32 s12, s3, 13", "s_add_u32 s12, s12, 0x10000", "v_add_u32 v254, s12, v4", "s_xor_b32 s12, s12, 0x4000", "v_add_u32 v255, s12, v4"])
    stamp(5)
    VP = [m for m in range(64) if m % 8 in (3, 5)]
    XP = [m for m in range(64) if m % 8 in (4, 6)]
    FBAR = 7
    def fss(t, E, last=False, extra=(), czero=False, afterbar=None, needbar=(), va=None, hook=None):
        if not last: vops = a_ops(t + 6) + a_ops(t + 7) + w_ops(t + 8) + w_ops(t + 9)
        else: vops = a_ops(6) + a_ops(7) if t == 0 else []
        sched = sorted(list(zip(VP, vops)) + list(zip(XP, extra)), key=lambda x: x[0])
        assert len(extra) <= len(XP)
        doread = not (last and t == 6)
        pend = []; vi = 0; post = []
        pres = [list(op[0]) for _, op in sched]
        for m in range(64):
            cb, jj, c = m // 8, (m % 8) // 2, m % 2
            if alt & 1: c ^= jj & 1
            if alt & 2 and cb % 2: jj = 3 - jj
            if m == 0: E(vq.need(("X", t + 1)))
            if m % 8 == 0: E(dq.need(("A", t, cb)))
            E(mfma16(facc(cb, jj), FA(cb, c), FB((t + c) % 8, jj), "0" if (czero and m % 2 == 0) else None))
            if m == FBAR:
                w = vq.need(("W", t + 3))
                for tg in needbar: w += vq.need(tg)
                E(w[-1:]); E(dq.drain()); E("s_barrier")
                if afterbar: afterbar()
            if m % 8 == 7 and doread: pend += frd(t + 2, cb)
            if hook and hook(m): E(hook(m)); continue
            if vi < len(sched) and m == sched[vi][0]:
                assert not pres[vi], (t, m, pres[vi])
                op = sched[vi][1]
                E(op[1]); vq.issue(op[2]); post += op[3]; vi += 1
            else:
                used = 0
                if pend:
                    ins, tag = pend.pop(0); E(ins); dq.issue(tag); used += 1
                if post and used < 2: E(post.pop(0)); used += 1
                k = next((k for k in range(vi, len(sched)) if pres[k]), None)
                if k is not None:
                    busy = any((" lds" in sched[k2][1][1] and " lds" in sched[k][1][1]) or (" s13 " in sched[k2][1][1] and " s13 " in sched[k][1][1]) for k2 in range(vi, k))
                    while not busy and not post and pres[k] and used < 2: E(pres[k].pop(0)); used += 1
                cyc = 4 * used
                while va and cyc + va[0][1] <= vcap:
                    x, c_ = va.pop(0); E(x); cyc += c_
        for ins, tag in pend: E(ins); dq.issue(tag)
        E(post)
    oflag = [([], f"buffer_load_dwordx2 v[30:31], v253, s[48:51], s97 offen {WT}", ("F", 0), [])]
    def loop_body(E, real):
        if real:
            A.e(["s_cmp_lg_u32 s95, 0", f"s_cbranch_scc1 {L('nosw1')}"])
            srd(A, 44, P_WO, 4096 * 2048); A.e("s_mov_b32 s8, s75")
            A.label(L("nosw1"))
        for t in range(0, 8, 2):
            fss(t, E, extra=oflag if t == 2 else ())
            if t == 0 and real:
                A.e(["s_cmp_lg_u32 s95, 0", f"s_cbranch_scc1 {L('nosw')}"])
                check_flags("O", 30, 253, "s97")
                srd(A, 40, P_WS, SZ_OF, WS_OF)
                A.e(["s_mov_b32 s9, s96", "s_mov_b32 s97, s101", "v_mov_b32 v253, 0"] + [f"v_mov_b32 v{5+jj}, v{242+jj}" for jj in range(4)])
                A.label(L("nosw"))
    for t in range(0, 8, 2):
        fss(t, A.e, extra=ostores if t == 0 else (), czero=(t == 0),
            needbar=[("O", 0)] if t == oflt2 else (), afterbar=(lambda: flag_store("s89")) if t == oflt2 else None)
    stamp(6)
    vq.rebase(8); dq.rebase(8)
    q_first = (list(vq.q), list(dq.q))
    loop_body(lambda x: None, False)
    vq.rebase(8); dq.rebase(8)
    q_steady = (list(vq.q), list(dq.q))
    assert N1S >= 3 and N1Y >= 3
    _v, _d = list(vq.q), list(dq.q); fss(0, lambda x: None); assert not any(t[0] == "F" for t in vq.q); vq.q, dq.q = _v, _d
    def covers(entry, steady):
        def younger(q, tag): return len(q) - 1 - max(i for i, t in enumerate(q) if t == tag)
        for tag in set(entry):
            if tag[0] not in "WXA": continue
            if tag not in steady or younger(entry, tag) < younger(steady, tag): return False
        return True
    assert covers(q_first[0], q_steady[0]) and covers(q_first[1], q_steady[1]), (q_first, q_steady)
    A.raw(".p2align 6")
    A.label(L("floop"))
    loop_body(A.e, True)
    A.e(["s_sub_u32 s95, s95, 1", "s_sub_u32 s90, s90, 1", "s_cmp_lg_u32 s90, 0", f"s_cbranch_scc1 {L('floop')}",
         "s_cmp_lg_u32 s91, 0", f"s_cbranch_scc1 {L('flast')}"])
    stamp(3, 2)
    vq.rebase(8); dq.rebase(8)
    YS = lambda cb, jj: 160 + (cb * 2 + jj) * 4
    if mid1:
        A.e("s_nop 2")
        for jj in range(2):
            for i in range(4):
                d = YS(2 * i, jj)
                for h in range(2):
                    b = 32 + ((2 * i + h) * 4 + jj + 2) * 4
                    A.e([f"v_cvt_pk_bf16_f32 v{d+2*h}, v{b}, v{b+1}", f"v_cvt_pk_bf16_f32 v{d+2*h+1}, v{b+2}, v{b+3}"])
                A.e(f"ds_write_b128 v254, {v(d,4)} offset:{(jj*4+i)*1024}")
        A.e(["s_waitcnt lgkmcnt(0)", "s_barrier"])
        for jj in range(2):
            for i in range(4):
                A.e(f"ds_read_b128 {facc(2*i, jj+2)}, v255 offset:{(jj*4+i)*1024}")
        for jj in range(2):
            for i in range(4):
                pc = 32 + ((2 * i) * 4 + jj + 2) * 4
                A.e(f"s_waitcnt lgkmcnt({7 - (jj*4+i)})")
                for h in range(2):
                    b = 32 + ((2 * i + h) * 4 + jj) * 4; y = YS(2 * i + h, jj)
                    A.e([f"v_lshlrev_b32 v{y}, 16, v{pc+2*h}", f"v_and_b32 v{y+1}, 0xffff0000, v{pc+2*h}",
                         f"v_lshlrev_b32 v{y+2}, 16, v{pc+2*h+1}", f"v_and_b32 v{y+3}, 0xffff0000, v{pc+2*h+1}"])
                    A.e([f"v_pk_add_f32 v[{y+r_}:{y+r_+1}], v[{y+r_}:{y+r_+1}], v[{b+r_}:{b+r_+1}]" for r_ in (0, 2)])
    else:
        A.e("s_nop 2")
        for rnd in range(2):
            for cb in range(4 * rnd, 4 * rnd + 4):
                for jj in (2, 3): A.e(f"ds_write_b128 v254, {facc(cb,jj)} offset:{((cb%4)*2+jj-2)*1024}")
            if rnd == 1:
                for cb in range(4):
                    for jj in range(2):
                        b = 32 + (cb * 4 + jj) * 4; y = YS(cb, jj)
                        A.e([f"v_pk_add_f32 v[{y+r_}:{y+r_+1}], v[{b+r_}:{b+r_+1}], v[{b+8+r_}:{b+9+r_}]" for r_ in (0, 2)])
            A.e(["s_waitcnt lgkmcnt(0)", "s_barrier"])
            for cb in range(4 * rnd, 4 * rnd + 4):
                for jj in (2, 3): A.e(f"ds_read_b128 {facc(cb,jj)}, v255 offset:{((cb%4)*2+jj-2)*1024}")
            if rnd == 0: A.e(["s_waitcnt lgkmcnt(0)", "s_barrier"])
        for cb in range(4, 8):
            for jj in range(2):
                b = 32 + (cb * 4 + jj) * 4; y = YS(cb, jj)
                A.e(f"s_waitcnt lgkmcnt({7 - ((cb-4)*2+jj)})")
                A.e([f"v_pk_add_f32 v[{y+r_}:{y+r_+1}], v[{b+r_}:{b+r_+1}], v[{b+8+r_}:{b+9+r_}]" for r_ in (0, 2)])
    A.e(["s_cmp_eq_u32 s72, 0", f"s_cbranch_scc1 {L('firstC')}", "s_add_u32 s6, s92, 4096"])
    for jj in range(2):
        for i in range(4):
            d = 224 + (i % 2) * 4 + jj * 8
            for h in range(2):
                y = YS(2 * i + h, jj)
                A.e([f"v_cvt_pk_bf16_f32 v{d+2*h}, v{y}, v{y+1}", f"v_cvt_pk_bf16_f32 v{d+2*h+1}, v{y+2}, v{y+3}"])
            A.e(f"buffer_store_dwordx4 {v(d,4)}, v4, s[52:55], {'s6' if jj else 's92'} offen offset:{i*1024} {WT}")
    A.label(L("firstC"))
    stamp(4, 2)
    vq.q, dq.q = list(q_steady[0]), list(q_steady[1])
    def pflag():
        lab = L("pf")
        A.e(["s_xor_b32 s6, s72, 1", "s_or_b32 s6, s6, s3", "s_cmp_lg_u32 s6, 0", f"s_cbranch_scc1 {lab}", "s_mov_b64 exec, 1",
             f"buffer_store_dwordx2 v[250:251], v252, s[48:51], s101 offen {WT}", "s_mov_b64 exec, -1"])
        A.label(lab)
    mark = ("MARK", vq.total)
    for t in range(0, 8, 2):
        fss(t, A.e, czero=(t == 0), afterbar=pflag if t == pft2 else None, needbar=[mark] if t == pft2 else (), extra=oflag if t == 4 else ())
    FW = vq.need(("F", 0))
    vq.rebase(8); dq.rebase(8)
    assert covers(vq.q, q_steady[0]) and covers(dq.q, q_steady[1])
    stamp(5, 2)
    A.e(["s_mov_b32 s91, 1", f"s_mov_b32 s90, {(64-SS-8-tail)//8}", "s_cmp_lg_u32 s72, 0", f"s_cbranch_scc1 {L('floop')}"])
    A.e(FW); check_flags("P", 30, 252, "s101")
    YP = lambda jj, i: 224 + (jj * 4 + i) * 4
    YA = lambda i: (96 if xe else 80) + i * 4
    A.e("s_add_u32 s6, s92, 4096")
    for i in range(4):
        A.e([f"buffer_load_dwordx4 {v(YP(0,i),4)}, v4, s[52:55], s92 offen offset:{i*1024} {WT}",
             f"buffer_load_dwordx4 {a(YA(i),4)}, v4, s[52:55], s6 offen offset:{i*1024} {WT}"])
    A.e([f"s_mov_b32 s90, {(SS-8-tail)//8}", f"s_branch {L('floop')}"])
    A.label(L("flast"))
    stamp(6, 2)
    A.e(["s_mov_b32 s6, 0xbfb8aa3b", "s_mov_b32 s7, 0xbfb8aa3b", "s_cmp_lg_u32 s72, 0", f"s_cbranch_scc1 {L('flast2')}"])
    for cb in range(8):
        y = YS(cb, 0); pc = YP(0, cb // 2) + 2 * (cb % 2); T0 = 240 if cb % 2 == 0 else 242
        T0 = 240
        A.e([f"v_lshlrev_b32 v{T0}, 16, v{pc}", f"v_and_b32 v{T0+1}, 0xffff0000, v{pc}",
             f"v_lshlrev_b32 v{T0+2}, 16, v{pc+1}", f"v_and_b32 v{T0+3}, 0xffff0000, v{pc+1}"])
        A.e([f"v_pk_add_f32 v[{y+r_}:{y+r_+1}], v[{y+r_}:{y+r_+1}], v[{T0+r_}:{T0+r_+1}]" for r_ in (0, 2)])
        A.e([f"v_pk_mul_f32 v[{T0+r_}:{T0+r_+1}], v[{y+r_}:{y+r_+1}], s[6:7]" for r_ in (0, 2)])
        A.e([f"v_exp_f32 v{T0+r_}, v{T0+r_}" for r_ in range(4)])
        A.e([f"v_pk_add_f32 v[{T0+r_}:{T0+r_+1}], v[{T0+r_}:{T0+r_+1}], 1.0 op_sel_hi:[1,0]" for r_ in (0, 2)])
        A.e([f"v_rcp_f32 v{T0+r_}, v{T0+r_}" for r_ in range(4)])
        A.e([f"v_pk_mul_f32 v[{y+r_}:{y+r_+1}], v[{y+r_}:{y+r_+1}], v[{T0+r_}:{T0+r_+1}]" for r_ in (0, 2)])
    A.label(L("flast2"))
    vq.q, dq.q = list(q_steady[0]), list(q_steady[1])
    va = []
    for cb in range(8):
        y = YS(cb, 1); pc = YA(cb // 2) + 2 * (cb % 2); T0 = 224 + 4 * (cb % 2)
        va += [(f"v_accvgpr_read_b32 v{T0+1}, a{pc}", 4), (f"v_accvgpr_read_b32 v{T0+3}, a{pc+1}", 4),
               (f"v_lshlrev_b32 v{T0}, 16, v{T0+1}", 4), (f"v_and_b32 v{T0+1}, 0xffff0000, v{T0+1}", 4),
               (f"v_lshlrev_b32 v{T0+2}, 16, v{T0+3}", 4), (f"v_and_b32 v{T0+3}, 0xffff0000, v{T0+3}", 4)]
        va += [(f"v_add_f32 v{y+r_}, v{y+r_}, v{T0+r_}", 4) for r_ in range(4)]
        va += [(f"v_mul_f32 v{T0+r_}, s7, v{y+r_}", 4) for r_ in range(4)]
        va += [(f"v_exp_f32 v{T0+r_}, v{T0+r_}", 8) for r_ in range(4)]
        va += [(f"v_add_f32 v{T0+r_}, 1.0, v{T0+r_}", 4) for r_ in range(4)]
        va += [(f"v_rcp_f32 v{T0+r_}, v{T0+r_}", 8) for r_ in range(4)]
        va += [(f"v_mul_f32 v{y+r_}, v{y+r_}, v{T0+r_}", 4) for r_ in range(4)]
    xw = lambda cb, jj: f"ds_write_b128 v2, {facc(cb,jj)} offset:{(cb*2+jj-2)*1024}"
    def ehook(m):
        return [xw(m // 8 - 2, 2 + (m % 8 - 4) // 2)] if (m >= 16 and m % 8 in (4, 6)) else None
    fin = [(["v_mov_b32 v29, 0"], f"buffer_load_dwordx2 v[30:31], v29, s[48:51], s93 offen {WT}", ("G", 0), [])]
    for t in range(0, 8, 2):
        fss(t, A.e, last=True, extra=fin if t == 4 else (), va=va, hook=ehook if (ew and t == 6) else None)
    A.c(f"left over fillers: {len(va)}")
    for x, c in va: A.e(x)
    stamp(7)
    A.e(["v_mov_b32 v22, s98", "v_mov_b32 v23, s99", f"s_add_u32 s6, s92, {G_SF}", f"s_add_u32 s7, s92, {G_SF+4096}",
         "s_cmp_lg_u32 s72, 0", f"s_cbranch_scc1 {L('xch')}"])
    s2loads = [f"buffer_load_dwordx4 {v(YP(jj,i),4)}, v4, s[52:55], s{6+jj} offen offset:{i*1024} {WT}" for jj in range(2) for i in range(4)]
    if sen: A.e(["s_mov_b32 s15, -1"] + s2loads)
    else:
        A.e(vq.need(("G", 0)))
        A.e(["v_cmp_ne_u64 vcc, s[98:99], v[30:31]", f"s_cbranch_vccnz {L('xch')}", "s_mov_b32 s91, 2"] + s2loads)
    A.label(L("xch"))
    A.e("s_nop 2")
    for cb in range(6 if ew else 0, 8):
        for jj in (2, 3):
            A.e(xw(cb, jj))
    A.e(["s_waitcnt lgkmcnt(0)", "s_barrier"])
    for jj in (2, 3):
        for cb in range(8):
            A.e(f"ds_read_b128 {facc(cb,jj)}, v3 offset:{(cb*2+jj-2)*1024}")
    A.e(["s_cmp_eq_u32 s72, 0", f"s_cbranch_scc1 {L('sepi')}"])
    for jj in range(2):
        for i in range(4):
            dst = 160 + (jj * 4 + i) * 4
            for h in range(2):
                cb = 2 * i + h
                A.e(f"s_waitcnt lgkmcnt({15 - (jj*8+cb)})")
                b = 32 + (cb * 4 + jj) * 4
                A.e([f"v_pk_add_f32 v[{b+r_}:{b+r_+1}], v[{b+r_}:{b+r_+1}], v[{b+8+r_}:{b+9+r_}]" for r_ in (0, 2)])
                A.e([f"v_cvt_pk_bf16_f32 v{dst+2*h}, v{b}, v{b+1}", f"v_cvt_pk_bf16_f32 v{dst+2*h+1}, v{b+2}, v{b+3}"])
            if sen: A.e([f"v_min_u32 v{dst+k}, -2, v{dst+k}" for k in range(4)])
            A.e(f"buffer_store_dwordx4 {v(dst,4)}, v4, s[52:55], s{6+jj} offen offset:{i*1024} {WT}")
    if sen: A.e(f"s_branch {L('fin')}")
    else:
        A.e(["s_waitcnt vmcnt(0)", "s_mov_b64 exec, 1",
             f"buffer_store_dwordx2 v[22:23], v29, s[48:51], s93 offen {WT}", "s_mov_b64 exec, -1", f"s_branch {L('fin')}"])
    A.label(L("sepi"))
    XR = lambda cb, jj: (224 if xe else 96) + (cb * 2 + jj) * 2
    if not xe:
        A.e(["v_and_b32 v1, 15, v0", "v_lshrrev_b32 v5, 5, v0", "v_xor_b32 v5, v5, v1", "v_bfe_u32 v6, v0, 4, 1", "v_lshlrev_b32 v6, 3, v6",
             "v_lshl_add_u32 v6, v1, 8, v6", "s_lshl_b32 s15, s3, 13", "s_add_u32 s15, s15, 0x10000", "v_add_u32 v6, s15, v6"])
        for cb in range(8):
            A.e([f"v_xor_b32 v7, {2*cb}, v5", "v_lshl_add_u32 v7, v7, 4, v6",
                 f"ds_read_b64 {a(XR(cb,0),2)}, v7", f"ds_read_b64 {a(XR(cb,1),2)}, v7 offset:4096"])
    if fast:
        A.e(["s_cmp_lg_u32 s91, 2", f"s_cbranch_scc1 {L('slowp')}", "s_waitcnt lgkmcnt(0)"])
        for jj in range(2):
            for i in range(4):
                o = YP(jj, i)
                for h in range(2):
                    cb = 2 * i + h
                    b = 32 + (cb * 4 + jj) * 4; y = YS(cb, jj); xa = XR(cb, jj); T0 = 8 + 8 * h
                    A.e([f"v_accvgpr_read_b32 v{T0+1}, a{xa}", f"v_accvgpr_read_b32 v{T0+3}, a{xa+1}"])
                    A.e([f"v_pk_add_f32 v[{b+r_}:{b+r_+1}], v[{b+r_}:{b+r_+1}], v[{b+8+r_}:{b+9+r_}]" for r_ in (0, 2)])
                    A.e([f"v_lshlrev_b32 v{T0}, 16, v{T0+1}", f"v_and_b32 v{T0+1}, 0xffff0000, v{T0+1}",
                         f"v_lshlrev_b32 v{T0+2}, 16, v{T0+3}", f"v_and_b32 v{T0+3}, 0xffff0000, v{T0+3}"])
                    if h == 0: A.e("s_waitcnt vmcnt(7)")
                    A.e([f"v_lshlrev_b32 v{T0+4}, 16, v{o+2*h}", f"v_and_b32 v{T0+5}, 0xffff0000, v{o+2*h}",
                         f"v_lshlrev_b32 v{T0+6}, 16, v{o+2*h+1}", f"v_and_b32 v{T0+7}, 0xffff0000, v{o+2*h+1}"])
                    A.e([f"v_pk_fma_f32 v[{b+r_}:{b+r_+1}], v[{b+r_}:{b+r_+1}], v[{y+r_}:{y+r_+1}], v[{T0+r_}:{T0+r_+1}]" for r_ in (0, 2)])
                    A.e([f"v_pk_fma_f32 v[{b+r_}:{b+r_+1}], v[{T0+4+r_}:{T0+5+r_}], v[{y+r_}:{y+r_+1}], v[{b+r_}:{b+r_+1}]" for r_ in (0, 2)])
                    A.e([f"v_cvt_pk_bf16_f32 v{o+2*h}, v{b}, v{b+1}", f"v_cvt_pk_bf16_f32 v{o+2*h+1}, v{b+2}, v{b+3}"])
                A.e(["s_nop 1", f"v_permlane32_swap_b32 v{o}, v{o+2}", f"v_permlane32_swap_b32 v{o+1}, v{o+3}", "s_nop 0",
                     f"v_permlane16_swap_b32 v{o}, v{o+2}", f"v_permlane16_swap_b32 v{o+1}, v{o+3}",
                     f"buffer_store_dwordx4 {v(o,4)}, v{27+jj}, s[68:71], s94 offen offset:{i*64}"])
        A.e(f"s_branch {L('fin')}")
        A.label(L("slowp"))
    for n in range(16):
        jj, cb = n // 8, n % 8
        b = 32 + (cb * 4 + jj) * 4; y = YS(cb, jj); xa = XR(cb, jj); T0 = 8 + 4 * (n % 2)
        if n == 0: A.e("s_waitcnt lgkmcnt(0)")
        A.e([f"v_accvgpr_read_b32 v{T0+1}, a{xa}", f"v_accvgpr_read_b32 v{T0+3}, a{xa+1}"])
        A.e([f"v_pk_add_f32 v[{b+r_}:{b+r_+1}], v[{b+r_}:{b+r_+1}], v[{b+8+r_}:{b+9+r_}]" for r_ in (0, 2)])
        A.e([f"v_lshlrev_b32 v{T0}, 16, v{T0+1}", f"v_and_b32 v{T0+1}, 0xffff0000, v{T0+1}",
             f"v_lshlrev_b32 v{T0+2}, 16, v{T0+3}", f"v_and_b32 v{T0+3}, 0xffff0000, v{T0+3}"])
        A.e([f"v_pk_fma_f32 v[{b+r_}:{b+r_+1}], v[{b+r_}:{b+r_+1}], v[{y+r_}:{y+r_+1}], v[{T0+r_}:{T0+r_+1}]" for r_ in (0, 2)])
    if sen:
        A.e(SPINB)
        A.label(L("poll"))
        A.e(["s_waitcnt vmcnt(0)", "v_max3_u32 v8, v224, v225, v226", "v_max3_u32 v9, v227, v228, v229"])
        for k in range(230, 254, 4): A.e([f"v_max3_u32 v8, v8, v{k}, v{k+1}", f"v_max3_u32 v9, v9, v{k+2}, v{k+3}"])
        A.e(["v_max3_u32 v8, v8, v254, v255", "v_max_u32 v8, v8, v9", "v_cmp_eq_u32 vcc, s15, v8", f"s_cbranch_vccz {L('have')}",
             "s_sub_u32 s12, s12, 1", f"s_cbranch_scc1 {L('have')}"] + s2loads + [f"s_branch {L('poll')}"])
    else:
        A.e(["s_cmp_eq_u32 s91, 2", f"s_cbranch_scc1 {L('have')}", SPINB])
        A.label(L("poll"))
        A.e([f"buffer_load_dwordx2 v[30:31], v29, s[48:51], s93 offen {WT}", "s_waitcnt vmcnt(0)",
             "s_sub_u32 s12, s12, 1", f"s_cbranch_scc1 {L('got')}",
             "v_cmp_ne_u64 vcc, s[98:99], v[30:31]", f"s_cbranch_vccz {L('got')}", "s_sleep 1", f"s_branch {L('poll')}"])
        A.label(L("got"))
        A.e(s2loads)
    A.label(L("have"))
    for jj in range(2):
        for i in range(4):
            o = YP(jj, i)
            if not sen: A.e("s_waitcnt vmcnt(7)")
            for h in range(2):
                cb = 2 * i + h
                b = 32 + (cb * 4 + jj) * 4; y = YS(cb, jj); T0 = 8 + 4 * h
                A.e([f"v_lshlrev_b32 v{T0}, 16, v{o+2*h}", f"v_and_b32 v{T0+1}, 0xffff0000, v{o+2*h}",
                     f"v_lshlrev_b32 v{T0+2}, 16, v{o+2*h+1}", f"v_and_b32 v{T0+3}, 0xffff0000, v{o+2*h+1}"])
                A.e([f"v_pk_fma_f32 v[{b+r_}:{b+r_+1}], v[{T0+r_}:{T0+r_+1}], v[{y+r_}:{y+r_+1}], v[{b+r_}:{b+r_+1}]" for r_ in (0, 2)])
                A.e([f"v_cvt_pk_bf16_f32 v{o+2*h}, v{b}, v{b+1}", f"v_cvt_pk_bf16_f32 v{o+2*h+1}, v{b+2}, v{b+3}"])
            A.e(["s_nop 1", f"v_permlane32_swap_b32 v{o}, v{o+2}", f"v_permlane32_swap_b32 v{o+1}, v{o+3}", "s_nop 0",
                 f"v_permlane16_swap_b32 v{o}, v{o+2}", f"v_permlane16_swap_b32 v{o+1}, v{o+3}",
                 f"buffer_store_dwordx4 {v(o,4)}, v{27+jj}, s[68:71], s94 offen offset:{i*64}"])
    A.label(L("fin"))
    if stamps:
        srd(A, 40, P_WS, 0x100000, WS_STAMP)
        A.e(["s_waitcnt vmcnt(0)", "s_memtime s[76:77]", "s_memrealtime s[78:79]", "s_waitcnt lgkmcnt(0)",
             "v_mov_b32 v8, s76", "v_mov_b32 v9, s78", "v_mov_b32 v10, s72", "s_getreg_b32 s10, hwreg(HW_REG_XCC_ID)", "v_mov_b32 v11, s10",
             "s_lshl_b32 s10, s2, 2", "s_add_u32 s10, s10, s3", "s_lshl_b32 s10, s10, 7", "v_mov_b32 v1, s10", "s_mov_b64 exec, 1"])
        A.e("buffer_store_dwordx4 v[8:11], v1, s[40:43], 0 offen offset:64")
    if dbgst:
        srd(A, 40, P_DBG, 256)
        A.e(["s_and_b32 s10, s2, 0xfb", "s_or_b32 s10, s10, s3", "s_cmp_lg_u32 s10, 0", f"s_cbranch_scc1 {L('end')}", "s_mov_b64 exec, 1",
             "v_accvgpr_read_b32 v12, a241", "s_lshl_b32 s10, s2, 3", "v_mov_b32 v1, s10"])
        for k in range(1, 8): A.e([f"v_accvgpr_read_b32 v13, a{241+2*k}", f"v_sub_u32 v{15+k}, v13, v12"])
        A.e(["v_sub_u32 v23, v9, v12", "buffer_store_dwordx4 v[16:19], v1, s[40:43], 0 offen", "buffer_store_dwordx4 v[20:23], v1, s[40:43], 0 offen offset:16"])
    A.label(L("end"))
    A.e("s_endpgm")
    for tag, reg, addr, off in spins:
        A.label(L("spin" + tag))
        A.e(SPINB)
        A.label(L("spinl" + tag))
        A.e(["s_sleep 2", f"buffer_load_dwordx2 v[{reg}:{reg+1}], v{addr}, s[48:51], {off} offen {WT}", "s_waitcnt vmcnt(0)",
             "s_sub_u32 s12, s12, 1", f"s_cbranch_scc1 {L('ok' + tag)}",
             f"v_cmp_ne_u64 vcc, s[98:99], v[{reg}:{reg+1}]", f"s_cbranch_vccnz {L('spinl' + tag)}", f"s_branch {L('ok' + tag)}"])
    for T in rare_sites:
        A.label(L("rs%d" % T))
        A.e([f"s_call_b64 s[6:7], {L('rare%d' % (T & 1))}", f"s_branch {L('rb%d' % T)}"])
    for b in range(2):
        A.label(L("rare%d" % b))
        A.e(["s_nop 15", "s_nop 15"])
        for mu in range(2):
            S = SB(b, mu); S2 = SB(b ^ 1, mu)
            A.e(rowmax(S, VT, VT + 2))
            A.e([f"v_max_f32 v{VT}, 0, v{VT}", f"v_exp_f32 v{VT+1}, -v{VT}"])
            A.e([f"v_sub_f32 v{NM(mu)+k}, v{NM(mu)+k}, v{VT}" for k in range(16)])
            A.e([f"v_sub_f32 v{S+k}, v{S+k}, v{VT}" for k in range(16)])
            A.e([f"v_sub_f32 v{S2+k}, v{S2+k}, v{VT}" for k in range(16)])
            A.e(f"v_mul_f32 v{VL+mu}, v{VL+mu}, v{VT+1}")
            for i in range(4):
                o = (i * 2 + mu) * 16
                for k in range(16):
                    A.e([f"v_accvgpr_read_b32 v{VT+2}, a{o+k}", f"v_mul_f32 v{VT+2}, v{VT+2}, v{VT+1}", f"v_accvgpr_write_b32 a{o+k}, v{VT+2}"])
            for k in range(0, 16, 2):
                A.e([f"v_exp_f32 v{EB}, v{S+k}", f"v_exp_f32 v{EB+1}, v{S+k+1}", "s_nop 0",
                     f"v_cvt_pk_bf16_f32 v{PB(b,mu)+k//2}, v{EB}, v{EB+1}", f"v_add_f32 v{EB}, v{EB}, v{EB+1}",
                     f"v_mov_b32 v{VTS+mu}, v{EB}" if k == 0 else f"v_add_f32 v{VTS+mu}, v{VTS+mu}, v{EB}"])
        A.e(["s_nop 3", "s_setpc_b64 s[6:7]"])
    A.label(f"{name}_codeend")
    return (name, 512, 256, "(256,1,1)", "(256,1,1)", 163840)
```

```python
from common import *
import struct, math
QSCALE = struct.unpack("<I", struct.pack("<f", math.log2(math.e) / math.sqrt(128.0)))[0]
THR = 0x49800000
FL_L, FL_H, FL_O, FL_P, FL_SZ = 0x4000, 0x6000, 0x8000, 0xA000, 0xE000
G_BASE, G_SF, G_PF, G_SZ = 0x2200000, 0x600000, 0xA00000, 0x1200000
SS_UNUSED = 28
N1S, N1Y = 4, 3
WT = "sc0 sc1"
SPINN = 0x10000
SPINB = f"s_mov_b32 s12, {SPINN:#x}"

def kf(A, name="kf_kernel", stamps=0, thr=THR, vpos=(6, 10, 14, 18, 22, 26, 29, 30), barpos=3, apol=WT, pfT=0, pfG=0, cpf=3, ln=1, dbgst=0, pst=0, psleep=1, hwb=0, cap=24, dsl=6, vcap=8, ost=None, oflt=3, rotm=(1, 2), xpol=None, gdbg=0, pfs=7, pfA=2, rot0=1, vat=None, pft=3, tail=8, kmap=1, SS=None, hfT=2, barm=47, gsl=10, sp1=(2, 44), sp2=(54, 88), vmod=2, lead=0, nf=8, oft=14, oin=8, hdf=2, tlb=0, t16=1, mid1=1, fast=0, lset=1, xe=1, ew=1, sen=0, oflt2=4, pft2=2, alt=0, pka=0, ylast=0, et=0, cpos=0, hin=1):
    L = lambda s: f"{name}_{s}"
    if SS is None: SS = 32 if tail == 8 else 28
    if vat is None: vat = tail - 7
    pf0 = 4 if lset else 3
    if lset: hfT = max(hfT, 4)
    if ost is None: ost = (8, 8)[:2 - oin // 8]
    vq = Q("vmcnt", 63); dq = Q("lgkmcnt", 15, gsl)
    def stamp(i, pro=0):
        if not stamps: return
        if pst == 1:
            if pro == 0 and i == 1: i = 7
            elif not (pro == 1 or i == 0): return
        elif pst == 2:
            if pro == 0 and i == 5: i = 1
            elif pro == 0 and i == 6: i = 2
            elif not (pro == 2 or (pro == 0 and i in (0, 7))): return
        elif pst == 3:
            if pro or i != 1: return
            i = 0
        elif pro: return
        first = (i == 0 and pst != 3)
        A.e(["s_memtime s[76:77]", "s_memrealtime s[78:79]"] + (["s_load_dwordx2 s[38:39], s[0:1], 88", "v_lshrrev_b32 v1, 6, v0", "s_nop 0", "v_readfirstlane_b32 s3, v1"] if first else []) +
            ["s_waitcnt lgkmcnt(0)", "v_mov_b32 v30, s76", "v_mov_b32 v31, s78",
             "s_lshl_b32 s76, s2, 2", "s_add_u32 s76, s76, s3", "s_lshl_b32 s76, s76, 7", f"s_add_u32 s76, s76, {WS_STAMP:#x}", "v_mov_b32 v1, s76",
             "s_mov_b64 exec, 1", f"global_store_dwordx2 v1, v[30:31], s[38:39] offset:{8*i}", "s_mov_b64 exec, -1"]); dq.drain()
    A.raw(kernel_head(name))
    A.e(["s_cmp_ge_u32 s2, 256", f"s_cbranch_scc1 {L('end')}"])
    cpn = [0]
    def code_touch(vr, dst, raw=False):
        lab = L("pc%d" % cpn[0]); cpn[0] += 1
        pre = ["s_getpc_b64 s[76:77]", lab + ":", f"s_sub_u32 s76, s76, {lab}-{name}", "s_subb_u32 s77, s77, 0",
               "s_lshr_b32 s78, s2, 3", "s_lshl_b32 s78, s78, 11"] + ([f"v_and_b32 v{vr}, 0xc0, v0", f"v_lshlrev_b32 v{vr+1}, 3, v{vr}"] if raw else ["s_lshl_b32 s79, s3, 9", "s_add_u32 s78, s78, s79"]) + [
               f"v_and_b32 v{vr}, 7, v0", f"v_mul_u32_u24 v{vr}, 0x4080, v{vr}", f"v_and_b32 v{vr}, 0x10180, v{vr}"] + ([f"v_add_u32 v{vr}, v{vr+1}, v{vr}"] if raw else []) + [
               f"v_add_u32 v{vr}, s78, v{vr}", f"v_min_u32 v{vr}, {name}_codeend-{name}-4, v{vr}"]
        return (pre, f"global_load_dword {dst}, v{vr}, s[76:77]", ("C", 0), [])
    if et:
        A.e(["s_getpc_b64 s[76:77]", f"v_lshlrev_b32 v30, {et}, v0", "global_load_dword a237, v30, s[76:77]"])
    stamp(0)
    A.e(LOADARGS)
    if cpf:
        op0 = code_touch(30, "a238", raw=True); A.e(op0[0])
        if cpos == 0: A.e(op0[1])
    A.e(["v_lshrrev_b32 v1, 6, v0", "v_and_b32 v0, 63, v0", "s_nop 0", "v_readfirstlane_b32 s3, v1",
         "s_and_b32 s10, s2, 7", "s_lshr_b32 s11, s2, 3", "s_and_b32 s4, s11, 7", "s_lshr_b32 s11, s11, 3",
         "s_lshl_b32 s5, s10, 2", "s_add_u32 s5, s5, s11",
         f"s_mul_i32 s14, s11, {rotm[1]}", f"s_mul_i32 s12, s4, {rotm[0]}", "s_add_u32 s14, s14, s12"])
    if ln:
        A.e(["v_and_b32 v40, 7, v0", "v_lshrrev_b32 v41, 3, v0", "s_lshl_b32 s12, s3, 5", "v_add_u32 v41, s12, v41",
             "v_lshlrev_b32 v42, 11, v40", "v_lshl_add_u32 v42, v41, 4, v42",
             "s_lshl_b32 s12, s4, 5", "s_add_u32 s91, s12, s5", "s_lshl_b32 s12, s91, 14",
             "s_waitcnt lgkmcnt(0)"])
        srd(A, 64, P_X, 2048 * 2048)
        for i in range(4):
            A.e(f"buffer_load_dwordx4 v[{48+4*i}:{51+4*i}], v42, s[64:67], s12 offen offset:{128*i}"); vq.issue(("L", 0))
        if cpf and cpos == 1: A.e(op0[1])
        if tlb & 1:
            srd(A, 68, P_WS, 0x3000000)
            A.e(["v_lshlrev_b32 v39, 21, v0", "buffer_load_dword a237, v39, s[68:71], 0 offen"])
        srd(A, 60, P_DBG, 256)
        A.e(["v_mov_b32 v47, 0", "s_or_b32 s12, s2, s3", "s_cmp_lg_u32 s12, 0", f"s_cbranch_scc1 {L('nn')}",
             "s_memrealtime s[12:13]", "s_waitcnt lgkmcnt(0)", "s_or_b32 s12, s12, 1", "s_or_b32 s13, s13, 0x80000000", "v_mov_b32 v38, s12", "v_mov_b32 v39, s13", "s_mov_b64 exec, 1",
             f"buffer_store_dwordx2 v[38:39], v47, s[60:63], 0 offen {WT}", "s_mov_b64 exec, -1"])
        A.label(L("nn"))
    A.e([
         "v_lshrrev_b32 v30, 4, v0", "v_and_b32 v31, 15, v0",
         "s_lshr_b32 s12, s3, 1", "s_lshl_b32 s12, s12, 1",
         "v_lshlrev_b32 v1, 2, v30", "v_or_b32 v1, s12, v1", "v_xor_b32 v31, v31, v1",
         "s_lshl_b32 s12, s3, 2", "v_add_u32 v30, s12, v30",
         "v_lshlrev_b32 v2, 13, v30", "s_lshl_b32 s12, s5, 8", "v_lshl_add_u32 v2, v31, 4, v2", "v_add_u32 v2, s12, v2",
         "v_lshrrev_b32 v1, 1, v31", "v_min_u32 v1, 6, v1", "s_and_b32 s13, s5, 1", "v_add_u32 v1, s13, v1",
         "v_cmp_eq_u32 vcc, 7, v1", "v_and_b32 v31, 1, v31", "s_nop 0", "v_cndmask_b32 v1, v1, 0, vcc",
         "v_lshl_or_b32 v1, v1, 1, v31",
         "v_mul_u32_u24 v3, 7168, v30", "s_mul_i32 s12, s5, 224", "v_add_u32 v3, s12, v3", "v_lshl_add_u32 v3, v1, 4, v3",
         "s_lshl_b32 s12, s4, 4", "s_lshl_b32 s13, s3, 2", "s_add_u32 s15, s12, s13",
         "s_lshl_b32 s12, s15, 15", "v_lshlrev_b32 v4, 4, v0", "v_add_u32 v5, s12, v4",
         "v_add_u32 v6, 0x8000, v5", "v_add_u32 v7, 0x10000, v5", "v_add_u32 v8, 0x18000, v5",
         "s_mul_i32 s95, s3, 3072", "s_add_u32 s95, s95, 16384", "s_mov_b32 s10, s95", "s_mov_b32 s72, 98304", "s_mov_b32 s11, 0", "s_mov_b32 s75, 0",
         "s_waitcnt lgkmcnt(0)"])
    srd(A, 44, P_WQ, 1024 * 4096 * 2)
    srd(A, 48, P_WG, 1024 * 3584 * 2 + 1024, -1024)
    srd(A, 52, P_WU, 1024 * 3584 * 2 + 2048, -2048)
    srd(A, 40, P_WS, SZ_XF, WS_XF)

    def acc(blk, j):
        if blk < 14: return v(32 + (blk * 4 + j) * 4, 4)
        return a(((blk - 14) * 4 + j) * 4, 4)
    Afr = lambda S, b, c, h=None: a(192 + ((22 * S + b) % 4) * 8 + c * 4, 4) if h is None else a(192 + ((22 * S + b) % 4) * 8 + c * 4 + 2 * h, 2)
    Bfr = lambda slot, j: a(128 + slot * 16 + j * 4, 4)
    if lead:
        NEXTK = ["s_sub_u32 s12, s11, s14", "s_and_b32 s12, s12, 7", f"s_cmp_lt_u32 s11, {32-lead}", "s_cselect_b32 s12, s12, 1",
                 f"s_add_u32 s13, s11, {lead}", "s_cmp_eq_u32 s12, 0", "s_cselect_b32 s12, s13, s75", "s_subb_u32 s75, s75, -1",
                 f"s_sub_u32 s13, s75, {lead}", "s_cselect_b32 s6, 1, 0", "s_sub_u32 s13, s13, s14", "s_and_b32 s13, s13, 7", "s_or_b32 s13, s13, s6",
                 "s_cmp_eq_u32 s13, 0", "s_addc_u32 s75, s75, 0",
                 "s_add_u32 s11, s11, 1", "s_lshl_b32 s6, s12, 18", "s_mul_i32 s7, s12, 229376", "s_lshl_b32 s8, s12, 10"]
    else:
        NEXTK = ([] if rot0 == 7 else ["s_cmp_lt_u32 s11, 8", f"s_cselect_b32 s13, {rot0}, 7", "s_and_b32 s13, s13, s14"]) + ["s_add_u32 s12, s11, s14" if rot0 == 7 else "s_add_u32 s12, s11, s13", "s_and_b32 s12, s12, 7", "s_and_b32 s13, s11, 0x18", "s_or_b32 s12, s12, s13",
                 "s_add_u32 s11, s11, 1", "s_lshl_b32 s6, s12, 18", "s_mul_i32 s7, s12, 229376", "s_lshl_b32 s8, s12, 10"]
    def d_ops(p, h, static=False):
        base = (p % 2) * 24576 + h * 12288 + ((p // 2) * 49152 if static else 0)
        return [((NEXTK + [f"s_mov_b32 s{88 + p % 2}, s8"] if h == 0 else []) + [f"s_add_u32 m0, s10, {base}"], "buffer_load_dwordx4 v2, s[44:47], s6 offen lds", ("D", p, h), ["s_add_u32 s6, s6, 131072"] if h == 0 else []),
                ([], "buffer_load_dwordx4 v3, s[48:51], s7 offen offset:1024 lds", ("D", p, h), []),
                ([], "buffer_load_dwordx4 v3, s[52:55], s7 offen offset:2048 lds", ("D", p, h), ["s_add_u32 s7, s7, 114688"] if h == 0 else [])]
    def x_ops(p):
        return [([], f"buffer_load_dwordx4 {Bfr(p % 4, j)}, v{5+j}, s[40:43], s{88 + p % 2} offen {apol if xpol is None else xpol}", ("X", p), []) for j in range(4)]
    def rd_ops(S, blk):
        part, cb = (1 + (blk & 1), blk >> 1) if blk < 14 else (0, blk - 14)
        reg = (9 if S % 2 == 0 else 17) + cb
        return [(f"ds_read_b64_tr_b16 {Afr(S,blk,c,h)}, v{reg} offset:{c*24576 + part*1024 + h*3072}", ("A", S, blk)) for c in range(2) for h in range(2)]
    def emit_vm(op, E, nop=False):
        pre, ins, tag, post = op
        E(pre)
        if pre and nop: E("s_nop 0")
        E(ins); vq.issue(tag); E(post)
    def kv_ops(kind, P):
        reg = 0 if kind == "K" else 65536
        sr = "s[64:67]" if kind == "K" else "s[68:71]"
        ops = []
        for i in range(4):
            ops.append(([f"s_add_u32 m0, s92, {reg + (P % 4) * 16384}", f"s_add_u32 s94, s93, {P * 16384}"] if i == 0 else [],
                        f"buffer_load_dwordx4 v{25+i if kind == 'K' else 29}, {sr}, s94 offen offset:{i*1024} lds", (kind, P), []))
        return ops
    def pf_op(k):
        return [([], f"buffer_load_dword a239, v31, {'s[72:75], s96' if k == 0 else 's[80:83], s97'} offen", ("P", 0), [f"s_add_u32 s{96+k}, s{96+k}, 1024"])]
    for op in d_ops(0, 0, True) + d_ops(0, 1, True): emit_vm(op, A.e, True)
    srd(A, 84, P_WS, FL_SZ, WS_FLAG)
    A.e(["s_lshr_b32 s12, s91, 1", "s_lshl_b32 s12, s12, 15", "s_and_b32 s13, s91, 1", "s_lshl_b32 s13, s13, 7", "s_add_u32 s90, s12, s13",
         "v_lshlrev_b32 v43, 8, v41", "v_lshl_add_u32 v43, v40, 4, v43",
         "v_lshlrev_b32 v44, 5, v40", "s_lshl_b32 s12, s3, 3", "v_add_u32 v45, s12, v44",
         "s_lshl_b32 s91, s91, 5", f"s_add_u32 s91, s91, {FL_L}"])
    A.e([f"v_mov_b32 v{i}, 0" for i in range(132, 144)])
    A.e(f"buffer_load_dwordx2 v[128:129], v47, s[60:63], 0 offen {WT}"); vq.issue(("N", 0))
    A.e([mfma32(a(i, 16), v(132, 4), v(132, 4), "0") for i in range(0, 128, 16)] + [mfma32(v(i, 16), v(132, 4), v(132, 4), "0") for i in range(144, 256, 16)])
    stamp(1, 1)
    A.e("s_memrealtime s[92:93]")
    A.e(vq.need(("L", 0)))
    stamp(2, 1)
    X0 = 64
    for i in range(16):
        A.e([f"v_lshlrev_b32 v{X0+2*i}, 16, v{48+i}", f"v_and_b32 v{X0+1+2*i}, 0xffff0000, v{48+i}"])
    def lanesum(src):
        A.e(["s_nop 1", f"v_add_f32_dpp v{src}, v{src}, v{src} row_ror:8 row_mask:0xf bank_mask:0xf",
             f"v_mov_b32 v46, v{src}", "s_nop 1", f"v_permlane16_swap_b32 v46, v{src}", f"v_add_f32 v{src}, v46, v{src}",
             f"v_mov_b32 v46, v{src}", "s_nop 1", f"v_permlane32_swap_b32 v46, v{src}", f"v_add_f32 v{src}, v46, v{src}"])
    A.e([f"v_pk_add_f32 v[32:33], v[{X0}:{X0+1}], v[{X0+2}:{X0+3}]", f"v_pk_add_f32 v[34:35], v[{X0+4}:{X0+5}], v[{X0+6}:{X0+7}]"])
    A.e([f"v_pk_add_f32 v[{32+2*(i%2)}:{33+2*(i%2)}], v[{32+2*(i%2)}:{33+2*(i%2)}], v[{X0+2*i}:{X0+2*i+1}]" for i in range(4, 16)])
    A.e(["v_pk_add_f32 v[32:33], v[32:33], v[34:35]", "v_add_f32 v32, v32, v33"])
    lanesum(32)
    A.e(["v_mul_f32 v32, 0x3b800000, v32", "v_mov_b32 v34, v32", "v_mov_b32 v35, v32"])
    for i in range(16):
        A.e(f"v_pk_add_f32 v[{96+2*i}:{97+2*i}], v[{X0+2*i}:{X0+2*i+1}], v[34:35] neg_lo:[0,1] neg_hi:[0,1]")
    A.e(["v_pk_mul_f32 v[34:35], v[96:97], v[96:97]", "v_pk_mul_f32 v[36:37], v[98:99], v[98:99]"])
    for i in range(2, 16):
        r_ = 34 + 2 * (i % 2)
        A.e(f"v_pk_fma_f32 v[{r_}:{r_+1}], v[{96+2*i}:{97+2*i}], v[{96+2*i}:{97+2*i}], v[{r_}:{r_+1}]")
    A.e(["v_pk_add_f32 v[34:35], v[34:35], v[36:37]", "v_add_f32 v33, v34, v35"])
    lanesum(33)
    A.e(["ds_write_b64 v45, v[32:33]", "s_waitcnt lgkmcnt(0)", "s_barrier",
         "ds_read_b128 v[96:99], v44", "ds_read_b128 v[100:103], v44 offset:16", "s_waitcnt lgkmcnt(0)",
         "v_add_f32 v32, v96, v98", "v_add_f32 v33, v100, v102", "v_add_f32 v34, v97, v99", "v_add_f32 v35, v101, v103",
         "v_add_f32 v32, v32, v33", "v_add_f32 v34, v34, v35", "v_mul_f32 v32, 0.25, v32" if False else "v_mul_f32 v32, 0x3e800000, v32",
         "v_sub_f32 v96, v96, v32", "v_sub_f32 v98, v98, v32", "v_sub_f32 v100, v100, v32", "v_sub_f32 v102, v102, v32",
         "v_mul_f32 v35, v96, v96", "v_fmac_f32 v35, v98, v98", "v_fmac_f32 v35, v100, v100", "v_fmac_f32 v35, v102, v102",
         "v_mul_f32 v34, 0x3a800000, v34", "v_fmac_f32 v34, 0x3e800000, v35"])
    A.e(["v_cvt_pk_bf16_f32 v34, v34, v32", "v_and_b32 v32, 0xffff0000, v34", "v_lshlrev_b32 v34, 16, v34",
         "v_add_f32 v34, 0x3727c5ac, v34", "v_cvt_pk_bf16_f32 v34, v34, v34", "v_lshlrev_b32 v34, 16, v34",
         "v_sqrt_f32 v34, v34", "v_mov_b32 v33, v32", "v_cvt_pk_bf16_f32 v34, v34, v34", "v_lshlrev_b32 v34, 16, v34",
         "v_rcp_f32 v34, v34", "s_nop 0", "v_mov_b32 v35, v34"])
    for q4 in range(4):
        for i in range(4 * q4, 4 * q4 + 4):
            x = X0 + 2 * i
            A.e([f"v_pk_add_f32 v[{x}:{x+1}], v[{x}:{x+1}], v[32:33] neg_lo:[0,1] neg_hi:[0,1]",
                 f"v_cvt_pk_bf16_f32 v{48+i}, v{x}, v{x+1}",
                 f"v_lshlrev_b32 v{x}, 16, v{48+i}", f"v_and_b32 v{x+1}, 0xffff0000, v{48+i}",
                 f"v_pk_mul_f32 v[{x}:{x+1}], v[{x}:{x+1}], v[34:35]",
                 f"v_cvt_pk_bf16_f32 v{48+i}, v{x}, v{x+1}"])
        A.e(f"buffer_store_dwordx4 v[{48+4*q4}:{51+4*q4}], v43, s[40:43], s90 offen offset:{2048*(q4%2)} {WT}"); vq.issue(("S", 0))
        if q4 == 1: A.e("s_add_u32 s90, s90, 4096")
    stamp(3, 1)
    A.e(vq.need(("N", 0)) + [SPINB, "s_sub_u32 s92, s92, 3000"])
    A.label(L("pollN"))
    A.e(["v_readfirstlane_b32 s98, v128", "v_readfirstlane_b32 s99, v129", "s_cmp_eq_u32 s99, 0", f"s_cbranch_scc1 {L('retN')}",
         "s_cmp_eq_u32 s98, 0", f"s_cbranch_scc1 {L('retN')}",
         "s_sub_u32 s13, s98, s92", "s_cmp_ge_i32 s13, 0", f"s_cbranch_scc1 {L('gotN')}",
         f"s_cmp_lt_u32 s12, {SPINN - 64:#x}", f"s_cbranch_scc1 {L('gotN')}"])
    A.label(L("retN"))
    A.e(["s_sub_u32 s12, s12, 1", f"s_cbranch_scc1 {L('gotN')}",
         f"buffer_load_dwordx2 v[128:129], v47, s[60:63], 0 offen {WT}", "s_waitcnt vmcnt(0)", f"s_branch {L('pollN')}"])
    A.label(L("gotN"))
    A.e([mfma32(v(i, 16), v(132, 4), v(132, 4), "0") for i in range(64, 128, 16)])
    A.e(vq.drain()); A.e("s_barrier")
    stamp(4, 1)
    A.e(["s_cmp_lg_u32 s3, 0", f"s_cbranch_scc1 {L('nf')}", "s_mov_b64 exec, 1",
         f"buffer_store_dwordx2 v[128:129], v47, s[84:87], s91 offen {WT}", "s_mov_b64 exec, -1"])
    A.label(L("nf"))
    for op in d_ops(1, 0, True) + d_ops(1, 1, True): emit_vm(op, A.e, True)
    A.e("s_mov_b32 s90, s88")
    for op in d_ops(2, 0, True) + d_ops(2, 1, True): emit_vm(op, A.e, True)
    if tlb & 2:
        srd(A, 68, P_OUT, 2048 * 2048)
        A.e(["v_lshlrev_b32 v1, 21, v0"] + [f"buffer_load_dword a237, v1, s[{r}:{r+3}], 0 offen offset:2048" for r in (44, 48, 52, 68)])
    A.e([mfma32(v(i, 16), v(132, 4), v(132, 4), "0") for i in (32, 48)])
    A.e(["v_lshrrev_b32 v1, 4, v0", "v_mul_u32_u24 v30, 6144, v1", "v_and_b32 v1, 1, v1",
         "v_bfe_u32 v31, v0, 2, 2", "v_lshl_add_u32 v30, v31, 8, v30", "v_lshl_or_b32 v31, v31, 1, v1",
         "v_and_b32 v1, 3, v0", "v_lshl_add_u32 v30, v1, 3, v30", "v_add_u32 v30, 0x4000, v30"])
    for cb in range(8):
        A.e([f"v_xor_b32 v1, {cb}, v31", f"v_lshl_add_u32 v{9+cb}, v1, 5, v30", f"v_add_u32 v{17+cb}, 98304, v{9+cb}"])
    srd(A, 64, P_K, 4 * 2048 * 256)
    srd(A, 68, P_V, 4 * 2048 * 256)
    srd(A, 56, P_WS, SZ_HF, WS_HF)
    srd(A, 60, P_WS, (G_BASE + G_SF + 0x400000 - WS_OF) if sen else SZ_OF, WS_OF)
    A.e(["v_lshrrev_b32 v30, 4, v0", "v_and_b32 v31, 15, v0", "v_xor_b32 v1, v31, v30"])
    for i in range(4):
        A.e([f"v_xor_b32 v{25+i}, {4*i}, v1", f"v_lshlrev_b32 v{25+i}, 4, v{25+i}", f"v_lshl_add_u32 v{25+i}, v30, 8, v{25+i}"])
    A.e(["v_lshlrev_b32 v1, 2, v30", "v_xor_b32 v1, v31, v1", "v_lshlrev_b32 v1, 4, v1", "v_lshl_add_u32 v29, v30, 8, v1",
         "s_lshr_b32 s12, s5, 3", "s_lshl_b32 s12, s12, 19", "s_lshl_b32 s92, s3, 12",
         "s_add_u32 s93, s12, s92", f"s_add_u32 s93, s93, {1536*256}",
         "s_mov_b32 s9, 7"])
    if pfG in (1, 2):
        srd(A, 72, P_WO, 4096 * 2048); srd(A, 80, P_WD, 3584 * 2048)
        A.e(["s_lshl_b32 s12, s2, 2", "s_add_u32 s12, s12, s3", "s_lshl_b32 s96, s12, 13", "s_mul_i32 s97, s12, 7168",
             f"v_and_b32 v31, {7 if pfs == 7 else 3}, v0", f"v_lshlrev_b32 v31, {pfs}, v31"])
    stamp(5, 1)
    A.e(["s_cmp_lg_u32 s3, 0", f"s_cbranch_scc1 {L('gotL')}",
         "v_and_b32 v1, 31, v0", "v_lshlrev_b32 v1, 5, v1", "s_lshl_b32 s13, s4, 10", f"s_add_u32 s13, s13, {FL_L}", SPINB])
    A.label(L("pollL"))
    A.e([f"buffer_load_dwordx2 v[128:129], v1, s[84:87], s13 offen {WT}", "s_waitcnt vmcnt(0)",
         "s_sub_u32 s12, s12, 1", f"s_cbranch_scc1 {L('gotL')}",
         "v_cmp_ne_u64 vcc, s[98:99], v[128:129]", f"s_cbranch_vccz {L('gotL')}", f"s_sleep {psleep}", f"s_branch {L('pollL')}"])
    A.label(L("gotL"))
    A.e(vq.need(("D", 1, 1))); A.e("s_barrier")
    stamp(6, 1)
    for op in x_ops(0): A.e(op[1].replace("s88 offen", "s90 offen")); vq.issue(op[2])
    for op in x_ops(1): A.e(op[1]); vq.issue(op[2])
    for op in d_ops(3, 0, True) + d_ops(3, 1, True): emit_vm(op, A.e, True)
    for blk in range(4):
        for ins, tg in rd_ops(0, blk): A.e(ins); dq.issue(tg)
    A.e([f"v_mov_b32 v{i}, 0" for i in (128, 129, 130, 131)])
    A.e(vq.need(("X", 1)))
    stamp(1)

    BARM = 151
    SLOT = ["s_add_u32 s10, s72, s95", "s_add_u32 s73, s72, 98304", ["s_cmp_ge_u32 s73, 147456", "s_cselect_b32 s74, 147456, 0"], "s_sub_u32 s73, 98304, s74",
            "s_add_u32 s72, s72, 49152", ["s_cmp_ge_u32 s72, 147456", "s_cselect_b32 s72, 0, s72"]]
    def sstep(S, E, xs=True, ds=None, after=(), last=False, va=None, va0=0):
        xo = x_ops(2 * S + 2) + x_ops(2 * S + 3) if xs else []
        do = (d_ops(2 * S + 4, 0) + d_ops(2 * S + 4, 1) + d_ops(2 * S + 5, 0) + d_ops(2 * S + 5, 1)) if ds is None else list(ds)
        c1 = [m for m in range(2, 148) if m % 4 == 2]
        px = c1[:len(xo)]; rest = c1[len(xo) + 2:]
        pd = [rest[(i * len(rest)) // len(do)] for i in range(len(do))] if do else []
        c2 = [m for m in range(BARM + 2, 176, 2)]
        sched = list(zip(px, xo)) + list(zip(pd, do)) + list(zip(c2, after))
        tailops = list(after)[len(c2):]
        misc = [] if last else list(SLOT) + [f"v_add_u32 v{(17 if S % 2 == 0 else 9) + cb}, s73, v{(17 if S % 2 == 0 else 9) + cb}" for cb in range(8)]
        pend = []; post = []; vi = 0
        pres = [list(op[0]) for _, op in sched]
        for m in range(176):
            b, j, c = m // 8, (m % 8) // 2, m % 2
            if alt & 1: c ^= j & 1
            if alt & 2 and b % 2: j = 3 - j
            if m == 0: E(vq.need(("X", 2 * S + 1)))
            if m % 8 == 0: E(dq.need(("A", S, b)))
            E(mfma16(acc(b, j), Afr(S, b, c), Bfr((2 * S + c) % 4, j)))
            if m == BARM:
                E(vq.need(("D", 2 * S + 3, 1))); E(dq.drain()); E("s_barrier")
            if m % 8 == 7:
                if b + 4 < 22: pend += rd_ops(S, b + 4)
                elif not last: pend += rd_ops(S + 1, b + 4 - 22)
            if vi < len(sched) and m == sched[vi][0]:
                E(pres[vi]);
                if pres[vi]: E("s_nop 0")
                op = sched[vi][1]
                E(op[1]); vq.issue(op[2]); post += op[3]; vi += 1
            else:
                used = 0
                if pend:
                    ins, tag = pend.pop(0); E(ins); dq.issue(tag); used += 1
                while misc and used < 2:
                    x = misc.pop(0); E(x); used += 1 if isinstance(x, str) else 2
                while post and used < 2: E(post.pop(0)); used += 1
                if vi < len(sched) and not misc and not post and vi >= len(xo) and not (sched[vi][0] > BARM and m < BARM):
                    while pres[vi] and used < 2:
                        x = pres[vi].pop(0)
                        if x.startswith("s_cmp"): x = [x, pres[vi].pop(0)]; used += 1
                        E(x); used += 1
                cyc = 4 * used
                while va and m >= va0 and cyc + va[0][1] <= 8:
                    x, c_, tg = va.pop(0); E(x); cyc += c_
                    if tg: vq.issue(tg)
        for ins, tag in pend: E(ins); dq.issue(tag)
        E(post)
        for op in tailops: emit_vm(op, E, True)
    reb = lambda q: [((t[0], t[1] - (2 if t[0] == "A" else 4)) + tuple(t[2:])) for t in q]
    for S in range(2): sstep(S, lambda x: None)
    vq.q = reb(vq.q); dq.q = reb(dq.q)
    A.raw(".p2align 6")
    A.label(L("loop"))
    for S in range(2): sstep(S, A.e)
    A.e(["s_sub_u32 s9, s9, 1", "s_cmp_lg_u32 s9, 0", f"s_cbranch_scc1 {L('loop')}"])
    vq.q = reb(vq.q); dq.q = reb(dq.q)
    if cpf >= 2: emit_vm(code_touch(30, "a238"), A.e)
    sstep(0, A.e, ds=kv_ops("K", 0) + kv_ops("V", 0) + kv_ops("V", 1) + kv_ops("V", 2))
    HP = "" if hwb else WT
    hconst = ["s_mul_i32 s6, s15, 114688", "s_mul_i32 s12, s5, 7", "s_add_u32 s12, s12, 1", "s_lshr_b32 s12, s12, 1", "s_lshl_b32 s12, s12, 10",
              "s_add_u32 s6, s6, s12",
              "s_and_b32 s13, s5, 1", "s_mov_b32 s7, 0xfffffc08", ["s_cmp_eq_u32 s13, 0", "s_cselect_b32 s7, 0xc00, s7"],
              "s_add_u32 s7, s6, s7", "s_mov_b32 s8, 0xbfb8aa3b", "s_mov_b32 s9, 0xbfb8aa3b"]
    hv = []
    if hin:
        hv = [(x, 4 if isinstance(x, str) else 8, None) for x in hconst]
        for j in range(4):
            dst = 32 + (4 + j) * 4
            for b in range(2):
                g = 32 + (2 * b * 4 + j) * 4; u = g + 16
                hv += [(f"v_mul_f32 v{g+r_}, s8, v{g+r_}", 4, None) for r_ in range(4)] + [(f"v_exp_f32 v{g+r_}, v{g+r_}", 8, None) for r_ in range(4)]
                hv += [(f"v_add_f32 v{g+r_}, 1.0, v{g+r_}", 4, None) for r_ in range(4)] + [(f"v_rcp_f32 v{g+r_}, v{g+r_}", 8, None) for r_ in range(4)]
                hv += [(f"v_mul_f32 v{g+r_}, v{g+r_}, v{u+r_}", 4, None) for r_ in range(4)]
                hv += [(f"v_cvt_pk_bf16_f32 v{dst+2*b}, v{g}, v{g+1}", 4, None), (f"v_cvt_pk_bf16_f32 v{dst+2*b+1}, v{g+2}, v{g+3}", 4, None)]
            hv += [(f"s_add_u32 s11, s6, {j*114688}", 4, None), (f"buffer_store_dwordx4 {v(dst,4)}, v4, s[56:59], s11 offen {HP}", 8, ("H", 0))]
    sstep(1, A.e, xs=False, ds=kv_ops("V", 3), after=kv_ops("K", 1) + kv_ops("K", 2) + kv_ops("K", 3), last=True, va=hv, va0=40)
    A.c(f"gate fillers left: {len(hv)}")
    for x, c_, tg in hv:
        A.e(x)
        if tg: vq.issue(tg)
    stamp(2)

    if not hin: A.e(hconst)
    def hblock(b, j, dst):
        g = 32 + ((2 * b) * 4 + j) * 4; u = g + 16
        out = []
        out += [f"v_pk_mul_f32 v[{g+r_}:{g+r_+1}], v[{g+r_}:{g+r_+1}], s[8:9]" for r_ in (0, 2)]
        out += [f"v_exp_f32 v{g+r_}, v{g+r_}" for r_ in range(4)]
        out += [f"v_pk_add_f32 v[{g+r_}:{g+r_+1}], v[{g+r_}:{g+r_+1}], 1.0 op_sel_hi:[1,0]" for r_ in (0, 2)]
        out += [f"v_rcp_f32 v{g+r_}, v{g+r_}" for r_ in range(4)]
        out += [f"v_pk_mul_f32 v[{g+r_}:{g+r_+1}], v[{g+r_}:{g+r_+1}], v[{u+r_}:{u+r_+1}]" for r_ in (0, 2)]
        out += [f"v_cvt_pk_bf16_f32 v{dst}, v{g}, v{g+1}", f"v_cvt_pk_bf16_f32 v{dst+1}, v{g+2}, v{g+3}"]
        return out
    for i in range(1 if hin else 0, 2):
        for j in range(4):
            dst = 32 + ((4 * i + 1) * 4 + j) * 4
            A.e(hblock(2 * i, j, dst)); A.e(hblock(2 * i + 1, j, dst + 2))
            A.e([f"s_add_u32 s13, s6, {j*114688}", f"buffer_store_dwordx4 {v(dst,4)}, v4, s[56:59], s13 offen offset:{i*1024} {HP}"]); vq.issue(("H", 0))
    hrest = []; hdef = []
    if not hdf:
        for j in range(4):
            dst = 32 + (9 * 4 + j) * 4
            A.e(hblock(4, j, dst) + hblock(5, j, dst + 2) + [f"s_add_u32 s13, s6, {j*114688}", f"buffer_store_dwordx4 {v(dst,4)}, v4, s[56:59], s13 offen offset:2048 {HP}"]); vq.issue(("H", 0))
            dst = 32 + (13 * 4 + j) * 4
            A.e(hblock(6, j, dst) + [f"s_add_u32 s13, s7, {j*114688}", f"buffer_store_dwordx2 {v(dst,2)}, v4, s[56:59], s13 offen {HP}"]); vq.issue(("H", 0))
    for j in range(4 if hdf else 0):
        dst = 32 + (9 * 4 + j) * 4
        if hdf == 2:
            hrest += hblock(4, j, dst) + hblock(5, j, dst + 2) + [f"s_add_u32 s13, s6, {j*114688}", f"buffer_store_dwordx4 {v(dst,4)}, v4, s[56:59], s13 offen offset:2048 {HP}"]
            continue
        hrest += hblock(4, j, dst) + hblock(5, j, dst + 2) + [f"v_accvgpr_write_b32 a{192+4*j+k}, v{dst+k}" for k in range(4)]
        hdef.append(([f"s_add_u32 s90, s14, {j*114688}"], f"buffer_store_dwordx4 {a(192+4*j,4)}, v4, s[56:59], s90 offen offset:2048 {HP}", ("H", 0), []))
    for j in range(4 if hdf else 0):
        dst = 32 + (13 * 4 + j) * 4
        if hdf == 2:
            hrest += hblock(6, j, dst) + [f"s_add_u32 s13, s7, {j*114688}", f"buffer_store_dwordx2 {v(dst,2)}, v4, s[56:59], s13 offen {HP}"]
            continue
        hrest += hblock(6, j, dst) + [f"v_accvgpr_write_b32 a{208+2*j+k}, v{dst+k}" for k in range(2)]
        hdef.append(([f"s_add_u32 s90, s4, {j*114688}"], f"buffer_store_dwordx2 {a(208+2*j,2)}, v4, s[56:59], s90 offen {HP}", ("H", 0), []))
    QF = lambda mu, t: 32 + (mu * 8 + t) * 4
    SB = lambda b, mu: 96 + (b * 2 + mu) * 16
    NM = lambda mu: 160 + mu * 16
    PB = lambda b, mu: 192 + (b * 2 + mu) * 8
    EB = 224; VL = 232; VTS = 234; VT = 236
    A.e([f"s_mov_b32 s12, {QSCALE:#x}", f"s_mov_b32 s13, {QSCALE:#x}", f"s_mov_b32 s95, {thr:#x}"])
    for t in range(8):
        for mu in range(2):
            tmp = 96 + ((t * 2 + mu) % 4) * 8
            for x in range(2):
                src = (t * 4 + 2 * mu + x) * 4
                A.e([f"v_accvgpr_read_b32 v{tmp+4*x+r_}, a{src+r_}" for r_ in range(4)])
            A.e([f"v_pk_mul_f32 v[{tmp+2*k}:{tmp+2*k+1}], v[{tmp+2*k}:{tmp+2*k+1}], s[12:13]" for k in range(4)])
            q = QF(mu, t)
            A.e([f"v_cvt_pk_bf16_f32 v{q+k}, v{tmp+2*k}, v{tmp+2*k+1}" for k in range(4)])
            if (t * 2 + mu) > 0:
                pq = QF(*prev)
                A.e([f"v_permlane16_swap_b32 v{pq}, v{pq+2}", f"v_permlane16_swap_b32 v{pq+1}, v{pq+3}"])
            prev = (mu, t)
    A.e(["v_and_b32 v30, 31, v0", "v_lshrrev_b32 v31, 5, v0", "v_and_b32 v1, 15, v0", "v_xor_b32 v1, v1, v31",
         "v_lshlrev_b32 v30, 8, v30"])
    pq = QF(*prev)
    A.e([f"v_permlane16_swap_b32 v{pq}, v{pq+2}", f"v_permlane16_swap_b32 v{pq+1}, v{pq+3}"])
    for t in range(8):
        A.e([f"v_xor_b32 v{9+t}, {2*t}, v1", f"v_lshl_add_u32 v{9+t}, v{9+t}, 4, v30"])
    A.e(["v_bfe_u32 v1, v0, 2, 2", "v_lshlrev_b32 v30, 10, v31", "v_lshl_add_u32 v30, v1, 8, v30",
         "v_bfe_u32 v22, v0, 4, 1", "v_lshl_add_u32 v30, v22, 5, v30", "v_and_b32 v23, 3, v0", "v_lshl_add_u32 v30, v23, 3, v30",
         "v_add_u32 v30, 0x10000, v30"])
    for i in range(4):
        A.e([f"v_xor_b32 v23, {i}, v1", f"v_lshl_add_u32 v{17+i}, v23, 6, v30"])
    A.e(["v_lshlrev_b32 v21, 17, v22", "v_lshl_add_u32 v21, v31, 8, v21", "v_and_b32 v1, 15, v0", "v_lshl_add_u32 v21, v1, 4, v21"])
    Kf = lambda t: a(128 + t * 4, 4)
    Vf = lambda i, tp, h=None: a(160 + (i * 2 + tp) * 4, 4) if h is None else a(160 + (i * 2 + tp) * 4 + 2 * h, 2)
    Oacc = lambda i, mu: a((i * 2 + mu) * 16, 16)
    def k_reads(T): return [(f"ds_read_b128 {Kf(t)}, v{9+t} offset:{(T % 8) * 8192}", ("K", T, t)) for t in range(8)]
    def v_reads(T):
        return [(f"ds_read_b64_tr_b16 {Vf(i,tp,h)}, v{17+i} offset:{(T % 8) * 8192 + tp * 4096 + h * 2048}", ("V", T, i, tp))
                for i in range(4) for tp in range(2) for h in range(2)]
    def qk(T, c0):
        return [(mfma32(v(SB(T & 1, mu), 16), Kf(t), v(QF(mu, t), 4), (c0(mu) if t == 0 else None)), ("K", T, t)) for t in range(8) for mu in range(2)]
    def pv(T):
        return [(mfma32(Oacc(i, mu), Vf(i, tp), v(PB(T & 1, mu) + 4 * tp, 4), ("0" if (T == 0 and tp == 0) else None)), ("V", T, i, tp))
                for i in range(4) for tp in range(2) for mu in range(2)]
    A.e(vq.need(("K", 3))); A.e("s_barrier")
    dq.slack = 15
    for ins, tag in k_reads(0): A.e(ins); dq.issue(tag)
    A.e(hrest[:12]); hrest = hrest[12:]
    for ins, tag in qk(0, lambda mu: "0"):
        A.e(dq.need(tag, 4)); A.e(ins); A.e(hrest[:4]); hrest = hrest[4:]
    for ins, tag in k_reads(1): A.e(ins); dq.issue(tag)
    A.e(hrest)
    if hdf == 2:
        for _ in range(8): vq.issue(("H", 0))
    B = Asm()
    B.e((["s_and_b32 s12, s2, 7", "s_lshr_b32 s72, s12, 2", "s_and_b32 s13, s12, 1", "s_lshl_b32 s73, s4, 1", "s_add_u32 s73, s73, s13",
         "s_bfe_u32 s13, s12, 0x10001"] if kmap == 0 else
        ["s_and_b32 s72, s2, 1", "s_bfe_u32 s13, s2, 0x10001", "s_lshl_b32 s73, s4, 1", "s_add_u32 s73, s73, s13",
         "s_bfe_u32 s13, s2, 0x10002"]) + ["s_lshl_b32 s13, s13, 2", "s_lshr_b32 s74, s2, 6", "s_add_u32 s74, s74, s13",
         "s_lshr_b32 s12, s3, 1", "s_and_b32 s13, s3, 1",
         "s_cmp_eq_u32 s72, 0",
         f"s_cselect_b32 s8, {8*N1S}, {8*N1Y}", f"s_cselect_b32 s9, 0, {16*N1S}", "s_mul_i32 s8, s8, s12", "s_add_u32 s8, s8, s9",
         "s_cmp_eq_u32 s72, 0",
         f"s_cselect_b32 s75, {SS}, {64-SS}", f"s_cselect_b32 s96, 0, {2*SS}", "s_mul_i32 s75, s75, s12", "s_add_u32 s75, s75, s96",
         "s_lshl_b32 s9, s8, 10", "s_lshl_b32 s8, s8, 16",
         "s_lshl_b32 s96, s75, 10", "s_lshl_b32 s75, s75, 16",
         "s_lshl_b32 s13, s13, 12",
         "s_lshl_b32 s10, s12, 17", "s_add_u32 s10, s10, s13",
         "s_lshl_b32 s11, s12, 16", "s_add_u32 s11, s11, 0x8000", "s_add_u32 s11, s11, s13",
         "v_lshrrev_b32 v30, 4, v0", "v_and_b32 v31, 15, v0", "v_lshlrev_b32 v1, 2, v30", "v_xor_b32 v31, v31, v1",
         "s_lshl_b32 s13, s13, 3", "s_lshl_b32 s97, s74, 8", "s_add_u32 s97, s97, s13",
         "v_lshlrev_b32 v30, 11, v30", "v_add_u32 v30, s97, v30",
         "v_lshl_add_u32 v246, v31, 4, v30", "v_xor_b32 v31, 2, v31", "v_lshl_add_u32 v247, v31, 4, v30", "v_add_u32 v247, 7168, v247",
         "v_add_u32 v248, 14336, v246", "v_add_u32 v249, 14336, v247", "v_mov_b32 v250, s98", "v_mov_b32 v251, s99", "v_mov_b32 v252, 0",
         "s_lshl_b32 s97, s73, 3", "s_and_b32 s13, s3, 1", "s_lshl_b32 s13, s13, 2", "s_add_u32 s97, s97, s13", "s_lshl_b32 s12, s12, 1"])
    for jj in range(4):
        B.e([f"s_xor_b32 s13, s12, {jj}", "s_add_u32 s13, s13, s97", "s_mul_i32 s90, s13, 114688", f"v_add_u32 v{5+jj}, s90, v4",
             "s_lshl_b32 s90, s13, 17", f"v_add_u32 v{242+jj}, s90, v4"])
    B.e(["v_lshlrev_b32 v24, 5, v0", "v_and_b32 v24, 0x3e0, v24",
         "s_lshl_b32 s12, s4, 10", f"s_add_u32 s91, s12, {FL_H}", f"s_add_u32 s97, s12, {FL_O}",
         "s_lshl_b32 s13, s5, 5", "s_add_u32 s88, s91, s13", "s_add_u32 s89, s97, s13"])
    srd(B, 48, P_WS, FL_SZ, WS_FLAG)
    srd(B, 44, P_WD, 3584 * 2048)
    srd(B, 40, P_WS, SZ_HF, WS_HF)
    for i in range(8):
        B.e([f"s_add_u32 s13, s14, {i}", "s_and_b32 s13, s13, 7", f"s_lshl_b32 s{80+i}, s13, 10"])
    if xe:
        srd(B, 56, P_X, 2048 * 2048)
        B.e(["s_lshl_b32 s90, s73, 7", "s_and_b32 s12, s3, 1", "s_lshl_b32 s12, s12, 6", "s_add_u32 s90, s90, s12",
             "s_lshr_b32 s12, s3, 1", "s_lshl_b32 s12, s12, 5", "s_add_u32 s90, s90, s12",
             "s_lshl_b32 s90, s90, 11", "s_lshl_b32 s12, s74, 8", "s_add_u32 s90, s90, s12",
             "s_cmp_eq_u32 s72, 0", "s_cselect_b32 s90, s90, 0x7fff0000",
             "s_lshl_b32 s4, s3, 13", "s_add_u32 s4, s4, 0x20000", "s_add_u32 s14, s90, 0x8000",
             "v_lshrrev_b32 v30, 4, v0", "v_and_b32 v1, 15, v0", "v_xor_b32 v1, v1, v30", "v_lshlrev_b32 v30, 11, v30"])
        for i, r_ in ((1, 253), (2, 254), (3, 255), (0, 1)):
            B.e([f"v_xor_b32 v{r_}, {4*i}, v1", f"v_lshl_add_u32 v{r_}, v{r_}, 4, v30"] + ([f"v_add_u32 v{r_}, {7168*i}, v{r_}"] if i else []))
    late = []
    for l_ in [x.strip() for x in B.lines]:
        if l_.startswith(("s_cselect", "s_addc", "s_subb")): late[-1] = (late[-1][0] + [l_], late[-1][1] + 4)
        else: late.append(([l_], 4))
    if not lset:
        for x, c in late: A.e(x)
        late = []
    WV = 246
    def w_ops(t, half=False):
        slot = t % 8
        ops = []
        rot_ = [f"s_and_b32 s12, s{80+slot}, 0xc00", "s_lshl_b32 s12, s12, 6"] if half else [f"s_lshl_b32 s12, s{80+slot}, 6"]
        for i in range(4):
            ops.append(([f"s_add_u32 m0, s{10 if slot < 4 else 11}, {(slot%4)*8192}"] + rot_ + ["s_add_u32 s12, s12, s8"] if i == 0 else [],
                        f"buffer_load_dwordx4 v{WV+i}, s[44:47], s12 offen offset:{i*1024} lds", ("W", t),
                        ["s_add_u32 s8, s8, 0x80000"] if (i == 3 and slot == 7) else []))
        return ops
    BR = [192, 208, 0, 16, 32, 48, 64, 80] if xe else [192, 208, 224, 0, 16, 32, 48, 64]
    facc = lambda cb, jj: v(32 + (cb * 4 + jj) * 4, 4)
    FA = lambda cb, c, h=None: a(128 + (c * 8 + cb) * 4, 4) if h is None else a(128 + (c * 8 + cb) * 4 + 2 * h, 2)
    FB = lambda slot, jj: a(BR[slot] + jj * 4, 4)
    def a_ops(t, half=False):
        slot = t % 8
        return [(([f"s_and_b32 s13, s{80+slot}, 0xc00", "s_add_u32 s13, s13, s9"] if half else [f"s_add_u32 s13, s{80+slot}, s9"]) if jj == 0 else [],
                 f"buffer_load_dwordx4 {FB(slot,jj)}, v{5+jj}, s[40:43], s13 offen {apol}", ("X", t),
                 ["s_add_u32 s9, s9, 0x2000"] if (jj == 3 and slot == 7) else []) for jj in range(4)]
    spins = []
    def check_flags(tag, reg, addr, off):
        A.e([f"v_cmp_ne_u64 vcc, s[98:99], v[{reg}:{reg+1}]", f"s_cbranch_vccnz {L('spin' + tag)}"])
        A.label(L("ok" + tag))
        spins.append((tag, reg, addr, off))

    if hdf == 1: A.e(["s_mov_b32 s14, s6", "s_mov_b32 s4, s7"]); assert not lset
    A.e(["v_mov_b32 v232, 0", "v_mov_b32 v233, 0"] + (["s_nop 2"] if (lset and not hdf) else []))
    def rowmax(S, dst, tmp):
        out = [f"v_max3_f32 v{dst}, v{S}, v{S+1}, v{S+2}"]
        for k in range(3, 15, 2): out.append(f"v_max3_f32 v{dst}, v{dst}, v{S+k}, v{S+k+1}")
        out += [f"v_max_f32 v{dst}, v{dst}, v{S+15}", f"v_mov_b32 v{tmp}, v{dst}", "s_nop 1",
                f"v_permlane32_swap_b32 v{tmp}, v{dst}", f"v_max_f32 v{dst}, v{dst}, v{tmp}"]
        return out
    for mu in range(2):
        A.e(rowmax(SB(0, mu), VT + mu, VT + 2))
        A.e([f"v_sub_f32 v{NM(mu)+k}, 0, v{VT+mu}" for k in range(16)])
        A.e([f"v_sub_f32 v{SB(0,mu)+k}, v{SB(0,mu)+k}, v{VT+mu}" for k in range(16)])
    def sm(T):
        b = T & 1
        out = []
        def ex(n): return (f"v_exp_f32 v{EB + n % 8}, v{SB(b, n // 16) + n % 16}", 8)
        def fin(n):
            mu, r_ = n // 16, n % 16; e = EB + n % 8; o = []
            if pka:
                if r_ % 2 == 1:
                    P_ = VT + 2 + 2 * mu
                    if r_ == 3: o.append((f"v_pk_add_f32 v[{P_}:{P_+1}], v[{EB + (n-3) % 8}:{EB + (n-3) % 8 + 1}], v[{e-1}:{e}]", 8))
                    elif r_ > 3: o.append((f"v_pk_add_f32 v[{P_}:{P_+1}], v[{P_}:{P_+1}], v[{e-1}:{e}]", 8))
                    o.append((f"v_cvt_pk_bf16_f32 v{PB(b,mu) + r_//2}, v{e-1}, v{e}", 5))
                    if r_ == 15: o.append((f"v_add_f32 v{VTS+mu}, v{P_}, v{P_+1}", 4))
                return o
            if r_ == 1: o.append((f"v_add_f32 v{VTS+mu}, v{EB + (n-1) % 8}, v{e}", 4))
            elif r_ > 1: o.append((f"v_add_f32 v{VTS+mu}, v{VTS+mu}, v{e}", 4))
            if r_ % 2 == 1: o.append((f"v_cvt_pk_bf16_f32 v{PB(b,mu) + r_//2}, v{EB + (n-1) % 8}, v{e}", 5))
            return o
        out.append(ex(0)); out.append(ex(1))
        for n in range(2, 32):
            out.append(ex(n)); out += fin(n - 2)
        out += fin(30) + fin(31)
        out += [(f"v_max_f32 v{VT}, v{VTS}, v{VTS+1}", 4), (f"v_cmp_nge_f32 vcc, s95, v{VT}", 4)]
        return out
    stamp(3)
    def flag_store(off_sreg):
        lab = L("fl%d" % A.nlabel); A.nlabel += 1
        A.e(["s_cmp_lg_u32 s3, 0", f"s_cbranch_scc1 {lab}", "s_mov_b64 exec, 1",
             f"buffer_store_dwordx2 v[250:251], v252, s[48:51], {off_sreg} offen {WT}", "s_mov_b64 exec, -1"])
        A.label(lab)
    endsetup = ["s_lshl_b32 s6, s15, 17", "s_lshl_b32 s90, s5, 12", "s_add_u32 s6, s6, s90", "s_add_u32 s7, s6, 0x40000",
                f"v_mov_b32 v{VT}, v{VL}", f"v_mov_b32 v{VT+1}, v{VL+1}", "v_mov_b32 v29, v21", "v_mov_b32 v253, v24",
                f"v_permlane32_swap_b32 v{VT}, v{VL}", f"v_permlane32_swap_b32 v{VT+1}, v{VL+1}",
                f"v_add_f32 v{VT}, v{VT}, v{VL}", f"v_add_f32 v{VT+1}, v{VT+1}, v{VL+1}",
                f"v_rcp_f32 v{VT+2}, v{VT}", f"v_rcp_f32 v{VT+4}, v{VT+1}",
                "v_lshrrev_b32 v1, 4, v0", f"v_mov_b32 v{VT+3}, v{VT+2}", f"v_mov_b32 v{VT+5}, v{VT+4}",
                "v_lshlrev_b32 v30, 10, v1", "v_and_b32 v1, 1, v1",
                "v_bfe_u32 v31, v0, 2, 2", "v_lshl_add_u32 v30, v31, 8, v30", "v_lshl_or_b32 v31, v31, 1, v1",
                "v_and_b32 v1, 3, v0", "v_lshl_add_u32 v30, v1, 3, v30",
                "s_lshr_b32 s91, s3, 1", "s_lshl_b32 s90, s91, 17", "s_lshl_b32 s91, s91, 16", "s_add_u32 s91, s91, 0x8000"]
    for cb in range(8):
        endsetup += [f"v_xor_b32 v1, {cb}, v31", "v_lshl_add_u32 v1, v1, 5, v30", f"v_add_u32 v{9+cb}, s90, v1", f"v_add_u32 v{17+cb}, s91, v1"]
    rare_sites = []
    for T in range(17):
        mf = (qk(T + 1, lambda mu: v(NM(mu), 16)) if T + 1 <= 15 else []) + (pv(T - 1) if T >= 1 else [])
        nq = 16 if T + 1 <= 15 else 0
        va = ([(f"v_add_f32 v{VL}, v{VL}, v{VTS}", 4), (f"v_add_f32 v{VL+1}, v{VL+1}, v{VTS+1}", 4)] if T >= 1 else []) + (sm(T) if T <= 15 else [])
        rdv = v_reads(T - 1) if T >= 1 else []
        rdk = k_reads(T + 2) if T + 2 <= 15 else []
        vm = []
        if T % 2 == 0 and T <= 14:
            w = []
            if T == hfT: w += vq.need(("H", 0))
            if T >= 6: w += vq.need(("K", (T + 2) // 2))
            if T >= 8: w += vq.need(("V", T // 2))
            A.e(w[-1:]); A.e(dq.drain()); A.e("s_barrier")
            if T == hfT:
                if hwb:
                    lab = L("wb")
                    A.e(["s_cmp_lg_u32 s3, 0", f"s_cbranch_scc1 {lab}", "buffer_wbl2 sc1"]); A.label(lab)
                else: flag_store("s88")
            if T == 8 and hwb: flag_store("s88")
            if T <= 6: vm += kv_ops("K", T // 2 + 4)
            if 4 <= T <= 10: vm += kv_ops("V", T // 2 + 2)
            if T == 12: vm += w_ops(0) + w_ops(1)
            if T == 14:
                A.e(vq.need(("F", 0))); check_flags("H", 22, 24, "s91")
                vm += a_ops(0) + a_ops(1)
        if pfA and pf0 <= T <= pf0 + 7:
            pre = []
            if T == pf0:
                pre = [f"s_mov_b32 s52, s{P_WO}", f"s_and_b32 s53, s{P_WO+1}, 0xffff", f"s_mov_b32 s54, {4096*2048:#x}",
                       "s_lshl_b32 s12, s2, 2", "s_add_u32 s12, s12, s3", "s_lshl_b32 s100, s12, 13", "s_mul_i32 s101, s12, 7168",
                       "v_and_b32 v2, 7, v0", "v_lshlrev_b32 v2, 7, v2", "v_add_u32 v3, 4096, v2"]
            k = T - pf0
            if k < 7: vm += [(pre, f"buffer_load_dword v31, v{2 if k < 4 else 3}, s[44:47], s101 offen offset:{(k % 4) * 1024}", ("P", 0), [])]
            if pfA == 2: vm += [([], f"buffer_load_dword v31, v{2 if k < 4 else 3}, s[52:55], s100 offen offset:{(k % 4) * 1024}", ("P", 0), [])]
        if xe and 5 <= T <= 8:
            hh, i0 = (T - 5) // 2, 2 * ((T - 5) % 2)
            for i in (i0, i0 + 1):
                vm += [([f"s_add_u32 m0, s4, {4096*hh}"] if i == i0 else [],
                        f"buffer_load_dwordx4 v{(1, 253, 254, 255)[i]}, s[56:59], {'s14' if hh else 's90'} offen offset:{i*1024} lds", ("R", 0), [])]
        if sen and 5 <= T <= 10:
            ks = {5: (0,), 6: (1,), 7: (2, 3), 8: (4,), 9: (5, 6), 10: (7,)}[T]
            for k in ks:
                pre = []
                if k == 0:
                    pre = ["s_lshl_b32 s12, s73, 3", "s_add_u32 s12, s12, s74", "s_lshl_b32 s12, s12, 2", "s_add_u32 s12, s12, s3", "s_lshl_b32 s12, s12, 13",
                           f"s_add_u32 s88, s12, {G_BASE + G_SF - WS_OF:#x}", ["s_cmp_eq_u32 s72, 0", "s_cselect_b32 s88, 0x7fff0000, s88"]] + \
                          [f"v_accvgpr_write_b32 a{252+i}, -1" for i in range(4)]
                if k == 4: pre = ["s_add_u32 s88, s88, 4096"]
                vm += [(pre, f"buffer_store_dwordx4 a[252:255], v4, s[60:63], s88 offen offset:{(k%4)*1024} {WT}", ("E", 0), [])]
        if xe and T == 11:
            A.e(vq.need(("R", 0)))
            xr_ = ["v_and_b32 v1, 15, v0", "v_lshrrev_b32 v253, 5, v0", "v_xor_b32 v253, v253, v1", "v_bfe_u32 v254, v0, 4, 1", "v_lshlrev_b32 v254, 3, v254",
                   "v_lshl_add_u32 v254, v1, 8, v254", "v_add_u32 v254, s4, v254"]
            vm += [([], x, None, []) for x in xr_]
            for cb in range(8):
                vm += [([], f"v_xor_b32 v30, {2*cb}, v253", None, []), ([], "v_lshl_add_u32 v30, v30, 4, v254", None, []),
                       ([], f"ds_read_b64 {a(224+4*cb,2)}, v30", "DS", []), ([], f"ds_read_b64 {a(226+4*cb,2)}, v30 offset:4096", "DS", [])]
        if T == 9 and cpf >= 3: emit_vm(code_touch(30, "v31"), A.e)
        if T == 12: vm += [([], f"buffer_load_dwordx2 v[22:23], v24, s[48:51], s91 offen {WT}", ("F", 0), [])]
        if T == 13: vm += w_ops(2) + w_ops(3)
        if T < 4: vm += hdef[2 * T: 2 * T + 2]
        if T == 15 and not xe: vm += a_ops(2)
        if late and 1 <= T <= 3:
            k_ = -(-len(late) // (4 - T)); ch = late[:k_]; late = late[k_:]
            nv = []; st_ = max(1, len(va) // len(ch))
            for i_, it_ in enumerate(va[:-2]):
                nv.append(it_)
                if ch and i_ % st_ == st_ - 1 and not it_[0].startswith("v_exp"): pass
                if ch and i_ % st_ == st_ - 1: nv.append(ch.pop(0))
            va = nv + ch + va[-2:]
        roll = v_reads(T) if (t16 and T in (14, 15)) else []
        if t16 and T >= 15: rdv = []
        if t16 and T == 16:
            A.e(dq.drain()); A.e("s_barrier")
            vm += w_ops(4) + w_ops(5) + w_ops(6) + w_ops(7)
            va += [(x, 4) for x in endsetup]
        if nq == 0:
            for ins, tag in rdv: A.e(ins); dq.issue(tag)
            rdv = []
        n = len(mf)
        vml = []
        for op in vm:
            vml += [(x, 4 if isinstance(x, str) else 4 * len(x), None) for x in op[0]] + ([("s_nop 0", 4, None)] if op[0] else []) + [(op[1], 8 if isinstance(op[2], tuple) else 4, op[2])] + [(x, 4, None) for x in op[3]]
        tot = sum(c for _, c in va) + 4 * (len(rdv) + len(rdk) + len(roll)) + sum(c for _, c, _ in vml)
        done = 0
        for m, (ins, tag) in enumerate(mf):
            w = dq.need(tag, dsl); A.e(w); A.e(ins)
            used = 4 * len(w)
            budget = max(cap, -(-(tot - done) // (n - m)) + 3) if m < n - 1 else 10 ** 6
            target = (tot * (m + 1)) // n + 6
            if roll and m >= nq and (m - nq) % 2 == 1: rdk += roll[:2]; roll = roll[2:]
            rd = rdv if (m < nq and rdv) else (rdk if (m >= nq and rdk) else None)
            if rd:
                ri, rt = rd.pop(0); A.e(ri); dq.issue(rt); used += 4; done += 4
                if rd is rdv and len(rd) > (nq - 3 - m):
                    ri, rt = rd.pop(0); A.e(ri); dq.issue(rt); used += 4; done += 4
            elif vml:
                x, c, tg = vml.pop(0); A.e(x); used += c; done += c
                if tg: (dq.issue(('XR', 0)) if tg == 'DS' else vq.issue(tg))
                while vml and c == 4 and used < 12:
                    x, c, tg = vml.pop(0); A.e(x); used += c; done += c
                    if tg: (dq.issue(('XR', 0)) if tg == 'DS' else vq.issue(tg))
            while va and used + va[0][1] <= budget and (done < target or m == n - 1):
                x, c = va.pop(0); A.e(x); used += c; done += c
        assert not rdv
        for ins, tag in rdk: A.e(ins); dq.issue(tag)
        for x, c, tg in vml:
            A.e(x)
            if tg: (dq.issue(('XR', 0)) if tg == 'DS' else vq.issue(tg))
        for x, c in va: A.e(x)
        if T <= 15:
            A.e([f"s_cbranch_vccnz {L('rs%d' % T)}"])
            A.label(L("rb%d" % T))
            rare_sites.append(T)
    stamp(4)
    if not t16:
        A.e("s_barrier")
        for t in range(4, 7):
            for op in w_ops(t): emit_vm(op, A.e, True)
        A.e(endsetup)
    def frd(t, cb):
        out = []
        for c in range(2):
            slot = (t + c) % 8
            reg = (9 if slot < 4 else 17) + cb; off = (slot % 4) * 8192
            out += [(f"ds_read_b64_tr_b16 {FA(cb,c,0)}, v{reg} offset:{off}", ("A", t, cb)),
                    (f"ds_read_b64_tr_b16 {FA(cb,c,1)}, v{reg} offset:{off+4096}", ("A", t, cb))]
        return out
    dq.slack = 8
    ostores = []
    cnt = 0
    if oin:
        A.e([f"v_accvgpr_read_b32 v{96+k}, a{k}" for k in range(64)])
        for t in (range(2, 6) if xe else range(3, 7)):
            for op in a_ops(t): emit_vm(op, A.e)
        A.e(vq.need(("W", 3))); A.e("s_barrier")
        for cb in range(8):
            for ins, tag in frd(0, cb): A.e(ins); dq.issue(tag)
    for i in range(4):
        for mu in range(2):
            tmp = 96 + (cnt % 4) * 16; dst = 160 + cnt * 8; cnt += 1
            src = (i * 2 + mu) * 16
            if not (oin and cnt <= 4): A.e([f"v_accvgpr_read_b32 v{tmp+k}, a{src+k}" for k in range(16)])
            A.e([f"v_pk_mul_f32 v[{tmp+2*k}:{tmp+2*k+1}], v[{tmp+2*k}:{tmp+2*k+1}], v[{VT+2+2*mu}:{VT+3+2*mu}]" for k in range(8)])
            for s_ in range(2):
                for jj, j in enumerate((s_, s_ + 2)):
                    A.e([f"v_cvt_pk_bf16_f32 v{dst+4*s_+2*jj}, v{tmp+4*j}, v{tmp+4*j+1}", f"v_cvt_pk_bf16_f32 v{dst+4*s_+2*jj+1}, v{tmp+4*j+2}, v{tmp+4*j+3}"])
                ostores.append(([], f"buffer_store_dwordx4 {v(dst+4*s_,4)}, v29, s[60:63], s{6+mu} offen offset:{i*1024+s_*512} {WT}", ("O", 0), []))
                if oin and len(ostores) <= oin: emit_vm(ostores[-1], A.e)
            if not oin and cnt in (1, 2, 3, 4):
                for op in a_ops(2 + cnt): emit_vm(op, A.e)
            if not oin and cnt == 5:
                A.e(vq.need(("W", 3))); A.e("s_barrier")
                for cb in range(8):
                    for ins, tag in frd(0, cb): A.e(ins); dq.issue(tag)
    ostores = ostores[oin:]
    srd(A, 52, P_WS, G_SZ, G_BASE)
    srd(A, 64, P_X, 2048 * 2048)
    srd(A, 68, P_OUT, 2048 * 2048)
    A.e(["s_cmp_eq_u32 s72, 0",
         f"s_cselect_b32 s90, {N1S-nf//8}, {N1Y-nf//8}", f"s_cselect_b32 s95, {N1S-1-nf//8}, {N1Y-1-nf//8}", "s_mov_b32 s91, 0",
         "s_lshl_b32 s12, s73, 3", "s_add_u32 s12, s12, s74",
         "s_lshl_b32 s92, s12, 2", "s_add_u32 s92, s92, s3",
         "s_lshl_b32 s92, s92, 13",
         "s_lshl_b32 s93, s12, 7", f"s_add_u32 s101, s93, {FL_P}", "s_lshl_b32 s12, s3, 5", "s_add_u32 s93, s93, s12",
         "s_lshl_b32 s94, s73, 7", "s_and_b32 s12, s3, 1", "s_lshl_b32 s12, s12, 6", "s_add_u32 s94, s94, s12",
         "s_lshr_b32 s12, s3, 1", "s_lshl_b32 s12, s12, 5", "s_add_u32 s94, s94, s12",
         "s_lshl_b32 s94, s94, 11", "s_lshl_b32 s12, s74, 8", "s_add_u32 s94, s94, s12",
         "v_and_b32 v1, 15, v0", "v_lshlrev_b32 v1, 11, v1", "v_lshrrev_b32 v30, 4, v0",
         "v_lshl_add_u32 v25, v30, 3, v1", "v_add_u32 v26, 0x8000, v25",
         "v_lshl_add_u32 v27, v30, 4, v1", "v_add_u32 v28, 0x8000, v27",
         "s_lshl_b32 s12, s3, 14", "v_add_u32 v2, s12, v4", "s_xor_b32 s12, s12, 0x8000", "v_add_u32 v3, s12, v4",
         "s_lshl_b32 s12, s3, 13", "s_add_u32 s12, s12, 0x10000", "v_add_u32 v254, s12, v4", "s_xor_b32 s12, s12, 0x4000", "v_add_u32 v255, s12, v4"])
    stamp(5)
    VP = [m for m in range(64) if m % 8 in (3, 5)]
    XP = [m for m in range(64) if m % 8 in (4, 6)]
    FBAR = 7
    def fss(t, E, last=False, extra=(), czero=False, afterbar=None, needbar=(), va=None, hook=None):
        if not last: vops = a_ops(t + 6) + a_ops(t + 7) + w_ops(t + 8) + w_ops(t + 9)
        else: vops = a_ops(6) + a_ops(7) if t == 0 else []
        sched = sorted(list(zip(VP, vops)) + list(zip(XP, extra)), key=lambda x: x[0])
        assert len(extra) <= len(XP)
        doread = not (last and t == 6)
        pend = []; vi = 0; post = []
        pres = [list(op[0]) for _, op in sched]
        for m in range(64):
            cb, jj, c = m // 8, (m % 8) // 2, m % 2
            if alt & 1: c ^= jj & 1
            if alt & 2 and cb % 2: jj = 3 - jj
            if m == 0: E(vq.need(("X", t + 1)))
            if m % 8 == 0: E(dq.need(("A", t, cb)))
            E(mfma16(facc(cb, jj), FA(cb, c), FB((t + c) % 8, jj), "0" if (czero and m % 2 == 0) else None))
            if m == FBAR:
                w = vq.need(("W", t + 3))
                for tg in needbar: w += vq.need(tg)
                E(w[-1:]); E(dq.drain()); E("s_barrier")
                if afterbar: afterbar()
            if m % 8 == 7 and doread: pend += frd(t + 2, cb)
            if hook and hook(m): E(hook(m)); continue
            if vi < len(sched) and m == sched[vi][0]:
                assert not pres[vi], (t, m, pres[vi])
                op = sched[vi][1]
                E(op[1]); vq.issue(op[2]); post += op[3]; vi += 1
            else:
                used = 0
                if pend:
                    ins, tag = pend.pop(0); E(ins); dq.issue(tag); used += 1
                if post and used < 2: E(post.pop(0)); used += 1
                k = next((k for k in range(vi, len(sched)) if pres[k]), None)
                if k is not None:
                    busy = any((" lds" in sched[k2][1][1] and " lds" in sched[k][1][1]) or (" s13 " in sched[k2][1][1] and " s13 " in sched[k][1][1]) for k2 in range(vi, k))
                    while not busy and not post and pres[k] and used < 2: E(pres[k].pop(0)); used += 1
                cyc = 4 * used
                while va and cyc + va[0][1] <= vcap:
                    x, c_ = va.pop(0); E(x); cyc += c_
        for ins, tag in pend: E(ins); dq.issue(tag)
        E(post)
    oflag = [([], f"buffer_load_dwordx2 v[30:31], v253, s[48:51], s97 offen {WT}", ("F", 0), [])]
    def loop_body(E, real):
        if real:
            A.e(["s_cmp_lg_u32 s95, 0", f"s_cbranch_scc1 {L('nosw1')}"])
            srd(A, 44, P_WO, 4096 * 2048); A.e("s_mov_b32 s8, s75")
            A.label(L("nosw1"))
        for t in range(0, 8, 2):
            fss(t, E, extra=oflag if t == 2 else ())
            if t == 0 and real:
                A.e(["s_cmp_lg_u32 s95, 0", f"s_cbranch_scc1 {L('nosw')}"])
                check_flags("O", 30, 253, "s97")
                srd(A, 40, P_WS, SZ_OF, WS_OF)
                A.e(["s_mov_b32 s9, s96", "s_mov_b32 s97, s101", "v_mov_b32 v253, 0"] + [f"v_mov_b32 v{5+jj}, v{242+jj}" for jj in range(4)])
                A.label(L("nosw"))
    for t in range(0, 8, 2):
        fss(t, A.e, extra=ostores if t == 0 else (), czero=(t == 0),
            needbar=[("O", 0)] if t == oflt2 else (), afterbar=(lambda: flag_store("s89")) if t == oflt2 else None)
    stamp(6)
    vq.rebase(8); dq.rebase(8)
    q_first = (list(vq.q), list(dq.q))
    loop_body(lambda x: None, False)
    vq.rebase(8); dq.rebase(8)
    q_steady = (list(vq.q), list(dq.q))
    assert N1S >= 3 and N1Y >= 3
    _v, _d = list(vq.q), list(dq.q); fss(0, lambda x: None); assert not any(t[0] == "F" for t in vq.q); vq.q, dq.q = _v, _d
    def covers(entry, steady):
        def younger(q, tag): return len(q) - 1 - max(i for i, t in enumerate(q) if t == tag)
        for tag in set(entry):
            if tag[0] not in "WXA": continue
            if tag not in steady or younger(entry, tag) < younger(steady, tag): return False
        return True
    assert covers(q_first[0], q_steady[0]) and covers(q_first[1], q_steady[1]), (q_first, q_steady)
    A.raw(".p2align 6")
    A.label(L("floop"))
    loop_body(A.e, True)
    A.e(["s_sub_u32 s95, s95, 1", "s_sub_u32 s90, s90, 1", "s_cmp_lg_u32 s90, 0", f"s_cbranch_scc1 {L('floop')}",
         "s_cmp_lg_u32 s91, 0", f"s_cbranch_scc1 {L('flast')}"])
    stamp(3, 2)
    vq.rebase(8); dq.rebase(8)
    YS = lambda cb, jj: 160 + (cb * 2 + jj) * 4
    if mid1:
        A.e("s_nop 2")
        for jj in range(2):
            for i in range(4):
                d = YS(2 * i, jj)
                for h in range(2):
                    b = 32 + ((2 * i + h) * 4 + jj + 2) * 4
                    A.e([f"v_cvt_pk_bf16_f32 v{d+2*h}, v{b}, v{b+1}", f"v_cvt_pk_bf16_f32 v{d+2*h+1}, v{b+2}, v{b+3}"])
                A.e(f"ds_write_b128 v254, {v(d,4)} offset:{(jj*4+i)*1024}")
        A.e(["s_waitcnt lgkmcnt(0)", "s_barrier"])
        for jj in range(2):
            for i in range(4):
                A.e(f"ds_read_b128 {facc(2*i, jj+2)}, v255 offset:{(jj*4+i)*1024}")
        for jj in range(2):
            for i in range(4):
                pc = 32 + ((2 * i) * 4 + jj + 2) * 4
                A.e(f"s_waitcnt lgkmcnt({7 - (jj*4+i)})")
                for h in range(2):
                    b = 32 + ((2 * i + h) * 4 + jj) * 4; y = YS(2 * i + h, jj)
                    A.e([f"v_lshlrev_b32 v{y}, 16, v{pc+2*h}", f"v_and_b32 v{y+1}, 0xffff0000, v{pc+2*h}",
                         f"v_lshlrev_b32 v{y+2}, 16, v{pc+2*h+1}", f"v_and_b32 v{y+3}, 0xffff0000, v{pc+2*h+1}"])
                    A.e([f"v_pk_add_f32 v[{y+r_}:{y+r_+1}], v[{y+r_}:{y+r_+1}], v[{b+r_}:{b+r_+1}]" for r_ in (0, 2)])
    else:
        A.e("s_nop 2")
        for rnd in range(2):
            for cb in range(4 * rnd, 4 * rnd + 4):
                for jj in (2, 3): A.e(f"ds_write_b128 v254, {facc(cb,jj)} offset:{((cb%4)*2+jj-2)*1024}")
            if rnd == 1:
                for cb in range(4):
                    for jj in range(2):
                        b = 32 + (cb * 4 + jj) * 4; y = YS(cb, jj)
                        A.e([f"v_pk_add_f32 v[{y+r_}:{y+r_+1}], v[{b+r_}:{b+r_+1}], v[{b+8+r_}:{b+9+r_}]" for r_ in (0, 2)])
            A.e(["s_waitcnt lgkmcnt(0)", "s_barrier"])
            for cb in range(4 * rnd, 4 * rnd + 4):
                for jj in (2, 3): A.e(f"ds_read_b128 {facc(cb,jj)}, v255 offset:{((cb%4)*2+jj-2)*1024}")
            if rnd == 0: A.e(["s_waitcnt lgkmcnt(0)", "s_barrier"])
        for cb in range(4, 8):
            for jj in range(2):
                b = 32 + (cb * 4 + jj) * 4; y = YS(cb, jj)
                A.e(f"s_waitcnt lgkmcnt({7 - ((cb-4)*2+jj)})")
                A.e([f"v_pk_add_f32 v[{y+r_}:{y+r_+1}], v[{b+r_}:{b+r_+1}], v[{b+8+r_}:{b+9+r_}]" for r_ in (0, 2)])
    A.e(["s_cmp_eq_u32 s72, 0", f"s_cbranch_scc1 {L('firstC')}", "s_add_u32 s6, s92, 4096"])
    for jj in range(2):
        for i in range(4):
            d = 224 + (i % 2) * 4 + jj * 8
            for h in range(2):
                y = YS(2 * i + h, jj)
                A.e([f"v_cvt_pk_bf16_f32 v{d+2*h}, v{y}, v{y+1}", f"v_cvt_pk_bf16_f32 v{d+2*h+1}, v{y+2}, v{y+3}"])
            A.e(f"buffer_store_dwordx4 {v(d,4)}, v4, s[52:55], {'s6' if jj else 's92'} offen offset:{i*1024} {WT}")
    A.label(L("firstC"))
    stamp(4, 2)
    vq.q, dq.q = list(q_steady[0]), list(q_steady[1])
    def pflag():
        lab = L("pf")
        A.e(["s_xor_b32 s6, s72, 1", "s_or_b32 s6, s6, s3", "s_cmp_lg_u32 s6, 0", f"s_cbranch_scc1 {lab}", "s_mov_b64 exec, 1",
             f"buffer_store_dwordx2 v[250:251], v252, s[48:51], s101 offen {WT}", "s_mov_b64 exec, -1"])
        A.label(lab)
    mark = ("MARK", vq.total)
    for t in range(0, 8, 2):
        fss(t, A.e, czero=(t == 0), afterbar=pflag if t == pft2 else None, needbar=[mark] if t == pft2 else (), extra=oflag if t == 4 else ())
    FW = vq.need(("F", 0))
    vq.rebase(8); dq.rebase(8)
    assert covers(vq.q, q_steady[0]) and covers(dq.q, q_steady[1])
    stamp(5, 2)
    A.e(["s_mov_b32 s91, 1", f"s_mov_b32 s90, {(64-SS-8-tail)//8}", "s_cmp_lg_u32 s72, 0", f"s_cbranch_scc1 {L('floop')}"])
    A.e(FW); check_flags("P", 30, 252, "s101")
    YP = lambda jj, i: 224 + (jj * 4 + i) * 4
    YA = lambda i: (96 if xe else 80) + i * 4
    A.e("s_add_u32 s6, s92, 4096")
    for i in range(4):
        A.e([f"buffer_load_dwordx4 {v(YP(0,i),4)}, v4, s[52:55], s92 offen offset:{i*1024} {WT}",
             f"buffer_load_dwordx4 {a(YA(i),4)}, v4, s[52:55], s6 offen offset:{i*1024} {WT}"])
    A.e([f"s_mov_b32 s90, {(SS-8-tail)//8}", f"s_branch {L('floop')}"])
    A.label(L("flast"))
    stamp(6, 2)
    A.e(["s_mov_b32 s6, 0xbfb8aa3b", "s_mov_b32 s7, 0xbfb8aa3b", "s_cmp_lg_u32 s72, 0", f"s_cbranch_scc1 {L('ylast' if ylast else 'flast2')}"])
    for cb in range(8):
        y = YS(cb, 0); pc = YP(0, cb // 2) + 2 * (cb % 2); T0 = 240 if cb % 2 == 0 else 242
        T0 = 240
        A.e([f"v_lshlrev_b32 v{T0}, 16, v{pc}", f"v_and_b32 v{T0+1}, 0xffff0000, v{pc}",
             f"v_lshlrev_b32 v{T0+2}, 16, v{pc+1}", f"v_and_b32 v{T0+3}, 0xffff0000, v{pc+1}"])
        A.e([f"v_pk_add_f32 v[{y+r_}:{y+r_+1}], v[{y+r_}:{y+r_+1}], v[{T0+r_}:{T0+r_+1}]" for r_ in (0, 2)])
        A.e([f"v_pk_mul_f32 v[{T0+r_}:{T0+r_+1}], v[{y+r_}:{y+r_+1}], s[6:7]" for r_ in (0, 2)])
        A.e([f"v_exp_f32 v{T0+r_}, v{T0+r_}" for r_ in range(4)])
        A.e([f"v_pk_add_f32 v[{T0+r_}:{T0+r_+1}], v[{T0+r_}:{T0+r_+1}], 1.0 op_sel_hi:[1,0]" for r_ in (0, 2)])
        A.e([f"v_rcp_f32 v{T0+r_}, v{T0+r_}" for r_ in range(4)])
        A.e([f"v_pk_mul_f32 v[{y+r_}:{y+r_+1}], v[{y+r_}:{y+r_+1}], v[{T0+r_}:{T0+r_+1}]" for r_ in (0, 2)])
    A.label(L("flast2"))
    vq.q, dq.q = list(q_steady[0]), list(q_steady[1])
    va = []
    for cb in range(8):
        y = YS(cb, 1); pc = YA(cb // 2) + 2 * (cb % 2); T0 = 224 + 4 * (cb % 2)
        va += [(f"v_accvgpr_read_b32 v{T0+1}, a{pc}", 4), (f"v_accvgpr_read_b32 v{T0+3}, a{pc+1}", 4),
               (f"v_lshlrev_b32 v{T0}, 16, v{T0+1}", 4), (f"v_and_b32 v{T0+1}, 0xffff0000, v{T0+1}", 4),
               (f"v_lshlrev_b32 v{T0+2}, 16, v{T0+3}", 4), (f"v_and_b32 v{T0+3}, 0xffff0000, v{T0+3}", 4)]
        va += [(f"v_add_f32 v{y+r_}, v{y+r_}, v{T0+r_}", 4) for r_ in range(4)]
        va += [(f"v_mul_f32 v{T0+r_}, s7, v{y+r_}", 4) for r_ in range(4)]
        va += [(f"v_exp_f32 v{T0+r_}, v{T0+r_}", 8) for r_ in range(4)]
        va += [(f"v_add_f32 v{T0+r_}, 1.0, v{T0+r_}", 4) for r_ in range(4)]
        va += [(f"v_rcp_f32 v{T0+r_}, v{T0+r_}", 8) for r_ in range(4)]
        va += [(f"v_mul_f32 v{y+r_}, v{y+r_}, v{T0+r_}", 4) for r_ in range(4)]
    xw = lambda cb, jj: f"ds_write_b128 v2, {facc(cb,jj)} offset:{(cb*2+jj-2)*1024}"
    def ehook(m):
        return [xw(m // 8 - 2, 2 + (m % 8 - 4) // 2)] if (m >= 16 and m % 8 in (4, 6)) else None
    fin = [(["v_mov_b32 v29, 0"], f"buffer_load_dwordx2 v[30:31], v29, s[48:51], s93 offen {WT}", ("G", 0), [])]
    for t in range(0, 8, 2):
        fss(t, A.e, last=True, extra=fin if t == 4 else (), va=va, hook=ehook if (ew and t == 6) else None)
    A.c(f"left over fillers: {len(va)}")
    for x, c in va: A.e(x)
    stamp(7)
    A.e(["v_mov_b32 v22, s98", "v_mov_b32 v23, s99", f"s_add_u32 s6, s92, {G_SF}", f"s_add_u32 s7, s92, {G_SF+4096}",
         "s_cmp_lg_u32 s72, 0", f"s_cbranch_scc1 {L('xch')}"])
    s2loads = [f"buffer_load_dwordx4 {v(YP(jj,i),4)}, v4, s[52:55], s{6+jj} offen offset:{i*1024} {WT}" for jj in range(2) for i in range(4)]
    if sen: A.e(["s_mov_b32 s15, -1"] + s2loads)
    else:
        A.e(vq.need(("G", 0)))
        A.e(["v_cmp_ne_u64 vcc, s[98:99], v[30:31]", f"s_cbranch_vccnz {L('xch')}", "s_mov_b32 s91, 2"] + s2loads)
    A.label(L("xch"))
    A.e("s_nop 2")
    for cb in range(6 if ew else 0, 8):
        for jj in (2, 3):
            A.e(xw(cb, jj))
    A.e(["s_waitcnt lgkmcnt(0)", "s_barrier"])
    for jj in (2, 3):
        for cb in range(8):
            A.e(f"ds_read_b128 {facc(cb,jj)}, v3 offset:{(cb*2+jj-2)*1024}")
    A.e(["s_cmp_eq_u32 s72, 0", f"s_cbranch_scc1 {L('sepi')}"])
    for jj in range(2):
        for i in range(4):
            dst = 160 + (jj * 4 + i) * 4
            for h in range(2):
                cb = 2 * i + h
                A.e(f"s_waitcnt lgkmcnt({15 - (jj*8+cb)})")
                b = 32 + (cb * 4 + jj) * 4
                A.e([f"v_pk_add_f32 v[{b+r_}:{b+r_+1}], v[{b+r_}:{b+r_+1}], v[{b+8+r_}:{b+9+r_}]" for r_ in (0, 2)])
                A.e([f"v_cvt_pk_bf16_f32 v{dst+2*h}, v{b}, v{b+1}", f"v_cvt_pk_bf16_f32 v{dst+2*h+1}, v{b+2}, v{b+3}"])
            if sen: A.e([f"v_min_u32 v{dst+k}, -2, v{dst+k}" for k in range(4)])
            A.e(f"buffer_store_dwordx4 {v(dst,4)}, v4, s[52:55], s{6+jj} offen offset:{i*1024} {WT}")
    if sen: A.e(f"s_branch {L('fin')}")
    else:
        A.e(["s_waitcnt vmcnt(0)", "s_mov_b64 exec, 1",
             f"buffer_store_dwordx2 v[22:23], v29, s[48:51], s93 offen {WT}", "s_mov_b64 exec, -1", f"s_branch {L('fin')}"])
    A.label(L("sepi"))
    XR = lambda cb, jj: (224 if xe else 96) + (cb * 2 + jj) * 2
    if not xe:
        A.e(["v_and_b32 v1, 15, v0", "v_lshrrev_b32 v5, 5, v0", "v_xor_b32 v5, v5, v1", "v_bfe_u32 v6, v0, 4, 1", "v_lshlrev_b32 v6, 3, v6",
             "v_lshl_add_u32 v6, v1, 8, v6", "s_lshl_b32 s15, s3, 13", "s_add_u32 s15, s15, 0x10000", "v_add_u32 v6, s15, v6"])
        for cb in range(8):
            A.e([f"v_xor_b32 v7, {2*cb}, v5", "v_lshl_add_u32 v7, v7, 4, v6",
                 f"ds_read_b64 {a(XR(cb,0),2)}, v7", f"ds_read_b64 {a(XR(cb,1),2)}, v7 offset:4096"])
    if fast:
        A.e(["s_cmp_lg_u32 s91, 2", f"s_cbranch_scc1 {L('slowp')}", "s_waitcnt lgkmcnt(0)"])
        for jj in range(2):
            for i in range(4):
                o = YP(jj, i)
                for h in range(2):
                    cb = 2 * i + h
                    b = 32 + (cb * 4 + jj) * 4; y = YS(cb, jj); xa = XR(cb, jj); T0 = 8 + 8 * h
                    A.e([f"v_accvgpr_read_b32 v{T0+1}, a{xa}", f"v_accvgpr_read_b32 v{T0+3}, a{xa+1}"])
                    A.e([f"v_pk_add_f32 v[{b+r_}:{b+r_+1}], v[{b+r_}:{b+r_+1}], v[{b+8+r_}:{b+9+r_}]" for r_ in (0, 2)])
                    A.e([f"v_lshlrev_b32 v{T0}, 16, v{T0+1}", f"v_and_b32 v{T0+1}, 0xffff0000, v{T0+1}",
                         f"v_lshlrev_b32 v{T0+2}, 16, v{T0+3}", f"v_and_b32 v{T0+3}, 0xffff0000, v{T0+3}"])
                    if h == 0: A.e("s_waitcnt vmcnt(7)")
                    A.e([f"v_lshlrev_b32 v{T0+4}, 16, v{o+2*h}", f"v_and_b32 v{T0+5}, 0xffff0000, v{o+2*h}",
                         f"v_lshlrev_b32 v{T0+6}, 16, v{o+2*h+1}", f"v_and_b32 v{T0+7}, 0xffff0000, v{o+2*h+1}"])
                    A.e([f"v_pk_fma_f32 v[{b+r_}:{b+r_+1}], v[{b+r_}:{b+r_+1}], v[{y+r_}:{y+r_+1}], v[{T0+r_}:{T0+r_+1}]" for r_ in (0, 2)])
                    A.e([f"v_pk_fma_f32 v[{b+r_}:{b+r_+1}], v[{T0+4+r_}:{T0+5+r_}], v[{y+r_}:{y+r_+1}], v[{b+r_}:{b+r_+1}]" for r_ in (0, 2)])
                    A.e([f"v_cvt_pk_bf16_f32 v{o+2*h}, v{b}, v{b+1}", f"v_cvt_pk_bf16_f32 v{o+2*h+1}, v{b+2}, v{b+3}"])
                A.e(["s_nop 1", f"v_permlane32_swap_b32 v{o}, v{o+2}", f"v_permlane32_swap_b32 v{o+1}, v{o+3}", "s_nop 0",
                     f"v_permlane16_swap_b32 v{o}, v{o+2}", f"v_permlane16_swap_b32 v{o+1}, v{o+3}",
                     f"buffer_store_dwordx4 {v(o,4)}, v{27+jj}, s[68:71], s94 offen offset:{i*64}"])
        A.e(f"s_branch {L('fin')}")
        A.label(L("slowp"))
    for n in range(16):
        jj, cb = n // 8, n % 8
        b = 32 + (cb * 4 + jj) * 4; y = YS(cb, jj); xa = XR(cb, jj); T0 = 8 + 4 * (n % 2)
        if n == 0: A.e("s_waitcnt lgkmcnt(0)")
        A.e([f"v_accvgpr_read_b32 v{T0+1}, a{xa}", f"v_accvgpr_read_b32 v{T0+3}, a{xa+1}"])
        A.e([f"v_pk_add_f32 v[{b+r_}:{b+r_+1}], v[{b+r_}:{b+r_+1}], v[{b+8+r_}:{b+9+r_}]" for r_ in (0, 2)])
        A.e([f"v_lshlrev_b32 v{T0}, 16, v{T0+1}", f"v_and_b32 v{T0+1}, 0xffff0000, v{T0+1}",
             f"v_lshlrev_b32 v{T0+2}, 16, v{T0+3}", f"v_and_b32 v{T0+3}, 0xffff0000, v{T0+3}"])
        A.e([f"v_pk_fma_f32 v[{b+r_}:{b+r_+1}], v[{b+r_}:{b+r_+1}], v[{y+r_}:{y+r_+1}], v[{T0+r_}:{T0+r_+1}]" for r_ in (0, 2)])
    if sen:
        A.e(SPINB)
        A.label(L("poll"))
        A.e(["s_waitcnt vmcnt(0)", "v_max3_u32 v8, v224, v225, v226", "v_max3_u32 v9, v227, v228, v229"])
        for k in range(230, 254, 4): A.e([f"v_max3_u32 v8, v8, v{k}, v{k+1}", f"v_max3_u32 v9, v9, v{k+2}, v{k+3}"])
        A.e(["v_max3_u32 v8, v8, v254, v255", "v_max_u32 v8, v8, v9", "v_cmp_eq_u32 vcc, s15, v8", f"s_cbranch_vccz {L('have')}",
             "s_sub_u32 s12, s12, 1", f"s_cbranch_scc1 {L('have')}"] + s2loads + [f"s_branch {L('poll')}"])
    else:
        A.e(["s_cmp_eq_u32 s91, 2", f"s_cbranch_scc1 {L('have')}", SPINB])
        A.label(L("poll"))
        A.e([f"buffer_load_dwordx2 v[30:31], v29, s[48:51], s93 offen {WT}", "s_waitcnt vmcnt(0)",
             "s_sub_u32 s12, s12, 1", f"s_cbranch_scc1 {L('got')}",
             "v_cmp_ne_u64 vcc, s[98:99], v[30:31]", f"s_cbranch_vccz {L('got')}", "s_sleep 1", f"s_branch {L('poll')}"])
        A.label(L("got"))
        A.e(s2loads)
    A.label(L("have"))
    for jj in range(2):
        for i in range(4):
            o = YP(jj, i)
            if not sen: A.e("s_waitcnt vmcnt(7)")
            for h in range(2):
                cb = 2 * i + h
                b = 32 + (cb * 4 + jj) * 4; y = YS(cb, jj); T0 = 8 + 4 * h
                A.e([f"v_lshlrev_b32 v{T0}, 16, v{o+2*h}", f"v_and_b32 v{T0+1}, 0xffff0000, v{o+2*h}",
                     f"v_lshlrev_b32 v{T0+2}, 16, v{o+2*h+1}", f"v_and_b32 v{T0+3}, 0xffff0000, v{o+2*h+1}"])
                A.e([f"v_pk_fma_f32 v[{b+r_}:{b+r_+1}], v[{T0+r_}:{T0+r_+1}], v[{y+r_}:{y+r_+1}], v[{b+r_}:{b+r_+1}]" for r_ in (0, 2)])
                A.e([f"v_cvt_pk_bf16_f32 v{o+2*h}, v{b}, v{b+1}", f"v_cvt_pk_bf16_f32 v{o+2*h+1}, v{b+2}, v{b+3}"])
            A.e(["s_nop 1", f"v_permlane32_swap_b32 v{o}, v{o+2}", f"v_permlane32_swap_b32 v{o+1}, v{o+3}", "s_nop 0",
                 f"v_permlane16_swap_b32 v{o}, v{o+2}", f"v_permlane16_swap_b32 v{o+1}, v{o+3}",
                 f"buffer_store_dwordx4 {v(o,4)}, v{27+jj}, s[68:71], s94 offen offset:{i*64}"])
    A.label(L("fin"))
    if stamps:
        srd(A, 40, P_WS, 0x100000, WS_STAMP)
        A.e(["s_waitcnt vmcnt(0)", "s_memtime s[76:77]", "s_memrealtime s[78:79]", "s_waitcnt lgkmcnt(0)",
             "v_mov_b32 v8, s76", "v_mov_b32 v9, s78", "v_mov_b32 v10, s72", "s_getreg_b32 s10, hwreg(HW_REG_XCC_ID)", "v_mov_b32 v11, s10",
             "s_lshl_b32 s10, s2, 2", "s_add_u32 s10, s10, s3", "s_lshl_b32 s10, s10, 7", "v_mov_b32 v1, s10", "s_mov_b64 exec, 1"])
        A.e("buffer_store_dwordx4 v[8:11], v1, s[40:43], 0 offen offset:64")
    if dbgst:
        srd(A, 40, P_DBG, 256)
        A.e(["s_and_b32 s10, s2, 0xfb", "s_or_b32 s10, s10, s3", "s_cmp_lg_u32 s10, 0", f"s_cbranch_scc1 {L('end')}", "s_mov_b64 exec, 1",
             "v_accvgpr_read_b32 v12, a241", "s_lshl_b32 s10, s2, 3", "v_mov_b32 v1, s10"])
        for k in range(1, 8): A.e([f"v_accvgpr_read_b32 v13, a{241+2*k}", f"v_sub_u32 v{15+k}, v13, v12"])
        A.e(["v_sub_u32 v23, v9, v12", "buffer_store_dwordx4 v[16:19], v1, s[40:43], 0 offen", "buffer_store_dwordx4 v[20:23], v1, s[40:43], 0 offen offset:16"])
    A.label(L("end"))
    A.e("s_endpgm")
    if ylast:
        A.label(L("ylast"))
        vq.q, dq.q = list(q_steady[0]), list(q_steady[1])
        for t in range(0, 8, 2):
            fss(t, A.e, last=True, hook=ehook if (ew and t == 6) else None)
        stamp(7)
        A.e(["v_mov_b32 v29, 0", "v_mov_b32 v22, s98", "v_mov_b32 v23, s99", f"s_add_u32 s6, s92, {G_SF}", f"s_add_u32 s7, s92, {G_SF+4096}", f"s_branch {L('xch')}"])
    for tag, reg, addr, off in spins:
        A.label(L("spin" + tag))
        A.e(SPINB)
        A.label(L("spinl" + tag))
        A.e(["s_sleep 2", f"buffer_load_dwordx2 v[{reg}:{reg+1}], v{addr}, s[48:51], {off} offen {WT}", "s_waitcnt vmcnt(0)",
             "s_sub_u32 s12, s12, 1", f"s_cbranch_scc1 {L('ok' + tag)}",
             f"v_cmp_ne_u64 vcc, s[98:99], v[{reg}:{reg+1}]", f"s_cbranch_vccnz {L('spinl' + tag)}", f"s_branch {L('ok' + tag)}"])
    for T in rare_sites:
        A.label(L("rs%d" % T))
        A.e([f"s_call_b64 s[6:7], {L('rare%d' % (T & 1))}", f"s_branch {L('rb%d' % T)}"])
    for b in range(2):
        A.label(L("rare%d" % b))
        A.e(["s_nop 15", "s_nop 15"])
        for mu in range(2):
            S = SB(b, mu); S2 = SB(b ^ 1, mu)
            A.e(rowmax(S, VT, VT + 2))
            A.e([f"v_max_f32 v{VT}, 0, v{VT}", f"v_exp_f32 v{VT+1}, -v{VT}"])
            A.e([f"v_sub_f32 v{NM(mu)+k}, v{NM(mu)+k}, v{VT}" for k in range(16)])
            A.e([f"v_sub_f32 v{S+k}, v{S+k}, v{VT}" for k in range(16)])
            A.e([f"v_sub_f32 v{S2+k}, v{S2+k}, v{VT}" for k in range(16)])
            A.e(f"v_mul_f32 v{VL+mu}, v{VL+mu}, v{VT+1}")
            for i in range(4):
                o = (i * 2 + mu) * 16
                for k in range(16):
                    A.e([f"v_accvgpr_read_b32 v{VT+2}, a{o+k}", f"v_mul_f32 v{VT+2}, v{VT+2}, v{VT+1}", f"v_accvgpr_write_b32 a{o+k}, v{VT+2}"])
            for k in range(0, 16, 2):
                A.e([f"v_exp_f32 v{EB}, v{S+k}", f"v_exp_f32 v{EB+1}, v{S+k+1}", "s_nop 0",
                     f"v_cvt_pk_bf16_f32 v{PB(b,mu)+k//2}, v{EB}, v{EB+1}", f"v_add_f32 v{EB}, v{EB}, v{EB+1}",
                     f"v_mov_b32 v{VTS+mu}, v{EB}" if k == 0 else f"v_add_f32 v{VTS+mu}, v{VTS+mu}, v{EB}"])
        A.e(["s_nop 3", "s_setpc_b64 s[6:7]"])
    A.label(f"{name}_codeend")
    return (name, 512, 256, "(256,1,1)", "(256,1,1)", 163840)
```

```python
from common import *
import struct, math
QSCALE = struct.unpack("<I", struct.pack("<f", math.log2(math.e) / math.sqrt(128.0)))[0]
THR = 0x49800000
FL_L, FL_H, FL_O, FL_P, FL_SZ = 0x4000, 0x6000, 0x8000, 0xA000, 0xE000
G_BASE, G_SF, G_PF, G_SZ = 0x2200000, 0x600000, 0xA00000, 0x1200000
SS_UNUSED = 28
N1S, N1Y = 4, 3
WT = "sc0 sc1"
SPINN = 0x10000
SPINB = f"s_mov_b32 s12, {SPINN:#x}"

def kf(A, name="kf_kernel", stamps=0, thr=THR, vpos=(6, 10, 14, 18, 22, 26, 29, 30), barpos=3, apol=WT, pfT=0, pfG=0, cpf=3, ln=1, dbgst=0, pst=0, psleep=1, hwb=0, cap=24, dsl=6, vcap=8, ost=None, oflt=3, rotm=(1, 2), xpol=None, gdbg=0, pfs=7, pfA=2, rot0=1, vat=None, pft=3, tail=8, kmap=1, SS=None, hfT=2, barm=47, gsl=10, sp1=(2, 44), sp2=(54, 88), vmod=2, lead=0, nf=8, oft=14, oin=8, hdf=2, tlb=0, t16=1, mid1=1, fast=0, lset=1, xe=1, ew=1, sen=0, oflt2=4, pft2=2, alt=0, pka=0, ylast=0, et=0, cpos=0, hin=1):
    L = lambda s: f"{name}_{s}"
    if SS is None: SS = 32 if tail == 8 else 28
    if vat is None: vat = tail - 7
    pf0 = 4 if lset else 3
    if lset: hfT = max(hfT, 4)
    if ost is None: ost = (8, 8)[:2 - oin // 8]
    vq = Q("vmcnt", 63); dq = Q("lgkmcnt", 15, gsl)
    def stamp(i, pro=0):
        if not stamps: return
        if pst == 1:
            if pro == 0 and i == 1: i = 7
            elif not (pro == 1 or i == 0): return
        elif pst == 2:
            if pro == 0 and i == 5: i = 1
            elif pro == 0 and i == 6: i = 2
            elif not (pro == 2 or (pro == 0 and i in (0, 7))): return
        elif pst == 3:
            if pro or i != 1: return
            i = 0
        elif pro: return
        first = (i == 0 and pst != 3)
        A.e(["s_memtime s[76:77]", "s_memrealtime s[78:79]"] + (["s_load_dwordx2 s[38:39], s[0:1], 88", "v_lshrrev_b32 v1, 6, v0", "s_nop 0", "v_readfirstlane_b32 s3, v1"] if first else []) +
            ["s_waitcnt lgkmcnt(0)", "v_mov_b32 v30, s76", "v_mov_b32 v31, s78",
             "s_lshl_b32 s76, s2, 2", "s_add_u32 s76, s76, s3", "s_lshl_b32 s76, s76, 7", f"s_add_u32 s76, s76, {WS_STAMP:#x}", "v_mov_b32 v1, s76",
             "s_mov_b64 exec, 1", f"global_store_dwordx2 v1, v[30:31], s[38:39] offset:{8*i}", "s_mov_b64 exec, -1"]); dq.drain()
    A.raw(kernel_head(name))
    A.e(["s_cmp_ge_u32 s2, 256", f"s_cbranch_scc1 {L('end')}"])
    cpn = [0]
    def code_touch(vr, dst, raw=False):
        lab = L("pc%d" % cpn[0]); cpn[0] += 1
        pre = ["s_getpc_b64 s[76:77]", lab + ":", f"s_sub_u32 s76, s76, {lab}-{name}", "s_subb_u32 s77, s77, 0",
               "s_lshr_b32 s78, s2, 3", "s_lshl_b32 s78, s78, 11"] + ([f"v_and_b32 v{vr}, 0xc0, v0", f"v_lshlrev_b32 v{vr+1}, 3, v{vr}"] if raw else ["s_lshl_b32 s79, s3, 9", "s_add_u32 s78, s78, s79"]) + [
               f"v_and_b32 v{vr}, 7, v0", f"v_mul_u32_u24 v{vr}, 0x4080, v{vr}", f"v_and_b32 v{vr}, 0x10180, v{vr}"] + ([f"v_add_u32 v{vr}, v{vr+1}, v{vr}"] if raw else []) + [
               f"v_add_u32 v{vr}, s78, v{vr}", f"v_min_u32 v{vr}, {name}_codeend-{name}-4, v{vr}"]
        return (pre, f"global_load_dword {dst}, v{vr}, s[76:77]", ("C", 0), [])
    if et:
        A.e(["s_getpc_b64 s[76:77]", f"v_lshlrev_b32 v30, {et}, v0", "global_load_dword a237, v30, s[76:77]"])
    stamp(0)
    A.e(LOADARGS)
    if cpf:
        op0 = code_touch(30, "a238", raw=True); A.e(op0[0])
        if cpos == 0: A.e(op0[1])
    A.e(["v_lshrrev_b32 v1, 6, v0", "v_and_b32 v0, 63, v0", "s_nop 0", "v_readfirstlane_b32 s3, v1",
         "s_and_b32 s10, s2, 7", "s_lshr_b32 s11, s2, 3", "s_and_b32 s4, s11, 7", "s_lshr_b32 s11, s11, 3",
         "s_lshl_b32 s5, s10, 2", "s_add_u32 s5, s5, s11",
         f"s_mul_i32 s14, s11, {rotm[1]}", f"s_mul_i32 s12, s4, {rotm[0]}", "s_add_u32 s14, s14, s12"])
    if ln:
        A.e(["v_and_b32 v40, 7, v0", "v_lshrrev_b32 v41, 3, v0", "s_lshl_b32 s12, s3, 5", "v_add_u32 v41, s12, v41",
             "v_lshlrev_b32 v42, 11, v40", "v_lshl_add_u32 v42, v41, 4, v42",
             "s_lshl_b32 s12, s4, 5", "s_add_u32 s91, s12, s5", "s_lshl_b32 s12, s91, 14",
             "s_waitcnt lgkmcnt(0)"])
        srd(A, 64, P_X, 2048 * 2048)
        for i in range(4):
            A.e(f"buffer_load_dwordx4 v[{48+4*i}:{51+4*i}], v42, s[64:67], s12 offen offset:{128*i}"); vq.issue(("L", 0))
        if cpf and cpos == 1: A.e(op0[1])
        if tlb & 1:
            srd(A, 68, P_WS, 0x3000000)
            A.e(["v_lshlrev_b32 v39, 21, v0", "buffer_load_dword a237, v39, s[68:71], 0 offen"])
        srd(A, 60, P_DBG, 256)
        A.e(["v_mov_b32 v47, 0", "s_or_b32 s12, s2, s3", "s_cmp_lg_u32 s12, 0", f"s_cbranch_scc1 {L('nn')}",
             "s_memrealtime s[12:13]", "s_getreg_b32 s9, hwreg(HW_REG_XCC_ID, 0, 1)", "s_lshl_b32 s9, s9, 1", "s_or_b32 s9, s9, 1",
             "s_waitcnt lgkmcnt(0)", "s_andn2_b32 s12, s12, 2", "s_or_b32 s12, s12, s9",
              "s_or_b32 s13, s13, 0x80000000", "v_mov_b32 v38, s12", "v_mov_b32 v39, s13", "s_mov_b64 exec, 1",
             f"buffer_store_dwordx2 v[38:39], v47, s[60:63], 0 offen {WT}", "s_mov_b64 exec, -1"])
        A.label(L("nn"))
    A.e([
         "v_lshrrev_b32 v30, 4, v0", "v_and_b32 v31, 15, v0",
         "s_lshr_b32 s12, s3, 1", "s_lshl_b32 s12, s12, 1",
         "v_lshlrev_b32 v1, 2, v30", "v_or_b32 v1, s12, v1", "v_xor_b32 v31, v31, v1",
         "s_lshl_b32 s12, s3, 2", "v_add_u32 v30, s12, v30",
         "v_lshlrev_b32 v2, 13, v30", "s_lshl_b32 s12, s5, 8", "v_lshl_add_u32 v2, v31, 4, v2", "v_add_u32 v2, s12, v2",
         "v_lshrrev_b32 v1, 1, v31", "v_min_u32 v1, 6, v1", "s_and_b32 s13, s5, 1", "v_add_u32 v1, s13, v1",
         "v_cmp_eq_u32 vcc, 7, v1", "v_and_b32 v31, 1, v31", "s_nop 0", "v_cndmask_b32 v1, v1, 0, vcc",
         "v_lshl_or_b32 v1, v1, 1, v31",
         "v_mul_u32_u24 v3, 7168, v30", "s_mul_i32 s12, s5, 224", "v_add_u32 v3, s12, v3", "v_lshl_add_u32 v3, v1, 4, v3",
         "s_lshl_b32 s12, s4, 4", "s_lshl_b32 s13, s3, 2", "s_add_u32 s15, s12, s13",
         "s_lshl_b32 s12, s15, 15", "v_lshlrev_b32 v4, 4, v0", "v_add_u32 v5, s12, v4",
         "v_add_u32 v6, 0x8000, v5", "v_add_u32 v7, 0x10000, v5", "v_add_u32 v8, 0x18000, v5",
         "s_mul_i32 s95, s3, 3072", "s_add_u32 s95, s95, 16384", "s_mov_b32 s10, s95", "s_mov_b32 s72, 98304", "s_mov_b32 s11, 0", "s_mov_b32 s75, 0",
         "s_waitcnt lgkmcnt(0)"])
    srd(A, 44, P_WQ, 1024 * 4096 * 2)
    srd(A, 48, P_WG, 1024 * 3584 * 2 + 1024, -1024)
    srd(A, 52, P_WU, 1024 * 3584 * 2 + 2048, -2048)
    srd(A, 40, P_WS, SZ_XF, WS_XF)

    def acc(blk, j):
        if blk < 14: return v(32 + (blk * 4 + j) * 4, 4)
        return a(((blk - 14) * 4 + j) * 4, 4)
    Afr = lambda S, b, c, h=None: a(192 + ((22 * S + b) % 4) * 8 + c * 4, 4) if h is None else a(192 + ((22 * S + b) % 4) * 8 + c * 4 + 2 * h, 2)
    Bfr = lambda slot, j: a(128 + slot * 16 + j * 4, 4)
    if lead:
        NEXTK = ["s_sub_u32 s12, s11, s14", "s_and_b32 s12, s12, 7", f"s_cmp_lt_u32 s11, {32-lead}", "s_cselect_b32 s12, s12, 1",
                 f"s_add_u32 s13, s11, {lead}", "s_cmp_eq_u32 s12, 0", "s_cselect_b32 s12, s13, s75", "s_subb_u32 s75, s75, -1",
                 f"s_sub_u32 s13, s75, {lead}", "s_cselect_b32 s6, 1, 0", "s_sub_u32 s13, s13, s14", "s_and_b32 s13, s13, 7", "s_or_b32 s13, s13, s6",
                 "s_cmp_eq_u32 s13, 0", "s_addc_u32 s75, s75, 0",
                 "s_add_u32 s11, s11, 1", "s_lshl_b32 s6, s12, 18", "s_mul_i32 s7, s12, 229376", "s_lshl_b32 s8, s12, 10"]
    else:
        NEXTK = ([] if rot0 == 7 else ["s_cmp_lt_u32 s11, 8", f"s_cselect_b32 s13, {rot0}, 7", "s_and_b32 s13, s13, s14"]) + ["s_add_u32 s12, s11, s14" if rot0 == 7 else "s_add_u32 s12, s11, s13", "s_and_b32 s12, s12, 7", "s_and_b32 s13, s11, 0x18", "s_or_b32 s12, s12, s13",
                 "s_add_u32 s11, s11, 1", "s_lshl_b32 s6, s12, 18", "s_mul_i32 s7, s12, 229376", "s_lshl_b32 s8, s12, 10"]
    def d_ops(p, h, static=False):
        base = (p % 2) * 24576 + h * 12288 + ((p // 2) * 49152 if static else 0)
        return [((NEXTK + [f"s_mov_b32 s{88 + p % 2}, s8"] if h == 0 else []) + [f"s_add_u32 m0, s10, {base}"], "buffer_load_dwordx4 v2, s[44:47], s6 offen lds", ("D", p, h), ["s_add_u32 s6, s6, 131072"] if h == 0 else []),
                ([], "buffer_load_dwordx4 v3, s[48:51], s7 offen offset:1024 lds", ("D", p, h), []),
                ([], "buffer_load_dwordx4 v3, s[52:55], s7 offen offset:2048 lds", ("D", p, h), ["s_add_u32 s7, s7, 114688"] if h == 0 else [])]
    def x_ops(p):
        return [([], f"buffer_load_dwordx4 {Bfr(p % 4, j)}, v{5+j}, s[40:43], s{88 + p % 2} offen {apol if xpol is None else xpol}", ("X", p), []) for j in range(4)]
    def rd_ops(S, blk):
        part, cb = (1 + (blk & 1), blk >> 1) if blk < 14 else (0, blk - 14)
        reg = (9 if S % 2 == 0 else 17) + cb
        return [(f"ds_read_b64_tr_b16 {Afr(S,blk,c,h)}, v{reg} offset:{c*24576 + part*1024 + h*3072}", ("A", S, blk)) for c in range(2) for h in range(2)]
    def emit_vm(op, E, nop=False):
        pre, ins, tag, post = op
        E(pre)
        if pre and nop: E("s_nop 0")
        E(ins); vq.issue(tag); E(post)
    def kv_ops(kind, P):
        reg = 0 if kind == "K" else 65536
        sr = "s[64:67]" if kind == "K" else "s[68:71]"
        ops = []
        for i in range(4):
            ops.append(([f"s_add_u32 m0, s92, {reg + (P % 4) * 16384}", f"s_add_u32 s94, s93, {P * 16384}"] if i == 0 else [],
                        f"buffer_load_dwordx4 v{25+i if kind == 'K' else 29}, {sr}, s94 offen offset:{i*1024} lds", (kind, P), []))
        return ops
    def pf_op(k):
        return [([], f"buffer_load_dword a239, v31, {'s[72:75], s96' if k == 0 else 's[80:83], s97'} offen", ("P", 0), [f"s_add_u32 s{96+k}, s{96+k}, 1024"])]
    for op in d_ops(0, 0, True) + d_ops(0, 1, True): emit_vm(op, A.e, True)
    srd(A, 84, P_WS, FL_SZ, WS_FLAG)
    A.e(["s_lshr_b32 s12, s91, 1", "s_lshl_b32 s12, s12, 15", "s_and_b32 s13, s91, 1", "s_lshl_b32 s13, s13, 7", "s_add_u32 s90, s12, s13",
         "v_lshlrev_b32 v43, 8, v41", "v_lshl_add_u32 v43, v40, 4, v43",
         "v_lshlrev_b32 v44, 5, v40", "s_lshl_b32 s12, s3, 3", "v_add_u32 v45, s12, v44",
         "s_lshl_b32 s91, s91, 5", f"s_add_u32 s91, s91, {FL_L}"])
    A.e([f"v_mov_b32 v{i}, 0" for i in range(132, 144)])
    A.e(f"buffer_load_dwordx2 v[128:129], v47, s[60:63], 0 offen {WT}"); vq.issue(("N", 0))
    A.e([mfma32(a(i, 16), v(132, 4), v(132, 4), "0") for i in range(0, 128, 16)] + [mfma32(v(i, 16), v(132, 4), v(132, 4), "0") for i in range(144, 256, 16)])
    stamp(1, 1)
    A.e("s_memrealtime s[92:93]")
    A.e(vq.need(("L", 0)))
    stamp(2, 1)
    X0 = 64
    for i in range(16):
        A.e([f"v_lshlrev_b32 v{X0+2*i}, 16, v{48+i}", f"v_and_b32 v{X0+1+2*i}, 0xffff0000, v{48+i}"])
    def lanesum(src):
        A.e(["s_nop 1", f"v_add_f32_dpp v{src}, v{src}, v{src} row_ror:8 row_mask:0xf bank_mask:0xf",
             f"v_mov_b32 v46, v{src}", "s_nop 1", f"v_permlane16_swap_b32 v46, v{src}", f"v_add_f32 v{src}, v46, v{src}",
             f"v_mov_b32 v46, v{src}", "s_nop 1", f"v_permlane32_swap_b32 v46, v{src}", f"v_add_f32 v{src}, v46, v{src}"])
    A.e([f"v_pk_add_f32 v[32:33], v[{X0}:{X0+1}], v[{X0+2}:{X0+3}]", f"v_pk_add_f32 v[34:35], v[{X0+4}:{X0+5}], v[{X0+6}:{X0+7}]"])
    A.e([f"v_pk_add_f32 v[{32+2*(i%2)}:{33+2*(i%2)}], v[{32+2*(i%2)}:{33+2*(i%2)}], v[{X0+2*i}:{X0+2*i+1}]" for i in range(4, 16)])
    A.e(["v_pk_add_f32 v[32:33], v[32:33], v[34:35]", "v_add_f32 v32, v32, v33"])
    lanesum(32)
    A.e(["v_mul_f32 v32, 0x3b800000, v32", "v_mov_b32 v34, v32", "v_mov_b32 v35, v32"])
    for i in range(16):
        A.e(f"v_pk_add_f32 v[{96+2*i}:{97+2*i}], v[{X0+2*i}:{X0+2*i+1}], v[34:35] neg_lo:[0,1] neg_hi:[0,1]")
    A.e(["v_pk_mul_f32 v[34:35], v[96:97], v[96:97]", "v_pk_mul_f32 v[36:37], v[98:99], v[98:99]"])
    for i in range(2, 16):
        r_ = 34 + 2 * (i % 2)
        A.e(f"v_pk_fma_f32 v[{r_}:{r_+1}], v[{96+2*i}:{97+2*i}], v[{96+2*i}:{97+2*i}], v[{r_}:{r_+1}]")
    A.e(["v_pk_add_f32 v[34:35], v[34:35], v[36:37]", "v_add_f32 v33, v34, v35"])
    lanesum(33)
    A.e(["ds_write_b64 v45, v[32:33]", "s_waitcnt lgkmcnt(0)", "s_barrier",
         "ds_read_b128 v[96:99], v44", "ds_read_b128 v[100:103], v44 offset:16", "s_waitcnt lgkmcnt(0)",
         "v_add_f32 v32, v96, v98", "v_add_f32 v33, v100, v102", "v_add_f32 v34, v97, v99", "v_add_f32 v35, v101, v103",
         "v_add_f32 v32, v32, v33", "v_add_f32 v34, v34, v35", "v_mul_f32 v32, 0.25, v32" if False else "v_mul_f32 v32, 0x3e800000, v32",
         "v_sub_f32 v96, v96, v32", "v_sub_f32 v98, v98, v32", "v_sub_f32 v100, v100, v32", "v_sub_f32 v102, v102, v32",
         "v_mul_f32 v35, v96, v96", "v_fmac_f32 v35, v98, v98", "v_fmac_f32 v35, v100, v100", "v_fmac_f32 v35, v102, v102",
         "v_mul_f32 v34, 0x3a800000, v34", "v_fmac_f32 v34, 0x3e800000, v35"])
    A.e(["v_cvt_pk_bf16_f32 v34, v34, v32", "v_and_b32 v32, 0xffff0000, v34", "v_lshlrev_b32 v34, 16, v34",
         "v_add_f32 v34, 0x3727c5ac, v34", "v_cvt_pk_bf16_f32 v34, v34, v34", "v_lshlrev_b32 v34, 16, v34",
         "v_sqrt_f32 v34, v34", "v_mov_b32 v33, v32", "v_cvt_pk_bf16_f32 v34, v34, v34", "v_lshlrev_b32 v34, 16, v34",
         "v_rcp_f32 v34, v34", "s_nop 0", "v_mov_b32 v35, v34"])
    for q4 in range(4):
        for i in range(4 * q4, 4 * q4 + 4):
            x = X0 + 2 * i
            A.e([f"v_pk_add_f32 v[{x}:{x+1}], v[{x}:{x+1}], v[32:33] neg_lo:[0,1] neg_hi:[0,1]",
                 f"v_cvt_pk_bf16_f32 v{48+i}, v{x}, v{x+1}",
                 f"v_lshlrev_b32 v{x}, 16, v{48+i}", f"v_and_b32 v{x+1}, 0xffff0000, v{48+i}",
                 f"v_pk_mul_f32 v[{x}:{x+1}], v[{x}:{x+1}], v[34:35]",
                 f"v_cvt_pk_bf16_f32 v{48+i}, v{x}, v{x+1}"])
        A.e(f"buffer_store_dwordx4 v[{48+4*q4}:{51+4*q4}], v43, s[40:43], s90 offen offset:{2048*(q4%2)} {WT}"); vq.issue(("S", 0))
        if q4 == 1: A.e("s_add_u32 s90, s90, 4096")
    stamp(3, 1)
    A.e(vq.need(("N", 0)) + [SPINB, "s_sub_u32 s92, s92, 3000"])
    A.label(L("pollN"))
    A.e(["v_readfirstlane_b32 s98, v128", "v_readfirstlane_b32 s99, v129", "s_cmp_eq_u32 s99, 0", f"s_cbranch_scc1 {L('retN')}",
         "s_cmp_eq_u32 s98, 0", f"s_cbranch_scc1 {L('retN')}",
         "s_sub_u32 s13, s98, s92", "s_cmp_ge_i32 s13, 0", f"s_cbranch_scc1 {L('gotN')}",
         f"s_cmp_lt_u32 s12, {SPINN - 64:#x}", f"s_cbranch_scc1 {L('gotN')}"])
    A.label(L("retN"))
    A.e(["s_sub_u32 s12, s12, 1", f"s_cbranch_scc1 {L('gotN')}",
         f"buffer_load_dwordx2 v[128:129], v47, s[60:63], 0 offen {WT}", "s_waitcnt vmcnt(0)", f"s_branch {L('pollN')}"])
    A.label(L("gotN"))
    A.e([mfma32(v(i, 16), v(132, 4), v(132, 4), "0") for i in range(64, 128, 16)])
    A.e(vq.drain()); A.e("s_barrier")
    stamp(4, 1)
    A.e(["s_cmp_lg_u32 s3, 0", f"s_cbranch_scc1 {L('nf')}", "s_mov_b64 exec, 1",
         f"buffer_store_dwordx2 v[128:129], v47, s[84:87], s91 offen {WT}", "s_mov_b64 exec, -1"])
    A.label(L("nf"))
    for op in d_ops(1, 0, True) + d_ops(1, 1, True): emit_vm(op, A.e, True)
    A.e("s_mov_b32 s90, s88")
    for op in d_ops(2, 0, True) + d_ops(2, 1, True): emit_vm(op, A.e, True)
    if tlb & 2:
        srd(A, 68, P_OUT, 2048 * 2048)
        A.e(["v_lshlrev_b32 v1, 21, v0"] + [f"buffer_load_dword a237, v1, s[{r}:{r+3}], 0 offen offset:2048" for r in (44, 48, 52, 68)])
    A.e([mfma32(v(i, 16), v(132, 4), v(132, 4), "0") for i in (32, 48)])
    A.e(["v_lshrrev_b32 v1, 4, v0", "v_mul_u32_u24 v30, 6144, v1", "v_and_b32 v1, 1, v1",
         "v_bfe_u32 v31, v0, 2, 2", "v_lshl_add_u32 v30, v31, 8, v30", "v_lshl_or_b32 v31, v31, 1, v1",
         "v_and_b32 v1, 3, v0", "v_lshl_add_u32 v30, v1, 3, v30", "v_add_u32 v30, 0x4000, v30"])
    for cb in range(8):
        A.e([f"v_xor_b32 v1, {cb}, v31", f"v_lshl_add_u32 v{9+cb}, v1, 5, v30", f"v_add_u32 v{17+cb}, 98304, v{9+cb}"])
    srd(A, 64, P_K, 4 * 2048 * 256)
    srd(A, 68, P_V, 4 * 2048 * 256)
    srd(A, 56, P_WS, SZ_HF, WS_HF)
    srd(A, 60, P_WS, (G_BASE + G_SF + 0x400000 - WS_OF) if sen else SZ_OF, WS_OF)
    A.e(["v_lshrrev_b32 v30, 4, v0", "v_and_b32 v31, 15, v0", "v_xor_b32 v1, v31, v30"])
    for i in range(4):
        A.e([f"v_xor_b32 v{25+i}, {4*i}, v1", f"v_lshlrev_b32 v{25+i}, 4, v{25+i}", f"v_lshl_add_u32 v{25+i}, v30, 8, v{25+i}"])
    A.e(["v_lshlrev_b32 v1, 2, v30", "v_xor_b32 v1, v31, v1", "v_lshlrev_b32 v1, 4, v1", "v_lshl_add_u32 v29, v30, 8, v1",
         "s_lshr_b32 s12, s5, 3", "s_lshl_b32 s12, s12, 19", "s_lshl_b32 s92, s3, 12",
         "s_add_u32 s93, s12, s92", f"s_add_u32 s93, s93, {1536*256}",
         "s_mov_b32 s9, 7"])
    if pfG in (1, 2):
        srd(A, 72, P_WO, 4096 * 2048); srd(A, 80, P_WD, 3584 * 2048)
        A.e(["s_lshl_b32 s12, s2, 2", "s_add_u32 s12, s12, s3", "s_lshl_b32 s96, s12, 13", "s_mul_i32 s97, s12, 7168",
             f"v_and_b32 v31, {7 if pfs == 7 else 3}, v0", f"v_lshlrev_b32 v31, {pfs}, v31"])
    stamp(5, 1)
    A.e(["s_cmp_lg_u32 s3, 0", f"s_cbranch_scc1 {L('gotL')}",
         "v_and_b32 v1, 31, v0", "v_lshlrev_b32 v1, 5, v1", "s_lshl_b32 s13, s4, 10", f"s_add_u32 s13, s13, {FL_L}", SPINB])
    A.label(L("pollL"))
    A.e([f"buffer_load_dwordx2 v[128:129], v1, s[84:87], s13 offen {WT}", "s_waitcnt vmcnt(0)",
         "s_sub_u32 s12, s12, 1", f"s_cbranch_scc1 {L('gotL')}",
         "v_cmp_ne_u64 vcc, s[98:99], v[128:129]", f"s_cbranch_vccz {L('gotL')}", f"s_sleep {psleep}", f"s_branch {L('pollL')}"])
    A.label(L("gotL"))
    A.e(vq.need(("D", 1, 1))); A.e("s_barrier")
    stamp(6, 1)
    for op in x_ops(0): A.e(op[1].replace("s88 offen", "s90 offen")); vq.issue(op[2])
    for op in x_ops(1): A.e(op[1]); vq.issue(op[2])
    for op in d_ops(3, 0, True) + d_ops(3, 1, True): emit_vm(op, A.e, True)
    for blk in range(4):
        for ins, tg in rd_ops(0, blk): A.e(ins); dq.issue(tg)
    A.e([f"v_mov_b32 v{i}, 0" for i in (128, 129, 130, 131)])
    A.e(vq.need(("X", 1)))
    stamp(1)

    BARM = 151
    SLOT = ["s_add_u32 s10, s72, s95", "s_add_u32 s73, s72, 98304", ["s_cmp_ge_u32 s73, 147456", "s_cselect_b32 s74, 147456, 0"], "s_sub_u32 s73, 98304, s74",
            "s_add_u32 s72, s72, 49152", ["s_cmp_ge_u32 s72, 147456", "s_cselect_b32 s72, 0, s72"]]
    def sstep(S, E, xs=True, ds=None, after=(), last=False, va=None, va0=0):
        xo = x_ops(2 * S + 2) + x_ops(2 * S + 3) if xs else []
        do = (d_ops(2 * S + 4, 0) + d_ops(2 * S + 4, 1) + d_ops(2 * S + 5, 0) + d_ops(2 * S + 5, 1)) if ds is None else list(ds)
        c1 = [m for m in range(2, 148) if m % 4 == 2]
        px = c1[:len(xo)]; rest = c1[len(xo) + 2:]
        pd = [rest[(i * len(rest)) // len(do)] for i in range(len(do))] if do else []
        c2 = [m for m in range(BARM + 2, 176, 2)]
        sched = list(zip(px, xo)) + list(zip(pd, do)) + list(zip(c2, after))
        tailops = list(after)[len(c2):]
        misc = [] if last else list(SLOT) + [f"v_add_u32 v{(17 if S % 2 == 0 else 9) + cb}, s73, v{(17 if S % 2 == 0 else 9) + cb}" for cb in range(8)]
        pend = []; post = []; vi = 0
        pres = [list(op[0]) for _, op in sched]
        for m in range(176):
            b, j, c = m // 8, (m % 8) // 2, m % 2
            if alt & 1: c ^= j & 1
            if alt & 2 and b % 2: j = 3 - j
            if m == 0: E(vq.need(("X", 2 * S + 1)))
            if m % 8 == 0: E(dq.need(("A", S, b)))
            E(mfma16(acc(b, j), Afr(S, b, c), Bfr((2 * S + c) % 4, j)))
            if m == BARM:
                E(vq.need(("D", 2 * S + 3, 1))); E(dq.drain()); E("s_barrier")
            if m % 8 == 7:
                if b + 4 < 22: pend += rd_ops(S, b + 4)
                elif not last: pend += rd_ops(S + 1, b + 4 - 22)
            if vi < len(sched) and m == sched[vi][0]:
                E(pres[vi]);
                if pres[vi]: E("s_nop 0")
                op = sched[vi][1]
                E(op[1]); vq.issue(op[2]); post += op[3]; vi += 1
            else:
                used = 0
                if pend:
                    ins, tag = pend.pop(0); E(ins); dq.issue(tag); used += 1
                while misc and used < 2:
                    x = misc.pop(0); E(x); used += 1 if isinstance(x, str) else 2
                while post and used < 2: E(post.pop(0)); used += 1
                if vi < len(sched) and not misc and not post and vi >= len(xo) and not (sched[vi][0] > BARM and m < BARM):
                    while pres[vi] and used < 2:
                        x = pres[vi].pop(0)
                        if x.startswith("s_cmp"): x = [x, pres[vi].pop(0)]; used += 1
                        E(x); used += 1
                cyc = 4 * used
                while va and m >= va0 and cyc + va[0][1] <= 8:
                    x, c_, tg = va.pop(0); E(x); cyc += c_
                    if tg: vq.issue(tg)
        for ins, tag in pend: E(ins); dq.issue(tag)
        E(post)
        for op in tailops: emit_vm(op, E, True)
    reb = lambda q: [((t[0], t[1] - (2 if t[0] == "A" else 4)) + tuple(t[2:])) for t in q]
    for S in range(2): sstep(S, lambda x: None)
    vq.q = reb(vq.q); dq.q = reb(dq.q)
    A.raw(".p2align 6")
    A.label(L("loop"))
    for S in range(2): sstep(S, A.e)
    A.e(["s_sub_u32 s9, s9, 1", "s_cmp_lg_u32 s9, 0", f"s_cbranch_scc1 {L('loop')}"])
    vq.q = reb(vq.q); dq.q = reb(dq.q)
    if cpf >= 2: emit_vm(code_touch(30, "a238"), A.e)
    sstep(0, A.e, ds=kv_ops("K", 0) + kv_ops("V", 0) + kv_ops("V", 1) + kv_ops("V", 2))
    HP = "" if hwb else WT
    hconst = ["s_mul_i32 s6, s15, 114688", "s_mul_i32 s12, s5, 7", "s_add_u32 s12, s12, 1", "s_lshr_b32 s12, s12, 1", "s_lshl_b32 s12, s12, 10",
              "s_add_u32 s6, s6, s12",
              "s_and_b32 s13, s5, 1", "s_mov_b32 s7, 0xfffffc08", ["s_cmp_eq_u32 s13, 0", "s_cselect_b32 s7, 0xc00, s7"],
              "s_add_u32 s7, s6, s7", "s_mov_b32 s8, 0xbfb8aa3b", "s_mov_b32 s9, 0xbfb8aa3b"]
    hv = []
    if hin:
        hv = [(x, 4 if isinstance(x, str) else 8, None) for x in hconst]
        for j in range(4):
            dst = 32 + (4 + j) * 4
            for b in range(2):
                g = 32 + (2 * b * 4 + j) * 4; u = g + 16
                hv += [(f"v_mul_f32 v{g+r_}, s8, v{g+r_}", 4, None) for r_ in range(4)] + [(f"v_exp_f32 v{g+r_}, v{g+r_}", 8, None) for r_ in range(4)]
                hv += [(f"v_add_f32 v{g+r_}, 1.0, v{g+r_}", 4, None) for r_ in range(4)] + [(f"v_rcp_f32 v{g+r_}, v{g+r_}", 8, None) for r_ in range(4)]
                hv += [(f"v_mul_f32 v{g+r_}, v{g+r_}, v{u+r_}", 4, None) for r_ in range(4)]
                hv += [(f"v_cvt_pk_bf16_f32 v{dst+2*b}, v{g}, v{g+1}", 4, None), (f"v_cvt_pk_bf16_f32 v{dst+2*b+1}, v{g+2}, v{g+3}", 4, None)]
            hv += [(f"s_add_u32 s11, s6, {j*114688}", 4, None), (f"buffer_store_dwordx4 {v(dst,4)}, v4, s[56:59], s11 offen {HP}", 8, ("H", 0))]
    sstep(1, A.e, xs=False, ds=kv_ops("V", 3), after=kv_ops("K", 1) + kv_ops("K", 2) + kv_ops("K", 3), last=True, va=hv, va0=40)
    A.c(f"gate fillers left: {len(hv)}")
    for x, c_, tg in hv:
        A.e(x)
        if tg: vq.issue(tg)
    stamp(2)

    if not hin: A.e(hconst)
    def hblock(b, j, dst):
        g = 32 + ((2 * b) * 4 + j) * 4; u = g + 16
        out = []
        out += [f"v_pk_mul_f32 v[{g+r_}:{g+r_+1}], v[{g+r_}:{g+r_+1}], s[8:9]" for r_ in (0, 2)]
        out += [f"v_exp_f32 v{g+r_}, v{g+r_}" for r_ in range(4)]
        out += [f"v_pk_add_f32 v[{g+r_}:{g+r_+1}], v[{g+r_}:{g+r_+1}], 1.0 op_sel_hi:[1,0]" for r_ in (0, 2)]
        out += [f"v_rcp_f32 v{g+r_}, v{g+r_}" for r_ in range(4)]
        out += [f"v_pk_mul_f32 v[{g+r_}:{g+r_+1}], v[{g+r_}:{g+r_+1}], v[{u+r_}:{u+r_+1}]" for r_ in (0, 2)]
        out += [f"v_cvt_pk_bf16_f32 v{dst}, v{g}, v{g+1}", f"v_cvt_pk_bf16_f32 v{dst+1}, v{g+2}, v{g+3}"]
        return out
    for i in range(1 if hin else 0, 2):
        for j in range(4):
            dst = 32 + ((4 * i + 1) * 4 + j) * 4
            A.e(hblock(2 * i, j, dst)); A.e(hblock(2 * i + 1, j, dst + 2))
            A.e([f"s_add_u32 s13, s6, {j*114688}", f"buffer_store_dwordx4 {v(dst,4)}, v4, s[56:59], s13 offen offset:{i*1024} {HP}"]); vq.issue(("H", 0))
    hrest = []; hdef = []
    if not hdf:
        for j in range(4):
            dst = 32 + (9 * 4 + j) * 4
            A.e(hblock(4, j, dst) + hblock(5, j, dst + 2) + [f"s_add_u32 s13, s6, {j*114688}", f"buffer_store_dwordx4 {v(dst,4)}, v4, s[56:59], s13 offen offset:2048 {HP}"]); vq.issue(("H", 0))
            dst = 32 + (13 * 4 + j) * 4
            A.e(hblock(6, j, dst) + [f"s_add_u32 s13, s7, {j*114688}", f"buffer_store_dwordx2 {v(dst,2)}, v4, s[56:59], s13 offen {HP}"]); vq.issue(("H", 0))
    for j in range(4 if hdf else 0):
        dst = 32 + (9 * 4 + j) * 4
        if hdf == 2:
            hrest += hblock(4, j, dst) + hblock(5, j, dst + 2) + [f"s_add_u32 s13, s6, {j*114688}", f"buffer_store_dwordx4 {v(dst,4)}, v4, s[56:59], s13 offen offset:2048 {HP}"]
            continue
        hrest += hblock(4, j, dst) + hblock(5, j, dst + 2) + [f"v_accvgpr_write_b32 a{192+4*j+k}, v{dst+k}" for k in range(4)]
        hdef.append(([f"s_add_u32 s90, s14, {j*114688}"], f"buffer_store_dwordx4 {a(192+4*j,4)}, v4, s[56:59], s90 offen offset:2048 {HP}", ("H", 0), []))
    for j in range(4 if hdf else 0):
        dst = 32 + (13 * 4 + j) * 4
        if hdf == 2:
            hrest += hblock(6, j, dst) + [f"s_add_u32 s13, s7, {j*114688}", f"buffer_store_dwordx2 {v(dst,2)}, v4, s[56:59], s13 offen {HP}"]
            continue
        hrest += hblock(6, j, dst) + [f"v_accvgpr_write_b32 a{208+2*j+k}, v{dst+k}" for k in range(2)]
        hdef.append(([f"s_add_u32 s90, s4, {j*114688}"], f"buffer_store_dwordx2 {a(208+2*j,2)}, v4, s[56:59], s90 offen {HP}", ("H", 0), []))
    QF = lambda mu, t: 32 + (mu * 8 + t) * 4
    SB = lambda b, mu: 96 + (b * 2 + mu) * 16
    NM = lambda mu: 160 + mu * 16
    PB = lambda b, mu: 192 + (b * 2 + mu) * 8
    EB = 224; VL = 232; VTS = 234; VT = 236
    A.e([f"s_mov_b32 s12, {QSCALE:#x}", f"s_mov_b32 s13, {QSCALE:#x}", f"s_mov_b32 s95, {thr:#x}"])
    for t in range(8):
        for mu in range(2):
            tmp = 96 + ((t * 2 + mu) % 4) * 8
            for x in range(2):
                src = (t * 4 + 2 * mu + x) * 4
                A.e([f"v_accvgpr_read_b32 v{tmp+4*x+r_}, a{src+r_}" for r_ in range(4)])
            A.e([f"v_pk_mul_f32 v[{tmp+2*k}:{tmp+2*k+1}], v[{tmp+2*k}:{tmp+2*k+1}], s[12:13]" for k in range(4)])
            q = QF(mu, t)
            A.e([f"v_cvt_pk_bf16_f32 v{q+k}, v{tmp+2*k}, v{tmp+2*k+1}" for k in range(4)])
            if (t * 2 + mu) > 0:
                pq = QF(*prev)
                A.e([f"v_permlane16_swap_b32 v{pq}, v{pq+2}", f"v_permlane16_swap_b32 v{pq+1}, v{pq+3}"])
            prev = (mu, t)
    A.e(["v_and_b32 v30, 31, v0", "v_lshrrev_b32 v31, 5, v0", "v_and_b32 v1, 15, v0", "v_xor_b32 v1, v1, v31",
         "v_lshlrev_b32 v30, 8, v30"])
    pq = QF(*prev)
    A.e([f"v_permlane16_swap_b32 v{pq}, v{pq+2}", f"v_permlane16_swap_b32 v{pq+1}, v{pq+3}"])
    for t in range(8):
        A.e([f"v_xor_b32 v{9+t}, {2*t}, v1", f"v_lshl_add_u32 v{9+t}, v{9+t}, 4, v30"])
    A.e(["v_bfe_u32 v1, v0, 2, 2", "v_lshlrev_b32 v30, 10, v31", "v_lshl_add_u32 v30, v1, 8, v30",
         "v_bfe_u32 v22, v0, 4, 1", "v_lshl_add_u32 v30, v22, 5, v30", "v_and_b32 v23, 3, v0", "v_lshl_add_u32 v30, v23, 3, v30",
         "v_add_u32 v30, 0x10000, v30"])
    for i in range(4):
        A.e([f"v_xor_b32 v23, {i}, v1", f"v_lshl_add_u32 v{17+i}, v23, 6, v30"])
    A.e(["v_lshlrev_b32 v21, 17, v22", "v_lshl_add_u32 v21, v31, 8, v21", "v_and_b32 v1, 15, v0", "v_lshl_add_u32 v21, v1, 4, v21"])
    Kf = lambda t: a(128 + t * 4, 4)
    Vf = lambda i, tp, h=None: a(160 + (i * 2 + tp) * 4, 4) if h is None else a(160 + (i * 2 + tp) * 4 + 2 * h, 2)
    Oacc = lambda i, mu: a((i * 2 + mu) * 16, 16)
    def k_reads(T): return [(f"ds_read_b128 {Kf(t)}, v{9+t} offset:{(T % 8) * 8192}", ("K", T, t)) for t in range(8)]
    def v_reads(T):
        return [(f"ds_read_b64_tr_b16 {Vf(i,tp,h)}, v{17+i} offset:{(T % 8) * 8192 + tp * 4096 + h * 2048}", ("V", T, i, tp))
                for i in range(4) for tp in range(2) for h in range(2)]
    def qk(T, c0):
        return [(mfma32(v(SB(T & 1, mu), 16), Kf(t), v(QF(mu, t), 4), (c0(mu) if t == 0 else None)), ("K", T, t)) for t in range(8) for mu in range(2)]
    def pv(T):
        return [(mfma32(Oacc(i, mu), Vf(i, tp), v(PB(T & 1, mu) + 4 * tp, 4), ("0" if (T == 0 and tp == 0) else None)), ("V", T, i, tp))
                for i in range(4) for tp in range(2) for mu in range(2)]
    A.e(vq.need(("K", 3))); A.e("s_barrier")
    dq.slack = 15
    for ins, tag in k_reads(0): A.e(ins); dq.issue(tag)
    A.e(hrest[:12]); hrest = hrest[12:]
    for ins, tag in qk(0, lambda mu: "0"):
        A.e(dq.need(tag, 4)); A.e(ins); A.e(hrest[:4]); hrest = hrest[4:]
    for ins, tag in k_reads(1): A.e(ins); dq.issue(tag)
    A.e(hrest)
    if hdf == 2:
        for _ in range(8): vq.issue(("H", 0))
    B = Asm()
    B.e((["s_and_b32 s12, s2, 7", "s_lshr_b32 s72, s12, 2", "s_and_b32 s13, s12, 1", "s_lshl_b32 s73, s4, 1", "s_add_u32 s73, s73, s13",
         "s_bfe_u32 s13, s12, 0x10001"] if kmap == 0 else
        ["s_lshr_b32 s72, s98, 1", "s_xor_b32 s72, s72, s2", "s_and_b32 s72, s72, 1", "s_bfe_u32 s13, s2, 0x10001", "s_lshl_b32 s73, s4, 1", "s_add_u32 s73, s73, s13",
         "s_bfe_u32 s13, s2, 0x10002"]) + ["s_lshl_b32 s13, s13, 2", "s_lshr_b32 s74, s2, 6", "s_add_u32 s74, s74, s13",
         "s_lshr_b32 s12, s3, 1", "s_and_b32 s13, s3, 1",
         "s_cmp_eq_u32 s72, 0",
         f"s_cselect_b32 s8, {8*N1S}, {8*N1Y}", f"s_cselect_b32 s9, 0, {16*N1S}", "s_mul_i32 s8, s8, s12", "s_add_u32 s8, s8, s9",
         "s_cmp_eq_u32 s72, 0",
         f"s_cselect_b32 s75, {SS}, {64-SS}", f"s_cselect_b32 s96, 0, {2*SS}", "s_mul_i32 s75, s75, s12", "s_add_u32 s75, s75, s96",
         "s_lshl_b32 s9, s8, 10", "s_lshl_b32 s8, s8, 16",
         "s_lshl_b32 s96, s75, 10", "s_lshl_b32 s75, s75, 16",
         "s_lshl_b32 s13, s13, 12",
         "s_lshl_b32 s10, s12, 17", "s_add_u32 s10, s10, s13",
         "s_lshl_b32 s11, s12, 16", "s_add_u32 s11, s11, 0x8000", "s_add_u32 s11, s11, s13",
         "v_lshrrev_b32 v30, 4, v0", "v_and_b32 v31, 15, v0", "v_lshlrev_b32 v1, 2, v30", "v_xor_b32 v31, v31, v1",
         "s_lshl_b32 s13, s13, 3", "s_lshl_b32 s97, s74, 8", "s_add_u32 s97, s97, s13",
         "v_lshlrev_b32 v30, 11, v30", "v_add_u32 v30, s97, v30",
         "v_lshl_add_u32 v246, v31, 4, v30", "v_xor_b32 v31, 2, v31", "v_lshl_add_u32 v247, v31, 4, v30", "v_add_u32 v247, 7168, v247",
         "v_add_u32 v248, 14336, v246", "v_add_u32 v249, 14336, v247", "v_mov_b32 v250, s98", "v_mov_b32 v251, s99", "v_mov_b32 v252, 0",
         "s_lshl_b32 s97, s73, 3", "s_and_b32 s13, s3, 1", "s_lshl_b32 s13, s13, 2", "s_add_u32 s97, s97, s13", "s_lshl_b32 s12, s12, 1"])
    for jj in range(4):
        B.e([f"s_xor_b32 s13, s12, {jj}", "s_add_u32 s13, s13, s97", "s_mul_i32 s90, s13, 114688", f"v_add_u32 v{5+jj}, s90, v4",
             "s_lshl_b32 s90, s13, 17", f"v_add_u32 v{242+jj}, s90, v4"])
    B.e(["v_lshlrev_b32 v24, 5, v0", "v_and_b32 v24, 0x3e0, v24",
         "s_lshl_b32 s12, s4, 10", f"s_add_u32 s91, s12, {FL_H}", f"s_add_u32 s97, s12, {FL_O}",
         "s_lshl_b32 s13, s5, 5", "s_add_u32 s88, s91, s13", "s_add_u32 s89, s97, s13"])
    srd(B, 48, P_WS, FL_SZ, WS_FLAG)
    srd(B, 44, P_WD, 3584 * 2048)
    srd(B, 40, P_WS, SZ_HF, WS_HF)
    for i in range(8):
        B.e([f"s_add_u32 s13, s14, {i}", "s_and_b32 s13, s13, 7", f"s_lshl_b32 s{80+i}, s13, 10"])
    if xe:
        srd(B, 56, P_X, 2048 * 2048)
        B.e(["s_lshl_b32 s90, s73, 7", "s_and_b32 s12, s3, 1", "s_lshl_b32 s12, s12, 6", "s_add_u32 s90, s90, s12",
             "s_lshr_b32 s12, s3, 1", "s_lshl_b32 s12, s12, 5", "s_add_u32 s90, s90, s12",
             "s_lshl_b32 s90, s90, 11", "s_lshl_b32 s12, s74, 8", "s_add_u32 s90, s90, s12",
             "s_cmp_eq_u32 s72, 0", "s_cselect_b32 s90, s90, 0x7fff0000",
             "s_lshl_b32 s4, s3, 13", "s_add_u32 s4, s4, 0x20000", "s_add_u32 s14, s90, 0x8000",
             "v_lshrrev_b32 v30, 4, v0", "v_and_b32 v1, 15, v0", "v_xor_b32 v1, v1, v30", "v_lshlrev_b32 v30, 11, v30"])
        for i, r_ in ((1, 253), (2, 254), (3, 255), (0, 1)):
            B.e([f"v_xor_b32 v{r_}, {4*i}, v1", f"v_lshl_add_u32 v{r_}, v{r_}, 4, v30"] + ([f"v_add_u32 v{r_}, {7168*i}, v{r_}"] if i else []))
    late = []
    for l_ in [x.strip() for x in B.lines]:
        if l_.startswith(("s_cselect", "s_addc", "s_subb")): late[-1] = (late[-1][0] + [l_], late[-1][1] + 4)
        else: late.append(([l_], 4))
    if not lset:
        for x, c in late: A.e(x)
        late = []
    WV = 246
    def w_ops(t, half=False):
        slot = t % 8
        ops = []
        rot_ = [f"s_and_b32 s12, s{80+slot}, 0xc00", "s_lshl_b32 s12, s12, 6"] if half else [f"s_lshl_b32 s12, s{80+slot}, 6"]
        for i in range(4):
            ops.append(([f"s_add_u32 m0, s{10 if slot < 4 else 11}, {(slot%4)*8192}"] + rot_ + ["s_add_u32 s12, s12, s8"] if i == 0 else [],
                        f"buffer_load_dwordx4 v{WV+i}, s[44:47], s12 offen offset:{i*1024} lds", ("W", t),
                        ["s_add_u32 s8, s8, 0x80000"] if (i == 3 and slot == 7) else []))
        return ops
    BR = [192, 208, 0, 16, 32, 48, 64, 80] if xe else [192, 208, 224, 0, 16, 32, 48, 64]
    facc = lambda cb, jj: v(32 + (cb * 4 + jj) * 4, 4)
    FA = lambda cb, c, h=None: a(128 + (c * 8 + cb) * 4, 4) if h is None else a(128 + (c * 8 + cb) * 4 + 2 * h, 2)
    FB = lambda slot, jj: a(BR[slot] + jj * 4, 4)
    def a_ops(t, half=False):
        slot = t % 8
        return [(([f"s_and_b32 s13, s{80+slot}, 0xc00", "s_add_u32 s13, s13, s9"] if half else [f"s_add_u32 s13, s{80+slot}, s9"]) if jj == 0 else [],
                 f"buffer_load_dwordx4 {FB(slot,jj)}, v{5+jj}, s[40:43], s13 offen {apol}", ("X", t),
                 ["s_add_u32 s9, s9, 0x2000"] if (jj == 3 and slot == 7) else []) for jj in range(4)]
    spins = []
    def check_flags(tag, reg, addr, off):
        A.e([f"v_cmp_ne_u64 vcc, s[98:99], v[{reg}:{reg+1}]", f"s_cbranch_vccnz {L('spin' + tag)}"])
        A.label(L("ok" + tag))
        spins.append((tag, reg, addr, off))

    if hdf == 1: A.e(["s_mov_b32 s14, s6", "s_mov_b32 s4, s7"]); assert not lset
    A.e(["v_mov_b32 v232, 0", "v_mov_b32 v233, 0"] + (["s_nop 2"] if (lset and not hdf) else []))
    def rowmax(S, dst, tmp):
        out = [f"v_max3_f32 v{dst}, v{S}, v{S+1}, v{S+2}"]
        for k in range(3, 15, 2): out.append(f"v_max3_f32 v{dst}, v{dst}, v{S+k}, v{S+k+1}")
        out += [f"v_max_f32 v{dst}, v{dst}, v{S+15}", f"v_mov_b32 v{tmp}, v{dst}", "s_nop 1",
                f"v_permlane32_swap_b32 v{tmp}, v{dst}", f"v_max_f32 v{dst}, v{dst}, v{tmp}"]
        return out
    for mu in range(2):
        A.e(rowmax(SB(0, mu), VT + mu, VT + 2))
        A.e([f"v_sub_f32 v{NM(mu)+k}, 0, v{VT+mu}" for k in range(16)])
        A.e([f"v_sub_f32 v{SB(0,mu)+k}, v{SB(0,mu)+k}, v{VT+mu}" for k in range(16)])
    def sm(T):
        b = T & 1
        out = []
        def ex(n): return (f"v_exp_f32 v{EB + n % 8}, v{SB(b, n // 16) + n % 16}", 8)
        def fin(n):
            mu, r_ = n // 16, n % 16; e = EB + n % 8; o = []
            if pka:
                if r_ % 2 == 1:
                    P_ = VT + 2 + 2 * mu
                    if r_ == 3: o.append((f"v_pk_add_f32 v[{P_}:{P_+1}], v[{EB + (n-3) % 8}:{EB + (n-3) % 8 + 1}], v[{e-1}:{e}]", 8))
                    elif r_ > 3: o.append((f"v_pk_add_f32 v[{P_}:{P_+1}], v[{P_}:{P_+1}], v[{e-1}:{e}]", 8))
                    o.append((f"v_cvt_pk_bf16_f32 v{PB(b,mu) + r_//2}, v{e-1}, v{e}", 5))
                    if r_ == 15: o.append((f"v_add_f32 v{VTS+mu}, v{P_}, v{P_+1}", 4))
                return o
            if r_ == 1: o.append((f"v_add_f32 v{VTS+mu}, v{EB + (n-1) % 8}, v{e}", 4))
            elif r_ > 1: o.append((f"v_add_f32 v{VTS+mu}, v{VTS+mu}, v{e}", 4))
            if r_ % 2 == 1: o.append((f"v_cvt_pk_bf16_f32 v{PB(b,mu) + r_//2}, v{EB + (n-1) % 8}, v{e}", 5))
            return o
        out.append(ex(0)); out.append(ex(1))
        for n in range(2, 32):
            out.append(ex(n)); out += fin(n - 2)
        out += fin(30) + fin(31)
        out += [(f"v_max_f32 v{VT}, v{VTS}, v{VTS+1}", 4), (f"v_cmp_nge_f32 vcc, s95, v{VT}", 4)]
        return out
    stamp(3)
    def flag_store(off_sreg):
        lab = L("fl%d" % A.nlabel); A.nlabel += 1
        A.e(["s_cmp_lg_u32 s3, 0", f"s_cbranch_scc1 {lab}", "s_mov_b64 exec, 1",
             f"buffer_store_dwordx2 v[250:251], v252, s[48:51], {off_sreg} offen {WT}", "s_mov_b64 exec, -1"])
        A.label(lab)
    endsetup = ["s_lshl_b32 s6, s15, 17", "s_lshl_b32 s90, s5, 12", "s_add_u32 s6, s6, s90", "s_add_u32 s7, s6, 0x40000",
                f"v_mov_b32 v{VT}, v{VL}", f"v_mov_b32 v{VT+1}, v{VL+1}", "v_mov_b32 v29, v21", "v_mov_b32 v253, v24",
                f"v_permlane32_swap_b32 v{VT}, v{VL}", f"v_permlane32_swap_b32 v{VT+1}, v{VL+1}",
                f"v_add_f32 v{VT}, v{VT}, v{VL}", f"v_add_f32 v{VT+1}, v{VT+1}, v{VL+1}",
                f"v_rcp_f32 v{VT+2}, v{VT}", f"v_rcp_f32 v{VT+4}, v{VT+1}",
                "v_lshrrev_b32 v1, 4, v0", f"v_mov_b32 v{VT+3}, v{VT+2}", f"v_mov_b32 v{VT+5}, v{VT+4}",
                "v_lshlrev_b32 v30, 10, v1", "v_and_b32 v1, 1, v1",
                "v_bfe_u32 v31, v0, 2, 2", "v_lshl_add_u32 v30, v31, 8, v30", "v_lshl_or_b32 v31, v31, 1, v1",
                "v_and_b32 v1, 3, v0", "v_lshl_add_u32 v30, v1, 3, v30",
                "s_lshr_b32 s91, s3, 1", "s_lshl_b32 s90, s91, 17", "s_lshl_b32 s91, s91, 16", "s_add_u32 s91, s91, 0x8000"]
    for cb in range(8):
        endsetup += [f"v_xor_b32 v1, {cb}, v31", "v_lshl_add_u32 v1, v1, 5, v30", f"v_add_u32 v{9+cb}, s90, v1", f"v_add_u32 v{17+cb}, s91, v1"]
    rare_sites = []
    for T in range(17):
        mf = (qk(T + 1, lambda mu: v(NM(mu), 16)) if T + 1 <= 15 else []) + (pv(T - 1) if T >= 1 else [])
        nq = 16 if T + 1 <= 15 else 0
        va = ([(f"v_add_f32 v{VL}, v{VL}, v{VTS}", 4), (f"v_add_f32 v{VL+1}, v{VL+1}, v{VTS+1}", 4)] if T >= 1 else []) + (sm(T) if T <= 15 else [])
        rdv = v_reads(T - 1) if T >= 1 else []
        rdk = k_reads(T + 2) if T + 2 <= 15 else []
        vm = []
        if T % 2 == 0 and T <= 14:
            w = []
            if T == hfT: w += vq.need(("H", 0))
            if T >= 6: w += vq.need(("K", (T + 2) // 2))
            if T >= 8: w += vq.need(("V", T // 2))
            A.e(w[-1:]); A.e(dq.drain()); A.e("s_barrier")
            if T == hfT:
                if hwb:
                    lab = L("wb")
                    A.e(["s_cmp_lg_u32 s3, 0", f"s_cbranch_scc1 {lab}", "buffer_wbl2 sc1"]); A.label(lab)
                else: flag_store("s88")
            if T == 8 and hwb: flag_store("s88")
            if T <= 6: vm += kv_ops("K", T // 2 + 4)
            if 4 <= T <= 10: vm += kv_ops("V", T // 2 + 2)
            if T == 12: vm += w_ops(0) + w_ops(1)
            if T == 14:
                A.e(vq.need(("F", 0))); check_flags("H", 22, 24, "s91")
                vm += a_ops(0) + a_ops(1)
        if pfA and pf0 <= T <= pf0 + 7:
            pre = []
            if T == pf0:
                pre = [f"s_mov_b32 s52, s{P_WO}", f"s_and_b32 s53, s{P_WO+1}, 0xffff", f"s_mov_b32 s54, {4096*2048:#x}",
                       "s_lshl_b32 s12, s2, 2", "s_add_u32 s12, s12, s3", "s_lshl_b32 s100, s12, 13", "s_mul_i32 s101, s12, 7168",
                       "v_and_b32 v2, 7, v0", "v_lshlrev_b32 v2, 7, v2", "v_add_u32 v3, 4096, v2"]
            k = T - pf0
            if k < 7: vm += [(pre, f"buffer_load_dword v31, v{2 if k < 4 else 3}, s[44:47], s101 offen offset:{(k % 4) * 1024}", ("P", 0), [])]
            if pfA == 2: vm += [([], f"buffer_load_dword v31, v{2 if k < 4 else 3}, s[52:55], s100 offen offset:{(k % 4) * 1024}", ("P", 0), [])]
        if xe and 5 <= T <= 8:
            hh, i0 = (T - 5) // 2, 2 * ((T - 5) % 2)
            for i in (i0, i0 + 1):
                vm += [([f"s_add_u32 m0, s4, {4096*hh}"] if i == i0 else [],
                        f"buffer_load_dwordx4 v{(1, 253, 254, 255)[i]}, s[56:59], {'s14' if hh else 's90'} offen offset:{i*1024} lds", ("R", 0), [])]
        if sen and 5 <= T <= 10:
            ks = {5: (0,), 6: (1,), 7: (2, 3), 8: (4,), 9: (5, 6), 10: (7,)}[T]
            for k in ks:
                pre = []
                if k == 0:
                    pre = ["s_lshl_b32 s12, s73, 3", "s_add_u32 s12, s12, s74", "s_lshl_b32 s12, s12, 2", "s_add_u32 s12, s12, s3", "s_lshl_b32 s12, s12, 13",
                           f"s_add_u32 s88, s12, {G_BASE + G_SF - WS_OF:#x}", ["s_cmp_eq_u32 s72, 0", "s_cselect_b32 s88, 0x7fff0000, s88"]] + \
                          [f"v_accvgpr_write_b32 a{252+i}, -1" for i in range(4)]
                if k == 4: pre = ["s_add_u32 s88, s88, 4096"]
                vm += [(pre, f"buffer_store_dwordx4 a[252:255], v4, s[60:63], s88 offen offset:{(k%4)*1024} {WT}", ("E", 0), [])]
        if xe and T == 11:
            A.e(vq.need(("R", 0)))
            xr_ = ["v_and_b32 v1, 15, v0", "v_lshrrev_b32 v253, 5, v0", "v_xor_b32 v253, v253, v1", "v_bfe_u32 v254, v0, 4, 1", "v_lshlrev_b32 v254, 3, v254",
                   "v_lshl_add_u32 v254, v1, 8, v254", "v_add_u32 v254, s4, v254"]
            vm += [([], x, None, []) for x in xr_]
            for cb in range(8):
                vm += [([], f"v_xor_b32 v30, {2*cb}, v253", None, []), ([], "v_lshl_add_u32 v30, v30, 4, v254", None, []),
                       ([], f"ds_read_b64 {a(224+4*cb,2)}, v30", "DS", []), ([], f"ds_read_b64 {a(226+4*cb,2)}, v30 offset:4096", "DS", [])]
        if T == 9 and cpf >= 3: emit_vm(code_touch(30, "v31"), A.e)
        if T == 12: vm += [([], f"buffer_load_dwordx2 v[22:23], v24, s[48:51], s91 offen {WT}", ("F", 0), [])]
        if T == 13: vm += w_ops(2) + w_ops(3)
        if T < 4: vm += hdef[2 * T: 2 * T + 2]
        if T == 15 and not xe: vm += a_ops(2)
        if late and 1 <= T <= 3:
            k_ = -(-len(late) // (4 - T)); ch = late[:k_]; late = late[k_:]
            nv = []; st_ = max(1, len(va) // len(ch))
            for i_, it_ in enumerate(va[:-2]):
                nv.append(it_)
                if ch and i_ % st_ == st_ - 1 and not it_[0].startswith("v_exp"): pass
                if ch and i_ % st_ == st_ - 1: nv.append(ch.pop(0))
            va = nv + ch + va[-2:]
        roll = v_reads(T) if (t16 and T in (14, 15)) else []
        if t16 and T >= 15: rdv = []
        if t16 and T == 16:
            A.e(dq.drain()); A.e("s_barrier")
            vm += w_ops(4) + w_ops(5) + w_ops(6) + w_ops(7)
            va += [(x, 4) for x in endsetup]
        if nq == 0:
            for ins, tag in rdv: A.e(ins); dq.issue(tag)
            rdv = []
        n = len(mf)
        vml = []
        for op in vm:
            vml += [(x, 4 if isinstance(x, str) else 4 * len(x), None) for x in op[0]] + ([("s_nop 0", 4, None)] if op[0] else []) + [(op[1], 8 if isinstance(op[2], tuple) else 4, op[2])] + [(x, 4, None) for x in op[3]]
        tot = sum(c for _, c in va) + 4 * (len(rdv) + len(rdk) + len(roll)) + sum(c for _, c, _ in vml)
        done = 0
        for m, (ins, tag) in enumerate(mf):
            w = dq.need(tag, dsl); A.e(w); A.e(ins)
            used = 4 * len(w)
            budget = max(cap, -(-(tot - done) // (n - m)) + 3) if m < n - 1 else 10 ** 6
            target = (tot * (m + 1)) // n + 6
            if roll and m >= nq and (m - nq) % 2 == 1: rdk += roll[:2]; roll = roll[2:]
            rd = rdv if (m < nq and rdv) else (rdk if (m >= nq and rdk) else None)
            if rd:
                ri, rt = rd.pop(0); A.e(ri); dq.issue(rt); used += 4; done += 4
                if rd is rdv and len(rd) > (nq - 3 - m):
                    ri, rt = rd.pop(0); A.e(ri); dq.issue(rt); used += 4; done += 4
            elif vml:
                x, c, tg = vml.pop(0); A.e(x); used += c; done += c
                if tg: (dq.issue(('XR', 0)) if tg == 'DS' else vq.issue(tg))
                while vml and c == 4 and used < 12:
                    x, c, tg = vml.pop(0); A.e(x); used += c; done += c
                    if tg: (dq.issue(('XR', 0)) if tg == 'DS' else vq.issue(tg))
            while va and used + va[0][1] <= budget and (done < target or m == n - 1):
                x, c = va.pop(0); A.e(x); used += c; done += c
        assert not rdv
        for ins, tag in rdk: A.e(ins); dq.issue(tag)
        for x, c, tg in vml:
            A.e(x)
            if tg: (dq.issue(('XR', 0)) if tg == 'DS' else vq.issue(tg))
        for x, c in va: A.e(x)
        if T <= 15:
            A.e([f"s_cbranch_vccnz {L('rs%d' % T)}"])
            A.label(L("rb%d" % T))
            rare_sites.append(T)
    stamp(4)
    if not t16:
        A.e("s_barrier")
        for t in range(4, 7):
            for op in w_ops(t): emit_vm(op, A.e, True)
        A.e(endsetup)
    def frd(t, cb):
        out = []
        for c in range(2):
            slot = (t + c) % 8
            reg = (9 if slot < 4 else 17) + cb; off = (slot % 4) * 8192
            out += [(f"ds_read_b64_tr_b16 {FA(cb,c,0)}, v{reg} offset:{off}", ("A", t, cb)),
                    (f"ds_read_b64_tr_b16 {FA(cb,c,1)}, v{reg} offset:{off+4096}", ("A", t, cb))]
        return out
    dq.slack = 8
    ostores = []
    cnt = 0
    if oin:
        A.e([f"v_accvgpr_read_b32 v{96+k}, a{k}" for k in range(64)])
        for t in (range(2, 6) if xe else range(3, 7)):
            for op in a_ops(t): emit_vm(op, A.e)
        A.e(vq.need(("W", 3))); A.e("s_barrier")
        for cb in range(8):
            for ins, tag in frd(0, cb): A.e(ins); dq.issue(tag)
    for i in range(4):
        for mu in range(2):
            tmp = 96 + (cnt % 4) * 16; dst = 160 + cnt * 8; cnt += 1
            src = (i * 2 + mu) * 16
            if not (oin and cnt <= 4): A.e([f"v_accvgpr_read_b32 v{tmp+k}, a{src+k}" for k in range(16)])
            A.e([f"v_pk_mul_f32 v[{tmp+2*k}:{tmp+2*k+1}], v[{tmp+2*k}:{tmp+2*k+1}], v[{VT+2+2*mu}:{VT+3+2*mu}]" for k in range(8)])
            for s_ in range(2):
                for jj, j in enumerate((s_, s_ + 2)):
                    A.e([f"v_cvt_pk_bf16_f32 v{dst+4*s_+2*jj}, v{tmp+4*j}, v{tmp+4*j+1}", f"v_cvt_pk_bf16_f32 v{dst+4*s_+2*jj+1}, v{tmp+4*j+2}, v{tmp+4*j+3}"])
                ostores.append(([], f"buffer_store_dwordx4 {v(dst+4*s_,4)}, v29, s[60:63], s{6+mu} offen offset:{i*1024+s_*512} {WT}", ("O", 0), []))
                if oin and len(ostores) <= oin: emit_vm(ostores[-1], A.e)
            if not oin and cnt in (1, 2, 3, 4):
                for op in a_ops(2 + cnt): emit_vm(op, A.e)
            if not oin and cnt == 5:
                A.e(vq.need(("W", 3))); A.e("s_barrier")
                for cb in range(8):
                    for ins, tag in frd(0, cb): A.e(ins); dq.issue(tag)
    ostores = ostores[oin:]
    srd(A, 52, P_WS, G_SZ, G_BASE)
    srd(A, 64, P_X, 2048 * 2048)
    srd(A, 68, P_OUT, 2048 * 2048)
    A.e(["s_cmp_eq_u32 s72, 0",
         f"s_cselect_b32 s90, {N1S-nf//8}, {N1Y-nf//8}", f"s_cselect_b32 s95, {N1S-1-nf//8}, {N1Y-1-nf//8}", "s_mov_b32 s91, 0",
         "s_lshl_b32 s12, s73, 3", "s_add_u32 s12, s12, s74",
         "s_lshl_b32 s92, s12, 2", "s_add_u32 s92, s92, s3",
         "s_lshl_b32 s92, s92, 13",
         "s_lshl_b32 s93, s12, 7", f"s_add_u32 s101, s93, {FL_P}", "s_lshl_b32 s12, s3, 5", "s_add_u32 s93, s93, s12",
         "s_lshl_b32 s94, s73, 7", "s_and_b32 s12, s3, 1", "s_lshl_b32 s12, s12, 6", "s_add_u32 s94, s94, s12",
         "s_lshr_b32 s12, s3, 1", "s_lshl_b32 s12, s12, 5", "s_add_u32 s94, s94, s12",
         "s_lshl_b32 s94, s94, 11", "s_lshl_b32 s12, s74, 8", "s_add_u32 s94, s94, s12",
         "v_and_b32 v1, 15, v0", "v_lshlrev_b32 v1, 11, v1", "v_lshrrev_b32 v30, 4, v0",
         "v_lshl_add_u32 v25, v30, 3, v1", "v_add_u32 v26, 0x8000, v25",
         "v_lshl_add_u32 v27, v30, 4, v1", "v_add_u32 v28, 0x8000, v27",
         "s_lshl_b32 s12, s3, 14", "v_add_u32 v2, s12, v4", "s_xor_b32 s12, s12, 0x8000", "v_add_u32 v3, s12, v4",
         "s_lshl_b32 s12, s3, 13", "s_add_u32 s12, s12, 0x10000", "v_add_u32 v254, s12, v4", "s_xor_b32 s12, s12, 0x4000", "v_add_u32 v255, s12, v4"])
    stamp(5)
    VP = [m for m in range(64) if m % 8 in (3, 5)]
    XP = [m for m in range(64) if m % 8 in (4, 6)]
    FBAR = 7
    def fss(t, E, last=False, extra=(), czero=False, afterbar=None, needbar=(), va=None, hook=None):
        if not last: vops = a_ops(t + 6) + a_ops(t + 7) + w_ops(t + 8) + w_ops(t + 9)
        else: vops = a_ops(6) + a_ops(7) if t == 0 else []
        sched = sorted(list(zip(VP, vops)) + list(zip(XP, extra)), key=lambda x: x[0])
        assert len(extra) <= len(XP)
        doread = not (last and t == 6)
        pend = []; vi = 0; post = []
        pres = [list(op[0]) for _, op in sched]
        for m in range(64):
            cb, jj, c = m // 8, (m % 8) // 2, m % 2
            if alt & 1: c ^= jj & 1
            if alt & 2 and cb % 2: jj = 3 - jj
            if m == 0: E(vq.need(("X", t + 1)))
            if m % 8 == 0: E(dq.need(("A", t, cb)))
            E(mfma16(facc(cb, jj), FA(cb, c), FB((t + c) % 8, jj), "0" if (czero and m % 2 == 0) else None))
            if m == FBAR:
                w = vq.need(("W", t + 3))
                for tg in needbar: w += vq.need(tg)
                E(w[-1:]); E(dq.drain()); E("s_barrier")
                if afterbar: afterbar()
            if m % 8 == 7 and doread: pend += frd(t + 2, cb)
            if hook and hook(m): E(hook(m)); continue
            if vi < len(sched) and m == sched[vi][0]:
                assert not pres[vi], (t, m, pres[vi])
                op = sched[vi][1]
                E(op[1]); vq.issue(op[2]); post += op[3]; vi += 1
            else:
                used = 0
                if pend:
                    ins, tag = pend.pop(0); E(ins); dq.issue(tag); used += 1
                if post and used < 2: E(post.pop(0)); used += 1
                k = next((k for k in range(vi, len(sched)) if pres[k]), None)
                if k is not None:
                    busy = any((" lds" in sched[k2][1][1] and " lds" in sched[k][1][1]) or (" s13 " in sched[k2][1][1] and " s13 " in sched[k][1][1]) for k2 in range(vi, k))
                    while not busy and not post and pres[k] and used < 2: E(pres[k].pop(0)); used += 1
                cyc = 4 * used
                while va and cyc + va[0][1] <= vcap:
                    x, c_ = va.pop(0); E(x); cyc += c_
        for ins, tag in pend: E(ins); dq.issue(tag)
        E(post)
    oflag = [([], f"buffer_load_dwordx2 v[30:31], v253, s[48:51], s97 offen {WT}", ("F", 0), [])]
    def loop_body(E, real):
        if real:
            A.e(["s_cmp_lg_u32 s95, 0", f"s_cbranch_scc1 {L('nosw1')}"])
            srd(A, 44, P_WO, 4096 * 2048); A.e("s_mov_b32 s8, s75")
            A.label(L("nosw1"))
        for t in range(0, 8, 2):
            fss(t, E, extra=oflag if t == 2 else ())
            if t == 0 and real:
                A.e(["s_cmp_lg_u32 s95, 0", f"s_cbranch_scc1 {L('nosw')}"])
                check_flags("O", 30, 253, "s97")
                srd(A, 40, P_WS, SZ_OF, WS_OF)
                A.e(["s_mov_b32 s9, s96", "s_mov_b32 s97, s101", "v_mov_b32 v253, 0"] + [f"v_mov_b32 v{5+jj}, v{242+jj}" for jj in range(4)])
                A.label(L("nosw"))
    for t in range(0, 8, 2):
        fss(t, A.e, extra=ostores if t == 0 else (), czero=(t == 0),
            needbar=[("O", 0)] if t == oflt2 else (), afterbar=(lambda: flag_store("s89")) if t == oflt2 else None)
    stamp(6)
    vq.rebase(8); dq.rebase(8)
    q_first = (list(vq.q), list(dq.q))
    loop_body(lambda x: None, False)
    vq.rebase(8); dq.rebase(8)
    q_steady = (list(vq.q), list(dq.q))
    assert N1S >= 3 and N1Y >= 3
    _v, _d = list(vq.q), list(dq.q); fss(0, lambda x: None); assert not any(t[0] == "F" for t in vq.q); vq.q, dq.q = _v, _d
    def covers(entry, steady):
        def younger(q, tag): return len(q) - 1 - max(i for i, t in enumerate(q) if t == tag)
        for tag in set(entry):
            if tag[0] not in "WXA": continue
            if tag not in steady or younger(entry, tag) < younger(steady, tag): return False
        return True
    assert covers(q_first[0], q_steady[0]) and covers(q_first[1], q_steady[1]), (q_first, q_steady)
    A.raw(".p2align 6")
    A.label(L("floop"))
    loop_body(A.e, True)
    A.e(["s_sub_u32 s95, s95, 1", "s_sub_u32 s90, s90, 1", "s_cmp_lg_u32 s90, 0", f"s_cbranch_scc1 {L('floop')}",
         "s_cmp_lg_u32 s91, 0", f"s_cbranch_scc1 {L('flast')}"])
    stamp(3, 2)
    vq.rebase(8); dq.rebase(8)
    YS = lambda cb, jj: 160 + (cb * 2 + jj) * 4
    if mid1:
        A.e("s_nop 2")
        for jj in range(2):
            for i in range(4):
                d = YS(2 * i, jj)
                for h in range(2):
                    b = 32 + ((2 * i + h) * 4 + jj + 2) * 4
                    A.e([f"v_cvt_pk_bf16_f32 v{d+2*h}, v{b}, v{b+1}", f"v_cvt_pk_bf16_f32 v{d+2*h+1}, v{b+2}, v{b+3}"])
                A.e(f"ds_write_b128 v254, {v(d,4)} offset:{(jj*4+i)*1024}")
        A.e(["s_waitcnt lgkmcnt(0)", "s_barrier"])
        for jj in range(2):
            for i in range(4):
                A.e(f"ds_read_b128 {facc(2*i, jj+2)}, v255 offset:{(jj*4+i)*1024}")
        for jj in range(2):
            for i in range(4):
                pc = 32 + ((2 * i) * 4 + jj + 2) * 4
                A.e(f"s_waitcnt lgkmcnt({7 - (jj*4+i)})")
                for h in range(2):
                    b = 32 + ((2 * i + h) * 4 + jj) * 4; y = YS(2 * i + h, jj)
                    A.e([f"v_lshlrev_b32 v{y}, 16, v{pc+2*h}", f"v_and_b32 v{y+1}, 0xffff0000, v{pc+2*h}",
                         f"v_lshlrev_b32 v{y+2}, 16, v{pc+2*h+1}", f"v_and_b32 v{y+3}, 0xffff0000, v{pc+2*h+1}"])
                    A.e([f"v_pk_add_f32 v[{y+r_}:{y+r_+1}], v[{y+r_}:{y+r_+1}], v[{b+r_}:{b+r_+1}]" for r_ in (0, 2)])
    else:
        A.e("s_nop 2")
        for rnd in range(2):
            for cb in range(4 * rnd, 4 * rnd + 4):
                for jj in (2, 3): A.e(f"ds_write_b128 v254, {facc(cb,jj)} offset:{((cb%4)*2+jj-2)*1024}")
            if rnd == 1:
                for cb in range(4):
                    for jj in range(2):
                        b = 32 + (cb * 4 + jj) * 4; y = YS(cb, jj)
                        A.e([f"v_pk_add_f32 v[{y+r_}:{y+r_+1}], v[{b+r_}:{b+r_+1}], v[{b+8+r_}:{b+9+r_}]" for r_ in (0, 2)])
            A.e(["s_waitcnt lgkmcnt(0)", "s_barrier"])
            for cb in range(4 * rnd, 4 * rnd + 4):
                for jj in (2, 3): A.e(f"ds_read_b128 {facc(cb,jj)}, v255 offset:{((cb%4)*2+jj-2)*1024}")
            if rnd == 0: A.e(["s_waitcnt lgkmcnt(0)", "s_barrier"])
        for cb in range(4, 8):
            for jj in range(2):
                b = 32 + (cb * 4 + jj) * 4; y = YS(cb, jj)
                A.e(f"s_waitcnt lgkmcnt({7 - ((cb-4)*2+jj)})")
                A.e([f"v_pk_add_f32 v[{y+r_}:{y+r_+1}], v[{b+r_}:{b+r_+1}], v[{b+8+r_}:{b+9+r_}]" for r_ in (0, 2)])
    A.e(["s_cmp_eq_u32 s72, 0", f"s_cbranch_scc1 {L('firstC')}", "s_add_u32 s6, s92, 4096"])
    for jj in range(2):
        for i in range(4):
            d = 224 + (i % 2) * 4 + jj * 8
            for h in range(2):
                y = YS(2 * i + h, jj)
                A.e([f"v_cvt_pk_bf16_f32 v{d+2*h}, v{y}, v{y+1}", f"v_cvt_pk_bf16_f32 v{d+2*h+1}, v{y+2}, v{y+3}"])
            A.e(f"buffer_store_dwordx4 {v(d,4)}, v4, s[52:55], {'s6' if jj else 's92'} offen offset:{i*1024} {WT}")
    A.label(L("firstC"))
    stamp(4, 2)
    vq.q, dq.q = list(q_steady[0]), list(q_steady[1])
    def pflag():
        lab = L("pf")
        A.e(["s_xor_b32 s6, s72, 1", "s_or_b32 s6, s6, s3", "s_cmp_lg_u32 s6, 0", f"s_cbranch_scc1 {lab}", "s_mov_b64 exec, 1",
             f"buffer_store_dwordx2 v[250:251], v252, s[48:51], s101 offen {WT}", "s_mov_b64 exec, -1"])
        A.label(lab)
    mark = ("MARK", vq.total)
    for t in range(0, 8, 2):
        fss(t, A.e, czero=(t == 0), afterbar=pflag if t == pft2 else None, needbar=[mark] if t == pft2 else (), extra=oflag if t == 4 else ())
    FW = vq.need(("F", 0))
    vq.rebase(8); dq.rebase(8)
    assert covers(vq.q, q_steady[0]) and covers(dq.q, q_steady[1])
    stamp(5, 2)
    A.e(["s_mov_b32 s91, 1", f"s_mov_b32 s90, {(64-SS-8-tail)//8}", "s_cmp_lg_u32 s72, 0", f"s_cbranch_scc1 {L('floop')}"])
    A.e(FW); check_flags("P", 30, 252, "s101")
    YP = lambda jj, i: 224 + (jj * 4 + i) * 4
    YA = lambda i: (96 if xe else 80) + i * 4
    A.e("s_add_u32 s6, s92, 4096")
    for i in range(4):
        A.e([f"buffer_load_dwordx4 {v(YP(0,i),4)}, v4, s[52:55], s92 offen offset:{i*1024} {WT}",
             f"buffer_load_dwordx4 {a(YA(i),4)}, v4, s[52:55], s6 offen offset:{i*1024} {WT}"])
    A.e([f"s_mov_b32 s90, {(SS-8-tail)//8}", f"s_branch {L('floop')}"])
    A.label(L("flast"))
    stamp(6, 2)
    A.e(["s_mov_b32 s6, 0xbfb8aa3b", "s_mov_b32 s7, 0xbfb8aa3b", "s_cmp_lg_u32 s72, 0", f"s_cbranch_scc1 {L('ylast' if ylast else 'flast2')}"])
    for cb in range(8):
        y = YS(cb, 0); pc = YP(0, cb // 2) + 2 * (cb % 2); T0 = 240 if cb % 2 == 0 else 242
        T0 = 240
        A.e([f"v_lshlrev_b32 v{T0}, 16, v{pc}", f"v_and_b32 v{T0+1}, 0xffff0000, v{pc}",
             f"v_lshlrev_b32 v{T0+2}, 16, v{pc+1}", f"v_and_b32 v{T0+3}, 0xffff0000, v{pc+1}"])
        A.e([f"v_pk_add_f32 v[{y+r_}:{y+r_+1}], v[{y+r_}:{y+r_+1}], v[{T0+r_}:{T0+r_+1}]" for r_ in (0, 2)])
        A.e([f"v_pk_mul_f32 v[{T0+r_}:{T0+r_+1}], v[{y+r_}:{y+r_+1}], s[6:7]" for r_ in (0, 2)])
        A.e([f"v_exp_f32 v{T0+r_}, v{T0+r_}" for r_ in range(4)])
        A.e([f"v_pk_add_f32 v[{T0+r_}:{T0+r_+1}], v[{T0+r_}:{T0+r_+1}], 1.0 op_sel_hi:[1,0]" for r_ in (0, 2)])
        A.e([f"v_rcp_f32 v{T0+r_}, v{T0+r_}" for r_ in range(4)])
        A.e([f"v_pk_mul_f32 v[{y+r_}:{y+r_+1}], v[{y+r_}:{y+r_+1}], v[{T0+r_}:{T0+r_+1}]" for r_ in (0, 2)])
    A.label(L("flast2"))
    vq.q, dq.q = list(q_steady[0]), list(q_steady[1])
    va = []
    for cb in range(8):
        y = YS(cb, 1); pc = YA(cb // 2) + 2 * (cb % 2); T0 = 224 + 4 * (cb % 2)
        va += [(f"v_accvgpr_read_b32 v{T0+1}, a{pc}", 4), (f"v_accvgpr_read_b32 v{T0+3}, a{pc+1}", 4),
               (f"v_lshlrev_b32 v{T0}, 16, v{T0+1}", 4), (f"v_and_b32 v{T0+1}, 0xffff0000, v{T0+1}", 4),
               (f"v_lshlrev_b32 v{T0+2}, 16, v{T0+3}", 4), (f"v_and_b32 v{T0+3}, 0xffff0000, v{T0+3}", 4)]
        va += [(f"v_add_f32 v{y+r_}, v{y+r_}, v{T0+r_}", 4) for r_ in range(4)]
        va += [(f"v_mul_f32 v{T0+r_}, s7, v{y+r_}", 4) for r_ in range(4)]
        va += [(f"v_exp_f32 v{T0+r_}, v{T0+r_}", 8) for r_ in range(4)]
        va += [(f"v_add_f32 v{T0+r_}, 1.0, v{T0+r_}", 4) for r_ in range(4)]
        va += [(f"v_rcp_f32 v{T0+r_}, v{T0+r_}", 8) for r_ in range(4)]
        va += [(f"v_mul_f32 v{y+r_}, v{y+r_}, v{T0+r_}", 4) for r_ in range(4)]
    xw = lambda cb, jj: f"ds_write_b128 v2, {facc(cb,jj)} offset:{(cb*2+jj-2)*1024}"
    def ehook(m):
        return [xw(m // 8 - 2, 2 + (m % 8 - 4) // 2)] if (m >= 16 and m % 8 in (4, 6)) else None
    fin = [(["v_mov_b32 v29, 0"], f"buffer_load_dwordx2 v[30:31], v29, s[48:51], s93 offen {WT}", ("G", 0), [])]
    for t in range(0, 8, 2):
        fss(t, A.e, last=True, extra=fin if t == 4 else (), va=va, hook=ehook if (ew and t == 6) else None)
    A.c(f"left over fillers: {len(va)}")
    for x, c in va: A.e(x)
    stamp(7)
    A.e(["v_mov_b32 v22, s98", "v_mov_b32 v23, s99", f"s_add_u32 s6, s92, {G_SF}", f"s_add_u32 s7, s92, {G_SF+4096}",
         "s_cmp_lg_u32 s72, 0", f"s_cbranch_scc1 {L('xch')}"])
    s2loads = [f"buffer_load_dwordx4 {v(YP(jj,i),4)}, v4, s[52:55], s{6+jj} offen offset:{i*1024} {WT}" for jj in range(2) for i in range(4)]
    if sen: A.e(["s_mov_b32 s15, -1"] + s2loads)
    else:
        A.e(vq.need(("G", 0)))
        A.e(["v_cmp_ne_u64 vcc, s[98:99], v[30:31]", f"s_cbranch_vccnz {L('xch')}", "s_mov_b32 s91, 2"] + s2loads)
    A.label(L("xch"))
    A.e("s_nop 2")
    for cb in range(6 if ew else 0, 8):
        for jj in (2, 3):
            A.e(xw(cb, jj))
    A.e(["s_waitcnt lgkmcnt(0)", "s_barrier"])
    for jj in (2, 3):
        for cb in range(8):
            A.e(f"ds_read_b128 {facc(cb,jj)}, v3 offset:{(cb*2+jj-2)*1024}")
    A.e(["s_cmp_eq_u32 s72, 0", f"s_cbranch_scc1 {L('sepi')}"])
    for jj in range(2):
        for i in range(4):
            dst = 160 + (jj * 4 + i) * 4
            for h in range(2):
                cb = 2 * i + h
                A.e(f"s_waitcnt lgkmcnt({15 - (jj*8+cb)})")
                b = 32 + (cb * 4 + jj) * 4
                A.e([f"v_pk_add_f32 v[{b+r_}:{b+r_+1}], v[{b+r_}:{b+r_+1}], v[{b+8+r_}:{b+9+r_}]" for r_ in (0, 2)])
                A.e([f"v_cvt_pk_bf16_f32 v{dst+2*h}, v{b}, v{b+1}", f"v_cvt_pk_bf16_f32 v{dst+2*h+1}, v{b+2}, v{b+3}"])
            if sen: A.e([f"v_min_u32 v{dst+k}, -2, v{dst+k}" for k in range(4)])
            A.e(f"buffer_store_dwordx4 {v(dst,4)}, v4, s[52:55], s{6+jj} offen offset:{i*1024} {WT}")
    if sen: A.e(f"s_branch {L('fin')}")
    else:
        A.e(["s_waitcnt vmcnt(0)", "s_mov_b64 exec, 1",
             f"buffer_store_dwordx2 v[22:23], v29, s[48:51], s93 offen {WT}", "s_mov_b64 exec, -1", f"s_branch {L('fin')}"])
    A.label(L("sepi"))
    XR = lambda cb, jj: (224 if xe else 96) + (cb * 2 + jj) * 2
    if not xe:
        A.e(["v_and_b32 v1, 15, v0", "v_lshrrev_b32 v5, 5, v0", "v_xor_b32 v5, v5, v1", "v_bfe_u32 v6, v0, 4, 1", "v_lshlrev_b32 v6, 3, v6",
             "v_lshl_add_u32 v6, v1, 8, v6", "s_lshl_b32 s15, s3, 13", "s_add_u32 s15, s15, 0x10000", "v_add_u32 v6, s15, v6"])
        for cb in range(8):
            A.e([f"v_xor_b32 v7, {2*cb}, v5", "v_lshl_add_u32 v7, v7, 4, v6",
                 f"ds_read_b64 {a(XR(cb,0),2)}, v7", f"ds_read_b64 {a(XR(cb,1),2)}, v7 offset:4096"])
    if fast:
        A.e(["s_cmp_lg_u32 s91, 2", f"s_cbranch_scc1 {L('slowp')}", "s_waitcnt lgkmcnt(0)"])
        for jj in range(2):
            for i in range(4):
                o = YP(jj, i)
                for h in range(2):
                    cb = 2 * i + h
                    b = 32 + (cb * 4 + jj) * 4; y = YS(cb, jj); xa = XR(cb, jj); T0 = 8 + 8 * h
                    A.e([f"v_accvgpr_read_b32 v{T0+1}, a{xa}", f"v_accvgpr_read_b32 v{T0+3}, a{xa+1}"])
                    A.e([f"v_pk_add_f32 v[{b+r_}:{b+r_+1}], v[{b+r_}:{b+r_+1}], v[{b+8+r_}:{b+9+r_}]" for r_ in (0, 2)])
                    A.e([f"v_lshlrev_b32 v{T0}, 16, v{T0+1}", f"v_and_b32 v{T0+1}, 0xffff0000, v{T0+1}",
                         f"v_lshlrev_b32 v{T0+2}, 16, v{T0+3}", f"v_and_b32 v{T0+3}, 0xffff0000, v{T0+3}"])
                    if h == 0: A.e("s_waitcnt vmcnt(7)")
                    A.e([f"v_lshlrev_b32 v{T0+4}, 16, v{o+2*h}", f"v_and_b32 v{T0+5}, 0xffff0000, v{o+2*h}",
                         f"v_lshlrev_b32 v{T0+6}, 16, v{o+2*h+1}", f"v_and_b32 v{T0+7}, 0xffff0000, v{o+2*h+1}"])
                    A.e([f"v_pk_fma_f32 v[{b+r_}:{b+r_+1}], v[{b+r_}:{b+r_+1}], v[{y+r_}:{y+r_+1}], v[{T0+r_}:{T0+r_+1}]" for r_ in (0, 2)])
                    A.e([f"v_pk_fma_f32 v[{b+r_}:{b+r_+1}], v[{T0+4+r_}:{T0+5+r_}], v[{y+r_}:{y+r_+1}], v[{b+r_}:{b+r_+1}]" for r_ in (0, 2)])
                    A.e([f"v_cvt_pk_bf16_f32 v{o+2*h}, v{b}, v{b+1}", f"v_cvt_pk_bf16_f32 v{o+2*h+1}, v{b+2}, v{b+3}"])
                A.e(["s_nop 1", f"v_permlane32_swap_b32 v{o}, v{o+2}", f"v_permlane32_swap_b32 v{o+1}, v{o+3}", "s_nop 0",
                     f"v_permlane16_swap_b32 v{o}, v{o+2}", f"v_permlane16_swap_b32 v{o+1}, v{o+3}",
                     f"buffer_store_dwordx4 {v(o,4)}, v{27+jj}, s[68:71], s94 offen offset:{i*64}"])
        A.e(f"s_branch {L('fin')}")
        A.label(L("slowp"))
    for n in range(16):
        jj, cb = n // 8, n % 8
        b = 32 + (cb * 4 + jj) * 4; y = YS(cb, jj); xa = XR(cb, jj); T0 = 8 + 4 * (n % 2)
        if n == 0: A.e("s_waitcnt lgkmcnt(0)")
        A.e([f"v_accvgpr_read_b32 v{T0+1}, a{xa}", f"v_accvgpr_read_b32 v{T0+3}, a{xa+1}"])
        A.e([f"v_pk_add_f32 v[{b+r_}:{b+r_+1}], v[{b+r_}:{b+r_+1}], v[{b+8+r_}:{b+9+r_}]" for r_ in (0, 2)])
        A.e([f"v_lshlrev_b32 v{T0}, 16, v{T0+1}", f"v_and_b32 v{T0+1}, 0xffff0000, v{T0+1}",
             f"v_lshlrev_b32 v{T0+2}, 16, v{T0+3}", f"v_and_b32 v{T0+3}, 0xffff0000, v{T0+3}"])
        A.e([f"v_pk_fma_f32 v[{b+r_}:{b+r_+1}], v[{b+r_}:{b+r_+1}], v[{y+r_}:{y+r_+1}], v[{T0+r_}:{T0+r_+1}]" for r_ in (0, 2)])
    if sen:
        A.e(SPINB)
        A.label(L("poll"))
        A.e(["s_waitcnt vmcnt(0)", "v_max3_u32 v8, v224, v225, v226", "v_max3_u32 v9, v227, v228, v229"])
        for k in range(230, 254, 4): A.e([f"v_max3_u32 v8, v8, v{k}, v{k+1}", f"v_max3_u32 v9, v9, v{k+2}, v{k+3}"])
        A.e(["v_max3_u32 v8, v8, v254, v255", "v_max_u32 v8, v8, v9", "v_cmp_eq_u32 vcc, s15, v8", f"s_cbranch_vccz {L('have')}",
             "s_sub_u32 s12, s12, 1", f"s_cbranch_scc1 {L('have')}"] + s2loads + [f"s_branch {L('poll')}"])
    else:
        A.e(["s_cmp_eq_u32 s91, 2", f"s_cbranch_scc1 {L('have')}", SPINB])
        A.label(L("poll"))
        A.e([f"buffer_load_dwordx2 v[30:31], v29, s[48:51], s93 offen {WT}", "s_waitcnt vmcnt(0)",
             "s_sub_u32 s12, s12, 1", f"s_cbranch_scc1 {L('got')}",
             "v_cmp_ne_u64 vcc, s[98:99], v[30:31]", f"s_cbranch_vccz {L('got')}", "s_sleep 1", f"s_branch {L('poll')}"])
        A.label(L("got"))
        A.e(s2loads)
    A.label(L("have"))
    for jj in range(2):
        for i in range(4):
            o = YP(jj, i)
            if not sen: A.e("s_waitcnt vmcnt(7)")
            for h in range(2):
                cb = 2 * i + h
                b = 32 + (cb * 4 + jj) * 4; y = YS(cb, jj); T0 = 8 + 4 * h
                A.e([f"v_lshlrev_b32 v{T0}, 16, v{o+2*h}", f"v_and_b32 v{T0+1}, 0xffff0000, v{o+2*h}",
                     f"v_lshlrev_b32 v{T0+2}, 16, v{o+2*h+1}", f"v_and_b32 v{T0+3}, 0xffff0000, v{o+2*h+1}"])
                A.e([f"v_pk_fma_f32 v[{b+r_}:{b+r_+1}], v[{T0+r_}:{T0+r_+1}], v[{y+r_}:{y+r_+1}], v[{b+r_}:{b+r_+1}]" for r_ in (0, 2)])
                A.e([f"v_cvt_pk_bf16_f32 v{o+2*h}, v{b}, v{b+1}", f"v_cvt_pk_bf16_f32 v{o+2*h+1}, v{b+2}, v{b+3}"])
            A.e(["s_nop 1", f"v_permlane32_swap_b32 v{o}, v{o+2}", f"v_permlane32_swap_b32 v{o+1}, v{o+3}", "s_nop 0",
                 f"v_permlane16_swap_b32 v{o}, v{o+2}", f"v_permlane16_swap_b32 v{o+1}, v{o+3}",
                 f"buffer_store_dwordx4 {v(o,4)}, v{27+jj}, s[68:71], s94 offen offset:{i*64}"])
    A.label(L("fin"))
    if stamps:
        srd(A, 40, P_WS, 0x100000, WS_STAMP)
        A.e(["s_waitcnt vmcnt(0)", "s_memtime s[76:77]", "s_memrealtime s[78:79]", "s_waitcnt lgkmcnt(0)",
             "v_mov_b32 v8, s76", "v_mov_b32 v9, s78", "v_mov_b32 v10, s72", "s_getreg_b32 s10, hwreg(HW_REG_XCC_ID)", "v_mov_b32 v11, s10",
             "s_lshl_b32 s10, s2, 2", "s_add_u32 s10, s10, s3", "s_lshl_b32 s10, s10, 7", "v_mov_b32 v1, s10", "s_mov_b64 exec, 1"])
        A.e("buffer_store_dwordx4 v[8:11], v1, s[40:43], 0 offen offset:64")
    if dbgst:
        srd(A, 40, P_DBG, 256)
        A.e(["s_and_b32 s10, s2, 0xfb", "s_or_b32 s10, s10, s3", "s_cmp_lg_u32 s10, 0", f"s_cbranch_scc1 {L('end')}", "s_mov_b64 exec, 1",
             "v_accvgpr_read_b32 v12, a241", "s_lshl_b32 s10, s2, 3", "v_mov_b32 v1, s10"])
        for k in range(1, 8): A.e([f"v_accvgpr_read_b32 v13, a{241+2*k}", f"v_sub_u32 v{15+k}, v13, v12"])
        A.e(["v_sub_u32 v23, v9, v12", "buffer_store_dwordx4 v[16:19], v1, s[40:43], 0 offen", "buffer_store_dwordx4 v[20:23], v1, s[40:43], 0 offen offset:16"])
    A.label(L("end"))
    A.e("s_endpgm")
    if ylast:
        A.label(L("ylast"))
        vq.q, dq.q = list(q_steady[0]), list(q_steady[1])
        for t in range(0, 8, 2):
            fss(t, A.e, last=True, hook=ehook if (ew and t == 6) else None)
        stamp(7)
        A.e(["v_mov_b32 v29, 0", "v_mov_b32 v22, s98", "v_mov_b32 v23, s99", f"s_add_u32 s6, s92, {G_SF}", f"s_add_u32 s7, s92, {G_SF+4096}", f"s_branch {L('xch')}"])
    for tag, reg, addr, off in spins:
        A.label(L("spin" + tag))
        A.e(SPINB)
        A.label(L("spinl" + tag))
        A.e(["s_sleep 2", f"buffer_load_dwordx2 v[{reg}:{reg+1}], v{addr}, s[48:51], {off} offen {WT}", "s_waitcnt vmcnt(0)",
             "s_sub_u32 s12, s12, 1", f"s_cbranch_scc1 {L('ok' + tag)}",
             f"v_cmp_ne_u64 vcc, s[98:99], v[{reg}:{reg+1}]", f"s_cbranch_vccnz {L('spinl' + tag)}", f"s_branch {L('ok' + tag)}"])
    for T in rare_sites:
        A.label(L("rs%d" % T))
        A.e([f"s_call_b64 s[6:7], {L('rare%d' % (T & 1))}", f"s_branch {L('rb%d' % T)}"])
    for b in range(2):
        A.label(L("rare%d" % b))
        A.e(["s_nop 15", "s_nop 15"])
        for mu in range(2):
            S = SB(b, mu); S2 = SB(b ^ 1, mu)
            A.e(rowmax(S, VT, VT + 2))
            A.e([f"v_max_f32 v{VT}, 0, v{VT}", f"v_exp_f32 v{VT+1}, -v{VT}"])
            A.e([f"v_sub_f32 v{NM(mu)+k}, v{NM(mu)+k}, v{VT}" for k in range(16)])
            A.e([f"v_sub_f32 v{S+k}, v{S+k}, v{VT}" for k in range(16)])
            A.e([f"v_sub_f32 v{S2+k}, v{S2+k}, v{VT}" for k in range(16)])
            A.e(f"v_mul_f32 v{VL+mu}, v{VL+mu}, v{VT+1}")
            for i in range(4):
                o = (i * 2 + mu) * 16
                for k in range(16):
                    A.e([f"v_accvgpr_read_b32 v{VT+2}, a{o+k}", f"v_mul_f32 v{VT+2}, v{VT+2}, v{VT+1}", f"v_accvgpr_write_b32 a{o+k}, v{VT+2}"])
            for k in range(0, 16, 2):
                A.e([f"v_exp_f32 v{EB}, v{S+k}", f"v_exp_f32 v{EB+1}, v{S+k+1}", "s_nop 0",
                     f"v_cvt_pk_bf16_f32 v{PB(b,mu)+k//2}, v{EB}, v{EB+1}", f"v_add_f32 v{EB}, v{EB}, v{EB+1}",
                     f"v_mov_b32 v{VTS+mu}, v{EB}" if k == 0 else f"v_add_f32 v{VTS+mu}, v{VTS+mu}, v{EB}"])
        A.e(["s_nop 3", "s_setpc_b64 s[6:7]"])
    A.label(f"{name}_codeend")
    return (name, 512, 256, "(256,1,1)", "(256,1,1)", 163840)
```
